```python
import torch

def _softmax(x, axis=-1):
    return torch.softmax(x, dim=axis)
def _gelu(x):
    return torch.nn.functional.gelu(x, approximate="tanh")
def _silu(x):
    return torch.nn.functional.silu(x)
def _sigmoid(x):
    return torch.sigmoid(x)
def _layernorm(x, axis=-1, eps=1e-5):
    m = x.mean(dim=axis, keepdim=True)
    v = x.var(dim=axis, keepdim=True, unbiased=False)
    return (x - m) / torch.sqrt(v + eps)
def _scatter_add(tgt, idx, src, axis=0):
    return tgt.clone().index_add_(axis, idx, src)
def _segment_sum(src, seg, n):
    out = torch.zeros((n,) + src.shape[1:], dtype=src.dtype)
    return out.index_add_(0, seg, src)
def _pad(x, pw):
    flat = tuple(v for pair in reversed(pw) for v in pair)
    return torch.nn.functional.pad(x, flat)

kernel_name = 'concat_heads__linear_attn_block__sliding_local_dilated__prompt'

def setup_inputs():

    _w = (lambda a: (lambda t: t.to(torch.bfloat16) if t.is_floating_point() else t)(torch.as_tensor(a)))
    def _A_setup():
        B, S, D = 1, 2048, 448
        return {
            "x": _w((lambda *s: torch.randn(*s, dtype=torch.bfloat16) * 0.05)(B, S, D)),
            "wqkv": _w((lambda *s: torch.randn(*s, dtype=torch.bfloat16) * 1.6)(D, 3 * D)),
            "wo": _w((lambda *s: torch.randn(*s, dtype=torch.bfloat16) * 0.8)(D, D)),
        }
    _A_in = _A_setup()

    def _B_setup():
        B, S, D = 1, 2048, 448
        return {
            "x": _w((lambda *s: torch.randn(*s, dtype=torch.bfloat16) * 0.2)(B, S, D)),
            "wqkv": _w((lambda *s: torch.randn(*s, dtype=torch.bfloat16) * 0.2)(D, 3 * D)),
            "wo": _w((lambda *s: torch.randn(*s, dtype=torch.bfloat16) * 0.05)(D, D)),
        }
    _B_in = _B_setup()

    return {
        "A_x": _A_in["x"],
        "A_wqkv": _A_in["wqkv"],
        "A_wo": _A_in["wo"],
        "B_x": _B_in["x"],
        "B_wqkv": _B_in["wqkv"],
        "B_wo": _B_in["wo"],
    }

def reference(A_x, A_wqkv, A_wo, B_x, B_wqkv, B_wo):
    def _A_ref(x, wqkv, wo):
        B, S, D = x.shape
        H = 16; Dh = D // H
        qkv = (lambda x, *d: x.permute(*d))((x @ wqkv).reshape(B, S, 3, H, Dh), 2, 0, 3, 1, 4)
        q, k, v = qkv[0], qkv[1], qkv[2]
        phi = lambda t: torch.where(t > 0, t + 1, torch.exp(t)) + 1e-6
        pq, pk = phi(q), phi(k)
        kv = torch.einsum("bhsd,bhse->bhde", pk, v)
        z = torch.einsum("bhsd->bhd", pk)
        num = torch.einsum("bhqd,bhde->bhqe", pq, kv)
        den = torch.einsum("bhqd,bhd->bhq", pq, z)[..., None] + 1e-6
        o = num / den
        return (lambda x, *d: x.permute(*d))(o, 0, 2, 1, 3).reshape(B, S, D) @ wo

    def _B_ref(x, wqkv, wo):
        B, S, D = x.shape
        H = 16; Dh = D // H
        W, dil = 8, 2
        qkv = (lambda x, *d: x.permute(*d))((x @ wqkv).reshape(B, S, 3, H, Dh), 2, 0, 3, 1, 4)
        q, k, v = qkv[0], qkv[1], qkv[2]
        scale = Dh ** -0.5
        pos = torch.arange(S)
        off = torch.arange(W) * dil
        idx = pos[:, None] - off[None, :]
        mask = idx >= 0
        idx_c = torch.where(mask, idx, 0).reshape(-1)
        kg = k[:, :, idx_c, :].reshape(B, H, S, W, Dh)
        vg = v[:, :, idx_c, :].reshape(B, H, S, W, Dh)
        logits = torch.einsum("bhsd,bhswd->bhsw", q, kg) * scale
        logits = torch.where(mask[None, None, :, :], logits, -1e9)
        attn = _softmax(logits, axis=-1)
        o = torch.einsum("bhsw,bhswd->bhsd", attn, vg)
        return (lambda x, *d: x.permute(*d))(o, 0, 2, 1, 3).reshape(B, S, D) @ wo

    a = _A_ref(A_x, A_wqkv, A_wo)
    b = _B_ref(B_x, B_wqkv, B_wo)
    return torch.concatenate([a, b], axis=-1)
```

```python
import sys
NAME = "concat_heads__linear_attn_block__sliding_local_dilated__prompt"
PQ_A = 0
O_B = 0x1C0000
KVP = 0x380000
KVF = 0x520000
WOA = 0x530000
WOB = 0x5A0000
WS_END = 0x602000
LOG2E = 0x3FB8AA3B
EPS = 0x358637BD
SCALE = 0x3E41848F
import struct
assert abs(struct.unpack('<f', struct.pack('<I', SCALE))[0] - 28 ** -0.5) < 1e-7
for s in range(1344):
    assert (s * 3121) >> 16 == s // 21
for s in range(21):
    assert (s * 37) >> 8 == s // 7

L = []
def e(s): L.append("    " + s)
def lab(s): L.append(s + ":")
def c(s): L.append("    ; " + s)

PAIRS = [(0,0),(0,1),(1,0),(1,1),(1,2),(1,3),(2,1),(2,2),(2,3),(3,1),(3,2),(3,3),(0,3)]

def unpack(dlo, dhi, src):
    e(f"v_lshlrev_b32 v{dlo}, 16, v{src}")
    e(f"v_and_b32 v{dhi}, 0xffff0000, v{src}")

def phi_pair(dst, a, b, t):
    e(f"v_cvt_pk_bf16_f32 v{t}, v{a}, v{b}")
    unpack(t+1, t+2, t)
    e(f"v_mul_f32 v{t+3}, 0x{LOG2E:x}, v{t+1}")
    e(f"v_mul_f32 v{t+4}, 0x{LOG2E:x}, v{t+2}")
    e(f"v_exp_f32 v{t+3}, v{t+3}")
    e(f"v_exp_f32 v{t+4}, v{t+4}")
    e(f"v_cmp_lt_f32 vcc, 0, v{t+1}")
    e(f"v_add_f32 v{t+1}, 1.0, v{t+1}")
    e(f"v_cmp_lt_f32 s[60:61], 0, v{t+2}")
    e(f"v_add_f32 v{t+2}, 1.0, v{t+2}")
    e(f"v_cndmask_b32 v{t+3}, v{t+3}, v{t+1}, vcc")
    e(f"v_cndmask_b32 v{t+4}, v{t+4}, v{t+2}, s[60:61]")
    e(f"v_cvt_pk_bf16_f32 v{t}, v{t+3}, v{t+4}")
    unpack(t+1, t+2, t)
    e(f"v_add_f32 v{t+1}, 0x{EPS:x}, v{t+1}")
    e(f"v_add_f32 v{t+2}, 0x{EPS:x}, v{t+2}")
    e(f"v_cvt_pk_bf16_f32 v{dst}, v{t+1}, v{t+2}")

def srd(base, lo, hi, nbytes):
    e(f"s_mov_b32 s{base}, s{lo}")
    e(f"s_and_b32 s{base+1}, s{hi}, 0xffff")
    e(f"s_mov_b32 s{base+2}, 0x{nbytes:x}")
    e(f"s_mov_b32 s{base+3}, 0x20000")

XF = 32
BF = 200
T = 232

def k1_prologue():
    e("s_cmp_ge_u32 s2, 256")
    e("s_cbranch_scc1 K1_END")
    e("s_load_dwordx4 s[4:7], s[0:1], 0")
    e("s_load_dwordx4 s[8:11], s[0:1], 16")
    e("s_load_dwordx4 s[12:15], s[0:1], 32")
    e("s_load_dwordx4 s[16:19], s[0:1], 48")
    e("s_load_dwordx2 s[20:21], s[0:1], 64")
    e("s_and_b32 s22, s2, 7")
    e("s_lshr_b32 s23, s2, 3")
    e("s_lshr_b32 s24, s22, 2")
    e("s_and_b32 s27, s22, 3")
    e("s_lshr_b32 s25, s27, 1")
    e("s_lshl_b32 s25, s25, 3")
    e("s_and_b32 s3, s23, 7")
    e("s_add_u32 s25, s25, s3")
    e("s_and_b32 s26, s27, 1")
    e("s_lshl_b32 s26, s26, 2")
    e("s_lshr_b32 s3, s23, 3")
    e("s_add_u32 s26, s26, s3")
    e("v_lshrrev_b32 v1, 6, v0")
    e("v_and_b32 v2, 63, v0")
    e("v_readfirstlane_b32 s48, v1")
    e("s_waitcnt lgkmcnt(0)")
    srd(40, 20, 21, WS_END)
    srd(44, 18, 19, 256)
    e("s_cmp_eq_u32 s24, 0")
    e("s_cbranch_scc0 K1_SELB")
    srd(28, 4, 5, 2048*896)
    srd(32, 6, 7, 448*2688)
    srd(36, 8, 9, 448*896)
    e("s_branch K1_SELDONE")
    lab("K1_SELB")
    srd(28, 10, 11, 2048*896)
    srd(32, 12, 13, 448*2688)
    srd(36, 14, 15, 448*896)
    lab("K1_SELDONE")
    for j in range(6):
        e(f"v_add_u32 v3, {4*j}, v1")
        e(f"v_subrev_u32 v4, 21, v3")
        e(f"v_cmp_le_u32 vcc, 21, v3")
        e("s_nop 1")
        e(f"v_cndmask_b32 v3, v3, v4, vcc")
        e(f"v_lshl_add_u32 v3, v3, 6, v2")
        e(f"v_mul_u32_u24 v4, 3121, v3")
        e(f"v_lshrrev_b32 v4, 16, v4")
        e(f"v_mul_u32_u24 v5, 21, v4")
        e(f"v_sub_u32 v3, v3, v5")
        e(f"v_mul_u32_u24 v5, 37, v3")
        e(f"v_lshrrev_b32 v5, 8, v5")
        e(f"v_mul_u32_u24 v6, 7, v5")
        e(f"v_sub_u32 v3, v3, v6")
        e(f"v_mul_u32_u24 v4, 2688, v4")
        e(f"v_mul_u32_u24 v5, 896, v5")
        e(f"v_lshlrev_b32 v3, 4, v3")
        e(f"v_add3_u32 v{8+j}, v3, v4, v5")
        e(f"s_add_u32 s{50+j}, s48, {4*j}")
        e(f"s_cmp_ge_u32 s{50+j}, 21")
        e(f"s_cselect_b32 s3, 21, 0")
        e(f"s_sub_u32 s{50+j}, s{50+j}, s3")
        e(f"s_lshl_b32 s{50+j}, s{50+j}, 10")
    e("v_lshrrev_b32 v3, 4, v2")
    e("v_bfe_u32 v4, v2, 2, 2")
    e("v_lshl_add_u32 v4, v3, 3, v4")
    e("v_mul_u32_u24 v4, 336, v4")
    e("v_and_b32 v5, 3, v2")
    e("v_lshl_add_u32 v14, v5, 3, v4")
    e("v_and_b32 v4, 15, v2")
    e("s_lshl_b32 s3, s25, 7")
    e("v_lshl_add_u32 v5, v1, 5, v4")
    e("v_add_u32 v5, s3, v5")
    e("v_mul_u32_u24 v5, 896, v5")
    e("v_lshl_add_u32 v15, v3, 4, v5")
    e("v_add_u32 v16, 14336, v15")
    e("v_add_u32 v5, s3, v4")
    e("v_subrev_u32 v5, 16, v5")
    e("v_mul_lo_u32 v5, v5, s49") if False else None
    e("s_movk_i32 s49, 896")
    e("v_mul_lo_u32 v5, v5, s49")
    e("v_lshl_add_u32 v17, v3, 4, v5")
    e("s_mul_i32 s56, s26, 112")

def k1_issue_loads(isB):
    for ch in range(7):
        for j in range(6):
            e(f"s_add_u32 m0, s{50+j}, {ch*21504}")
            e("s_nop 0")
            e(f"buffer_load_dwordx4 v{8+j}, s[32:35], s56 offen lds")
        for kk in range(2):
            ks = 2*ch + kk
            for rt in range(3):
                if rt == 2 and not isB: continue
                e(f"buffer_load_dwordx4 v[{XF+(ks*3+rt)*4}:{XF+(ks*3+rt)*4+3}], v{15+rt}, s[28:31], 0 offen offset:{ks*64}")
        if ch < 6:
            e("s_add_u32 s56, s56, 172032")

def wo_prep_loads(isB):
    nper = 196 if isB else 224
    e("s_lshl_b32 s3, s25, 3")
    e("s_add_u32 s3, s3, s26")
    e(f"s_mul_i32 s3, s3, {nper}")
    e("v_add_u32 v3, s3, v0")
    e("v_lshrrev_b32 v4, 6, v3")
    e("v_mul_u32_u24 v5, 2341, v4")
    e("v_lshrrev_b32 v5, 16, v5")
    e("v_mul_u32_u24 v6, 28, v5")
    e("v_sub_u32 v4, v4, v6")
    e("v_bfe_u32 v6, v3, 4, 2")
    e("v_and_b32 v7, 15, v3")
    e("v_lshl_add_u32 v7, v4, 4, v7")
    e("v_lshlrev_b32 v7, 1, v7")
    if isB:
        e("v_lshlrev_b32 v5, 5, v5")
        e("v_lshl_add_u32 v5, v6, 3, v5")
        e("v_mul_u32_u24 v5, 896, v5")
        e("v_add_u32 v5, v5, v7")
        e(f"v_cmp_gt_u32 vcc, {nper}, v0")
        e("v_mov_b32 v6, 0x7fff0000")
        e("s_nop 0")
        e("v_cndmask_b32 v5, v6, v5, vcc")
        for j in range(8):
            e(f"v_add_u32 v6, {j*896}, v5")
            e(f"buffer_load_ushort v{20+j}, v6, s[36:39], 0 offen")
    else:
        e("v_mul_u32_u24 v5, 28, v5")
        e("v_lshl_add_u32 v5, v6, 2, v5")
        e("v_mul_u32_u24 v5, 896, v5")
        e("v_add_u32 v5, v5, v7")
        e(f"v_cmp_gt_u32 vcc, {nper}, v0")
        e("v_mov_b32 v4, 0x7fff0000")
        e("s_nop 0")
        e("v_cndmask_b32 v5, v4, v5, vcc")
        e("v_cmp_gt_u32 vcc, 3, v6")
        e("s_nop 1")
        e("v_cndmask_b32 v6, v4, v5, vcc")
        for j in range(4):
            e(f"v_add_u32 v4, {j*896}, v5")
            e(f"buffer_load_ushort v{20+j}, v4, s[36:39], 0 offen")
        for j in range(4):
            e(f"v_add_u32 v4, {(16+j)*896}, v6")
            e(f"buffer_load_ushort v{24+j}, v4, s[36:39], 0 offen")
    e("v_lshlrev_b32 v28, 4, v3")
for s in range(14*28+16*28+64):
    assert (s * 2341) >> 16 == s // 28

def wo_prep_store(isB):
    nper = 196 if isB else 224
    for j in range(4):
        e(f"v_lshl_or_b32 v{20+j}, v{21+2*j}, 16, v{20+2*j}") if j == 0 else e(f"v_lshl_or_b32 v{20+j}, v{21+2*j}, 16, v{20+2*j}")
    e(f"v_cmp_gt_u32 vcc, {nper}, v0")
    e("s_and_saveexec_b64 s[62:63], vcc")
    e(f"buffer_store_dwordx4 v[20:23], v28, s[40:43], 0 offen offset:0") if False else None
    e(f"s_mov_b32 s3, 0x{(WOB if isB else WOA):x}")
    e(f"buffer_store_dwordx4 v[20:23], v28, s[40:43], s3 offen")
    e("s_mov_b64 exec, s[62:63]")

def k1_gemm(isB):
    per = 6 + (6 if isB else 4)
    total_after = 8
    for ch in range(7):
        n = (6 - ch) * per + total_after
        e(f"s_waitcnt vmcnt({min(n,63)})")
        e("s_barrier")
        for kk in range(2):
            ks = 2*ch + kk
            def rd(grp, buf):
                for t in range(4):
                    ct = grp*4 + t
                    for hf in range(2):
                        off = (32*kk + 4*hf)*336 + grp*112 + t*32
                        r = BF + buf*16 + t*4 + hf*2
                        e(f"ds_read_b64_tr_b16 v[{r}:{r+1}], v14 offset:{off}")
            rd(0, 0)
            for grp in range(3):
                if grp < 2:
                    rd(grp+1, (grp+1) & 1)
                    e("s_waitcnt lgkmcnt(8)")
                else:
                    e("s_waitcnt lgkmcnt(0)")
                for t in range(4):
                    ct = grp*4 + t
                    b = BF + (grp & 1)*16 + t*4
                    for rt in range(3):
                        if rt == 2:
                            if not isB or grp == 0: continue
                        x = XF + (ks*3+rt)*4
                        a = (rt*12 + ct)*4 if rt < 2 else 96 + (ct-4)*4
                        tr = isB or grp == 0
                        if rt == 2:
                            pass
                        if tr:
                            e(f"v_mfma_f32_16x16x32_bf16 a[{a}:{a+3}], v[{b}:{b+3}], v[{x}:{x+3}], a[{a}:{a+3}]")
                        else:
                            e(f"v_mfma_f32_16x16x32_bf16 a[{a}:{a+3}], v[{x}:{x+3}], v[{b}:{b+3}], a[{a}:{a+3}]")
        if ch < 6:
            e("v_add_u32 v14, 21504, v14")

def k1_epi_A():
    c("---- branch A epilogue ----")
    e("s_nop 7")
    e("s_nop 7")
    e("v_lshrrev_b32 v3, 4, v2")
    e("s_mul_i32 s3, s26, 112")
    e("v_lshlrev_b32 v4, 3, v3")
    e("v_sub_u32 v4, v15, v4")
    e("v_add_u32 v4, s3, v4")
    e("v_cmp_gt_u32 s[64:65], 2, v3")
    for rt in range(2):
        for ft in range(4):
            a = (rt*12 + ft)*4
            for r in range(4):
                e(f"v_accvgpr_read_b32 v{T+8+r}, a{a+r}")
            phi_pair(T+12, T+8, T+9, T)
            phi_pair(T+13, T+10, T+11, T)
            if ft == 3:
                e("s_and_saveexec_b64 s[62:63], s[64:65]")
            e(f"buffer_store_dwordx2 v[{T+12}:{T+13}], v4, s[40:43], 0 offen offset:{rt*14336 + ft*32}") if rt*14336+ft*32 < 4096 else (
                e(f"v_add_u32 v5, {rt*14336}, v4"),
                e(f"buffer_store_dwordx2 v[{T+12}:{T+13}], v5, s[40:43], 0 offen offset:{ft*32}"))
            if ft == 3:
                e("s_mov_b64 exec, s[62:63]")
            e("s_nop 1")
    e("v_and_b32 v5, 15, v2")
    e("v_cmp_le_u32 s[64:65], 8, v5")
    for kt in range(4):
        for rt in range(2):
            a = (rt*12 + 4 + kt)*4
            for r in range(4):
                e(f"v_accvgpr_read_b32 v{T+8+r}, a{a+r}")
            phi_pair(32 + kt*4 + rt*2, T+8, T+9, T)
            phi_pair(32 + kt*4 + rt*2 + 1, T+10, T+11, T)
    e("v_mov_b32 v6, 0x3f803f80")
    for vt in range(4):
        for rt in range(2):
            a = (rt*12 + 8 + vt)*4
            for r in range(4):
                e(f"v_accvgpr_read_b32 v{T+8+r}, a{a+r}")
            d = 48 + vt*4 + rt*2
            e(f"v_cvt_pk_bf16_f32 v{d}, v{T+8}, v{T+9}")
            e(f"v_cvt_pk_bf16_f32 v{d+1}, v{T+10}, v{T+11}")
            if vt == 3:
                e(f"v_cndmask_b32 v{d}, v{d}, v6, s[64:65]")
                e(f"v_cndmask_b32 v{d+1}, v{d+1}, v6, s[64:65]")
    for i in range(52):
        e(f"v_mov_b32 v{64+i}, 0")
    e("s_nop 1")
    for i, (kt, vt) in enumerate(PAIRS):
        d = 64 + i*4
        e(f"v_mfma_f32_16x16x32_bf16 v[{d}:{d+3}], v[{32+kt*4}:{35+kt*4}], v[{48+vt*4}:{51+vt*4}], v[{d}:{d+3}]")
    e("s_barrier")
    e("s_nop 7")
    e("s_mul_i32 s3, s48, 13312")
    e("v_lshlrev_b32 v3, 4, v2")
    e("v_add_u32 v3, s3, v3")
    for i in range(13):
        e(f"ds_write_b128 v3, v[{64+i*4}:{67+i*4}] offset:{i*1024}")
    e("s_waitcnt lgkmcnt(0)")
    e("s_barrier")
    e("v_lshlrev_b32 v3, 4, v0")
    e("s_lshl_b32 s3, s26, 4")
    e("s_add_u32 s3, s3, s25")
    e("s_mul_i32 s3, s3, 13312")
    e(f"s_add_u32 s3, s3, 0x{KVP:x}")
    for it in range(4):
        if it == 3:
            e("v_cmp_gt_u32 vcc, 64, v0")
            e("s_and_saveexec_b64 s[62:63], vcc")
        for w in range(4):
            e(f"ds_read_b128 v[{128+w*4}:{131+w*4}], v3 offset:{w*13312 + it*4096}")
        e("s_waitcnt lgkmcnt(0)")
        for r in range(4):
            e(f"v_add_f32 v{128+r}, v{128+r}, v{132+r}")
            e(f"v_add_f32 v{136+r}, v{136+r}, v{140+r}")
        for r in range(4):
            e(f"v_add_f32 v{128+r}, v{128+r}, v{136+r}")
        e(f"buffer_store_dwordx4 v[128:131], v3, s[40:43], s3 offen offset:0 sc0 sc1") if it == 0 else (
            e(f"v_add_u32 v4, {it*4096}, v3"),
            e(f"buffer_store_dwordx4 v[128:131], v4, s[40:43], s3 offen sc0 sc1"))
        e("s_nop 1")
        if it == 3:
            e("s_mov_b64 exec, s[62:63]")
    e("s_waitcnt vmcnt(0)")
    e("s_barrier")
    e("v_cmp_eq_u32 vcc, 0, v0")
    e("s_and_saveexec_b64 s[62:63], vcc")
    e("s_lshl_b32 s3, s26, 2")
    e("v_mov_b32 v3, s3")
    e("v_mov_b32 v4, 1")
    e("buffer_atomic_add v4, v3, s[44:47], 0 offen sc0 sc1")
    e("s_waitcnt vmcnt(0)")
    e("v_mov_b32 v3, 0")
    e("ds_write_b32 v3, v4 offset:60000")
    e("s_waitcnt lgkmcnt(0)")
    e("s_mov_b64 exec, s[62:63]")
    e("s_barrier")
    e("v_mov_b32 v3, 0")
    e("ds_read_b32 v4, v3 offset:60000")
    e("s_waitcnt lgkmcnt(0)")
    e("v_readfirstlane_b32 s3, v4")
    e("s_nop 3")
    e("s_cmp_eq_u32 s3, 15")
    e("s_cbranch_scc0 K1_A_DONE")
    c("last arriver: reduce 16 partials of pair p")
    e("v_lshlrev_b32 v3, 4, v0")
    e("s_lshl_b32 s3, s26, 4")
    e("s_mul_i32 s3, s3, 13312")
    e(f"s_add_u32 s3, s3, 0x{KVP:x}")
    e("v_bfe_u32 v5, v0, 4, 2")
    e("v_and_b32 v6, 15, v0")
    e("v_lshlrev_b32 v5, 9, v5")
    e("v_lshl_add_u32 v5, v6, 1, v5")
    e("v_add_u32 v5, 65536, v5")
    for it in range(4):
        if it == 3:
            e("v_cmp_gt_u32 vcc, 64, v0")
            e("s_and_saveexec_b64 s[62:63], vcc")
        e(f"v_add_u32 v4, {it*4096}, v3")
        for rbk in range(16):
            e(f"buffer_load_dwordx4 v[{128+rbk*4}:{131+rbk*4}], v4, s[40:43], s3 offen sc0 sc1")
            if rbk < 15:
                e("s_add_u32 s3, s3, 13312")
        e(f"s_sub_u32 s3, s3, {15*13312}")
        e("s_waitcnt vmcnt(0)")
        for st in (32, 16, 8, 4):
            for k in range(0, st, 4):
                for r in range(4):
                    e(f"v_add_f32 v{128+k+r}, v{128+k+r}, v{128+k+st+r}")
        e("v_cvt_pk_bf16_f32 v128, v128, v129")
        e("v_cvt_pk_bf16_f32 v129, v130, v131")
        e("v_lshrrev_b32 v130, 16, v128")
        e("v_lshrrev_b32 v131, 16, v129")
        for w in range(4):
            ti = w + 4*it
            if ti >= 13: continue
            kt, vt = PAIRS[ti]
            e(f"s_cmp_eq_u32 s48, {w}")
            e(f"s_cselect_b32 s57, {kt*2048 + vt*32}, s57")
        e("v_add_u32 v6, s57, v5")
        e("ds_write_b16 v6, v128 offset:0")
        e("ds_write_b16 v6, v130 offset:128")
        e("ds_write_b16 v6, v129 offset:256")
        e("ds_write_b16 v6, v131 offset:384")
        if it == 3:
            e("s_mov_b64 exec, s[62:63]")
    e("s_waitcnt lgkmcnt(0)")
    e("s_barrier")
    e("v_lshrrev_b32 v3, 4, v2")
    e("v_and_b32 v4, 15, v2")
    for rnd in range(2):
        e(f"s_add_u32 s57, s48, {4*rnd}")
        if rnd == 1:
            e("s_cmp_ge_u32 s57, 6")
            e("s_cbranch_scc1 K1_A_DONE")
        e("s_cmp_ge_u32 s57, 3")
        e("s_cselect_b32 s58, 1, 0")
        e("s_mul_i32 s59, s58, 3")
        e("s_sub_u32 s59, s57, s59")
        e("s_lshl_b32 s66, s59, 4")
        e("v_add_u32 v5, s66, v4")
        e("s_mul_i32 s67, s58, 28")
        e("v_add_u32 v6, s67, v5")
        e("s_cmp_eq_u32 s59, 2")
        e("s_cselect_b32 s68, 64, 28")
        e("v_cmp_gt_u32 s[64:65], s68, v5")
        e("s_cselect_b32 s69, -1, 0")
        e("v_mov_b32 v7, 56")
        e("v_mov_b32 v8, s69")
        e("v_cmp_ne_u32 vcc, 0, v8")
        e("s_nop 1")
        e("v_cndmask_b32 v6, v6, v7, vcc")
        e("v_lshlrev_b32 v7, 3, v3")
        e("v_add_u32 v7, s67, v7")
        e("v_lshlrev_b32 v7, 7, v7")
        e("v_lshl_add_u32 v7, v6, 1, v7")
        e("v_add_u32 v7, 65536, v7")
        for j in range(8):
            e(f"ds_read_u16 v{128+j}, v7 offset:{j*128}")
        e("s_waitcnt lgkmcnt(0)")
        e("v_cmp_gt_u32 vcc, 3, v3")
        e("s_and_b64 s[64:65], s[64:65], exec")
        for j in range(4):
            e(f"v_lshl_or_b32 v{128+j}, v{129+2*j}, 16, v{128+2*j}")
        e("v_cndmask_b32 v130, 0, v130, vcc")
        e("v_cndmask_b32 v131, 0, v131, vcc")
        for j in range(4):
            e(f"v_cndmask_b32 v{128+j}, 0, v{128+j}, s[64:65]")
        e("s_lshl_b32 s66, s26, 1")
        e("s_add_u32 s66, s66, s58")
        e("s_mul_i32 s66, s66, 3")
        e("s_add_u32 s66, s66, s59")
        e("s_lshl_b32 s66, s66, 10")
        e(f"s_add_u32 s66, s66, 0x{KVF:x}")
        e("v_lshlrev_b32 v7, 4, v2")
        e("buffer_store_dwordx4 v[128:131], v7, s[40:43], s66 offen")
        e("s_nop 1")
    lab("K1_A_DONE")

def k1_epi_B():
    c("---- branch B epilogue ----")
    e("s_barrier")
    e("s_nop 7")
    e("v_lshrrev_b32 v3, 4, v2")
    e("v_and_b32 v4, 15, v2")
    e("v_lshl_add_u32 v5, v1, 5, v4")
    e("v_add_u32 v5, 16, v5")
    e("v_mul_u32_u24 v5, 336, v5")
    e("v_lshl_add_u32 v5, v3, 3, v5")
    e("v_mul_u32_u24 v6, 336, v4")
    e("v_lshl_add_u32 v6, v3, 3, v6")
    e("v_cmp_gt_u32 s[64:65], 2, v3")
    for rt in range(3):
        if rt == 2:
            e("s_cmp_eq_u32 s48, 0")
            e("s_cbranch_scc0 K1_B_NOHALO")
        for ct in range(12):
            if rt == 2 and ct < 4: continue
            a = (rt*12 + ct)*4 if rt < 2 else 96 + (ct-4)*4
            for r in range(4):
                e(f"v_accvgpr_read_b32 v{T+8+r}, a{a+r}")
            e(f"v_cvt_pk_bf16_f32 v{T+12}, v{T+8}, v{T+9}")
            e(f"v_cvt_pk_bf16_f32 v{T+13}, v{T+10}, v{T+11}")
            ft = ct & 3
            if ft == 3:
                e("s_and_saveexec_b64 s[62:63], s[64:65]")
            base = 5 if rt < 2 else 6
            off = (rt*16*336 if rt < 2 else 0) + (ct >> 2)*112 + ft*32
            e(f"ds_write_b64 v{base}, v[{T+12}:{T+13}] offset:{off}")
            if ft == 3:
                e("s_mov_b64 exec, s[62:63]")
    lab("K1_B_NOHALO")
    e("s_waitcnt lgkmcnt(0)")
    e("s_barrier")
    e("v_lshrrev_b32 v3, 7, v0")
    e("v_and_b32 v4, 127, v0")
    e("v_add_u32 v5, 16, v4")
    e("v_mul_u32_u24 v5, 336, v5")
    e("v_mul_u32_u24 v6, 56, v3")
    e("v_add_u32 v5, v5, v6")
    e("v_subrev_u32 v7, 4704, v5")
    Q = 32; K = 48; V = 160
    for i in range(7):
        e(f"ds_read_b64 v[{Q+2*i}:{Q+2*i+1}], v5 offset:{i*8}")
    for w in range(8):
        for i in range(7):
            e(f"ds_read_b64 v[{K+w*14+2*i}:{K+w*14+2*i+1}], v7 offset:{(7-w)*672 + 112 + i*8}")
    e("s_waitcnt lgkmcnt(0)")
    for w in range(8):
        for i in range(7):
            e(f"ds_read_b64 v[{V-160+160+w*14+2*i - 0}:{V+w*14+2*i+1}], v7 offset:{(7-w)*672 + 224 + i*8}") if V + w*14 + 13 < 256 else None
    LG = 8
    for w in range(8):
        e(f"v_mov_b32 v{LG+w}, 0")
    for w in range(8):
        for i in range(14):
            e(f"v_dot2_f32_bf16 v{LG+w}, v{Q+i}, v{K+w*14+i}, v{LG+w}")
    e("s_lshl_b32 s3, s25, 7")
    e("v_add_u32 v6, s3, v4")
    for w in range(0, 8, 2):
        e(f"v_cvt_pk_bf16_f32 v16, v{LG+w}, v{LG+w+1}")
        unpack(17, 18, 16)
        e(f"v_mul_f32 v17, 0x{SCALE:x}, v17")
        e(f"v_mul_f32 v18, 0x{SCALE:x}, v18")
        e(f"v_cvt_pk_bf16_f32 v16, v17, v18")
        unpack(LG+w, LG+w+1, 16)
    e("v_mov_b32 v16, 0xce6e6b28")
    for w in range(1, 8):
        e(f"v_cmp_le_u32 vcc, {2*w}, v6")
        e("s_nop 1")
        e(f"v_cndmask_b32 v{LG+w}, v16, v{LG+w}, vcc")
    for w in (6, 7):
        for i in range(7):
            e(f"ds_read_b64 v[{K+(w-6)*14+2*i}:{K+(w-6)*14+2*i+1}], v7 offset:{(7-w)*672 + 224 + i*8}")
    e(f"v_max3_f32 v16, v{LG}, v{LG+1}, v{LG+2}")
    e(f"v_max3_f32 v16, v16, v{LG+3}, v{LG+4}")
    e(f"v_max3_f32 v16, v16, v{LG+5}, v{LG+6}")
    e(f"v_max_f32 v16, v16, v{LG+7}")
    for w in range(8):
        e(f"v_sub_f32 v{LG+w}, v{LG+w}, v16")
        e(f"v_mul_f32 v{LG+w}, 0x{LOG2E:x}, v{LG+w}")
        e(f"v_exp_f32 v{LG+w}, v{LG+w}")
    e("s_nop 0")
    e(f"v_add_f32 v16, v{LG}, v{LG+1}")
    e(f"v_add_f32 v17, v{LG+2}, v{LG+3}")
    e(f"v_add_f32 v18, v{LG+4}, v{LG+5}")
    e(f"v_add_f32 v19, v{LG+6}, v{LG+7}")
    e("v_add_f32 v16, v16, v17")
    e("v_add_f32 v18, v18, v19")
    e("v_add_f32 v16, v16, v18")
    e("v_rcp_f32 v16, v16")
    e("s_nop 0")
    for w in range(8):
        e(f"v_mul_f32 v{LG+w}, v{LG+w}, v16")
    for w in range(0, 8, 2):
        e(f"v_cvt_pk_bf16_f32 v{16+w//2}, v{LG+w}, v{LG+w+1}")
    e("s_waitcnt lgkmcnt(0)")
    def vreg(w, i):
        return (V + w*14 + i) if w < 6 else (K + (w-6)*14 + i)
    OA = 100
    e("s_mov_b32 s70, 0x05040100")
    e("s_mov_b32 s71, 0x07060302")
    for i in range(14):
        for half in range(2):
            o = OA + 2*i + half
            for wp in range(4):
                e(f"v_perm_b32 v128, v{vreg(2*wp+1,i)}, v{vreg(2*wp,i)}, s{70+half}")
                if wp == 0:
                    e(f"v_mov_b32 v{o}, 0")
                e(f"v_dot2_f32_bf16 v{o}, v128, v{16+wp}, v{o}")
    for i in range(14):
        e(f"v_cvt_pk_bf16_f32 v{32+i}, v{OA+2*i}, v{OA+2*i+1}")
    e("s_movk_i32 s3, 896")
    e("v_mul_lo_u32 v6, v6, s3")
    e("v_mul_u32_u24 v3, 56, v3")
    e("v_add_u32 v6, v6, v3")
    e("s_mul_i32 s3, s26, 112")
    e(f"s_add_u32 s3, s3, 0x{O_B:x}")
    for i in range(7):
        e(f"buffer_store_dwordx2 v[{32+2*i}:{33+2*i}], v6, s[40:43], s3 offen offset:{i*8}")

def kernel1():
    lab(f"{NAME}_k1_kernel")
    k1_prologue()
    for i in range(128):
        e(f"v_accvgpr_write_b32 a{i}, 0")
    e("s_cmp_eq_u32 s24, 0")
    e("s_cbranch_scc0 K1_B")
    k1_issue_loads(False)
    wo_prep_loads(False)
    k1_gemm(False)
    e("s_waitcnt vmcnt(0)")
    wo_prep_store(False)
    k1_epi_A()
    e("s_branch K1_END")
    lab("K1_B")
    k1_issue_loads(True)
    wo_prep_loads(True)
    k1_gemm(True)
    e("s_waitcnt vmcnt(0)")
    wo_prep_store(True)
    k1_epi_B()
    lab("K1_END")
    e("s_endpgm")

def kernel2():
    lab(f"{NAME}_k2_kernel")
    e("s_cmp_ge_u32 s2, 256")
    e("s_cbranch_scc1 K2_END")
    e("s_load_dwordx2 s[16:17], s[0:1], 48")
    e("s_load_dwordx2 s[20:21], s[0:1], 64")
    e("s_and_b32 s22, s2, 7")
    e("s_lshr_b32 s23, s2, 3")
    e("s_lshr_b32 s24, s22, 2")
    e("s_and_b32 s27, s22, 3")
    e("s_lshl_b32 s25, s27, 3")
    e("s_and_b32 s3, s23, 7")
    e("s_add_u32 s25, s25, s3")
    e("s_lshr_b32 s26, s23, 3")
    e("v_lshrrev_b32 v1, 6, v0")
    e("v_and_b32 v2, 63, v0")
    e("v_lshrrev_b32 v3, 4, v2")
    e("v_and_b32 v4, 15, v2")
    e("s_waitcnt lgkmcnt(0)")
    srd(40, 20, 21, WS_END)
    srd(28, 16, 17, 2048*1792)
    e("s_lshl_b32 s3, s25, 6")
    e("v_lshl_add_u32 v5, v1, 4, v4")
    e("v_add_u32 v5, s3, v5")
    e("v_mul_u32_u24 v6, 896, v5")
    e("v_lshl_add_u32 v6, v3, 4, v6")
    e("v_lshlrev_b32 v7, 4, v2")
    e("v_mul_u32_u24 v8, 1792, v5")
    e("v_lshl_add_u32 v8, v3, 3, v8")
    e("s_mul_i32 s3, s24, 896")
    e("s_mul_i32 s4, s26, 224")
    e("s_add_u32 s3, s3, s4")
    e("v_add_u32 v8, s3, v8")
    for i in range(28):
        e(f"v_accvgpr_write_b32 a{i}, 0")
    e("s_cmp_eq_u32 s24, 0")
    e("s_cbranch_scc0 K2_B")
    c("---- K2 branch A ----")
    e("s_mul_i32 s5, s26, 7168")
    e(f"s_add_u32 s5, s5, 0x{WOA:x}")
    e(f"s_mov_b32 s6, 0x{KVF:x}")
    GS = 44
    def a_loads(h, base):
        e(f"buffer_load_dwordx4 v[{base}:{base+3}], v6, s[40:43], 0 offen offset:{h*56}")
        for f in range(3):
            e(f"buffer_load_dwordx4 v[{base+4+f*4}:{base+7+f*4}], v7, s[40:43], s6 offen offset:{f*1024}")
        e("s_add_u32 s6, s6, 3072")
        for nt in range(7):
            if nt == 4:
                e("s_add_u32 s5, s5, 4096")
            e(f"buffer_load_dwordx4 v[{base+16+nt*4}:{base+19+nt*4}], v7, s[40:43], s5 offen offset:{(nt&3)*1024}")
        e(f"s_add_u32 s5, s5, {28*1024-4096}")
    NB = 4
    for h in range(NB):
        a_loads(h, 32 + h*GS)
    for h in range(16):
        base = 32 + (h % NB)*GS
        rem = min(15 - h, NB - 1)
        e(f"s_waitcnt vmcnt({rem*11})")
        pq = base
        for i in range(12):
            e(f"v_mov_b32 v{12+i}, 0")
        e("s_nop 1")
        for f in range(3):
            e(f"v_mfma_f32_16x16x32_bf16 v[{12+f*4}:{15+f*4}], v[{base+4+f*4}:{base+7+f*4}], v[{pq}:{pq+3}], v[{12+f*4}:{15+f*4}]")
        e("s_nop 7")
        e("v_cvt_pk_bf16_f32 v24, v20, v20")
        e("v_lshlrev_b32 v24, 16, v24")
        e(f"v_add_f32 v24, 0x{EPS:x}, v24")
        e("v_cvt_pk_bf16_f32 v24, v24, v24")
        e("v_lshlrev_b32 v24, 16, v24")
        e("v_rcp_f32 v24, v24")
        for q in range(4):
            e(f"v_cvt_pk_bf16_f32 v25, v{12+2*q}, v{13+2*q}")
            unpack(26, 27, 25)
            e("v_mul_f32 v26, v26, v24")
            e("v_mul_f32 v27, v27, v24")
            e(f"v_cvt_pk_bf16_f32 v{28+q}, v26, v27")
        e("s_nop 1")
        for nt in range(7):
            e(f"v_mfma_f32_16x16x32_bf16 a[{nt*4}:{nt*4+3}], v[{base+16+nt*4}:{base+19+nt*4}], v[28:31], a[{nt*4}:{nt*4+3}]")
        if h + NB < 16:
            a_loads(h + NB, base)
    e("s_branch K2_OUT")
    lab("K2_B")
    e("s_mul_i32 s5, s26, 7168")
    e(f"s_add_u32 s5, s5, 0x{WOB:x}")
    e(f"s_mov_b32 s6, 0x{O_B:x}")
    def b_loads(ks, base):
        e(f"buffer_load_dwordx4 v[{base}:{base+3}], v6, s[40:43], s6 offen offset:{ks*64}")
        for nt in range(7):
            if nt == 4:
                e("s_add_u32 s5, s5, 4096")
            e(f"buffer_load_dwordx4 v[{base+4+nt*4}:{base+7+nt*4}], v7, s[40:43], s5 offen offset:{(nt&3)*1024}")
        e(f"s_add_u32 s5, s5, {28*1024-4096}")
    NB2 = 6
    for ks in range(NB2):
        b_loads(ks, 32 + ks*32)
    for ks in range(14):
        base = 32 + (ks % NB2)*32
        rem = min(13 - ks, NB2 - 1)
        e(f"s_waitcnt vmcnt({rem*8})")
        for nt in range(7):
            e(f"v_mfma_f32_16x16x32_bf16 a[{nt*4}:{nt*4+3}], v[{base+4+nt*4}:{base+7+nt*4}], v[{base}:{base+3}], a[{nt*4}:{nt*4+3}]")
        if ks + NB2 < 14:
            b_loads(ks + NB2, base)
    lab("K2_OUT")
    e("s_nop 7")
    e("s_nop 7")
    for nt in range(7):
        for r in range(4):
            e(f"v_accvgpr_read_b32 v{12+r}, a{nt*4+r}")
        e(f"v_cvt_pk_bf16_f32 v{16+2*(nt&1)}, v12, v13")
        e(f"v_cvt_pk_bf16_f32 v{17+2*(nt&1)}, v14, v15")
        e(f"buffer_store_dwordx2 v[{16+2*(nt&1)}:{17+2*(nt&1)}], v8, s[28:31], 0 offen offset:{nt*32}")
    lab("K2_END")
    e("s_endpgm")

def kd(name, nv, acc):
    return f""".amdhsa_kernel {name}
  .amdhsa_next_free_vgpr {nv}
  .amdhsa_next_free_sgpr 96
  .amdhsa_accum_offset {acc}
  .amdhsa_group_segment_fixed_size 0
  .amdhsa_kernarg_size 72
  .amdhsa_user_sgpr_count 2
  .amdhsa_user_sgpr_kernarg_segment_ptr 1
  .amdhsa_system_sgpr_workgroup_id_x 1
.end_amdhsa_kernel
"""

ref = open(f"cdna_kernels/{NAME}.s.ref").read().split("\n")
hdr = [l for l in ref if l.startswith(";") and "@launch" not in l]
out = hdr[:]
out.append(f"; @launch kernel={NAME}_k1_kernel grid=(256,1,1) block=(256,1,1) lds=151552")
out.append(f"; @launch kernel={NAME}_k2_kernel grid=(256,1,1) block=(256,1,1) lds=0")
out.append('.amdgcn_target "amdgcn-amd-amdhsa--gfx950"')
out.append(".text")
for k in ("k1", "k2"):
    out.append(f".globl {NAME}_{k}_kernel")
    out.append(f".type {NAME}_{k}_kernel,@function")
out.append(".p2align 8")
kernel1()
L.append(".p2align 8")
kernel2()
out += L
out.append('.section .rodata,"a"')
out.append(".p2align 6")
out.append(kd(f"{NAME}_k1_kernel", 384, 256))
out.append(".p2align 6")
out.append(kd(f"{NAME}_k2_kernel", 288, 256))
open(sys.argv[1] if len(sys.argv) > 1 else f"cdna_kernels/{NAME}.s", "w").write("\n".join(out))
```

```python
import sys
NAME = "concat_heads__linear_attn_block__sliding_local_dilated__prompt"
PQ_A = 0
O_B = 0x1C0000
KVP = 0x380000
KVF = 0x520000
WOA = 0x530000
WOB = 0x5A0000
WS_END = 0x602000
import os
if os.environ.get("STAMP") == "1": WS_END = 0x800000
LOG2E = 0x3FB8AA3B
EPS = 0x358637BD
SCALE = 0x3E41848F
import struct
assert abs(struct.unpack('<f', struct.pack('<I', SCALE))[0] - 28 ** -0.5) < 1e-7
for s in range(1344):
    assert (s * 3121) >> 16 == s // 21
for s in range(21):
    assert (s * 37) >> 8 == s // 7

L = []
def e(s): L.append("    " + s)
def lab(s): L.append(s + ":")
def c(s): L.append("    ; " + s)

import os
STAMP = os.environ.get("STAMP") == "1"
def stamp(i):
    if not STAMP: return
    e("s_memrealtime s[72:73]" if os.environ.get("RT") else "s_memtime s[72:73]")
    e("s_waitcnt lgkmcnt(0)")
    e("v_mov_b32 v254, s72")
    e("s_lshl_b32 s74, s2, 7")
    e(f"s_add_u32 s74, s74, {0x700000 + i*4}")
    e("v_mov_b32 v253, 0")
    e("v_cmp_eq_u32 vcc, 0, v0")
    e("s_and_saveexec_b64 s[76:77], vcc")
    e("buffer_store_dword v254, v253, s[40:43], s74 offen")
    e("s_mov_b64 exec, s[76:77]")
PAIRS = [(0,0),(0,1),(1,0),(1,1),(1,2),(1,3),(2,1),(2,2),(2,3),(3,1),(3,2),(3,3),(0,3)]

def unpack(dlo, dhi, src):
    e(f"v_lshlrev_b32 v{dlo}, 16, v{src}")
    e(f"v_and_b32 v{dhi}, 0xffff0000, v{src}")

def phi_pair(dst, a, b, t):
    e(f"v_cvt_pk_bf16_f32 v{t}, v{a}, v{b}")
    unpack(t+1, t+2, t)
    e(f"v_mul_f32 v{t+3}, 0x{LOG2E:x}, v{t+1}")
    e(f"v_mul_f32 v{t+4}, 0x{LOG2E:x}, v{t+2}")
    e(f"v_exp_f32 v{t+3}, v{t+3}")
    e(f"v_exp_f32 v{t+4}, v{t+4}")
    e(f"v_cmp_lt_f32 vcc, 0, v{t+1}")
    e(f"v_add_f32 v{t+1}, 1.0, v{t+1}")
    e(f"v_cmp_lt_f32 s[60:61], 0, v{t+2}")
    e(f"v_add_f32 v{t+2}, 1.0, v{t+2}")
    e(f"v_cndmask_b32 v{t+3}, v{t+3}, v{t+1}, vcc")
    e(f"v_cndmask_b32 v{t+4}, v{t+4}, v{t+2}, s[60:61]")
    e(f"v_cvt_pk_bf16_f32 v{t}, v{t+3}, v{t+4}")
    unpack(t+1, t+2, t)
    e(f"v_add_f32 v{t+1}, 0x{EPS:x}, v{t+1}")
    e(f"v_add_f32 v{t+2}, 0x{EPS:x}, v{t+2}")
    e(f"v_cvt_pk_bf16_f32 v{dst}, v{t+1}, v{t+2}")

def srd(base, lo, hi, nbytes):
    e(f"s_mov_b32 s{base}, s{lo}")
    e(f"s_and_b32 s{base+1}, s{hi}, 0xffff")
    e(f"s_mov_b32 s{base+2}, 0x{nbytes:x}")
    e(f"s_mov_b32 s{base+3}, 0x20000")

XF = 32
BF = 200
T = 232

def k1_prologue():
    e(f"s_cmp_ge_u32 s2, {os.environ.get('LIMIT', '256')}")
    e("s_cbranch_scc1 K1_END")
    e("s_load_dwordx4 s[4:7], s[0:1], 0")
    e("s_load_dwordx4 s[8:11], s[0:1], 16")
    e("s_load_dwordx4 s[12:15], s[0:1], 32")
    e("s_load_dwordx4 s[16:19], s[0:1], 48")
    e("s_load_dwordx2 s[20:21], s[0:1], 64")
    e("s_and_b32 s22, s2, 7")
    e("s_lshr_b32 s23, s2, 3")
    e("s_lshr_b32 s24, s22, 2")
    e("s_and_b32 s27, s22, 3")
    e("s_lshr_b32 s25, s27, 1")
    e("s_lshl_b32 s25, s25, 3")
    e("s_and_b32 s3, s23, 7")
    e("s_add_u32 s25, s25, s3")
    e("s_and_b32 s26, s27, 1")
    e("s_lshl_b32 s26, s26, 2")
    e("s_lshr_b32 s3, s23, 3")
    e("s_add_u32 s26, s26, s3")
    e("v_lshrrev_b32 v1, 6, v0")
    e("v_and_b32 v2, 63, v0")
    e("v_readfirstlane_b32 s48, v1")
    e("s_waitcnt lgkmcnt(0)")
    srd(40, 20, 21, WS_END)
    srd(44, 18, 19, 256)
    e("s_cmp_eq_u32 s24, 0")
    e("s_cbranch_scc0 K1_SELB")
    srd(28, 4, 5, 2048*896)
    srd(32, 6, 7, 448*2688)
    srd(36, 8, 9, 448*896)
    e("s_branch K1_SELDONE")
    lab("K1_SELB")
    srd(28, 10, 11, 2048*896)
    srd(32, 12, 13, 448*2688)
    srd(36, 14, 15, 448*896)
    lab("K1_SELDONE")
    for j in range(6):
        e(f"v_add_u32 v3, {4*j}, v1")
        e(f"v_subrev_u32 v4, 21, v3")
        e(f"v_cmp_le_u32 vcc, 21, v3")
        e("s_nop 1")
        e(f"v_cndmask_b32 v3, v3, v4, vcc")
        e(f"v_lshl_add_u32 v3, v3, 6, v2")
        e(f"v_mul_u32_u24 v4, 3121, v3")
        e(f"v_lshrrev_b32 v4, 16, v4")
        e(f"v_mul_u32_u24 v5, 21, v4")
        e(f"v_sub_u32 v3, v3, v5")
        e(f"v_mul_u32_u24 v5, 37, v3")
        e(f"v_lshrrev_b32 v5, 8, v5")
        e(f"v_mul_u32_u24 v6, 7, v5")
        e(f"v_sub_u32 v3, v3, v6")
        e(f"v_mul_u32_u24 v4, 2688, v4")
        e(f"v_mul_u32_u24 v5, 896, v5")
        e(f"v_lshlrev_b32 v3, 4, v3")
        e(f"v_add3_u32 v{8+j}, v3, v4, v5")
        e(f"s_add_u32 s{50+j}, s48, {4*j}")
        e(f"s_cmp_ge_u32 s{50+j}, 21")
        e(f"s_cselect_b32 s3, 21, 0")
        e(f"s_sub_u32 s{50+j}, s{50+j}, s3")
        e(f"s_lshl_b32 s{50+j}, s{50+j}, 10")
    e("v_lshrrev_b32 v3, 4, v2")
    e("v_bfe_u32 v4, v2, 2, 2")
    e("v_lshl_add_u32 v4, v3, 3, v4")
    e("v_mul_u32_u24 v4, 336, v4")
    e("v_and_b32 v5, 3, v2")
    e("v_lshl_add_u32 v14, v5, 3, v4")
    e("v_and_b32 v4, 15, v2")
    e("s_lshl_b32 s3, s25, 7")
    e("v_lshl_add_u32 v5, v1, 5, v4")
    e("v_add_u32 v5, s3, v5")
    e("v_mul_u32_u24 v5, 896, v5")
    e("v_lshl_add_u32 v15, v3, 4, v5")
    e("v_add_u32 v16, 14336, v15")
    e("v_add_u32 v5, s3, v4")
    e("v_subrev_u32 v5, 16, v5")
    e("v_mul_lo_u32 v5, v5, s49") if False else None
    e("s_movk_i32 s49, 896")
    e("v_mul_lo_u32 v5, v5, s49")
    e("v_lshl_add_u32 v17, v3, 4, v5")
    e("s_mul_i32 s56, s26, 112")

def k1_issue_step(isB, i):
    e("s_mul_i32 s83, s81, 172032")
    e("s_add_u32 s83, s83, s56")
    e("s_mul_i32 s84, s81, 21504")
    e("s_lshl_b32 s85, s81, 7")
    for j in range(6):
        r = 128 + (i % 3)*24 + j*4
        e(f"buffer_load_dwordx4 a[{r}:{r+3}], v{8+j}, s[32:35], s83 offen")
    for kk in range(2):
        ks = 2*i + kk
        for rt in range(3):
            if rt == 2 and not isB: continue
            e(f"buffer_load_dwordx4 v[{XF+(ks*3+rt)*4}:{XF+(ks*3+rt)*4+3}], v{15+rt}, s[28:31], s85 offen offset:{kk*64}")
    e("s_add_u32 s81, s81, 1")
    e("s_cmp_eq_u32 s81, 7")
    e("s_cselect_b32 s81, 0, s81")

def wo_prep_loads(isB):
    nper = 196 if isB else 224
    e("s_lshl_b32 s3, s25, 3")
    e("s_add_u32 s3, s3, s26")
    e(f"s_mul_i32 s3, s3, {nper}")
    e("v_add_u32 v3, s3, v0")
    e("v_lshrrev_b32 v4, 6, v3")
    e("v_mul_u32_u24 v5, 2341, v4")
    e("v_lshrrev_b32 v5, 16, v5")
    e("v_mul_u32_u24 v6, 28, v5")
    e("v_sub_u32 v4, v4, v6")
    e("v_bfe_u32 v6, v3, 4, 2")
    e("v_and_b32 v7, 15, v3")
    e("v_lshl_add_u32 v7, v4, 4, v7")
    e("v_lshlrev_b32 v7, 1, v7")
    if isB:
        e("v_lshlrev_b32 v5, 5, v5")
        e("v_lshl_add_u32 v5, v6, 3, v5")
        e("v_mul_u32_u24 v5, 896, v5")
        e("v_add_u32 v5, v5, v7")
        e(f"v_cmp_gt_u32 vcc, {nper}, v0")
        e("v_mov_b32 v6, 0x7fff0000")
        e("s_nop 0")
        e("v_cndmask_b32 v5, v6, v5, vcc")
        for j in range(8):
            e(f"v_add_u32 v6, {j*896}, v5")
            e(f"buffer_load_ushort v{20+j}, v6, s[36:39], 0 offen")
    else:
        e("v_mul_u32_u24 v5, 28, v5")
        e("v_lshl_add_u32 v5, v6, 2, v5")
        e("v_mul_u32_u24 v5, 896, v5")
        e("v_add_u32 v5, v5, v7")
        e(f"v_cmp_gt_u32 vcc, {nper}, v0")
        e("v_mov_b32 v4, 0x7fff0000")
        e("s_nop 0")
        e("v_cndmask_b32 v5, v4, v5, vcc")
        e("v_cmp_gt_u32 vcc, 3, v6")
        e("s_nop 1")
        e("v_cndmask_b32 v6, v4, v5, vcc")
        for j in range(4):
            e(f"v_add_u32 v4, {j*896}, v5")
            e(f"buffer_load_ushort v{20+j}, v4, s[36:39], 0 offen")
        for j in range(4):
            e(f"v_add_u32 v4, {(16+j)*896}, v6")
            e(f"buffer_load_ushort v{24+j}, v4, s[36:39], 0 offen")
    e("v_lshlrev_b32 v28, 4, v3")
for s in range(14*28+16*28+64):
    assert (s * 2341) >> 16 == s // 28

def wo_prep_store(isB):
    nper = 196 if isB else 224
    for j in range(4):
        e(f"v_lshl_or_b32 v{20+j}, v{21+2*j}, 16, v{20+2*j}") if j == 0 else e(f"v_lshl_or_b32 v{20+j}, v{21+2*j}, 16, v{20+2*j}")
    e(f"v_cmp_gt_u32 vcc, {nper}, v0")
    e("s_and_saveexec_b64 s[62:63], vcc")
    e(f"buffer_store_dwordx4 v[20:23], v28, s[40:43], 0 offen offset:0") if False else None
    e(f"s_mov_b32 s3, 0x{(WOB if isB else WOA):x}")
    e(f"buffer_store_dwordx4 v[20:23], v28, s[40:43], s3 offen")
    e("s_mov_b64 exec, s[62:63]")

def k1_gemm(isB):
    per = 6 + (6 if isB else 4)
    DEPTH = 3
    e("s_and_b32 s81, s23, 7")
    e("s_lshr_b32 s3, s23, 3")
    e("s_lshl_b32 s3, s3, 1")
    e("s_add_u32 s81, s81, s3")
    e("s_cmp_ge_u32 s81, 7")
    e("s_cselect_b32 s3, 7, 0")
    e("s_sub_u32 s81, s81, s3")
    e("s_cmp_ge_u32 s81, 7")
    e("s_cselect_b32 s3, 7, 0")
    e("s_sub_u32 s81, s81, s3")
    e("s_mov_b32 s82, s81")
    for i in range(DEPTH):
        k1_issue_step(isB, i)
    for ch in range(7):
        n = min(6 - ch, DEPTH - 1) * per
        e(f"s_waitcnt vmcnt({n})")
        e("s_mul_i32 s86, s82, 21504")
        for j in range(6):
            r = 128 + (ch % 3)*24 + j*4
            e(f"s_add_u32 s87, s86, s{50+j}")
            e(f"v_lshl_add_u32 v19, v2, 4, s87")
            e(f"ds_write_b128 v19, a[{r}:{r+3}]")
        e("s_waitcnt lgkmcnt(0)")
        e("s_barrier")
        if ch == 0: stamp(2)
        if ch + DEPTH < 7:
            k1_issue_step(isB, ch + DEPTH)
        e("s_mul_i32 s86, s82, 21504")
        e("v_add_u32 v18, s86, v14")
        e("s_add_u32 s82, s82, 1")
        e("s_cmp_eq_u32 s82, 7")
        e("s_cselect_b32 s82, 0, s82")
        for kk in range(2):
            ks = 2*ch + kk
            def rd(grp, buf):
                for t in range(4):
                    ct = grp*4 + t
                    for hf in range(2):
                        off = (32*kk + 4*hf)*336 + grp*112 + t*32
                        r = BF + buf*16 + t*4 + hf*2
                        e(f"ds_read_b64_tr_b16 v[{r}:{r+1}], v18 offset:{off}")
            rd(0, 0)
            for grp in range(3):
                if grp < 2:
                    rd(grp+1, (grp+1) & 1)
                    e("s_waitcnt lgkmcnt(8)")
                else:
                    e("s_waitcnt lgkmcnt(0)")
                for t in range(4):
                    ct = grp*4 + t
                    b = BF + (grp & 1)*16 + t*4
                    for rt in range(3):
                        if rt == 2:
                            if not isB or grp == 0: continue
                        x = XF + (ks*3+rt)*4
                        a = (rt*12 + ct)*4 if rt < 2 else 96 + (ct-4)*4
                        tr = isB or grp == 0
                        if rt == 2:
                            pass
                        if tr:
                            e(f"v_mfma_f32_16x16x32_bf16 a[{a}:{a+3}], v[{b}:{b+3}], v[{x}:{x+3}], a[{a}:{a+3}]")
                        else:
                            e(f"v_mfma_f32_16x16x32_bf16 a[{a}:{a+3}], v[{x}:{x+3}], v[{b}:{b+3}], a[{a}:{a+3}]")

def k1_epi_A():
    c("---- branch A epilogue ----")
    e("s_nop 7")
    e("s_nop 7")
    e("v_lshrrev_b32 v3, 4, v2")
    e("s_mul_i32 s3, s26, 112")
    e("v_lshlrev_b32 v4, 3, v3")
    e("v_sub_u32 v4, v15, v4")
    e("v_add_u32 v4, s3, v4")
    e("v_cmp_gt_u32 s[64:65], 2, v3")
    for rt in range(2):
        for ft in range(4):
            a = (rt*12 + ft)*4
            for r in range(4):
                e(f"v_accvgpr_read_b32 v{T+8+r}, a{a+r}")
            phi_pair(T+12, T+8, T+9, T)
            phi_pair(T+13, T+10, T+11, T)
            if ft == 3:
                e("s_and_saveexec_b64 s[62:63], s[64:65]")
            e(f"buffer_store_dwordx2 v[{T+12}:{T+13}], v4, s[40:43], 0 offen offset:{rt*14336 + ft*32}") if rt*14336+ft*32 < 4096 else (
                e(f"v_add_u32 v5, {rt*14336}, v4"),
                e(f"buffer_store_dwordx2 v[{T+12}:{T+13}], v5, s[40:43], 0 offen offset:{ft*32}"))
            if ft == 3:
                e("s_mov_b64 exec, s[62:63]")
            e("s_nop 1")
    e("v_and_b32 v5, 15, v2")
    e("v_cmp_le_u32 s[64:65], 8, v5")
    for kt in range(4):
        for rt in range(2):
            a = (rt*12 + 4 + kt)*4
            for r in range(4):
                e(f"v_accvgpr_read_b32 v{T+8+r}, a{a+r}")
            phi_pair(32 + kt*4 + rt*2, T+8, T+9, T)
            phi_pair(32 + kt*4 + rt*2 + 1, T+10, T+11, T)
    e("v_mov_b32 v6, 0x3f803f80")
    for vt in range(4):
        for rt in range(2):
            a = (rt*12 + 8 + vt)*4
            for r in range(4):
                e(f"v_accvgpr_read_b32 v{T+8+r}, a{a+r}")
            d = 48 + vt*4 + rt*2
            e(f"v_cvt_pk_bf16_f32 v{d}, v{T+8}, v{T+9}")
            e(f"v_cvt_pk_bf16_f32 v{d+1}, v{T+10}, v{T+11}")
            if vt == 3:
                e(f"v_cndmask_b32 v{d}, v{d}, v6, s[64:65]")
                e(f"v_cndmask_b32 v{d+1}, v{d+1}, v6, s[64:65]")
    for i in range(52):
        e(f"v_mov_b32 v{64+i}, 0")
    e("s_nop 1")
    for i, (kt, vt) in enumerate(PAIRS):
        d = 64 + i*4
        e(f"v_mfma_f32_16x16x32_bf16 v[{d}:{d+3}], v[{32+kt*4}:{35+kt*4}], v[{48+vt*4}:{51+vt*4}], v[{d}:{d+3}]")
    e("s_barrier")
    e("s_nop 7")
    e("s_mul_i32 s3, s48, 13312")
    e("v_lshlrev_b32 v3, 4, v2")
    e("v_add_u32 v3, s3, v3")
    for i in range(13):
        e(f"ds_write_b128 v3, v[{64+i*4}:{67+i*4}] offset:{i*1024}")
    e("s_waitcnt lgkmcnt(0)")
    e("s_barrier")
    e("v_lshlrev_b32 v3, 4, v0")
    e("s_lshl_b32 s3, s26, 4")
    e("s_add_u32 s3, s3, s25")
    e("s_mul_i32 s3, s3, 13312")
    e(f"s_add_u32 s3, s3, 0x{KVP:x}")
    for it in range(4):
        if it == 3:
            e("v_cmp_gt_u32 vcc, 64, v0")
            e("s_and_saveexec_b64 s[62:63], vcc")
        for w in range(4):
            e(f"ds_read_b128 v[{128+w*4}:{131+w*4}], v3 offset:{w*13312 + it*4096}")
        e("s_waitcnt lgkmcnt(0)")
        for r in range(4):
            e(f"v_add_f32 v{128+r}, v{128+r}, v{132+r}")
            e(f"v_add_f32 v{136+r}, v{136+r}, v{140+r}")
        for r in range(4):
            e(f"v_add_f32 v{128+r}, v{128+r}, v{136+r}")
        e(f"buffer_store_dwordx4 v[128:131], v3, s[40:43], s3 offen offset:0 sc0 sc1") if it == 0 else (
            e(f"v_add_u32 v4, {it*4096}, v3"),
            e(f"buffer_store_dwordx4 v[128:131], v4, s[40:43], s3 offen sc0 sc1"))
        e("s_nop 1")
        if it == 3:
            e("s_mov_b64 exec, s[62:63]")
    e("s_waitcnt vmcnt(0)")
    e("s_barrier")
    e("v_cmp_eq_u32 vcc, 0, v0")
    e("s_and_saveexec_b64 s[62:63], vcc")
    e("s_lshl_b32 s3, s26, 2")
    e("v_mov_b32 v3, s3")
    e("v_mov_b32 v4, 1")
    e("buffer_atomic_add v4, v3, s[44:47], 0 offen sc0 sc1")
    e("s_waitcnt vmcnt(0)")
    e("v_mov_b32 v3, 0")
    e("ds_write_b32 v3, v4 offset:60000")
    e("s_waitcnt lgkmcnt(0)")
    e("s_mov_b64 exec, s[62:63]")
    e("s_barrier")
    e("v_mov_b32 v3, 0")
    e("ds_read_b32 v4, v3 offset:60000")
    e("s_waitcnt lgkmcnt(0)")
    e("v_readfirstlane_b32 s3, v4")
    e("s_nop 3")
    stamp(4)
    e("s_cmp_eq_u32 s3, 15")
    e("s_cbranch_scc0 K1_A_DONE")
    c("last arriver: reduce 16 partials of pair p")
    e("v_lshlrev_b32 v3, 4, v0")
    e("s_lshl_b32 s3, s26, 4")
    e("s_mul_i32 s3, s3, 13312")
    e(f"s_add_u32 s3, s3, 0x{KVP:x}")
    e("v_bfe_u32 v5, v0, 4, 2")
    e("v_and_b32 v6, 15, v0")
    e("v_lshlrev_b32 v5, 9, v5")
    e("v_lshl_add_u32 v5, v6, 1, v5")
    e("v_add_u32 v5, 65536, v5")
    for it in range(4):
        if it == 3:
            e("v_cmp_gt_u32 vcc, 64, v0")
            e("s_and_saveexec_b64 s[62:63], vcc")
        e(f"v_add_u32 v4, {it*4096}, v3")
        for rbk in range(16):
            e(f"buffer_load_dwordx4 v[{128+rbk*4}:{131+rbk*4}], v4, s[40:43], s3 offen sc0 sc1")
            if rbk < 15:
                e("s_add_u32 s3, s3, 13312")
        e(f"s_sub_u32 s3, s3, {15*13312}")
        e("s_waitcnt vmcnt(0)")
        for st in (32, 16, 8, 4):
            for k in range(0, st, 4):
                for r in range(4):
                    e(f"v_add_f32 v{128+k+r}, v{128+k+r}, v{128+k+st+r}")
        e("v_cvt_pk_bf16_f32 v128, v128, v129")
        e("v_cvt_pk_bf16_f32 v129, v130, v131")
        e("v_lshrrev_b32 v130, 16, v128")
        e("v_lshrrev_b32 v131, 16, v129")
        for w in range(4):
            ti = w + 4*it
            if ti >= 13: continue
            kt, vt = PAIRS[ti]
            e(f"s_cmp_eq_u32 s48, {w}")
            e(f"s_cselect_b32 s57, {kt*2048 + vt*32}, s57")
        e("v_add_u32 v6, s57, v5")
        e("ds_write_b16 v6, v128 offset:0")
        e("ds_write_b16 v6, v130 offset:128")
        e("ds_write_b16 v6, v129 offset:256")
        e("ds_write_b16 v6, v131 offset:384")
        if it == 3:
            e("s_mov_b64 exec, s[62:63]")
    e("s_waitcnt lgkmcnt(0)")
    e("s_barrier")
    e("v_lshrrev_b32 v3, 4, v2")
    e("v_and_b32 v4, 15, v2")
    e("s_lshr_b32 s58, s48, 1")
    e("s_and_b32 s59, s48, 1")
    e("s_lshl_b32 s66, s59, 4")
    e("v_add_u32 v5, s66, v4")
    e("s_mul_i32 s67, s58, 28")
    e("v_add_u32 v6, s67, v5")
    e("v_cmp_ge_u32 s[64:65], 28, v5")
    e("v_mov_b32 v7, 56")
    e("v_cmp_eq_u32 vcc, 28, v5")
    e("s_nop 1")
    e("v_cndmask_b32 v6, v6, v7, vcc")
    e("v_lshlrev_b32 v7, 3, v3")
    e("v_add_u32 v7, s67, v7")
    e("v_lshlrev_b32 v7, 7, v7")
    e("v_lshl_add_u32 v7, v6, 1, v7")
    e("v_add_u32 v7, 65536, v7")
    for j in range(8):
        e(f"ds_read_u16 v{128+j}, v7 offset:{j*128}")
    e("s_waitcnt lgkmcnt(0)")
    e("v_cmp_gt_u32 vcc, 3, v3")
    for j in range(4):
        e(f"v_lshl_or_b32 v{128+j}, v{129+2*j}, 16, v{128+2*j}")
    e("v_cndmask_b32 v130, 0, v130, vcc")
    e("v_cndmask_b32 v131, 0, v131, vcc")
    for j in range(4):
        e(f"v_cndmask_b32 v{128+j}, 0, v{128+j}, s[64:65]")
    e("s_lshl_b32 s66, s26, 2")
    e("s_add_u32 s66, s66, s48")
    e("s_lshl_b32 s66, s66, 10")
    e(f"s_add_u32 s66, s66, 0x{KVF:x}")
    e("v_lshlrev_b32 v7, 4, v2")
    e("buffer_store_dwordx4 v[128:131], v7, s[40:43], s66 offen")
    lab("K1_A_DONE")

def k1_epi_B():
    c("---- branch B epilogue ----")
    e("s_barrier")
    e("s_nop 7")
    e("v_lshrrev_b32 v3, 4, v2")
    e("v_and_b32 v4, 15, v2")
    e("v_lshl_add_u32 v5, v1, 5, v4")
    e("v_add_u32 v5, 16, v5")
    e("v_mul_u32_u24 v5, 336, v5")
    e("v_lshl_add_u32 v5, v3, 3, v5")
    e("v_mul_u32_u24 v6, 336, v4")
    e("v_lshl_add_u32 v6, v3, 3, v6")
    e("v_cmp_gt_u32 s[64:65], 2, v3")
    for rt in range(3):
        if rt == 2:
            e("s_cmp_eq_u32 s48, 0")
            e("s_cbranch_scc0 K1_B_NOHALO")
        for ct in range(12):
            if rt == 2 and ct < 4: continue
            a = (rt*12 + ct)*4 if rt < 2 else 96 + (ct-4)*4
            for r in range(4):
                e(f"v_accvgpr_read_b32 v{T+8+r}, a{a+r}")
            e(f"v_cvt_pk_bf16_f32 v{T+12}, v{T+8}, v{T+9}")
            e(f"v_cvt_pk_bf16_f32 v{T+13}, v{T+10}, v{T+11}")
            ft = ct & 3
            if ft == 3:
                e("s_and_saveexec_b64 s[62:63], s[64:65]")
            base = 5 if rt < 2 else 6
            off = (rt*16*336 if rt < 2 else 0) + (ct >> 2)*112 + ft*32
            e(f"ds_write_b64 v{base}, v[{T+12}:{T+13}] offset:{off}")
            if ft == 3:
                e("s_mov_b64 exec, s[62:63]")
    lab("K1_B_NOHALO")
    e("s_waitcnt lgkmcnt(0)")
    e("s_barrier")
    e("v_lshrrev_b32 v3, 7, v0")
    e("v_and_b32 v4, 127, v0")
    e("v_add_u32 v5, 16, v4")
    e("v_mul_u32_u24 v5, 336, v5")
    e("v_mul_u32_u24 v6, 56, v3")
    e("v_add_u32 v5, v5, v6")
    e("v_subrev_u32 v7, 4704, v5")
    Q = 32; K = 48; V = 160
    for i in range(7):
        e(f"ds_read_b64 v[{Q+2*i}:{Q+2*i+1}], v5 offset:{i*8}")
    for w in range(8):
        for i in range(7):
            e(f"ds_read_b64 v[{K+w*14+2*i}:{K+w*14+2*i+1}], v7 offset:{(7-w)*672 + 112 + i*8}")
    e("s_waitcnt lgkmcnt(0)")
    for w in range(8):
        for i in range(7):
            e(f"ds_read_b64 v[{V-160+160+w*14+2*i - 0}:{V+w*14+2*i+1}], v7 offset:{(7-w)*672 + 224 + i*8}") if V + w*14 + 13 < 256 else None
    LG = 8
    for w in range(8):
        e(f"v_mov_b32 v{LG+w}, 0")
    for w in range(8):
        for i in range(14):
            e(f"v_dot2_f32_bf16 v{LG+w}, v{Q+i}, v{K+w*14+i}, v{LG+w}")
    e("s_lshl_b32 s3, s25, 7")
    e("v_add_u32 v6, s3, v4")
    for w in range(0, 8, 2):
        e(f"v_cvt_pk_bf16_f32 v16, v{LG+w}, v{LG+w+1}")
        unpack(17, 18, 16)
        e(f"v_mul_f32 v17, 0x{SCALE:x}, v17")
        e(f"v_mul_f32 v18, 0x{SCALE:x}, v18")
        e(f"v_cvt_pk_bf16_f32 v16, v17, v18")
        unpack(LG+w, LG+w+1, 16)
    e("v_mov_b32 v16, 0xce6e6b28")
    for w in range(1, 8):
        e(f"v_cmp_le_u32 vcc, {2*w}, v6")
        e("s_nop 1")
        e(f"v_cndmask_b32 v{LG+w}, v16, v{LG+w}, vcc")
    for w in (6, 7):
        for i in range(7):
            e(f"ds_read_b64 v[{K+(w-6)*14+2*i}:{K+(w-6)*14+2*i+1}], v7 offset:{(7-w)*672 + 224 + i*8}")
    e(f"v_max3_f32 v16, v{LG}, v{LG+1}, v{LG+2}")
    e(f"v_max3_f32 v16, v16, v{LG+3}, v{LG+4}")
    e(f"v_max3_f32 v16, v16, v{LG+5}, v{LG+6}")
    e(f"v_max_f32 v16, v16, v{LG+7}")
    for w in range(8):
        e(f"v_sub_f32 v{LG+w}, v{LG+w}, v16")
        e(f"v_mul_f32 v{LG+w}, 0x{LOG2E:x}, v{LG+w}")
        e(f"v_exp_f32 v{LG+w}, v{LG+w}")
    e("s_nop 0")
    e(f"v_add_f32 v16, v{LG}, v{LG+1}")
    e(f"v_add_f32 v17, v{LG+2}, v{LG+3}")
    e(f"v_add_f32 v18, v{LG+4}, v{LG+5}")
    e(f"v_add_f32 v19, v{LG+6}, v{LG+7}")
    e("v_add_f32 v16, v16, v17")
    e("v_add_f32 v18, v18, v19")
    e("v_add_f32 v16, v16, v18")
    e("v_rcp_f32 v16, v16")
    e("s_nop 0")
    for w in range(8):
        e(f"v_mul_f32 v{LG+w}, v{LG+w}, v16")
    for w in range(0, 8, 2):
        e(f"v_cvt_pk_bf16_f32 v{16+w//2}, v{LG+w}, v{LG+w+1}")
    e("s_waitcnt lgkmcnt(0)")
    def vreg(w, i):
        return (V + w*14 + i) if w < 6 else (K + (w-6)*14 + i)
    OA = 100
    e("s_mov_b32 s70, 0x05040100")
    e("s_mov_b32 s71, 0x07060302")
    for i in range(14):
        for half in range(2):
            o = OA + 2*i + half
            for wp in range(4):
                e(f"v_perm_b32 v128, v{vreg(2*wp+1,i)}, v{vreg(2*wp,i)}, s{70+half}")
                if wp == 0:
                    e(f"v_mov_b32 v{o}, 0")
                e(f"v_dot2_f32_bf16 v{o}, v128, v{16+wp}, v{o}")
    for i in range(14):
        e(f"v_cvt_pk_bf16_f32 v{32+i}, v{OA+2*i}, v{OA+2*i+1}")
    e("s_movk_i32 s3, 896")
    e("v_mul_lo_u32 v6, v6, s3")
    e("v_mul_u32_u24 v3, 56, v3")
    e("v_add_u32 v6, v6, v3")
    e("s_mul_i32 s3, s26, 112")
    e(f"s_add_u32 s3, s3, 0x{O_B:x}")
    for i in range(7):
        e(f"buffer_store_dwordx2 v[{32+2*i}:{33+2*i}], v6, s[40:43], s3 offen offset:{i*8}")

def kernel1():
    lab(f"{NAME}_k1_kernel")
    k1_prologue()
    for i in range(128):
        e(f"v_accvgpr_write_b32 a{i}, 0")
    e("s_cmp_eq_u32 s24, 0")
    e("s_cbranch_scc0 K1_B")
    stamp(0)
    wo_prep_loads(False)
    stamp(1)
    k1_gemm(False)
    stamp(3)
    e("s_waitcnt vmcnt(0)")
    wo_prep_store(False)
    k1_epi_A()
    stamp(5)
    e("s_branch K1_END")
    lab("K1_B")
    stamp(0)
    wo_prep_loads(True)
    stamp(1)
    k1_gemm(True)
    stamp(3)
    e("s_waitcnt vmcnt(0)")
    wo_prep_store(True)
    k1_epi_B()
    stamp(5)
    lab("K1_END")
    e("s_endpgm")

def kernel2():
    lab(f"{NAME}_k2_kernel")
    e("s_cmp_ge_u32 s2, 256")
    e("s_cbranch_scc1 K2_END")
    e("s_load_dwordx2 s[16:17], s[0:1], 48")
    e("s_load_dwordx2 s[20:21], s[0:1], 64")
    e("s_and_b32 s22, s2, 7")
    e("s_lshr_b32 s23, s2, 3")
    e("s_lshr_b32 s24, s22, 2")
    e("s_and_b32 s27, s22, 3")
    e("s_lshl_b32 s25, s27, 3")
    e("s_and_b32 s3, s23, 7")
    e("s_add_u32 s25, s25, s3")
    e("s_lshr_b32 s26, s23, 3")
    e("v_lshrrev_b32 v1, 6, v0")
    e("v_and_b32 v2, 63, v0")
    e("v_lshrrev_b32 v3, 4, v2")
    e("v_and_b32 v4, 15, v2")
    e("s_waitcnt lgkmcnt(0)")
    srd(40, 20, 21, WS_END)
    srd(28, 16, 17, 2048*1792)
    e("s_lshl_b32 s3, s25, 6")
    e("v_lshl_add_u32 v5, v1, 4, v4")
    e("v_add_u32 v5, s3, v5")
    e("v_mul_u32_u24 v6, 896, v5")
    e("v_lshl_add_u32 v6, v3, 4, v6")
    e("v_lshlrev_b32 v7, 4, v2")
    e("v_mul_u32_u24 v8, 1792, v5")
    e("v_lshl_add_u32 v8, v3, 3, v8")
    e("s_mul_i32 s3, s24, 896")
    e("s_mul_i32 s4, s26, 224")
    e("s_add_u32 s3, s3, s4")
    e("v_add_u32 v8, s3, v8")
    for i in range(28):
        e(f"v_accvgpr_write_b32 a{i}, 0")
    stamp(8)
    e("s_cmp_eq_u32 s24, 0")
    e("s_cbranch_scc0 K2_B")
    c("---- K2 branch A ----")
    e("v_readfirstlane_b32 s48, v1")
    e("s_nop 3")
    for h in range(16):
        e(f"buffer_load_dwordx4 v[{32+h*4}:{35+h*4}], v6, s[40:43], 0 offen offset:{h*56}")
    e("s_mul_i32 s5, s26, 7168")
    e(f"s_add_u32 s5, s5, 0x{WOA:x}")
    for hg in range(4):
        for t in range(9):
            for w in range(4):
                q = w + 4*t
                if q < 28:
                    g_off = (4*hg + q//7)*28672 + (q % 7)*1024; l_off = ((4*hg + q//7)*7 + q % 7)*1024; wo = True
                else:
                    g_off = KVF - WOA + (8*hg + q - 28)*1024; l_off = 114688 + (8*hg + q - 28)*1024; wo = False
                if wo:
                    e(f"s_add_u32 s8, s5, {g_off}")
                else:
                    e(f"s_mov_b32 s8, {WOA + g_off}")
                e(f"s_cmp_eq_u32 s48, {w}")
                e(f"s_cselect_b32 s6, s8, s6")
                e(f"s_cselect_b32 s7, {l_off}, s7")
            e("s_mov_b32 m0, s7")
            e("s_nop 0")
            e("buffer_load_dwordx4 v7, s[40:43], s6 offen lds")
    e("v_lshlrev_b32 v9, 8, v3")
    e("v_add_u32 v9, 192, v9")
    for h in range(16):
        if h % 4 == 0:
            e(f"s_waitcnt vmcnt({(3 - h//4)*9})")
            e("s_barrier")
            if h == 0: stamp(11)
        pq = 32 + h*4
        kb = 114688 + h*2048
        e(f"v_add_u32 v10, {kb}, v7")
        e(f"v_add_u32 v11, {kb + 1024}, v9")
        e(f"ds_read_b128 v[100:103], v10")
        e(f"ds_read_b128 v[104:107], v10 offset:1024")
        e(f"ds_read_b128 v[108:111], v11")
        e(f"v_add_u32 v10, {h*7168}, v7")
        for nt in range(7):
            e(f"ds_read_b128 v[{112+nt*4}:{115+nt*4}], v10 offset:{nt*1024}")
        for i in range(12):
            e(f"v_mov_b32 v{12+i}, 0")
        e("s_waitcnt lgkmcnt(7)")
        for f in range(3):
            e(f"v_mfma_f32_16x16x32_bf16 v[{12+f*4}:{15+f*4}], v[{100+f*4}:{103+f*4}], v[{pq}:{pq+3}], v[{12+f*4}:{15+f*4}]")
        e("s_nop 7")
        e("v_cvt_pk_bf16_f32 v24, v20, v20")
        e("v_lshlrev_b32 v24, 16, v24")
        e(f"v_add_f32 v24, 0x{EPS:x}, v24")
        e("v_cvt_pk_bf16_f32 v24, v24, v24")
        e("v_lshlrev_b32 v24, 16, v24")
        e("v_rcp_f32 v24, v24")
        for q in range(4):
            e(f"v_cvt_pk_bf16_f32 v25, v{12+2*q}, v{13+2*q}")
            unpack(26, 27, 25)
            e("v_mul_f32 v26, v26, v24")
            e("v_mul_f32 v27, v27, v24")
            e(f"v_cvt_pk_bf16_f32 v{28+q}, v26, v27")
        e("s_waitcnt lgkmcnt(0)")
        for nt in range(7):
            e(f"v_mfma_f32_16x16x32_bf16 a[{nt*4}:{nt*4+3}], v[{112+nt*4}:{115+nt*4}], v[28:31], a[{nt*4}:{nt*4+3}]")
    e("s_branch K2_OUT")
    lab("K2_B")
    e("v_readfirstlane_b32 s48, v1")
    e("s_nop 3")
    e(f"s_mov_b32 s6, 0x{O_B:x}")
    for ks in range(14):
        e(f"buffer_load_dwordx4 v[{32+ks*4}:{35+ks*4}], v6, s[40:43], s6 offen offset:{ks*64}")
    e("s_mul_i32 s5, s26, 7168")
    e(f"s_add_u32 s5, s5, 0x{WOB:x}")
    for sg in range(2):
        for t in range(13):
            for w in range(4):
                q = min(w + 4*t, 48) + 49*sg
                e(f"s_add_u32 s8, s5, {(q//7)*28672 + (q%7)*1024}")
                e(f"s_cmp_eq_u32 s48, {w}")
                e(f"s_cselect_b32 s6, s8, s6")
                e(f"s_cselect_b32 s7, {q*1024}, s7")
            e("s_mov_b32 m0, s7")
            e("s_nop 0")
            e("buffer_load_dwordx4 v7, s[40:43], s6 offen lds")
    for ks in range(14):
        if ks % 7 == 0:
            e(f"s_waitcnt vmcnt({(1 - ks//7)*13})")
            e("s_barrier")
            if ks == 0: stamp(11)
        bb = 112 + (ks & 1)*28
        e(f"v_add_u32 v10, {ks*7168}, v7")
        for nt in range(7):
            e(f"ds_read_b128 v[{bb+nt*4}:{bb+3+nt*4}], v10 offset:{nt*1024}")
        e("s_waitcnt lgkmcnt(0)")
        for nt in range(7):
            e(f"v_mfma_f32_16x16x32_bf16 a[{nt*4}:{nt*4+3}], v[{bb+nt*4}:{bb+3+nt*4}], v[{32+ks*4}:{35+ks*4}], a[{nt*4}:{nt*4+3}]")
    lab("K2_OUT")
    stamp(9)
    e("s_nop 7")
    e("s_nop 7")
    for nt in range(7):
        for r in range(4):
            e(f"v_accvgpr_read_b32 v{12+r}, a{nt*4+r}")
        e(f"v_cvt_pk_bf16_f32 v{16+2*(nt&1)}, v12, v13")
        e(f"v_cvt_pk_bf16_f32 v{17+2*(nt&1)}, v14, v15")
        e(f"buffer_store_dwordx2 v[{16+2*(nt&1)}:{17+2*(nt&1)}], v8, s[28:31], 0 offen offset:{nt*32}")
    stamp(10)
    lab("K2_END")
    e("s_endpgm")

def kd(name, nv, acc):
    return f""".amdhsa_kernel {name}
  .amdhsa_next_free_vgpr {nv}
  .amdhsa_next_free_sgpr 96
  .amdhsa_accum_offset {acc}
  .amdhsa_group_segment_fixed_size 0
  .amdhsa_kernarg_size 72
  .amdhsa_user_sgpr_count 2
  .amdhsa_user_sgpr_kernarg_segment_ptr 1
  .amdhsa_system_sgpr_workgroup_id_x 1
.end_amdhsa_kernel
"""

ref = open(f"cdna_kernels/{NAME}.s.ref").read().split("\n")
hdr = [l for l in ref if l.startswith(";") and "@launch" not in l]
out = hdr[:]
out.append(f"; @launch kernel={NAME}_k1_kernel grid=(256,1,1) block=(256,1,1) lds=151552")
out.append(f"; @launch kernel={NAME}_k2_kernel grid=(256,1,1) block=(256,1,1) lds=147456")
out.append('.amdgcn_target "amdgcn-amd-amdhsa--gfx950"')
out.append(".text")
for k in ("k1", "k2"):
    out.append(f".globl {NAME}_{k}_kernel")
    out.append(f".type {NAME}_{k}_kernel,@function")
out.append(".p2align 8")
kernel1()
L.append(".p2align 8")
kernel2()
out += L
out.append('.section .rodata,"a"')
out.append(".p2align 6")
out.append(kd(f"{NAME}_k1_kernel", 464, 256))
out.append(".p2align 6")
out.append(kd(f"{NAME}_k2_kernel", 288, 256))
open(sys.argv[1] if len(sys.argv) > 1 else f"cdna_kernels/{NAME}.s", "w").write("\n".join(out))
```

```python
import sys, os, struct
NAME = "concat_heads__linear_attn_block__sliding_local_dilated__prompt"
PQ_A = 0
O_B = 0x1C0000
ACC = 0x380000
WS_END = 0x390000
STAMP = os.environ.get("STAMP") == "1"
if STAMP: WS_END = 0x800000
LOG2E = 0x3FB8AA3B
EPS = 0x358637BD
SCALE = 0x3E41848F
assert abs(struct.unpack('<f', struct.pack('<I', SCALE))[0] - 28 ** -0.5) < 1e-7
for s in range(1600): assert (s * 2979) >> 16 == s // 22
for s in range(448): assert (s * 4682) >> 16 == s // 14
for s in range(22): assert (s * 37) >> 8 == s // 7

RS = 352
REG = 64 * RS
DUMMY = 7 * REG
SCR = 100352
LDS_TOTAL = 163840
DEPTH = int(os.environ.get("DEPTH", "3"))
CNT_KV = 32 * 4
CNT_Z = 33 * 4

L = []
def e(s): L.append("    " + s)
def lab(s): L.append(s + ":")
def c(s): L.append("    ; " + s)
_uid = [0]
def uid(p):
    _uid[0] += 1
    return f"{p}_{_uid[0]}"

class VM:
    def __init__(self): self.ops = []
    def issue(self, tag): self.ops.append(tag)
    def wait(self, tag):
        idx = max(i for i, t in enumerate(self.ops) if t == tag)
        n = len(self.ops) - 1 - idx
        assert n < 64
        e(f"s_waitcnt vmcnt({n})")
    def wait_all(self):
        e("s_waitcnt vmcnt(0)")

def stamp(vm, i):
    if not STAMP: return
    e("s_memrealtime s[72:73]" if os.environ.get("RT") else "s_memtime s[72:73]")
    e("s_waitcnt lgkmcnt(0)")
    e("v_mov_b32 v28, s72")
    e("s_lshl_b32 s74, s2, 7")
    e(f"s_add_u32 s74, s74, {0x700000 + i*4}")
    e("v_mov_b32 v29, 0")
    e("v_cmp_eq_u32 vcc, 0, v0")
    e("s_and_saveexec_b64 s[76:77], vcc")
    e("buffer_store_dword v28, v29, s[40:43], s74 offen")
    e("s_mov_b64 exec, s[76:77]")
    vm.issue("stamp")

def unpack(dlo, dhi, src):
    e(f"v_lshlrev_b32 v{dlo}, 16, v{src}")
    e(f"v_and_b32 v{dhi}, 0xffff0000, v{src}")

def phi_pair(dst, a, b, t):
    e(f"v_cvt_pk_bf16_f32 v{t}, v{a}, v{b}")
    unpack(t+1, t+2, t)
    e(f"v_min_f32 v{t+3}, 0, v{t+1}")
    e(f"v_min_f32 v{t+4}, 0, v{t+2}")
    e(f"v_mul_f32 v{t+3}, 0x{LOG2E:x}, v{t+3}")
    e(f"v_mul_f32 v{t+4}, 0x{LOG2E:x}, v{t+4}")
    e(f"v_exp_f32 v{t+3}, v{t+3}")
    e(f"v_exp_f32 v{t+4}, v{t+4}")
    e(f"v_max_f32 v{t+1}, 0, v{t+1}")
    e(f"v_max_f32 v{t+2}, 0, v{t+2}")
    e(f"v_add_f32 v{t+3}, v{t+3}, v{t+1}")
    e(f"v_add_f32 v{t+4}, v{t+4}, v{t+2}")
    e(f"v_cvt_pk_bf16_f32 v{t}, v{t+3}, v{t+4}")
    unpack(t+1, t+2, t)
    e(f"v_add_f32 v{t+1}, 0x{EPS:x}, v{t+1}")
    e(f"v_add_f32 v{t+2}, 0x{EPS:x}, v{t+2}")
    e(f"v_cvt_pk_bf16_f32 v{dst}, v{t+1}, v{t+2}")

def srd(base, lo, hi, nbytes):
    e(f"s_mov_b32 s{base}, s{lo}")
    e(f"s_and_b32 s{base+1}, s{hi}, 0xffff")
    e(f"s_mov_b32 s{base+2}, 0x{nbytes:x}")
    e(f"s_mov_b32 s{base+3}, 0x20000")

XF = 32
BF = 200
T = 232

def prologue():
    e("s_cmp_ge_u32 s2, 256")
    e("s_cbranch_scc1 K_END")
    e("s_load_dwordx4 s[4:7], s[0:1], 0")
    e("s_load_dwordx4 s[8:11], s[0:1], 16")
    e("s_load_dwordx4 s[12:15], s[0:1], 32")
    e("s_load_dwordx4 s[16:19], s[0:1], 48")
    e("s_load_dwordx2 s[20:21], s[0:1], 64")
    e("s_and_b32 s22, s2, 7")
    e("s_lshr_b32 s23, s2, 3")
    e("s_lshr_b32 s24, s22, 2")
    e("s_and_b32 s27, s22, 3")
    e("s_lshr_b32 s25, s27, 1")
    e("s_lshl_b32 s25, s25, 3")
    e("s_and_b32 s3, s23, 7")
    e("s_add_u32 s25, s25, s3")
    e("s_and_b32 s26, s27, 1")
    e("s_lshl_b32 s26, s26, 2")
    e("s_lshr_b32 s3, s23, 3")
    e("s_add_u32 s26, s26, s3")
    e("v_lshrrev_b32 v1, 6, v0")
    e("v_and_b32 v2, 63, v0")
    e("v_readfirstlane_b32 s48, v1")
    for j in range(6):
        e(f"v_add_u32 v3, {4*j}, v1")
        e(f"v_lshl_add_u32 v3, v3, 6, v2")
        e(f"v_mul_u32_u24 v4, 2979, v3")
        e(f"v_lshrrev_b32 v4, 16, v4")
        e(f"v_mul_u32_u24 v5, 22, v4")
        e(f"v_sub_u32 v3, v3, v5")
        e(f"v_min_u32 v3, 20, v3")
        e(f"v_mul_u32_u24 v5, 37, v3")
        e(f"v_lshrrev_b32 v5, 8, v5")
        e(f"v_mul_u32_u24 v6, 7, v5")
        e(f"v_sub_u32 v3, v3, v6")
        e(f"v_mul_u32_u24 v4, 2688, v4")
        e(f"v_mul_u32_u24 v5, 896, v5")
        e(f"v_lshlrev_b32 v3, 4, v3")
        e(f"v_add3_u32 v{8+j}, v3, v4, v5")
        if j < 5:
            e(f"s_add_u32 s{50+j}, s48, {4*j}")
            e(f"s_lshl_b32 s{50+j}, s{50+j}, 10")
    e("s_lshl_b32 s55, s48, 10")
    e(f"s_add_u32 s3, s55, {20*1024}")
    e(f"s_add_u32 s55, s55, {DUMMY - 2048}")
    e("s_cmp_lt_u32 s48, 2")
    e("s_cselect_b32 s55, s3, s55")
    e("s_cselect_b32 s57, 1, 0")
    e("v_lshrrev_b32 v3, 4, v2")
    e("v_bfe_u32 v4, v2, 2, 2")
    e("v_lshl_add_u32 v4, v3, 3, v4")
    e(f"v_mul_u32_u24 v4, {RS}, v4")
    e("v_and_b32 v5, 3, v2")
    e("v_lshl_add_u32 v14, v5, 3, v4")
    e("v_and_b32 v4, 15, v2")
    e("s_lshl_b32 s3, s25, 7")
    e("v_lshl_add_u32 v5, v1, 5, v4")
    e("v_add_u32 v5, s3, v5")
    e("v_mul_u32_u24 v5, 896, v5")
    e("v_lshl_add_u32 v15, v3, 4, v5")
    e("v_add_u32 v16, 14336, v15")
    e("v_add_u32 v5, s3, v4")
    e("v_subrev_u32 v5, 16, v5")
    e("s_movk_i32 s49, 896")
    e("v_mul_lo_u32 v5, v5, s49")
    e("v_lshl_add_u32 v17, v3, 4, v5")
    e("s_mul_i32 s56, s26, 112")
    e("s_and_b32 s81, s23, 7")
    e("s_lshr_b32 s3, s23, 3")
    e("s_lshl_b32 s3, s3, 1")
    e("s_add_u32 s81, s81, s3")
    e("s_cmp_ge_u32 s81, 7")
    e("s_cselect_b32 s3, 7, 0")
    e("s_sub_u32 s81, s81, s3")
    e("s_cmp_ge_u32 s81, 7")
    e("s_cselect_b32 s3, 7, 0")
    e("s_sub_u32 s81, s81, s3")
    e("s_waitcnt lgkmcnt(0)")
    srd(40, 20, 21, WS_END)
    srd(44, 18, 19, 256)
    srd(88, 16, 17, 2048*1792)
    e("s_cmp_eq_u32 s24, 0")
    e("s_cbranch_scc0 K_SELB")
    srd(28, 4, 5, 2048*896)
    srd(32, 6, 7, 448*2688)
    srd(36, 8, 9, 448*896)
    e("s_branch K_A")
    lab("K_SELB")
    srd(28, 10, 11, 2048*896)
    srd(32, 12, 13, 448*2688)
    srd(36, 14, 15, 448*896)
    e("s_branch K_B")

def issue_step(vm, isB, i):
    e("s_mul_i32 s83, s81, 172032")
    e("s_add_u32 s83, s83, s56")
    e("s_lshl_b32 s85, s81, 7")
    for j in range(6):
        if j < 5:
            e(f"s_add_u32 m0, s{50+j}, {i*REG}")
        else:
            e(f"s_mul_i32 s3, s57, {i*REG}")
            e(f"s_add_u32 m0, s55, s3")
        e("s_nop 0")
        e(f"buffer_load_dwordx4 v{8+j}, s[32:35], s83 offen lds")
        vm.issue(f"c{i}")
    for kk in range(2):
        ks = 2*i + kk
        for rt in range(3):
            if rt == 2 and not isB: continue
            e(f"buffer_load_dwordx4 v[{XF+(ks*3+rt)*4}:{XF+(ks*3+rt)*4+3}], v{15+rt}, s[28:31], s85 offen offset:{kk*64}")
            vm.issue(f"c{i}")
    e("s_add_u32 s81, s81, 1")
    e("s_cmp_eq_u32 s81, 7")
    e("s_cselect_b32 s81, 0, s81")

def wo_voffs():
    e("s_lshr_b32 s3, s26, 1")
    e("s_mul_i32 s3, s3, 224")
    for t in range(7):
        e(f"v_add_u32 v3, {t*64}, v2")
        e("v_mul_u32_u24 v4, 4682, v3")
        e("v_lshrrev_b32 v4, 16, v4")
        e("v_mul_u32_u24 v5, 14, v4")
        e("v_sub_u32 v3, v3, v5")
        e("v_mul_u32_u24 v4, 896, v4")
        e("v_lshl_add_u32 v3, v3, 4, v4")
        e(f"v_add_u32 v{20+t}, s3, v3")

def wo_dma(vm):
    for m in range(4):
        sk = uid("WOSKIP")
        if m == 3:
            e("s_cmp_lt_u32 s48, 2")
            e(f"s_cbranch_scc0 {sk}")
        e(f"s_add_u32 s3, s48, {4*m}")
        e("s_mul_i32 s83, s3, 28672")
        e("s_mul_i32 s84, s3, 7168")
        for t in range(7):
            e(f"s_add_u32 m0, s84, {t*1024}")
            e("s_nop 0")
            e(f"buffer_load_dwordx4 v{20+t}, s[36:39], s83 offen lds")
            vm.issue("wo")
        if m == 3:
            lab(sk)

def gemm(vm, isB):
    if not isB:
        e("s_lshl_b32 s3, s25, 3")
        e("s_add_u32 s3, s3, s26")
        e("s_lshl_b32 s3, s3, 9")
        e(f"s_add_u32 s3, s3, 0x{ACC:x}")
        e("v_and_b32 v3, 31, v2")
        e("v_lshlrev_b32 v3, 2, v3")
        e("v_lshl_add_u32 v3, v1, 7, v3")
        e("v_mov_b32 v4, 0")
        e("buffer_store_dword v4, v3, s[40:43], s3 offen sc0 sc1")
        vm.issue("zero")
    for i in range(DEPTH):
        issue_step(vm, isB, i)
    for i in range(104):
        e(f"v_accvgpr_write_b32 a{i}, 0")
    wo_voffs()
    for ch in range(7):
        vm.wait(f"c{ch}")
        e("s_barrier")
        stamp(vm, 12 + ch)
        if ch == 0 and not isB:
            e("v_cmp_eq_u32 vcc, 0, v2")
            e("s_and_saveexec_b64 s[62:63], vcc")
            e(f"v_mov_b32 v3, {CNT_Z}")
            e("v_mov_b32 v4, 1")
            e("buffer_atomic_add v4, v3, s[44:47], 0 offen sc1")
            vm.issue("zsig")
            e("s_mov_b64 exec, s[62:63]")
        if ch + DEPTH < 7:
            issue_step(vm, isB, ch + DEPTH)
        if ch == 5:
            wo_dma(vm)
        if ch == 6 and not isB:
            e(f"v_mov_b32 v3, {CNT_Z}")
            e("buffer_load_dword v19, v3, s[44:47], 0 offen sc0 sc1")
            vm.issue("zchk")
        e(f"v_add_u32 v18, {ch*REG}, v14")
        for kk in range(2):
            ks = 2*ch + kk
            def rd(grp, buf):
                for t in range(4):
                    for hf in range(2):
                        off = (32*kk + 4*hf)*RS + grp*112 + (t >> 1)*56 + (t & 1)*32
                        r = BF + buf*16 + t*4 + hf*2
                        e(f"ds_read_b64_tr_b16 v[{r}:{r+1}], v18 offset:{off}")
            rd(0, 0)
            for grp in range(3):
                if grp < 2:
                    rd(grp+1, (grp+1) & 1)
                    e("s_waitcnt lgkmcnt(8)")
                else:
                    e("s_waitcnt lgkmcnt(0)")
                tr = (grp == 0) or (isB and grp == 1)
                for t in range(4):
                    ct = grp*4 + t
                    b = BF + (grp & 1)*16 + t*4
                    for rt in range(3):
                        if rt == 2 and (not isB or grp == 0): continue
                        x = XF + (ks*3+rt)*4
                        a = (rt*12 + ct)*4 if rt < 2 else 96 + (grp-1)*4
                        sk = None
                        if rt == 2:
                            sk = uid("HS")
                            e(f"s_cmp_eq_u32 s48, {t}")
                            e(f"s_cbranch_scc0 {sk}")
                        if tr:
                            e(f"v_mfma_f32_16x16x32_bf16 a[{a}:{a+3}], v[{b}:{b+3}], v[{x}:{x+3}], a[{a}:{a+3}]")
                        else:
                            e(f"v_mfma_f32_16x16x32_bf16 a[{a}:{a+3}], v[{x}:{x+3}], v[{b}:{b+3}], a[{a}:{a+3}]")
                        if sk: lab(sk)

def poll(off_expr_sgpr, target, name):
    lp = uid(name + "_LOOP"); dn = uid(name + "_DONE")
    e("s_cmp_eq_u32 s48, 0")
    e(f"s_cbranch_scc0 {dn}")
    e("s_mov_b32 s78, 0")
    e(f"v_mov_b32 v30, {off_expr_sgpr}")
    lab(lp)
    e("buffer_load_dword v31, v30, s[44:47], 0 offen sc0 sc1")
    e("s_waitcnt vmcnt(0)")
    e("v_readfirstlane_b32 s79, v31")
    e("s_nop 3")
    e(f"s_cmp_ge_u32 s79, {target}")
    e(f"s_cbranch_scc1 {dn}")
    e("s_add_u32 s78, s78, 1")
    e("s_cmp_gt_u32 s78, 0x40000")
    e(f"s_cbranch_scc1 {dn}")
    e("s_sleep 1")
    e(f"s_branch {lp}")
    lab(dn)
    e("s_barrier")

def arrive(off_src):
    e("s_waitcnt vmcnt(0)")
    e("s_barrier")
    e("v_cmp_eq_u32 vcc, 0, v0")
    e("s_and_saveexec_b64 s[62:63], vcc")
    e(f"v_mov_b32 v3, {off_src}")
    e("v_mov_b32 v4, 1")
    e("buffer_atomic_add v4, v3, s[44:47], 0 offen sc1")
    e("s_mov_b64 exec, s[62:63]")

def acc_read4(dst, a):
    for r in range(4):
        e(f"v_accvgpr_read_b32 v{dst+r}, a{a+r}")

def epi_A(vm):
    c("---- A epilogue: KV partial first ----")
    e("s_nop 7")
    e("s_nop 7")
    e("v_and_b32 v5, 15, v2")
    e("v_lshrrev_b32 v6, 4, v2")
    e("v_cmp_le_u32 s[64:65], 12, v5")
    PK = 32; VV = 48; KP = 64
    for t in range(4):
        for rt in range(2):
            acc_read4(T+8, (rt*12 + 4 + t)*4)
            phi_pair(PK + t*4 + rt*2, T+8, T+9, T)
            phi_pair(PK + t*4 + rt*2 + 1, T+10, T+11, T)
    e("v_mov_b32 v7, 0x3f803f80")
    for t in range(4):
        for rt in range(2):
            acc_read4(T+8, (rt*12 + 8 + t)*4)
            d = VV + t*4 + rt*2
            e(f"v_cvt_pk_bf16_f32 v{d}, v{T+8}, v{T+9}")
            e(f"v_cvt_pk_bf16_f32 v{d+1}, v{T+10}, v{T+11}")
            if t & 1:
                e(f"v_cndmask_b32 v{d}, v{d}, v7, s[64:65]")
                e(f"v_cndmask_b32 v{d+1}, v{d+1}, v7, s[64:65]")
    e("s_nop 1")
    for hh in range(2):
        for et in range(2):
            for dt in range(2):
                d = KP + (hh*4 + et*2 + dt)*4
                va = VV + (hh*2+et)*4; pk = PK + (hh*2+dt)*4
                e(f"v_mfma_f32_16x16x32_bf16 v[{d}:{d+3}], v[{va}:{va+3}], v[{pk}:{pk+3}], 0")
    e("s_lshl_b32 s3, s48, 13")
    e(f"s_add_u32 s3, s3, {SCR}")
    e("v_lshlrev_b32 v3, 4, v2")
    e("v_add_u32 v4, s3, v3")
    e("s_nop 7")
    e("s_nop 3")
    for i in range(8):
        e(f"ds_write_b128 v4, v[{KP+i*4}:{KP+i*4+3}] offset:{i*1024}")
    e("s_waitcnt lgkmcnt(0)")
    e("s_barrier")
    e("s_lshl_b32 s3, s48, 11")
    e(f"s_add_u32 s3, s3, {SCR}")
    e("v_add_u32 v4, s3, v3")
    for dt in range(2):
        for w in range(4):
            r = 96 + (dt*4 + w)*4
            e(f"ds_read_b128 v[{r}:{r+3}], v4 offset:{w*8192 + dt*1024}")
    e("s_lshr_b32 s3, s48, 1")
    e("s_lshl_b32 s27, s26, 1")
    e("s_add_u32 s3, s3, s27")
    e("s_lshl_b32 s3, s3, 12")
    e("s_and_b32 s27, s48, 1")
    e("s_lshl_b32 s58, s27, 11")
    e("s_add_u32 s3, s3, s58")
    e(f"s_add_u32 s59, s3, 0x{ACC:x}")
    e("v_lshlrev_b32 v8, 9, v6")
    e("v_lshl_add_u32 v8, v5, 2, v8")
    e("v_cmp_gt_u32 s[66:67], 3, v6")
    e("s_cmp_eq_u32 s27, 1")
    e("s_cselect_b64 s[66:67], s[66:67], -1")
    e("v_cmp_gt_u32 s[68:69], 12, v5")
    e("s_waitcnt lgkmcnt(0)")
    for dt in range(2):
        b = 96 + dt*16
        for r in range(4):
            e(f"v_add_f32 v{b+r}, v{b+r}, v{b+4+r}")
            e(f"v_add_f32 v{b+8+r}, v{b+8+r}, v{b+12+r}")
        for r in range(4):
            e(f"v_add_f32 v{b+r}, v{b+r}, v{b+8+r}")
    vm.wait("zchk")
    zl = uid("ZL"); zd = uid("ZD")
    e("s_mov_b32 s78, 0")
    lab(zl)
    e("v_readfirstlane_b32 s79, v19")
    e("s_nop 3")
    e("s_cmp_ge_u32 s79, 512")
    e(f"s_cbranch_scc1 {zd}")
    e("s_add_u32 s78, s78, 1")
    e("s_cmp_gt_u32 s78, 0x40000")
    e(f"s_cbranch_scc1 {zd}")
    e("s_sleep 1")
    e(f"v_mov_b32 v3, {CNT_Z}")
    e("buffer_load_dword v19, v3, s[44:47], 0 offen sc0 sc1")
    e("s_waitcnt vmcnt(0)")
    e(f"s_branch {zl}")
    lab(zd)
    e("s_mov_b64 s[62:63], exec")
    for dt in range(2):
        for r in range(4):
            m = None
            if dt == 1 and r > 0:
                e("s_and_b64 exec, s[66:67], s[68:69]")
            elif dt == 1:
                e("s_mov_b64 exec, s[68:69]")
            elif r > 0:
                e("s_mov_b64 exec, s[66:67]")
            e(f"buffer_atomic_add_f32 v{96+dt*16+r}, v8, s[40:43], s59 offen offset:{r*128 + dt*64} sc0 sc1")
            vm.issue("kvat")
    e("s_mov_b64 exec, s[62:63]")
    arrive(CNT_KV)
    stamp(vm, 4)
    c("---- phi(q) stores ----")
    e("s_mul_i32 s3, s26, 112")
    e("v_lshlrev_b32 v4, 3, v6")
    e("v_sub_u32 v4, v15, v4")
    e("v_add_u32 v4, s3, v4")
    e("v_add_u32 v9, 14336, v4")
    e("v_cmp_gt_u32 s[64:65], 3, v6")
    for rt in range(2):
        for t in range(4):
            acc_read4(T+8, (rt*12 + t)*4)
            phi_pair(T+12, T+8, T+9, T)
            phi_pair(T+13, T+10, T+11, T)
            if t & 1:
                e("s_and_saveexec_b64 s[62:63], s[64:65]")
            e(f"buffer_store_dwordx2 v[{T+12}:{T+13}], v{4 if rt == 0 else 9}, s[40:43], 0 offen offset:{(t>>1)*56 + (t&1)*32} sc0 sc1")
            vm.issue("pq")
            if t & 1:
                e("s_mov_b64 exec, s[62:63]")
            e("s_nop 1")
    e("s_lshl_b32 s3, s25, 2")
    arrive("s3")
    stamp(vm, 5)

def epi_B(vm):
    c("---- B epilogue: MFMA banded attention ----")
    QF = 32; KF = 48; VF = 72
    e("s_nop 7")
    e("s_nop 7")
    e("v_and_b32 v5, 15, v2")
    e("v_lshrrev_b32 v6, 4, v2")
    e("v_cmp_gt_u32 s[64:65], 3, v6")
    e("v_lshlrev_b32 v3, 4, v2")
    e("v_lshlrev_b32 v7, 3, v2")
    acc_read4(T, 96)
    acc_read4(T+4, 100)
    e(f"v_cvt_pk_bf16_f32 v{T+8}, v{T}, v{T+1}")
    e(f"v_cvt_pk_bf16_f32 v{T+9}, v{T+2}, v{T+3}")
    e(f"v_cvt_pk_bf16_f32 v{T+10}, v{T+4}, v{T+5}")
    e(f"v_cvt_pk_bf16_f32 v{T+11}, v{T+6}, v{T+7}")
    e("s_lshr_b32 s3, s48, 1")
    e("s_lshl_b32 s3, s3, 10")
    e("s_and_b32 s27, s48, 1")
    e("s_lshl_b32 s27, s27, 3")
    e("s_add_u32 s3, s3, s27")
    e(f"s_add_u32 s3, s3, {SCR}")
    e("v_add_u32 v4, s3, v3")
    e(f"ds_write_b64 v4, v[{T+8}:{T+9}]")
    e("s_lshl_b32 s3, s48, 9")
    e(f"s_add_u32 s3, s3, {SCR + 2048}")
    e("v_add_u32 v4, s3, v7")
    e(f"ds_write_b64 v4, v[{T+10}:{T+11}]")
    for hh in range(2):
        for dt in range(2):
            acc_read4(T, (12 + 4 + hh*2 + dt)*4)
            d = KF + (2*2+hh)*4 + dt*2
            e(f"v_cvt_pk_bf16_f32 v{d}, v{T}, v{T+1}")
            e(f"v_cvt_pk_bf16_f32 v{d+1}, v{T+2}, v{T+3}")
        for et in range(2):
            acc_read4(T, (12 + 8 + hh*2 + et)*4)
            d = VF + (hh*2+et)*6 + 4
            e(f"v_cvt_pk_bf16_f32 v{d}, v{T}, v{T+1}")
            e(f"v_cvt_pk_bf16_f32 v{d+1}, v{T+2}, v{T+3}")
    e("s_lshl_b32 s3, s48, 12")
    e(f"s_add_u32 s3, s3, {SCR + 4096}")
    e("v_add_u32 v4, s3, v3")
    e("v_add_u32 v8, s3, v7")
    for hh in range(2):
        d = KF + (2*2+hh)*4
        e(f"ds_write_b128 v4, v[{d}:{d+3}] offset:{hh*1024}")
        for et in range(2):
            d = VF + (hh*2+et)*6 + 4
            e(f"ds_write_b64 v8, v[{d}:{d+1}] offset:{2048 + (hh*2+et)*512}")
    for rt in range(2):
        for hh in range(2):
            for dt in range(2):
                acc_read4(T, (rt*12 + hh*2 + dt)*4)
                d = QF + (rt*2+hh)*4 + dt*2
                e(f"v_cvt_pk_bf16_f32 v{d}, v{T}, v{T+1}")
                e(f"v_cvt_pk_bf16_f32 v{d+1}, v{T+2}, v{T+3}")
                if dt == 1:
                    e(f"v_cndmask_b32 v{d}, 0, v{d}, s[64:65]")
                    e(f"v_cndmask_b32 v{d+1}, 0, v{d+1}, s[64:65]")
    for hh in range(2):
        for dt in range(2):
            acc_read4(T, (4 + hh*2 + dt)*4)
            d = KF + (1*2+hh)*4 + dt*2
            e(f"v_cvt_pk_bf16_f32 v{d}, v{T}, v{T+1}")
            e(f"v_cvt_pk_bf16_f32 v{d+1}, v{T+2}, v{T+3}")
        for et in range(2):
            acc_read4(T, (8 + hh*2 + et)*4)
            d = VF + (hh*2+et)*6 + 2
            e(f"v_cvt_pk_bf16_f32 v{d}, v{T}, v{T+1}")
            e(f"v_cvt_pk_bf16_f32 v{d+1}, v{T+2}, v{T+3}")
    e("s_waitcnt lgkmcnt(0)")
    e("s_barrier")
    e("s_lshl_b32 s3, s48, 12")
    e(f"s_add_u32 s3, s3, {SCR}")
    e("v_add_u32 v4, s3, v3")
    e("v_add_u32 v8, s3, v7")
    for hh in range(2):
        d = KF + hh*4
        e(f"ds_read_b128 v[{d}:{d+3}], v4 offset:{hh*1024}")
        for et in range(2):
            d = VF + (hh*2+et)*6
            e(f"ds_read_b64 v[{d}:{d+1}], v8 offset:{2048 + (hh*2+et)*512}")
    e("v_and_b32 v9, 1, v5")
    e("v_cmp_eq_u32 s[4:5], 1, v9")
    e("v_mov_b32 v10, 0xffff")
    e("v_mov_b32 v11, 0xffff0000")
    e("v_cndmask_b32 v10, v10, v11, s[4:5]")
    e("v_lshl_add_u32 v11, v6, 2, v9")
    e("v_sub_u32 v11, v11, v5")
    for k in range(4):
        addk = 2*k if k < 2 else 16 + 2*(k-2)
        e(f"v_add_u32 v12, {addk}, v11")
        e(f"v_cmp_le_i32 s[{6+2*k}:{7+2*k}], 2, v12")
        e(f"v_cmp_ge_i32 vcc, 16, v12")
        e(f"s_and_b64 s[{6+2*k}:{7+2*k}], s[{6+2*k}:{7+2*k}], vcc")
    e("s_or_b32 s3, s25, s48")
    e("s_cmp_eq_u32 s3, 0")
    e("s_cselect_b64 s[14:15], 0, -1")
    e("s_and_b64 s[16:17], s[6:7], s[14:15]")
    e("s_and_b64 s[18:19], s[8:9], s[14:15]")
    e("s_mul_i32 s3, s26, 112")
    e(f"s_add_u32 s58, s3, 0x{O_B:x}")
    e("v_lshlrev_b32 v4, 3, v6")
    e("v_sub_u32 v4, v15, v4")
    e("v_add_u32 v13, 14336, v4")
    e("s_waitcnt lgkmcnt(0)")
    S = 96
    for rt in range(2):
        for hh in range(2):
            sb = S + (rt*2+hh)*8
            q = QF + (rt*2+hh)*4
            for ti in range(2):
                k = KF + ((rt+ti)*2+hh)*4
                e(f"v_mfma_f32_16x16x32_bf16 v[{sb+ti*4}:{sb+ti*4+3}], v[{k}:{k+3}], v[{q}:{q+3}], 0")
    e("s_nop 7")
    e("s_nop 3")
    e("v_mov_b32 v20, 0xce6e6b28")
    P = 128
    W = 144
    for rt in range(2):
        for hh in range(2):
            cb = rt*2+hh
            sb = S + cb*8
            lg = W
            for k in range(4):
                e(f"v_cndmask_b32 v{lg+k}, v{sb+2*k}, v{sb+2*k+1}, s[4:5]")
            for k in (0, 2):
                e(f"v_cvt_pk_bf16_f32 v{W+4}, v{lg+k}, v{lg+k+1}")
                unpack(W+5, W+6, W+4)
                e(f"v_mul_f32 v{W+5}, 0x{SCALE:x}, v{W+5}")
                e(f"v_mul_f32 v{W+6}, 0x{SCALE:x}, v{W+6}")
                e(f"v_cvt_pk_bf16_f32 v{W+4}, v{W+5}, v{W+6}")
                unpack(lg+k, lg+k+1, W+4)
            for k in range(4):
                ms = (16 + 2*k) if (rt == 0 and k < 2) else (6 + 2*k)
                e(f"v_cndmask_b32 v{lg+k}, v20, v{lg+k}, s[{ms}:{ms+1}]")
            e(f"v_max3_f32 v{W+4}, v{lg}, v{lg+1}, v{lg+2}")
            e(f"v_max_f32 v{W+4}, v{W+4}, v{lg+3}")
            e(f"v_mov_b32 v{W+5}, v{W+4}")
            e("s_nop 1")
            e(f"v_permlane16_swap_b32 v{W+4}, v{W+5}")
            e("s_nop 1")
            e(f"v_max_f32 v{W+4}, v{W+4}, v{W+5}")
            e(f"v_mov_b32 v{W+5}, v{W+4}")
            e("s_nop 1")
            e(f"v_permlane32_swap_b32 v{W+4}, v{W+5}")
            e("s_nop 1")
            e(f"v_max_f32 v{W+4}, v{W+4}, v{W+5}")
            for k in range(4):
                e(f"v_sub_f32 v{lg+k}, v{lg+k}, v{W+4}")
                e(f"v_mul_f32 v{lg+k}, 0x{LOG2E:x}, v{lg+k}")
                e(f"v_exp_f32 v{lg+k}, v{lg+k}")
            e("s_nop 0")
            e(f"v_add_f32 v{W+4}, v{lg}, v{lg+1}")
            e(f"v_add_f32 v{W+5}, v{lg+2}, v{lg+3}")
            e(f"v_add_f32 v{W+4}, v{W+4}, v{W+5}")
            e(f"v_mov_b32 v{W+5}, v{W+4}")
            e("s_nop 1")
            e(f"v_permlane16_swap_b32 v{W+4}, v{W+5}")
            e("s_nop 1")
            e(f"v_add_f32 v{W+4}, v{W+4}, v{W+5}")
            e(f"v_mov_b32 v{W+5}, v{W+4}")
            e("s_nop 1")
            e(f"v_permlane32_swap_b32 v{W+4}, v{W+5}")
            e("s_nop 1")
            e(f"v_add_f32 v{W+4}, v{W+4}, v{W+5}")
            e(f"v_rcp_f32 v{W+4}, v{W+4}")
            e("s_nop 0")
            for k in range(4):
                e(f"v_mul_f32 v{lg+k}, v{lg+k}, v{W+4}")
                e(f"v_cvt_pk_bf16_f32 v{P+cb*4+k}, v{lg+k}, v{lg+k}")
                e(f"v_and_b32 v{P+cb*4+k}, v{P+cb*4+k}, v10")
    e("s_nop 1")
    O = 160
    for rt in range(2):
        for hh in range(2):
            cb = rt*2+hh
            for et in range(2):
                o = O + (cb*2+et)*4
                v = VF + (hh*2+et)*6 + 2*rt
                e(f"v_mfma_f32_16x16x32_bf16 v[{o}:{o+3}], v[{v}:{v+3}], v[{P+cb*4}:{P+cb*4+3}], 0")
    e("s_nop 7")
    e("s_nop 3")
    for rt in range(2):
        for hh in range(2):
            cb = rt*2+hh
            for et in range(2):
                o = O + (cb*2+et)*4
                e(f"v_cvt_pk_bf16_f32 v{o}, v{o}, v{o+1}")
                e(f"v_cvt_pk_bf16_f32 v{o+1}, v{o+2}, v{o+3}")
                if et == 1:
                    e("s_and_saveexec_b64 s[62:63], s[64:65]")
                e(f"buffer_store_dwordx2 v[{o}:{o+1}], v{4 if rt == 0 else 13}, s[40:43], s58 offen offset:{hh*56 + et*32} sc0 sc1")
                vm.issue("ob")
                if et == 1:
                    e("s_mov_b64 exec, s[62:63]")
    e("s_lshl_b32 s3, s25, 2")
    e("s_add_u32 s3, s3, 64")
    arrive("s3")
    stamp(vm, 5)

def p2_common():
    e("v_lshrrev_b32 v3, 4, v2")
    e("v_and_b32 v4, 15, v2")
    e("s_lshl_b32 s3, s25, 7")
    e("s_and_b32 s27, s26, 1")
    e("s_lshl_b32 s27, s27, 6")
    e("s_add_u32 s3, s3, s27")
    e("v_lshl_add_u32 v5, v1, 4, v4")
    e("v_add_u32 v5, s3, v5")
    e("v_mul_u32_u24 v6, 896, v5")
    e("v_lshl_add_u32 v6, v3, 4, v6")
    e("v_lshlrev_b32 v7, 4, v2")
    e("v_mul_u32_u24 v8, 1792, v5")
    e("v_lshl_add_u32 v8, v3, 3, v8")
    e("s_mul_i32 s3, s24, 896")
    e("s_lshr_b32 s27, s26, 1")
    e("s_mul_i32 s27, s27, 224")
    e("s_add_u32 s3, s3, s27")
    e("v_add_u32 v8, s3, v8")
    for i in range(28):
        e(f"v_accvgpr_write_b32 a{i}, 0")

def p2_out():
    e("s_nop 7")
    e("s_nop 7")
    for nt in range(7):
        acc_read4(12, nt*4)
        e("v_cvt_pk_bf16_f32 v16, v12, v13")
        e("v_cvt_pk_bf16_f32 v17, v14, v15")
        e(f"buffer_store_dwordx2 v[16:17], v8, s[88:91], 0 offen offset:{nt*32}")
        e("s_nop 1")

def p2_A(vm):
    c("---- P2 A ----")
    p2_common()
    e("v_bfe_u32 v9, v2, 2, 2")
    e("v_lshl_add_u32 v9, v3, 2, v9")
    e("v_mul_u32_u24 v9, 224, v9")
    e("v_and_b32 v10, 3, v2")
    e("v_lshl_add_u32 v9, v10, 3, v9")
    e("v_add_u32 v10, 3584, v9")
    e("v_cmp_gt_u32 s[64:65], 3, v3")
    e("s_nop 1")
    e("v_cndmask_b32 v10, v9, v10, s[64:65]")
    e("s_lshl_b32 s3, s25, 2")
    poll("s3", 8, "PQ")
    PQ = 32
    for h in range(16):
        e(f"buffer_load_dwordx4 v[{PQ+h*4}:{PQ+h*4+3}], v6, s[40:43], 0 offen offset:{h*56} sc0 sc1")
    poll(str(CNT_KV), 128, "KV")
    stamp(vm, 6)
    e("v_lshlrev_b32 v11, 7, v4")
    e("v_lshl_add_u32 v11, v3, 5, v11")
    e("s_lshl_b32 s3, s48, 14")
    e(f"s_add_u32 s3, s3, 0x{ACC:x}")
    R = 96
    for hq in range(4):
        for f in range(2):
            r = R + (hq*2+f)*8
            e(f"buffer_load_dwordx4 v[{r}:{r+3}], v11, s[40:43], s3 offen offset:{f*2048} sc0 sc1")
            e(f"buffer_load_dwordx4 v[{r+4}:{r+7}], v11, s[40:43], s3 offen offset:{f*2048+16} sc0 sc1")
        e("s_add_u32 s3, s3, 4096")
    e("s_lshl_b32 s3, s48, 13")
    e(f"s_add_u32 s3, s3, {SCR}")
    e("v_add_u32 v11, s3, v7")
    for hq in range(4):
        for f in range(2):
            r = R + (hq*2+f)*8
            e(f"s_waitcnt vmcnt({14 - 2*(hq*2+f)})")
            for q in range(4):
                e(f"v_cvt_pk_bf16_f32 v{r+q}, v{r+2*q}, v{r+2*q+1}")
            e(f"ds_write_b128 v11, v[{r}:{r+3}] offset:{(hq*2+f)*1024}")
    e("s_waitcnt lgkmcnt(0)")
    e("s_barrier")
    stamp(vm, 7)
    e(f"v_add_u32 v11, {SCR}, v7")
    e("v_lshlrev_b32 v12, 8, v3")
    e(f"v_add_u32 v12, {SCR + 1024 + 192}, v12")
    KVR = 96; NR = 144; OF = 192
    for hg in range(4):
        for hq in range(4):
            h = hg*4 + hq
            r = KVR + hq*12
            e(f"ds_read_b128 v[{r}:{r+3}], v11 offset:{h*2048}")
            e(f"ds_read_b128 v[{r+4}:{r+7}], v11 offset:{h*2048+1024}")
            e(f"ds_read_b128 v[{r+8}:{r+11}], v12 offset:{h*2048}")
        for hq in range(4):
            h = hg*4 + hq
            r = KVR + hq*12; n = NR + hq*12
            e(f"s_waitcnt lgkmcnt({9 - 3*hq})")
            for f in range(3):
                e(f"v_mfma_f32_16x16x32_bf16 v[{n+f*4}:{n+f*4+3}], v[{r+f*4}:{r+f*4+3}], v[{PQ+h*4}:{PQ+h*4+3}], 0")
        e("s_nop 7")
        e("s_nop 3")
        for hq in range(4):
            h = hg*4 + hq
            n = NR + hq*12
            e(f"v_cvt_pk_bf16_f32 v24, v{n+8}, v{n+8}")
            e("v_lshlrev_b32 v24, 16, v24")
            e(f"v_add_f32 v24, 0x{EPS:x}, v24")
            e("v_cvt_pk_bf16_f32 v24, v24, v24")
            e("v_lshlrev_b32 v24, 16, v24")
            e("v_rcp_f32 v24, v24")
            e("s_nop 0")
            for q in range(4):
                e(f"v_cvt_pk_bf16_f32 v25, v{n+2*q}, v{n+2*q+1}")
                unpack(26, 27, 25)
                e("v_mul_f32 v26, v26, v24")
                e("v_mul_f32 v27, v27, v24")
                e(f"v_cvt_pk_bf16_f32 v{OF+h*4+q}, v26, v27")
            e(f"v_cndmask_b32 v{OF+h*4+2}, 0, v{OF+h*4+2}, s[64:65]")
            e(f"v_cndmask_b32 v{OF+h*4+3}, 0, v{OF+h*4+3}, s[64:65]")
    stamp(vm, 8)
    def rdh(h):
        bb = 32 + (h & 1)*28
        e(f"v_add_u32 v13, {h*28*224}, v9")
        e(f"v_add_u32 v14, {h*28*224}, v10")
        for nt in range(7):
            e(f"ds_read_b64_tr_b16 v[{bb+nt*4}:{bb+nt*4+1}], v13 offset:{nt*32}")
            e(f"ds_read_b64_tr_b16 v[{bb+nt*4+2}:{bb+nt*4+3}], v14 offset:{nt*32}")
    rdh(0)
    for h in range(16):
        if h < 15:
            rdh(h+1)
            e("s_waitcnt lgkmcnt(14)")
        else:
            e("s_waitcnt lgkmcnt(0)")
        bb = 32 + (h & 1)*28
        for nt in range(7):
            e(f"v_mfma_f32_16x16x32_bf16 a[{nt*4}:{nt*4+3}], v[{bb+nt*4}:{bb+nt*4+3}], v[{OF+h*4}:{OF+h*4+3}], a[{nt*4}:{nt*4+3}]")
    p2_out()
    stamp(vm, 9)

def p2_B(vm):
    c("---- P2 B ----")
    p2_common()
    e("v_bfe_u32 v9, v2, 2, 2")
    e("v_lshl_add_u32 v9, v3, 3, v9")
    e("v_mul_u32_u24 v9, 224, v9")
    e("v_and_b32 v10, 3, v2")
    e("v_lshl_add_u32 v9, v10, 3, v9")
    e("s_lshl_b32 s3, s25, 2")
    e("s_add_u32 s3, s3, 64")
    poll("s3", 8, "OB")
    stamp(vm, 6)
    OFR = 96
    e(f"s_mov_b32 s3, 0x{O_B:x}")
    for ks in range(14):
        e(f"buffer_load_dwordx4 v[{OFR+ks*4}:{OFR+ks*4+3}], v6, s[40:43], s3 offen offset:{ks*64} sc0 sc1")
    def rdk(ks):
        bb = 32 + (ks & 1)*28
        e(f"v_add_u32 v13, {ks*32*224}, v9")
        for nt in range(7):
            e(f"ds_read_b64_tr_b16 v[{bb+nt*4}:{bb+nt*4+1}], v13 offset:{nt*32}")
            e(f"ds_read_b64_tr_b16 v[{bb+nt*4+2}:{bb+nt*4+3}], v13 offset:{nt*32 + 4*224}")
    rdk(0)
    for ks in range(14):
        if ks < 13:
            rdk(ks+1)
            e("s_waitcnt lgkmcnt(14)")
        else:
            e("s_waitcnt lgkmcnt(0)")
        e(f"s_waitcnt vmcnt({13-ks})")
        bb = 32 + (ks & 1)*28
        for nt in range(7):
            e(f"v_mfma_f32_16x16x32_bf16 a[{nt*4}:{nt*4+3}], v[{bb+nt*4}:{bb+nt*4+3}], v[{OFR+ks*4}:{OFR+ks*4+3}], a[{nt*4}:{nt*4+3}]")
    p2_out()
    stamp(vm, 9)

def kernel():
    lab(f"{NAME}_kernel")
    prologue()
    lab("K_A")
    vm = VM()
    stamp(vm, 0)
    gemm(vm, False)
    stamp(vm, 3)
    epi_A(vm)
    p2_A(vm)
    e("s_branch K_END")
    lab("K_B")
    vm = VM()
    stamp(vm, 0)
    gemm(vm, True)
    stamp(vm, 3)
    epi_B(vm)
    p2_B(vm)
    lab("K_END")
    e("s_endpgm")

HDR = open("cdna_kernels/" + NAME + ".s.ref").read().split("; @launch")[0]
kernel()
out = HDR
out += f"; @launch grid=(256,1,1) block=(256,1,1) lds={LDS_TOTAL}\n"
out += '.amdgcn_target "amdgcn-amd-amdhsa--gfx950"\n.text\n'
out += f".globl {NAME}_kernel\n.p2align 8\n.type {NAME}_kernel,@function\n"
out += "\n".join(L) + "\n"
out += f""".section .rodata,"a"
.p2align 6
.amdhsa_kernel {NAME}_kernel
  .amdhsa_next_free_vgpr 384
  .amdhsa_next_free_sgpr 96
  .amdhsa_accum_offset 256
  .amdhsa_group_segment_fixed_size 0
  .amdhsa_kernarg_size 72
  .amdhsa_user_sgpr_count 2
  .amdhsa_user_sgpr_kernarg_segment_ptr 1
  .amdhsa_system_sgpr_workgroup_id_x 1
.end_amdhsa_kernel
"""
path = sys.argv[1] if len(sys.argv) > 1 else f"cdna_kernels/{NAME}.s"
open(path, "w").write(out)
```

```python
import sys, os, struct
NAME = "concat_heads__linear_attn_block__sliding_local_dilated__prompt"
PQ_A = 0
O_B = 0x1C0000
ACC = 0x380000
GO = 0x390000
KVC = 0x398000
WS_END = 0x3A0000
STAMP = os.environ.get("STAMP") == "1"
if STAMP: WS_END = 0x800000
LOG2E = 0x3FB8AA3B
EPS = 0x358637BD
SCALE = 0x3E41848F
assert abs(struct.unpack('<f', struct.pack('<I', SCALE))[0] - 28 ** -0.5) < 1e-7
for s in range(1600): assert (s * 2979) >> 16 == s // 22
for s in range(448): assert (s * 4682) >> 16 == s // 14
for s in range(56): assert (s * 37) >> 8 == s // 7

RS = 352
REG = 64 * RS
DUMMY = 7 * REG
SCR = 100352
LDS_TOTAL = 163840
DEPTH = int(os.environ.get("DEPTH", "3"))
CNT_KV = 32 * 4
CNT_Z = 40 * 4
TILE_A = SCR + 32768

L = []
def e(s): L.append("    " + s)
def lab(s): L.append(s + ":")
def c(s): L.append("    ; " + s)
_uid = [0]
def uid(p):
    _uid[0] += 1
    return f"{p}_{_uid[0]}"

class VM:
    def __init__(self): self.ops = []
    def issue(self, tag): self.ops.append(tag)
    def wait(self, tag):
        idx = max(i for i, t in enumerate(self.ops) if t == tag)
        n = len(self.ops) - 1 - idx
        assert n < 64
        e(f"s_waitcnt vmcnt({n})")
    def wait_all(self):
        e("s_waitcnt vmcnt(0)")

def stamp(vm, i):
    if not STAMP: return
    e("s_memrealtime s[72:73]" if os.environ.get("RT") else "s_memtime s[72:73]")
    e("s_waitcnt lgkmcnt(0)")
    e("v_mov_b32 v28, s72")
    e("s_lshl_b32 s74, s2, 7")
    e(f"s_add_u32 s74, s74, {0x700000 + i*4}")
    e("v_mov_b32 v29, 0")
    e("v_cmp_eq_u32 vcc, 0, v0")
    e("s_and_saveexec_b64 s[76:77], vcc")
    e("buffer_store_dword v28, v29, s[40:43], s74 offen")
    e("s_mov_b64 exec, s[76:77]")
    vm.issue("stamp")

def unpack(dlo, dhi, src):
    e(f"v_lshlrev_b32 v{dlo}, 16, v{src}")
    e(f"v_and_b32 v{dhi}, 0xffff0000, v{src}")

def phi_pair(dst, a, b, t):
    e(f"v_cvt_pk_bf16_f32 v{t}, v{a}, v{b}")
    unpack(t+1, t+2, t)
    e(f"v_min_f32 v{t+3}, 0, v{t+1}")
    e(f"v_min_f32 v{t+4}, 0, v{t+2}")
    e(f"v_mul_f32 v{t+3}, 0x{LOG2E:x}, v{t+3}")
    e(f"v_mul_f32 v{t+4}, 0x{LOG2E:x}, v{t+4}")
    e(f"v_exp_f32 v{t+3}, v{t+3}")
    e(f"v_exp_f32 v{t+4}, v{t+4}")
    e(f"v_max_f32 v{t+1}, 0, v{t+1}")
    e(f"v_max_f32 v{t+2}, 0, v{t+2}")
    e(f"v_add_f32 v{t+3}, v{t+3}, v{t+1}")
    e(f"v_add_f32 v{t+4}, v{t+4}, v{t+2}")
    e(f"v_cvt_pk_bf16_f32 v{t}, v{t+3}, v{t+4}")
    unpack(t+1, t+2, t)
    e(f"v_add_f32 v{t+1}, 0x{EPS:x}, v{t+1}")
    e(f"v_add_f32 v{t+2}, 0x{EPS:x}, v{t+2}")
    e(f"v_cvt_pk_bf16_f32 v{dst}, v{t+1}, v{t+2}")

def srd(base, lo, hi, nbytes):
    e(f"s_mov_b32 s{base}, s{lo}")
    e(f"s_and_b32 s{base+1}, s{hi}, 0xffff")
    e(f"s_mov_b32 s{base+2}, 0x{nbytes:x}")
    e(f"s_mov_b32 s{base+3}, 0x20000")

XF = 32
BF = 200
T = 232

def prologue():
    e("s_cmp_ge_u32 s2, 256")
    e("s_cbranch_scc1 K_END")
    e("s_load_dwordx4 s[4:7], s[0:1], 0")
    e("s_load_dwordx4 s[8:11], s[0:1], 16")
    e("s_load_dwordx4 s[12:15], s[0:1], 32")
    e("s_load_dwordx4 s[16:19], s[0:1], 48")
    e("s_load_dwordx2 s[20:21], s[0:1], 64")
    e("s_and_b32 s22, s2, 7")
    e("s_lshr_b32 s23, s2, 3")
    e("s_lshr_b32 s24, s22, 2")
    e("s_and_b32 s27, s22, 3")
    e("s_lshr_b32 s25, s27, 1")
    e("s_lshl_b32 s25, s25, 3")
    e("s_and_b32 s3, s23, 7")
    e("s_add_u32 s25, s25, s3")
    e("s_and_b32 s26, s27, 1")
    e("s_lshl_b32 s26, s26, 2")
    e("s_lshr_b32 s3, s23, 3")
    e("s_add_u32 s26, s26, s3")
    e("v_lshrrev_b32 v1, 6, v0")
    e("v_and_b32 v2, 63, v0")
    e("v_readfirstlane_b32 s48, v1")
    for j in range(6):
        e(f"v_add_u32 v3, {4*j}, v1")
        e(f"v_lshl_add_u32 v3, v3, 6, v2")
        e(f"v_mul_u32_u24 v4, 2979, v3")
        e(f"v_lshrrev_b32 v4, 16, v4")
        e(f"v_mul_u32_u24 v5, 22, v4")
        e(f"v_sub_u32 v3, v3, v5")
        e(f"v_min_u32 v3, 20, v3")
        e(f"v_mul_u32_u24 v5, 37, v3")
        e(f"v_lshrrev_b32 v5, 8, v5")
        e(f"v_mul_u32_u24 v6, 7, v5")
        e(f"v_sub_u32 v3, v3, v6")
        e(f"v_mul_u32_u24 v4, 2688, v4")
        e(f"v_mul_u32_u24 v5, 896, v5")
        e(f"v_lshlrev_b32 v3, 4, v3")
        e(f"v_add3_u32 v{8+j}, v3, v4, v5")
        if j < 5:
            e(f"s_add_u32 s{50+j}, s48, {4*j}")
            e(f"s_lshl_b32 s{50+j}, s{50+j}, 10")
    e("s_lshl_b32 s55, s48, 10")
    e(f"s_add_u32 s3, s55, {20*1024}")
    e(f"s_add_u32 s55, s55, {DUMMY - 2048}")
    e("s_cmp_lt_u32 s48, 2")
    e("s_cselect_b32 s55, s3, s55")
    e("s_cselect_b32 s57, 1, 0")
    e("v_lshrrev_b32 v3, 4, v2")
    e("v_bfe_u32 v4, v2, 2, 2")
    e("v_lshl_add_u32 v4, v3, 3, v4")
    e(f"v_mul_u32_u24 v4, {RS}, v4")
    e("v_and_b32 v5, 3, v2")
    e("v_lshl_add_u32 v14, v5, 3, v4")
    e("v_and_b32 v4, 15, v2")
    e("s_lshl_b32 s3, s25, 7")
    e("v_lshl_add_u32 v5, v1, 5, v4")
    e("v_add_u32 v5, s3, v5")
    e("v_mul_u32_u24 v5, 896, v5")
    e("v_lshl_add_u32 v15, v3, 4, v5")
    e("v_add_u32 v16, 14336, v15")
    e("v_add_u32 v5, s3, v4")
    e("v_subrev_u32 v5, 16, v5")
    e("s_movk_i32 s49, 896")
    e("v_mul_lo_u32 v5, v5, s49")
    e("v_lshl_add_u32 v17, v3, 4, v5")
    e("s_mul_i32 s56, s26, 112")
    e("s_lshl_b32 s60, s24, 4")
    e("s_add_u32 s60, s60, s25")
    e("s_lshl_b32 s60, s60, 3")
    e("s_add_u32 s60, s60, s26")
    e("s_lshl_b32 s60, s60, 7")
    e(f"s_add_u32 s60, s60, 0x{GO:x}")
    e("s_and_b32 s81, s23, 7")
    e("s_lshr_b32 s3, s23, 3")
    e("s_lshl_b32 s3, s3, 1")
    e("s_add_u32 s81, s81, s3")
    e("s_cmp_ge_u32 s81, 7")
    e("s_cselect_b32 s3, 7, 0")
    e("s_sub_u32 s81, s81, s3")
    e("s_cmp_ge_u32 s81, 7")
    e("s_cselect_b32 s3, 7, 0")
    e("s_sub_u32 s81, s81, s3")
    e("s_waitcnt lgkmcnt(0)")
    srd(40, 20, 21, WS_END)
    srd(44, 18, 19, 256)
    srd(88, 16, 17, 2048*1792)
    e("s_cmp_eq_u32 s24, 0")
    e("s_cbranch_scc0 K_SELB")
    srd(28, 4, 5, 2048*896)
    srd(32, 6, 7, 448*2688)
    srd(36, 8, 9, 448*896)
    e("s_branch K_A")
    lab("K_SELB")
    srd(28, 10, 11, 2048*896)
    srd(32, 12, 13, 448*2688)
    srd(36, 14, 15, 448*896)
    e("s_branch K_B")

def issue_step(vm, isB, i):
    q = []
    def hdr():
        e("s_mul_i32 s83, s81, 172032")
        e("s_add_u32 s83, s83, s56")
        e("s_lshl_b32 s85, s81, 7")
        e("s_add_u32 s81, s81, 1")
        e("s_cmp_eq_u32 s81, 7")
        e("s_cselect_b32 s81, 0, s81")
    def dma(j, first):
        def f():
            if first: hdr()
            if j < 5:
                e(f"s_add_u32 m0, s{50+j}, {i*REG}")
            else:
                e(f"s_mul_i32 s3, s57, {i*REG}")
                e(f"s_add_u32 m0, s55, s3")
            e("s_nop 0")
            e(f"buffer_load_dwordx4 v{8+j}, s[32:35], s83 offen lds")
            vm.issue(f"c{i}")
        return f
    def xl(kk, rt):
        def f():
            ks = 2*i + kk
            e(f"buffer_load_dwordx4 v[{XF+(ks*3+rt)*4}:{XF+(ks*3+rt)*4+3}], v{15+rt}, s[28:31], s85 offen offset:{kk*64}")
            vm.issue(f"c{i}")
        return f
    for j in range(6): q.append(dma(j, j == 0))
    for kk in range(2):
        for rt in range(3):
            if rt == 2 and not isB: continue
            q.append(xl(kk, rt))
    return q

def wo_voffs():
    e("s_lshr_b32 s3, s26, 1")
    e("s_mul_i32 s3, s3, 224")
    for t in range(7):
        e(f"v_add_u32 v3, {t*64}, v2")
        e("v_mul_u32_u24 v4, 4682, v3")
        e("v_lshrrev_b32 v4, 16, v4")
        e("v_mul_u32_u24 v5, 14, v4")
        e("v_sub_u32 v3, v3, v5")
        e("v_mul_u32_u24 v4, 896, v4")
        e("v_lshl_add_u32 v3, v3, 4, v4")
        e(f"v_add_u32 v{20+t}, s3, v3")

def wo_dma(vm):
    q = []
    def one(m, t):
        def f():
            if t == 0:
                if m < 3:
                    e(f"s_add_u32 s86, s48, {4*m}")
                else:
                    e("s_and_b32 s86, s48, 1")
                    e("s_add_u32 s86, s86, 12")
                e("s_mul_i32 s84, s86, 7168")
                e("s_mul_i32 s86, s86, 28672")
            e(f"s_add_u32 m0, s84, {t*1024}")
            e("s_nop 0")
            e(f"buffer_load_dwordx4 v{20+t}, s[36:39], s86 offen lds")
            vm.issue("wo")
        return f
    for m in range(4):
        for t in range(7):
            q.append(one(m, t))
    return q

def gemm(vm, isB):
    for r in range(4):
        e(f"v_mov_b32 v{4+r}, 0")
    e("v_mov_b32 v3, 0")
    e("v_cmp_eq_u32 vcc, 0, v0")
    e("s_and_saveexec_b64 s[62:63], vcc")
    e("buffer_store_dwordx4 v[4:7], v3, s[40:43], s60 offen sc0 sc1")
    if not isB:
        zs = uid("ZS")
        e("s_cmp_eq_u32 s25, 0")
        e(f"s_cbranch_scc0 {zs}")
        e("s_lshl_b32 s3, s26, 7")
        e(f"s_add_u32 s3, s3, 0x{KVC:x}")
        e("buffer_store_dword v4, v3, s[40:43], s3 offen sc0 sc1")
        e("s_mov_b64 exec, s[62:63]")
        e("s_lshl_b32 s3, s26, 13")
        e(f"s_add_u32 s3, s3, 0x{ACC:x}")
        e("v_lshlrev_b32 v3, 5, v0")
        e("buffer_store_dwordx4 v[4:7], v3, s[40:43], s3 offen sc0 sc1")
        e("buffer_store_dwordx4 v[4:7], v3, s[40:43], s3 offen offset:16 sc0 sc1")
        lab(zs)
    e("s_mov_b64 exec, s[62:63]")
    for i in range(DEPTH):
        for f in issue_step(vm, isB, i): f()
    for i in range(104):
        e(f"v_accvgpr_write_b32 a{i}, 0")
    wo_voffs()
    for ch in range(7):
        vm.wait(f"c{ch}")
        e("s_barrier")
        stamp(vm, 12 + ch)
        if ch == 0 and not isB:
            zs = uid("ZF")
            e("s_cmp_eq_u32 s25, 0")
            e(f"s_cbranch_scc0 {zs}")
            e("v_cmp_eq_u32 vcc, 0, v0")
            e("s_and_saveexec_b64 s[62:63], vcc")
            e("s_lshl_b32 s3, s26, 2")
            e(f"v_mov_b32 v3, {CNT_Z}")
            e("v_mov_b32 v4, 1")
            e("buffer_store_dword v4, v3, s[44:47], s3 offen sc0 sc1")
            e("s_mov_b64 exec, s[62:63]")
            lab(zs)
        pend = []
        if ch + DEPTH < 7:
            pend = issue_step(vm, isB, ch + DEPTH)
        if ch == 5:
            woq = wo_dma(vm)
            pend = woq[:14]
        if ch == 6:
            pend = woq[14:]
        nslots = 24
        per_slot = -(-len(pend) // nslots)
        if ch == 5 and not isB:
            e(f"v_mov_b32 v3, {CNT_Z}")
            e("s_lshl_b32 s3, s26, 2")
            e("buffer_load_dword v19, v3, s[44:47], s3 offen sc0 sc1")
            vm.issue("zchk")
        e(f"v_add_u32 v18, {ch*REG}, v14")
        for kk in range(2):
            ks = 2*ch + kk
            def rd(grp, buf):
                for t in range(4):
                    for hf in range(2):
                        off = (32*kk + 4*hf)*RS + grp*112 + (t >> 1)*56 + (t & 1)*32
                        r = BF + buf*16 + t*4 + hf*2
                        e(f"ds_read_b64_tr_b16 v[{r}:{r+1}], v18 offset:{off}")
            rd(0, 0)
            for grp in range(3):
                if grp < 2:
                    rd(grp+1, (grp+1) & 1)
                    e("s_waitcnt lgkmcnt(8)")
                else:
                    e("s_waitcnt lgkmcnt(0)")
                tr = (grp == 0) or (isB and grp == 1)
                for t in range(4):
                    ct = grp*4 + t
                    b = BF + (grp & 1)*16 + t*4
                    for rt in range(3):
                        if rt == 2 and (not isB or grp == 0): continue
                        x = XF + (ks*3+rt)*4
                        a = (rt*12 + ct)*4 if rt < 2 else 96 + (grp-1)*4
                        sk = None
                        if rt == 2:
                            sk = uid("HS")
                            e(f"s_cmp_eq_u32 s48, {t}")
                            e(f"s_cbranch_scc0 {sk}")
                        if tr:
                            e(f"v_mfma_f32_16x16x32_bf16 a[{a}:{a+3}], v[{b}:{b+3}], v[{x}:{x+3}], a[{a}:{a+3}]")
                        else:
                            e(f"v_mfma_f32_16x16x32_bf16 a[{a}:{a+3}], v[{x}:{x+3}], v[{b}:{b+3}], a[{a}:{a+3}]")
                        if sk: lab(sk)
                    for _ in range(per_slot):
                        if pend: pend.pop(0)()
        assert not pend

def poll(isB):
    lp = uid("POLL_LOOP"); dn = uid("POLL_DONE")
    e("s_cmp_eq_u32 s48, 0")
    e(f"s_cbranch_scc0 {dn}")
    e("s_mov_b32 s78, 0")
    e("v_mov_b32 v30, 0")
    lab(lp)
    e(f"buffer_load_dwordx3 v[{T}:{T+2}], v30, s[40:43], s60 offen sc0 sc1")
    e("s_waitcnt vmcnt(0)")
    e(f"v_readfirstlane_b32 s79, v{T+2}")
    if not isB:
        e(f"v_readfirstlane_b32 s3, v{T}")
        e(f"v_readfirstlane_b32 s27, v{T+1}")
        e("s_nop 3")
        e("s_and_b32 s3, s3, s27")
        e("s_cmp_eq_u32 s3, 0x01010101")
        e("s_cselect_b32 s79, s79, 0")
    else:
        e("s_nop 3")
    e("s_cmp_eq_u32 s79, 1")
    e(f"s_cbranch_scc1 {dn}")
    e("s_add_u32 s78, s78, 1")
    e("s_cmp_gt_u32 s78, 0x40000")
    e(f"s_cbranch_scc1 {dn}")
    e(f"s_branch {lp}")
    lab(dn)
    e("s_barrier")

def arrive_kv(wave):
    dn = uid("AKV")
    e(f"s_cmp_eq_u32 s48, {wave}")
    e(f"s_cbranch_scc0 {dn}")
    e("v_cmp_eq_u32 vcc, 0, v2")
    e("s_and_saveexec_b64 s[62:63], vcc")
    e("v_mov_b32 v3, 0")
    e("v_mov_b32 v4, 1")
    e("s_lshl_b32 s3, s26, 7")
    e(f"s_add_u32 s3, s3, 0x{KVC:x}")
    e("buffer_atomic_add v4, v3, s[40:43], s3 offen sc0 sc1")
    e("s_mov_b64 exec, s[62:63]")
    e("s_waitcnt vmcnt(0)")
    e("v_readfirstlane_b32 s79, v4")
    e("s_nop 3")
    e("s_cmp_eq_u32 s79, 15")
    e(f"s_cbranch_scc0 {dn}")
    e("v_lshlrev_b32 v3, 7, v2")
    e("v_add_u32 v3, s26, v3")
    e("v_mov_b32 v4, 1")
    e(f"s_mov_b32 s3, 0x{GO:x}")
    e("buffer_store_byte v4, v3, s[40:43], s3 offen sc0 sc1")
    e(f"s_mov_b32 s3, 0x{GO+8192:x}")
    e("buffer_store_byte v4, v3, s[40:43], s3 offen sc0 sc1")
    lab(dn)

def arrive_tile(wave):
    dn = uid("ATL")
    e(f"s_cmp_eq_u32 s48, {wave}")
    e(f"s_cbranch_scc0 {dn}")
    e("v_cmp_eq_u32 vcc, 0, v2")
    e("s_and_saveexec_b64 s[62:63], vcc")
    e("v_mov_b32 v3, 0")
    e("v_mov_b32 v4, 1")
    e("s_lshl_b32 s3, s24, 4")
    e("s_add_u32 s3, s3, s25")
    e("s_lshl_b32 s27, s3, 10")
    e("s_lshl_b32 s3, s3, 2")
    e("buffer_atomic_add v4, v3, s[44:47], s3 offen sc0 sc1")
    e("s_mov_b64 exec, s[62:63]")
    e("s_waitcnt vmcnt(0)")
    e("v_readfirstlane_b32 s79, v4")
    e("s_nop 3")
    e("s_cmp_eq_u32 s79, 7")
    e(f"s_cbranch_scc0 {dn}")
    e("v_lshlrev_b32 v3, 7, v2")
    e("v_mov_b32 v4, 1")
    e(f"s_add_u32 s3, s27, 0x{GO+8:x}")
    e("v_cmp_gt_u32 vcc, 8, v2")
    e("s_and_saveexec_b64 s[62:63], vcc")
    e("buffer_store_dword v4, v3, s[40:43], s3 offen sc0 sc1")
    e("s_mov_b64 exec, s[62:63]")
    lab(dn)

def tile_flush(vm, lds_base, gbase):
    e("s_waitcnt lgkmcnt(0)")
    e("s_barrier")
    e("v_lshlrev_b32 v3, 4, v0")
    e(f"v_add_u32 v4, {lds_base}, v3")
    for it in range(4):
        e(f"ds_read_b128 v[{T+it*4}:{T+it*4+3}], v4 offset:{it*4096}")
    e("s_lshl_b32 s3, s25, 3")
    e("s_add_u32 s3, s3, s26")
    e("s_mul_i32 s3, s3, 14336")
    e(f"s_add_u32 s3, s3, 0x{gbase:x}")
    e("v_add_u32 v4, 8192, v3")
    e("v_cmp_gt_u32 vcc, 128, v0")
    for it in range(4):
        e(f"s_waitcnt lgkmcnt({3-it})")
        if it == 3:
            e("s_and_saveexec_b64 s[62:63], vcc")
        e(f"buffer_store_dwordx4 v[{T+it*4}:{T+it*4+3}], v{3 if it < 2 else 4}, s[40:43], s3 offen offset:{(it&1)*4096 - (0)} sc0 sc1") if (it&1)==0 else (
            e(f"v_add_u32 v5, 4096, v{3 if it < 2 else 4}"),
            e(f"buffer_store_dwordx4 v[{T+it*4}:{T+it*4+3}], v5, s[40:43], s3 offen sc0 sc1"))
        vm.issue("tile")
        if it == 3:
            e("s_mov_b64 exec, s[62:63]")

def acc_read4(dst, a):
    for r in range(4):
        e(f"v_accvgpr_read_b32 v{dst+r}, a{a+r}")

def epi_A(vm):
    c("---- A epilogue: KV partial first ----")
    e("s_nop 7")
    e("s_nop 7")
    e("v_and_b32 v5, 15, v2")
    e("v_lshrrev_b32 v6, 4, v2")
    e("v_cmp_le_u32 s[64:65], 12, v5")
    PK = 32; VV = 48; KP = 64
    for t in range(4):
        for rt in range(2):
            acc_read4(T+8, (rt*12 + 4 + t)*4)
            phi_pair(PK + t*4 + rt*2, T+8, T+9, T)
            phi_pair(PK + t*4 + rt*2 + 1, T+10, T+11, T)
    e("v_mov_b32 v7, 0x3f803f80")
    for t in range(4):
        for rt in range(2):
            acc_read4(T+8, (rt*12 + 8 + t)*4)
            d = VV + t*4 + rt*2
            e(f"v_cvt_pk_bf16_f32 v{d}, v{T+8}, v{T+9}")
            e(f"v_cvt_pk_bf16_f32 v{d+1}, v{T+10}, v{T+11}")
            if t & 1:
                e(f"v_cndmask_b32 v{d}, v{d}, v7, s[64:65]")
                e(f"v_cndmask_b32 v{d+1}, v{d+1}, v7, s[64:65]")
    e("s_nop 1")
    for hh in range(2):
        for et in range(2):
            for dt in range(2):
                d = KP + (hh*4 + et*2 + dt)*4
                va = VV + (hh*2+et)*4; pk = PK + (hh*2+dt)*4
                e(f"v_mfma_f32_16x16x32_bf16 v[{d}:{d+3}], v[{va}:{va+3}], v[{pk}:{pk+3}], 0")
    e("s_lshl_b32 s3, s48, 13")
    e(f"s_add_u32 s3, s3, {SCR}")
    e("v_lshlrev_b32 v3, 4, v2")
    e("v_add_u32 v4, s3, v3")
    e("s_nop 7")
    e("s_nop 3")
    for i in range(8):
        e(f"ds_write_b128 v4, v[{KP+i*4}:{KP+i*4+3}] offset:{i*1024}")
    e("s_waitcnt lgkmcnt(0)")
    e("s_barrier")
    e("s_lshl_b32 s3, s48, 11")
    e(f"s_add_u32 s3, s3, {SCR}")
    e("v_add_u32 v4, s3, v3")
    for dt in range(2):
        for w in range(4):
            r = 96 + (dt*4 + w)*4
            e(f"ds_read_b128 v[{r}:{r+3}], v4 offset:{w*8192 + dt*1024}")
    e("s_lshr_b32 s3, s48, 1")
    e("s_lshl_b32 s27, s26, 1")
    e("s_add_u32 s3, s3, s27")
    e("s_lshl_b32 s3, s3, 12")
    e("s_and_b32 s27, s48, 1")
    e("s_lshl_b32 s58, s27, 11")
    e("s_add_u32 s3, s3, s58")
    e(f"s_add_u32 s59, s3, 0x{ACC:x}")
    e("v_lshlrev_b32 v8, 9, v6")
    e("v_lshl_add_u32 v8, v5, 2, v8")
    e("v_cmp_gt_u32 s[66:67], 3, v6")
    e("s_cmp_eq_u32 s27, 1")
    e("s_cselect_b64 s[66:67], s[66:67], -1")
    e("v_cmp_gt_u32 s[68:69], 12, v5")
    e("s_waitcnt lgkmcnt(0)")
    for dt in range(2):
        b = 96 + dt*16
        for r in range(4):
            e(f"v_add_f32 v{b+r}, v{b+r}, v{b+4+r}")
            e(f"v_add_f32 v{b+8+r}, v{b+8+r}, v{b+12+r}")
        for r in range(4):
            e(f"v_add_f32 v{b+r}, v{b+r}, v{b+8+r}")
    vm.wait("zchk")
    zl = uid("ZL"); zd = uid("ZD")
    e("s_mov_b32 s78, 0")
    lab(zl)
    e("v_readfirstlane_b32 s79, v19")
    e("s_nop 3")
    e("s_cmp_eq_u32 s79, 1")
    e(f"s_cbranch_scc1 {zd}")
    e("s_add_u32 s78, s78, 1")
    e("s_cmp_gt_u32 s78, 0x40000")
    e(f"s_cbranch_scc1 {zd}")
    e("s_sleep 1")
    e(f"v_mov_b32 v3, {CNT_Z}")
    e("s_lshl_b32 s3, s26, 2")
    e("buffer_load_dword v19, v3, s[44:47], s3 offen sc0 sc1")
    e("s_waitcnt vmcnt(0)")
    e(f"s_branch {zl}")
    lab(zd)
    e("s_mov_b64 s[62:63], exec")
    for dt in range(2):
        for r in range(4):
            m = None
            if dt == 1 and r > 0:
                e("s_and_b64 exec, s[66:67], s[68:69]")
            elif dt == 1:
                e("s_mov_b64 exec, s[68:69]")
            elif r > 0:
                e("s_mov_b64 exec, s[66:67]")
            e(f"buffer_atomic_add_f32 v{96+dt*16+r}, v8, s[40:43], s59 offen offset:{r*128 + dt*64} sc0 sc1")
            vm.issue("kvat")
    e("s_mov_b64 exec, s[62:63]")
    stamp(vm, 4)
    c("---- phi(q) tile -> LDS -> global ----")
    e("v_lshl_add_u32 v4, v1, 5, v5")
    e("v_mul_u32_u24 v4, 112, v4")
    e("v_lshl_add_u32 v4, v6, 3, v4")
    e(f"v_add_u32 v4, {TILE_A}, v4")
    e("v_cmp_gt_u32 s[64:65], 3, v6")
    for rt in range(2):
        for t in range(4):
            acc_read4(T+8, (rt*12 + t)*4)
            phi_pair(T+12, T+8, T+9, T)
            phi_pair(T+13, T+10, T+11, T)
            if t & 1:
                e("s_and_saveexec_b64 s[62:63], s[64:65]")
            e(f"ds_write_b64 v4, v[{T+12}:{T+13}] offset:{rt*1792 + (t>>1)*56 + (t&1)*32}")
            if t & 1:
                e("s_mov_b64 exec, s[62:63]")
    tile_flush(vm, TILE_A, PQ_A)
    e("s_waitcnt vmcnt(0)")
    e("s_barrier")
    arrive_kv(0)
    arrive_tile(1)
    stamp(vm, 5)

def epi_B(vm):
    c("---- B epilogue: MFMA banded attention ----")
    QF = 32; KF = 48; VF = 72
    e("s_nop 7")
    e("s_nop 7")
    e("v_and_b32 v5, 15, v2")
    e("v_lshrrev_b32 v6, 4, v2")
    e("v_cmp_gt_u32 s[64:65], 3, v6")
    e("v_lshlrev_b32 v3, 4, v2")
    e("v_lshlrev_b32 v7, 3, v2")
    acc_read4(T, 96)
    acc_read4(T+4, 100)
    e(f"v_cvt_pk_bf16_f32 v{T+8}, v{T}, v{T+1}")
    e(f"v_cvt_pk_bf16_f32 v{T+9}, v{T+2}, v{T+3}")
    e(f"v_cvt_pk_bf16_f32 v{T+10}, v{T+4}, v{T+5}")
    e(f"v_cvt_pk_bf16_f32 v{T+11}, v{T+6}, v{T+7}")
    e("s_lshr_b32 s3, s48, 1")
    e("s_lshl_b32 s3, s3, 10")
    e("s_and_b32 s27, s48, 1")
    e("s_lshl_b32 s27, s27, 3")
    e("s_add_u32 s3, s3, s27")
    e(f"s_add_u32 s3, s3, {SCR}")
    e("v_add_u32 v4, s3, v3")
    e(f"ds_write_b64 v4, v[{T+8}:{T+9}]")
    e("s_lshl_b32 s3, s48, 9")
    e(f"s_add_u32 s3, s3, {SCR + 2048}")
    e("v_add_u32 v4, s3, v7")
    e(f"ds_write_b64 v4, v[{T+10}:{T+11}]")
    for hh in range(2):
        for dt in range(2):
            acc_read4(T, (12 + 4 + hh*2 + dt)*4)
            d = KF + (2*2+hh)*4 + dt*2
            e(f"v_cvt_pk_bf16_f32 v{d}, v{T}, v{T+1}")
            e(f"v_cvt_pk_bf16_f32 v{d+1}, v{T+2}, v{T+3}")
        for et in range(2):
            acc_read4(T, (12 + 8 + hh*2 + et)*4)
            d = VF + (hh*2+et)*6 + 4
            e(f"v_cvt_pk_bf16_f32 v{d}, v{T}, v{T+1}")
            e(f"v_cvt_pk_bf16_f32 v{d+1}, v{T+2}, v{T+3}")
    e("s_lshl_b32 s3, s48, 12")
    e(f"s_add_u32 s3, s3, {SCR + 4096}")
    e("v_add_u32 v4, s3, v3")
    e("v_add_u32 v8, s3, v7")
    for hh in range(2):
        d = KF + (2*2+hh)*4
        e(f"ds_write_b128 v4, v[{d}:{d+3}] offset:{hh*1024}")
        for et in range(2):
            d = VF + (hh*2+et)*6 + 4
            e(f"ds_write_b64 v8, v[{d}:{d+1}] offset:{2048 + (hh*2+et)*512}")
    for rt in range(2):
        for hh in range(2):
            for dt in range(2):
                acc_read4(T, (rt*12 + hh*2 + dt)*4)
                d = QF + (rt*2+hh)*4 + dt*2
                e(f"v_cvt_pk_bf16_f32 v{d}, v{T}, v{T+1}")
                e(f"v_cvt_pk_bf16_f32 v{d+1}, v{T+2}, v{T+3}")
                if dt == 1:
                    e(f"v_cndmask_b32 v{d}, 0, v{d}, s[64:65]")
                    e(f"v_cndmask_b32 v{d+1}, 0, v{d+1}, s[64:65]")
    for hh in range(2):
        for dt in range(2):
            acc_read4(T, (4 + hh*2 + dt)*4)
            d = KF + (1*2+hh)*4 + dt*2
            e(f"v_cvt_pk_bf16_f32 v{d}, v{T}, v{T+1}")
            e(f"v_cvt_pk_bf16_f32 v{d+1}, v{T+2}, v{T+3}")
        for et in range(2):
            acc_read4(T, (8 + hh*2 + et)*4)
            d = VF + (hh*2+et)*6 + 2
            e(f"v_cvt_pk_bf16_f32 v{d}, v{T}, v{T+1}")
            e(f"v_cvt_pk_bf16_f32 v{d+1}, v{T+2}, v{T+3}")
    e("s_waitcnt lgkmcnt(0)")
    e("s_barrier")
    e("s_lshl_b32 s3, s48, 12")
    e(f"s_add_u32 s3, s3, {SCR}")
    e("v_add_u32 v4, s3, v3")
    e("v_add_u32 v8, s3, v7")
    for hh in range(2):
        d = KF + hh*4
        e(f"ds_read_b128 v[{d}:{d+3}], v4 offset:{hh*1024}")
        for et in range(2):
            d = VF + (hh*2+et)*6
            e(f"ds_read_b64 v[{d}:{d+1}], v8 offset:{2048 + (hh*2+et)*512}")
    e("v_and_b32 v9, 1, v5")
    e("v_cmp_eq_u32 s[4:5], 1, v9")
    e("v_mov_b32 v10, 0xffff")
    e("v_mov_b32 v11, 0xffff0000")
    e("v_cndmask_b32 v10, v10, v11, s[4:5]")
    e("v_lshl_add_u32 v11, v6, 2, v9")
    e("v_sub_u32 v11, v11, v5")
    for k in range(4):
        addk = 2*k if k < 2 else 16 + 2*(k-2)
        e(f"v_add_u32 v12, {addk}, v11")
        e(f"v_cmp_le_i32 s[{6+2*k}:{7+2*k}], 2, v12")
        e(f"v_cmp_ge_i32 vcc, 16, v12")
        e(f"s_and_b64 s[{6+2*k}:{7+2*k}], s[{6+2*k}:{7+2*k}], vcc")
    e("s_or_b32 s3, s25, s48")
    e("s_cmp_eq_u32 s3, 0")
    e("s_cselect_b64 s[14:15], 0, -1")
    e("s_and_b64 s[16:17], s[6:7], s[14:15]")
    e("s_and_b64 s[18:19], s[8:9], s[14:15]")
    e("v_lshl_add_u32 v4, v1, 5, v5")
    e("v_mul_u32_u24 v4, 112, v4")
    e("v_lshl_add_u32 v4, v6, 3, v4")
    e(f"v_add_u32 v4, {SCR + 20480}, v4")
    e("s_waitcnt lgkmcnt(0)")
    S = 96
    for rt in range(2):
        for hh in range(2):
            sb = S + (rt*2+hh)*8
            q = QF + (rt*2+hh)*4
            for ti in range(2):
                k = KF + ((rt+ti)*2+hh)*4
                e(f"v_mfma_f32_16x16x32_bf16 v[{sb+ti*4}:{sb+ti*4+3}], v[{k}:{k+3}], v[{q}:{q+3}], 0")
    e("s_nop 7")
    e("s_nop 3")
    e("v_mov_b32 v20, 0xce6e6b28")
    P = 128
    W = 144
    for rt in range(2):
        for hh in range(2):
            cb = rt*2+hh
            sb = S + cb*8
            lg = W
            for k in range(4):
                e(f"v_cndmask_b32 v{lg+k}, v{sb+2*k}, v{sb+2*k+1}, s[4:5]")
            for k in (0, 2):
                e(f"v_cvt_pk_bf16_f32 v{W+4}, v{lg+k}, v{lg+k+1}")
                unpack(W+5, W+6, W+4)
                e(f"v_mul_f32 v{W+5}, 0x{SCALE:x}, v{W+5}")
                e(f"v_mul_f32 v{W+6}, 0x{SCALE:x}, v{W+6}")
                e(f"v_cvt_pk_bf16_f32 v{W+4}, v{W+5}, v{W+6}")
                unpack(lg+k, lg+k+1, W+4)
            for k in range(4):
                ms = (16 + 2*k) if (rt == 0 and k < 2) else (6 + 2*k)
                e(f"v_cndmask_b32 v{lg+k}, v20, v{lg+k}, s[{ms}:{ms+1}]")
            e(f"v_max3_f32 v{W+4}, v{lg}, v{lg+1}, v{lg+2}")
            e(f"v_max_f32 v{W+4}, v{W+4}, v{lg+3}")
            e(f"v_mov_b32 v{W+5}, v{W+4}")
            e("s_nop 1")
            e(f"v_permlane16_swap_b32 v{W+4}, v{W+5}")
            e("s_nop 1")
            e(f"v_max_f32 v{W+4}, v{W+4}, v{W+5}")
            e(f"v_mov_b32 v{W+5}, v{W+4}")
            e("s_nop 1")
            e(f"v_permlane32_swap_b32 v{W+4}, v{W+5}")
            e("s_nop 1")
            e(f"v_max_f32 v{W+4}, v{W+4}, v{W+5}")
            for k in range(4):
                e(f"v_sub_f32 v{lg+k}, v{lg+k}, v{W+4}")
                e(f"v_mul_f32 v{lg+k}, 0x{LOG2E:x}, v{lg+k}")
                e(f"v_exp_f32 v{lg+k}, v{lg+k}")
            e("s_nop 0")
            e(f"v_add_f32 v{W+4}, v{lg}, v{lg+1}")
            e(f"v_add_f32 v{W+5}, v{lg+2}, v{lg+3}")
            e(f"v_add_f32 v{W+4}, v{W+4}, v{W+5}")
            e(f"v_mov_b32 v{W+5}, v{W+4}")
            e("s_nop 1")
            e(f"v_permlane16_swap_b32 v{W+4}, v{W+5}")
            e("s_nop 1")
            e(f"v_add_f32 v{W+4}, v{W+4}, v{W+5}")
            e(f"v_mov_b32 v{W+5}, v{W+4}")
            e("s_nop 1")
            e(f"v_permlane32_swap_b32 v{W+4}, v{W+5}")
            e("s_nop 1")
            e(f"v_add_f32 v{W+4}, v{W+4}, v{W+5}")
            e(f"v_rcp_f32 v{W+4}, v{W+4}")
            e("s_nop 0")
            for k in range(4):
                e(f"v_mul_f32 v{lg+k}, v{lg+k}, v{W+4}")
                e(f"v_cvt_pk_bf16_f32 v{P+cb*4+k}, v{lg+k}, v{lg+k}")
                e(f"v_and_b32 v{P+cb*4+k}, v{P+cb*4+k}, v10")
    e("s_nop 1")
    O = 160
    for rt in range(2):
        for hh in range(2):
            cb = rt*2+hh
            for et in range(2):
                o = O + (cb*2+et)*4
                v = VF + (hh*2+et)*6 + 2*rt
                e(f"v_mfma_f32_16x16x32_bf16 v[{o}:{o+3}], v[{v}:{v+3}], v[{P+cb*4}:{P+cb*4+3}], 0")
    e("s_nop 7")
    e("s_nop 3")
    for rt in range(2):
        for hh in range(2):
            cb = rt*2+hh
            for et in range(2):
                o = O + (cb*2+et)*4
                e(f"v_cvt_pk_bf16_f32 v{o}, v{o}, v{o+1}")
                e(f"v_cvt_pk_bf16_f32 v{o+1}, v{o+2}, v{o+3}")
                if et == 1:
                    e("s_and_saveexec_b64 s[62:63], s[64:65]")
                e(f"ds_write_b64 v4, v[{o}:{o+1}] offset:{rt*1792 + hh*56 + et*32}")
                if et == 1:
                    e("s_mov_b64 exec, s[62:63]")
    tile_flush(vm, SCR + 20480, O_B)
    e("s_waitcnt vmcnt(0)")
    e("s_barrier")
    arrive_tile(0)
    stamp(vm, 5)

def p2_common():
    e("v_lshrrev_b32 v3, 4, v2")
    e("v_and_b32 v4, 15, v2")
    e("s_lshl_b32 s3, s25, 7")
    e("s_and_b32 s27, s26, 1")
    e("s_lshl_b32 s27, s27, 6")
    e("s_add_u32 s3, s3, s27")
    e("v_lshl_add_u32 v5, v1, 4, v4")
    e("v_add_u32 v5, s3, v5")
    e("v_lshl_add_u32 v6, v1, 4, v4")
    e("v_add_u32 v6, s27, v6")
    e("v_mul_u32_u24 v6, 112, v6")
    e("v_lshlrev_b32 v7, 4, v2")
    e("v_mul_u32_u24 v8, 1792, v5")
    e("v_lshl_add_u32 v8, v3, 3, v8")
    e("s_mul_i32 s3, s24, 896")
    e("s_lshr_b32 s27, s26, 1")
    e("s_mul_i32 s27, s27, 224")
    e("s_add_u32 s3, s3, s27")
    e("v_add_u32 v8, s3, v8")
    for i in range(28):
        e(f"v_accvgpr_write_b32 a{i}, 0")

def p2_out():
    e("s_nop 7")
    e("s_nop 7")
    for nt in range(7):
        acc_read4(12, nt*4)
        e("v_cvt_pk_bf16_f32 v16, v12, v13")
        e("v_cvt_pk_bf16_f32 v17, v14, v15")
        e(f"buffer_store_dwordx2 v[16:17], v8, s[88:91], 0 offen offset:{nt*32}")
        e("s_nop 1")

def p2_A(vm):
    c("---- P2 A ----")
    p2_common()
    e("v_bfe_u32 v9, v2, 2, 2")
    e("v_lshl_add_u32 v9, v3, 2, v9")
    e("v_mul_u32_u24 v9, 224, v9")
    e("v_and_b32 v10, 3, v2")
    e("v_lshl_add_u32 v9, v10, 3, v9")
    e("v_add_u32 v10, 3584, v9")
    e("v_cmp_gt_u32 s[64:65], 3, v3")
    e("s_nop 1")
    e("v_cndmask_b32 v10, v9, v10, s[64:65]")
    poll(False)
    stamp(vm, 6)
    PQ = 32
    e("v_lshl_add_u32 v11, v3, 4, v6")
    e("s_mul_i32 s3, s25, 114688")
    e(f"s_add_u32 s3, s3, 0x{PQ_A:x}")
    for h in range(16):
        e(f"buffer_load_dwordx4 v[{PQ+h*4}:{PQ+h*4+3}], v11, s[40:43], s3 offen offset:{(h&1)*56} sc0 sc1")
        if h & 1: e("s_add_u32 s3, s3, 14336")
    e("v_lshlrev_b32 v11, 7, v4")
    e("v_lshl_add_u32 v11, v3, 5, v11")
    e("s_lshl_b32 s3, s48, 14")
    e(f"s_add_u32 s3, s3, 0x{ACC:x}")
    R = 96
    for hq in range(4):
        for f in range(2):
            r = R + (hq*2+f)*8
            e(f"buffer_load_dwordx4 v[{r}:{r+3}], v11, s[40:43], s3 offen offset:{f*2048} sc0 sc1")
            e(f"buffer_load_dwordx4 v[{r+4}:{r+7}], v11, s[40:43], s3 offen offset:{f*2048+16} sc0 sc1")
        e("s_add_u32 s3, s3, 4096")
    e("s_lshl_b32 s3, s48, 13")
    e(f"s_add_u32 s3, s3, {SCR}")
    e("v_add_u32 v11, s3, v7")
    for hq in range(4):
        for f in range(2):
            r = R + (hq*2+f)*8
            e(f"s_waitcnt vmcnt({14 - 2*(hq*2+f)})")
            for q in range(4):
                e(f"v_cvt_pk_bf16_f32 v{r+q}, v{r+2*q}, v{r+2*q+1}")
            e(f"ds_write_b128 v11, v[{r}:{r+3}] offset:{(hq*2+f)*1024}")
    e("s_waitcnt lgkmcnt(0)")
    e("s_barrier")
    stamp(vm, 7)
    for h in range(16):
        e(f"v_cndmask_b32 v{PQ+h*4+2}, 0, v{PQ+h*4+2}, s[64:65]")
        e(f"v_cndmask_b32 v{PQ+h*4+3}, 0, v{PQ+h*4+3}, s[64:65]")
    e(f"v_add_u32 v11, {SCR}, v7")
    e("v_lshlrev_b32 v12, 8, v3")
    e(f"v_add_u32 v12, {SCR + 1024 + 192}, v12")
    KVR = 96; NR = 144; OF = 192
    for hg in range(4):
        for hq in range(4):
            h = hg*4 + hq
            r = KVR + hq*12
            e(f"ds_read_b128 v[{r}:{r+3}], v11 offset:{h*2048}")
            e(f"ds_read_b128 v[{r+4}:{r+7}], v11 offset:{h*2048+1024}")
            e(f"ds_read_b128 v[{r+8}:{r+11}], v12 offset:{h*2048}")
        for hq in range(4):
            h = hg*4 + hq
            r = KVR + hq*12; n = NR + hq*12
            e(f"s_waitcnt lgkmcnt({9 - 3*hq})")
            for f in range(3):
                e(f"v_mfma_f32_16x16x32_bf16 v[{n+f*4}:{n+f*4+3}], v[{r+f*4}:{r+f*4+3}], v[{PQ+h*4}:{PQ+h*4+3}], 0")
        e("s_nop 7")
        e("s_nop 3")
        for hq in range(4):
            h = hg*4 + hq
            n = NR + hq*12
            e(f"v_cvt_pk_bf16_f32 v24, v{n+8}, v{n+8}")
            e("v_lshlrev_b32 v24, 16, v24")
            e(f"v_add_f32 v24, 0x{EPS:x}, v24")
            e("v_cvt_pk_bf16_f32 v24, v24, v24")
            e("v_lshlrev_b32 v24, 16, v24")
            e("v_rcp_f32 v24, v24")
            e("s_nop 0")
            for q in range(4):
                e(f"v_cvt_pk_bf16_f32 v25, v{n+2*q}, v{n+2*q+1}")
                unpack(26, 27, 25)
                e("v_mul_f32 v26, v26, v24")
                e("v_mul_f32 v27, v27, v24")
                e(f"v_cvt_pk_bf16_f32 v{OF+h*4+q}, v26, v27")
            e(f"v_cndmask_b32 v{OF+h*4+2}, 0, v{OF+h*4+2}, s[64:65]")
            e(f"v_cndmask_b32 v{OF+h*4+3}, 0, v{OF+h*4+3}, s[64:65]")
    stamp(vm, 8)
    def rdh(h):
        bb = 32 + (h & 1)*28
        e(f"v_add_u32 v13, {h*28*224}, v9")
        e(f"v_add_u32 v14, {h*28*224}, v10")
        for nt in range(7):
            e(f"ds_read_b64_tr_b16 v[{bb+nt*4}:{bb+nt*4+1}], v13 offset:{nt*32}")
            e(f"ds_read_b64_tr_b16 v[{bb+nt*4+2}:{bb+nt*4+3}], v14 offset:{nt*32}")
    rdh(0)
    for h in range(16):
        if h < 15:
            rdh(h+1)
            e("s_waitcnt lgkmcnt(14)")
        else:
            e("s_waitcnt lgkmcnt(0)")
        bb = 32 + (h & 1)*28
        for nt in range(7):
            e(f"v_mfma_f32_16x16x32_bf16 a[{nt*4}:{nt*4+3}], v[{bb+nt*4}:{bb+nt*4+3}], v[{OF+h*4}:{OF+h*4+3}], a[{nt*4}:{nt*4+3}]")
    p2_out()
    stamp(vm, 9)

def p2_B(vm):
    c("---- P2 B ----")
    p2_common()
    e("v_bfe_u32 v9, v2, 2, 2")
    e("v_lshl_add_u32 v9, v3, 3, v9")
    e("v_mul_u32_u24 v9, 224, v9")
    e("v_and_b32 v10, 3, v2")
    e("v_lshl_add_u32 v9, v10, 3, v9")
    for ks in range(14):
        e(f"v_add_u32 v11, {4*ks}, v3")
        e("v_mul_u32_u24 v12, 37, v11")
        e("v_lshrrev_b32 v12, 8, v12")
        e("v_mul_u32_u24 v13, 7, v12")
        e("v_sub_u32 v11, v11, v13")
        e("v_mul_u32_u24 v12, 14336, v12")
        e("v_lshl_add_u32 v11, v11, 4, v12")
        e(f"v_add_u32 v{160+ks}, v11, v6")
    poll(True)
    stamp(vm, 6)
    OFR = 96
    e("s_mul_i32 s3, s25, 114688")
    e(f"s_add_u32 s3, s3, 0x{O_B:x}")
    for ks in range(14):
        e(f"buffer_load_dwordx4 v[{OFR+ks*4}:{OFR+ks*4+3}], v{160+ks}, s[40:43], s3 offen sc0 sc1")
    def rdk(ks):
        bb = 32 + (ks & 1)*28
        e(f"v_add_u32 v13, {ks*32*224}, v9")
        for nt in range(7):
            e(f"ds_read_b64_tr_b16 v[{bb+nt*4}:{bb+nt*4+1}], v13 offset:{nt*32}")
            e(f"ds_read_b64_tr_b16 v[{bb+nt*4+2}:{bb+nt*4+3}], v13 offset:{nt*32 + 4*224}")
    rdk(0)
    for ks in range(14):
        if ks < 13:
            rdk(ks+1)
            e("s_waitcnt lgkmcnt(14)")
        else:
            e("s_waitcnt lgkmcnt(0)")
        e(f"s_waitcnt vmcnt({13-ks})")
        bb = 32 + (ks & 1)*28
        for nt in range(7):
            e(f"v_mfma_f32_16x16x32_bf16 a[{nt*4}:{nt*4+3}], v[{bb+nt*4}:{bb+nt*4+3}], v[{OFR+ks*4}:{OFR+ks*4+3}], a[{nt*4}:{nt*4+3}]")
    p2_out()
    stamp(vm, 9)

def kernel():
    lab(f"{NAME}_kernel")
    prologue()
    lab("K_A")
    vm = VM()
    stamp(vm, 0)
    gemm(vm, False)
    stamp(vm, 3)
    epi_A(vm)
    p2_A(vm)
    e("s_branch K_END")
    lab("K_B")
    vm = VM()
    stamp(vm, 0)
    gemm(vm, True)
    stamp(vm, 3)
    epi_B(vm)
    p2_B(vm)
    lab("K_END")
    e("s_endpgm")

HDR = open("cdna_kernels/" + NAME + ".s.ref").read().split("; @launch")[0]
kernel()
out = HDR
out += f"; @launch grid=(256,1,1) block=(256,1,1) lds={LDS_TOTAL}\n"
out += '.amdgcn_target "amdgcn-amd-amdhsa--gfx950"\n.text\n'
out += f".globl {NAME}_kernel\n.p2align 8\n.type {NAME}_kernel,@function\n"
out += "\n".join(L) + "\n"
out += f""".section .rodata,"a"
.p2align 6
.amdhsa_kernel {NAME}_kernel
  .amdhsa_next_free_vgpr 384
  .amdhsa_next_free_sgpr 96
  .amdhsa_accum_offset 256
  .amdhsa_group_segment_fixed_size 0
  .amdhsa_kernarg_size 72
  .amdhsa_user_sgpr_count 2
  .amdhsa_user_sgpr_kernarg_segment_ptr 1
  .amdhsa_system_sgpr_workgroup_id_x 1
.end_amdhsa_kernel
"""
path = sys.argv[1] if len(sys.argv) > 1 else f"cdna_kernels/{NAME}.s"
open(path, "w").write(out)
```

```python
import sys, os, struct
NAME = "concat_heads__linear_attn_block__sliding_local_dilated__prompt"
PQ_A = 0
O_B = 0x1C0000
ACC = 0x380000
GO = 0x390000
KVC = 0x398000
WS_END = 0x3A0000
STAMP = os.environ.get("STAMP") == "1"
if STAMP: WS_END = 0x800000
LOG2E = 0x3FB8AA3B
EPS = 0x358637BD
SCALE = 0x3E41848F
assert abs(struct.unpack('<f', struct.pack('<I', SCALE))[0] - 28 ** -0.5) < 1e-7
for s in range(1600): assert (s * 2979) >> 16 == s // 22
for s in range(448): assert (s * 4682) >> 16 == s // 14
for s in range(56): assert (s * 37) >> 8 == s // 7

RS = 352
REG = 64 * RS
DUMMY = 7 * REG
SCR = 100352
LDS_TOTAL = 163840
DEPTH = int(os.environ.get("DEPTH", "3"))
CNT_KV = 32 * 4
SCT = "" if os.environ.get("PLAIN_T") else " sc0 sc1"
SCA = "" if os.environ.get("PLAIN_A") else " sc0 sc1"
CNT_Z = 40 * 4
TILE_A = SCR + 32768

L = []
def e(s): L.append("    " + s)
def lab(s): L.append(s + ":")
def c(s): L.append("    ; " + s)
_uid = [0]
def uid(p):
    _uid[0] += 1
    return f"{p}_{_uid[0]}"

class VM:
    def __init__(self): self.ops = []
    def issue(self, tag): self.ops.append(tag)
    def wait(self, tag):
        idx = max(i for i, t in enumerate(self.ops) if t == tag)
        n = len(self.ops) - 1 - idx
        assert n < 64
        e(f"s_waitcnt vmcnt({n})")
    def wait_all(self):
        e("s_waitcnt vmcnt(0)")

def stamp(vm, i):
    if not STAMP: return
    e("s_memrealtime s[72:73]" if os.environ.get("RT") else "s_memtime s[72:73]")
    e("s_waitcnt lgkmcnt(0)")
    e("v_mov_b32 v28, s72")
    e("s_lshl_b32 s74, s2, 7")
    e(f"s_add_u32 s74, s74, {0x700000 + i*4}")
    e("v_mov_b32 v29, 0")
    e("v_cmp_eq_u32 vcc, 0, v0")
    e("s_and_saveexec_b64 s[76:77], vcc")
    e("buffer_store_dword v28, v29, s[40:43], s74 offen")
    e("s_mov_b64 exec, s[76:77]")
    vm.issue("stamp")

def unpack(dlo, dhi, src):
    e(f"v_lshlrev_b32 v{dlo}, 16, v{src}")
    e(f"v_and_b32 v{dhi}, 0xffff0000, v{src}")

def phi_pair(dst, a, b, t):
    assert b == a + 1 and a % 2 == 0 and t % 2 == 0
    e(f"v_pk_mul_f32 v[{t}:{t+1}], v[{a}:{b}], s[70:71]")
    e(f"v_exp_f32 v{t}, v{t} clamp")
    e(f"v_exp_f32 v{t+1}, v{t+1} clamp")
    e(f"v_max_f32 v{a}, 0, v{a}")
    e(f"v_max_f32 v{b}, 0, v{b}")
    e(f"v_pk_add_f32 v[{t}:{t+1}], v[{t}:{t+1}], v[{a}:{b}]")
    e(f"v_cvt_pk_bf16_f32 v{dst}, v{t}, v{t+1}")

def srd(base, lo, hi, nbytes):
    e(f"s_mov_b32 s{base}, s{lo}")
    e(f"s_and_b32 s{base+1}, s{hi}, 0xffff")
    e(f"s_mov_b32 s{base+2}, 0x{nbytes:x}")
    e(f"s_mov_b32 s{base+3}, 0x20000")

XF = 32
BF = 200
T = 232

def prologue():
    e("s_cmp_ge_u32 s2, 256")
    e("s_cbranch_scc1 K_END")
    e("s_load_dwordx4 s[4:7], s[0:1], 0")
    e("s_load_dwordx4 s[8:11], s[0:1], 16")
    e("s_load_dwordx4 s[12:15], s[0:1], 32")
    e("s_load_dwordx4 s[16:19], s[0:1], 48")
    e("s_load_dwordx2 s[20:21], s[0:1], 64")
    e("s_and_b32 s22, s2, 7")
    e("s_lshr_b32 s23, s2, 3")
    e("s_lshr_b32 s24, s22, 2")
    e("s_and_b32 s27, s22, 3")
    e("s_lshr_b32 s25, s27, 1")
    e("s_lshl_b32 s25, s25, 3")
    e("s_and_b32 s3, s23, 7")
    e("s_add_u32 s25, s25, s3")
    e("s_and_b32 s26, s27, 1")
    e("s_lshl_b32 s26, s26, 2")
    e("s_lshr_b32 s3, s23, 3")
    e("s_add_u32 s26, s26, s3")
    e("v_lshrrev_b32 v1, 6, v0")
    e("v_and_b32 v2, 63, v0")
    e("v_readfirstlane_b32 s48, v1")
    for j in range(6):
        e(f"v_add_u32 v3, {4*j}, v1")
        e(f"v_lshl_add_u32 v3, v3, 6, v2")
        e(f"v_mul_u32_u24 v4, 2979, v3")
        e(f"v_lshrrev_b32 v4, 16, v4")
        e(f"v_mul_u32_u24 v5, 22, v4")
        e(f"v_sub_u32 v3, v3, v5")
        e(f"v_min_u32 v3, 20, v3")
        e(f"v_mul_u32_u24 v5, 37, v3")
        e(f"v_lshrrev_b32 v5, 8, v5")
        e(f"v_mul_u32_u24 v6, 7, v5")
        e(f"v_sub_u32 v3, v3, v6")
        e(f"v_mul_u32_u24 v4, 2688, v4")
        e(f"v_mul_u32_u24 v5, 896, v5")
        e(f"v_lshlrev_b32 v3, 4, v3")
        e(f"v_add3_u32 v{8+j}, v3, v4, v5")
        if j < 5:
            e(f"s_add_u32 s{50+j}, s48, {4*j}")
            e(f"s_lshl_b32 s{50+j}, s{50+j}, 10")
    e("s_lshl_b32 s55, s48, 10")
    e(f"s_add_u32 s3, s55, {20*1024}")
    e(f"s_add_u32 s55, s55, {DUMMY - 2048}")
    e("s_cmp_lt_u32 s48, 2")
    e("s_cselect_b32 s55, s3, s55")
    e("s_cselect_b32 s57, 1, 0")
    e("v_lshrrev_b32 v3, 4, v2")
    e("v_bfe_u32 v4, v2, 2, 2")
    e("v_lshl_add_u32 v4, v3, 3, v4")
    e(f"v_mul_u32_u24 v4, {RS}, v4")
    e("v_and_b32 v5, 3, v2")
    e("v_lshl_add_u32 v14, v5, 3, v4")
    e("v_and_b32 v4, 15, v2")
    e("s_lshl_b32 s3, s25, 7")
    e("v_lshl_add_u32 v5, v1, 5, v4")
    e("v_add_u32 v5, s3, v5")
    e("v_mul_u32_u24 v5, 896, v5")
    e("v_lshl_add_u32 v15, v3, 4, v5")
    e("v_add_u32 v16, 14336, v15")
    e("v_add_u32 v5, s3, v4")
    e("v_subrev_u32 v5, 16, v5")
    e("s_movk_i32 s49, 896")
    e("v_mul_lo_u32 v5, v5, s49")
    e("v_lshl_add_u32 v17, v3, 4, v5")
    e("s_mul_i32 s56, s26, 112")
    e(f"s_mov_b32 s70, 0x{LOG2E:x}")
    e(f"s_mov_b32 s71, 0x{LOG2E:x}")
    e("s_lshl_b32 s60, s24, 4")
    e("s_add_u32 s60, s60, s25")
    e("s_lshl_b32 s60, s60, 3")
    e("s_add_u32 s60, s60, s26")
    e("s_lshl_b32 s60, s60, 7")
    e(f"s_add_u32 s60, s60, 0x{GO:x}")
    e("s_and_b32 s81, s23, 7")
    e("s_lshr_b32 s3, s23, 3")
    e("s_lshl_b32 s3, s3, 1")
    e("s_add_u32 s81, s81, s3")
    e("s_cmp_ge_u32 s81, 7")
    e("s_cselect_b32 s3, 7, 0")
    e("s_sub_u32 s81, s81, s3")
    e("s_cmp_ge_u32 s81, 7")
    e("s_cselect_b32 s3, 7, 0")
    e("s_sub_u32 s81, s81, s3")
    e("s_waitcnt lgkmcnt(0)")
    srd(40, 20, 21, WS_END)
    srd(44, 18, 19, 256)
    srd(88, 16, 17, 2048*1792)
    e("s_cmp_eq_u32 s24, 0")
    e("s_cbranch_scc0 K_SELB")
    srd(28, 4, 5, 2048*896)
    srd(32, 6, 7, 448*2688)
    srd(36, 8, 9, 448*896)
    e("s_branch K_A")
    lab("K_SELB")
    srd(28, 10, 11, 2048*896)
    srd(32, 12, 13, 448*2688)
    srd(36, 14, 15, 448*896)
    e("s_branch K_B")

def issue_step(vm, isB, i):
    q = []
    def hdr():
        e("s_mul_i32 s83, s81, 172032")
        e("s_add_u32 s83, s83, s56")
        e("s_lshl_b32 s85, s81, 7")
        e("s_add_u32 s81, s81, 1")
        e("s_cmp_eq_u32 s81, 7")
        e("s_cselect_b32 s81, 0, s81")
    def dma(j, first):
        def f():
            if first: hdr()
            if j < 5:
                e(f"s_add_u32 m0, s{50+j}, {i*REG}")
            else:
                e(f"s_mul_i32 s3, s57, {i*REG}")
                e(f"s_add_u32 m0, s55, s3")
            e("s_nop 0")
            e(f"buffer_load_dwordx4 v{8+j}, s[32:35], s83 offen lds")
            vm.issue(f"c{i}")
        return f
    def xl(kk, rt):
        def f():
            ks = 2*i + kk
            e(f"buffer_load_dwordx4 v[{XF+(ks*3+rt)*4}:{XF+(ks*3+rt)*4+3}], v{15+rt}, s[28:31], s85 offen offset:{kk*64}")
            vm.issue(f"c{i}")
        return f
    for j in range(6): q.append(dma(j, j == 0))
    for kk in range(2):
        for rt in range(3):
            if rt == 2 and not isB: continue
            q.append(xl(kk, rt))
    return q

def wo_voffs():
    e("s_lshr_b32 s3, s26, 1")
    e("s_mul_i32 s3, s3, 224")
    for t in range(7):
        e(f"v_add_u32 v3, {t*64}, v2")
        e("v_mul_u32_u24 v4, 4682, v3")
        e("v_lshrrev_b32 v4, 16, v4")
        e("v_mul_u32_u24 v5, 14, v4")
        e("v_sub_u32 v3, v3, v5")
        e("v_mul_u32_u24 v4, 896, v4")
        e("v_lshl_add_u32 v3, v3, 4, v4")
        e(f"v_add_u32 v{20+t}, s3, v3")

def wo_dma(vm):
    q = []
    def one(m, t):
        def f():
            if t == 0:
                if m < 3:
                    e(f"s_add_u32 s86, s48, {4*m}")
                else:
                    e("s_and_b32 s86, s48, 1")
                    e("s_add_u32 s86, s86, 12")
                e("s_mul_i32 s84, s86, 7168")
                e("s_mul_i32 s86, s86, 28672")
            e(f"s_add_u32 m0, s84, {t*1024}")
            e("s_nop 0")
            e(f"buffer_load_dwordx4 v{20+t}, s[36:39], s86 offen lds")
            vm.issue("wo")
        return f
    for m in range(4):
        for t in range(7):
            q.append(one(m, t))
    return q

def gemm(vm, isB):
    for r in range(4):
        e(f"v_mov_b32 v{4+r}, 0")
    e("v_mov_b32 v3, 0")
    e("v_cmp_eq_u32 vcc, 0, v0")
    e("s_and_saveexec_b64 s[62:63], vcc")
    e("buffer_store_dwordx4 v[4:7], v3, s[40:43], s60 offen sc0 sc1")
    if not isB:
        zs = uid("ZS")
        e("s_cmp_eq_u32 s25, 0")
        e(f"s_cbranch_scc0 {zs}")
        e("s_lshl_b32 s3, s26, 7")
        e(f"s_add_u32 s3, s3, 0x{KVC:x}")
        e("buffer_store_dword v4, v3, s[40:43], s3 offen sc0 sc1")
        e("s_mov_b64 exec, s[62:63]")
        e("s_lshl_b32 s3, s26, 13")
        e(f"s_add_u32 s3, s3, 0x{ACC:x}")
        e("v_lshlrev_b32 v3, 5, v0")
        e("buffer_store_dwordx4 v[4:7], v3, s[40:43], s3 offen sc0 sc1")
        e("buffer_store_dwordx4 v[4:7], v3, s[40:43], s3 offen offset:16 sc0 sc1")
        lab(zs)
    e("s_mov_b64 exec, s[62:63]")
    for i in range(DEPTH):
        for f in issue_step(vm, isB, i): f()
    for i in range(104):
        e(f"v_accvgpr_write_b32 a{i}, 0")
    wo_voffs()
    for ch in range(7):
        vm.wait(f"c{ch}")
        e("s_barrier")
        stamp(vm, 12 + ch)
        if ch == 0 and not isB:
            zs = uid("ZF")
            e("s_cmp_eq_u32 s25, 0")
            e(f"s_cbranch_scc0 {zs}")
            e("v_cmp_eq_u32 vcc, 0, v0")
            e("s_and_saveexec_b64 s[62:63], vcc")
            e("s_lshl_b32 s3, s26, 2")
            e(f"v_mov_b32 v3, {CNT_Z}")
            e("v_mov_b32 v4, 1")
            e("buffer_store_dword v4, v3, s[44:47], s3 offen sc0 sc1")
            e("s_mov_b64 exec, s[62:63]")
            lab(zs)
        pend = []
        if ch + DEPTH < 7:
            pend = issue_step(vm, isB, ch + DEPTH)
        if ch == 5:
            woq = wo_dma(vm)
            pend = woq[:14]
        if ch == 6:
            pend = woq[14:]
        nslots = 24
        per_slot = -(-len(pend) // nslots)
        if ch == 5 and not isB:
            e(f"v_mov_b32 v3, {CNT_Z}")
            e("s_lshl_b32 s3, s26, 2")
            e("buffer_load_dword v19, v3, s[44:47], s3 offen sc0 sc1")
            vm.issue("zchk")
        e(f"v_add_u32 v18, {ch*REG}, v14")
        for kk in range(2):
            ks = 2*ch + kk
            def rd(grp, buf):
                for t in range(4):
                    for hf in range(2):
                        off = (32*kk + 4*hf)*RS + grp*112 + (t >> 1)*56 + (t & 1)*32
                        r = BF + buf*16 + t*4 + hf*2
                        e(f"ds_read_b64_tr_b16 v[{r}:{r+1}], v18 offset:{off}")
            rd(0, 0)
            for grp in range(3):
                if grp < 2:
                    rd(grp+1, (grp+1) & 1)
                    e("s_waitcnt lgkmcnt(8)")
                else:
                    e("s_waitcnt lgkmcnt(0)")
                tr = (grp == 0) or (isB and grp == 1)
                for t in range(4):
                    ct = grp*4 + t
                    b = BF + (grp & 1)*16 + t*4
                    for rt in range(3):
                        if rt == 2 and (not isB or grp == 0): continue
                        x = XF + (ks*3+rt)*4
                        a = (rt*12 + ct)*4 if rt < 2 else 96 + (grp-1)*4
                        sk = None
                        if rt == 2:
                            sk = uid("HS")
                            e(f"s_cmp_eq_u32 s48, {t}")
                            e(f"s_cbranch_scc0 {sk}")
                        if tr:
                            e(f"v_mfma_f32_16x16x32_bf16 a[{a}:{a+3}], v[{b}:{b+3}], v[{x}:{x+3}], a[{a}:{a+3}]")
                        else:
                            e(f"v_mfma_f32_16x16x32_bf16 a[{a}:{a+3}], v[{x}:{x+3}], v[{b}:{b+3}], a[{a}:{a+3}]")
                        if sk: lab(sk)
                    for _ in range(per_slot):
                        if pend: pend.pop(0)()
        assert not pend

def poll(isB):
    lp = uid("POLL_LOOP"); dn = uid("POLL_DONE")
    e("s_cmp_eq_u32 s48, 0")
    e(f"s_cbranch_scc0 {dn}")
    e("s_mov_b32 s78, 0")
    e("v_mov_b32 v30, 0")
    lab(lp)
    e(f"buffer_load_dwordx3 v[{T}:{T+2}], v30, s[40:43], s60 offen sc0 sc1")
    e("s_waitcnt vmcnt(0)")
    e(f"v_readfirstlane_b32 s79, v{T+2}")
    if not isB:
        e(f"v_readfirstlane_b32 s3, v{T}")
        e(f"v_readfirstlane_b32 s27, v{T+1}")
        e("s_nop 3")
        e("s_and_b32 s3, s3, s27")
        e("s_cmp_eq_u32 s3, 0x01010101")
        e("s_cselect_b32 s79, s79, 0")
    else:
        e("s_nop 3")
    e("s_cmp_eq_u32 s79, 1")
    e(f"s_cbranch_scc1 {dn}")
    e("s_add_u32 s78, s78, 1")
    e("s_cmp_gt_u32 s78, 0x40000")
    e(f"s_cbranch_scc1 {dn}")
    e(f"s_branch {lp}")
    lab(dn)
    e("s_barrier")

def arrive_kv(wave):
    dn = uid("AKV")
    e(f"s_cmp_eq_u32 s48, {wave}")
    e(f"s_cbranch_scc0 {dn}")
    e("v_cmp_eq_u32 vcc, 0, v2")
    e("s_and_saveexec_b64 s[62:63], vcc")
    e("v_mov_b32 v3, 0")
    e("v_mov_b32 v4, 1")
    e("s_lshl_b32 s3, s26, 7")
    e(f"s_add_u32 s3, s3, 0x{KVC:x}")
    e("buffer_atomic_add v4, v3, s[40:43], s3 offen sc0 sc1")
    e("s_mov_b64 exec, s[62:63]")
    e("s_waitcnt vmcnt(0)")
    e("v_readfirstlane_b32 s79, v4")
    e("s_nop 3")
    e("s_cmp_eq_u32 s79, 15")
    e(f"s_cbranch_scc0 {dn}")
    e("v_lshlrev_b32 v3, 7, v2")
    e("v_add_u32 v3, s26, v3")
    e("v_mov_b32 v4, 1")
    e(f"s_mov_b32 s3, 0x{GO:x}")
    e("buffer_store_byte v4, v3, s[40:43], s3 offen sc0 sc1")
    e(f"s_mov_b32 s3, 0x{GO+8192:x}")
    e("buffer_store_byte v4, v3, s[40:43], s3 offen sc0 sc1")
    lab(dn)

def arrive_tile(wave):
    dn = uid("ATL")
    e(f"s_cmp_eq_u32 s48, {wave}")
    e(f"s_cbranch_scc0 {dn}")
    e("v_cmp_eq_u32 vcc, 0, v2")
    e("s_and_saveexec_b64 s[62:63], vcc")
    e("v_mov_b32 v3, 0")
    e("v_mov_b32 v4, 1")
    e("s_lshl_b32 s3, s24, 4")
    e("s_add_u32 s3, s3, s25")
    e("s_lshl_b32 s27, s3, 10")
    e("s_lshl_b32 s3, s3, 2")
    e("buffer_atomic_add v4, v3, s[44:47], s3 offen sc0 sc1")
    e("s_mov_b64 exec, s[62:63]")
    e("s_waitcnt vmcnt(0)")
    e("v_readfirstlane_b32 s79, v4")
    e("s_nop 3")
    e("s_cmp_eq_u32 s79, 7")
    e(f"s_cbranch_scc0 {dn}")
    e("v_lshlrev_b32 v3, 7, v2")
    e("v_mov_b32 v4, 1")
    e(f"s_add_u32 s3, s27, 0x{GO+8:x}")
    e("v_cmp_gt_u32 vcc, 8, v2")
    e("s_and_saveexec_b64 s[62:63], vcc")
    e("buffer_store_dword v4, v3, s[40:43], s3 offen sc0 sc1")
    e("s_mov_b64 exec, s[62:63]")
    lab(dn)

def tile_flush(vm, lds_base, gbase):
    e("s_waitcnt lgkmcnt(0)")
    e("s_barrier")
    e("v_lshlrev_b32 v3, 4, v0")
    e(f"v_add_u32 v4, {lds_base}, v3")
    for it in range(4):
        e(f"ds_read_b128 v[{T+it*4}:{T+it*4+3}], v4 offset:{it*4096}")
    e("s_lshl_b32 s3, s25, 3")
    e("s_add_u32 s3, s3, s26")
    e("s_mul_i32 s3, s3, 14336")
    e(f"s_add_u32 s3, s3, 0x{gbase:x}")
    e("v_add_u32 v4, 8192, v3")
    e("v_cmp_gt_u32 vcc, 128, v0")
    for it in range(4):
        e(f"s_waitcnt lgkmcnt({3-it})")
        if it == 3:
            e("s_and_saveexec_b64 s[62:63], vcc")
        e(f"buffer_store_dwordx4 v[{T+it*4}:{T+it*4+3}], v{3 if it < 2 else 4}, s[40:43], s3 offen offset:{(it&1)*4096 - (0)} sc0 sc1") if (it&1)==0 else (
            e(f"v_add_u32 v5, 4096, v{3 if it < 2 else 4}"),
            e(f"buffer_store_dwordx4 v[{T+it*4}:{T+it*4+3}], v5, s[40:43], s3 offen sc0 sc1"))
        vm.issue("tile")
        if it == 3:
            e("s_mov_b64 exec, s[62:63]")

def acc_read4(dst, a):
    for r in range(4):
        e(f"v_accvgpr_read_b32 v{dst+r}, a{a+r}")

def epi_A(vm):
    c("---- A epilogue: KV partial first ----")
    e("s_nop 7")
    e("s_nop 7")
    e("v_and_b32 v5, 15, v2")
    e("v_lshrrev_b32 v6, 4, v2")
    e("v_cmp_le_u32 s[64:65], 12, v5")
    PK = 32; VV = 48; KP = 64
    for t in range(4):
        for rt in range(2):
            acc_read4(T+8, (rt*12 + 4 + t)*4)
            phi_pair(PK + t*4 + rt*2, T+8, T+9, T)
            phi_pair(PK + t*4 + rt*2 + 1, T+10, T+11, T+2)
    e("v_mov_b32 v7, 0x3f803f80")
    for t in range(4):
        for rt in range(2):
            acc_read4(T+8, (rt*12 + 8 + t)*4)
            d = VV + t*4 + rt*2
            e(f"v_cvt_pk_bf16_f32 v{d}, v{T+8}, v{T+9}")
            e(f"v_cvt_pk_bf16_f32 v{d+1}, v{T+10}, v{T+11}")
            if t & 1:
                e(f"v_cndmask_b32 v{d}, v{d}, v7, s[64:65]")
                e(f"v_cndmask_b32 v{d+1}, v{d+1}, v7, s[64:65]")
    e("s_nop 1")
    for hh in range(2):
        for et in range(2):
            for dt in range(2):
                d = KP + (hh*4 + et*2 + dt)*4
                va = VV + (hh*2+et)*4; pk = PK + (hh*2+dt)*4
                e(f"v_mfma_f32_16x16x32_bf16 v[{d}:{d+3}], v[{va}:{va+3}], v[{pk}:{pk+3}], 0")
    e("s_lshl_b32 s3, s48, 13")
    e(f"s_add_u32 s3, s3, {SCR}")
    e("v_lshlrev_b32 v3, 4, v2")
    e("v_add_u32 v4, s3, v3")
    e("s_nop 7")
    e("s_nop 3")
    for i in range(8):
        e(f"ds_write_b128 v4, v[{KP+i*4}:{KP+i*4+3}] offset:{i*1024}")
    e("s_waitcnt lgkmcnt(0)")
    e("s_barrier")
    e("s_lshl_b32 s3, s48, 11")
    e(f"s_add_u32 s3, s3, {SCR}")
    e("v_add_u32 v4, s3, v3")
    for dt in range(2):
        for w in range(4):
            r = 96 + (dt*4 + w)*4
            e(f"ds_read_b128 v[{r}:{r+3}], v4 offset:{w*8192 + dt*1024}")
    e("s_lshr_b32 s3, s48, 1")
    e("s_lshl_b32 s27, s26, 1")
    e("s_add_u32 s3, s3, s27")
    e("s_lshl_b32 s3, s3, 12")
    e("s_and_b32 s27, s48, 1")
    e("s_lshl_b32 s58, s27, 11")
    e("s_add_u32 s3, s3, s58")
    e(f"s_add_u32 s59, s3, 0x{ACC:x}")
    e("v_lshlrev_b32 v8, 9, v6")
    e("v_lshl_add_u32 v8, v5, 2, v8")
    e("v_cmp_gt_u32 s[66:67], 3, v6")
    e("s_cmp_eq_u32 s27, 1")
    e("s_cselect_b64 s[66:67], s[66:67], -1")
    e("v_cmp_gt_u32 s[68:69], 12, v5")
    e("s_waitcnt lgkmcnt(0)")
    for dt in range(2):
        b = 96 + dt*16
        for r in range(4):
            e(f"v_add_f32 v{b+r}, v{b+r}, v{b+4+r}")
            e(f"v_add_f32 v{b+8+r}, v{b+8+r}, v{b+12+r}")
        for r in range(4):
            e(f"v_add_f32 v{b+r}, v{b+r}, v{b+8+r}")
    vm.wait("zchk")
    zl = uid("ZL"); zd = uid("ZD")
    e("s_mov_b32 s78, 0")
    lab(zl)
    e("v_readfirstlane_b32 s79, v19")
    e("s_nop 3")
    e("s_cmp_eq_u32 s79, 1")
    e(f"s_cbranch_scc1 {zd}")
    e("s_add_u32 s78, s78, 1")
    e("s_cmp_gt_u32 s78, 0x40000")
    e(f"s_cbranch_scc1 {zd}")
    e("s_sleep 1")
    e(f"v_mov_b32 v3, {CNT_Z}")
    e("s_lshl_b32 s3, s26, 2")
    e("buffer_load_dword v19, v3, s[44:47], s3 offen sc0 sc1")
    e("s_waitcnt vmcnt(0)")
    e(f"s_branch {zl}")
    lab(zd)
    e("s_mov_b64 s[62:63], exec")
    for dt in range(2):
        for r in range(4):
            m = None
            if dt == 1 and r > 0:
                e("s_and_b64 exec, s[66:67], s[68:69]")
            elif dt == 1:
                e("s_mov_b64 exec, s[68:69]")
            elif r > 0:
                e("s_mov_b64 exec, s[66:67]")
            e(f"buffer_atomic_add_f32 v{96+dt*16+r}, v8, s[40:43], s59 offen offset:{r*128 + dt*64} sc0 sc1")
            vm.issue("kvat")
    e("s_mov_b64 exec, s[62:63]")
    stamp(vm, 4)
    c("---- phi(q) frags in regs ----")
    QF = 128
    for rt in range(2):
        for t in range(4):
            acc_read4(T+8, (rt*12 + t)*4)
            d = QF + (rt*2 + (t >> 1))*4 + (t & 1)*2
            phi_pair(d, T+8, T+9, T)
            phi_pair(d+1, T+10, T+11, T+2)
    e("v_lshl_add_u32 v9, v1, 5, v5")
    e("v_mul_u32_u24 v9, 112, v9")
    e("v_lshl_add_u32 v9, v6, 3, v9")
    e(f"v_add_u32 v9, {TILE_A}, v9")
    e("v_cmp_gt_u32 s[64:65], 3, v6")
    e("v_lshlrev_b32 v10, 7, v5")
    e("v_lshl_add_u32 v10, v6, 4, v10")
    e("v_lshlrev_b32 v11, 4, v6")
    e("s_lshl_b32 s59, s26, 13")
    e(f"s_add_u32 s59, s59, 0x{ACC:x}")
    e("s_waitcnt vmcnt(0)")
    e("s_barrier")
    dn = uid("KVD"); lp = uid("KVL")
    e("s_cmp_eq_u32 s48, 0")
    e(f"s_cbranch_scc0 {dn}")
    e("v_cmp_eq_u32 vcc, 0, v2")
    e("s_and_saveexec_b64 s[62:63], vcc")
    e("v_mov_b32 v3, 0")
    e("v_mov_b32 v4, 1")
    e("s_lshl_b32 s3, s26, 7")
    e(f"s_add_u32 s3, s3, 0x{KVC:x}")
    e("buffer_atomic_add v4, v3, s[40:43], s3 offen sc0 sc1")
    e("s_waitcnt vmcnt(0)")
    e("v_readfirstlane_b32 s79, v4")
    e("s_mov_b32 s78, 0")
    e("s_nop 2")
    e("s_add_u32 s79, s79, 1")
    lab(lp)
    e("s_cmp_ge_u32 s79, 16")
    e(f"s_cbranch_scc1 {dn}_x")
    e("s_add_u32 s78, s78, 1")
    e("s_cmp_gt_u32 s78, 0x40000")
    e(f"s_cbranch_scc1 {dn}_x")
    e("buffer_load_dword v4, v3, s[40:43], s3 offen sc0 sc1")
    e("s_waitcnt vmcnt(0)")
    e("v_readfirstlane_b32 s79, v4")
    e("s_nop 3")
    e(f"s_branch {lp}")
    lab(f"{dn}_x")
    e("s_mov_b64 exec, s[62:63]")
    lab(dn)
    e("s_barrier")
    stamp(vm, 10)
    R = 144
    for hh in range(2):
        for f in range(3):
            r = R + (hh*3+f)*8
            va = 10 if f < 2 else 11
            off = hh*4096 + (f*2048 if f < 2 else 28*128)
            if hh == 1:
                off -= 4096
            e(f"buffer_load_dwordx4 v[{r}:{r+3}], v{va}, s[40:43], s59 offen offset:{off}{SCA}")
            e(f"buffer_load_dwordx4 v[{r+4}:{r+7}], v{va}, s[40:43], s59 offen offset:{off+64}{SCA}")
        if hh == 0: e("s_add_u32 s59, s59, 4096")
    NR = 32
    for hh in range(2):
        for f in range(3):
            r = R + (hh*3+f)*8
            e(f"s_waitcnt vmcnt({10 - 2*(hh*3+f)})")
            for q in range(4):
                e(f"v_cvt_pk_bf16_f32 v{r+q}, v{r+2*q}, v{r+2*q+1}")
        e("s_nop 0")
        for rt in range(2):
            n = NR + (hh*2+rt)*12
            q = QF + (rt*2+hh)*4
            for f in range(3):
                r = R + (hh*3+f)*8
                e(f"v_mfma_f32_16x16x32_bf16 v[{n+f*4}:{n+f*4+3}], v[{r}:{r+3}], v[{q}:{q+3}], 0")
    stamp(vm, 11)
    e("s_nop 7")
    e("s_nop 3")
    for hh in range(2):
        for rt in range(2):
            n = NR + (hh*2+rt)*12
            e(f"v_cvt_pk_bf16_f32 v24, v{n+8}, v{n+8}")
            e("v_lshlrev_b32 v24, 16, v24")
            e(f"v_add_f32 v24, 0x{EPS:x}, v24")
            e("v_cvt_pk_bf16_f32 v24, v24, v24")
            e("v_lshlrev_b32 v24, 16, v24")
            e("v_rcp_f32 v24, v24")
            e("s_nop 0")
            for q in range(4):
                e(f"v_cvt_pk_bf16_f32 v25, v{n+2*q}, v{n+2*q+1}")
                unpack(26, 27, 25)
                e("v_mul_f32 v26, v26, v24")
                e("v_mul_f32 v27, v27, v24")
                e(f"v_cvt_pk_bf16_f32 v{n+q}, v26, v27")
            e(f"ds_write_b64 v9, v[{n}:{n+1}] offset:{rt*1792 + hh*56}")
            e("s_and_saveexec_b64 s[62:63], s[64:65]")
            e(f"ds_write_b64 v9, v[{n+2}:{n+3}] offset:{rt*1792 + hh*56 + 32}")
            e("s_mov_b64 exec, s[62:63]")
    tile_flush(vm, TILE_A, PQ_A)
    e("s_waitcnt vmcnt(0)")
    e("s_barrier")
    arrive_tile(0)
    stamp(vm, 5)

def epi_B(vm):
    c("---- B epilogue: MFMA banded attention ----")
    QF = 32; KF = 48; VF = 72
    e("s_nop 7")
    e("s_nop 7")
    e("v_and_b32 v5, 15, v2")
    e("v_lshrrev_b32 v6, 4, v2")
    e("v_cmp_gt_u32 s[64:65], 3, v6")
    e("v_lshlrev_b32 v3, 4, v2")
    e("v_lshlrev_b32 v7, 3, v2")
    acc_read4(T, 96)
    acc_read4(T+4, 100)
    e(f"v_cvt_pk_bf16_f32 v{T+8}, v{T}, v{T+1}")
    e(f"v_cvt_pk_bf16_f32 v{T+9}, v{T+2}, v{T+3}")
    e(f"v_cvt_pk_bf16_f32 v{T+10}, v{T+4}, v{T+5}")
    e(f"v_cvt_pk_bf16_f32 v{T+11}, v{T+6}, v{T+7}")
    e("s_lshr_b32 s3, s48, 1")
    e("s_lshl_b32 s3, s3, 10")
    e("s_and_b32 s27, s48, 1")
    e("s_lshl_b32 s27, s27, 3")
    e("s_add_u32 s3, s3, s27")
    e(f"s_add_u32 s3, s3, {SCR}")
    e("v_add_u32 v4, s3, v3")
    e(f"ds_write_b64 v4, v[{T+8}:{T+9}]")
    e("s_lshl_b32 s3, s48, 9")
    e(f"s_add_u32 s3, s3, {SCR + 2048}")
    e("v_add_u32 v4, s3, v7")
    e(f"ds_write_b64 v4, v[{T+10}:{T+11}]")
    for hh in range(2):
        for dt in range(2):
            acc_read4(T, (12 + 4 + hh*2 + dt)*4)
            d = KF + (2*2+hh)*4 + dt*2
            e(f"v_cvt_pk_bf16_f32 v{d}, v{T}, v{T+1}")
            e(f"v_cvt_pk_bf16_f32 v{d+1}, v{T+2}, v{T+3}")
        for et in range(2):
            acc_read4(T, (12 + 8 + hh*2 + et)*4)
            d = VF + (hh*2+et)*6 + 4
            e(f"v_cvt_pk_bf16_f32 v{d}, v{T}, v{T+1}")
            e(f"v_cvt_pk_bf16_f32 v{d+1}, v{T+2}, v{T+3}")
    e("s_lshl_b32 s3, s48, 12")
    e(f"s_add_u32 s3, s3, {SCR + 4096}")
    e("v_add_u32 v4, s3, v3")
    e("v_add_u32 v8, s3, v7")
    for hh in range(2):
        d = KF + (2*2+hh)*4
        e(f"ds_write_b128 v4, v[{d}:{d+3}] offset:{hh*1024}")
        for et in range(2):
            d = VF + (hh*2+et)*6 + 4
            e(f"ds_write_b64 v8, v[{d}:{d+1}] offset:{2048 + (hh*2+et)*512}")
    for rt in range(2):
        for hh in range(2):
            for dt in range(2):
                acc_read4(T, (rt*12 + hh*2 + dt)*4)
                d = QF + (rt*2+hh)*4 + dt*2
                e(f"v_cvt_pk_bf16_f32 v{d}, v{T}, v{T+1}")
                e(f"v_cvt_pk_bf16_f32 v{d+1}, v{T+2}, v{T+3}")
                if dt == 1:
                    e(f"v_cndmask_b32 v{d}, 0, v{d}, s[64:65]")
                    e(f"v_cndmask_b32 v{d+1}, 0, v{d+1}, s[64:65]")
    for hh in range(2):
        for dt in range(2):
            acc_read4(T, (4 + hh*2 + dt)*4)
            d = KF + (1*2+hh)*4 + dt*2
            e(f"v_cvt_pk_bf16_f32 v{d}, v{T}, v{T+1}")
            e(f"v_cvt_pk_bf16_f32 v{d+1}, v{T+2}, v{T+3}")
        for et in range(2):
            acc_read4(T, (8 + hh*2 + et)*4)
            d = VF + (hh*2+et)*6 + 2
            e(f"v_cvt_pk_bf16_f32 v{d}, v{T}, v{T+1}")
            e(f"v_cvt_pk_bf16_f32 v{d+1}, v{T+2}, v{T+3}")
    e("s_waitcnt lgkmcnt(0)")
    e("s_barrier")
    e("s_lshl_b32 s3, s48, 12")
    e(f"s_add_u32 s3, s3, {SCR}")
    e("v_add_u32 v4, s3, v3")
    e("v_add_u32 v8, s3, v7")
    for hh in range(2):
        d = KF + hh*4
        e(f"ds_read_b128 v[{d}:{d+3}], v4 offset:{hh*1024}")
        for et in range(2):
            d = VF + (hh*2+et)*6
            e(f"ds_read_b64 v[{d}:{d+1}], v8 offset:{2048 + (hh*2+et)*512}")
    e("v_and_b32 v9, 1, v5")
    e("v_cmp_eq_u32 s[4:5], 1, v9")
    e("v_mov_b32 v10, 0xffff")
    e("v_mov_b32 v11, 0xffff0000")
    e("v_cndmask_b32 v10, v10, v11, s[4:5]")
    e("v_lshl_add_u32 v11, v6, 2, v9")
    e("v_sub_u32 v11, v11, v5")
    for k in range(4):
        addk = 2*k if k < 2 else 16 + 2*(k-2)
        e(f"v_add_u32 v12, {addk}, v11")
        e(f"v_cmp_le_i32 s[{6+2*k}:{7+2*k}], 2, v12")
        e(f"v_cmp_ge_i32 vcc, 16, v12")
        e(f"s_and_b64 s[{6+2*k}:{7+2*k}], s[{6+2*k}:{7+2*k}], vcc")
    e("s_or_b32 s3, s25, s48")
    e("s_cmp_eq_u32 s3, 0")
    e("s_cselect_b64 s[14:15], 0, -1")
    e("s_and_b64 s[16:17], s[6:7], s[14:15]")
    e("s_and_b64 s[18:19], s[8:9], s[14:15]")
    e("v_lshl_add_u32 v4, v1, 5, v5")
    e("v_mul_u32_u24 v4, 112, v4")
    e("v_lshl_add_u32 v4, v6, 3, v4")
    e(f"v_add_u32 v4, {SCR + 20480}, v4")
    e("s_waitcnt lgkmcnt(0)")
    S = 96
    for rt in range(2):
        for hh in range(2):
            sb = S + (rt*2+hh)*8
            q = QF + (rt*2+hh)*4
            for ti in range(2):
                k = KF + ((rt+ti)*2+hh)*4
                e(f"v_mfma_f32_16x16x32_bf16 v[{sb+ti*4}:{sb+ti*4+3}], v[{k}:{k+3}], v[{q}:{q+3}], 0")
    e("s_nop 7")
    e("s_nop 3")
    e("v_mov_b32 v20, 0xce6e6b28")
    P = 128
    W = 144
    for rt in range(2):
        for hh in range(2):
            cb = rt*2+hh
            sb = S + cb*8
            lg = W
            for k in range(4):
                e(f"v_cndmask_b32 v{lg+k}, v{sb+2*k}, v{sb+2*k+1}, s[4:5]")
            for k in (0, 2):
                e(f"v_cvt_pk_bf16_f32 v{W+4}, v{lg+k}, v{lg+k+1}")
                unpack(W+5, W+6, W+4)
                e(f"v_mul_f32 v{W+5}, 0x{SCALE:x}, v{W+5}")
                e(f"v_mul_f32 v{W+6}, 0x{SCALE:x}, v{W+6}")
                e(f"v_cvt_pk_bf16_f32 v{W+4}, v{W+5}, v{W+6}")
                unpack(lg+k, lg+k+1, W+4)
            for k in range(4):
                ms = (16 + 2*k) if (rt == 0 and k < 2) else (6 + 2*k)
                e(f"v_cndmask_b32 v{lg+k}, v20, v{lg+k}, s[{ms}:{ms+1}]")
            e(f"v_max3_f32 v{W+4}, v{lg}, v{lg+1}, v{lg+2}")
            e(f"v_max_f32 v{W+4}, v{W+4}, v{lg+3}")
            e(f"v_mov_b32 v{W+5}, v{W+4}")
            e("s_nop 1")
            e(f"v_permlane16_swap_b32 v{W+4}, v{W+5}")
            e("s_nop 1")
            e(f"v_max_f32 v{W+4}, v{W+4}, v{W+5}")
            e(f"v_mov_b32 v{W+5}, v{W+4}")
            e("s_nop 1")
            e(f"v_permlane32_swap_b32 v{W+4}, v{W+5}")
            e("s_nop 1")
            e(f"v_max_f32 v{W+4}, v{W+4}, v{W+5}")
            for k in range(4):
                e(f"v_sub_f32 v{lg+k}, v{lg+k}, v{W+4}")
                e(f"v_mul_f32 v{lg+k}, 0x{LOG2E:x}, v{lg+k}")
                e(f"v_exp_f32 v{lg+k}, v{lg+k}")
            e("s_nop 0")
            e(f"v_add_f32 v{W+4}, v{lg}, v{lg+1}")
            e(f"v_add_f32 v{W+5}, v{lg+2}, v{lg+3}")
            e(f"v_add_f32 v{W+4}, v{W+4}, v{W+5}")
            e(f"v_mov_b32 v{W+5}, v{W+4}")
            e("s_nop 1")
            e(f"v_permlane16_swap_b32 v{W+4}, v{W+5}")
            e("s_nop 1")
            e(f"v_add_f32 v{W+4}, v{W+4}, v{W+5}")
            e(f"v_mov_b32 v{W+5}, v{W+4}")
            e("s_nop 1")
            e(f"v_permlane32_swap_b32 v{W+4}, v{W+5}")
            e("s_nop 1")
            e(f"v_add_f32 v{W+4}, v{W+4}, v{W+5}")
            e(f"v_rcp_f32 v{W+4}, v{W+4}")
            e("s_nop 0")
            for k in range(4):
                e(f"v_mul_f32 v{lg+k}, v{lg+k}, v{W+4}")
                e(f"v_cvt_pk_bf16_f32 v{P+cb*4+k}, v{lg+k}, v{lg+k}")
                e(f"v_and_b32 v{P+cb*4+k}, v{P+cb*4+k}, v10")
    e("s_nop 1")
    O = 160
    for rt in range(2):
        for hh in range(2):
            cb = rt*2+hh
            for et in range(2):
                o = O + (cb*2+et)*4
                v = VF + (hh*2+et)*6 + 2*rt
                e(f"v_mfma_f32_16x16x32_bf16 v[{o}:{o+3}], v[{v}:{v+3}], v[{P+cb*4}:{P+cb*4+3}], 0")
    e("s_nop 7")
    e("s_nop 3")
    for rt in range(2):
        for hh in range(2):
            cb = rt*2+hh
            for et in range(2):
                o = O + (cb*2+et)*4
                e(f"v_cvt_pk_bf16_f32 v{o}, v{o}, v{o+1}")
                e(f"v_cvt_pk_bf16_f32 v{o+1}, v{o+2}, v{o+3}")
                if et == 1:
                    e("s_and_saveexec_b64 s[62:63], s[64:65]")
                e(f"ds_write_b64 v4, v[{o}:{o+1}] offset:{rt*1792 + hh*56 + et*32}")
                if et == 1:
                    e("s_mov_b64 exec, s[62:63]")
    tile_flush(vm, SCR + 20480, O_B)
    e("s_waitcnt vmcnt(0)")
    e("s_barrier")
    arrive_tile(0)
    stamp(vm, 5)

def p2_common():
    e("v_lshrrev_b32 v3, 4, v2")
    e("v_and_b32 v4, 15, v2")
    e("s_lshl_b32 s3, s25, 7")
    e("s_and_b32 s27, s26, 1")
    e("s_lshl_b32 s27, s27, 6")
    e("s_add_u32 s3, s3, s27")
    e("v_lshl_add_u32 v5, v1, 4, v4")
    e("v_add_u32 v5, s3, v5")
    e("v_lshl_add_u32 v6, v1, 4, v4")
    e("v_add_u32 v6, s27, v6")
    e("v_mul_u32_u24 v6, 112, v6")
    e("v_lshlrev_b32 v7, 4, v2")
    e("v_mul_u32_u24 v8, 1792, v5")
    e("v_lshl_add_u32 v8, v3, 3, v8")
    e("s_mul_i32 s3, s24, 896")
    e("s_lshr_b32 s27, s26, 1")
    e("s_mul_i32 s27, s27, 224")
    e("s_add_u32 s3, s3, s27")
    e("v_add_u32 v8, s3, v8")
    for i in range(28):
        e(f"v_accvgpr_write_b32 a{i}, 0")

def p2_out():
    e("s_nop 7")
    e("s_nop 7")
    for nt in range(7):
        acc_read4(12, nt*4)
        e("v_cvt_pk_bf16_f32 v16, v12, v13")
        e("v_cvt_pk_bf16_f32 v17, v14, v15")
        e(f"buffer_store_dwordx2 v[16:17], v8, s[88:91], 0 offen offset:{nt*32}")
        e("s_nop 1")

def p2_A(vm):
    c("---- P2 A ----")
    p2_common()
    e("v_bfe_u32 v9, v2, 2, 2")
    e("v_lshl_add_u32 v9, v3, 2, v9")
    e("v_mul_u32_u24 v9, 224, v9")
    e("v_and_b32 v10, 3, v2")
    e("v_lshl_add_u32 v9, v10, 3, v9")
    e("v_add_u32 v10, 3584, v9")
    e("v_cmp_gt_u32 s[64:65], 3, v3")
    e("s_nop 1")
    e("v_cndmask_b32 v10, v9, v10, s[64:65]")
    poll(False)
    stamp(vm, 6)
    PQ = 32
    e("v_lshl_add_u32 v11, v3, 4, v6")
    e("s_mul_i32 s3, s25, 114688")
    e(f"s_add_u32 s3, s3, 0x{PQ_A:x}")
    for h in range(16):
        e(f"buffer_load_dwordx4 v[{PQ+h*4}:{PQ+h*4+3}], v11, s[40:43], s3 offen offset:{(h&1)*56}{SCT}")
        if h & 1: e("s_add_u32 s3, s3, 14336")
    if os.environ.get("X1"):
        e("s_waitcnt vmcnt(0)")
        stamp(vm, 10)
    e("v_lshlrev_b32 v11, 7, v4")
    e("v_lshl_add_u32 v11, v3, 5, v11")
    e("s_lshl_b32 s3, s48, 14")
    e(f"s_add_u32 s3, s3, 0x{ACC:x}")
    R = 96
    for hq in range(4):
        for f in range(2):
            r = R + (hq*2+f)*8
            e(f"buffer_load_dwordx4 v[{r}:{r+3}], v11, s[40:43], s3 offen offset:{f*2048}{SCA}")
            e(f"buffer_load_dwordx4 v[{r+4}:{r+7}], v11, s[40:43], s3 offen offset:{f*2048+16}{SCA}")
        e("s_add_u32 s3, s3, 4096")
    if os.environ.get("X1"):
        e("s_waitcnt vmcnt(0)")
        stamp(vm, 11)
        e("s_waitcnt vmcnt(0)")
    e("s_lshl_b32 s3, s48, 13")
    e(f"s_add_u32 s3, s3, {SCR}")
    e("v_add_u32 v11, s3, v7")
    for hq in range(4):
        for f in range(2):
            r = R + (hq*2+f)*8
            e(f"s_waitcnt vmcnt({14 - 2*(hq*2+f)})")
            for q in range(4):
                e(f"v_cvt_pk_bf16_f32 v{r+q}, v{r+2*q}, v{r+2*q+1}")
            e(f"ds_write_b128 v11, v[{r}:{r+3}] offset:{(hq*2+f)*1024}")
    e("s_waitcnt lgkmcnt(0)")
    e("s_barrier")
    stamp(vm, 7)
    for h in range(16):
        e(f"v_cndmask_b32 v{PQ+h*4+2}, 0, v{PQ+h*4+2}, s[64:65]")
        e(f"v_cndmask_b32 v{PQ+h*4+3}, 0, v{PQ+h*4+3}, s[64:65]")
    e(f"v_add_u32 v11, {SCR}, v7")
    e("v_lshlrev_b32 v12, 8, v3")
    e(f"v_add_u32 v12, {SCR + 1024 + 192}, v12")
    KVR = 96; NR = 144; OF = 192
    for hg in range(4):
        for hq in range(4):
            h = hg*4 + hq
            r = KVR + hq*12
            e(f"ds_read_b128 v[{r}:{r+3}], v11 offset:{h*2048}")
            e(f"ds_read_b128 v[{r+4}:{r+7}], v11 offset:{h*2048+1024}")
            e(f"ds_read_b128 v[{r+8}:{r+11}], v12 offset:{h*2048}")
        for hq in range(4):
            h = hg*4 + hq
            r = KVR + hq*12; n = NR + hq*12
            e(f"s_waitcnt lgkmcnt({9 - 3*hq})")
            for f in range(3):
                e(f"v_mfma_f32_16x16x32_bf16 v[{n+f*4}:{n+f*4+3}], v[{r+f*4}:{r+f*4+3}], v[{PQ+h*4}:{PQ+h*4+3}], 0")
        e("s_nop 7")
        e("s_nop 3")
        for hq in range(4):
            h = hg*4 + hq
            n = NR + hq*12
            e(f"v_cvt_pk_bf16_f32 v24, v{n+8}, v{n+8}")
            e("v_lshlrev_b32 v24, 16, v24")
            e(f"v_add_f32 v24, 0x{EPS:x}, v24")
            e("v_cvt_pk_bf16_f32 v24, v24, v24")
            e("v_lshlrev_b32 v24, 16, v24")
            e("v_rcp_f32 v24, v24")
            e("s_nop 0")
            for q in range(4):
                e(f"v_cvt_pk_bf16_f32 v25, v{n+2*q}, v{n+2*q+1}")
                unpack(26, 27, 25)
                e("v_mul_f32 v26, v26, v24")
                e("v_mul_f32 v27, v27, v24")
                e(f"v_cvt_pk_bf16_f32 v{OF+h*4+q}, v26, v27")
            e(f"v_cndmask_b32 v{OF+h*4+2}, 0, v{OF+h*4+2}, s[64:65]")
            e(f"v_cndmask_b32 v{OF+h*4+3}, 0, v{OF+h*4+3}, s[64:65]")
    stamp(vm, 8)
    def rdh(h):
        bb = 32 + (h & 1)*28
        e(f"v_add_u32 v13, {h*28*224}, v9")
        e(f"v_add_u32 v14, {h*28*224}, v10")
        for nt in range(7):
            e(f"ds_read_b64_tr_b16 v[{bb+nt*4}:{bb+nt*4+1}], v13 offset:{nt*32}")
            e(f"ds_read_b64_tr_b16 v[{bb+nt*4+2}:{bb+nt*4+3}], v14 offset:{nt*32}")
    rdh(0)
    for h in range(16):
        if h < 15:
            rdh(h+1)
            e("s_waitcnt lgkmcnt(14)")
        else:
            e("s_waitcnt lgkmcnt(0)")
        bb = 32 + (h & 1)*28
        for nt in range(7):
            e(f"v_mfma_f32_16x16x32_bf16 a[{nt*4}:{nt*4+3}], v[{bb+nt*4}:{bb+nt*4+3}], v[{OF+h*4}:{OF+h*4+3}], a[{nt*4}:{nt*4+3}]")
    p2_out()
    stamp(vm, 9)

def p2_B(vm, isB=True):
    c("---- P2 B ----")
    p2_common()
    e("v_bfe_u32 v9, v2, 2, 2")
    e("v_lshl_add_u32 v9, v3, 3, v9")
    e("v_mul_u32_u24 v9, 224, v9")
    e("v_and_b32 v10, 3, v2")
    e("v_lshl_add_u32 v9, v10, 3, v9")
    for ks in range(14):
        e(f"v_add_u32 v11, {4*ks}, v3")
        e("v_mul_u32_u24 v12, 37, v11")
        e("v_lshrrev_b32 v12, 8, v12")
        e("v_mul_u32_u24 v13, 7, v12")
        e("v_sub_u32 v11, v11, v13")
        e("v_mul_u32_u24 v12, 14336, v12")
        e("v_lshl_add_u32 v11, v11, 4, v12")
        e(f"v_add_u32 v{160+ks}, v11, v6")
    poll(True)
    stamp(vm, 6)
    OFR = 96
    e("s_mul_i32 s3, s25, 114688")
    e(f"s_add_u32 s3, s3, 0x{O_B if isB else PQ_A:x}")
    for ks in range(14):
        e(f"buffer_load_dwordx4 v[{OFR+ks*4}:{OFR+ks*4+3}], v{160+ks}, s[40:43], s3 offen{SCT}")
    def rdk(ks):
        bb = 32 + (ks & 1)*28
        e(f"v_add_u32 v13, {ks*32*224}, v9")
        for nt in range(7):
            e(f"ds_read_b64_tr_b16 v[{bb+nt*4}:{bb+nt*4+1}], v13 offset:{nt*32}")
            e(f"ds_read_b64_tr_b16 v[{bb+nt*4+2}:{bb+nt*4+3}], v13 offset:{nt*32 + 4*224}")
    rdk(0)
    for ks in range(14):
        if ks < 13:
            rdk(ks+1)
            e("s_waitcnt lgkmcnt(14)")
        else:
            e("s_waitcnt lgkmcnt(0)")
        e(f"s_waitcnt vmcnt({13-ks})")
        bb = 32 + (ks & 1)*28
        for nt in range(7):
            e(f"v_mfma_f32_16x16x32_bf16 a[{nt*4}:{nt*4+3}], v[{bb+nt*4}:{bb+nt*4+3}], v[{OFR+ks*4}:{OFR+ks*4+3}], a[{nt*4}:{nt*4+3}]")
    p2_out()
    stamp(vm, 9)

def kernel():
    lab(f"{NAME}_kernel")
    prologue()
    lab("K_A")
    vm = VM()
    stamp(vm, 0)
    gemm(vm, False)
    stamp(vm, 3)
    epi_A(vm)
    p2_B(vm, False)
    e("s_branch K_END")
    lab("K_B")
    vm = VM()
    stamp(vm, 0)
    gemm(vm, True)
    stamp(vm, 3)
    epi_B(vm)
    p2_B(vm)
    lab("K_END")
    e("s_endpgm")

HDR = open("cdna_kernels/" + NAME + ".s.ref").read().split("; @launch")[0]
kernel()
out = HDR
out += f"; @launch grid=(256,1,1) block=(256,1,1) lds={LDS_TOTAL}\n"
out += '.amdgcn_target "amdgcn-amd-amdhsa--gfx950"\n.text\n'
out += f".globl {NAME}_kernel\n.p2align 8\n.type {NAME}_kernel,@function\n"
out += "\n".join(L) + "\n"
out += f""".section .rodata,"a"
.p2align 6
.amdhsa_kernel {NAME}_kernel
  .amdhsa_next_free_vgpr 384
  .amdhsa_next_free_sgpr 96
  .amdhsa_accum_offset 256
  .amdhsa_group_segment_fixed_size 0
  .amdhsa_kernarg_size 72
  .amdhsa_user_sgpr_count 2
  .amdhsa_user_sgpr_kernarg_segment_ptr 1
  .amdhsa_system_sgpr_workgroup_id_x 1
.end_amdhsa_kernel
"""
path = sys.argv[1] if len(sys.argv) > 1 else f"cdna_kernels/{NAME}.s"
open(path, "w").write(out)
```

```python
import sys, os, struct
NAME = "concat_heads__linear_attn_block__sliding_local_dilated__prompt"
PQ_A = 0
O_B = 0x1C0000
ACC = 0x380000
GO = 0x390000
KVC = 0x398000
WS_END = 0x3A0000
STAMP = os.environ.get("STAMP") == "1"
if STAMP: WS_END = 0x800000
LOG2E = 0x3FB8AA3B
EPS = 0x358637BD
SCALE = 0x3E41848F
assert abs(struct.unpack('<f', struct.pack('<I', SCALE))[0] - 28 ** -0.5) < 1e-7
for s in range(1600): assert (s * 2979) >> 16 == s // 22
for s in range(448): assert (s * 4682) >> 16 == s // 14
for s in range(56): assert (s * 37) >> 8 == s // 7

RS = 352
REG = 64 * RS
DUMMY = 7 * REG
SCR = 100352
LDS_TOTAL = 163840
DEPTH = int(os.environ.get("DEPTH", "3"))
CNT_KV = 32 * 4
SCT = "" if os.environ.get("PLAIN_T") else " sc0 sc1"
SCA = "" if os.environ.get("PLAIN_A") else " sc0 sc1"
CNT_Z = 40 * 4
TILE_A = SCR + 32768

L = []
def e(s): L.append("    " + s)
def lab(s): L.append(s + ":")
def c(s): L.append("    ; " + s)
_uid = [0]
def uid(p):
    _uid[0] += 1
    return f"{p}_{_uid[0]}"

class VM:
    def __init__(self): self.ops = []
    def issue(self, tag): self.ops.append(tag)
    def wait(self, tag):
        idx = max(i for i, t in enumerate(self.ops) if t == tag)
        n = len(self.ops) - 1 - idx
        assert n < 64
        e(f"s_waitcnt vmcnt({n})")
    def wait_all(self):
        e("s_waitcnt vmcnt(0)")

def stamp(vm, i):
    if not STAMP: return
    e("s_memrealtime s[72:73]" if os.environ.get("RT") else "s_memtime s[72:73]")
    e("s_waitcnt lgkmcnt(0)")
    e("v_mov_b32 v28, s72")
    e("s_lshl_b32 s74, s2, 7")
    e(f"s_add_u32 s74, s74, {0x700000 + i*4}")
    e("v_mov_b32 v29, 0")
    e("v_cmp_eq_u32 vcc, 0, v0")
    e("s_and_saveexec_b64 s[76:77], vcc")
    e("buffer_store_dword v28, v29, s[40:43], s74 offen")
    e("s_mov_b64 exec, s[76:77]")
    vm.issue("stamp")

def unpack(dlo, dhi, src):
    e(f"v_lshlrev_b32 v{dlo}, 16, v{src}")
    e(f"v_and_b32 v{dhi}, 0xffff0000, v{src}")

def phi_pair(dst, a, b, t):
    assert b == a + 1 and a % 2 == 0 and t % 2 == 0
    e(f"v_pk_mul_f32 v[{t}:{t+1}], v[{a}:{b}], s[70:71]")
    e(f"v_exp_f32 v{t}, v{t} clamp")
    e(f"v_exp_f32 v{t+1}, v{t+1} clamp")
    e(f"v_max_f32 v{a}, 0, v{a}")
    e(f"v_max_f32 v{b}, 0, v{b}")
    e(f"v_pk_add_f32 v[{t}:{t+1}], v[{t}:{t+1}], v[{a}:{b}]")
    e(f"v_cvt_pk_bf16_f32 v{dst}, v{t}, v{t+1}")

def srd(base, lo, hi, nbytes):
    e(f"s_mov_b32 s{base}, s{lo}")
    e(f"s_and_b32 s{base+1}, s{hi}, 0xffff")
    e(f"s_mov_b32 s{base+2}, 0x{nbytes:x}")
    e(f"s_mov_b32 s{base+3}, 0x20000")

XF = 32
BF = 200
T = 232

def prologue():
    e("s_cmp_ge_u32 s2, 256")
    e("s_cbranch_scc1 K_END")
    e("s_load_dwordx4 s[4:7], s[0:1], 0")
    e("s_load_dwordx4 s[8:11], s[0:1], 16")
    e("s_load_dwordx4 s[12:15], s[0:1], 32")
    e("s_load_dwordx4 s[16:19], s[0:1], 48")
    e("s_load_dwordx2 s[20:21], s[0:1], 64")
    e("s_and_b32 s22, s2, 7")
    e("s_lshr_b32 s23, s2, 3")
    e("s_lshr_b32 s24, s22, 2")
    e("s_and_b32 s27, s22, 3")
    e("s_lshr_b32 s25, s27, 1")
    e("s_lshl_b32 s25, s25, 3")
    e("s_and_b32 s3, s23, 7")
    e("s_add_u32 s25, s25, s3")
    e("s_and_b32 s26, s27, 1")
    e("s_lshl_b32 s26, s26, 2")
    e("s_lshr_b32 s3, s23, 3")
    e("s_add_u32 s26, s26, s3")
    e("v_lshrrev_b32 v1, 6, v0")
    e("v_and_b32 v2, 63, v0")
    e("v_readfirstlane_b32 s48, v1")
    for j in range(6):
        e(f"v_add_u32 v3, {4*j}, v1")
        e(f"v_lshl_add_u32 v3, v3, 6, v2")
        e(f"v_mul_u32_u24 v4, 2979, v3")
        e(f"v_lshrrev_b32 v4, 16, v4")
        e(f"v_mul_u32_u24 v5, 22, v4")
        e(f"v_sub_u32 v3, v3, v5")
        e(f"v_min_u32 v3, 20, v3")
        e(f"v_mul_u32_u24 v5, 37, v3")
        e(f"v_lshrrev_b32 v5, 8, v5")
        e(f"v_mul_u32_u24 v6, 7, v5")
        e(f"v_sub_u32 v3, v3, v6")
        e(f"v_mul_u32_u24 v4, 2688, v4")
        e(f"v_mul_u32_u24 v5, 896, v5")
        e(f"v_lshlrev_b32 v3, 4, v3")
        e(f"v_add3_u32 v{8+j}, v3, v4, v5")
        if j < 5:
            e(f"s_add_u32 s{50+j}, s48, {4*j}")
            e(f"s_lshl_b32 s{50+j}, s{50+j}, 10")
    e("s_lshl_b32 s55, s48, 10")
    e(f"s_add_u32 s3, s55, {20*1024}")
    e(f"s_add_u32 s55, s55, {DUMMY - 2048}")
    e("s_cmp_lt_u32 s48, 2")
    e("s_cselect_b32 s55, s3, s55")
    e("s_cselect_b32 s57, 1, 0")
    e("v_lshrrev_b32 v3, 4, v2")
    e("v_bfe_u32 v4, v2, 2, 2")
    e("v_lshl_add_u32 v4, v3, 3, v4")
    e(f"v_mul_u32_u24 v4, {RS}, v4")
    e("v_and_b32 v5, 3, v2")
    e("v_lshl_add_u32 v14, v5, 3, v4")
    e("v_and_b32 v4, 15, v2")
    e("s_lshl_b32 s3, s25, 7")
    e("v_lshl_add_u32 v5, v1, 5, v4")
    e("v_add_u32 v5, s3, v5")
    e("v_mul_u32_u24 v5, 896, v5")
    e("v_lshl_add_u32 v15, v3, 4, v5")
    e("v_add_u32 v16, 14336, v15")
    e("v_add_u32 v5, s3, v4")
    e("v_subrev_u32 v5, 16, v5")
    e("s_movk_i32 s49, 896")
    e("v_mul_lo_u32 v5, v5, s49")
    e("v_lshl_add_u32 v17, v3, 4, v5")
    e("s_mul_i32 s56, s26, 112")
    e(f"s_mov_b32 s70, 0x{LOG2E:x}")
    e(f"s_mov_b32 s71, 0x{LOG2E:x}")
    e("s_lshl_b32 s60, s24, 4")
    e("s_add_u32 s60, s60, s25")
    e("s_lshl_b32 s60, s60, 3")
    e("s_add_u32 s60, s60, s26")
    e("s_lshl_b32 s60, s60, 7")
    e(f"s_add_u32 s60, s60, 0x{GO:x}")
    e("s_and_b32 s81, s23, 7")
    e("s_lshr_b32 s3, s23, 3")
    e("s_lshl_b32 s3, s3, 1")
    e("s_add_u32 s81, s81, s3")
    e("s_cmp_ge_u32 s81, 7")
    e("s_cselect_b32 s3, 7, 0")
    e("s_sub_u32 s81, s81, s3")
    e("s_cmp_ge_u32 s81, 7")
    e("s_cselect_b32 s3, 7, 0")
    e("s_sub_u32 s81, s81, s3")
    if os.environ.get("ROT") == "0": e("s_mov_b32 s81, 0")
    if os.environ.get("ROT") == "2":
        e("s_lshr_b32 s81, s23, 3")
        e("s_lshl_b32 s81, s81, 1")
    if os.environ.get("ROT") == "3":
        e("s_and_b32 s81, s23, 7")
        e("s_cmp_eq_u32 s81, 7")
        e("s_cselect_b32 s81, 3, s81")
    e("s_waitcnt lgkmcnt(0)")
    srd(40, 20, 21, WS_END)
    srd(44, 18, 19, 256)
    srd(88, 16, 17, 2048*1792)
    e("s_cmp_eq_u32 s24, 0")
    e("s_cbranch_scc0 K_SELB")
    srd(28, 4, 5, 2048*896)
    srd(32, 6, 7, 448*2688)
    srd(36, 8, 9, 448*896)
    e("s_branch K_A")
    lab("K_SELB")
    srd(28, 10, 11, 2048*896)
    srd(32, 12, 13, 448*2688)
    srd(36, 14, 15, 448*896)
    e("s_branch K_B")

def issue_step(vm, isB, i):
    q = []
    def hdr():
        e("s_mul_i32 s83, s81, 172032")
        e("s_add_u32 s83, s83, s56")
        e("s_lshl_b32 s85, s81, 7")
        e("s_add_u32 s81, s81, 1")
        e("s_cmp_eq_u32 s81, 7")
        e("s_cselect_b32 s81, 0, s81")
    def dma(j, first):
        def f():
            if first: hdr()
            if j < 5:
                e(f"s_add_u32 m0, s{50+j}, {i*REG}")
            else:
                e(f"s_mul_i32 s3, s57, {i*REG}")
                e(f"s_add_u32 m0, s55, s3")
            e("s_nop 0")
            e(f"buffer_load_dwordx4 v{8+j}, s[32:35], s83 offen lds")
            vm.issue(f"c{i}")
        return f
    def xl(kk, rt):
        def f():
            ks = 2*i + kk
            e(f"buffer_load_dwordx4 v[{XF+(ks*3+rt)*4}:{XF+(ks*3+rt)*4+3}], v{15+rt}, s[28:31], s85 offen offset:{kk*64}")
            vm.issue(f"c{i}")
        return f
    for j in range(6): q.append(dma(j, j == 0))
    for kk in range(2):
        for rt in range(3):
            if rt == 2 and not isB: continue
            q.append(xl(kk, rt))
    return q

def wo_voffs():
    e("s_lshr_b32 s3, s26, 1")
    e("s_mul_i32 s3, s3, 224")
    for t in range(7):
        e(f"v_add_u32 v3, {t*64}, v2")
        e("v_mul_u32_u24 v4, 4682, v3")
        e("v_lshrrev_b32 v4, 16, v4")
        e("v_mul_u32_u24 v5, 14, v4")
        e("v_sub_u32 v3, v3, v5")
        e("v_mul_u32_u24 v4, 896, v4")
        e("v_lshl_add_u32 v3, v3, 4, v4")
        e(f"v_add_u32 v{20+t}, s3, v3")

def wo_dma(vm):
    q = []
    def one(m, t):
        def f():
            if t == 0:
                if m < 3:
                    e(f"s_add_u32 s86, s48, {4*m}")
                else:
                    e("s_and_b32 s86, s48, 1")
                    e("s_add_u32 s86, s86, 12")
                e("s_mul_i32 s84, s86, 7168")
                e("s_mul_i32 s86, s86, 28672")
            e(f"s_add_u32 m0, s84, {t*1024}")
            e("s_nop 0")
            e(f"buffer_load_dwordx4 v{20+t}, s[36:39], s86 offen lds")
            vm.issue("wo")
        return f
    for m in range(4):
        for t in range(7):
            q.append(one(m, t))
    return q

def gemm(vm, isB):
    for r in range(4):
        e(f"v_mov_b32 v{4+r}, 0")
    e("v_mov_b32 v3, 0")
    e("v_cmp_eq_u32 vcc, 0, v0")
    e("s_and_saveexec_b64 s[62:63], vcc")
    e("buffer_store_dwordx4 v[4:7], v3, s[40:43], s60 offen sc0 sc1")
    if not isB:
        zs = uid("ZS")
        e("s_cmp_eq_u32 s25, 0")
        e(f"s_cbranch_scc0 {zs}")
        e("s_lshl_b32 s3, s26, 7")
        e(f"s_add_u32 s3, s3, 0x{KVC:x}")
        e("buffer_store_dword v4, v3, s[40:43], s3 offen sc0 sc1")
        e("s_mov_b64 exec, s[62:63]")
        e("s_lshl_b32 s3, s26, 13")
        e(f"s_add_u32 s3, s3, 0x{ACC:x}")
        e("v_lshlrev_b32 v3, 5, v0")
        e("buffer_store_dwordx4 v[4:7], v3, s[40:43], s3 offen sc0 sc1")
        e("buffer_store_dwordx4 v[4:7], v3, s[40:43], s3 offen offset:16 sc0 sc1")
        lab(zs)
    e("s_mov_b64 exec, s[62:63]")
    for i in range(DEPTH):
        for f in issue_step(vm, isB, i): f()
    for i in range(104):
        e(f"v_accvgpr_write_b32 a{i}, 0")
    wo_voffs()
    for ch in range(7):
        vm.wait(f"c{ch}")
        e("s_barrier")
        stamp(vm, 12 + ch)
        if ch == 0 and not isB:
            zs = uid("ZF")
            e("s_cmp_eq_u32 s25, 0")
            e(f"s_cbranch_scc0 {zs}")
            e("v_cmp_eq_u32 vcc, 0, v0")
            e("s_and_saveexec_b64 s[62:63], vcc")
            e("s_lshl_b32 s3, s26, 2")
            e(f"v_mov_b32 v3, {CNT_Z}")
            e("v_mov_b32 v4, 1")
            e("buffer_store_dword v4, v3, s[44:47], s3 offen sc0 sc1")
            e("s_mov_b64 exec, s[62:63]")
            lab(zs)
        pend = []
        if ch + DEPTH < 7:
            pend = issue_step(vm, isB, ch + DEPTH)
        if ch == 5:
            woq = wo_dma(vm)
            pend = woq[:14]
        if ch == 6:
            pend = woq[14:]
        nslots = 24
        per_slot = -(-len(pend) // nslots)
        if ch == 5 and not isB:
            e(f"v_mov_b32 v3, {CNT_Z}")
            e("s_lshl_b32 s3, s26, 2")
            e("buffer_load_dword v19, v3, s[44:47], s3 offen sc0 sc1")
            vm.issue("zchk")
        e(f"v_add_u32 v18, {ch*REG}, v14")
        for kk in range(2):
            ks = 2*ch + kk
            def rd(grp, buf):
                for t in range(4):
                    for hf in range(2):
                        off = (32*kk + 4*hf)*RS + grp*112 + (t >> 1)*56 + (t & 1)*32
                        r = BF + buf*16 + t*4 + hf*2
                        e(f"ds_read_b64_tr_b16 v[{r}:{r+1}], v18 offset:{off}")
            rd(0, 0)
            for grp in range(3):
                if grp < 2:
                    rd(grp+1, (grp+1) & 1)
                    e("s_waitcnt lgkmcnt(8)")
                else:
                    e("s_waitcnt lgkmcnt(0)")
                tr = (grp == 0) or (isB and grp == 1)
                for t in range(4):
                    ct = grp*4 + t
                    b = BF + (grp & 1)*16 + t*4
                    for rt in range(3):
                        if rt == 2 and (not isB or grp == 0): continue
                        x = XF + (ks*3+rt)*4
                        a = (rt*12 + ct)*4 if rt < 2 else 96 + (grp-1)*4
                        sk = None
                        if rt == 2:
                            sk = uid("HS")
                            e(f"s_cmp_eq_u32 s48, {t}")
                            e(f"s_cbranch_scc0 {sk}")
                        if tr:
                            e(f"v_mfma_f32_16x16x32_bf16 a[{a}:{a+3}], v[{b}:{b+3}], v[{x}:{x+3}], a[{a}:{a+3}]")
                        else:
                            e(f"v_mfma_f32_16x16x32_bf16 a[{a}:{a+3}], v[{x}:{x+3}], v[{b}:{b+3}], a[{a}:{a+3}]")
                        if sk: lab(sk)
                    for _ in range(per_slot):
                        if pend: pend.pop(0)()
        assert not pend

def poll(isB):
    lp = uid("POLL_LOOP"); dn = uid("POLL_DONE")
    e("s_cmp_eq_u32 s48, 0")
    e(f"s_cbranch_scc0 {dn}")
    e("s_mov_b32 s78, 0")
    e("v_mov_b32 v30, 0")
    lab(lp)
    e(f"buffer_load_dwordx3 v[{T}:{T+2}], v30, s[40:43], s60 offen sc0 sc1")
    e("s_waitcnt vmcnt(0)")
    e(f"v_readfirstlane_b32 s79, v{T+2}")
    if not isB:
        e(f"v_readfirstlane_b32 s3, v{T}")
        e(f"v_readfirstlane_b32 s27, v{T+1}")
        e("s_nop 3")
        e("s_and_b32 s3, s3, s27")
        e("s_cmp_eq_u32 s3, 0x01010101")
        e("s_cselect_b32 s79, s79, 0")
    else:
        e("s_nop 3")
    e("s_cmp_eq_u32 s79, 1")
    e(f"s_cbranch_scc1 {dn}")
    e("s_add_u32 s78, s78, 1")
    e("s_cmp_gt_u32 s78, 0x40000")
    e(f"s_cbranch_scc1 {dn}")
    e(f"s_branch {lp}")
    lab(dn)
    e("s_barrier")

def arrive_kv(wave):
    dn = uid("AKV")
    e(f"s_cmp_eq_u32 s48, {wave}")
    e(f"s_cbranch_scc0 {dn}")
    e("v_cmp_eq_u32 vcc, 0, v2")
    e("s_and_saveexec_b64 s[62:63], vcc")
    e("v_mov_b32 v3, 0")
    e("v_mov_b32 v4, 1")
    e("s_lshl_b32 s3, s26, 7")
    e(f"s_add_u32 s3, s3, 0x{KVC:x}")
    e("buffer_atomic_add v4, v3, s[40:43], s3 offen sc0 sc1")
    e("s_mov_b64 exec, s[62:63]")
    e("s_waitcnt vmcnt(0)")
    e("v_readfirstlane_b32 s79, v4")
    e("s_nop 3")
    e("s_cmp_eq_u32 s79, 15")
    e(f"s_cbranch_scc0 {dn}")
    e("v_lshlrev_b32 v3, 7, v2")
    e("v_add_u32 v3, s26, v3")
    e("v_mov_b32 v4, 1")
    e(f"s_mov_b32 s3, 0x{GO:x}")
    e("buffer_store_byte v4, v3, s[40:43], s3 offen sc0 sc1")
    e(f"s_mov_b32 s3, 0x{GO+8192:x}")
    e("buffer_store_byte v4, v3, s[40:43], s3 offen sc0 sc1")
    lab(dn)

def arrive_tile(wave):
    dn = uid("ATL")
    e(f"s_cmp_eq_u32 s48, {wave}")
    e(f"s_cbranch_scc0 {dn}")
    e("v_cmp_eq_u32 vcc, 0, v2")
    e("s_and_saveexec_b64 s[62:63], vcc")
    e("v_mov_b32 v3, 0")
    e("v_mov_b32 v4, 1")
    e("s_lshl_b32 s3, s24, 4")
    e("s_add_u32 s3, s3, s25")
    e("s_lshl_b32 s27, s3, 10")
    e("s_lshl_b32 s3, s3, 2")
    e("buffer_atomic_add v4, v3, s[44:47], s3 offen sc0 sc1")
    e("s_mov_b64 exec, s[62:63]")
    e("s_waitcnt vmcnt(0)")
    e("v_readfirstlane_b32 s79, v4")
    e("s_nop 3")
    e("s_cmp_eq_u32 s79, 7")
    e(f"s_cbranch_scc0 {dn}")
    e("v_lshlrev_b32 v3, 7, v2")
    e("v_mov_b32 v4, 1")
    e(f"s_add_u32 s3, s27, 0x{GO+8:x}")
    e("v_cmp_gt_u32 vcc, 8, v2")
    e("s_and_saveexec_b64 s[62:63], vcc")
    e("buffer_store_dword v4, v3, s[40:43], s3 offen sc0 sc1")
    e("s_mov_b64 exec, s[62:63]")
    lab(dn)

def tile_flush(vm, lds_base, gbase):
    e("s_waitcnt lgkmcnt(0)")
    e("s_barrier")
    e("v_lshlrev_b32 v3, 4, v0")
    e(f"v_add_u32 v4, {lds_base}, v3")
    for it in range(4):
        e(f"ds_read_b128 v[{T+it*4}:{T+it*4+3}], v4 offset:{it*4096}")
    e("s_lshl_b32 s3, s25, 3")
    e("s_add_u32 s3, s3, s26")
    e("s_mul_i32 s3, s3, 14336")
    e(f"s_add_u32 s3, s3, 0x{gbase:x}")
    e("v_add_u32 v4, 8192, v3")
    e("v_cmp_gt_u32 vcc, 128, v0")
    for it in range(4):
        e(f"s_waitcnt lgkmcnt({3-it})")
        if it == 3:
            e("s_and_saveexec_b64 s[62:63], vcc")
        e(f"buffer_store_dwordx4 v[{T+it*4}:{T+it*4+3}], v{3 if it < 2 else 4}, s[40:43], s3 offen offset:{(it&1)*4096 - (0)} sc0 sc1") if (it&1)==0 else (
            e(f"v_add_u32 v5, 4096, v{3 if it < 2 else 4}"),
            e(f"buffer_store_dwordx4 v[{T+it*4}:{T+it*4+3}], v5, s[40:43], s3 offen sc0 sc1"))
        vm.issue("tile")
        if it == 3:
            e("s_mov_b64 exec, s[62:63]")

def acc_read4(dst, a):
    for r in range(4):
        e(f"v_accvgpr_read_b32 v{dst+r}, a{a+r}")

def epi_A(vm):
    c("---- A epilogue: KV partial first ----")
    e("s_nop 7")
    e("s_nop 7")
    e("v_and_b32 v5, 15, v2")
    e("v_lshrrev_b32 v6, 4, v2")
    e("v_cmp_le_u32 s[64:65], 12, v5")
    PK = 32; VV = 48; KP = 64
    for t in range(4):
        for rt in range(2):
            acc_read4(T+8, (rt*12 + 4 + t)*4)
            phi_pair(PK + t*4 + rt*2, T+8, T+9, T)
            phi_pair(PK + t*4 + rt*2 + 1, T+10, T+11, T+2)
    e("v_mov_b32 v7, 0x3f803f80")
    for t in range(4):
        for rt in range(2):
            acc_read4(T+8, (rt*12 + 8 + t)*4)
            d = VV + t*4 + rt*2
            e(f"v_cvt_pk_bf16_f32 v{d}, v{T+8}, v{T+9}")
            e(f"v_cvt_pk_bf16_f32 v{d+1}, v{T+10}, v{T+11}")
            if t & 1:
                e(f"v_cndmask_b32 v{d}, v{d}, v7, s[64:65]")
                e(f"v_cndmask_b32 v{d+1}, v{d+1}, v7, s[64:65]")
    e("s_nop 1")
    for hh in range(2):
        for et in range(2):
            for dt in range(2):
                d = KP + (hh*4 + et*2 + dt)*4
                va = VV + (hh*2+et)*4; pk = PK + (hh*2+dt)*4
                e(f"v_mfma_f32_16x16x32_bf16 v[{d}:{d+3}], v[{va}:{va+3}], v[{pk}:{pk+3}], 0")
    e("s_lshl_b32 s3, s48, 13")
    e(f"s_add_u32 s3, s3, {SCR}")
    e("v_lshlrev_b32 v3, 4, v2")
    e("v_add_u32 v4, s3, v3")
    e("s_nop 7")
    e("s_nop 3")
    for i in range(8):
        e(f"ds_write_b128 v4, v[{KP+i*4}:{KP+i*4+3}] offset:{i*1024}")
    e("s_waitcnt lgkmcnt(0)")
    e("s_barrier")
    e("s_lshl_b32 s3, s48, 11")
    e(f"s_add_u32 s3, s3, {SCR}")
    e("v_add_u32 v4, s3, v3")
    for dt in range(2):
        for w in range(4):
            r = 96 + (dt*4 + w)*4
            e(f"ds_read_b128 v[{r}:{r+3}], v4 offset:{w*8192 + dt*1024}")
    e("s_lshr_b32 s3, s48, 1")
    e("s_lshl_b32 s27, s26, 1")
    e("s_add_u32 s3, s3, s27")
    e("s_lshl_b32 s3, s3, 12")
    e("s_and_b32 s27, s48, 1")
    e("s_lshl_b32 s58, s27, 11")
    e("s_add_u32 s3, s3, s58")
    e(f"s_add_u32 s59, s3, 0x{ACC:x}")
    e("v_lshlrev_b32 v8, 9, v6")
    e("v_lshl_add_u32 v8, v5, 2, v8")
    e("v_cmp_gt_u32 s[66:67], 3, v6")
    e("s_cmp_eq_u32 s27, 1")
    e("s_cselect_b64 s[66:67], s[66:67], -1")
    e("v_cmp_gt_u32 s[68:69], 12, v5")
    e("s_waitcnt lgkmcnt(0)")
    for dt in range(2):
        b = 96 + dt*16
        for r in range(4):
            e(f"v_add_f32 v{b+r}, v{b+r}, v{b+4+r}")
            e(f"v_add_f32 v{b+8+r}, v{b+8+r}, v{b+12+r}")
        for r in range(4):
            e(f"v_add_f32 v{b+r}, v{b+r}, v{b+8+r}")
    vm.wait("zchk")
    zl = uid("ZL"); zd = uid("ZD")
    e("s_mov_b32 s78, 0")
    lab(zl)
    e("v_readfirstlane_b32 s79, v19")
    e("s_nop 3")
    e("s_cmp_eq_u32 s79, 1")
    e(f"s_cbranch_scc1 {zd}")
    e("s_add_u32 s78, s78, 1")
    e("s_cmp_gt_u32 s78, 0x40000")
    e(f"s_cbranch_scc1 {zd}")
    e("s_sleep 1")
    e(f"v_mov_b32 v3, {CNT_Z}")
    e("s_lshl_b32 s3, s26, 2")
    e("buffer_load_dword v19, v3, s[44:47], s3 offen sc0 sc1")
    e("s_waitcnt vmcnt(0)")
    e(f"s_branch {zl}")
    lab(zd)
    e("s_mov_b64 s[62:63], exec")
    for dt in range(2):
        for r in range(4):
            m = None
            if dt == 1 and r > 0:
                e("s_and_b64 exec, s[66:67], s[68:69]")
            elif dt == 1:
                e("s_mov_b64 exec, s[68:69]")
            elif r > 0:
                e("s_mov_b64 exec, s[66:67]")
            e(f"buffer_atomic_add_f32 v{96+dt*16+r}, v8, s[40:43], s59 offen offset:{r*128 + dt*64} sc0 sc1")
            vm.issue("kvat")
    e("s_mov_b64 exec, s[62:63]")
    stamp(vm, 4)
    c("---- phi(q) frags in regs ----")
    QF = 128
    for rt in range(2):
        for t in range(4):
            acc_read4(T+8, (rt*12 + t)*4)
            d = QF + (rt*2 + (t >> 1))*4 + (t & 1)*2
            phi_pair(d, T+8, T+9, T)
            phi_pair(d+1, T+10, T+11, T+2)
    e("v_lshl_add_u32 v9, v1, 5, v5")
    e("v_mul_u32_u24 v9, 112, v9")
    e("v_lshl_add_u32 v9, v6, 3, v9")
    e(f"v_add_u32 v9, {TILE_A}, v9")
    e("v_cmp_gt_u32 s[64:65], 3, v6")
    e("v_lshlrev_b32 v10, 7, v5")
    e("v_lshl_add_u32 v10, v6, 4, v10")
    e("v_lshlrev_b32 v11, 4, v6")
    e("s_lshl_b32 s59, s26, 13")
    e(f"s_add_u32 s59, s59, 0x{ACC:x}")
    e("s_waitcnt vmcnt(0)")
    e("s_barrier")
    dn = uid("KVD"); lp = uid("KVL")
    e("s_cmp_eq_u32 s48, 0")
    e(f"s_cbranch_scc0 {dn}")
    e("v_cmp_eq_u32 vcc, 0, v2")
    e("s_and_saveexec_b64 s[62:63], vcc")
    e("v_mov_b32 v3, 0")
    e("v_mov_b32 v4, 1")
    e("s_lshl_b32 s3, s26, 7")
    e(f"s_add_u32 s3, s3, 0x{KVC:x}")
    e("buffer_atomic_add v4, v3, s[40:43], s3 offen sc0 sc1")
    e("s_waitcnt vmcnt(0)")
    e("v_readfirstlane_b32 s79, v4")
    e("s_mov_b32 s78, 0")
    e("s_nop 2")
    e("s_add_u32 s79, s79, 1")
    lab(lp)
    e("s_cmp_ge_u32 s79, 16")
    e(f"s_cbranch_scc1 {dn}_x")
    e("s_add_u32 s78, s78, 1")
    e("s_cmp_gt_u32 s78, 0x40000")
    e(f"s_cbranch_scc1 {dn}_x")
    e("buffer_load_dword v4, v3, s[40:43], s3 offen sc0 sc1")
    e("s_waitcnt vmcnt(0)")
    e("v_readfirstlane_b32 s79, v4")
    e("s_nop 3")
    e(f"s_branch {lp}")
    lab(f"{dn}_x")
    e("s_mov_b64 exec, s[62:63]")
    lab(dn)
    e("s_barrier")
    stamp(vm, 10)
    R = 144
    for hh in range(2):
        for f in range(3):
            r = R + (hh*3+f)*8
            va = 10 if f < 2 else 11
            off = hh*4096 + (f*2048 if f < 2 else 28*128)
            if hh == 1:
                off -= 4096
            e(f"buffer_load_dwordx4 v[{r}:{r+3}], v{va}, s[40:43], s59 offen offset:{off}{SCA}")
            e(f"buffer_load_dwordx4 v[{r+4}:{r+7}], v{va}, s[40:43], s59 offen offset:{off+64}{SCA}")
        if hh == 0: e("s_add_u32 s59, s59, 4096")
    NR = 32
    for hh in range(2):
        for f in range(3):
            r = R + (hh*3+f)*8
            e(f"s_waitcnt vmcnt({10 - 2*(hh*3+f)})")
            for q in range(4):
                e(f"v_cvt_pk_bf16_f32 v{r+q}, v{r+2*q}, v{r+2*q+1}")
        e("s_nop 0")
        for rt in range(2):
            n = NR + (hh*2+rt)*12
            q = QF + (rt*2+hh)*4
            for f in range(3):
                r = R + (hh*3+f)*8
                e(f"v_mfma_f32_16x16x32_bf16 v[{n+f*4}:{n+f*4+3}], v[{r}:{r+3}], v[{q}:{q+3}], 0")
    stamp(vm, 11)
    e("s_nop 7")
    e("s_nop 3")
    for hh in range(2):
        for rt in range(2):
            n = NR + (hh*2+rt)*12
            e(f"v_cvt_pk_bf16_f32 v24, v{n+8}, v{n+8}")
            e("v_lshlrev_b32 v24, 16, v24")
            e(f"v_add_f32 v24, 0x{EPS:x}, v24")
            e("v_cvt_pk_bf16_f32 v24, v24, v24")
            e("v_lshlrev_b32 v24, 16, v24")
            e("v_rcp_f32 v24, v24")
            e("s_nop 0")
            for q in range(4):
                e(f"v_cvt_pk_bf16_f32 v25, v{n+2*q}, v{n+2*q+1}")
                unpack(26, 27, 25)
                e("v_mul_f32 v26, v26, v24")
                e("v_mul_f32 v27, v27, v24")
                e(f"v_cvt_pk_bf16_f32 v{n+q}, v26, v27")
            e(f"ds_write_b64 v9, v[{n}:{n+1}] offset:{rt*1792 + hh*56}")
            e("s_and_saveexec_b64 s[62:63], s[64:65]")
            e(f"ds_write_b64 v9, v[{n+2}:{n+3}] offset:{rt*1792 + hh*56 + 32}")
            e("s_mov_b64 exec, s[62:63]")
    tile_flush(vm, TILE_A, PQ_A)
    e("s_waitcnt vmcnt(0)")
    e("s_barrier")
    arrive_tile(0)
    stamp(vm, 5)

def epi_B(vm):
    c("---- B epilogue: MFMA banded attention ----")
    QF = 32; KF = 48; VF = 72
    e("s_nop 7")
    e("s_nop 7")
    e("v_and_b32 v5, 15, v2")
    e("v_lshrrev_b32 v6, 4, v2")
    e("v_cmp_gt_u32 s[64:65], 3, v6")
    e("v_lshlrev_b32 v3, 4, v2")
    e("v_lshlrev_b32 v7, 3, v2")
    acc_read4(T, 96)
    acc_read4(T+4, 100)
    e(f"v_cvt_pk_bf16_f32 v{T+8}, v{T}, v{T+1}")
    e(f"v_cvt_pk_bf16_f32 v{T+9}, v{T+2}, v{T+3}")
    e(f"v_cvt_pk_bf16_f32 v{T+10}, v{T+4}, v{T+5}")
    e(f"v_cvt_pk_bf16_f32 v{T+11}, v{T+6}, v{T+7}")
    e("s_lshr_b32 s3, s48, 1")
    e("s_lshl_b32 s3, s3, 10")
    e("s_and_b32 s27, s48, 1")
    e("s_lshl_b32 s27, s27, 3")
    e("s_add_u32 s3, s3, s27")
    e(f"s_add_u32 s3, s3, {SCR}")
    e("v_add_u32 v4, s3, v3")
    e(f"ds_write_b64 v4, v[{T+8}:{T+9}]")
    e("s_lshl_b32 s3, s48, 9")
    e(f"s_add_u32 s3, s3, {SCR + 2048}")
    e("v_add_u32 v4, s3, v7")
    e(f"ds_write_b64 v4, v[{T+10}:{T+11}]")
    for hh in range(2):
        for dt in range(2):
            acc_read4(T, (12 + 4 + hh*2 + dt)*4)
            d = KF + (2*2+hh)*4 + dt*2
            e(f"v_cvt_pk_bf16_f32 v{d}, v{T}, v{T+1}")
            e(f"v_cvt_pk_bf16_f32 v{d+1}, v{T+2}, v{T+3}")
        for et in range(2):
            acc_read4(T, (12 + 8 + hh*2 + et)*4)
            d = VF + (hh*2+et)*6 + 4
            e(f"v_cvt_pk_bf16_f32 v{d}, v{T}, v{T+1}")
            e(f"v_cvt_pk_bf16_f32 v{d+1}, v{T+2}, v{T+3}")
    e("s_lshl_b32 s3, s48, 12")
    e(f"s_add_u32 s3, s3, {SCR + 4096}")
    e("v_add_u32 v4, s3, v3")
    e("v_add_u32 v8, s3, v7")
    for hh in range(2):
        d = KF + (2*2+hh)*4
        e(f"ds_write_b128 v4, v[{d}:{d+3}] offset:{hh*1024}")
        for et in range(2):
            d = VF + (hh*2+et)*6 + 4
            e(f"ds_write_b64 v8, v[{d}:{d+1}] offset:{2048 + (hh*2+et)*512}")
    for rt in range(2):
        for hh in range(2):
            for dt in range(2):
                acc_read4(T, (rt*12 + hh*2 + dt)*4)
                d = QF + (rt*2+hh)*4 + dt*2
                e(f"v_cvt_pk_bf16_f32 v{d}, v{T}, v{T+1}")
                e(f"v_cvt_pk_bf16_f32 v{d+1}, v{T+2}, v{T+3}")
                if dt == 1:
                    e(f"v_cndmask_b32 v{d}, 0, v{d}, s[64:65]")
                    e(f"v_cndmask_b32 v{d+1}, 0, v{d+1}, s[64:65]")
    for hh in range(2):
        for dt in range(2):
            acc_read4(T, (4 + hh*2 + dt)*4)
            d = KF + (1*2+hh)*4 + dt*2
            e(f"v_cvt_pk_bf16_f32 v{d}, v{T}, v{T+1}")
            e(f"v_cvt_pk_bf16_f32 v{d+1}, v{T+2}, v{T+3}")
        for et in range(2):
            acc_read4(T, (8 + hh*2 + et)*4)
            d = VF + (hh*2+et)*6 + 2
            e(f"v_cvt_pk_bf16_f32 v{d}, v{T}, v{T+1}")
            e(f"v_cvt_pk_bf16_f32 v{d+1}, v{T+2}, v{T+3}")
    e("s_waitcnt lgkmcnt(0)")
    e("s_barrier")
    e("s_lshl_b32 s3, s48, 12")
    e(f"s_add_u32 s3, s3, {SCR}")
    e("v_add_u32 v4, s3, v3")
    e("v_add_u32 v8, s3, v7")
    for hh in range(2):
        d = KF + hh*4
        e(f"ds_read_b128 v[{d}:{d+3}], v4 offset:{hh*1024}")
        for et in range(2):
            d = VF + (hh*2+et)*6
            e(f"ds_read_b64 v[{d}:{d+1}], v8 offset:{2048 + (hh*2+et)*512}")
    e("v_and_b32 v9, 1, v5")
    e("v_cmp_eq_u32 s[4:5], 1, v9")
    e("v_mov_b32 v10, 0xffff")
    e("v_mov_b32 v11, 0xffff0000")
    e("v_cndmask_b32 v10, v10, v11, s[4:5]")
    e("v_lshl_add_u32 v11, v6, 2, v9")
    e("v_sub_u32 v11, v11, v5")
    for k in range(4):
        addk = 2*k if k < 2 else 16 + 2*(k-2)
        e(f"v_add_u32 v12, {addk}, v11")
        e(f"v_cmp_le_i32 s[{6+2*k}:{7+2*k}], 2, v12")
        e(f"v_cmp_ge_i32 vcc, 16, v12")
        e(f"s_and_b64 s[{6+2*k}:{7+2*k}], s[{6+2*k}:{7+2*k}], vcc")
    e("s_or_b32 s3, s25, s48")
    e("s_cmp_eq_u32 s3, 0")
    e("s_cselect_b64 s[14:15], 0, -1")
    e("s_and_b64 s[16:17], s[6:7], s[14:15]")
    e("s_and_b64 s[18:19], s[8:9], s[14:15]")
    e("v_lshl_add_u32 v4, v1, 5, v5")
    e("v_mul_u32_u24 v4, 112, v4")
    e("v_lshl_add_u32 v4, v6, 3, v4")
    e(f"v_add_u32 v4, {SCR + 20480}, v4")
    e("s_waitcnt lgkmcnt(0)")
    S = 96
    for rt in range(2):
        for hh in range(2):
            sb = S + (rt*2+hh)*8
            q = QF + (rt*2+hh)*4
            for ti in range(2):
                k = KF + ((rt+ti)*2+hh)*4
                e(f"v_mfma_f32_16x16x32_bf16 v[{sb+ti*4}:{sb+ti*4+3}], v[{k}:{k+3}], v[{q}:{q+3}], 0")
    e("s_nop 7")
    e("s_nop 3")
    e("v_mov_b32 v20, 0xce6e6b28")
    P = 128
    W = 144
    for rt in range(2):
        for hh in range(2):
            cb = rt*2+hh
            sb = S + cb*8
            lg = W
            for k in range(4):
                e(f"v_cndmask_b32 v{lg+k}, v{sb+2*k}, v{sb+2*k+1}, s[4:5]")
            for k in (0, 2):
                e(f"v_cvt_pk_bf16_f32 v{W+4}, v{lg+k}, v{lg+k+1}")
                unpack(W+5, W+6, W+4)
                e(f"v_mul_f32 v{W+5}, 0x{SCALE:x}, v{W+5}")
                e(f"v_mul_f32 v{W+6}, 0x{SCALE:x}, v{W+6}")
                e(f"v_cvt_pk_bf16_f32 v{W+4}, v{W+5}, v{W+6}")
                unpack(lg+k, lg+k+1, W+4)
            for k in range(4):
                ms = (16 + 2*k) if (rt == 0 and k < 2) else (6 + 2*k)
                e(f"v_cndmask_b32 v{lg+k}, v20, v{lg+k}, s[{ms}:{ms+1}]")
            e(f"v_max3_f32 v{W+4}, v{lg}, v{lg+1}, v{lg+2}")
            e(f"v_max_f32 v{W+4}, v{W+4}, v{lg+3}")
            e(f"v_mov_b32 v{W+5}, v{W+4}")
            e("s_nop 1")
            e(f"v_permlane16_swap_b32 v{W+4}, v{W+5}")
            e("s_nop 1")
            e(f"v_max_f32 v{W+4}, v{W+4}, v{W+5}")
            e(f"v_mov_b32 v{W+5}, v{W+4}")
            e("s_nop 1")
            e(f"v_permlane32_swap_b32 v{W+4}, v{W+5}")
            e("s_nop 1")
            e(f"v_max_f32 v{W+4}, v{W+4}, v{W+5}")
            for k in range(4):
                e(f"v_sub_f32 v{lg+k}, v{lg+k}, v{W+4}")
                e(f"v_mul_f32 v{lg+k}, 0x{LOG2E:x}, v{lg+k}")
                e(f"v_exp_f32 v{lg+k}, v{lg+k}")
            e("s_nop 0")
            e(f"v_add_f32 v{W+4}, v{lg}, v{lg+1}")
            e(f"v_add_f32 v{W+5}, v{lg+2}, v{lg+3}")
            e(f"v_add_f32 v{W+4}, v{W+4}, v{W+5}")
            e(f"v_mov_b32 v{W+5}, v{W+4}")
            e("s_nop 1")
            e(f"v_permlane16_swap_b32 v{W+4}, v{W+5}")
            e("s_nop 1")
            e(f"v_add_f32 v{W+4}, v{W+4}, v{W+5}")
            e(f"v_mov_b32 v{W+5}, v{W+4}")
            e("s_nop 1")
            e(f"v_permlane32_swap_b32 v{W+4}, v{W+5}")
            e("s_nop 1")
            e(f"v_add_f32 v{W+4}, v{W+4}, v{W+5}")
            e(f"v_rcp_f32 v{W+4}, v{W+4}")
            e("s_nop 0")
            for k in range(4):
                e(f"v_mul_f32 v{lg+k}, v{lg+k}, v{W+4}")
                e(f"v_cvt_pk_bf16_f32 v{P+cb*4+k}, v{lg+k}, v{lg+k}")
                e(f"v_and_b32 v{P+cb*4+k}, v{P+cb*4+k}, v10")
    e("s_nop 1")
    O = 160
    for rt in range(2):
        for hh in range(2):
            cb = rt*2+hh
            for et in range(2):
                o = O + (cb*2+et)*4
                v = VF + (hh*2+et)*6 + 2*rt
                e(f"v_mfma_f32_16x16x32_bf16 v[{o}:{o+3}], v[{v}:{v+3}], v[{P+cb*4}:{P+cb*4+3}], 0")
    e("s_nop 7")
    e("s_nop 3")
    for rt in range(2):
        for hh in range(2):
            cb = rt*2+hh
            for et in range(2):
                o = O + (cb*2+et)*4
                e(f"v_cvt_pk_bf16_f32 v{o}, v{o}, v{o+1}")
                e(f"v_cvt_pk_bf16_f32 v{o+1}, v{o+2}, v{o+3}")
                if et == 1:
                    e("s_and_saveexec_b64 s[62:63], s[64:65]")
                e(f"ds_write_b64 v4, v[{o}:{o+1}] offset:{rt*1792 + hh*56 + et*32}")
                if et == 1:
                    e("s_mov_b64 exec, s[62:63]")
    tile_flush(vm, SCR + 20480, O_B)
    e("s_waitcnt vmcnt(0)")
    e("s_barrier")
    arrive_tile(0)
    stamp(vm, 5)

def p2_common():
    e("v_lshrrev_b32 v3, 4, v2")
    e("v_and_b32 v4, 15, v2")
    e("s_lshl_b32 s3, s25, 7")
    e("s_and_b32 s27, s26, 1")
    e("s_lshl_b32 s27, s27, 6")
    e("s_add_u32 s3, s3, s27")
    e("v_lshl_add_u32 v5, v1, 4, v4")
    e("v_add_u32 v5, s3, v5")
    e("v_lshl_add_u32 v6, v1, 4, v4")
    e("v_add_u32 v6, s27, v6")
    e("v_mul_u32_u24 v6, 112, v6")
    e("v_lshlrev_b32 v7, 4, v2")
    e("v_mul_u32_u24 v8, 1792, v5")
    e("v_lshl_add_u32 v8, v3, 3, v8")
    e("s_mul_i32 s3, s24, 896")
    e("s_lshr_b32 s27, s26, 1")
    e("s_mul_i32 s27, s27, 224")
    e("s_add_u32 s3, s3, s27")
    e("v_add_u32 v8, s3, v8")
    for i in range(28):
        e(f"v_accvgpr_write_b32 a{i}, 0")

def p2_out():
    e("s_nop 7")
    e("s_nop 7")
    for nt in range(7):
        acc_read4(12, nt*4)
        e("v_cvt_pk_bf16_f32 v16, v12, v13")
        e("v_cvt_pk_bf16_f32 v17, v14, v15")
        e(f"buffer_store_dwordx2 v[16:17], v8, s[88:91], 0 offen offset:{nt*32}")
        e("s_nop 1")

def p2_A(vm):
    c("---- P2 A ----")
    p2_common()
    e("v_bfe_u32 v9, v2, 2, 2")
    e("v_lshl_add_u32 v9, v3, 2, v9")
    e("v_mul_u32_u24 v9, 224, v9")
    e("v_and_b32 v10, 3, v2")
    e("v_lshl_add_u32 v9, v10, 3, v9")
    e("v_add_u32 v10, 3584, v9")
    e("v_cmp_gt_u32 s[64:65], 3, v3")
    e("s_nop 1")
    e("v_cndmask_b32 v10, v9, v10, s[64:65]")
    poll(False)
    stamp(vm, 6)
    PQ = 32
    e("v_lshl_add_u32 v11, v3, 4, v6")
    e("s_mul_i32 s3, s25, 114688")
    e(f"s_add_u32 s3, s3, 0x{PQ_A:x}")
    for h in range(16):
        e(f"buffer_load_dwordx4 v[{PQ+h*4}:{PQ+h*4+3}], v11, s[40:43], s3 offen offset:{(h&1)*56}{SCT}")
        if h & 1: e("s_add_u32 s3, s3, 14336")
    if os.environ.get("X1"):
        e("s_waitcnt vmcnt(0)")
        stamp(vm, 10)
    e("v_lshlrev_b32 v11, 7, v4")
    e("v_lshl_add_u32 v11, v3, 5, v11")
    e("s_lshl_b32 s3, s48, 14")
    e(f"s_add_u32 s3, s3, 0x{ACC:x}")
    R = 96
    for hq in range(4):
        for f in range(2):
            r = R + (hq*2+f)*8
            e(f"buffer_load_dwordx4 v[{r}:{r+3}], v11, s[40:43], s3 offen offset:{f*2048}{SCA}")
            e(f"buffer_load_dwordx4 v[{r+4}:{r+7}], v11, s[40:43], s3 offen offset:{f*2048+16}{SCA}")
        e("s_add_u32 s3, s3, 4096")
    if os.environ.get("X1"):
        e("s_waitcnt vmcnt(0)")
        stamp(vm, 11)
        e("s_waitcnt vmcnt(0)")
    e("s_lshl_b32 s3, s48, 13")
    e(f"s_add_u32 s3, s3, {SCR}")
    e("v_add_u32 v11, s3, v7")
    for hq in range(4):
        for f in range(2):
            r = R + (hq*2+f)*8
            e(f"s_waitcnt vmcnt({14 - 2*(hq*2+f)})")
            for q in range(4):
                e(f"v_cvt_pk_bf16_f32 v{r+q}, v{r+2*q}, v{r+2*q+1}")
            e(f"ds_write_b128 v11, v[{r}:{r+3}] offset:{(hq*2+f)*1024}")
    e("s_waitcnt lgkmcnt(0)")
    e("s_barrier")
    stamp(vm, 7)
    for h in range(16):
        e(f"v_cndmask_b32 v{PQ+h*4+2}, 0, v{PQ+h*4+2}, s[64:65]")
        e(f"v_cndmask_b32 v{PQ+h*4+3}, 0, v{PQ+h*4+3}, s[64:65]")
    e(f"v_add_u32 v11, {SCR}, v7")
    e("v_lshlrev_b32 v12, 8, v3")
    e(f"v_add_u32 v12, {SCR + 1024 + 192}, v12")
    KVR = 96; NR = 144; OF = 192
    for hg in range(4):
        for hq in range(4):
            h = hg*4 + hq
            r = KVR + hq*12
            e(f"ds_read_b128 v[{r}:{r+3}], v11 offset:{h*2048}")
            e(f"ds_read_b128 v[{r+4}:{r+7}], v11 offset:{h*2048+1024}")
            e(f"ds_read_b128 v[{r+8}:{r+11}], v12 offset:{h*2048}")
        for hq in range(4):
            h = hg*4 + hq
            r = KVR + hq*12; n = NR + hq*12
            e(f"s_waitcnt lgkmcnt({9 - 3*hq})")
            for f in range(3):
                e(f"v_mfma_f32_16x16x32_bf16 v[{n+f*4}:{n+f*4+3}], v[{r+f*4}:{r+f*4+3}], v[{PQ+h*4}:{PQ+h*4+3}], 0")
        e("s_nop 7")
        e("s_nop 3")
        for hq in range(4):
            h = hg*4 + hq
            n = NR + hq*12
            e(f"v_cvt_pk_bf16_f32 v24, v{n+8}, v{n+8}")
            e("v_lshlrev_b32 v24, 16, v24")
            e(f"v_add_f32 v24, 0x{EPS:x}, v24")
            e("v_cvt_pk_bf16_f32 v24, v24, v24")
            e("v_lshlrev_b32 v24, 16, v24")
            e("v_rcp_f32 v24, v24")
            e("s_nop 0")
            for q in range(4):
                e(f"v_cvt_pk_bf16_f32 v25, v{n+2*q}, v{n+2*q+1}")
                unpack(26, 27, 25)
                e("v_mul_f32 v26, v26, v24")
                e("v_mul_f32 v27, v27, v24")
                e(f"v_cvt_pk_bf16_f32 v{OF+h*4+q}, v26, v27")
            e(f"v_cndmask_b32 v{OF+h*4+2}, 0, v{OF+h*4+2}, s[64:65]")
            e(f"v_cndmask_b32 v{OF+h*4+3}, 0, v{OF+h*4+3}, s[64:65]")
    stamp(vm, 8)
    def rdh(h):
        bb = 32 + (h & 1)*28
        e(f"v_add_u32 v13, {h*28*224}, v9")
        e(f"v_add_u32 v14, {h*28*224}, v10")
        for nt in range(7):
            e(f"ds_read_b64_tr_b16 v[{bb+nt*4}:{bb+nt*4+1}], v13 offset:{nt*32}")
            e(f"ds_read_b64_tr_b16 v[{bb+nt*4+2}:{bb+nt*4+3}], v14 offset:{nt*32}")
    rdh(0)
    for h in range(16):
        if h < 15:
            rdh(h+1)
            e("s_waitcnt lgkmcnt(14)")
        else:
            e("s_waitcnt lgkmcnt(0)")
        bb = 32 + (h & 1)*28
        for nt in range(7):
            e(f"v_mfma_f32_16x16x32_bf16 a[{nt*4}:{nt*4+3}], v[{bb+nt*4}:{bb+nt*4+3}], v[{OF+h*4}:{OF+h*4+3}], a[{nt*4}:{nt*4+3}]")
    p2_out()
    stamp(vm, 9)

def p2_B(vm, isB=True):
    c("---- P2 B ----")
    p2_common()
    e("v_bfe_u32 v9, v2, 2, 2")
    e("v_lshl_add_u32 v9, v3, 3, v9")
    e("v_mul_u32_u24 v9, 224, v9")
    e("v_and_b32 v10, 3, v2")
    e("v_lshl_add_u32 v9, v10, 3, v9")
    for ks in range(14):
        e(f"v_add_u32 v11, {4*ks}, v3")
        e("v_mul_u32_u24 v12, 37, v11")
        e("v_lshrrev_b32 v12, 8, v12")
        e("v_mul_u32_u24 v13, 7, v12")
        e("v_sub_u32 v11, v11, v13")
        e("v_mul_u32_u24 v12, 14336, v12")
        e("v_lshl_add_u32 v11, v11, 4, v12")
        e(f"v_add_u32 v{160+ks}, v11, v6")
    poll(True)
    stamp(vm, 6)
    OFR = 96
    e("s_mul_i32 s3, s25, 114688")
    e(f"s_add_u32 s3, s3, 0x{O_B if isB else PQ_A:x}")
    for ks in range(14):
        e(f"buffer_load_dwordx4 v[{OFR+ks*4}:{OFR+ks*4+3}], v{160+ks}, s[40:43], s3 offen{SCT}")
    def rdk(ks):
        bb = 32 + (ks & 1)*28
        e(f"v_add_u32 v13, {ks*32*224}, v9")
        for nt in range(7):
            e(f"ds_read_b64_tr_b16 v[{bb+nt*4}:{bb+nt*4+1}], v13 offset:{nt*32}")
            e(f"ds_read_b64_tr_b16 v[{bb+nt*4+2}:{bb+nt*4+3}], v13 offset:{nt*32 + 4*224}")
    rdk(0)
    for ks in range(14):
        if ks < 13:
            rdk(ks+1)
            e("s_waitcnt lgkmcnt(14)")
        else:
            e("s_waitcnt lgkmcnt(0)")
        e(f"s_waitcnt vmcnt({13-ks})")
        bb = 32 + (ks & 1)*28
        for nt in range(7):
            e(f"v_mfma_f32_16x16x32_bf16 a[{nt*4}:{nt*4+3}], v[{bb+nt*4}:{bb+nt*4+3}], v[{OFR+ks*4}:{OFR+ks*4+3}], a[{nt*4}:{nt*4+3}]")
    p2_out()
    stamp(vm, 9)

def kernel():
    lab(f"{NAME}_kernel")
    prologue()
    lab("K_A")
    vm = VM()
    stamp(vm, 0)
    gemm(vm, False)
    stamp(vm, 3)
    epi_A(vm)
    p2_B(vm, False)
    e("s_branch K_END")
    lab("K_B")
    vm = VM()
    stamp(vm, 0)
    gemm(vm, True)
    stamp(vm, 3)
    epi_B(vm)
    p2_B(vm)
    lab("K_END")
    e("s_endpgm")

HDR = open("cdna_kernels/" + NAME + ".s.ref").read().split("; @launch")[0]
kernel()
out = HDR
out += f"; @launch grid=(256,1,1) block=(256,1,1) lds={LDS_TOTAL}\n"
out += '.amdgcn_target "amdgcn-amd-amdhsa--gfx950"\n.text\n'
out += f".globl {NAME}_kernel\n.p2align 8\n.type {NAME}_kernel,@function\n"
out += "\n".join(L) + "\n"
out += f""".section .rodata,"a"
.p2align 6
.amdhsa_kernel {NAME}_kernel
  .amdhsa_next_free_vgpr 384
  .amdhsa_next_free_sgpr 96
  .amdhsa_accum_offset 256
  .amdhsa_group_segment_fixed_size 0
  .amdhsa_kernarg_size 72
  .amdhsa_user_sgpr_count 2
  .amdhsa_user_sgpr_kernarg_segment_ptr 1
  .amdhsa_system_sgpr_workgroup_id_x 1
.end_amdhsa_kernel
"""
path = sys.argv[1] if len(sys.argv) > 1 else f"cdna_kernels/{NAME}.s"
open(path, "w").write(out)
```

```python
import sys, os, struct
NAME = "concat_heads__linear_attn_block__sliding_local_dilated__prompt"
PQ_A = 0
O_B = 0x1C0000
ACC = 0x380000
GO = 0x390000
KVC = 0x398000
WS_END = 0x3A0000
STAMP = os.environ.get("STAMP") == "1"
if STAMP: WS_END = 0x800000
LOG2E = 0x3FB8AA3B
EPS = 0x358637BD
SCALE = 0x3E41848F
assert abs(struct.unpack('<f', struct.pack('<I', SCALE))[0] - 28 ** -0.5) < 1e-7
for s in range(1600): assert (s * 2979) >> 16 == s // 22
for s in range(448): assert (s * 4682) >> 16 == s // 14
for s in range(56): assert (s * 37) >> 8 == s // 7

RS = 352
REG = 64 * RS
DUMMY = 7 * REG
SCR = 100352
LDS_TOTAL = 163840
DEPTH = int(os.environ.get("DEPTH", "3"))
CNT_KV = 32 * 4
HALO1 = os.environ.get("HALO1", "1") == "1"
WOLATE = False
WOPOLL = os.environ.get("WOPOLL", "0") == "1"
SCT = ""
SCA = ""
XDPP = os.environ.get("XDPP", "0") == "1"
LA = int(os.environ.get("LA", "2"))
def f2u(x): return struct.unpack('<I', struct.pack('<f', x))[0]
SC2 = f2u(28 ** -0.5 * 1.4426950408889634)
CNT_Z = 40 * 4
TILE_A = SCR + 32768

L = []
def e(s): L.append("    " + s)
def lab(s): L.append(s + ":")
def c(s): L.append("    ; " + s)
_uid = [0]
def uid(p):
    _uid[0] += 1
    return f"{p}_{_uid[0]}"

class VM:
    def __init__(self): self.ops = []
    def issue(self, tag): self.ops.append(tag)
    def wait(self, tag):
        idx = max(i for i, t in enumerate(self.ops) if t == tag)
        n = len(self.ops) - 1 - idx
        assert n < 64
        e(f"s_waitcnt vmcnt({n})")
    def wait_all(self):
        e("s_waitcnt vmcnt(0)")

def stamp(vm, i):
    if not STAMP: return
    e("s_memrealtime s[72:73]" if os.environ.get("RT") else "s_memtime s[72:73]")
    e("s_waitcnt lgkmcnt(0)")
    e("v_mov_b32 v28, s72")
    e("s_lshl_b32 s74, s2, 7")
    e(f"s_add_u32 s74, s74, {0x700000 + i*4}")
    e("v_mov_b32 v29, 0")
    e("v_cmp_eq_u32 vcc, 0, v0")
    e("s_and_saveexec_b64 s[76:77], vcc")
    e("buffer_store_dword v28, v29, s[40:43], s74 offen")
    e("s_mov_b64 exec, s[76:77]")
    vm.issue("stamp")

def unpack(dlo, dhi, src):
    e(f"v_lshlrev_b32 v{dlo}, 16, v{src}")
    e(f"v_and_b32 v{dhi}, 0xffff0000, v{src}")

def phi_pair(dst, a, b, t):
    assert b == a + 1 and a % 2 == 0 and t % 2 == 0
    e(f"v_pk_mul_f32 v[{t}:{t+1}], v[{a}:{b}], s[70:71]")
    e(f"v_exp_f32 v{t}, v{t} clamp")
    e(f"v_exp_f32 v{t+1}, v{t+1} clamp")
    e(f"v_max_f32 v{a}, 0, v{a}")
    e(f"v_max_f32 v{b}, 0, v{b}")
    e(f"v_pk_add_f32 v[{t}:{t+1}], v[{t}:{t+1}], v[{a}:{b}]")
    e(f"v_cvt_pk_bf16_f32 v{dst}, v{t}, v{t+1}")

def srd(base, lo, hi, nbytes):
    e(f"s_mov_b32 s{base}, s{lo}")
    e(f"s_and_b32 s{base+1}, s{hi}, 0xffff")
    e(f"s_mov_b32 s{base+2}, 0x{nbytes:x}")
    e(f"s_mov_b32 s{base+3}, 0x20000")

XF = 32
BF = 200
T = 232

def prologue():
    e("s_cmp_ge_u32 s2, 256")
    e("s_cbranch_scc1 K_END")
    e("s_load_dwordx4 s[4:7], s[0:1], 0")
    e("s_load_dwordx4 s[8:11], s[0:1], 16")
    e("s_load_dwordx4 s[12:15], s[0:1], 32")
    e("s_load_dwordx4 s[16:19], s[0:1], 48")
    e("s_load_dwordx2 s[20:21], s[0:1], 64")
    e("s_and_b32 s22, s2, 7")
    e("s_lshr_b32 s23, s2, 3")
    e("s_lshr_b32 s24, s22, 2")
    e("s_and_b32 s27, s22, 3")
    e("s_lshr_b32 s25, s27, 1")
    e("s_lshl_b32 s25, s25, 3")
    e("s_and_b32 s3, s23, 7")
    e("s_add_u32 s25, s25, s3")
    e("s_and_b32 s26, s27, 1")
    e("s_lshl_b32 s26, s26, 2")
    e("s_lshr_b32 s3, s23, 3")
    e("s_add_u32 s26, s26, s3")
    e("v_lshrrev_b32 v1, 6, v0")
    e("v_and_b32 v2, 63, v0")
    e("v_readfirstlane_b32 s48, v1")
    for j in range(6):
        e(f"v_add_u32 v3, {4*j}, v1")
        e(f"v_lshl_add_u32 v3, v3, 6, v2")
        e(f"v_mul_u32_u24 v4, 2979, v3")
        e(f"v_lshrrev_b32 v4, 16, v4")
        e(f"v_mul_u32_u24 v5, 22, v4")
        e(f"v_sub_u32 v3, v3, v5")
        e(f"v_min_u32 v3, 20, v3")
        e(f"v_mul_u32_u24 v5, 37, v3")
        e(f"v_lshrrev_b32 v5, 8, v5")
        e(f"v_mul_u32_u24 v6, 7, v5")
        e(f"v_sub_u32 v3, v3, v6")
        e(f"v_mul_u32_u24 v4, 2688, v4")
        e(f"v_mul_u32_u24 v5, 896, v5")
        e(f"v_lshlrev_b32 v3, 4, v3")
        e(f"v_add3_u32 v{8+j}, v3, v4, v5")
        if j < 5:
            e(f"s_add_u32 s{50+j}, s48, {4*j}")
            e(f"s_lshl_b32 s{50+j}, s{50+j}, 10")
    e("s_lshl_b32 s55, s48, 10")
    e(f"s_add_u32 s3, s55, {20*1024}")
    e(f"s_add_u32 s55, s55, {DUMMY - 2048}")
    e("s_cmp_lt_u32 s48, 2")
    e("s_cselect_b32 s55, s3, s55")
    e("s_cselect_b32 s57, 1, 0")
    e("v_lshrrev_b32 v3, 4, v2")
    e("v_bfe_u32 v4, v2, 2, 2")
    e(f"v_lshl_add_u32 v4, v3, {4 if XDPP else 3}, v4")
    e(f"v_mul_u32_u24 v4, {RS}, v4")
    e("v_and_b32 v5, 3, v2")
    e("v_lshl_add_u32 v14, v5, 3, v4")
    if XDPP:
        e("v_and_b32 v4, 7, v2")
        e("v_lshrrev_b32 v3, 3, v2")
    else:
        e("v_and_b32 v4, 15, v2")
    e("s_lshl_b32 s3, s25, 7")
    e("v_lshl_add_u32 v5, v1, 5, v4")
    e("v_add_u32 v5, s3, v5")
    e("v_mul_u32_u24 v5, 896, v5")
    e("v_lshl_add_u32 v15, v3, 4, v5")
    e("v_add_u32 v16, 14336, v15")
    e("v_add_u32 v5, s3, v4")
    e("v_subrev_u32 v5, 16, v5")
    e("s_movk_i32 s49, 896")
    e("v_mul_lo_u32 v5, v5, s49")
    e("v_lshl_add_u32 v17, v3, 4, v5")
    e("s_mul_i32 s56, s26, 112")
    e(f"s_mov_b32 s70, 0x{LOG2E:x}")
    e(f"s_mov_b32 s71, 0x{LOG2E:x}")
    e("s_lshl_b32 s60, s24, 4")
    e("s_add_u32 s60, s60, s25")
    e("s_lshl_b32 s60, s60, 3")
    e("s_add_u32 s60, s60, s26")
    e("s_lshl_b32 s60, s60, 7")
    e(f"s_add_u32 s60, s60, 0x{GO:x}")
    e("s_and_b32 s81, s23, 7")
    e("s_lshr_b32 s3, s23, 3")
    e("s_lshl_b32 s3, s3, 1")
    e("s_add_u32 s81, s81, s3")
    e("s_cmp_ge_u32 s81, 7")
    e("s_cselect_b32 s3, 7, 0")
    e("s_sub_u32 s81, s81, s3")
    e("s_cmp_ge_u32 s81, 7")
    e("s_cselect_b32 s3, 7, 0")
    e("s_sub_u32 s81, s81, s3")
    if os.environ.get("ROT") == "0": e("s_mov_b32 s81, 0")
    if os.environ.get("ROT") == "2":
        e("s_lshr_b32 s81, s23, 3")
        e("s_lshl_b32 s81, s81, 1")
    if os.environ.get("ROT") == "3":
        e("s_and_b32 s81, s23, 7")
        e("s_cmp_eq_u32 s81, 7")
        e("s_cselect_b32 s81, 3, s81")
    e("s_waitcnt lgkmcnt(0)")
    srd(40, 20, 21, WS_END)
    srd(44, 18, 19, 256)
    srd(88, 16, 17, 2048*1792)
    e("s_cmp_eq_u32 s24, 0")
    e("s_cbranch_scc0 K_SELB")
    srd(28, 4, 5, 2048*896)
    srd(32, 6, 7, 448*2688)
    srd(36, 8, 9, 448*896)
    e("s_branch K_A")
    lab("K_SELB")
    srd(28, 10, 11, 2048*896)
    srd(32, 12, 13, 448*2688)
    srd(36, 14, 15, 448*896)
    e("s_branch K_B")

def issue_step(vm, isB, i):
    q = []
    def hdr():
        e("s_mul_i32 s83, s81, 172032")
        e("s_add_u32 s83, s83, s56")
        e("s_lshl_b32 s85, s81, 7")
        e("s_add_u32 s82, s85, 7168")
        e("s_add_u32 s81, s81, 1")
        e("s_cmp_eq_u32 s81, 7")
        e("s_cselect_b32 s81, 0, s81")
    def dma(j, first):
        def f():
            if first: hdr()
            if j < 5:
                e(f"s_add_u32 m0, s{50+j}, {i*REG}")
            else:
                e(f"s_mul_i32 s3, s57, {i*REG}")
                e(f"s_add_u32 m0, s55, s3")
            e("s_nop 0")
            e(f"buffer_load_dwordx4 v{8+j}, s[32:35], s83 offen lds")
            vm.issue(f"c{i}")
        return f
    def xl(kk, rt):
        def f():
            ks = 2*i + kk
            if rt == 2 and HALO1:
                sk = uid("HL")
                e("s_cmp_eq_u32 s48, 3")
                e(f"s_cbranch_scc0 {sk}")
                e(f"buffer_load_dwordx4 v[{XF+(ks*3+rt)*4}:{XF+(ks*3+rt)*4+3}], v{15+rt}, s[28:31], " + (("s85" if kk == 0 else "s82") + " offen" if XDPP else f"s85 offen offset:{kk*64}"))
                lab(sk)
                return
            e(f"buffer_load_dwordx4 v[{XF+(ks*3+rt)*4}:{XF+(ks*3+rt)*4+3}], v{15+rt}, s[28:31], " + (("s85" if kk == 0 else "s82") + " offen" if XDPP else f"s85 offen offset:{kk*64}"))
            vm.issue(f"c{i}")
        return f
    for j in range(6): q.append(dma(j, j == 0))
    for kk in range(2):
        for rt in ((2, 0, 1) if HALO1 else (0, 1, 2)):
            if rt == 2 and not isB: continue
            q.append(xl(kk, rt))
    return q

def wo_voffs():
    e("s_lshr_b32 s3, s26, 1")
    e("s_mul_i32 s3, s3, 224")
    for t in range(7):
        e(f"v_add_u32 v3, {t*64}, v2")
        e("v_mul_u32_u24 v4, 4682, v3")
        e("v_lshrrev_b32 v4, 16, v4")
        e("v_mul_u32_u24 v5, 14, v4")
        e("v_sub_u32 v3, v3, v5")
        e("v_mul_u32_u24 v4, 896, v4")
        e("v_lshl_add_u32 v3, v3, 4, v4")
        e(f"v_add_u32 v{20+t}, s3, v3")

def wo_dma(vm):
    q = []
    def one(m, t):
        def f():
            if t == 0:
                if m < 3:
                    e(f"s_add_u32 s86, s48, {4*m}")
                else:
                    e("s_and_b32 s86, s48, 1")
                    e("s_add_u32 s86, s86, 12")
                e("s_mul_i32 s84, s86, 7168")
                e("s_mul_i32 s86, s86, 28672")
            e(f"s_add_u32 m0, s84, {t*1024}")
            e("s_nop 0")
            e(f"buffer_load_dwordx4 v{20+t}, s[36:39], s86 offen lds")
            vm.issue("wo")
        return f
    for m in range(4):
        for t in range(7):
            q.append(one(m, t))
    return q

def wo_dma3():
    for m in range(5):
        e(f"s_add_u32 s86, s48, {3*m - 1}")
        e("s_min_u32 s86, s86, 13")
        e("s_mul_i32 s84, s86, 7168")
        e("s_mul_i32 s86, s86, 28672")
        for t in range(7):
            e(f"s_add_u32 m0, s84, {t*1024}")
            e("s_nop 0")
            e(f"buffer_load_dwordx4 v{20+t}, s[36:39], s86 offen lds")

def gemm(vm, isB):
    for r in range(4):
        e(f"v_mov_b32 v{4+r}, 0")
    e("v_mov_b32 v3, 0")
    e("v_cmp_eq_u32 vcc, 0, v0")
    e("s_and_saveexec_b64 s[62:63], vcc")
    e("buffer_store_dwordx4 v[4:7], v3, s[40:43], s60 offen sc0 sc1")
    if not isB:
        zs = uid("ZS")
        e("s_cmp_eq_u32 s25, 0")
        e(f"s_cbranch_scc0 {zs}")
        e("s_lshl_b32 s3, s26, 7")
        e(f"s_add_u32 s3, s3, 0x{KVC:x}")
        e("buffer_store_dword v4, v3, s[40:43], s3 offen sc0 sc1")
        e("s_mov_b64 exec, s[62:63]")
        e("s_lshl_b32 s3, s26, 13")
        e(f"s_add_u32 s3, s3, 0x{ACC:x}")
        e("v_lshlrev_b32 v3, 5, v0")
        e("buffer_store_dwordx4 v[4:7], v3, s[40:43], s3 offen sc0 sc1")
        e("buffer_store_dwordx4 v[4:7], v3, s[40:43], s3 offen offset:16 sc0 sc1")
        lab(zs)
    e("s_mov_b64 exec, s[62:63]")
    for i in range(DEPTH):
        for f in issue_step(vm, isB, i): f()
    for i in range(128 if HALO1 else 104):
        e(f"v_accvgpr_write_b32 a{i}, 0")
    wo_voffs()
    for ch in range(7):
        vm.wait(f"c{ch}")
        if XDPP:
            for rt in range(3 if isB else 2):
                l1 = XF + ((2*ch)*3+rt)*4; l2 = XF + ((2*ch+1)*3+rt)*4
                for r in range(4): e(f"v_mov_b32 v{T+r}, v{l2+r}")
                for r in range(4): e(f"v_mov_b32_dpp v{l2+r}, v{l1+r} row_ror:8 row_mask:0xf bank_mask:0x3")
                for r in range(4): e(f"v_mov_b32_dpp v{l1+r}, v{T+r} row_ror:8 row_mask:0xf bank_mask:0xc")
        e("s_barrier")
        stamp(vm, 12 + ch)
        if ch == 0 and not isB:
            zs = uid("ZF")
            e("s_cmp_eq_u32 s25, 0")
            e(f"s_cbranch_scc0 {zs}")
            e("v_cmp_eq_u32 vcc, 0, v0")
            e("s_and_saveexec_b64 s[62:63], vcc")
            e("s_lshl_b32 s3, s26, 2")
            e(f"v_mov_b32 v3, {CNT_Z}")
            e("v_mov_b32 v4, 1")
            e("buffer_store_dword v4, v3, s[44:47], s3 offen sc0 sc1")
            e("s_mov_b64 exec, s[62:63]")
            lab(zs)
        pend = []
        if ch + DEPTH < 7:
            pend = issue_step(vm, isB, ch + DEPTH)
        if ch == 5 and not WOPOLL:
            woq = wo_dma(vm)
            pend = woq[:14]
        if ch == 6 and not WOPOLL:
            pend = woq[14:]
        nslots = 24
        per_slot = -(-len(pend) // nslots)
        if ch == 5 and not isB:
            e(f"v_mov_b32 v3, {CNT_Z}")
            e("s_lshl_b32 s3, s26, 2")
            e("buffer_load_dword v19, v3, s[44:47], s3 offen sc0 sc1")
            vm.issue("zchk")
        e(f"v_add_u32 v18, {ch*REG}, v14")
        G = [(kk, grp) for kk in range(2) for grp in range(3)]
        NB = LA + 1
        def rd(i):
            kk, grp = G[i]
            for t in range(4):
                for hf in range(2):
                    off = ((8 if XDPP else 32)*kk + 4*hf)*RS + grp*112 + (t >> 1)*56 + (t & 1)*32
                    r = BF + (i % NB)*16 + t*4 + hf*2
                    e(f"ds_read_b64_tr_b16 v[{r}:{r+1}], v18 offset:{off}")
        for i in range(LA): rd(i)
        for i in range(6):
            kk, grp = G[i]
            ks = 2*ch + kk
            if i + LA < 6: rd(i + LA)
            e(f"s_waitcnt lgkmcnt({min(15, 8*min(LA, 5 - i))})")
            tr = (grp == 0) or (isB and grp == 1)
            for t in range(4):
                ct = grp*4 + t
                b = BF + (i % NB)*16 + t*4
                for rt in range(3):
                    if rt == 2 and (not isB or grp == 0): continue
                    x = XF + (ks*3+rt)*4
                    a = (rt*12 + ct)*4 if rt < 2 else (96 + (grp-1)*4 if not HALO1 else 96 + (ct-4)*4)
                    sk = None
                    if rt == 2:
                        sk = uid("HS")
                        e(f"s_cmp_eq_u32 s48, {3 if HALO1 else t}")
                        e(f"s_cbranch_scc0 {sk}")
                    if tr:
                        e(f"v_mfma_f32_16x16x32_bf16 a[{a}:{a+3}], v[{b}:{b+3}], v[{x}:{x+3}], a[{a}:{a+3}]")
                    else:
                        e(f"v_mfma_f32_16x16x32_bf16 a[{a}:{a+3}], v[{x}:{x+3}], v[{b}:{b+3}], a[{a}:{a+3}]")
                    if sk: lab(sk)
                for _ in range(per_slot):
                    if pend: pend.pop(0)()
        assert not pend

def poll(isB):
    lp = uid("POLL_LOOP"); dn = uid("POLL_DONE"); ot = uid("POLL_OT")
    e("s_cmp_eq_u32 s48, 0")
    e(f"s_cbranch_scc0 {ot}")
    e("s_mov_b32 s78, 0")
    e("v_mov_b32 v30, 0")
    lab(lp)
    e(f"buffer_load_dwordx3 v[{T}:{T+2}], v30, s[40:43], s60 offen sc0 sc1")
    e("s_waitcnt vmcnt(0)")
    e(f"v_readfirstlane_b32 s79, v{T+2}")
    if not isB:
        e(f"v_readfirstlane_b32 s3, v{T}")
        e(f"v_readfirstlane_b32 s27, v{T+1}")
        e("s_nop 3")
        e("s_and_b32 s3, s3, s27")
        e("s_cmp_eq_u32 s3, 0x01010101")
        e("s_cselect_b32 s79, s79, 0")
    else:
        e("s_nop 3")
    e("s_cmp_eq_u32 s79, 1")
    e(f"s_cbranch_scc1 {dn}")
    e("s_add_u32 s78, s78, 1")
    e("s_cmp_gt_u32 s78, 0x40000")
    e(f"s_cbranch_scc1 {dn}")
    e(f"s_branch {lp}")
    lab(ot)
    if WOPOLL:
        wo_dma3()
        e("s_waitcnt vmcnt(0)")
    lab(dn)
    e("s_barrier")

def arrive_kv(wave):
    dn = uid("AKV")
    e(f"s_cmp_eq_u32 s48, {wave}")
    e(f"s_cbranch_scc0 {dn}")
    e("v_cmp_eq_u32 vcc, 0, v2")
    e("s_and_saveexec_b64 s[62:63], vcc")
    e("v_mov_b32 v3, 0")
    e("v_mov_b32 v4, 1")
    e("s_lshl_b32 s3, s26, 7")
    e(f"s_add_u32 s3, s3, 0x{KVC:x}")
    e("buffer_atomic_add v4, v3, s[40:43], s3 offen sc0 sc1")
    e("s_mov_b64 exec, s[62:63]")
    e("s_waitcnt vmcnt(0)")
    e("v_readfirstlane_b32 s79, v4")
    e("s_nop 3")
    e("s_cmp_eq_u32 s79, 15")
    e(f"s_cbranch_scc0 {dn}")
    e("v_lshlrev_b32 v3, 7, v2")
    e("v_add_u32 v3, s26, v3")
    e("v_mov_b32 v4, 1")
    e(f"s_mov_b32 s3, 0x{GO:x}")
    e("buffer_store_byte v4, v3, s[40:43], s3 offen sc0 sc1")
    e(f"s_mov_b32 s3, 0x{GO+8192:x}")
    e("buffer_store_byte v4, v3, s[40:43], s3 offen sc0 sc1")
    lab(dn)

def arrive_tile(wave):
    dn = uid("ATL")
    e(f"s_cmp_eq_u32 s48, {wave}")
    e(f"s_cbranch_scc0 {dn}")
    e("v_cmp_eq_u32 vcc, 0, v2")
    e("s_and_saveexec_b64 s[62:63], vcc")
    e("v_mov_b32 v3, 0")
    e("v_mov_b32 v4, 1")
    e("s_lshl_b32 s3, s24, 4")
    e("s_add_u32 s3, s3, s25")
    e("s_lshl_b32 s27, s3, 10")
    e("s_lshl_b32 s3, s3, 2")
    e("buffer_atomic_add v4, v3, s[44:47], s3 offen sc0 sc1")
    e("s_mov_b64 exec, s[62:63]")
    e("s_waitcnt vmcnt(0)")
    e("v_readfirstlane_b32 s79, v4")
    e("s_nop 3")
    e("s_cmp_eq_u32 s79, 7")
    e(f"s_cbranch_scc0 {dn}")
    e("v_lshlrev_b32 v3, 7, v2")
    e("v_mov_b32 v4, 1")
    e(f"s_add_u32 s3, s27, 0x{GO+8:x}")
    e("v_cmp_gt_u32 vcc, 8, v2")
    e("s_and_saveexec_b64 s[62:63], vcc")
    e("buffer_store_dword v4, v3, s[40:43], s3 offen sc0 sc1")
    e("s_mov_b64 exec, s[62:63]")
    lab(dn)

def tile_flush(vm, lds_base, gbase):
    e("s_waitcnt lgkmcnt(0)")
    e("s_barrier")
    e("v_lshlrev_b32 v3, 4, v0")
    e(f"v_add_u32 v4, {lds_base}, v3")
    for it in range(4):
        e(f"ds_read_b128 v[{T+it*4}:{T+it*4+3}], v4 offset:{it*4096}")
    e("s_lshl_b32 s3, s25, 3")
    e("s_add_u32 s3, s3, s26")
    e("s_mul_i32 s3, s3, 14336")
    e(f"s_add_u32 s3, s3, 0x{gbase:x}")
    e("v_add_u32 v4, 8192, v3")
    e("v_cmp_gt_u32 vcc, 128, v0")
    for it in range(4):
        e(f"s_waitcnt lgkmcnt({3-it})")
        if it == 3:
            e("s_and_saveexec_b64 s[62:63], vcc")
        e(f"buffer_store_dwordx4 v[{T+it*4}:{T+it*4+3}], v{3 if it < 2 else 4}, s[40:43], s3 offen offset:{(it&1)*4096 - (0)} sc0 sc1") if (it&1)==0 else (
            e(f"v_add_u32 v5, 4096, v{3 if it < 2 else 4}"),
            e(f"buffer_store_dwordx4 v[{T+it*4}:{T+it*4+3}], v5, s[40:43], s3 offen sc0 sc1"))
        vm.issue("tile")
        if it == 3:
            e("s_mov_b64 exec, s[62:63]")

def acc_read4(dst, a):
    for r in range(4):
        e(f"v_accvgpr_read_b32 v{dst+r}, a{a+r}")

def epi_A(vm):
    c("---- A epilogue: KV partial first ----")
    e("s_nop 7")
    e("s_nop 7")
    e("v_and_b32 v5, 15, v2")
    e("v_lshrrev_b32 v6, 4, v2")
    e("v_cmp_le_u32 s[64:65], 12, v5")
    PK = 32; VV = 48; KP = 64
    for t in range(4):
        for rt in range(2):
            acc_read4(T+8, (rt*12 + 4 + t)*4)
            phi_pair(PK + t*4 + rt*2, T+8, T+9, T)
            phi_pair(PK + t*4 + rt*2 + 1, T+10, T+11, T+2)
    e("v_mov_b32 v7, 0x3f803f80")
    for t in range(4):
        for rt in range(2):
            acc_read4(T+8, (rt*12 + 8 + t)*4)
            d = VV + t*4 + rt*2
            e(f"v_cvt_pk_bf16_f32 v{d}, v{T+8}, v{T+9}")
            e(f"v_cvt_pk_bf16_f32 v{d+1}, v{T+10}, v{T+11}")
            if t & 1:
                e(f"v_cndmask_b32 v{d}, v{d}, v7, s[64:65]")
                e(f"v_cndmask_b32 v{d+1}, v{d+1}, v7, s[64:65]")
    e("s_nop 1")
    for hh in range(2):
        for et in range(2):
            for dt in range(2):
                d = KP + (hh*4 + et*2 + dt)*4
                va = VV + (hh*2+et)*4; pk = PK + (hh*2+dt)*4
                e(f"v_mfma_f32_16x16x32_bf16 v[{d}:{d+3}], v[{va}:{va+3}], v[{pk}:{pk+3}], 0")
    e("s_lshl_b32 s3, s48, 13")
    e(f"s_add_u32 s3, s3, {SCR}")
    e("v_lshlrev_b32 v3, 4, v2")
    e("v_add_u32 v4, s3, v3")
    e("s_nop 7")
    e("s_nop 3")
    for i in range(8):
        e(f"ds_write_b128 v4, v[{KP+i*4}:{KP+i*4+3}] offset:{i*1024}")
    e("s_waitcnt lgkmcnt(0)")
    e("s_barrier")
    e("s_lshl_b32 s3, s48, 11")
    e(f"s_add_u32 s3, s3, {SCR}")
    e("v_add_u32 v4, s3, v3")
    for dt in range(2):
        for w in range(4):
            r = 96 + (dt*4 + w)*4
            e(f"ds_read_b128 v[{r}:{r+3}], v4 offset:{w*8192 + dt*1024}")
    e("s_lshr_b32 s3, s48, 1")
    e("s_lshl_b32 s27, s26, 1")
    e("s_add_u32 s3, s3, s27")
    e("s_lshl_b32 s3, s3, 12")
    e("s_and_b32 s27, s48, 1")
    e("s_lshl_b32 s58, s27, 11")
    e("s_add_u32 s3, s3, s58")
    e(f"s_add_u32 s59, s3, 0x{ACC:x}")
    e("v_lshlrev_b32 v8, 9, v6")
    e("v_lshl_add_u32 v8, v5, 2, v8")
    e("v_cmp_gt_u32 s[66:67], 3, v6")
    e("s_cmp_eq_u32 s27, 1")
    e("s_cselect_b64 s[66:67], s[66:67], -1")
    e("v_cmp_gt_u32 s[68:69], 12, v5")
    e("s_waitcnt lgkmcnt(0)")
    for dt in range(2):
        b = 96 + dt*16
        for r in range(4):
            e(f"v_add_f32 v{b+r}, v{b+r}, v{b+4+r}")
            e(f"v_add_f32 v{b+8+r}, v{b+8+r}, v{b+12+r}")
        for r in range(4):
            e(f"v_add_f32 v{b+r}, v{b+r}, v{b+8+r}")
    vm.wait("zchk")
    zl = uid("ZL"); zd = uid("ZD")
    e("s_mov_b32 s78, 0")
    lab(zl)
    e("v_readfirstlane_b32 s79, v19")
    e("s_nop 3")
    e("s_cmp_eq_u32 s79, 1")
    e(f"s_cbranch_scc1 {zd}")
    e("s_add_u32 s78, s78, 1")
    e("s_cmp_gt_u32 s78, 0x40000")
    e(f"s_cbranch_scc1 {zd}")
    e("s_sleep 1")
    e(f"v_mov_b32 v3, {CNT_Z}")
    e("s_lshl_b32 s3, s26, 2")
    e("buffer_load_dword v19, v3, s[44:47], s3 offen sc0 sc1")
    e("s_waitcnt vmcnt(0)")
    e(f"s_branch {zl}")
    lab(zd)
    e("s_mov_b64 s[62:63], exec")
    for dt in range(2):
        for r in range(4):
            m = None
            if dt == 1 and r > 0:
                e("s_and_b64 exec, s[66:67], s[68:69]")
            elif dt == 1:
                e("s_mov_b64 exec, s[68:69]")
            elif r > 0:
                e("s_mov_b64 exec, s[66:67]")
            e(f"buffer_atomic_add_f32 v{96+dt*16+r}, v8, s[40:43], s59 offen offset:{r*128 + dt*64} sc0 sc1")
            vm.issue("kvat")
    e("s_mov_b64 exec, s[62:63]")
    stamp(vm, 4)
    c("---- phi(q) frags in regs ----")
    QF = 128
    woq = wo_dma(vm) if WOLATE else []
    for rt in range(2):
        for t in range(4):
            acc_read4(T+8, (rt*12 + t)*4)
            d = QF + (rt*2 + (t >> 1))*4 + (t & 1)*2
            for _ in range(2):
                if woq: woq.pop(0)()
            phi_pair(d, T+8, T+9, T)
            for _ in range(2):
                if woq: woq.pop(0)()
            phi_pair(d+1, T+10, T+11, T+2)
    assert not woq
    e("v_lshl_add_u32 v9, v1, 5, v5")
    e("v_mul_u32_u24 v9, 112, v9")
    e("v_lshl_add_u32 v9, v6, 3, v9")
    e(f"v_add_u32 v9, {TILE_A}, v9")
    e("v_cmp_gt_u32 s[64:65], 3, v6")
    e("v_lshlrev_b32 v10, 7, v5")
    e("v_lshl_add_u32 v10, v6, 4, v10")
    e("v_lshlrev_b32 v11, 4, v6")
    e("s_lshl_b32 s59, s26, 13")
    e(f"s_add_u32 s59, s59, 0x{ACC:x}")
    vm.wait("kvat")
    e("s_barrier")
    dn = uid("KVD"); lp = uid("KVL")
    e("s_cmp_eq_u32 s48, 0")
    e(f"s_cbranch_scc0 {dn}")
    e("v_cmp_eq_u32 vcc, 0, v2")
    e("s_and_saveexec_b64 s[62:63], vcc")
    e("v_mov_b32 v3, 0")
    e("v_mov_b32 v4, 1")
    e("s_lshl_b32 s3, s26, 7")
    e(f"s_add_u32 s3, s3, 0x{KVC:x}")
    e("buffer_atomic_add v4, v3, s[40:43], s3 offen sc0 sc1")
    e("s_waitcnt vmcnt(0)")
    e("v_readfirstlane_b32 s79, v4")
    e("s_mov_b32 s78, 0")
    e("s_nop 2")
    e("s_add_u32 s79, s79, 1")
    lab(lp)
    e("s_cmp_ge_u32 s79, 16")
    e(f"s_cbranch_scc1 {dn}_x")
    e("s_add_u32 s78, s78, 1")
    e("s_cmp_gt_u32 s78, 0x40000")
    e(f"s_cbranch_scc1 {dn}_x")
    e("buffer_load_dword v4, v3, s[40:43], s3 offen sc0 sc1")
    e("s_waitcnt vmcnt(0)")
    e("v_readfirstlane_b32 s79, v4")
    e("s_nop 3")
    e(f"s_branch {lp}")
    lab(f"{dn}_x")
    e("s_mov_b64 exec, s[62:63]")
    lab(dn)
    e("s_barrier")
    stamp(vm, 10)
    R = 144
    for hh in range(2):
        for f in range(3):
            r = R + (hh*3+f)*8
            va = 10 if f < 2 else 11
            off = hh*4096 + (f*2048 if f < 2 else 28*128)
            if hh == 1:
                off -= 4096
            e(f"buffer_load_dwordx4 v[{r}:{r+3}], v{va}, s[40:43], s59 offen offset:{off}{SCA}")
            e(f"buffer_load_dwordx4 v[{r+4}:{r+7}], v{va}, s[40:43], s59 offen offset:{off+64}{SCA}")
        if hh == 0: e("s_add_u32 s59, s59, 4096")
    NR = 32
    for hh in range(2):
        for f in range(3):
            r = R + (hh*3+f)*8
            e(f"s_waitcnt vmcnt({10 - 2*(hh*3+f)})")
            for q in range(4):
                e(f"v_cvt_pk_bf16_f32 v{r+q}, v{r+2*q}, v{r+2*q+1}")
        e("s_nop 0")
        for rt in range(2):
            n = NR + (hh*2+rt)*12
            q = QF + (rt*2+hh)*4
            for f in range(3):
                r = R + (hh*3+f)*8
                e(f"v_mfma_f32_16x16x32_bf16 v[{n+f*4}:{n+f*4+3}], v[{r}:{r+3}], v[{q}:{q+3}], 0")
    stamp(vm, 11)
    e("s_nop 7")
    e("s_nop 3")
    for hh in range(2):
        for rt in range(2):
            n = NR + (hh*2+rt)*12
            e(f"v_add_f32 v12, 0x{EPS:x}, v{n+8}")
            e("v_rcp_f32 v12, v12")
            e("s_nop 0")
            e(f"v_mov_b32 v13, v12")
            for q in range(4):
                e(f"v_pk_mul_f32 v[{n+2*q}:{n+2*q+1}], v[{n+2*q}:{n+2*q+1}], v[12:13]")
                e(f"v_cvt_pk_bf16_f32 v{n+q}, v{n+2*q}, v{n+2*q+1}")
            e(f"ds_write_b64 v9, v[{n}:{n+1}] offset:{rt*1792 + hh*56}")
            e("s_and_saveexec_b64 s[62:63], s[64:65]")
            e(f"ds_write_b64 v9, v[{n+2}:{n+3}] offset:{rt*1792 + hh*56 + 32}")
            e("s_mov_b64 exec, s[62:63]")
    tile_flush(vm, TILE_A, PQ_A)
    e("s_waitcnt vmcnt(0)")
    e("s_barrier")
    arrive_tile(0)
    stamp(vm, 5)

def epi_B(vm):
    c("---- B epilogue: MFMA banded attention ----")
    QF = 32; KF = 48; VF = 72
    e("s_nop 7")
    e("s_nop 7")
    e("v_and_b32 v5, 15, v2")
    e("v_lshrrev_b32 v6, 4, v2")
    e("v_cmp_gt_u32 s[64:65], 3, v6")
    e("v_lshlrev_b32 v3, 4, v2")
    e("v_lshlrev_b32 v7, 3, v2")
    if HALO1:
        hk = uid("HE")
        e("s_cmp_eq_u32 s48, 3")
        e(f"s_cbranch_scc0 {hk}")
        e(f"v_add_u32 v4, {SCR}, v3")
        e(f"v_add_u32 v8, {SCR + 2048}, v7")
        for t in range(4):
            acc_read4(T, 96 + t*4)
            acc_read4(T+4, 112 + t*4)
            e(f"v_cvt_pk_bf16_f32 v{T+8}, v{T}, v{T+1}")
            e(f"v_cvt_pk_bf16_f32 v{T+9}, v{T+2}, v{T+3}")
            e(f"v_cvt_pk_bf16_f32 v{T+10}, v{T+4}, v{T+5}")
            e(f"v_cvt_pk_bf16_f32 v{T+11}, v{T+6}, v{T+7}")
            e(f"ds_write_b64 v4, v[{T+8}:{T+9}] offset:{(t>>1)*1024 + (t&1)*8}")
            e(f"ds_write_b64 v8, v[{T+10}:{T+11}] offset:{t*512}")
        lab(hk)
    else:
        acc_read4(T, 96)
        acc_read4(T+4, 100)
        e(f"v_cvt_pk_bf16_f32 v{T+8}, v{T}, v{T+1}")
        e(f"v_cvt_pk_bf16_f32 v{T+9}, v{T+2}, v{T+3}")
        e(f"v_cvt_pk_bf16_f32 v{T+10}, v{T+4}, v{T+5}")
        e(f"v_cvt_pk_bf16_f32 v{T+11}, v{T+6}, v{T+7}")
        e("s_lshr_b32 s3, s48, 1")
        e("s_lshl_b32 s3, s3, 10")
        e("s_and_b32 s27, s48, 1")
        e("s_lshl_b32 s27, s27, 3")
        e("s_add_u32 s3, s3, s27")
        e(f"s_add_u32 s3, s3, {SCR}")
        e("v_add_u32 v4, s3, v3")
        e(f"ds_write_b64 v4, v[{T+8}:{T+9}]")
        e("s_lshl_b32 s3, s48, 9")
        e(f"s_add_u32 s3, s3, {SCR + 2048}")
        e("v_add_u32 v4, s3, v7")
        e(f"ds_write_b64 v4, v[{T+10}:{T+11}]")
    for hh in range(2):
        for dt in range(2):
            acc_read4(T, (12 + 4 + hh*2 + dt)*4)
            d = KF + (2*2+hh)*4 + dt*2
            e(f"v_cvt_pk_bf16_f32 v{d}, v{T}, v{T+1}")
            e(f"v_cvt_pk_bf16_f32 v{d+1}, v{T+2}, v{T+3}")
        for et in range(2):
            acc_read4(T, (12 + 8 + hh*2 + et)*4)
            d = VF + (hh*2+et)*6 + 4
            e(f"v_cvt_pk_bf16_f32 v{d}, v{T}, v{T+1}")
            e(f"v_cvt_pk_bf16_f32 v{d+1}, v{T+2}, v{T+3}")
    e("s_lshl_b32 s3, s48, 12")
    e(f"s_add_u32 s3, s3, {SCR + 4096}")
    e("v_add_u32 v4, s3, v3")
    e("v_add_u32 v8, s3, v7")
    for hh in range(2):
        d = KF + (2*2+hh)*4
        e(f"ds_write_b128 v4, v[{d}:{d+3}] offset:{hh*1024}")
        for et in range(2):
            d = VF + (hh*2+et)*6 + 4
            e(f"ds_write_b64 v8, v[{d}:{d+1}] offset:{2048 + (hh*2+et)*512}")
    for rt in range(2):
        for hh in range(2):
            for dt in range(2):
                acc_read4(T, (rt*12 + hh*2 + dt)*4)
                d = QF + (rt*2+hh)*4 + dt*2
                e(f"v_cvt_pk_bf16_f32 v{d}, v{T}, v{T+1}")
                e(f"v_cvt_pk_bf16_f32 v{d+1}, v{T+2}, v{T+3}")
                if dt == 1:
                    e(f"v_cndmask_b32 v{d}, 0, v{d}, s[64:65]")
                    e(f"v_cndmask_b32 v{d+1}, 0, v{d+1}, s[64:65]")
    for hh in range(2):
        for dt in range(2):
            acc_read4(T, (4 + hh*2 + dt)*4)
            d = KF + (1*2+hh)*4 + dt*2
            e(f"v_cvt_pk_bf16_f32 v{d}, v{T}, v{T+1}")
            e(f"v_cvt_pk_bf16_f32 v{d+1}, v{T+2}, v{T+3}")
        for et in range(2):
            acc_read4(T, (8 + hh*2 + et)*4)
            d = VF + (hh*2+et)*6 + 2
            e(f"v_cvt_pk_bf16_f32 v{d}, v{T}, v{T+1}")
            e(f"v_cvt_pk_bf16_f32 v{d+1}, v{T+2}, v{T+3}")
    e("s_waitcnt lgkmcnt(0)")
    e("s_barrier")
    e("s_lshl_b32 s3, s48, 12")
    e(f"s_add_u32 s3, s3, {SCR}")
    e("v_add_u32 v4, s3, v3")
    e("v_add_u32 v8, s3, v7")
    for hh in range(2):
        d = KF + hh*4
        e(f"ds_read_b128 v[{d}:{d+3}], v4 offset:{hh*1024}")
        for et in range(2):
            d = VF + (hh*2+et)*6
            e(f"ds_read_b64 v[{d}:{d+1}], v8 offset:{2048 + (hh*2+et)*512}")
    e("v_and_b32 v9, 1, v5")
    e("v_cmp_eq_u32 s[4:5], 1, v9")
    e("v_mov_b32 v10, 0xffff")
    e("v_mov_b32 v11, 0xffff0000")
    e("v_cndmask_b32 v10, v10, v11, s[4:5]")
    e("v_lshl_add_u32 v11, v6, 2, v9")
    e("v_sub_u32 v11, v11, v5")
    for k in range(4):
        addk = 2*k if k < 2 else 16 + 2*(k-2)
        e(f"v_add_u32 v12, {addk}, v11")
        e(f"v_cmp_le_i32 s[{6+2*k}:{7+2*k}], 2, v12")
        e(f"v_cmp_ge_i32 vcc, 16, v12")
        e(f"s_and_b64 s[{6+2*k}:{7+2*k}], s[{6+2*k}:{7+2*k}], vcc")
    e("s_or_b32 s3, s25, s48")
    e("s_cmp_eq_u32 s3, 0")
    e("s_cselect_b64 s[14:15], 0, -1")
    e("s_and_b64 s[16:17], s[6:7], s[14:15]")
    e("s_and_b64 s[18:19], s[8:9], s[14:15]")
    e("v_lshl_add_u32 v4, v1, 5, v5")
    e("v_mul_u32_u24 v4, 112, v4")
    e("v_lshl_add_u32 v4, v6, 3, v4")
    e(f"v_add_u32 v4, {SCR + 20480}, v4")
    e("s_waitcnt lgkmcnt(0)")
    S = 96
    for rt in range(2):
        for hh in range(2):
            sb = S + (rt*2+hh)*8
            q = QF + (rt*2+hh)*4
            for ti in range(2):
                k = KF + ((rt+ti)*2+hh)*4
                e(f"v_mfma_f32_16x16x32_bf16 v[{sb+ti*4}:{sb+ti*4+3}], v[{k}:{k+3}], v[{q}:{q+3}], 0")
    e("s_nop 7")
    e("s_nop 3")
    e("v_mov_b32 v13, 0xce6e6b28")
    P = 128
    W = 144
    def seq(rt, hh):
        cb = rt*2+hh
        sb = S + cb*8
        lg = W + cb*8; m = lg + 4; m2 = lg + 5
        o = []
        for k in range(4):
            o.append(f"v_cndmask_b32 v{lg+k}, v{sb+2*k}, v{sb+2*k+1}, s[4:5]")
        for k in range(4):
            ms = (16 + 2*k) if (rt == 0 and k < 2) else (6 + 2*k)
            o.append(f"v_cndmask_b32 v{lg+k}, v13, v{lg+k}, s[{ms}:{ms+1}]")
        o.append(f"v_max3_f32 v{m}, v{lg}, v{lg+1}, v{lg+2}")
        o.append(f"v_max_f32 v{m}, v{m}, v{lg+3}")
        o.append(f"v_mov_b32 v{m2}, v{m}")
        o.append(f"v_permlane16_swap_b32 v{m}, v{m2}")
        o.append(f"v_max_f32 v{m}, v{m}, v{m2}")
        o.append(f"v_mov_b32 v{m2}, v{m}")
        o.append(f"v_permlane32_swap_b32 v{m}, v{m2}")
        o.append(f"v_max_f32 v{m}, v{m}, v{m2}")
        o.append(f"v_mul_f32 v{m}, 0x{SC2 ^ 0x80000000:x}, v{m}")
        for k in range(4):
            o.append(f"v_fma_f32 v{lg+k}, v{lg+k}, s20, v{m}")
        for k in range(4):
            o.append(f"v_exp_f32 v{lg+k}, v{lg+k}")
        o.append(f"v_add_f32 v{m}, v{lg}, v{lg+1}")
        o.append(f"v_add_f32 v{m2}, v{lg+2}, v{lg+3}")
        o.append(f"v_add_f32 v{m}, v{m}, v{m2}")
        o.append(f"v_mov_b32 v{m2}, v{m}")
        o.append(f"v_permlane16_swap_b32 v{m}, v{m2}")
        o.append(f"v_add_f32 v{m}, v{m}, v{m2}")
        o.append(f"v_mov_b32 v{m2}, v{m}")
        o.append(f"v_permlane32_swap_b32 v{m}, v{m2}")
        o.append(f"v_add_f32 v{m}, v{m}, v{m2}")
        o.append(f"v_rcp_f32 v{m}, v{m}")
        for k in range(4):
            o.append(f"v_mul_f32 v{lg+k}, v{lg+k}, v{m}")
            o.append(f"v_cvt_pk_bf16_f32 v{P+cb*4+k}, v{lg+k}, v{lg+k}")
            o.append(f"v_and_b32 v{P+cb*4+k}, v{P+cb*4+k}, v10")
        return o
    e(f"s_mov_b32 s20, 0x{SC2:x}")
    seqs = [seq(rt, hh) for rt in range(2) for hh in range(2)]
    for i in range(len(seqs[0])):
        for q in seqs: e(q[i])
    e("s_nop 1")
    O = 176
    for rt in range(2):
        for hh in range(2):
            cb = rt*2+hh
            for et in range(2):
                o = O + (cb*2+et)*4
                v = VF + (hh*2+et)*6 + 2*rt
                e(f"v_mfma_f32_16x16x32_bf16 v[{o}:{o+3}], v[{v}:{v+3}], v[{P+cb*4}:{P+cb*4+3}], 0")
    e("s_nop 7")
    e("s_nop 3")
    for rt in range(2):
        for hh in range(2):
            cb = rt*2+hh
            for et in range(2):
                o = O + (cb*2+et)*4
                e(f"v_cvt_pk_bf16_f32 v{o}, v{o}, v{o+1}")
                e(f"v_cvt_pk_bf16_f32 v{o+1}, v{o+2}, v{o+3}")
                if et == 1:
                    e("s_and_saveexec_b64 s[62:63], s[64:65]")
                e(f"ds_write_b64 v4, v[{o}:{o+1}] offset:{rt*1792 + hh*56 + et*32}")
                if et == 1:
                    e("s_mov_b64 exec, s[62:63]")
    tile_flush(vm, SCR + 20480, O_B)
    e("s_waitcnt vmcnt(0)")
    e("s_barrier")
    arrive_tile(0)
    stamp(vm, 5)

def p2_common():
    e("v_lshrrev_b32 v3, 4, v2")
    e("v_and_b32 v4, 15, v2")
    e("s_lshl_b32 s3, s25, 7")
    e("s_and_b32 s27, s26, 1")
    e("s_lshl_b32 s27, s27, 6")
    e("s_add_u32 s3, s3, s27")
    e("v_lshl_add_u32 v5, v1, 4, v4")
    e("v_add_u32 v5, s3, v5")
    e("v_lshl_add_u32 v6, v1, 4, v4")
    e("v_add_u32 v6, s27, v6")
    e("v_mul_u32_u24 v6, 112, v6")
    e("v_lshlrev_b32 v7, 4, v2")
    e("v_mul_u32_u24 v8, 1792, v5")
    e("v_lshl_add_u32 v8, v3, 3, v8")
    e("s_mul_i32 s3, s24, 896")
    e("s_lshr_b32 s27, s26, 1")
    e("s_mul_i32 s27, s27, 224")
    e("s_add_u32 s3, s3, s27")
    e("v_add_u32 v8, s3, v8")
    for i in range(28):
        e(f"v_accvgpr_write_b32 a{i}, 0")

def p2_out():
    e("s_nop 7")
    e("s_nop 7")
    for nt in range(7):
        acc_read4(12, nt*4)
        e("v_cvt_pk_bf16_f32 v16, v12, v13")
        e("v_cvt_pk_bf16_f32 v17, v14, v15")
        e(f"buffer_store_dwordx2 v[16:17], v8, s[88:91], 0 offen offset:{nt*32}")
        e("s_nop 1")

def p2_A(vm):
    c("---- P2 A ----")
    p2_common()
    e("v_bfe_u32 v9, v2, 2, 2")
    e("v_lshl_add_u32 v9, v3, 2, v9")
    e("v_mul_u32_u24 v9, 224, v9")
    e("v_and_b32 v10, 3, v2")
    e("v_lshl_add_u32 v9, v10, 3, v9")
    e("v_add_u32 v10, 3584, v9")
    e("v_cmp_gt_u32 s[64:65], 3, v3")
    e("s_nop 1")
    e("v_cndmask_b32 v10, v9, v10, s[64:65]")
    poll(False)
    stamp(vm, 6)
    PQ = 32
    e("v_lshl_add_u32 v11, v3, 4, v6")
    e("s_mul_i32 s3, s25, 114688")
    e(f"s_add_u32 s3, s3, 0x{PQ_A:x}")
    for h in range(16):
        e(f"buffer_load_dwordx4 v[{PQ+h*4}:{PQ+h*4+3}], v11, s[40:43], s3 offen offset:{(h&1)*56}{SCT}")
        if h & 1: e("s_add_u32 s3, s3, 14336")
    if os.environ.get("X1"):
        e("s_waitcnt vmcnt(0)")
        stamp(vm, 10)
    e("v_lshlrev_b32 v11, 7, v4")
    e("v_lshl_add_u32 v11, v3, 5, v11")
    e("s_lshl_b32 s3, s48, 14")
    e(f"s_add_u32 s3, s3, 0x{ACC:x}")
    R = 96
    for hq in range(4):
        for f in range(2):
            r = R + (hq*2+f)*8
            e(f"buffer_load_dwordx4 v[{r}:{r+3}], v11, s[40:43], s3 offen offset:{f*2048}{SCA}")
            e(f"buffer_load_dwordx4 v[{r+4}:{r+7}], v11, s[40:43], s3 offen offset:{f*2048+16}{SCA}")
        e("s_add_u32 s3, s3, 4096")
    if os.environ.get("X1"):
        e("s_waitcnt vmcnt(0)")
        stamp(vm, 11)
        e("s_waitcnt vmcnt(0)")
    e("s_lshl_b32 s3, s48, 13")
    e(f"s_add_u32 s3, s3, {SCR}")
    e("v_add_u32 v11, s3, v7")
    for hq in range(4):
        for f in range(2):
            r = R + (hq*2+f)*8
            e(f"s_waitcnt vmcnt({14 - 2*(hq*2+f)})")
            for q in range(4):
                e(f"v_cvt_pk_bf16_f32 v{r+q}, v{r+2*q}, v{r+2*q+1}")
            e(f"ds_write_b128 v11, v[{r}:{r+3}] offset:{(hq*2+f)*1024}")
    e("s_waitcnt lgkmcnt(0)")
    e("s_barrier")
    stamp(vm, 7)
    for h in range(16):
        e(f"v_cndmask_b32 v{PQ+h*4+2}, 0, v{PQ+h*4+2}, s[64:65]")
        e(f"v_cndmask_b32 v{PQ+h*4+3}, 0, v{PQ+h*4+3}, s[64:65]")
    e(f"v_add_u32 v11, {SCR}, v7")
    e("v_lshlrev_b32 v12, 8, v3")
    e(f"v_add_u32 v12, {SCR + 1024 + 192}, v12")
    KVR = 96; NR = 144; OF = 192
    for hg in range(4):
        for hq in range(4):
            h = hg*4 + hq
            r = KVR + hq*12
            e(f"ds_read_b128 v[{r}:{r+3}], v11 offset:{h*2048}")
            e(f"ds_read_b128 v[{r+4}:{r+7}], v11 offset:{h*2048+1024}")
            e(f"ds_read_b128 v[{r+8}:{r+11}], v12 offset:{h*2048}")
        for hq in range(4):
            h = hg*4 + hq
            r = KVR + hq*12; n = NR + hq*12
            e(f"s_waitcnt lgkmcnt({9 - 3*hq})")
            for f in range(3):
                e(f"v_mfma_f32_16x16x32_bf16 v[{n+f*4}:{n+f*4+3}], v[{r+f*4}:{r+f*4+3}], v[{PQ+h*4}:{PQ+h*4+3}], 0")
        e("s_nop 7")
        e("s_nop 3")
        for hq in range(4):
            h = hg*4 + hq
            n = NR + hq*12
            e(f"v_cvt_pk_bf16_f32 v24, v{n+8}, v{n+8}")
            e("v_lshlrev_b32 v24, 16, v24")
            e(f"v_add_f32 v24, 0x{EPS:x}, v24")
            e("v_cvt_pk_bf16_f32 v24, v24, v24")
            e("v_lshlrev_b32 v24, 16, v24")
            e("v_rcp_f32 v24, v24")
            e("s_nop 0")
            for q in range(4):
                e(f"v_cvt_pk_bf16_f32 v25, v{n+2*q}, v{n+2*q+1}")
                unpack(26, 27, 25)
                e("v_mul_f32 v26, v26, v24")
                e("v_mul_f32 v27, v27, v24")
                e(f"v_cvt_pk_bf16_f32 v{OF+h*4+q}, v26, v27")
            e(f"v_cndmask_b32 v{OF+h*4+2}, 0, v{OF+h*4+2}, s[64:65]")
            e(f"v_cndmask_b32 v{OF+h*4+3}, 0, v{OF+h*4+3}, s[64:65]")
    stamp(vm, 8)
    def rdh(h):
        bb = 32 + (h & 1)*28
        e(f"v_add_u32 v13, {h*28*224}, v9")
        e(f"v_add_u32 v14, {h*28*224}, v10")
        for nt in range(7):
            e(f"ds_read_b64_tr_b16 v[{bb+nt*4}:{bb+nt*4+1}], v13 offset:{nt*32}")
            e(f"ds_read_b64_tr_b16 v[{bb+nt*4+2}:{bb+nt*4+3}], v14 offset:{nt*32}")
    rdh(0)
    for h in range(16):
        if h < 15:
            rdh(h+1)
            e("s_waitcnt lgkmcnt(14)")
        else:
            e("s_waitcnt lgkmcnt(0)")
        bb = 32 + (h & 1)*28
        for nt in range(7):
            e(f"v_mfma_f32_16x16x32_bf16 a[{nt*4}:{nt*4+3}], v[{bb+nt*4}:{bb+nt*4+3}], v[{OF+h*4}:{OF+h*4+3}], a[{nt*4}:{nt*4+3}]")
    p2_out()
    stamp(vm, 9)

def p2_B(vm, isB=True):
    c("---- P2 B ----")
    p2_common()
    e("v_bfe_u32 v9, v2, 2, 2")
    e("v_lshl_add_u32 v9, v3, 3, v9")
    e("v_mul_u32_u24 v9, 224, v9")
    e("v_and_b32 v10, 3, v2")
    e("v_lshl_add_u32 v9, v10, 3, v9")
    for ks in range(14):
        e(f"v_add_u32 v11, {4*ks}, v3")
        e("v_mul_u32_u24 v12, 37, v11")
        e("v_lshrrev_b32 v12, 8, v12")
        e("v_mul_u32_u24 v13, 7, v12")
        e("v_sub_u32 v11, v11, v13")
        e("v_mul_u32_u24 v12, 14336, v12")
        e("v_lshl_add_u32 v11, v11, 4, v12")
        e(f"v_add_u32 v{160+ks}, v11, v6")
    poll(True)
    stamp(vm, 6)
    OFR = 96
    e("s_mul_i32 s3, s25, 114688")
    e(f"s_add_u32 s3, s3, 0x{O_B if isB else PQ_A:x}")
    for ks in range(14):
        e(f"buffer_load_dwordx4 v[{OFR+ks*4}:{OFR+ks*4+3}], v{160+ks}, s[40:43], s3 offen{SCT}")
    def rdk(ks):
        bb = 32 + (ks & 1)*28
        e(f"v_add_u32 v13, {ks*32*224}, v9")
        for nt in range(7):
            e(f"ds_read_b64_tr_b16 v[{bb+nt*4}:{bb+nt*4+1}], v13 offset:{nt*32}")
            e(f"ds_read_b64_tr_b16 v[{bb+nt*4+2}:{bb+nt*4+3}], v13 offset:{nt*32 + 4*224}")
    rdk(0)
    for ks in range(14):
        if ks < 13:
            rdk(ks+1)
            e("s_waitcnt lgkmcnt(14)")
        else:
            e("s_waitcnt lgkmcnt(0)")
        e(f"s_waitcnt vmcnt({13-ks})")
        bb = 32 + (ks & 1)*28
        for nt in range(7):
            e(f"v_mfma_f32_16x16x32_bf16 a[{nt*4}:{nt*4+3}], v[{bb+nt*4}:{bb+nt*4+3}], v[{OFR+ks*4}:{OFR+ks*4+3}], a[{nt*4}:{nt*4+3}]")
    p2_out()
    stamp(vm, 9)

def kernel():
    lab(f"{NAME}_kernel")
    prologue()
    lab("K_A")
    vm = VM()
    stamp(vm, 0)
    gemm(vm, False)
    stamp(vm, 3)
    epi_A(vm)
    p2_B(vm, False)
    e("s_branch K_END")
    lab("K_B")
    vm = VM()
    stamp(vm, 0)
    gemm(vm, True)
    stamp(vm, 3)
    epi_B(vm)
    p2_B(vm)
    lab("K_END")
    e("s_endpgm")

HDR = open("cdna_kernels/" + NAME + ".s.ref").read().split("; @launch")[0]
kernel()
out = HDR
out += f"; @launch grid=(256,1,1) block=(256,1,1) lds={LDS_TOTAL}\n"
out += '.amdgcn_target "amdgcn-amd-amdhsa--gfx950"\n.text\n'
out += f".globl {NAME}_kernel\n.p2align 8\n.type {NAME}_kernel,@function\n"
out += "\n".join(L) + "\n"
out += f""".section .rodata,"a"
.p2align 6
.amdhsa_kernel {NAME}_kernel
  .amdhsa_next_free_vgpr 384
  .amdhsa_next_free_sgpr 96
  .amdhsa_accum_offset 256
  .amdhsa_group_segment_fixed_size 0
  .amdhsa_kernarg_size 72
  .amdhsa_user_sgpr_count 2
  .amdhsa_user_sgpr_kernarg_segment_ptr 1
  .amdhsa_system_sgpr_workgroup_id_x 1
.end_amdhsa_kernel
"""
path = sys.argv[1] if len(sys.argv) > 1 else f"cdna_kernels/{NAME}.s"
open(path, "w").write(out)
```

```python
import sys, os, struct
NAME = "concat_heads__linear_attn_block__sliding_local_dilated__prompt"
TL_A = 0
TL_B = 0x200000
ACC = 0x400000
NON = 0x410000
WS_END = 0x420000
STAMP = os.environ.get("STAMP") == "1"
if STAMP: WS_END = 0x800000
LOG2E = 0x3FB8AA3B
EPS = 0x358637BD
for s in range(64*21): assert (s * 4682) >> 16 == s // 14

RS = 224
KREG = 64 * RS
QBASE = 7 * KREG
QREG = 32 * RS
KVB = QBASE + 7 * QREG
SCR = 50176
TILE_A = 86016
TILE_B = SCR + 20480
TS = 144
LDS_TOTAL = 163840
DEPTH = int(os.environ.get("DEPTH", "3"))
LA = int(os.environ.get("LA", "1"))
TWOPASS = os.environ.get("TWOPASS", "1") == "1"
XV = os.environ.get("XV", "1") == "1"
XB = os.environ.get("XB", "0") == "1"
POLLD = int(os.environ.get("POLLD", "2"))
def f2u(x): return struct.unpack('<I', struct.pack('<f', x))[0]
SC2 = f2u(28 ** -0.5 * 1.4426950408889634)
CNT_Z = 40 * 4

L = []
def e(s): L.append("    " + s)
def lab(s): L.append(s + ":")
def c(s): L.append("    ; " + s)
_uid = [0]
def uid(p):
    _uid[0] += 1
    return f"{p}_{_uid[0]}"

class VM:
    def __init__(self): self.ops = []
    def issue(self, tag): self.ops.append(tag)
    def wait(self, tag):
        idx = max(i for i, t in enumerate(self.ops) if t == tag)
        n = len(self.ops) - 1 - idx
        assert n < 64
        e(f"s_waitcnt vmcnt({n})")

def stamp(vm, i):
    if not STAMP: return
    e("s_memrealtime s[72:73]" if os.environ.get("RT") else "s_memtime s[72:73]")
    e("s_waitcnt lgkmcnt(0)")
    e("v_mov_b32 v28, s72")
    e("s_lshl_b32 s74, s2, 7")
    e(f"s_add_u32 s74, s74, {0x700000 + i*4}")
    e("v_mov_b32 v29, 0")
    e("v_cmp_eq_u32 vcc, 0, v0")
    e("s_and_saveexec_b64 s[76:77], vcc")
    e("buffer_store_dword v28, v29, s[40:43], s74 offen")
    e("s_mov_b64 exec, s[76:77]")
    vm.issue("stamp")

def phi_pair(dst, a, b, t):
    assert b == a + 1 and a % 2 == 0 and t % 2 == 0
    e(f"v_pk_mul_f32 v[{t}:{t+1}], v[{a}:{b}], s[70:71]")
    e(f"v_exp_f32 v{t}, v{t} clamp")
    e(f"v_exp_f32 v{t+1}, v{t+1} clamp")
    e(f"v_max_f32 v{a}, 0, v{a}")
    e(f"v_max_f32 v{b}, 0, v{b}")
    e(f"v_pk_add_f32 v[{t}:{t+1}], v[{t}:{t+1}], v[{a}:{b}]")
    e(f"v_cvt_pk_bf16_f32 v{dst}, v{t}, v{t+1}")

def srd(base, lo, hi, nbytes):
    e(f"s_mov_b32 s{base}, s{lo}")
    e(f"s_and_b32 s{base+1}, s{hi}, 0xffff")
    e(f"s_mov_b32 s{base+2}, 0x{nbytes:x}")
    e(f"s_mov_b32 s{base+3}, 0x20000")

XF = 32
BF = 200
T = 232
def xf(isB, ks, rt): return XF + ((ks*3+rt) if isB else (ks*2+rt))*4

def prologue():
    e("s_cmp_ge_u32 s2, 256")
    e("s_cbranch_scc1 K_END")
    e("s_load_dwordx4 s[4:7], s[0:1], 0")
    e("s_load_dwordx4 s[8:11], s[0:1], 16")
    e("s_load_dwordx4 s[12:15], s[0:1], 32")
    e("s_load_dwordx4 s[16:19], s[0:1], 48")
    e("s_load_dwordx2 s[20:21], s[0:1], 64")
    e("s_and_b32 s22, s2, 7")
    e("s_lshr_b32 s23, s2, 3")
    e("s_lshr_b32 s24, s22, 2")
    e("s_and_b32 s27, s22, 3")
    e("s_lshr_b32 s25, s27, 1")
    e("s_lshl_b32 s25, s25, 3")
    e("s_and_b32 s3, s23, 7")
    e("s_add_u32 s25, s25, s3")
    e("s_and_b32 s26, s27, 1")
    e("s_lshl_b32 s26, s26, 2")
    e("s_lshr_b32 s3, s23, 3")
    e("s_add_u32 s26, s26, s3")
    e("v_lshrrev_b32 v1, 6, v0")
    e("v_and_b32 v2, 63, v0")
    e("v_readfirstlane_b32 s48, v1")
    e("s_nop 3")
    for m in range(6):
        if m < 3:
            e(f"s_add_u32 s3, s48, {4*m}")
            e("s_movk_i32 s58, 896"); e("s_movk_i32 s59, 896")
            e(f"s_lshl_b32 s{50+m}, s3, 10")
        elif m == 3:
            e("s_add_u32 s3, s48, 12")
            e("s_sub_u32 s49, s48, 2")
            e("s_cmp_lt_u32 s48, 2")
            e("s_cselect_b32 s3, s3, s49")
            e("s_cselect_b32 s58, 896, 0")
            e("s_mov_b32 s59, 86016")
            e("s_cselect_b32 s59, 896, s59")
            e(f"s_movk_i32 s57, {QREG}")
            e(f"s_cselect_b32 s57, {KREG}, s57")
            e(f"s_cselect_b32 s49, 0, {QBASE}")
            e("s_lshl_b32 s53, s3, 10")
            e("s_add_u32 s53, s53, s49")
        else:
            if m == 4: e("s_add_u32 s3, s48, 2")
            else: e("s_mov_b32 s3, 6")
            e("s_mov_b32 s58, 0"); e("s_mov_b32 s59, 86016")
            e(f"s_lshl_b32 s{50+m}, s3, 10")
            e(f"s_add_u32 s{50+m}, s{50+m}, {QBASE}")
        e("s_lshl_b32 s3, s3, 6")
        e("v_add_u32 v3, s3, v2")
        e("v_mul_u32_u24 v4, 4682, v3")
        e("v_lshrrev_b32 v4, 16, v4")
        e("v_mul_u32_u24 v5, 14, v4")
        e("v_sub_u32 v3, v3, v5")
        e("v_cmp_lt_u32 vcc, 6, v3")
        e("v_cndmask_b32 v5, 0, 1, vcc")
        e("v_mul_u32_u24 v6, 7, v5")
        e("v_sub_u32 v3, v3, v6")
        e("v_mul_u32_u24 v4, 2688, v4")
        e("v_mul_u32_u24 v5, s59, v5")
        e("v_lshl_add_u32 v3, v3, 4, v4")
        e(f"v_add3_u32 v{8+m}, v3, v5, s58")
    e("v_lshrrev_b32 v3, 4, v2")
    e("v_bfe_u32 v4, v2, 2, 2")
    e("v_lshl_add_u32 v4, v3, 3, v4")
    e(f"v_mul_u32_u24 v4, {RS}, v4")
    e("v_and_b32 v5, 3, v2")
    e("v_lshl_add_u32 v14, v5, 3, v4")
    e(f"v_add_u32 v27, {QBASE}, v14")
    if XB:
        e("v_lshrrev_b32 v4, 2, v2")
        e("v_lshrrev_b32 v5, 5, v2")
        e("v_lshl_add_u32 v5, v5, 1, v2")
        e("v_and_b32 v6, 3, v5")
    else:
        e("v_and_b32 v4, 15, v2")
        e("v_lshrrev_b32 v6, 4, v2")
    e("s_lshl_b32 s3, s25, 7")
    e("v_lshl_add_u32 v5, v1, 5, v4")
    e("v_add_u32 v5, s3, v5")
    e("v_mul_u32_u24 v5, 896, v5")
    e("v_lshl_add_u32 v15, v6, 4, v5")
    e("v_add_u32 v16, 14336, v15")
    e("v_add_u32 v5, s3, v4")
    e("v_subrev_u32 v5, 16, v5")
    e("s_movk_i32 s49, 896")
    e("v_mul_lo_u32 v5, v5, s49")
    e("v_lshl_add_u32 v17, v6, 4, v5")
    if XV:
        e("v_lshrrev_b32 v4, 5, v2")
        e("v_bfe_u32 v5, v2, 2, 2")
        e("v_lshlrev_b32 v5, 2, v5")
        e("v_lshl_add_u32 v4, v4, 4, v5")
        e("v_lshl_add_u32 v4, v1, 5, v4")
        e("v_add_u32 v4, s3, v4")
        e("v_mul_u32_u24 v4, 896, v4")
        e("v_bfe_u32 v5, v2, 4, 1")
        e("v_lshl_add_u32 v4, v5, 6, v4")
        e("v_and_b32 v5, 3, v2")
        e("v_lshl_add_u32 v15, v5, 4, v4")
    e("v_and_b32 v4, 15, v2")
    e("v_lshrrev_b32 v5, 3, v4")
    e("v_lshl_add_u32 v5, v5, 1, v3")
    e("v_and_b32 v5, 3, v5")
    e("v_lshl_add_u32 v5, v4, 2, v5")
    e("v_lshlrev_b32 v30, 2, v5")
    e("s_mul_i32 s56, s26, 112")
    e(f"s_mov_b32 s70, 0x{LOG2E:x}")
    e(f"s_mov_b32 s71, 0x{LOG2E:x}")
    e("s_lshl_b32 s60, s24, 4")
    e("s_add_u32 s60, s60, s25")
    e("s_lshl_b32 s60, s60, 7")
    e(f"s_add_u32 s60, s60, 0x{NON:x}")
    e("s_and_b32 s81, s23, 7")
    e("s_lshr_b32 s3, s23, 3")
    e("s_lshl_b32 s3, s3, 1")
    e("s_add_u32 s81, s81, s3")
    for _ in range(2):
        e("s_cmp_ge_u32 s81, 7")
        e("s_cselect_b32 s3, 7, 0")
        e("s_sub_u32 s81, s81, s3")
    e("s_waitcnt lgkmcnt(0)")
    srd(40, 20, 21, WS_END)
    srd(44, 18, 19, 256)
    srd(88, 16, 17, 2048*1792)
    e("s_cmp_eq_u32 s24, 0")
    e("s_cbranch_scc0 K_SELB")
    srd(28, 4, 5, 2048*896)
    srd(32, 6, 7, 448*2688)
    srd(36, 8, 9, 448*896)
    e("s_branch K_A")
    lab("K_SELB")
    srd(28, 10, 11, 2048*896)
    srd(32, 12, 13, 448*2688)
    srd(36, 14, 15, 448*896)
    e("s_branch K_B")

def issue_step(vm, isB, i):
    q = []
    def hdr():
        e("s_mul_i32 s83, s81, 172032")
        e("s_add_u32 s83, s83, s56")
        e("s_lshl_b32 s85, s81, 7")
        e("s_add_u32 s81, s81, 1")
        e("s_cmp_eq_u32 s81, 7")
        e("s_cselect_b32 s81, 0, s81")
    def dma(m):
        def f():
            if m == 5:
                hdr()
                sk = uid("D5")
                e("s_cmp_eq_u32 s48, 0")
                e(f"s_cbranch_scc0 {sk}")
            e(f"s_mov_b32 m0, s{50+m}")
            e(f"s_add_u32 s{50+m}, s{50+m}, " + (str(KREG) if m < 3 else ("s57" if m == 3 else str(QREG))))
            e(f"buffer_load_dwordx4 v{8+m}, s[32:35], s83 offen lds")
            if m == 5: lab(sk)
            else: vm.issue(f"c{i}")
        return f
    def xl(kk, rt):
        def f():
            ks = 2*i + kk
            x = xf(isB, ks, rt)
            if rt == 2:
                sk = uid("HL")
                e("s_cmp_eq_u32 s48, 3")
                e(f"s_cbranch_scc0 {sk}")
            if XV and rt < 2:
                e(f"buffer_load_dwordx4 v[{x}:{x+3}], v15, s[28:31], s85 offen offset:{(kk*2+rt)*896}")
            else:
                e(f"buffer_load_dwordx4 v[{x}:{x+3}], v{15+rt}, s[28:31], s85 offen offset:{kk*64}")
            if rt == 2: lab(sk)
            else: vm.issue(f"x{i}")
        return f
    q.append(dma(5))
    if isB:
        for kk in range(2): q.append(xl(kk, 2))
    for kk in range(2):
        for rt in range(2): q.append(xl(kk, rt))
    for m in range(5): q.append(dma(m))
    return q

def xtrans(isB, i):
    F = [xf(isB, 2*i + (u >> 1), u & 1) for u in range(4)]
    T0, T1 = T, T + 4
    def vcc(m): return [f"s_mov_b32 vcc_lo, 0x{m:x}", f"s_mov_b32 vcc_hi, 0x{m:x}"]
    def sel(d, dp, keep, qp): return [f"v_cndmask_b32_dpp v{d+r}, v{dp+r}, v{keep+r}, vcc quad_perm:{qp} row_mask:0xf bank_mask:0xf" for r in range(4)]
    a = []
    a += vcc(0x55555555) + sel(T0, F[1], F[0], "[0,0,2,2]") + sel(T1, F[3], F[2], "[0,0,2,2]")
    a += vcc(0xaaaaaaaa) + sel(F[1], F[0], F[1], "[1,1,3,3]") + sel(F[3], F[2], F[3], "[1,1,3,3]")
    a += vcc(0x33333333) + sel(F[0], T1, T0, "[0,1,0,1]") + sel(F[2], F[3], F[1], "[0,1,0,1]")
    a += vcc(0xcccccccc) + sel(F[3], F[1], F[3], "[2,3,2,3]") + sel(F[1], T0, T1, "[2,3,2,3]")
    b = []
    for (p, q) in ((0, 1), (2, 3)):
        b += [f"v_permlane32_swap_b32 v{F[p]+r}, v{F[q]+r}" for r in range(4)]
    for (p, q) in ((0, 2), (1, 3)):
        b += [f"v_permlane16_swap_b32 v{F[p]+r}, v{F[q]+r}" for r in range(4)]
    return a, b

def bperm(isB, i):
    q = []
    def one(x):
        def f():
            for r in range(4): e(f"ds_bpermute_b32 v{x+r}, v30, v{x+r}")
        return f
    def halo():
        sk = uid("HB")
        e("s_cmp_eq_u32 s48, 3")
        e(f"s_cbranch_scc0 {sk}")
        for kk in range(2): one(xf(True, 2*i+kk, 2))()
        lab(sk)
    for kk in range(2):
        for rt in range(2): q.append(one(xf(isB, 2*i+kk, rt)))
    if isB: q.append(halo)
    return q

def wo_voffs():
    e("s_mul_i32 s3, s26, 112")
    for t in range(7):
        e(f"v_add_u32 v3, {t*64}, v2")
        e("v_mul_u32_u24 v4, 4682, v3")
        e("v_lshrrev_b32 v4, 16, v4")
        e("v_mul_u32_u24 v5, 14, v4")
        e("v_sub_u32 v3, v3, v5")
        e("v_cmp_lt_u32 vcc, 6, v3")
        e("v_cndmask_b32 v5, 0, 1, vcc")
        e("v_mul_u32_u24 v6, 7, v5")
        e("v_sub_u32 v3, v3, v6")
        e("v_mul_u32_u24 v5, 224, v5")
        e("v_add_u32 v4, v4, v5")
        e("v_mul_u32_u24 v4, 896, v4")
        e("v_lshl_add_u32 v3, v3, 4, v4")
        e(f"v_add_u32 v{20+t}, s3, v3")

def wo_dma(vm):
    q = []
    def one(m, t):
        def f():
            if t == 0:
                if m == 0: e("s_mov_b32 s86, s48")
                else:
                    e("s_add_u32 s86, s48, 4")
                    e("s_min_u32 s86, s86, 6")
                e("s_mul_i32 s84, s86, 7168")
                e("s_mul_i32 s86, s86, 28672")
            e(f"s_add_u32 m0, s84, {t*1024}")
            e("s_nop 0")
            e(f"buffer_load_dwordx4 v{20+t}, s[36:39], s86 offen lds")
            vm.issue("wo")
        return f
    for m in range(2):
        for t in range(7): q.append(one(m, t))
    return q

def tcol(isB, grp, t):
    return (t >> 1)*56 + (t & 1)*(24 if (not isB and grp < 2) else 32)

def gemm(vm, isB):
    e("v_mov_b32 v3, 0")
    e("buffer_load_dword v31, v3, s[40:43], s60 offen sc0 sc1")
    vm.issue("non")
    if not isB:
        for r in range(4): e(f"v_mov_b32 v{4+r}, 0")
        zs = uid("ZS")
        e("s_cmp_eq_u32 s25, 0")
        e(f"s_cbranch_scc0 {zs}")
        e("s_lshl_b32 s3, s26, 13")
        e(f"s_add_u32 s3, s3, 0x{ACC:x}")
        e("v_lshlrev_b32 v3, 5, v0")
        e("buffer_store_dwordx4 v[4:7], v3, s[40:43], s3 offen sc0 sc1")
        e("buffer_store_dwordx4 v[4:7], v3, s[40:43], s3 offen offset:16 sc0 sc1")
        lab(zs)
    for i in range(DEPTH):
        for f in issue_step(vm, isB, i): f()
    for i in range(128 if isB else 96):
        e(f"v_accvgpr_write_b32 a{i}, 0")
    wo_voffs()
    grps = (0, 1, 2) if (isB or not TWOPASS) else (1, 2)
    e(f"v_add_u32 v18, {4*KREG}, v14")
    GG = [(ch, kk, grp) for ch in range(7) for kk in range(2) for grp in grps]
    NG = len(GG); PER = 2*len(grps)
    def rd(i):
        ch, kk, grp = GG[i]
        for t in range(4):
            for hf in range(2):
                r = BF + (i % 2)*16 + t*4 + hf*2
                if grp == 0:
                    off = ch*QREG + 4*hf*RS + kk*112 + tcol(isB, grp, t)
                    e(f"ds_read_b64_tr_b16 v[{r}:{r+1}], v27 offset:{off}")
                else:
                    off = (ch & 3)*KREG + (32*kk + 4*hf)*RS + (grp-1)*112 + tcol(isB, grp, t)
                    e(f"ds_read_b64_tr_b16 v[{r}:{r+1}], v{14 if ch < 4 else 18} offset:{off}")
    def step_sync(ch):
        vm.wait(f"c{ch}")
        if XB:
            for f in bperm(isB, ch): f()
        e("s_barrier")
        stamp(vm, 12 + ch)
        if ch == 0:
            e("v_readfirstlane_b32 s93, v31")
            e("s_nop 3")
            e("s_add_u32 s93, s93, 1")
            e("s_and_b32 s94, s93, 0xffff")
            e("s_lshl_b32 s61, s93, 16")
        if ch == 0 and not isB:
            zs = uid("ZF")
            e("s_cmp_eq_u32 s25, 0")
            e(f"s_cbranch_scc0 {zs}")
            e("v_cmp_eq_u32 vcc, 0, v0")
            e("s_and_saveexec_b64 s[62:63], vcc")
            e("s_lshl_b32 s3, s26, 2")
            e(f"v_mov_b32 v3, {CNT_Z}")
            e("v_mov_b32 v4, 1")
            e("buffer_store_dword v4, v3, s[44:47], s3 offen sc0 sc1")
            e("s_mov_b64 exec, s[62:63]")
            lab(zs)
    if XV:
        vm.wait("x0")
        a_, b_ = xtrans(isB, 0)
        for q in a_ + ["s_nop 1"] + b_: e(q)
    step_sync(0)
    rd(0)
    pend = []
    xq = []
    for i in range(NG):
        ch, kk, grp = GG[i]
        ks = 2*ch + kk
        if i % PER == 0:
            assert not pend
            if ch + DEPTH < 7: pend = issue_step(vm, isB, ch + DEPTH)
            if ch == 5:
                woq = wo_dma(vm)
                pend = pend + woq[:7]
            if ch == 6: pend = woq[7:]
            per_slot = -(-len(pend) // ((PER-1)*4))
            if ch == 5 and not isB:
                e(f"v_mov_b32 v3, {CNT_Z}")
                e("s_lshl_b32 s3, s26, 2")
                e("buffer_load_dword v19, v3, s[44:47], s3 offen sc0 sc1")
                vm.issue("zchk")
        if i + 1 < NG:
            if (i + 1) % PER == 0: step_sync(ch + 1)
            rd(i + 1)
        e(f"s_waitcnt lgkmcnt({8 if i + 1 < NG else 0})")
        tr = (grp == 0) or (isB and grp == 1)
        if XV and ch < 6 and i % PER == PER - 2:
            vm.wait(f"x{ch+1}")
            xq, xq2 = xtrans(isB, ch+1)
        if XV and ch < 6 and i % PER == PER - 1:
            assert not xq
            xq = xq2
        xper = -(-len(xq) // 8)
        for t in range(4):
            ct = grp*4 + t
            b = BF + (i % 2)*16 + t*4
            for rt in range(3):
                if rt == 2 and (not isB or grp == 0): continue
                x = xf(isB, ks, rt)
                a = (rt*12 + ct)*4 if rt < 2 else 96 + (ct-4)*4
                sk = None
                if rt == 2:
                    sk = uid("HS")
                    e("s_cmp_eq_u32 s48, 3")
                    e(f"s_cbranch_scc0 {sk}")
                if tr:
                    e(f"v_mfma_f32_16x16x32_bf16 a[{a}:{a+3}], v[{b}:{b+3}], v[{x}:{x+3}], a[{a}:{a+3}]")
                else:
                    e(f"v_mfma_f32_16x16x32_bf16 a[{a}:{a+3}], v[{x}:{x+3}], v[{b}:{b+3}], a[{a}:{a+3}]")
                if sk: lab(sk)
                if rt < 2:
                    for _ in range(xper):
                        if xq: e(xq.pop(0))
            for _ in range(per_slot):
                if pend: pend.pop(0)()
        assert not xq
    assert not pend

def pass2():
    G = [(ch, kk) for ch in range(7) for kk in range(2)]
    def rd(i):
        ch, kk = G[i]
        for t in range(4):
            for hf in range(2):
                r = BF + (i % 2)*16 + t*4 + hf*2
                off = ch*QREG + 4*hf*RS + kk*112 + tcol(False, 0, t)
                e(f"ds_read_b64_tr_b16 v[{r}:{r+1}], v27 offset:{off}")
    rd(0)
    for i in range(14):
        ch, kk = G[i]
        if i + 1 < 14: rd(i + 1)
        e(f"s_waitcnt lgkmcnt({8 if i < 13 else 0})")
        for t in range(4):
            b = BF + (i % 2)*16 + t*4
            for rt in range(2):
                x = xf(False, 2*ch + kk, rt)
                a = (rt*12 + t)*4
                e(f"v_mfma_f32_16x16x32_bf16 a[{a}:{a+3}], v[{b}:{b+3}], v[{x}:{x+3}], a[{a}:{a+3}]")

def tile_prep(lds_base):
    e("v_cmp_eq_u32 vcc, 2, v6")
    e("v_mov_b32 v20, 0x03020100")
    e("v_mov_b32 v21, 0x05040100")
    e("v_cndmask_b32 v20, v20, v21, vcc")
    e("v_cmp_eq_u32 vcc, 0, v6")
    e("v_mov_b32 v22, 0x05040302")
    e("v_cndmask_b32 v21, v22, v21, vcc")
    e("v_mul_u32_u24 v22, 0x202, v6")
    e("v_sub_u32 v22, 0x706, v22")
    e("v_mov_b32 v23, s94")
    e("v_lshl_add_u32 v24, v1, 5, v5")
    e(f"v_mul_u32_u24 v24, {TS}, v24")
    e(f"v_add_u32 v24, {lds_base}, v24")
    e("v_lshl_add_u32 v25, v6, 1, v24")
    e("v_lshl_add_u32 v24, v6, 4, v24")
    e("v_cmp_eq_u32 s[68:69], 3, v6")

def tile_put(n, rt, hh):
    e(f"v_cvt_pk_bf16_f32 v{n}, v{n}, v{n+1}")
    e(f"v_cvt_pk_bf16_f32 v{n+1}, v{n+2}, v{n+3}")
    e(f"v_cvt_pk_bf16_f32 v{n+4}, v{n+4}, v{n+5}")
    e(f"v_cvt_pk_bf16_f32 v{n+5}, v{n+6}, v{n+7}")
    e(f"v_perm_b32 v{n+2}, v{n+5}, v{n+4}, v20")
    e(f"v_perm_b32 v{n+3}, v23, v{n+5}, v21")
    e(f"v_perm_b32 v{n+6}, v{n+5}, v{n+4}, v22")
    e(f"v_cndmask_b32 v{n+6}, v{n+6}, v23, s[68:69]")
    e(f"ds_write_b128 v24, v[{n}:{n+3}] offset:{rt*16*TS + hh*64}")
    e(f"ds_write_b16 v25, v{n+6} offset:{rt*16*TS + hh*64 + 56}")

def tile_flush(vm, lds_base, gbase):
    e("v_lshrrev_b32 v3, 7, v0")
    e("v_and_b32 v4, 15, v0")
    e("v_lshl_add_u32 v3, v3, 4, v4")
    e(f"v_mul_u32_u24 v7, {TS}, v3")
    e("v_bfe_u32 v4, v0, 4, 3")
    e("v_lshl_add_u32 v7, v4, 4, v7")
    e(f"v_add_u32 v7, {lds_base}, v7")
    e("v_lshlrev_b32 v3, 4, v0")
    e("s_lshl_b32 s3, s25, 17")
    e("s_lshl_b32 s27, s26, 14")
    e("s_add_u32 s3, s3, s27")
    e(f"s_add_u32 s3, s3, 0x{gbase:x}")
    e("s_waitcnt lgkmcnt(0)")
    e("s_barrier")
    for it in range(4):
        e(f"ds_read_b128 v[{T+it*4}:{T+it*4+3}], v7 offset:{it*32*TS}")
    for it in range(4):
        e(f"s_waitcnt lgkmcnt({3-it})")
        e(f"buffer_store_dwordx4 v[{T+it*4}:{T+it*4+3}], v3, s[40:43], s3 offen sc0 sc1")
        vm.issue("tile")
        if it < 3: e("s_add_u32 s3, s3, 4096")

def acc_read4(dst, a):
    for r in range(4):
        e(f"v_accvgpr_read_b32 v{dst+r}, a{a+r}")

def epi_A(vm):
    c("---- A epilogue: KV partial first ----")
    e("s_nop 7")
    e("s_nop 7")
    e("v_and_b32 v5, 15, v2")
    e("v_lshrrev_b32 v6, 4, v2")
    e("v_cmp_le_u32 s[64:65], 12, v5")
    PK = 144; VV = 160; KP = 176; RD = 144
    for t in range(4):
        for rt in range(2):
            acc_read4(T+8, (rt*12 + 4 + t)*4)
            phi_pair(PK + t*4 + rt*2, T+8, T+9, T)
            phi_pair(PK + t*4 + rt*2 + 1, T+10, T+11, T+2)
    e("v_mov_b32 v7, 0x3f803f80")
    for t in range(4):
        for rt in range(2):
            acc_read4(T+8, (rt*12 + 8 + t)*4)
            d = VV + t*4 + rt*2
            e(f"v_cvt_pk_bf16_f32 v{d}, v{T+8}, v{T+9}")
            e(f"v_cvt_pk_bf16_f32 v{d+1}, v{T+10}, v{T+11}")
            if t & 1:
                e(f"v_cndmask_b32 v{d}, v{d}, v7, s[64:65]")
                e(f"v_cndmask_b32 v{d+1}, v{d+1}, v7, s[64:65]")
    e("s_nop 1")
    for hh in range(2):
        for et in range(2):
            for dt in range(2):
                d = KP + (hh*4 + et*2 + dt)*4
                va = VV + (hh*2+et)*4; pk = PK + (hh*2+dt)*4
                e(f"v_mfma_f32_16x16x32_bf16 v[{d}:{d+3}], v[{va}:{va+3}], v[{pk}:{pk+3}], 0")
    e("s_lshl_b32 s3, s48, 13")
    e(f"s_add_u32 s3, s3, {SCR}")
    e("v_lshlrev_b32 v3, 4, v2")
    e("v_add_u32 v4, s3, v3")
    e("s_nop 7")
    e("s_nop 3")
    for i in range(8):
        e(f"ds_write_b128 v4, v[{KP+i*4}:{KP+i*4+3}] offset:{i*1024}")
    e("s_waitcnt lgkmcnt(0)")
    e("s_barrier")
    e("s_lshl_b32 s3, s48, 11")
    e(f"s_add_u32 s3, s3, {SCR}")
    e("v_add_u32 v4, s3, v3")
    for dt in range(2):
        for w in range(4):
            r = RD + (dt*4 + w)*4
            e(f"ds_read_b128 v[{r}:{r+3}], v4 offset:{w*8192 + dt*1024}")
    e("s_lshr_b32 s3, s48, 1")
    e("s_lshl_b32 s27, s26, 1")
    e("s_add_u32 s3, s3, s27")
    e("s_lshl_b32 s3, s3, 12")
    e("s_and_b32 s27, s48, 1")
    e("s_lshl_b32 s58, s27, 11")
    e("s_add_u32 s3, s3, s58")
    e(f"s_add_u32 s59, s3, 0x{ACC:x}")
    e("v_lshlrev_b32 v8, 9, v6")
    e("v_lshl_add_u32 v8, v5, 2, v8")
    e("v_cmp_gt_u32 s[66:67], 3, v6")
    e("s_cmp_eq_u32 s27, 1")
    e("s_cselect_b64 s[66:67], s[66:67], -1")
    e("v_cmp_le_u32 s[64:65], 14, v5")
    e("v_cmp_gt_u32 s[68:69], 2, v5")
    e("s_waitcnt lgkmcnt(0)")
    for dt in range(2):
        b = RD + dt*16
        for r in range(4):
            e(f"v_add_f32 v{b+r}, v{b+r}, v{b+4+r}")
            e(f"v_add_f32 v{b+8+r}, v{b+8+r}, v{b+12+r}")
        for r in range(4):
            e(f"v_add_f32 v{b+r}, v{b+r}, v{b+8+r}")
        for r in range(4):
            e(f"v_cndmask_b32 v{b+r}, v{b+r}, 1.0, s[{64+4*dt}:{65+4*dt}]")
    vm.wait("zchk")
    zl = uid("ZL"); zd = uid("ZD")
    e("s_mov_b32 s78, 0")
    lab(zl)
    e("v_readfirstlane_b32 s79, v19")
    e("s_nop 3")
    e("s_cmp_eq_u32 s79, 1")
    e(f"s_cbranch_scc1 {zd}")
    e("s_add_u32 s78, s78, 1")
    e("s_cmp_gt_u32 s78, 0x40000")
    e(f"s_cbranch_scc1 {zd}")
    e("s_sleep 1")
    e(f"v_mov_b32 v3, {CNT_Z}")
    e("s_lshl_b32 s3, s26, 2")
    e("buffer_load_dword v19, v3, s[44:47], s3 offen sc0 sc1")
    e("s_waitcnt vmcnt(0)")
    e(f"s_branch {zl}")
    lab(zd)
    for dt in range(2):
        e(f"buffer_atomic_add_f32 v{RD+dt*16}, v8, s[40:43], s59 offen offset:{dt*64} sc1")
        vm.issue("kvat")
    e("s_mov_b64 s[62:63], exec")
    e("s_mov_b64 exec, s[66:67]")
    for r in range(1, 4):
        for dt in range(2):
            e(f"buffer_atomic_add_f32 v{RD+dt*16+r}, v8, s[40:43], s59 offen offset:{r*128 + dt*64} sc1")
            vm.issue("kvat")
    e("s_mov_b64 exec, s[62:63]")
    stamp(vm, 4)
    if TWOPASS:
        pass2()
    stamp(vm, 7)
    PR = 176
    e("v_lshlrev_b32 v9, 4, v2")
    def kv_issue():
        for j in range(2):
            e(f"buffer_load_dwordx4 v[{PR+j*4}:{PR+j*4+3}], v9, s[40:43], s59 offen offset:{j*1024} sc0 sc1")
    kv_issue()
    e("v_and_b32 v10, 7, v2")
    e("v_lshrrev_b32 v11, 3, v2")
    e("v_cmp_eq_u32 s[4:5], 3, v10")
    e("v_cmp_eq_u32 s[6:7], 4, v10")
    e("s_or_b64 s[6:7], s[6:7], s[4:5]")
    e("v_cmp_gt_u32 s[8:9], 5, v11")
    e("s_cmp_eq_u32 s27, 1")
    e("s_cselect_b64 s[8:9], s[8:9], -1")
    e("s_and_b64 s[8:9], s[8:9], s[6:7]")
    e("v_and_b32 v12, 3, v10")
    e("v_lshlrev_b32 v12, 4, v12")
    e("v_lshrrev_b32 v10, 2, v10")
    e("v_lshl_add_u32 v12, v10, 3, v12")
    e("v_lshl_add_u32 v12, v11, 6, v12")
    e("s_lshl_b32 s3, s48, 10")
    e(f"s_add_u32 s3, s3, {KVB}")
    e("v_add_u32 v12, s3, v12")
    c("---- phi(q) frags in regs ----")
    QF = 144
    e("v_cmp_eq_u32 s[10:11], 3, v6")
    e("v_cmp_eq_u32 s[12:13], 0, v6")
    e("s_nop 7")
    for rt in range(2):
        for t in range(4):
            acc_read4(T+8, (rt*12 + t)*4)
            d = QF + (rt*2 + (t >> 1))*4 + (t & 1)*2
            phi_pair(d, T+8, T+9, T)
            phi_pair(d+1, T+10, T+11, T+2)
            if t & 1: e(f"v_cndmask_b32 v{d}, v{d}, 0, s[12:13]")
            else: e(f"v_cndmask_b32 v{d+1}, v{d+1}, 0, s[10:11]")
    tile_prep(TILE_A)
    e("v_lshlrev_b32 v10, 6, v5")
    e("v_lshl_add_u32 v10, v6, 4, v10")
    e(f"v_add_u32 v10, {KVB}, v10")
    e("v_lshlrev_b32 v11, 4, v6")
    e(f"v_add_u32 v11, {KVB + 28*64}, v11")
    lp = uid("KVL"); dn = uid("KVD")
    e("s_mov_b32 s78, 0")
    lab(lp)
    e("s_waitcnt vmcnt(0)")
    e(f"v_cndmask_b32 v13, v{PR}, v{PR+2}, s[4:5]")
    e("v_cmp_eq_f32 vcc, 0x41800000, v13")
    e("s_and_b64 s[14:15], vcc, s[6:7]")
    e(f"v_cndmask_b32 v13, v{PR+4}, v{PR+6}, s[4:5]")
    e("v_cmp_eq_f32 vcc, 0x41800000, v13")
    e("s_and_b64 s[16:17], vcc, s[8:9]")
    e("s_xor_b64 s[14:15], s[14:15], s[6:7]")
    e("s_xor_b64 s[16:17], s[16:17], s[8:9]")
    e("s_or_b64 s[14:15], s[14:15], s[16:17]")
    e(f"s_cbranch_scc0 {dn}")
    e("s_add_u32 s78, s78, 1")
    e("s_cmp_gt_u32 s78, 0x40000")
    e(f"s_cbranch_scc1 {dn}")
    kv_issue()
    e(f"s_branch {lp}")
    lab(dn)
    for j in range(2):
        r = PR + j*4
        e(f"v_cvt_pk_bf16_f32 v{r}, v{r}, v{r+1}")
        e(f"v_cvt_pk_bf16_f32 v{r+1}, v{r+2}, v{r+3}")
        e(f"ds_write_b64 v12, v[{r}:{r+1}] offset:{j*512}")
    e("s_waitcnt lgkmcnt(0)")
    e("s_barrier")
    stamp(vm, 10)
    R = 176
    for hh in range(2):
        for f in range(3):
            r = R + (hh*3+f)*4
            e(f"ds_read_b128 v[{r}:{r+3}], v{10 if f < 2 else 11} offset:{hh*2048 + (f*1024 if f < 2 else 0)}")
    NR = 32
    for hh in range(2):
        e(f"s_waitcnt lgkmcnt({3 - 3*hh})")
        for rt in range(2):
            n = NR + (hh*2+rt)*12
            q = QF + (rt*2+hh)*4
            for f in range(3):
                r = R + (hh*3+f)*4
                e(f"v_mfma_f32_16x16x32_bf16 v[{n+f*4}:{n+f*4+3}], v[{r}:{r+3}], v[{q}:{q+3}], 0")
    e("s_nop 7")
    e("s_nop 3")
    for hh in range(2):
        for rt in range(2):
            n = NR + (hh*2+rt)*12
            e(f"v_add_f32 v12, 0x{EPS:x}, v{n+8}")
            e("v_rcp_f32 v12, v12")
            e("s_nop 0")
            e("v_mov_b32 v13, v12")
            for q in range(4):
                e(f"v_pk_mul_f32 v[{n+2*q}:{n+2*q+1}], v[{n+2*q}:{n+2*q+1}], v[12:13]")
            tile_put(n, rt, hh)
    tile_flush(vm, TILE_A, TL_A)
    stamp(vm, 5)

def epi_B(vm):
    c("---- B epilogue: MFMA banded attention ----")
    QF = 32; KF = 48; VF = 72
    e("s_nop 7")
    e("s_nop 7")
    e("v_and_b32 v5, 15, v2")
    e("v_lshrrev_b32 v6, 4, v2")
    e("v_cmp_gt_u32 s[64:65], 3, v6")
    e("v_lshlrev_b32 v3, 4, v2")
    e("v_lshlrev_b32 v7, 3, v2")
    hk = uid("HE")
    e("s_cmp_eq_u32 s48, 3")
    e(f"s_cbranch_scc0 {hk}")
    e(f"v_add_u32 v4, {SCR}, v3")
    e(f"v_add_u32 v8, {SCR + 2048}, v7")
    for t in range(4):
        acc_read4(T, 96 + t*4)
        acc_read4(T+4, 112 + t*4)
        e(f"v_cvt_pk_bf16_f32 v{T+8}, v{T}, v{T+1}")
        e(f"v_cvt_pk_bf16_f32 v{T+9}, v{T+2}, v{T+3}")
        e(f"v_cvt_pk_bf16_f32 v{T+10}, v{T+4}, v{T+5}")
        e(f"v_cvt_pk_bf16_f32 v{T+11}, v{T+6}, v{T+7}")
        e(f"ds_write_b64 v4, v[{T+8}:{T+9}] offset:{(t>>1)*1024 + (t&1)*8}")
        e(f"ds_write_b64 v8, v[{T+10}:{T+11}] offset:{t*512}")
    lab(hk)
    for hh in range(2):
        for dt in range(2):
            acc_read4(T, (12 + 4 + hh*2 + dt)*4)
            d = KF + (2*2+hh)*4 + dt*2
            e(f"v_cvt_pk_bf16_f32 v{d}, v{T}, v{T+1}")
            e(f"v_cvt_pk_bf16_f32 v{d+1}, v{T+2}, v{T+3}")
        for et in range(2):
            acc_read4(T, (12 + 8 + hh*2 + et)*4)
            d = VF + (hh*2+et)*6 + 4
            e(f"v_cvt_pk_bf16_f32 v{d}, v{T}, v{T+1}")
            e(f"v_cvt_pk_bf16_f32 v{d+1}, v{T+2}, v{T+3}")
    e("s_lshl_b32 s3, s48, 12")
    e(f"s_add_u32 s3, s3, {SCR + 4096}")
    e("v_add_u32 v4, s3, v3")
    e("v_add_u32 v8, s3, v7")
    for hh in range(2):
        d = KF + (2*2+hh)*4
        e(f"ds_write_b128 v4, v[{d}:{d+3}] offset:{hh*1024}")
        for et in range(2):
            d = VF + (hh*2+et)*6 + 4
            e(f"ds_write_b64 v8, v[{d}:{d+1}] offset:{2048 + (hh*2+et)*512}")
    for rt in range(2):
        for hh in range(2):
            for dt in range(2):
                acc_read4(T, (rt*12 + hh*2 + dt)*4)
                d = QF + (rt*2+hh)*4 + dt*2
                e(f"v_cvt_pk_bf16_f32 v{d}, v{T}, v{T+1}")
                e(f"v_cvt_pk_bf16_f32 v{d+1}, v{T+2}, v{T+3}")
                if dt == 1:
                    e(f"v_cndmask_b32 v{d}, 0, v{d}, s[64:65]")
                    e(f"v_cndmask_b32 v{d+1}, 0, v{d+1}, s[64:65]")
    for hh in range(2):
        for dt in range(2):
            acc_read4(T, (4 + hh*2 + dt)*4)
            d = KF + (1*2+hh)*4 + dt*2
            e(f"v_cvt_pk_bf16_f32 v{d}, v{T}, v{T+1}")
            e(f"v_cvt_pk_bf16_f32 v{d+1}, v{T+2}, v{T+3}")
        for et in range(2):
            acc_read4(T, (8 + hh*2 + et)*4)
            d = VF + (hh*2+et)*6 + 2
            e(f"v_cvt_pk_bf16_f32 v{d}, v{T}, v{T+1}")
            e(f"v_cvt_pk_bf16_f32 v{d+1}, v{T+2}, v{T+3}")
    vm.wait("wo")
    e("s_waitcnt lgkmcnt(0)")
    e("s_barrier")
    e("s_lshl_b32 s3, s48, 12")
    e(f"s_add_u32 s3, s3, {SCR}")
    e("v_add_u32 v4, s3, v3")
    e("v_add_u32 v8, s3, v7")
    for hh in range(2):
        d = KF + hh*4
        e(f"ds_read_b128 v[{d}:{d+3}], v4 offset:{hh*1024}")
        for et in range(2):
            d = VF + (hh*2+et)*6
            e(f"ds_read_b64 v[{d}:{d+1}], v8 offset:{2048 + (hh*2+et)*512}")
    e("v_and_b32 v9, 1, v5")
    e("v_cmp_eq_u32 s[4:5], 1, v9")
    e("v_mov_b32 v10, 0xffff")
    e("v_mov_b32 v11, 0xffff0000")
    e("v_cndmask_b32 v10, v10, v11, s[4:5]")
    e("v_lshl_add_u32 v11, v6, 2, v9")
    e("v_sub_u32 v11, v11, v5")
    for k in range(4):
        addk = 2*k if k < 2 else 16 + 2*(k-2)
        e(f"v_add_u32 v12, {addk}, v11")
        e(f"v_cmp_le_i32 s[{6+2*k}:{7+2*k}], 2, v12")
        e(f"v_cmp_ge_i32 vcc, 16, v12")
        e(f"s_and_b64 s[{6+2*k}:{7+2*k}], s[{6+2*k}:{7+2*k}], vcc")
    e("s_or_b32 s3, s25, s48")
    e("s_cmp_eq_u32 s3, 0")
    e("s_cselect_b64 s[14:15], 0, -1")
    e("s_and_b64 s[16:17], s[6:7], s[14:15]")
    e("s_and_b64 s[18:19], s[8:9], s[14:15]")
    tile_prep(TILE_B)
    e("s_waitcnt lgkmcnt(0)")
    S = 96
    for rt in range(2):
        for hh in range(2):
            sb = S + (rt*2+hh)*8
            q = QF + (rt*2+hh)*4
            for ti in range(2):
                k = KF + ((rt+ti)*2+hh)*4
                e(f"v_mfma_f32_16x16x32_bf16 v[{sb+ti*4}:{sb+ti*4+3}], v[{k}:{k+3}], v[{q}:{q+3}], 0")
    e("s_nop 7")
    e("s_nop 3")
    e("v_mov_b32 v13, 0xce6e6b28")
    P = 128
    W = 144
    def seq(rt, hh):
        cb = rt*2+hh
        sb = S + cb*8
        lg = W + cb*8; m = lg + 4; m2 = lg + 5
        o = []
        for k in range(4):
            o.append(f"v_cndmask_b32 v{lg+k}, v{sb+2*k}, v{sb+2*k+1}, s[4:5]")
        for k in range(4):
            ms = (16 + 2*k) if (rt == 0 and k < 2) else (6 + 2*k)
            o.append(f"v_cndmask_b32 v{lg+k}, v13, v{lg+k}, s[{ms}:{ms+1}]")
        o.append(f"v_max3_f32 v{m}, v{lg}, v{lg+1}, v{lg+2}")
        o.append(f"v_max_f32 v{m}, v{m}, v{lg+3}")
        o.append(f"v_mov_b32 v{m2}, v{m}")
        o.append(f"v_permlane16_swap_b32 v{m}, v{m2}")
        o.append(f"v_max_f32 v{m}, v{m}, v{m2}")
        o.append(f"v_mov_b32 v{m2}, v{m}")
        o.append(f"v_permlane32_swap_b32 v{m}, v{m2}")
        o.append(f"v_max_f32 v{m}, v{m}, v{m2}")
        o.append(f"v_mul_f32 v{m}, 0x{SC2 ^ 0x80000000:x}, v{m}")
        for k in range(4):
            o.append(f"v_fma_f32 v{lg+k}, v{lg+k}, s20, v{m}")
        for k in range(4):
            o.append(f"v_exp_f32 v{lg+k}, v{lg+k}")
        o.append(f"v_add_f32 v{m}, v{lg}, v{lg+1}")
        o.append(f"v_add_f32 v{m2}, v{lg+2}, v{lg+3}")
        o.append(f"v_add_f32 v{m}, v{m}, v{m2}")
        o.append(f"v_mov_b32 v{m2}, v{m}")
        o.append(f"v_permlane16_swap_b32 v{m}, v{m2}")
        o.append(f"v_add_f32 v{m}, v{m}, v{m2}")
        o.append(f"v_mov_b32 v{m2}, v{m}")
        o.append(f"v_permlane32_swap_b32 v{m}, v{m2}")
        o.append(f"v_add_f32 v{m}, v{m}, v{m2}")
        o.append(f"v_rcp_f32 v{m}, v{m}")
        for k in range(4):
            o.append(f"v_mul_f32 v{lg+k}, v{lg+k}, v{m}")
            o.append(f"v_cvt_pk_bf16_f32 v{P+cb*4+k}, v{lg+k}, v{lg+k}")
            o.append(f"v_and_b32 v{P+cb*4+k}, v{P+cb*4+k}, v10")
        return o
    e(f"s_mov_b32 s20, 0x{SC2:x}")
    seqs = [seq(rt, hh) for rt in range(2) for hh in range(2)]
    for i in range(len(seqs[0])):
        for q in seqs: e(q[i])
    e("s_nop 1")
    O = 176
    for rt in range(2):
        for hh in range(2):
            cb = rt*2+hh
            for et in range(2):
                o = O + (cb*2+et)*4
                v = VF + (hh*2+et)*6 + 2*rt
                e(f"v_mfma_f32_16x16x32_bf16 v[{o}:{o+3}], v[{v}:{v+3}], v[{P+cb*4}:{P+cb*4+3}], 0")
    e("s_nop 7")
    e("s_nop 3")
    for rt in range(2):
        for hh in range(2):
            tile_put(O + (rt*2+hh)*8, rt, hh)
    tile_flush(vm, TILE_B, TL_B)
    stamp(vm, 5)

ROW2 = [16,17,18,19, 20,21,23,22, 24,26,27,25, 19,22,25,24]
C0 = sum((ROW2[i]-16) << (4*i) for i in range(8))
C1 = sum((ROW2[8+i]-16) << (4*i) for i in range(8))

def p2(vm, isB):
    c("---- P2 ----")
    e("v_lshrrev_b32 v3, 4, v2")
    e("v_and_b32 v4, 15, v2")
    e("v_lshl_add_u32 v5, v1, 5, v4")
    e("v_lshlrev_b32 v6, 12, v1")
    e("v_lshl_add_u32 v6, v2, 4, v6")
    e("s_lshl_b32 s3, s25, 7")
    e("v_add_u32 v5, s3, v5")
    e("v_mul_u32_u24 v8, 1792, v5")
    e("v_lshl_add_u32 v8, v3, 3, v8")
    e("s_mul_i32 s3, s24, 896")
    e("s_mul_i32 s27, s26, 112")
    e("s_add_u32 s3, s3, s27")
    e("v_add_u32 v8, s3, v8")
    e("v_add_u32 v9, 28672, v8")
    e("v_lshrrev_b32 v10, 2, v2")
    e("v_and_b32 v11, 7, v10")
    e("v_lshlrev_b32 v11, 2, v11")
    e(f"v_mov_b32 v12, 0x{C0:x}")
    e(f"v_mov_b32 v13, 0x{C1:x}")
    e("v_cmp_lt_u32 vcc, 7, v10")
    e("v_cndmask_b32 v12, v12, v13, vcc")
    e("v_lshrrev_b32 v11, v11, v12")
    e("v_and_b32 v11, 15, v11")
    e("v_add_u32 v11, 16, v11")
    e("v_and_b32 v12, 3, v2")
    e("v_lshlrev_b32 v12, 3, v12")
    e(f"v_mul_u32_u24 v10, {RS}, v10")
    e("v_add_u32 v10, v10, v12")
    e(f"v_mul_u32_u24 v11, {RS}, v11")
    e("v_add_u32 v11, v11, v12")
    e("v_cmp_gt_u32 s[64:65], 2, v3")
    e("s_lshl_b32 s59, s25, 17")
    e(f"s_add_u32 s59, s59, 0x{TL_B if isB else TL_A:x}")
    for i in range(32):
        e(f"v_accvgpr_write_b32 a{i}, 0")
    lp = uid("PL"); dn = uid("PD")
    e("s_cmp_eq_u32 s48, 0")
    e(f"s_cbranch_scc0 {dn}")
    e("v_bfe_u32 v12, v2, 3, 2")
    e("v_lshlrev_b32 v12, 10, v12")
    e("s_lshl_b32 s3, s26, 7")
    e("s_add_u32 s3, s3, 12288")
    e("v_add_u32 v12, s3, v12")
    e("v_and_b32 v13, 7, v2")
    e("v_lshl_add_u32 v12, v13, 14, v12")
    e("s_mov_b32 s78, 0")
    PB = 16
    for j in range(POLLD - 1):
        e(f"buffer_load_dword v{PB+j}, v12, s[40:43], s59 offen offset:12 sc0 sc1")
        e("s_sleep 4")
    lab(lp)
    for j in range(POLLD):
        e(f"buffer_load_dword v{PB+(j+POLLD-1)%POLLD}, v12, s[40:43], s59 offen offset:12 sc0 sc1")
        e(f"s_waitcnt vmcnt({POLLD-1})")
        e(f"v_xor_b32 v13, s61, v{PB+j}")
        e("v_cmp_gt_u32 vcc, 0x10000, v13")
        e("s_cmp_eq_u64 vcc, -1")
        e(f"s_cbranch_scc1 {dn}")
    e("s_add_u32 s78, s78, 1")
    e("s_cmp_gt_u32 s78, 0x40000")
    e(f"s_cbranch_scc0 {lp}")
    lab(dn)
    e("s_barrier")
    stamp(vm, 6)
    OFR = 96
    def body(sc):
        e("s_mov_b32 s58, s59")
        for h in range(16):
            for rt in range(2):
                r = OFR + (h*2+rt)*4
                e(f"buffer_load_dwordx4 v[{r}:{r+3}], v6, s[40:43], s58 offen offset:{rt*2048 + (h&1)*1024}{sc}")
            if h & 1 and h < 15: e("s_add_u32 s58, s58, 16384")
        e("v_mov_b32 v13, 0")
        def rdh(h):
            bb = 32 + (h & 1)*16
            ho = (h & 7)*28*RS + (h >> 3)*112
            for nt in range(4):
                e(f"ds_read_b64_tr_b16 v[{bb+nt*4}:{bb+nt*4+1}], v10 offset:{ho + nt*32}")
                e(f"ds_read_b64_tr_b16 v[{bb+nt*4+2}:{bb+nt*4+3}], v11 offset:{ho + nt*32}")
        rdh(0)
        for h in range(16):
            if h < 15: rdh(h+1)
            e(f"s_waitcnt vmcnt({30-2*h}) lgkmcnt({8 if h < 15 else 0})")
            r = OFR + h*8
            e(f"v_xor_b32 v{r+3}, s61, v{r+3}")
            e(f"v_xor_b32 v{r+7}, s61, v{r+7}")
            e(f"v_max3_u32 v13, v13, v{r+3}, v{r+7}")
            bb = 32 + (h & 1)*16
            for nt in range(4):
                for rt in range(2):
                    a = (rt*4+nt)*4
                    e(f"v_mfma_f32_16x16x32_bf16 a[{a}:{a+3}], v[{bb+nt*4}:{bb+nt*4+3}], v[{r+rt*4}:{r+rt*4+3}], a[{a}:{a+3}]")
        e("v_cmp_gt_u32 vcc, 0x10000, v13")
        e("s_cmp_eq_u64 vcc, -1")
    ok = uid("P2OK"); rt_ = uid("P2RT")
    body("")
    if STAMP:
        e("s_cselect_b32 s95, 1, 0")
        stamp(vm, 11)
        e("s_cmp_eq_u32 s95, 1")
    e(f"s_cbranch_scc1 {ok}")
    e("s_mov_b32 s78, 0")
    lab(rt_)
    stamp(vm, 8)
    e("s_nop 7")
    e("s_nop 7")
    for i in range(32):
        e(f"v_accvgpr_write_b32 a{i}, 0")
    body(" sc0 sc1")
    e(f"s_cbranch_scc1 {ok}")
    e("s_add_u32 s78, s78, 1")
    e("s_cmp_gt_u32 s78, 0x4000")
    e(f"s_cbranch_scc0 {rt_}")
    lab(ok)
    sk = uid("NS")
    e("s_or_b32 s3, s26, s48")
    e("s_cmp_eq_u32 s3, 0")
    e(f"s_cbranch_scc0 {sk}")
    e("v_mov_b32 v12, 0")
    e("v_mov_b32 v13, s93")
    e("buffer_store_dword v13, v12, s[40:43], s60 offen sc0 sc1")
    lab(sk)
    e("s_nop 7")
    e("s_nop 3")
    for nt in range(4):
        for rt in range(2):
            a = (rt*4+nt)*4
            acc_read4(12 + rt*6, a)
            e(f"v_cvt_pk_bf16_f32 v{16+rt*6}, v{12+rt*6}, v{13+rt*6}")
            e(f"v_cvt_pk_bf16_f32 v{17+rt*6}, v{14+rt*6}, v{15+rt*6}")
            if nt == 3 and rt == 0: e("s_mov_b64 exec, s[64:65]")
            e(f"buffer_store_dwordx2 v[{16+rt*6}:{17+rt*6}], v{8+rt}, s[88:91], 0 offen offset:{nt*32}")
    e("s_mov_b64 exec, -1")
    stamp(vm, 9)

def kernel():
    lab(f"{NAME}_kernel")
    prologue()
    lab("K_A")
    vm = VM()
    stamp(vm, 0)
    gemm(vm, False)
    stamp(vm, 3)
    epi_A(vm)
    p2(vm, False)
    e("s_branch K_END")
    lab("K_B")
    vm = VM()
    stamp(vm, 0)
    gemm(vm, True)
    stamp(vm, 3)
    epi_B(vm)
    p2(vm, True)
    lab("K_END")
    e("s_endpgm")

HDR = open("cdna_kernels/" + NAME + ".s.ref").read().split("; @launch")[0]
kernel()
out = HDR
out += f"; @launch grid=(256,1,1) block=(256,1,1) lds={LDS_TOTAL}\n"
out += '.amdgcn_target "amdgcn-amd-amdhsa--gfx950"\n.text\n'
out += f".globl {NAME}_kernel\n.p2align 8\n.type {NAME}_kernel,@function\n"
out += "\n".join(L) + "\n"
out += f""".section .rodata,"a"
.p2align 6
.amdhsa_kernel {NAME}_kernel
  .amdhsa_next_free_vgpr 384
  .amdhsa_next_free_sgpr 96
  .amdhsa_accum_offset 256
  .amdhsa_group_segment_fixed_size 0
  .amdhsa_kernarg_size 72
  .amdhsa_user_sgpr_count 2
  .amdhsa_user_sgpr_kernarg_segment_ptr 1
  .amdhsa_system_sgpr_workgroup_id_x 1
.end_amdhsa_kernel
"""
path = sys.argv[1] if len(sys.argv) > 1 else f"cdna_kernels/{NAME}.s"
open(path, "w").write(out)
```

```python
import sys, os, struct
NAME = "concat_heads__linear_attn_block__sliding_local_dilated__prompt"
TLP = 0
TLQ = 0x400000
ACC = 0x800000
NON = 0x810000
WS_END = 0x820000
STAMP = os.environ.get("STAMP") == "1"
STB = 0x900000
if STAMP: WS_END = 0xa00000
LOG2E = 0x3FB8AA3B
EPS = 0x358637BD
for s in range(64*21): assert (s * 4682) >> 16 == s // 14
for s in range(32): assert (s * 37) >> 8 == s // 7
RS = 224
KVS = 14336; QS = 7168; XS = 16384
LDS_TOTAL = 163840
ROT = os.environ.get("ROT", "1") == "1"
DA = int(os.environ.get("DA", "6"))
DB = int(os.environ.get("DB", "6"))
def f2u(x): return struct.unpack('<I', struct.pack('<f', x))[0]
SC2 = f2u(28 ** -0.5 * 1.4426950408889634)
CNT_Z = 40 * 4
def A_kv(i): return (i % 5) * 30720
def A_x(i): return (i % 5) * 30720 + KVS
def A_q(i): return (61440 + i*QS) if i < 4 else (92160 + (i-4)*QS)
A_SCR = 122880; KVB = 159744; A_WO = 0
B_WSL = [142336, 0, 21504, 120832]
def B_kv(i): return B_WSL[i % 4]
def B_q(i): return B_WSL[i % 4] + KVS
def B_x(i): return 43008 + (i % 3) * 18432
B_SCR = 61440; B_WO = 98304
FLG_A = 155648
FLG_B = 0
FLG_B = 83968

L = []
def e(s): L.append("    " + s)
def lab(s): L.append(s + ":")
def c(s): L.append("    ; " + s)
_uid = [0]
def uid(p):
    _uid[0] += 1
    return f"{p}_{_uid[0]}"

class CNT:
    def __init__(self, kind, mx): self.ops = []; self.kind = kind; self.mx = mx
    def issue(self, tag): self.ops.append(tag)
    def n(self, tag):
        idx = max(i for i, t in enumerate(self.ops) if t == tag)
        return min(len(self.ops) - 1 - idx, self.mx)
    def wait(self, tag): e(f"s_waitcnt {self.kind}({self.n(tag)})")
def VM(): return CNT("vmcnt", 63)
def LG(): return CNT("lgkmcnt", 15)

def stamp(vm, i):
    if not STAMP: return
    e("s_memtime s[72:73]")
    e("s_waitcnt lgkmcnt(0)")
    e("v_mov_b32 v28, s72")
    e("s_lshl_b32 s74, s2, 8")
    e(f"s_add_u32 s74, s74, {STB + i*4}")
    e("v_mov_b32 v29, 0")
    e("v_and_b32 v30, 0xff, v0")
    e("v_cmp_eq_u32 vcc, 0, v30")
    e("s_and_saveexec_b64 s[76:77], vcc")
    e("buffer_store_dword v28, v29, s[40:43], s74 offen")
    e("s_mov_b64 exec, s[76:77]")
    if vm is not None: vm.issue("stamp")

def phi_pair(dst, a, b, t):
    assert b == a + 1 and a % 2 == 0 and t % 2 == 0
    return [f"v_pk_mul_f32 v[{t}:{t+1}], v[{a}:{b}], s[70:71]",
            f"v_exp_f32 v{t}, v{t} clamp",
            f"v_exp_f32 v{t+1}, v{t+1} clamp",
            f"v_max_f32 v{a}, 0, v{a}",
            f"v_max_f32 v{b}, 0, v{b}",
            f"v_pk_add_f32 v[{t}:{t+1}], v[{t}:{t+1}], v[{a}:{b}]",
            f"v_cvt_pk_bf16_f32 v{dst}, v{t}, v{t+1}"]
def ilv(seqs):
    for i in range(max(len(q) for q in seqs)):
        for q in seqs:
            if i < len(q): e(q[i])

def srd(base, lo, hi, nbytes):
    e(f"s_mov_b32 s{base}, s{lo}")
    e(f"s_and_b32 s{base+1}, s{hi}, 0xffff")
    e(f"s_mov_b32 s{base+2}, 0x{nbytes:x}")
    e(f"s_mov_b32 s{base+3}, 0x20000")

def srds(isB):
    e("s_waitcnt lgkmcnt(0)")
    o = 6 if isB else 0
    srd(32, 6+o, 7+o, 448*2688)
    srd(28, 4+o, 5+o, 2048*896)
    srd(40, 20, 21, WS_END)
    srd(36, 8+o, 9+o, 448*896)
    srd(44, 18, 19, 256)
    srd(88, 16, 17, 2048*1792)

def prologue():
    e("s_cmp_ge_u32 s2, 256")
    e("s_cbranch_scc1 K_END")
    e("s_load_dwordx4 s[4:7], s[0:1], 0")
    e("s_load_dwordx4 s[8:11], s[0:1], 16")
    e("s_load_dwordx4 s[12:15], s[0:1], 32")
    e("s_load_dwordx4 s[16:19], s[0:1], 48")
    e("s_load_dwordx2 s[20:21], s[0:1], 64")
    e("v_lshrrev_b32 v1, 6, v0")
    e("v_and_b32 v2, 63, v0")
    e("v_readfirstlane_b32 s48, v1")
    e("s_and_b32 s22, s2, 7")
    e("s_lshr_b32 s23, s2, 3")
    e("s_lshr_b32 s24, s22, 2")
    e("s_and_b32 s27, s22, 3")
    e("s_lshl_b32 s25, s27, 2")
    e("s_and_b32 s3, s23, 3")
    e("s_add_u32 s25, s25, s3")
    e("s_lshr_b32 s26, s23, 2")
    e("s_mul_i32 s56, s26, 112")
    e(f"s_mov_b32 s70, 0x{LOG2E:x}")
    e(f"s_mov_b32 s71, 0x{LOG2E:x}")
    e("s_lshl_b32 s60, s24, 4")
    e("s_add_u32 s60, s60, s25")
    e("s_lshl_b32 s59, s60, 17")
    e("s_lshl_b32 s60, s60, 7")
    e(f"s_add_u32 s60, s60, 0x{NON:x}")
    if ROT:
        e("s_mul_i32 s3, s23, 37")
        e("s_lshr_b32 s3, s3, 8")
        e("s_mul_i32 s3, s3, 7")
        e("s_sub_u32 s81, s23, s3")
    else:
        e("s_mov_b32 s81, 0")
    e("s_mov_b32 s82, s81")
    e("s_lshl_b32 s3, s24, 3")
    e("s_add_u32 s3, s3, s48")
    e("s_cmp_lt_u32 s3, 4")
    e("s_cbranch_scc1 C_A")
    for lw in range(4):
        e(f"s_cmp_eq_u32 s3, {4+lw}")
        e(f"s_cbranch_scc1 L_A{lw}")
    e("s_cmp_lt_u32 s3, 12")
    e("s_cbranch_scc1 C_B")
    for lw in range(3):
        e(f"s_cmp_eq_u32 s3, {12+lw}")
        e(f"s_cbranch_scc1 L_B{lw}")
    e("s_branch L_B3")

def nonce_issue(vm):
    e("v_mov_b32 v3, 0")
    e("buffer_load_dword v31, v3, s[40:43], s60 offen sc0 sc1")
    vm.issue("non")
def nonce_get():
    e("v_readfirstlane_b32 s93, v31")
    e("s_nop 3")
    e("s_add_u32 s93, s93, 1")
    e("s_lshl_b32 s61, s93, 16")

def div14(n):
    e(f"v_add_u32 v3, {64*n}, v2")
    e("v_mul_u32_u24 v4, 4682, v3")
    e("v_lshrrev_b32 v4, 16, v4")
    e("v_mul_u32_u24 v5, 14, v4")
    e("v_sub_u32 v3, v3, v5")
    e("v_cmp_lt_u32 vcc, 6, v3")
    e("v_cndmask_b32 v5, 0, 1, vcc")
    e("v_mul_u32_u24 v6, 7, v5")
    e("v_sub_u32 v3, v3, v6")

def w_voff(dst, n, isq):
    div14(n)
    e("v_lshrrev_b32 v6, 1, v4")
    e("v_and_b32 v6, 4, v6")
    e("v_xor_b32 v4, v4, v6")
    e("v_mul_u32_u24 v4, 2688, v4")
    if isq:
        e("v_mul_u32_u24 v5, s58, v5")
        e("v_lshl_add_u32 v3, v3, 4, v4")
        e(f"v_add_u32 v{dst}, v3, v5")
    else:
        e("v_mul_u32_u24 v5, 896, v5")
        e("v_lshl_add_u32 v3, v3, 4, v4")
        e(f"v_add3_u32 v{dst}, v3, v5, s57")

def step_hdr(sr):
    e(f"s_mul_i32 s83, s{sr}, 172032")
    e("s_add_u32 s83, s83, s56")
    e(f"s_lshl_b32 s85, s{sr}, 7")
    e("s_add_u32 s86, s85, 14336")
    e(f"s_add_u32 s{sr}, s{sr}, 1")
    e(f"s_cmp_eq_u32 s{sr}, 7")
    e(f"s_cselect_b32 s{sr}, 0, s{sr}")

def dma(vm, tag, voff, srd_, soff, lds):
    e(f"s_mov_b32 m0, {lds}")
    e("s_nop 0")
    e(f"buffer_load_dwordx4 v{voff}, s[{srd_}:{srd_+3}], {soff} offen lds")
    vm.issue(tag)

def wo_voffs(isB):
    for t in range(7):
        div14(t)
        e("v_min_u32 v4, 27, v4")
        e("v_cmp_lt_u32 vcc, 13, v4")
        e("v_cndmask_b32 v6, 0, 1, vcc")
        e("v_mul_u32_u24 v24, 14, v6")
        e("v_sub_u32 v4, v4, v24")
        e("v_lshrrev_b32 v24, 2, v4")
        e("v_and_b32 v25, 3, v4")
        e("v_cmp_lt_u32 vcc, 10, v4")
        e("v_cndmask_b32 v26, 0, 1, vcc")
        e("v_mul_u32_u24 v27, 3, v26")
        e("v_sub_u32 v27, v4, v27")
        e("v_subrev_u32 v27, 4, v27")
        e("v_cmp_lt_u32 vcc, 7, v4")
        e("v_cndmask_b32 v24, v24, v26, vcc")
        e("v_cndmask_b32 v25, v25, v27, vcc")
        e("v_lshl_add_u32 v24, v6, 1, v24")
        if not isB:
            e("v_mul_u32_u24 v24, 7, v24")
            e("v_add_u32 v4, v24, v25")
        else:
            e("v_lshl_add_u32 v4, v24, 2, v25")
            e("v_add_u32 v26, 12, v4")
            e("v_lshlrev_b32 v27, 2, v25")
            e("v_add_u32 v27, 3, v27")
            e("v_cmp_eq_u32 s[4:5], 3, v24")
            e("v_cndmask_b32 v26, v26, v27, s[4:5]")
            e("v_cndmask_b32 v4, v4, v26, vcc")
        e("v_mul_u32_u24 v5, 224, v5")
        e("v_add_u32 v4, v4, v5")
        e("v_mul_u32_u24 v4, 896, v4")
        e("v_lshl_add_u32 v3, v3, 4, v4")
        e(f"v_add_u32 v{40+t}, s56, v3")

def wo_block(vm, blk, base):
    e(f"s_mov_b32 s86, {blk*28*896}")
    for t in range(7):
        if t == 6: e("s_mov_b64 exec, 0xff")
        dma(vm, "wo", 40+t, 36, "s86", base + blk*7168 + t*1024)
    e("s_mov_b64 exec, -1")

def prepoll(lw, flg):
    lp = uid("PL"); dn = uid("PD"); ok = uid("PO")
    e("v_bfe_u32 v12, v2, 3, 2")
    e("v_lshlrev_b32 v12, 12, v12")
    e("s_lshl_b32 s3, s26, 7")
    e("s_add_u32 s3, s3, 3072")
    e("v_add_u32 v12, s3, v12")
    e("v_and_b32 v13, 7, v2")
    e("v_lshl_add_u32 v12, v13, 14, v12")
    e(f"s_add_u32 s58, s59, 0x{TLQ if lw else TLP:x}")
    e(f"v_mov_b32 v14, {flg}")
    e("s_mov_b32 s78, 0")
    lab(lp)
    e("buffer_load_dword v16, v12, s[40:43], s58 offen offset:12 sc0 sc1")
    e("ds_read_b32 v15, v14")
    e("s_waitcnt vmcnt(0) lgkmcnt(0)")
    e("v_xor_b32 v13, s61, v16")
    e("v_cmp_gt_u32 vcc, 0x10000, v13")
    e("s_cmp_eq_u64 vcc, -1")
    e(f"s_cbranch_scc1 {ok}")
    e("v_readfirstlane_b32 s79, v15")
    e("s_add_u32 s78, s78, 1")
    e("s_nop 2")
    e("s_cmp_lg_u32 s79, 0")
    e(f"s_cbranch_scc1 {dn}")
    if lw: e("s_sleep 2")
    e("s_cmp_gt_u32 s78, 0x40000")
    e(f"s_cbranch_scc0 {lp}")
    e(f"s_branch {dn}")
    lab(ok)
    e(f"v_mov_b32 v15, {1 + lw}")
    e("ds_or_b32 v14, v15")
    e("s_waitcnt lgkmcnt(0)")
    lab(dn)

def loader(isB, lw):
    lab(f"L_{'B' if isB else 'A'}{lw}")
    vm = VM()
    SO = 32
    e("s_movk_i32 s57, 896")
    e("s_mov_b32 s58, 86016")
    e("v_lshrrev_b32 v3, 3, v2")
    e("v_lshrrev_b32 v4, 4, v2")
    e("v_and_b32 v5, 7, v2")
    e("v_xor_b32 v5, v5, v4")
    e("s_lshl_b32 s3, s25, 7")
    e(f"s_add_u32 s3, s3, {32*lw}")
    e("v_add_u32 v6, s3, v3")
    e("v_mul_u32_u24 v6, 896, v6")
    e("v_lshl_add_u32 v16, v5, 4, v6")
    e("v_xor_b32 v17, 64, v16")
    e("v_add_u32 v17, 7168, v17")
    kvn = [n for n in range(lw, 14, 4)]
    if isB:
        wn = [n for n in range(lw, 21, 4)]
        kvn = [n for n in wn if n < 14]; qn = [n-14 for n in wn if n >= 14]
    else:
        qn = [n for n in range(lw, 7, 4)]
    for j, n in enumerate(kvn): w_voff(8+j, n, False)
    if isB:
        for j, n in enumerate(qn): w_voff(12+j, n, True)
        if lw in (1, 2):
            u = lw - 1
            e("v_lshrrev_b32 v3, 3, v2")
            e("v_lshrrev_b32 v4, 4, v2")
            e("v_and_b32 v5, 7, v2")
            e("v_xor_b32 v5, v5, v4")
            if u: e("v_xor_b32 v5, 4, v5")
            e("s_lshl_b32 s3, s25, 7")
            e("s_sub_u32 s3, s3, 16")
            e("s_max_i32 s3, s3, 0")
            e(f"s_add_u32 s3, s3, {8*u}")
            e("v_add_u32 v6, s3, v3")
            e("v_mul_u32_u24 v6, 896, v6")
            e("v_lshl_add_u32 v18, v5, 4, v6")
    srds(isB)
    stamp(vm, SO + 0)
    def isW(i):
        for j, n in enumerate(kvn): dma(vm, f"c{i}", 8+j, 32, "s83", (B_kv(i) if isB else A_kv(i)) + n*1024)
        if isB:
            for j, n in enumerate(qn): dma(vm, f"c{i}", 12+j, 32, "s83", B_q(i) + n*1024)
    def isX(i):
        xb = B_x(i) if isB else A_x(i)
        for u in range(4):
            dma(vm, f"c{i}", 16 + (u & 1), 28, "s85" if u < 2 else "s86", xb + (4*lw+u)*1024)
        if isB and lw in (1, 2):
            dma(vm, f"c{i}", 18, 28, "s85", xb + XS + (lw-1)*1024)
    flg = FLG_B if isB else FLG_A
    if not isB:
        step_hdr(81); isX(0); isW(0)
        nonce_issue(vm)
        for r in range(4): e(f"v_mov_b32 v{4+r}, 0")
        zs = uid("ZS")
        e("s_cmp_eq_u32 s25, 0")
        e(f"s_cbranch_scc0 {zs}")
        e("s_lshl_b32 s3, s26, 13")
        e(f"s_add_u32 s3, s3, 0x{ACC + lw*2048:x}")
        e("v_lshlrev_b32 v3, 5, v2")
        e("buffer_store_dwordx4 v[4:7], v3, s[40:43], s3 offen sc0 sc1")
        e("buffer_store_dwordx4 v[4:7], v3, s[40:43], s3 offen offset:16 sc0 sc1")
        lab(zs)
        for i in range(1, 5):
            step_hdr(81); isX(i); isW(i)
        for j, n in enumerate(qn): w_voff(12+j, n, True)
        def isQ(i):
            step_hdr(82)
            for j, n in enumerate(qn): dma(vm, "q", 12+j, 32, "s83", A_q(i) + n*1024)
        for i in range(7):
            vm.wait(f"c{max(i,1)}" if i <= 1 else f"c{i}") if False else vm.wait(f"c{i}")
            e("s_barrier")
            if i == 0:
                wo_voffs(False)
            if i == 1:
                nonce_get()
                if lw == 0:
                    zs = uid("ZF")
                    e("s_cmp_eq_u32 s25, 0")
                    e(f"s_cbranch_scc0 {zs}")
                    e("s_lshl_b32 s3, s26, 2")
                    e(f"v_mov_b32 v3, {CNT_Z}")
                    e("v_mov_b32 v4, 1")
                    e("s_mov_b64 exec, 1")
                    e("buffer_store_dword v4, v3, s[44:47], s3 offen sc0 sc1")
                    e("s_mov_b64 exec, -1")
                    lab(zs)
                    e(f"v_mov_b32 v3, {flg}")
                    e("v_mov_b32 v4, 0")
                    e("ds_write_b32 v3, v4")
            if i == 2: step_hdr(81); isX(5); isW(5)
            if i == 3: step_hdr(81); isX(6); isW(6)
            if i == 4:
                for k in range(4): isQ(k)
            if i == 5:
                for k in range(4, 7): isQ(k)
        zl = uid("ZL"); zd = uid("ZD")
        e("s_mov_b32 s78, 0")
        e(f"v_mov_b32 v3, {CNT_Z}")
        e("s_lshl_b32 s3, s26, 2")
        lab(zl)
        e("buffer_load_dword v19, v3, s[44:47], s3 offen sc0 sc1")
        e("s_waitcnt vmcnt(0)")
        e("v_readfirstlane_b32 s79, v19")
        e("s_add_u32 s78, s78, 1")
        e("s_nop 2")
        e("s_cmp_eq_u32 s79, 1")
        e(f"s_cbranch_scc1 {zd}")
        e("s_sleep 1")
        e("s_cmp_gt_u32 s78, 0x40000")
        e(f"s_cbranch_scc0 {zl}")
        lab(zd)
        hh = lw >> 1; et = lw & 1
        e("v_and_b32 v5, 15, v2")
        e("v_lshrrev_b32 v6, 4, v2")
        e("v_lshlrev_b32 v3, 4, v2")
        e(f"v_add_u32 v4, {A_SCR + lw*2048}, v3")
        e("s_lshl_b32 s3, s26, 13")
        e(f"s_add_u32 s57, s3, 0x{ACC + lw*2048:x}")
        e("v_lshlrev_b32 v8, 9, v6")
        e("v_lshl_add_u32 v8, v5, 2, v8")
        e("v_cmp_gt_u32 s[66:67], 3, v6")
        e("v_cmp_le_u32 s[64:65], 14, v5")
        e("v_cmp_gt_u32 s[68:69], 2, v5")
        e("v_lshlrev_b32 v9, 4, v2")
        e("v_and_b32 v10, 7, v2")
        e("v_lshrrev_b32 v11, 3, v2")
        e("v_cmp_eq_u32 s[4:5], 3, v10")
        e("v_cmp_eq_u32 s[6:7], 4, v10")
        e("s_or_b64 s[6:7], s[6:7], s[4:5]")
        if et:
            e("v_cmp_gt_u32 s[8:9], 5, v11")
            e("s_and_b64 s[10:11], s[8:9], s[6:7]")
            e("v_cmp_eq_u32 s[12:13], 4, v11")
        else:
            e("s_mov_b64 s[10:11], s[6:7]")
        e("v_and_b32 v12, 3, v10")
        e("v_lshlrev_b32 v12, 4, v12")
        e("v_lshrrev_b32 v10, 2, v10")
        e("v_lshl_add_u32 v12, v10, 3, v12")
        e(f"v_add_u32 v12, {KVB + hh*2048}, v12")
        for j in range(2):
            e(f"v_add_u32 v13, {16*et + 8*j}, v11")
            e("v_mul_u32_u24 v14, 37, v13")
            e("v_lshrrev_b32 v14, 8, v14")
            e("v_mul_u32_u24 v15, 7, v14")
            e("v_sub_u32 v15, v13, v15")
            e("v_lshrrev_b32 v16, 2, v15")
            e("v_and_b32 v15, 3, v15")
            e("v_lshl_add_u32 v15, v14, 2, v15")
            e("v_lshl_add_u32 v15, v16, 4, v15")
            if et and j:
                e("v_cndmask_b32 v15, v15, 19, s[12:13]")
            e(f"v_lshl_add_u32 v{20+j}, v15, 6, v12")
        vm.wait("q")
        e("s_barrier")
        stamp(vm, SO + 1)
        RD = 48
        for dt in range(2):
            for w in range(4):
                r = RD + (dt*4 + w)*4
                e(f"ds_read_b128 v[{r}:{r+3}], v4 offset:{w*8192 + dt*1024}")
        for dt in range(2):
            e(f"s_waitcnt lgkmcnt({4-4*dt})")
            b = RD + dt*16
            for r in range(4):
                e(f"v_add_f32 v{b+r}, v{b+r}, v{b+4+r}")
                e(f"v_add_f32 v{b+8+r}, v{b+8+r}, v{b+12+r}")
            for r in range(4):
                e(f"v_add_f32 v{b+r}, v{b+r}, v{b+8+r}")
            for r in range(4):
                e(f"v_cndmask_b32 v{b+r}, v{b+r}, 1.0, s[{64+4*dt}:{65+4*dt}]")
        for dt in range(2):
            e(f"buffer_atomic_add_f32 v{RD+dt*16}, v8, s[40:43], s57 offen offset:{dt*64} sc1")
        if et: e("s_mov_b64 exec, s[66:67]")
        for r in range(1, 4):
            for dt in range(2):
                e(f"buffer_atomic_add_f32 v{RD+dt*16+r}, v8, s[40:43], s57 offen offset:{r*128 + dt*64} sc1")
        if et: e("s_mov_b64 exec, -1")
        stamp(vm, SO + 2)
        wo_block(vm, lw, A_WO)
        wo_block(vm, lw + 4, A_WO)
        PR = 80
        lp = uid("KVL"); dn = uid("KVD")
        e("s_mov_b32 s78, 0")
        lab(lp)
        for j in range(2):
            e(f"buffer_load_dwordx4 v[{PR+j*4}:{PR+j*4+3}], v9, s[40:43], s57 offen offset:{j*1024} sc0 sc1")
        e("s_waitcnt vmcnt(0)")
        e(f"v_cndmask_b32 v13, v{PR}, v{PR+2}, s[4:5]")
        e("v_cmp_eq_f32 vcc, 0x41800000, v13")
        e("s_and_b64 s[14:15], vcc, s[6:7]")
        e(f"v_cndmask_b32 v13, v{PR+4}, v{PR+6}, s[4:5]")
        e("v_cmp_eq_f32 vcc, 0x41800000, v13")
        e("s_and_b64 s[16:17], vcc, s[10:11]")
        e("s_xor_b64 s[14:15], s[14:15], s[6:7]")
        e("s_xor_b64 s[16:17], s[16:17], s[10:11]")
        e("s_or_b64 s[14:15], s[14:15], s[16:17]")
        e(f"s_cbranch_scc0 {dn}")
        e("s_add_u32 s78, s78, 1")
        e("s_cmp_gt_u32 s78, 0x40000")
        e(f"s_cbranch_scc0 {lp}")
        lab(dn)
        for j in range(2):
            r = PR + j*4
            e(f"v_cvt_pk_bf16_f32 v{r}, v{r}, v{r+1}")
            e(f"v_cvt_pk_bf16_f32 v{r+1}, v{r+2}, v{r+3}")
            if et and j: e("s_mov_b64 exec, s[8:9]")
            e(f"ds_write_b64 v{20+j}, v[{r}:{r+1}]")
        if et:
            e("s_mov_b64 exec, s[12:13]")
            for k in range(1, 4):
                e(f"ds_write_b64 v21, v[{PR+4}:{PR+5}] offset:{k*256}")
            e("s_mov_b64 exec, -1")
        e("s_waitcnt lgkmcnt(0)")
        e("s_barrier")
        stamp(vm, SO + 3)
    else:
        step_hdr(81); isX(0); isW(0)
        nonce_issue(vm)
        e("s_mov_b32 s82, s81")
        for i in range(1, 3):
            step_hdr(81); isX(i); isW(i)
        e("s_mov_b32 s82, s81")
        step_hdr(81); isW(3)
        for i in range(7):
            vm.wait(f"c{i}")
            e("s_barrier")
            if i == 0: wo_voffs(True)
            if i == 1:
                nonce_get()
                step_hdr(82); isX(3)
            if i in (2, 3, 4):
                step_hdr(81); isX(i+2); isW(i+2)
            if i == 5: wo_block(vm, lw, B_WO)
            if i == 6:
                wo_block(vm, lw + 4, B_WO)
                if lw == 0:
                    e(f"v_mov_b32 v3, {flg}")
                    e("v_mov_b32 v4, 0")
                    e("ds_write_b32 v3, v4")
                    e("s_waitcnt lgkmcnt(0)")
        e("s_barrier")
        stamp(vm, SO + 3)
    if lw < 2: prepoll(lw, flg)
    e("s_waitcnt vmcnt(0)")
    e(f"s_branch P2_{'B' if isB else 'A'}")

def tcol(isB, grp, t):
    return (t >> 1)*56 + (t & 1)*(24 if (not isB and grp < 2) else 32)

def accA(grp, rt, t): return 32 + ((grp-1)*8 + rt*4 + t)*4 if grp else 32 + (rt*4+t)*4
def accB(grp, rt, t):
    if grp == 2: return 96 + t*8 + rt*4
    return 32 + grp*32 + (rt*4 + t)*4

def comp_setup(isB):
    e("v_lshrrev_b32 v3, 4, v2")
    e("v_bfe_u32 v4, v2, 2, 2")
    e("v_lshl_add_u32 v4, v3, 3, v4")
    e("v_and_b32 v5, 1, v3")
    e("v_lshlrev_b32 v5, 2, v5")
    e("v_add_u32 v6, v4, v5")
    e("v_xor_b32 v7, 4, v6")
    e(f"v_mul_u32_u24 v6, {RS}, v6")
    e(f"v_mul_u32_u24 v7, {RS}, v7")
    e("v_and_b32 v5, 3, v2")
    e("v_lshl_add_u32 v14, v5, 3, v6")
    e("v_lshl_add_u32 v15, v5, 3, v7")
    e("v_and_b32 v4, 15, v2")
    e("v_lshrrev_b32 v5, 1, v4")
    e("v_xor_b32 v5, v5, v3")
    e("v_lshlrev_b32 v5, 4, v5")
    e("v_lshl_add_u32 v18, v4, 7, v5")
    e("v_lshl_add_u32 v16, v1, 12, v18")
    e("v_xor_b32 v17, 64, v16")
    if isB:
        e(f"v_add_u32 v18, {XS}, v18")
        e("v_xor_b32 v19, 64, v18")
        e("s_lshr_b32 s3, s48, 1")
        e("s_mul_i32 s3, s3, 56")
        e("s_and_b32 s27, s48, 1")
        e("s_lshl_b32 s27, s27, 5")
        e("s_add_u32 s49, s3, s27")

def gemm(vm, isB):
    lg = LG()
    D = DB if isB else DA
    NB = 12
    def bf(j): return (f"a[{(j%NB)*4}:{(j%NB)*4+3}]", f"a[{(j%NB)*4}:{(j%NB)*4+1}]", f"a[{(j%NB)*4+2}:{(j%NB)*4+3}]") if isB else \
                      (f"v[{96+(j%NB)*4}:{96+(j%NB)*4+3}]", f"v[{96+(j%NB)*4}:{96+(j%NB)*4+1}]", f"v[{96+(j%NB)*4+2}:{96+(j%NB)*4+3}]")
    def xr(ch, kk, rt):
        r = 48 + (ch & 1)*24 + (kk*3+rt)*4 if isB else (ch*4 + kk*2 + rt)*4
        return f"a[{r}:{r+3}]"
    items = []
    for ch in range(7):
        for kk in range(2):
            for grp in ((0, 1, 2) if isB else (1, 2)):
                for t in range(4): items.append((ch, kk, grp, t))
                if isB and grp: items.append((ch, kk, grp, 4))
    def sync(ch):
        e("s_barrier")
        stamp(vm, 12 + ch)
        wb = 20 + (ch & 1)*2
        kvb = B_kv(ch) if isB else A_kv(ch)
        xb = B_x(ch) if isB else A_x(ch)
        e(f"v_add_u32 v24, {xb}, v16")
        e(f"v_add_u32 v25, {xb}, v17")
        if isB:
            e(f"v_add_u32 v26, {xb}, v18")
            e(f"v_add_u32 v27, {xb}, v19")
        e(f"v_add_u32 v{wb}, {kvb}, v14")
        e(f"v_add_u32 v{wb+1}, {kvb}, v15")
        for kk in range(2):
            for rt in range(2):
                e(f"ds_read_b128 {xr(ch,kk,rt)}, v{24+kk} offset:{rt*2048}")
                lg.issue(f"x{ch}")
            if isB:
                e(f"ds_read_b128 {xr(ch,kk,2)}, v{26+kk}")
                lg.issue(f"x{ch}")
        if isB:
            e(f"v_add_u32 v{8+(ch&1)*2}, s49, v{wb}")
            e(f"v_add_u32 v{9+(ch&1)*2}, s49, v{wb+1}")
    def rd(j):
        ch, kk, grp, t = items[j]
        if j == 0 or items[j-1][0] != ch: sync(ch)
        wb = 20 + (ch & 1)*2
        if t == 4: wb = 8 + (ch & 1)*2
        if grp == 0: off = KVS + kk*112 + tcol(isB, grp, t)
        else: off = 32*kk*RS + (grp-1)*112 + (tcol(isB, grp, t) if t < 4 else 0)
        for hf in range(2):
            e(f"ds_read_b64_tr_b16 {bf(j)[1+hf]}, v{wb+hf} offset:{off}")
            lg.issue(f"w{j}")
    for j in range(D): rd(j)
    for j, (ch, kk, grp, t) in enumerate(items):
        if j + D < len(items): rd(j + D)
        lg.wait(f"w{j}")
        tr = (grp == 0) or (isB and grp == 1)
        first = (ch == 0 and kk == 0)
        for rt in ((0, 1) if t < 4 else (2,)):
            a = (accB(grp, rt, t) if isB else accA(grp, rt, t)) if t < 4 else 128 + (grp-1)*4
            cc = "0" if first else f"v[{a}:{a+3}]"
            if tr: e(f"v_mfma_f32_16x16x32_bf16 v[{a}:{a+3}], {bf(j)[0]}, {xr(ch,kk,rt)}, {cc}")
            else: e(f"v_mfma_f32_16x16x32_bf16 v[{a}:{a+3}], {xr(ch,kk,rt)}, {bf(j)[0]}, {cc}")

def pass2():
    lg = LG()
    D = DA; NB = 12
    items = [(ch, kk, t) for ch in range(7) for kk in range(2) for t in range(4)]
    e(f"v_add_u32 v20, {A_q(0)}, v14")
    e(f"v_add_u32 v21, {A_q(0)}, v15")
    def rd(j):
        ch, kk, t = items[j]
        r = 96 + (j % NB)*4
        off = A_q(ch) - A_q(0) + kk*112 + tcol(False, 0, t)
        for hf in range(2):
            e(f"ds_read_b64_tr_b16 v[{r+2*hf}:{r+2*hf+1}], v{20+hf} offset:{off}")
            lg.issue(f"w{j}")
    for j in range(D): rd(j)
    for j, (ch, kk, t) in enumerate(items):
        if j + D < len(items): rd(j + D)
        lg.wait(f"w{j}")
        r = 96 + (j % NB)*4
        for rt in range(2):
            a = accA(0, rt, t); x = (ch*4 + kk*2 + rt)*4
            cc = "0" if (ch == 0 and kk == 0) else f"v[{a}:{a+3}]"
            e(f"v_mfma_f32_16x16x32_bf16 v[{a}:{a+3}], v[{r}:{r+3}], a[{x}:{x+3}], {cc}")

def tile_addr():
    e("v_lshlrev_b32 v3, 12, v1")
    e("v_lshl_add_u32 v3, v2, 4, v3")
    e("s_lshl_b32 s27, s26, 14")
    e("s_add_u32 s3, s59, s27")
    e(f"s_add_u32 s27, s3, 0x{TLQ:x}")
def tile_store(vm, regs):
    for (rt, hh, n) in regs:
        e(f"buffer_store_dwordx4 v[{n}:{n+3}], v3, s[40:43], s3 offen offset:{rt*2048 + hh*1024}")
    for (rt, hh, n) in regs:
        e(f"buffer_store_dwordx4 v[{n}:{n+3}], v3, s[40:43], s27 offen offset:{rt*2048 + hh*1024} sc0 sc1")

def epi_A(vm):
    c("---- A epilogue ----")
    e("v_and_b32 v5, 15, v2")
    e("v_lshrrev_b32 v6, 4, v2")
    e("v_cmp_le_u32 s[64:65], 12, v5")
    e("v_mov_b32 v7, 0x3f803f80")
    e("s_lshl_b32 s3, s48, 13")
    e(f"s_add_u32 s3, s3, {A_SCR}")
    e("v_lshlrev_b32 v3, 4, v2")
    e("v_add_u32 v4, s3, v3")
    e("s_nop 7")
    PK = 96; VV = 112; TT = 128; KP = 32
    for t in range(4):
        sq = []
        for rt in range(2):
            a = accA(1, rt, t)
            sq.append(phi_pair(PK + t*4 + rt*2, a, a+1, TT + rt*4))
            sq.append(phi_pair(PK + t*4 + rt*2 + 1, a+2, a+3, TT + rt*4 + 2))
        ilv(sq)
    for t in range(4):
        for rt in range(2):
            a = accA(2, rt, t)
            d = VV + t*4 + rt*2
            e(f"v_cvt_pk_bf16_f32 v{d}, v{a}, v{a+1}")
            e(f"v_cvt_pk_bf16_f32 v{d+1}, v{a+2}, v{a+3}")
            if t & 1:
                e(f"v_cndmask_b32 v{d}, v{d}, v7, s[64:65]")
                e(f"v_cndmask_b32 v{d+1}, v{d+1}, v7, s[64:65]")
    e("s_nop 1")
    for hh in range(2):
        for et in range(2):
            for dt in range(2):
                d = KP + (hh*4 + et*2 + dt)*4
                va = VV + (hh*2+et)*4; pk = PK + (hh*2+dt)*4
                e(f"v_mfma_f32_16x16x32_bf16 v[{d}:{d+3}], v[{va}:{va+3}], v[{pk}:{pk+3}], 0")
    e("s_nop 3")
    for i in range(8):
        if i < 2: e("s_nop 3")
        e(f"ds_write_b128 v4, v[{KP+i*4}:{KP+i*4+3}] offset:{i*1024}")
    e("s_waitcnt lgkmcnt(0)")
    e("s_barrier")
    stamp(vm, 4)
    pass2()
    stamp(vm, 7)
    vm.wait("non")
    nonce_get()
    QF = 64
    e("v_cmp_eq_u32 s[10:11], 3, v6")
    e("v_cmp_eq_u32 s[12:13], 0, v6")
    e("v_lshlrev_b32 v10, 6, v5")
    e("v_lshl_add_u32 v10, v6, 4, v10")
    e(f"v_add_u32 v10, {KVB}, v10")
    tile_addr()
    e("v_mov_b32 v11, 0xffff")
    e("s_nop 3")
    for t in range(4):
        sq = []
        for rt in range(2):
            a = accA(0, rt, t)
            d = QF + (rt*2 + (t >> 1))*4 + (t & 1)*2
            s0 = phi_pair(d, a, a+1, TT + rt*4)
            s1 = phi_pair(d+1, a+2, a+3, TT + rt*4 + 2)
            if t & 1: s0.append(f"v_cndmask_b32 v{d}, v{d}, 0, s[12:13]")
            else: s1.append(f"v_cndmask_b32 v{d+1}, v{d+1}, 0, s[10:11]")
            sq += [s0, s1]
        ilv(sq)
    e("s_barrier")
    stamp(vm, 10)
    R = 80
    for hh in range(2):
        for f in range(2):
            r = R + (hh*2+f)*4
            e(f"ds_read_b128 v[{r}:{r+3}], v10 offset:{hh*2048 + f*1024}")
    NR = 96
    for hh in range(2):
        e(f"s_waitcnt lgkmcnt({2 - 2*hh})")
        for rt in range(2):
            n = NR + (hh*2+rt)*8
            q = QF + (rt*2+hh)*4
            for f in (1, 0):
                r = R + (hh*2+f)*4
                e(f"v_mfma_f32_16x16x32_bf16 v[{n+f*4}:{n+f*4+3}], v[{r}:{r+3}], v[{q}:{q+3}], 0")
    e("s_nop 7")
    sq = []; regs = []
    for hh in range(2):
        for rt in range(2):
            n = NR + (hh*2+rt)*8
            t = TT + (hh*2+rt)*2
            o = [f"v_add_f32 v{t}, 0x{EPS:x}, v{n+7}",
                 f"v_rcp_f32 v{t}, v{t}",
                 f"v_mov_b32 v{t+1}, v{t}"]
            for q in range(3):
                o.append(f"v_pk_mul_f32 v[{n+2*q}:{n+2*q+1}], v[{n+2*q}:{n+2*q+1}], v[{t}:{t+1}]")
            o.append(f"v_mul_f32 v{n+6}, v{n+6}, v{t}")
            for q in range(3):
                o.append(f"v_cvt_pk_bf16_f32 v{n+q}, v{n+2*q}, v{n+2*q+1}")
            o.append(f"v_cvt_pk_bf16_f32 v{n+3}, v{n+6}, v{n+6}")
            o.append(f"v_and_or_b32 v{n+3}, v{n+3}, v11, s61")
            sq.append(o); regs.append((rt, hh, n))
    ilv(sq)
    tile_store(vm, regs)
    stamp(vm, 5)

def epi_B(vm):
    c("---- B epilogue ----")
    e("v_and_b32 v5, 15, v2")
    e("v_lshrrev_b32 v6, 4, v2")
    e("v_cmp_gt_u32 s[64:65], 3, v6")
    e("v_lshlrev_b32 v3, 4, v2")
    e("v_lshlrev_b32 v7, 3, v2")
    e("s_lshr_b32 s3, s48, 1")
    e("s_lshl_b32 s3, s3, 10")
    e("s_and_b32 s27, s48, 1")
    e("s_lshl_b32 s27, s27, 3")
    e("s_add_u32 s3, s3, s27")
    e(f"s_add_u32 s3, s3, {B_SCR}")
    e("v_add_u32 v4, s3, v3")
    e("s_lshl_b32 s3, s48, 9")
    e(f"s_add_u32 s3, s3, {B_SCR + 2048}")
    e("v_add_u32 v8, s3, v7")
    e("s_lshl_b32 s3, s48, 12")
    e(f"s_add_u32 s3, s3, {B_SCR}")
    e("v_add_u32 v9, s3, v3")
    e("v_add_u32 v10, s3, v7")
    e("s_nop 3")
    def KFr(blk, hh): return 64 + ((blk-1)*2 + hh)*8
    def QFr(rt, hh): return 32 + (rt*2+hh)*8
    def VB(hh, et): return 96 + (hh*2+et)*8
    def cvt4(b):
        for q in range(4): e(f"v_cvt_pk_bf16_f32 v{b+q}, v{b+2*q}, v{b+2*q+1}")
    for hh in range(2):
        cvt4(KFr(2, hh))
        e(f"ds_write_b128 v9, v[{KFr(2,hh)}:{KFr(2,hh)+3}] offset:{4096 + hh*1024}")
    for hh in range(2):
        for et in range(2):
            b = VB(hh, et)
            e(f"v_cvt_pk_bf16_f32 v{b+7}, v{b+6}, v{b+7}")
            e(f"v_cvt_pk_bf16_f32 v{b+6}, v{b+4}, v{b+5}")
            e(f"ds_write_b64 v10, v[{b+6}:{b+7}] offset:{4096 + 2048 + (hh*2+et)*512}")
    cvt4(128)
    e("ds_write_b64 v4, v[128:129]")
    e("ds_write_b64 v8, v[130:131]")
    e("s_waitcnt lgkmcnt(0)")
    e("s_barrier")
    for hh in range(2):
        e(f"ds_read_b128 a[{hh*4}:{hh*4+3}], v9 offset:{hh*1024}")
    for hh in range(2):
        for et in range(2):
            b = VB(hh, et)
            e(f"v_cvt_pk_bf16_f32 v{b+4}, v{b}, v{b+1}")
            e(f"v_cvt_pk_bf16_f32 v{b+5}, v{b+2}, v{b+3}")
            e(f"ds_read_b64 v[{b+2}:{b+3}], v10 offset:{2048 + (hh*2+et)*512}")
    for rt in range(2):
        for hh in range(2):
            b = QFr(rt, hh)
            cvt4(b)
            e(f"v_cndmask_b32 v{b+2}, 0, v{b+2}, s[64:65]")
            e(f"v_cndmask_b32 v{b+3}, 0, v{b+3}, s[64:65]")
    for hh in range(2): cvt4(KFr(1, hh))
    vm.wait("non")
    nonce_get()
    e("v_and_b32 v9, 1, v5")
    e("v_cmp_eq_u32 s[4:5], 1, v9")
    e("v_mov_b32 v10, 0xffff")
    e("v_mov_b32 v11, 0xffff0000")
    e("v_cndmask_b32 v12, v10, v11, s[4:5]")
    e("v_lshl_add_u32 v11, v6, 2, v9")
    e("v_sub_u32 v11, v11, v5")
    e("s_waitcnt lgkmcnt(0)")
    def C0(cb): return 32 + cb*8 + 4
    def C1(cb): return 64 + cb*8 + 4
    for rt in range(2):
        for hh in range(2):
            cb = rt*2+hh
            q = QFr(rt, hh)
            for ti in range(2):
                blk = rt + ti
                k = f"a[{hh*4}:{hh*4+3}]" if blk == 0 else f"v[{KFr(blk,hh)}:{KFr(blk,hh)+3}]"
                d = C0(cb) if ti == 0 else C1(cb)
                e(f"v_mfma_f32_16x16x32_bf16 v[{d}:{d+3}], {k}, v[{q}:{q+3}], 0")
    for k in range(4):
        addk = 2*k if k < 2 else 16 + 2*(k-2)
        e(f"v_add_u32 v13, {addk}, v11")
        e(f"v_cmp_le_i32 s[{6+2*k}:{7+2*k}], 2, v13")
        e(f"v_cmp_ge_i32 vcc, 16, v13")
        e(f"s_and_b64 s[{6+2*k}:{7+2*k}], s[{6+2*k}:{7+2*k}], vcc")
    e("s_or_b32 s3, s25, s48")
    e("s_cmp_eq_u32 s3, 0")
    e("s_cselect_b64 s[14:15], 0, -1")
    e("s_and_b64 s[16:17], s[6:7], s[14:15]")
    e("s_and_b64 s[18:19], s[8:9], s[14:15]")
    e("v_mov_b32 v13, 0xce6e6b28")
    e(f"s_mov_b32 s20, 0x{SC2:x}")
    tile_addr()
    e("v_cmp_eq_u32 s[68:69], 3, v6")
    def seq(rt, hh):
        cb = rt*2+hh
        lgr = [C0(cb), C0(cb)+2, C1(cb), C1(cb)+2]
        m = C1(cb)+1; m2 = C1(cb)+3
        o = []
        for k in range(4):
            o.append(f"v_cndmask_b32 v{lgr[k]}, v{lgr[k]}, v{lgr[k]+1}, s[4:5]")
        for k in range(4):
            ms = (16 + 2*k) if (rt == 0 and k < 2) else (6 + 2*k)
            o.append(f"v_cndmask_b32 v{lgr[k]}, v13, v{lgr[k]}, s[{ms}:{ms+1}]")
        o.append(f"v_max3_f32 v{m}, v{lgr[0]}, v{lgr[1]}, v{lgr[2]}")
        o.append(f"v_max_f32 v{m}, v{m}, v{lgr[3]}")
        o.append(f"v_mov_b32 v{m2}, v{m}")
        o.append(f"v_permlane16_swap_b32 v{m}, v{m2}")
        o.append(f"v_max_f32 v{m}, v{m}, v{m2}")
        o.append(f"v_mov_b32 v{m2}, v{m}")
        o.append(f"v_permlane32_swap_b32 v{m}, v{m2}")
        o.append(f"v_max_f32 v{m}, v{m}, v{m2}")
        o.append(f"v_mul_f32 v{m}, 0x{SC2 ^ 0x80000000:x}, v{m}")
        for k in range(4):
            o.append(f"v_fma_f32 v{lgr[k]}, v{lgr[k]}, s20, v{m}")
        for k in range(4):
            o.append(f"v_exp_f32 v{lgr[k]}, v{lgr[k]}")
        o.append(f"v_add_f32 v{m}, v{lgr[0]}, v{lgr[1]}")
        o.append(f"v_add_f32 v{m2}, v{lgr[2]}, v{lgr[3]}")
        o.append(f"v_add_f32 v{m}, v{m}, v{m2}")
        o.append(f"v_mov_b32 v{m2}, v{m}")
        o.append(f"v_permlane16_swap_b32 v{m}, v{m2}")
        o.append(f"v_add_f32 v{m}, v{m}, v{m2}")
        o.append(f"v_mov_b32 v{m2}, v{m}")
        o.append(f"v_permlane32_swap_b32 v{m}, v{m2}")
        o.append(f"v_add_f32 v{m}, v{m}, v{m2}")
        o.append(f"v_rcp_f32 v{m}, v{m}")
        for k in range(4):
            o.append(f"v_mul_f32 v{lgr[k]}, v{lgr[k]}, v{m}")
            o.append(f"v_cvt_pk_bf16_f32 v{C0(cb)+k}, v{lgr[k]}, v{lgr[k]}")
            o.append(f"v_and_b32 v{C0(cb)+k}, v{C0(cb)+k}, v12")
        return o
    ilv([seq(rt, hh) for rt in range(2) for hh in range(2)])
    e("s_nop 1")
    for rt in range(2):
        for hh in range(2):
            cb = rt*2+hh
            for et in (1, 0):
                o = QFr(rt, hh) if et == 0 else C1(cb)
                v = VB(hh, et) + 2 + 2*rt
                e(f"v_mfma_f32_16x16x32_bf16 v[{o}:{o+3}], v[{v}:{v+3}], v[{C0(cb)}:{C0(cb)+3}], 0")
    e("s_nop 7")
    sq = []; regs = []
    for rt in range(2):
        for hh in range(2):
            cb = rt*2+hh
            o0 = QFr(rt, hh); o1 = C1(cb); t = C0(cb)
            o = [f"v_mov_b32 v{t}, v{o1+3}",
                 f"v_cvt_pk_bf16_f32 v{o0}, v{o0}, v{o0+1}",
                 f"v_permlane32_swap_b32 v{t+1}, v{t}",
                 f"v_permlane16_swap_b32 v{t+2}, v{o1+3}",
                 f"v_cvt_pk_bf16_f32 v{o0+1}, v{o0+2}, v{o0+3}",
                 f"v_permlane16_swap_b32 v{t+3}, v{t+1}",
                 f"v_cndmask_b32 v{o1+2}, v{o1+2}, v{t+2}, s[68:69]",
                 f"v_cndmask_b32 v{o1+1}, v{o1+1}, v{t+1}, s[68:69]",
                 f"v_cndmask_b32 v{o1}, v{o1}, v{t+3}, s[68:69]",
                 f"v_cvt_pk_bf16_f32 v{o0+3}, v{o1+2}, v{o1+2}",
                 f"v_cvt_pk_bf16_f32 v{o0+2}, v{o1}, v{o1+1}",
                 f"v_and_or_b32 v{o0+3}, v{o0+3}, v10, s61"]
            sq.append(o); regs.append((rt, hh, o0))
    ilv(sq)
    tile_store(vm, regs)
    stamp(vm, 5)

def p2(isB):
    lab(f"P2_{'B' if isB else 'A'}")
    c("---- P2 (8 waves, 16 rows each) ----")
    wo = B_WO if isB else A_WO
    flg = FLG_B if isB else FLG_A
    e("v_lshrrev_b32 v3, 4, v2")
    e("v_and_b32 v4, 15, v2")
    e("v_lshl_add_u32 v5, v1, 4, v4")
    e("v_lshlrev_b32 v6, 11, v1")
    e("v_lshl_add_u32 v6, v2, 4, v6")
    e("s_lshl_b32 s3, s25, 7")
    e("v_add_u32 v5, s3, v5")
    e("v_mul_u32_u24 v8, 1792, v5")
    e("v_and_b32 v9, 1, v3")
    e("v_lshl_add_u32 v8, v9, 5, v8")
    e("v_lshrrev_b32 v9, 1, v3")
    e("v_lshl_add_u32 v8, v9, 4, v8")
    e("s_mul_i32 s3, s24, 896")
    e("s_add_u32 s3, s3, s56")
    e("v_add_u32 v8, s3, v8")
    e("v_bfe_u32 v10, v2, 2, 2")
    e("v_mul_u32_u24 v11, 14, v9")
    e("v_and_b32 v12, 1, v3")
    e("v_lshl_add_u32 v13, v12, 2, v11")
    e("v_add_u32 v13, v13, v10")
    e("v_mul_u32_u24 v12, 3, v12")
    e("v_min_u32 v10, 2, v10")
    e("v_add3_u32 v11, v11, v12, v10")
    e("v_add_u32 v11, 8, v11")
    e("v_and_b32 v12, 3, v2")
    e("v_lshlrev_b32 v12, 3, v12")
    e(f"v_add_u32 v12, {wo}, v12")
    e(f"v_mul_u32_u24 v10, {RS}, v13")
    e("v_add_u32 v10, v10, v12")
    e(f"v_mul_u32_u24 v11, {RS}, v11")
    e("v_add_u32 v11, v11, v12")
    e("v_cmp_ne_u32 s[64:65], 3, v3")
    e(f"v_mov_b32 v14, {flg}")
    e("s_barrier")
    e("ds_read_b32 v15, v14")
    stamp(None, 6)
    e("s_waitcnt lgkmcnt(0)")
    e("v_readfirstlane_b32 s79, v15")
    e(f"s_add_u32 s57, s59, 0x{TLQ:x}")
    e("s_nop 2")
    e("s_bitcmp1_b32 s79, 0")
    e("s_cselect_b32 s62, s59, s57")
    OFR = 64
    def body(sc, base):
        e(f"s_mov_b32 s58, {base}")
        for h in range(16):
            r = OFR + h*4
            e(f"buffer_load_dwordx4 v[{r}:{r+3}], v6, s[40:43], s58 offen offset:{(h&1)*1024}{sc}")
            if h & 1 and h < 15: e("s_add_u32 s58, s58, 16384")
        e("v_mov_b32 v13, 0")
        def rdh(h):
            bb = (h % 2)*16
            ho = (h & 7)*7168 + (h >> 3)*112
            for nt in range(4):
                e(f"ds_read_b64_tr_b16 a[{bb+nt*4}:{bb+nt*4+1}], v10 offset:{ho + nt*32}")
                e(f"ds_read_b64_tr_b16 a[{bb+nt*4+2}:{bb+nt*4+3}], v11 offset:{ho + nt*32}")
        rdh(0)
        for h in range(16):
            if h < 15: rdh(h+1)
            e(f"s_waitcnt vmcnt({15-h}) lgkmcnt({8 if h < 15 else 0})")
            r = OFR + h*4
            e(f"v_xor_b32 v{r+3}, s61, v{r+3}")
            e(f"v_max_u32 v13, v13, v{r+3}")
            bb = (h % 2)*16
            for nt in range(4):
                a = 32 + nt*4
                cc = "0" if h == 0 else f"v[{a}:{a+3}]"
                e(f"v_mfma_f32_16x16x32_bf16 v[{a}:{a+3}], a[{bb+nt*4}:{bb+nt*4+3}], v[{r}:{r+3}], {cc}")
        e("v_cmp_gt_u32 vcc, 0x10000, v13")
        e("s_cmp_eq_u64 vcc, -1")
    ok = uid("P2OK"); rt_ = uid("P2RT")
    body("", "s62")
    if STAMP:
        e("s_cselect_b32 s95, 1, 0")
        stamp(None, 11)
        e("s_cmp_eq_u32 s95, 1")
    e(f"s_cbranch_scc1 {ok}")
    e("s_mov_b32 s78, 0")
    lab(rt_)
    stamp(None, 8)
    e("s_waitcnt vmcnt(0)")
    body(" sc0 sc1", "s57")
    e(f"s_cbranch_scc1 {ok}")
    e("s_add_u32 s78, s78, 1")
    e("s_cmp_gt_u32 s78, 0x4000")
    e(f"s_cbranch_scc0 {rt_}")
    lab(ok)
    sk = uid("NS")
    e("s_or_b32 s3, s26, s48")
    e("s_cmp_eq_u32 s3, 0")
    e(f"s_cbranch_scc0 {sk}")
    e("v_mov_b32 v12, 0")
    e("v_mov_b32 v13, s93")
    e("buffer_store_dword v13, v12, s[40:43], s60 offen sc0 sc1")
    lab(sk)
    e("s_nop 7")
    for nt in range(4):
        a = 32 + nt*4
        d = 48 + (nt >> 1)*4 + (nt & 1)*2
        e(f"v_cvt_pk_bf16_f32 v{d}, v{a}, v{a+1}")
        e(f"v_cvt_pk_bf16_f32 v{d+1}, v{a+2}, v{a+3}")
    e("s_nop 1")
    for pr in range(2):
        d = 48 + pr*4
        e(f"v_permlane16_swap_b32 v{d}, v{d+2}")
        e(f"v_permlane16_swap_b32 v{d+1}, v{d+3}")
    e("s_nop 1")
    e("buffer_store_dwordx4 v[48:51], v8, s[88:91], 0 offen")
    e("s_mov_b64 exec, s[64:65]")
    e("buffer_store_dwordx4 v[52:55], v8, s[88:91], 0 offen offset:64")
    e("s_mov_b64 exec, -1")
    stamp(None, 9)
    e("s_endpgm")

def compute(isB):
    lab("C_B" if isB else "C_A")
    vm = VM()
    comp_setup(isB)
    srds(isB)
    stamp(vm, 0)
    nonce_issue(vm)
    gemm(vm, isB)
    stamp(vm, 3)
    if isB: epi_B(vm)
    else: epi_A(vm)
    p2(isB)

def kernel():
    lab(f"{NAME}_kernel")
    prologue()
    for lw in range(4): loader(False, lw)
    for lw in range(4): loader(True, lw)
    compute(False)
    compute(True)
    lab("K_END")
    e("s_endpgm")

HDR = open("cdna_kernels/" + NAME + ".s.ref").read().split("; @launch")[0]
kernel()
out = HDR
out += f"; @launch grid=(256,1,1) block=(512,1,1) lds={LDS_TOTAL}\n"
out += '.amdgcn_target "amdgcn-amd-amdhsa--gfx950"\n.text\n'
out += f".globl {NAME}_kernel\n.p2align 8\n.type {NAME}_kernel,@function\n"
out += "\n".join(L) + "\n"
out += f""".section .rodata,"a"
.p2align 6
.amdhsa_kernel {NAME}_kernel
  .amdhsa_next_free_vgpr 256
  .amdhsa_next_free_sgpr 96
  .amdhsa_accum_offset 144
  .amdhsa_group_segment_fixed_size 0
  .amdhsa_kernarg_size 72
  .amdhsa_user_sgpr_count 2
  .amdhsa_user_sgpr_kernarg_segment_ptr 1
  .amdhsa_system_sgpr_workgroup_id_x 1
.end_amdhsa_kernel
"""
path = sys.argv[1] if len(sys.argv) > 1 else f"cdna_kernels/{NAME}.s"
open(path, "w").write(out)
```

```python
import sys, os, struct
NAME = "concat_heads__linear_attn_block__sliding_local_dilated__prompt"
TLP = 0
TLQ = 0x400000
ACC = 0x800000
NON = 0x810000
WS_END = 0x820000
STAMP = os.environ.get("STAMP") in ("1", "2")
RT = os.environ.get("STAMP") == "2"
STB = 0x900000
if STAMP: WS_END = 0xa00000
LOG2E = 0x3FB8AA3B
EPS = 0x358637BD
for s in range(64*21): assert (s * 4682) >> 16 == s // 14
for s in range(32): assert (s * 37) >> 8 == s // 7
RS = 224
KVS = 14336; QS = 7168; XS = 16384
LDS_TOTAL = 163840
ROT = os.environ.get("ROT", "1") == "1"
PPOL = os.environ.get("PPOL", "sc0 sc1")
W0 = os.environ.get("W0") == "1"
PRE = os.environ.get("PRE", "1") == "1"
DA = int(os.environ.get("DA", "6"))
DB = int(os.environ.get("DB", "6"))
def f2u(x): return struct.unpack('<I', struct.pack('<f', x))[0]
SC2 = f2u(28 ** -0.5 * 1.4426950408889634)
CNT_Z = 40 * 4
def A_kv(i): return (i % 5) * 30720
def A_x(i): return (i % 5) * 30720 + KVS
def A_q(i): return (61440 + i*QS) if i < 4 else (92160 + (i-4)*QS)
A_SCR = 122880; KVB = 159744; A_WO = 0
B_WSL = [142336, 0, 21504, 120832]
def B_kv(i): return B_WSL[i % 4]
def B_q(i): return B_WSL[i % 4] + KVS
def B_x(i): return 43008 + (i % 3) * 18432
B_SCR = 61440; B_WO = 98304
FLG_A = 155648
FLG_B = 0
FLG_B = 83968

L = []
def e(s): L.append("    " + s)
def lab(s): L.append(s + ":")
def c(s): L.append("    ; " + s)
_uid = [0]
def uid(p):
    _uid[0] += 1
    return f"{p}_{_uid[0]}"

class CNT:
    def __init__(self, kind, mx): self.ops = []; self.kind = kind; self.mx = mx
    def issue(self, tag): self.ops.append(tag)
    def n(self, tag):
        idx = max(i for i, t in enumerate(self.ops) if t == tag)
        return min(len(self.ops) - 1 - idx, self.mx)
    def wait(self, tag): e(f"s_waitcnt {self.kind}({self.n(tag)})")
def VM(): return CNT("vmcnt", 63)
def LG(): return CNT("lgkmcnt", 15)

def stamp(vm, i):
    if not STAMP: return
    e("s_memrealtime s[72:73]" if RT else "s_memtime s[72:73]")
    e("s_waitcnt lgkmcnt(0)")
    e("v_mov_b32 v28, s72")
    e("s_lshl_b32 s74, s2, 8")
    e(f"s_add_u32 s74, s74, {STB + i*4}")
    e("v_mov_b32 v29, 0")
    e("v_and_b32 v30, 0xff, v0")
    e("v_cmp_eq_u32 vcc, 0, v30")
    e("s_and_saveexec_b64 s[76:77], vcc")
    e("buffer_store_dword v28, v29, s[40:43], s74 offen")
    e("s_mov_b64 exec, s[76:77]")
    if vm is not None: vm.issue("stamp")

def phi_pair(dst, a, b, t):
    assert b == a + 1 and a % 2 == 0 and t % 2 == 0
    return [f"v_pk_mul_f32 v[{t}:{t+1}], v[{a}:{b}], s[70:71]",
            f"v_exp_f32 v{t}, v{t} clamp",
            f"v_exp_f32 v{t+1}, v{t+1} clamp",
            f"v_max_f32 v{a}, 0, v{a}",
            f"v_max_f32 v{b}, 0, v{b}",
            f"v_pk_add_f32 v[{t}:{t+1}], v[{t}:{t+1}], v[{a}:{b}]",
            f"v_cvt_pk_bf16_f32 v{dst}, v{t}, v{t+1}"]
def ilv(seqs):
    for i in range(max(len(q) for q in seqs)):
        for q in seqs:
            if i < len(q): e(q[i])

def srd(base, lo, hi, nbytes):
    e(f"s_mov_b32 s{base}, s{lo}")
    e(f"s_and_b32 s{base+1}, s{hi}, 0xffff")
    e(f"s_mov_b32 s{base+2}, 0x{nbytes:x}")
    e(f"s_mov_b32 s{base+3}, 0x20000")

def srds(isB):
    e("s_waitcnt lgkmcnt(0)")
    o = 6 if isB else 0
    srd(32, 6+o, 7+o, 448*2688)
    srd(28, 4+o, 5+o, 2048*896)
    srd(40, 20, 21, WS_END)
    srd(36, 8+o, 9+o, 448*896)
    srd(44, 18, 19, 256)
    srd(88, 16, 17, 2048*1792)

def prologue():
    e("s_cmp_ge_u32 s2, 256")
    e("s_cbranch_scc1 K_END")
    e("s_load_dwordx4 s[4:7], s[0:1], 0")
    e("s_load_dwordx4 s[8:11], s[0:1], 16")
    e("s_load_dwordx4 s[12:15], s[0:1], 32")
    e("s_load_dwordx4 s[16:19], s[0:1], 48")
    e("s_load_dwordx2 s[20:21], s[0:1], 64")
    e("v_lshrrev_b32 v1, 6, v0")
    e("v_and_b32 v2, 63, v0")
    e("v_readfirstlane_b32 s48, v1")
    e("s_and_b32 s22, s2, 7")
    e("s_lshr_b32 s23, s2, 3")
    e("s_lshr_b32 s24, s22, 2")
    e("s_and_b32 s27, s22, 3")
    e("s_lshl_b32 s25, s27, 2")
    e("s_and_b32 s3, s23, 3")
    e("s_add_u32 s25, s25, s3")
    e("s_lshr_b32 s26, s23, 2")
    e("s_mul_i32 s56, s26, 112")
    e(f"s_mov_b32 s70, 0x{LOG2E:x}")
    e(f"s_mov_b32 s71, 0x{LOG2E:x}")
    e("s_lshl_b32 s60, s24, 4")
    e("s_add_u32 s60, s60, s25")
    e("s_lshl_b32 s59, s60, 17")
    e("s_lshl_b32 s60, s60, 7")
    e(f"s_add_u32 s60, s60, 0x{NON:x}")
    if ROT:
        e("s_mul_i32 s3, s23, 37")
        e("s_lshr_b32 s3, s3, 8")
        e("s_mul_i32 s3, s3, 7")
        e("s_sub_u32 s81, s23, s3")
    else:
        e("s_mov_b32 s81, 0")
    e("s_mov_b32 s82, s81")
    e("s_lshl_b32 s3, s24, 3")
    e("s_add_u32 s3, s3, s48")
    e("s_cmp_lt_u32 s3, 4")
    e("s_cbranch_scc1 C_A")
    for lw in range(4):
        e(f"s_cmp_eq_u32 s3, {4+lw}")
        e(f"s_cbranch_scc1 L_A{lw}")
    e("s_cmp_lt_u32 s3, 12")
    e("s_cbranch_scc1 C_B")
    for lw in range(3):
        e(f"s_cmp_eq_u32 s3, {12+lw}")
        e(f"s_cbranch_scc1 L_B{lw}")
    e("s_branch L_B3")

def nonce_issue(vm):
    e("v_mov_b32 v3, 0")
    e("buffer_load_dword v31, v3, s[40:43], s60 offen sc0 sc1")
    vm.issue("non")
def nonce_get():
    e("v_readfirstlane_b32 s93, v31")
    e("s_nop 3")
    e("s_add_u32 s93, s93, 1")
    e("s_lshl_b32 s61, s93, 16")

def div14(n):
    e(f"v_add_u32 v3, {64*n}, v2")
    e("v_mul_u32_u24 v4, 4682, v3")
    e("v_lshrrev_b32 v4, 16, v4")
    e("v_mul_u32_u24 v5, 14, v4")
    e("v_sub_u32 v3, v3, v5")
    e("v_cmp_lt_u32 vcc, 6, v3")
    e("v_cndmask_b32 v5, 0, 1, vcc")
    e("v_mul_u32_u24 v6, 7, v5")
    e("v_sub_u32 v3, v3, v6")

def w_voff(dst, n, isq):
    div14(n)
    e("v_lshrrev_b32 v6, 1, v4")
    e("v_and_b32 v6, 4, v6")
    e("v_xor_b32 v4, v4, v6")
    e("v_mul_u32_u24 v4, 2688, v4")
    if isq:
        e("v_mul_u32_u24 v5, s58, v5")
        e("v_lshl_add_u32 v3, v3, 4, v4")
        e(f"v_add_u32 v{dst}, v3, v5")
    else:
        e("v_mul_u32_u24 v5, 896, v5")
        e("v_lshl_add_u32 v3, v3, 4, v4")
        e(f"v_add3_u32 v{dst}, v3, v5, s57")

def step_hdr(sr):
    e(f"s_mul_i32 s83, s{sr}, 172032")
    e("s_add_u32 s83, s83, s56")
    e(f"s_lshl_b32 s85, s{sr}, 7")
    e("s_add_u32 s86, s85, 14336")
    e(f"s_add_u32 s{sr}, s{sr}, 1")
    e(f"s_cmp_eq_u32 s{sr}, 7")
    e(f"s_cselect_b32 s{sr}, 0, s{sr}")

def dma(vm, tag, voff, srd_, soff, lds):
    e(f"s_mov_b32 m0, {lds}")
    e("s_nop 0")
    e(f"buffer_load_dwordx4 v{voff}, s[{srd_}:{srd_+3}], {soff} offen lds")
    vm.issue(tag)

def wo_voffs(isB):
    for t in range(7):
        div14(t)
        e("v_min_u32 v4, 27, v4")
        e("v_cmp_lt_u32 vcc, 13, v4")
        e("v_cndmask_b32 v6, 0, 1, vcc")
        e("v_mul_u32_u24 v24, 14, v6")
        e("v_sub_u32 v4, v4, v24")
        e("v_lshrrev_b32 v24, 2, v4")
        e("v_and_b32 v25, 3, v4")
        e("v_cmp_lt_u32 vcc, 10, v4")
        e("v_cndmask_b32 v26, 0, 1, vcc")
        e("v_mul_u32_u24 v27, 3, v26")
        e("v_sub_u32 v27, v4, v27")
        e("v_subrev_u32 v27, 4, v27")
        e("v_cmp_lt_u32 vcc, 7, v4")
        e("v_cndmask_b32 v24, v24, v26, vcc")
        e("v_cndmask_b32 v25, v25, v27, vcc")
        e("v_lshl_add_u32 v24, v6, 1, v24")
        if not isB:
            e("v_mul_u32_u24 v24, 7, v24")
            e("v_add_u32 v4, v24, v25")
        else:
            e("v_lshl_add_u32 v4, v24, 2, v25")
            e("v_add_u32 v26, 12, v4")
            e("v_lshlrev_b32 v27, 2, v25")
            e("v_add_u32 v27, 3, v27")
            e("v_cmp_eq_u32 s[4:5], 3, v24")
            e("v_cndmask_b32 v26, v26, v27, s[4:5]")
            e("v_cndmask_b32 v4, v4, v26, vcc")
        e("v_mul_u32_u24 v5, 224, v5")
        e("v_add_u32 v4, v4, v5")
        e("v_mul_u32_u24 v4, 896, v4")
        e("v_lshl_add_u32 v3, v3, 4, v4")
        e(f"v_add_u32 v{40+t}, s56, v3")

def wo_block(vm, blk, base):
    e(f"s_mov_b32 s86, {blk*28*896}")
    for t in range(7):
        if t == 6: e("s_mov_b64 exec, 0xff")
        dma(vm, "wo", 40+t, 36, "s86", base + blk*7168 + t*1024)
    e("s_mov_b64 exec, -1")

def prepoll(lw, flg):
    lp = uid("PL"); dn = uid("PD"); ok = uid("PO")
    e("v_bfe_u32 v12, v2, 3, 2")
    e("v_lshlrev_b32 v12, 12, v12")
    e("s_lshl_b32 s3, s26, 7")
    e("s_add_u32 s3, s3, 3072")
    e("v_add_u32 v12, s3, v12")
    e("v_and_b32 v13, 7, v2")
    e("v_lshl_add_u32 v12, v13, 14, v12")
    e(f"s_add_u32 s58, s59, 0x{TLQ if lw else TLP:x}")
    e(f"v_mov_b32 v14, {flg}")
    e("s_mov_b32 s78, 0")
    lab(lp)
    e("buffer_load_dword v16, v12, s[40:43], s58 offen offset:12 " + ("sc0 sc1" if lw else PPOL))
    e("ds_read_b32 v15, v14")
    e("s_waitcnt vmcnt(0) lgkmcnt(0)")
    e("v_xor_b32 v13, s61, v16")
    e("v_cmp_gt_u32 vcc, 0x10000, v13")
    e("s_cmp_eq_u64 vcc, -1")
    e(f"s_cbranch_scc1 {ok}")
    e("v_readfirstlane_b32 s79, v15")
    e("s_add_u32 s78, s78, 1")
    e("s_nop 2")
    e("s_cmp_lg_u32 s79, 0")
    e(f"s_cbranch_scc1 {dn}")
    if lw: e("s_sleep 2")
    e("s_cmp_gt_u32 s78, 0x40000")
    e(f"s_cbranch_scc0 {lp}")
    e(f"s_branch {dn}")
    lab(ok)
    e(f"v_mov_b32 v15, {1 + lw}")
    e("ds_or_b32 v14, v15")
    e("s_waitcnt lgkmcnt(0)")
    lab(dn)

def loader(isB, lw):
    lab(f"L_{'B' if isB else 'A'}{lw}")
    vm = VM()
    SO = 32
    e("s_movk_i32 s57, 896")
    e("s_mov_b32 s58, 86016")
    e("v_lshrrev_b32 v3, 3, v2")
    e("v_lshrrev_b32 v4, 4, v2")
    e("v_and_b32 v5, 7, v2")
    e("v_xor_b32 v5, v5, v4")
    e("s_lshl_b32 s3, s25, 7")
    e(f"s_add_u32 s3, s3, {32*lw}")
    e("v_add_u32 v6, s3, v3")
    e("v_mul_u32_u24 v6, 896, v6")
    e("v_lshl_add_u32 v16, v5, 4, v6")
    e("v_xor_b32 v17, 64, v16")
    e("v_add_u32 v17, 7168, v17")
    kvn = [n for n in range(lw, 14, 4)]
    if isB:
        wn = [n for n in range(lw, 21, 4)]
        kvn = [n for n in wn if n < 14]; qn = [n-14 for n in wn if n >= 14]
    else:
        qn = [n for n in range(lw, 7, 4)]
    for j, n in enumerate(kvn): w_voff(8+j, n, False)
    if isB:
        for j, n in enumerate(qn): w_voff(12+j, n, True)
        if lw in (1, 2):
            u = lw - 1
            e("v_lshrrev_b32 v3, 3, v2")
            e("v_lshrrev_b32 v4, 4, v2")
            e("v_and_b32 v5, 7, v2")
            e("v_xor_b32 v5, v5, v4")
            if u: e("v_xor_b32 v5, 4, v5")
            e("s_lshl_b32 s3, s25, 7")
            e("s_sub_u32 s3, s3, 16")
            e("s_max_i32 s3, s3, 0")
            e(f"s_add_u32 s3, s3, {8*u}")
            e("v_add_u32 v6, s3, v3")
            e("v_mul_u32_u24 v6, 896, v6")
            e("v_lshl_add_u32 v18, v5, 4, v6")
    srds(isB)
    stamp(vm, SO + 0)
    def isW(i):
        for j, n in enumerate(kvn): dma(vm, f"c{i}", 8+j, 32, "s83", (B_kv(i) if isB else A_kv(i)) + n*1024)
        if isB:
            for j, n in enumerate(qn): dma(vm, f"c{i}", 12+j, 32, "s83", B_q(i) + n*1024)
    def isX(i):
        xb = B_x(i) if isB else A_x(i)
        for u in range(4):
            dma(vm, f"c{i}", 16 + (u & 1), 28, "s85" if u < 2 else "s86", xb + (4*lw+u)*1024)
        if isB and lw in (1, 2):
            dma(vm, f"c{i}", 18, 28, "s85", xb + XS + (lw-1)*1024)
    flg = FLG_B if isB else FLG_A
    if not isB:
        step_hdr(81); isX(0); isW(0)
        nonce_issue(vm)
        if W0: e("s_waitcnt vmcnt(0)")
        for r in range(4): e(f"v_mov_b32 v{4+r}, 0")
        zs = uid("ZS")
        e("s_cmp_eq_u32 s25, 0")
        e(f"s_cbranch_scc0 {zs}")
        e("s_lshl_b32 s3, s26, 13")
        e(f"s_add_u32 s3, s3, 0x{ACC + lw*2048:x}")
        e("v_lshlrev_b32 v3, 5, v2")
        e("buffer_store_dwordx4 v[4:7], v3, s[40:43], s3 offen sc0 sc1")
        e("buffer_store_dwordx4 v[4:7], v3, s[40:43], s3 offen offset:16 sc0 sc1")
        lab(zs)
        for i in range(1, 5):
            step_hdr(81); isX(i); isW(i)
        for j, n in enumerate(qn): w_voff(12+j, n, True)
        def isQ(i):
            step_hdr(82)
            for j, n in enumerate(qn): dma(vm, "q", 12+j, 32, "s83", A_q(i) + n*1024)
        for i in range(7):
            vm.wait(f"c{max(i,1)}" if i <= 1 else f"c{i}") if False else vm.wait(f"c{i}")
            e("s_barrier")
            if i == 0:
                wo_voffs(False)
            if i == 1:
                nonce_get()
                if lw == 0:
                    zs = uid("ZF")
                    e("s_cmp_eq_u32 s25, 0")
                    e(f"s_cbranch_scc0 {zs}")
                    e("s_lshl_b32 s3, s26, 2")
                    e(f"v_mov_b32 v3, {CNT_Z}")
                    e("v_mov_b32 v4, 1")
                    e("s_mov_b64 exec, 1")
                    e("buffer_store_dword v4, v3, s[44:47], s3 offen sc0 sc1")
                    e("s_mov_b64 exec, -1")
                    lab(zs)
                    e(f"v_mov_b32 v3, {flg}")
                    e("v_mov_b32 v4, 0")
                    e("ds_write_b32 v3, v4")
            if i == 2: step_hdr(81); isX(5); isW(5)
            if i == 3: step_hdr(81); isX(6); isW(6)
            if i == 4:
                for k in range(4): isQ(k)
            if i == 5:
                for k in range(4, 7): isQ(k)
        zl = uid("ZL"); zd = uid("ZD")
        e("s_mov_b32 s78, 0")
        e(f"v_mov_b32 v3, {CNT_Z}")
        e("s_lshl_b32 s3, s26, 2")
        lab(zl)
        e("buffer_load_dword v19, v3, s[44:47], s3 offen sc0 sc1")
        e("s_waitcnt vmcnt(0)")
        e("v_readfirstlane_b32 s79, v19")
        e("s_add_u32 s78, s78, 1")
        e("s_nop 2")
        e("s_cmp_eq_u32 s79, 1")
        e(f"s_cbranch_scc1 {zd}")
        e("s_sleep 1")
        e("s_cmp_gt_u32 s78, 0x40000")
        e(f"s_cbranch_scc0 {zl}")
        lab(zd)
        hh = lw >> 1; et = lw & 1
        e("v_and_b32 v5, 15, v2")
        e("v_lshrrev_b32 v6, 4, v2")
        e("v_lshlrev_b32 v3, 4, v2")
        e(f"v_add_u32 v4, {A_SCR + lw*2048}, v3")
        e("s_lshl_b32 s3, s26, 13")
        e(f"s_add_u32 s57, s3, 0x{ACC + lw*2048:x}")
        e("v_lshlrev_b32 v8, 9, v6")
        e("v_lshl_add_u32 v8, v5, 2, v8")
        e("v_cmp_gt_u32 s[66:67], 3, v6")
        e("v_cmp_le_u32 s[64:65], 14, v5")
        e("v_cmp_gt_u32 s[68:69], 2, v5")
        e("v_lshlrev_b32 v9, 4, v2")
        e("v_and_b32 v10, 7, v2")
        e("v_lshrrev_b32 v11, 3, v2")
        e("v_cmp_eq_u32 s[4:5], 3, v10")
        e("v_cmp_eq_u32 s[6:7], 4, v10")
        e("s_or_b64 s[6:7], s[6:7], s[4:5]")
        if et:
            e("v_cmp_gt_u32 s[8:9], 5, v11")
            e("s_and_b64 s[10:11], s[8:9], s[6:7]")
            e("v_cmp_eq_u32 s[12:13], 4, v11")
        else:
            e("s_mov_b64 s[10:11], s[6:7]")
        e("v_and_b32 v12, 3, v10")
        e("v_lshlrev_b32 v12, 4, v12")
        e("v_lshrrev_b32 v10, 2, v10")
        e("v_lshl_add_u32 v12, v10, 3, v12")
        e(f"v_add_u32 v12, {KVB + hh*2048}, v12")
        for j in range(2):
            e(f"v_add_u32 v13, {16*et + 8*j}, v11")
            e("v_mul_u32_u24 v14, 37, v13")
            e("v_lshrrev_b32 v14, 8, v14")
            e("v_mul_u32_u24 v15, 7, v14")
            e("v_sub_u32 v15, v13, v15")
            e("v_lshrrev_b32 v16, 2, v15")
            e("v_and_b32 v15, 3, v15")
            e("v_lshl_add_u32 v15, v14, 2, v15")
            e("v_lshl_add_u32 v15, v16, 4, v15")
            if et and j:
                e("v_cndmask_b32 v15, v15, 19, s[12:13]")
            e(f"v_lshl_add_u32 v{20+j}, v15, 6, v12")
        vm.wait("q")
        e("s_barrier")
        stamp(vm, SO + 1)
        RD = 48
        for dt in range(2):
            for w in range(4):
                r = RD + (dt*4 + w)*4
                e(f"ds_read_b128 v[{r}:{r+3}], v4 offset:{w*8192 + dt*1024}")
        for dt in range(2):
            e(f"s_waitcnt lgkmcnt({4-4*dt})")
            b = RD + dt*16
            for r in range(4):
                e(f"v_add_f32 v{b+r}, v{b+r}, v{b+4+r}")
                e(f"v_add_f32 v{b+8+r}, v{b+8+r}, v{b+12+r}")
            for r in range(4):
                e(f"v_add_f32 v{b+r}, v{b+r}, v{b+8+r}")
            for r in range(4):
                e(f"v_cndmask_b32 v{b+r}, v{b+r}, 1.0, s[{64+4*dt}:{65+4*dt}]")
        for dt in range(2):
            e(f"buffer_atomic_add_f32 v{RD+dt*16}, v8, s[40:43], s57 offen offset:{dt*64} sc1")
        if et: e("s_mov_b64 exec, s[66:67]")
        for r in range(1, 4):
            for dt in range(2):
                e(f"buffer_atomic_add_f32 v{RD+dt*16+r}, v8, s[40:43], s57 offen offset:{r*128 + dt*64} sc1")
        if et: e("s_mov_b64 exec, -1")
        stamp(vm, SO + 2)
        wo_block(vm, lw, A_WO)
        wo_block(vm, lw + 4, A_WO)
        PR = 80
        lp = uid("KVL"); dn = uid("KVD")
        e("s_mov_b32 s78, 0")
        lab(lp)
        for j in range(2):
            e(f"buffer_load_dwordx4 v[{PR+j*4}:{PR+j*4+3}], v9, s[40:43], s57 offen offset:{j*1024} sc0 sc1")
        e("s_waitcnt vmcnt(0)")
        e(f"v_cndmask_b32 v13, v{PR}, v{PR+2}, s[4:5]")
        e("v_cmp_eq_f32 vcc, 0x41800000, v13")
        e("s_and_b64 s[14:15], vcc, s[6:7]")
        e(f"v_cndmask_b32 v13, v{PR+4}, v{PR+6}, s[4:5]")
        e("v_cmp_eq_f32 vcc, 0x41800000, v13")
        e("s_and_b64 s[16:17], vcc, s[10:11]")
        e("s_xor_b64 s[14:15], s[14:15], s[6:7]")
        e("s_xor_b64 s[16:17], s[16:17], s[10:11]")
        e("s_or_b64 s[14:15], s[14:15], s[16:17]")
        e(f"s_cbranch_scc0 {dn}")
        e("s_add_u32 s78, s78, 1")
        e("s_cmp_gt_u32 s78, 0x40000")
        e(f"s_cbranch_scc0 {lp}")
        lab(dn)
        for j in range(2):
            r = PR + j*4
            e(f"v_cvt_pk_bf16_f32 v{r}, v{r}, v{r+1}")
            e(f"v_cvt_pk_bf16_f32 v{r+1}, v{r+2}, v{r+3}")
            if et and j: e("s_mov_b64 exec, s[8:9]")
            e(f"ds_write_b64 v{20+j}, v[{r}:{r+1}]")
        if et:
            e("s_mov_b64 exec, s[12:13]")
            for k in range(1, 4):
                e(f"ds_write_b64 v21, v[{PR+4}:{PR+5}] offset:{k*256}")
            e("s_mov_b64 exec, -1")
        e("s_waitcnt lgkmcnt(0)")
        e("s_barrier")
        stamp(vm, SO + 3)
    else:
        step_hdr(81); isX(0); isW(0)
        nonce_issue(vm)
        if W0: e("s_waitcnt vmcnt(0)")
        e("s_mov_b32 s82, s81")
        for i in range(1, 3):
            step_hdr(81); isX(i); isW(i)
        e("s_mov_b32 s82, s81")
        step_hdr(81); isW(3)
        for i in range(7):
            vm.wait(f"c{i}")
            e("s_barrier")
            if i == 0: wo_voffs(True)
            if i == 1:
                nonce_get()
                step_hdr(82); isX(3)
            if i in (2, 3, 4):
                step_hdr(81); isX(i+2); isW(i+2)
            if i == 5: wo_block(vm, lw, B_WO)
            if i == 6:
                wo_block(vm, lw + 4, B_WO)
                if lw == 0:
                    e(f"v_mov_b32 v3, {flg}")
                    e("v_mov_b32 v4, 0")
                    e("ds_write_b32 v3, v4")
                    e("s_waitcnt lgkmcnt(0)")
        e("s_barrier")
        stamp(vm, SO + 3)
    if lw < 2: prepoll(lw, flg)
    e("s_waitcnt vmcnt(0)")
    e(f"s_branch P2_{'B' if isB else 'A'}")

def tcol(isB, grp, t):
    return (t >> 1)*56 + (t & 1)*(24 if (not isB and grp < 2) else 32)

def accA(grp, rt, t): return 32 + ((grp-1)*8 + rt*4 + t)*4 if grp else 32 + (rt*4+t)*4
def accB(grp, rt, t):
    if grp == 2: return 96 + t*8 + rt*4
    return 32 + grp*32 + (rt*4 + t)*4

def comp_setup(isB):
    e("v_lshrrev_b32 v3, 4, v2")
    e("v_bfe_u32 v4, v2, 2, 2")
    e("v_lshl_add_u32 v4, v3, 3, v4")
    e("v_and_b32 v5, 1, v3")
    e("v_lshlrev_b32 v5, 2, v5")
    e("v_add_u32 v6, v4, v5")
    e("v_xor_b32 v7, 4, v6")
    e(f"v_mul_u32_u24 v6, {RS}, v6")
    e(f"v_mul_u32_u24 v7, {RS}, v7")
    e("v_and_b32 v5, 3, v2")
    e("v_lshl_add_u32 v14, v5, 3, v6")
    e("v_lshl_add_u32 v15, v5, 3, v7")
    e("v_and_b32 v4, 15, v2")
    e("v_lshrrev_b32 v5, 1, v4")
    e("v_xor_b32 v5, v5, v3")
    e("v_lshlrev_b32 v5, 4, v5")
    e("v_lshl_add_u32 v18, v4, 7, v5")
    e("v_lshl_add_u32 v16, v1, 12, v18")
    e("v_xor_b32 v17, 64, v16")
    if isB:
        e(f"v_add_u32 v18, {XS}, v18")
        e("v_xor_b32 v19, 64, v18")
        e("s_lshr_b32 s3, s48, 1")
        e("s_mul_i32 s3, s3, 56")
        e("s_and_b32 s27, s48, 1")
        e("s_lshl_b32 s27, s27, 5")
        e("s_add_u32 s49, s3, s27")

def gemm(vm, isB):
    lg = LG()
    D = DB if isB else DA
    NB = 12
    def bf(j): return (f"a[{(j%NB)*4}:{(j%NB)*4+3}]", f"a[{(j%NB)*4}:{(j%NB)*4+1}]", f"a[{(j%NB)*4+2}:{(j%NB)*4+3}]") if isB else \
                      (f"v[{96+(j%NB)*4}:{96+(j%NB)*4+3}]", f"v[{96+(j%NB)*4}:{96+(j%NB)*4+1}]", f"v[{96+(j%NB)*4+2}:{96+(j%NB)*4+3}]")
    def xr(ch, kk, rt):
        r = 48 + (ch & 1)*24 + (kk*3+rt)*4 if isB else (ch*4 + kk*2 + rt)*4
        return f"a[{r}:{r+3}]"
    items = []
    for ch in range(7):
        for kk in range(2):
            for grp in ((0, 1, 2) if isB else (1, 2)):
                for t in range(4): items.append((ch, kk, grp, t))
                if isB and grp: items.append((ch, kk, grp, 4))
    def sync(ch):
        e("s_barrier")
        stamp(vm, 12 + ch)
        wb = 20 + (ch & 1)*2
        kvb = B_kv(ch) if isB else A_kv(ch)
        xb = B_x(ch) if isB else A_x(ch)
        e(f"v_add_u32 v24, {xb}, v16")
        e(f"v_add_u32 v25, {xb}, v17")
        if isB:
            e(f"v_add_u32 v26, {xb}, v18")
            e(f"v_add_u32 v27, {xb}, v19")
        e(f"v_add_u32 v{wb}, {kvb}, v14")
        e(f"v_add_u32 v{wb+1}, {kvb}, v15")
        for kk in range(2):
            for rt in range(2):
                e(f"ds_read_b128 {xr(ch,kk,rt)}, v{24+kk} offset:{rt*2048}")
                lg.issue(f"x{ch}")
            if isB:
                e(f"ds_read_b128 {xr(ch,kk,2)}, v{26+kk}")
                lg.issue(f"x{ch}")
        if isB:
            e(f"v_add_u32 v{8+(ch&1)*2}, s49, v{wb}")
            e(f"v_add_u32 v{9+(ch&1)*2}, s49, v{wb+1}")
    def rd(j):
        ch, kk, grp, t = items[j]
        if j == 0 or items[j-1][0] != ch: sync(ch)
        wb = 20 + (ch & 1)*2
        if t == 4: wb = 8 + (ch & 1)*2
        if grp == 0: off = KVS + kk*112 + tcol(isB, grp, t)
        else: off = 32*kk*RS + (grp-1)*112 + (tcol(isB, grp, t) if t < 4 else 0)
        for hf in range(2):
            e(f"ds_read_b64_tr_b16 {bf(j)[1+hf]}, v{wb+hf} offset:{off}")
            lg.issue(f"w{j}")
    for j in range(D): rd(j)
    for j, (ch, kk, grp, t) in enumerate(items):
        if j + D < len(items): rd(j + D)
        lg.wait(f"w{j}")
        tr = (grp == 0) or (isB and grp == 1)
        first = (ch == 0 and kk == 0)
        for rt in ((0, 1) if t < 4 else (2,)):
            a = (accB(grp, rt, t) if isB else accA(grp, rt, t)) if t < 4 else 128 + (grp-1)*4
            cc = "0" if first else f"v[{a}:{a+3}]"
            if tr: e(f"v_mfma_f32_16x16x32_bf16 v[{a}:{a+3}], {bf(j)[0]}, {xr(ch,kk,rt)}, {cc}")
            else: e(f"v_mfma_f32_16x16x32_bf16 v[{a}:{a+3}], {xr(ch,kk,rt)}, {bf(j)[0]}, {cc}")

def pass2():
    lg = LG()
    D = DA; NB = 12
    items = [(ch, kk, t) for ch in range(7) for kk in range(2) for t in range(4)]
    e(f"v_add_u32 v20, {A_q(0)}, v14")
    e(f"v_add_u32 v21, {A_q(0)}, v15")
    def rd(j):
        ch, kk, t = items[j]
        r = 96 + (j % NB)*4
        off = A_q(ch) - A_q(0) + kk*112 + tcol(False, 0, t)
        for hf in range(2):
            e(f"ds_read_b64_tr_b16 v[{r+2*hf}:{r+2*hf+1}], v{20+hf} offset:{off}")
            lg.issue(f"w{j}")
    for j in range(D): rd(j)
    for j, (ch, kk, t) in enumerate(items):
        if j + D < len(items): rd(j + D)
        lg.wait(f"w{j}")
        r = 96 + (j % NB)*4
        for rt in range(2):
            a = accA(0, rt, t); x = (ch*4 + kk*2 + rt)*4
            cc = "0" if (ch == 0 and kk == 0) else f"v[{a}:{a+3}]"
            e(f"v_mfma_f32_16x16x32_bf16 v[{a}:{a+3}], v[{r}:{r+3}], a[{x}:{x+3}], {cc}")

def tile_addr():
    e("v_lshlrev_b32 v3, 12, v1")
    e("v_lshl_add_u32 v3, v2, 4, v3")
    e("s_lshl_b32 s27, s26, 14")
    e("s_add_u32 s3, s59, s27")
    e(f"s_add_u32 s27, s3, 0x{TLQ:x}")
def tile_store(vm, regs):
    for (rt, hh, n) in regs:
        e(f"buffer_store_dwordx4 v[{n}:{n+3}], v3, s[40:43], s3 offen offset:{rt*2048 + hh*1024}")
    for (rt, hh, n) in regs:
        e(f"buffer_store_dwordx4 v[{n}:{n+3}], v3, s[40:43], s27 offen offset:{rt*2048 + hh*1024} sc0 sc1")

def epi_A(vm):
    c("---- A epilogue ----")
    e("v_and_b32 v5, 15, v2")
    e("v_lshrrev_b32 v6, 4, v2")
    e("v_cmp_le_u32 s[64:65], 12, v5")
    e("v_mov_b32 v7, 0x3f803f80")
    e("s_lshl_b32 s3, s48, 13")
    e(f"s_add_u32 s3, s3, {A_SCR}")
    e("v_lshlrev_b32 v3, 4, v2")
    e("v_add_u32 v4, s3, v3")
    e("s_nop 7")
    PK = 96; VV = 112; TT = 128; KP = 32
    for t in range(4):
        sq = []
        for rt in range(2):
            a = accA(1, rt, t)
            sq.append(phi_pair(PK + t*4 + rt*2, a, a+1, TT + rt*4))
            sq.append(phi_pair(PK + t*4 + rt*2 + 1, a+2, a+3, TT + rt*4 + 2))
        ilv(sq)
    for t in range(4):
        for rt in range(2):
            a = accA(2, rt, t)
            d = VV + t*4 + rt*2
            e(f"v_cvt_pk_bf16_f32 v{d}, v{a}, v{a+1}")
            e(f"v_cvt_pk_bf16_f32 v{d+1}, v{a+2}, v{a+3}")
            if t & 1:
                e(f"v_cndmask_b32 v{d}, v{d}, v7, s[64:65]")
                e(f"v_cndmask_b32 v{d+1}, v{d+1}, v7, s[64:65]")
    e("s_nop 1")
    for hh in range(2):
        for et in range(2):
            for dt in range(2):
                d = KP + (hh*4 + et*2 + dt)*4
                va = VV + (hh*2+et)*4; pk = PK + (hh*2+dt)*4
                e(f"v_mfma_f32_16x16x32_bf16 v[{d}:{d+3}], v[{va}:{va+3}], v[{pk}:{pk+3}], 0")
    e("s_nop 3")
    for i in range(8):
        if i < 2: e("s_nop 3")
        e(f"ds_write_b128 v4, v[{KP+i*4}:{KP+i*4+3}] offset:{i*1024}")
    e("s_waitcnt lgkmcnt(0)")
    e("s_barrier")
    stamp(vm, 4)
    pass2()
    stamp(vm, 7)
    vm.wait("non")
    nonce_get()
    QF = 64
    e("v_cmp_eq_u32 s[10:11], 3, v6")
    e("v_cmp_eq_u32 s[12:13], 0, v6")
    e("v_lshlrev_b32 v10, 6, v5")
    e("v_lshl_add_u32 v10, v6, 4, v10")
    e(f"v_add_u32 v10, {KVB}, v10")
    tile_addr()
    e("v_mov_b32 v11, 0xffff")
    e("s_nop 3")
    for t in range(4):
        sq = []
        for rt in range(2):
            a = accA(0, rt, t)
            d = QF + (rt*2 + (t >> 1))*4 + (t & 1)*2
            s0 = phi_pair(d, a, a+1, TT + rt*4)
            s1 = phi_pair(d+1, a+2, a+3, TT + rt*4 + 2)
            if t & 1: s0.append(f"v_cndmask_b32 v{d}, v{d}, 0, s[12:13]")
            else: s1.append(f"v_cndmask_b32 v{d+1}, v{d+1}, 0, s[10:11]")
            sq += [s0, s1]
        ilv(sq)
    e("s_barrier")
    stamp(vm, 10)
    R = 80
    for hh in range(2):
        for f in range(2):
            r = R + (hh*2+f)*4
            e(f"ds_read_b128 v[{r}:{r+3}], v10 offset:{hh*2048 + f*1024}")
    NR = 96
    for hh in range(2):
        e(f"s_waitcnt lgkmcnt({2 - 2*hh})")
        for rt in range(2):
            n = NR + (hh*2+rt)*8
            q = QF + (rt*2+hh)*4
            for f in (1, 0):
                r = R + (hh*2+f)*4
                e(f"v_mfma_f32_16x16x32_bf16 v[{n+f*4}:{n+f*4+3}], v[{r}:{r+3}], v[{q}:{q+3}], 0")
    e("s_nop 7")
    sq = []; regs = []
    for hh in range(2):
        for rt in range(2):
            n = NR + (hh*2+rt)*8
            t = TT + (hh*2+rt)*2
            o = [f"v_add_f32 v{t}, 0x{EPS:x}, v{n+7}",
                 f"v_rcp_f32 v{t}, v{t}",
                 f"v_mov_b32 v{t+1}, v{t}"]
            for q in range(3):
                o.append(f"v_pk_mul_f32 v[{n+2*q}:{n+2*q+1}], v[{n+2*q}:{n+2*q+1}], v[{t}:{t+1}]")
            o.append(f"v_mul_f32 v{n+6}, v{n+6}, v{t}")
            for q in range(3):
                o.append(f"v_cvt_pk_bf16_f32 v{n+q}, v{n+2*q}, v{n+2*q+1}")
            o.append(f"v_cvt_pk_bf16_f32 v{n+3}, v{n+6}, v{n+6}")
            o.append(f"v_and_or_b32 v{n+3}, v{n+3}, v11, s61")
            sq.append(o); regs.append((rt, hh, n))
    ilv(sq)
    tile_store(vm, regs)
    stamp(vm, 5)

def epi_B(vm):
    c("---- B epilogue ----")
    e("v_and_b32 v5, 15, v2")
    e("v_lshrrev_b32 v6, 4, v2")
    e("v_cmp_gt_u32 s[64:65], 3, v6")
    e("v_lshlrev_b32 v3, 4, v2")
    e("v_lshlrev_b32 v7, 3, v2")
    e("s_lshr_b32 s3, s48, 1")
    e("s_lshl_b32 s3, s3, 10")
    e("s_and_b32 s27, s48, 1")
    e("s_lshl_b32 s27, s27, 3")
    e("s_add_u32 s3, s3, s27")
    e(f"s_add_u32 s3, s3, {B_SCR}")
    e("v_add_u32 v4, s3, v3")
    e("s_lshl_b32 s3, s48, 9")
    e(f"s_add_u32 s3, s3, {B_SCR + 2048}")
    e("v_add_u32 v8, s3, v7")
    e("s_lshl_b32 s3, s48, 12")
    e(f"s_add_u32 s3, s3, {B_SCR}")
    e("v_add_u32 v9, s3, v3")
    e("v_add_u32 v10, s3, v7")
    e("s_nop 3")
    def KFr(blk, hh): return 64 + ((blk-1)*2 + hh)*8
    def QFr(rt, hh): return 32 + (rt*2+hh)*8
    def VB(hh, et): return 96 + (hh*2+et)*8
    def cvt4(b):
        for q in range(4): e(f"v_cvt_pk_bf16_f32 v{b+q}, v{b+2*q}, v{b+2*q+1}")
    for hh in range(2):
        cvt4(KFr(2, hh))
        e(f"ds_write_b128 v9, v[{KFr(2,hh)}:{KFr(2,hh)+3}] offset:{4096 + hh*1024}")
    for hh in range(2):
        for et in range(2):
            b = VB(hh, et)
            e(f"v_cvt_pk_bf16_f32 v{b+7}, v{b+6}, v{b+7}")
            e(f"v_cvt_pk_bf16_f32 v{b+6}, v{b+4}, v{b+5}")
            e(f"ds_write_b64 v10, v[{b+6}:{b+7}] offset:{4096 + 2048 + (hh*2+et)*512}")
    cvt4(128)
    e("ds_write_b64 v4, v[128:129]")
    e("ds_write_b64 v8, v[130:131]")
    e("s_waitcnt lgkmcnt(0)")
    e("s_barrier")
    for hh in range(2):
        e(f"ds_read_b128 a[{hh*4}:{hh*4+3}], v9 offset:{hh*1024}")
    for hh in range(2):
        for et in range(2):
            b = VB(hh, et)
            e(f"v_cvt_pk_bf16_f32 v{b+4}, v{b}, v{b+1}")
            e(f"v_cvt_pk_bf16_f32 v{b+5}, v{b+2}, v{b+3}")
            e(f"ds_read_b64 v[{b+2}:{b+3}], v10 offset:{2048 + (hh*2+et)*512}")
    for rt in range(2):
        for hh in range(2):
            b = QFr(rt, hh)
            cvt4(b)
            e(f"v_cndmask_b32 v{b+2}, 0, v{b+2}, s[64:65]")
            e(f"v_cndmask_b32 v{b+3}, 0, v{b+3}, s[64:65]")
    for hh in range(2): cvt4(KFr(1, hh))
    vm.wait("non")
    nonce_get()
    e("v_and_b32 v9, 1, v5")
    e("v_cmp_eq_u32 s[4:5], 1, v9")
    e("v_mov_b32 v10, 0xffff")
    e("v_mov_b32 v11, 0xffff0000")
    e("v_cndmask_b32 v12, v10, v11, s[4:5]")
    e("v_lshl_add_u32 v11, v6, 2, v9")
    e("v_sub_u32 v11, v11, v5")
    e("s_waitcnt lgkmcnt(0)")
    def C0(cb): return 32 + cb*8 + 4
    def C1(cb): return 64 + cb*8 + 4
    for rt in range(2):
        for hh in range(2):
            cb = rt*2+hh
            q = QFr(rt, hh)
            for ti in range(2):
                blk = rt + ti
                k = f"a[{hh*4}:{hh*4+3}]" if blk == 0 else f"v[{KFr(blk,hh)}:{KFr(blk,hh)+3}]"
                d = C0(cb) if ti == 0 else C1(cb)
                e(f"v_mfma_f32_16x16x32_bf16 v[{d}:{d+3}], {k}, v[{q}:{q+3}], 0")
    for k in range(4):
        addk = 2*k if k < 2 else 16 + 2*(k-2)
        e(f"v_add_u32 v13, {addk}, v11")
        e(f"v_cmp_le_i32 s[{6+2*k}:{7+2*k}], 2, v13")
        e(f"v_cmp_ge_i32 vcc, 16, v13")
        e(f"s_and_b64 s[{6+2*k}:{7+2*k}], s[{6+2*k}:{7+2*k}], vcc")
    e("s_or_b32 s3, s25, s48")
    e("s_cmp_eq_u32 s3, 0")
    e("s_cselect_b64 s[14:15], 0, -1")
    e("s_and_b64 s[16:17], s[6:7], s[14:15]")
    e("s_and_b64 s[18:19], s[8:9], s[14:15]")
    e("v_mov_b32 v13, 0xce6e6b28")
    e(f"s_mov_b32 s20, 0x{SC2:x}")
    tile_addr()
    e("v_cmp_eq_u32 s[68:69], 3, v6")
    def seq(rt, hh):
        cb = rt*2+hh
        lgr = [C0(cb), C0(cb)+2, C1(cb), C1(cb)+2]
        m = C1(cb)+1; m2 = C1(cb)+3
        o = []
        for k in range(4):
            o.append(f"v_cndmask_b32 v{lgr[k]}, v{lgr[k]}, v{lgr[k]+1}, s[4:5]")
        for k in range(4):
            ms = (16 + 2*k) if (rt == 0 and k < 2) else (6 + 2*k)
            o.append(f"v_cndmask_b32 v{lgr[k]}, v13, v{lgr[k]}, s[{ms}:{ms+1}]")
        o.append(f"v_max3_f32 v{m}, v{lgr[0]}, v{lgr[1]}, v{lgr[2]}")
        o.append(f"v_max_f32 v{m}, v{m}, v{lgr[3]}")
        o.append(f"v_mov_b32 v{m2}, v{m}")
        o.append(f"v_permlane16_swap_b32 v{m}, v{m2}")
        o.append(f"v_max_f32 v{m}, v{m}, v{m2}")
        o.append(f"v_mov_b32 v{m2}, v{m}")
        o.append(f"v_permlane32_swap_b32 v{m}, v{m2}")
        o.append(f"v_max_f32 v{m}, v{m}, v{m2}")
        o.append(f"v_mul_f32 v{m}, 0x{SC2 ^ 0x80000000:x}, v{m}")
        for k in range(4):
            o.append(f"v_fma_f32 v{lgr[k]}, v{lgr[k]}, s20, v{m}")
        for k in range(4):
            o.append(f"v_exp_f32 v{lgr[k]}, v{lgr[k]}")
        o.append(f"v_add_f32 v{m}, v{lgr[0]}, v{lgr[1]}")
        o.append(f"v_add_f32 v{m2}, v{lgr[2]}, v{lgr[3]}")
        o.append(f"v_add_f32 v{m}, v{m}, v{m2}")
        o.append(f"v_mov_b32 v{m2}, v{m}")
        o.append(f"v_permlane16_swap_b32 v{m}, v{m2}")
        o.append(f"v_add_f32 v{m}, v{m}, v{m2}")
        o.append(f"v_mov_b32 v{m2}, v{m}")
        o.append(f"v_permlane32_swap_b32 v{m}, v{m2}")
        o.append(f"v_add_f32 v{m}, v{m}, v{m2}")
        o.append(f"v_rcp_f32 v{m}, v{m}")
        for k in range(4):
            o.append(f"v_mul_f32 v{lgr[k]}, v{lgr[k]}, v{m}")
            o.append(f"v_cvt_pk_bf16_f32 v{C0(cb)+k}, v{lgr[k]}, v{lgr[k]}")
            o.append(f"v_and_b32 v{C0(cb)+k}, v{C0(cb)+k}, v12")
        return o
    ilv([seq(rt, hh) for rt in range(2) for hh in range(2)])
    e("s_nop 1")
    for rt in range(2):
        for hh in range(2):
            cb = rt*2+hh
            for et in (1, 0):
                o = QFr(rt, hh) if et == 0 else C1(cb)
                v = VB(hh, et) + 2 + 2*rt
                e(f"v_mfma_f32_16x16x32_bf16 v[{o}:{o+3}], v[{v}:{v+3}], v[{C0(cb)}:{C0(cb)+3}], 0")
    e("s_nop 7")
    sq = []; regs = []
    for rt in range(2):
        for hh in range(2):
            cb = rt*2+hh
            o0 = QFr(rt, hh); o1 = C1(cb); t = C0(cb)
            o = [f"v_mov_b32 v{t}, v{o1+3}",
                 f"v_cvt_pk_bf16_f32 v{o0}, v{o0}, v{o0+1}",
                 f"v_permlane32_swap_b32 v{t+1}, v{t}",
                 f"v_permlane16_swap_b32 v{t+2}, v{o1+3}",
                 f"v_cvt_pk_bf16_f32 v{o0+1}, v{o0+2}, v{o0+3}",
                 f"v_permlane16_swap_b32 v{t+3}, v{t+1}",
                 f"v_cndmask_b32 v{o1+2}, v{o1+2}, v{t+2}, s[68:69]",
                 f"v_cndmask_b32 v{o1+1}, v{o1+1}, v{t+1}, s[68:69]",
                 f"v_cndmask_b32 v{o1}, v{o1}, v{t+3}, s[68:69]",
                 f"v_cvt_pk_bf16_f32 v{o0+3}, v{o1+2}, v{o1+2}",
                 f"v_cvt_pk_bf16_f32 v{o0+2}, v{o1}, v{o1+1}",
                 f"v_and_or_b32 v{o0+3}, v{o0+3}, v10, s61"]
            sq.append(o); regs.append((rt, hh, o0))
    ilv(sq)
    tile_store(vm, regs)
    stamp(vm, 5)

def p2(isB):
    lab(f"P2_{'B' if isB else 'A'}")
    c("---- P2 (8 waves, 16 rows each) ----")
    wo = B_WO if isB else A_WO
    flg = FLG_B if isB else FLG_A
    e("v_lshrrev_b32 v3, 4, v2")
    e("v_and_b32 v4, 15, v2")
    e("v_lshl_add_u32 v5, v1, 4, v4")
    e("v_lshlrev_b32 v6, 11, v1")
    e("v_lshl_add_u32 v6, v2, 4, v6")
    e("s_lshl_b32 s3, s25, 7")
    e("v_add_u32 v5, s3, v5")
    e("v_mul_u32_u24 v8, 1792, v5")
    e("v_and_b32 v9, 1, v3")
    e("v_lshl_add_u32 v8, v9, 5, v8")
    e("v_lshrrev_b32 v9, 1, v3")
    e("v_lshl_add_u32 v8, v9, 4, v8")
    e("s_mul_i32 s3, s24, 896")
    e("s_add_u32 s3, s3, s56")
    e("v_add_u32 v8, s3, v8")
    e("v_bfe_u32 v10, v2, 2, 2")
    e("v_mul_u32_u24 v11, 14, v9")
    e("v_and_b32 v12, 1, v3")
    e("v_lshl_add_u32 v13, v12, 2, v11")
    e("v_add_u32 v13, v13, v10")
    e("v_mul_u32_u24 v12, 3, v12")
    e("v_min_u32 v10, 2, v10")
    e("v_add3_u32 v11, v11, v12, v10")
    e("v_add_u32 v11, 8, v11")
    e("v_and_b32 v12, 3, v2")
    e("v_lshlrev_b32 v12, 3, v12")
    e(f"v_add_u32 v12, {wo}, v12")
    e(f"v_mul_u32_u24 v10, {RS}, v13")
    e("v_add_u32 v10, v10, v12")
    e(f"v_mul_u32_u24 v11, {RS}, v11")
    e("v_add_u32 v11, v11, v12")
    e("v_cmp_ne_u32 s[64:65], 3, v3")
    e(f"v_mov_b32 v14, {flg}")
    e("s_barrier")
    e("ds_read_b32 v15, v14")
    stamp(None, 6)
    e("s_waitcnt lgkmcnt(0)")
    e("v_readfirstlane_b32 s79, v15")
    e(f"s_add_u32 s57, s59, 0x{TLQ:x}")
    e("s_nop 2")
    e("s_bitcmp1_b32 s79, 0")
    e("s_cselect_b32 s62, s59, s57")
    if STAMP:
        e("v_mov_b32 v28, s79")
        e("s_lshl_b32 s74, s2, 8")
        e(f"s_add_u32 s74, s74, {STB + 20*4}")
        e("v_mov_b32 v29, 0")
        e("buffer_store_dword v28, v29, s[40:43], s74 offen")
    OFR = 64
    def body(sc, base):
        e(f"s_mov_b32 s58, {base}")
        for h in range(16):
            r = OFR + h*4
            e(f"buffer_load_dwordx4 v[{r}:{r+3}], v6, s[40:43], s58 offen offset:{(h&1)*1024}{sc}")
            if h & 1 and h < 15: e("s_add_u32 s58, s58, 16384")
        e("v_mov_b32 v13, 0")
        def rdh(h):
            bb = (h % 2)*16
            ho = (h & 7)*7168 + (h >> 3)*112
            for nt in range(4):
                e(f"ds_read_b64_tr_b16 a[{bb+nt*4}:{bb+nt*4+1}], v10 offset:{ho + nt*32}")
                e(f"ds_read_b64_tr_b16 a[{bb+nt*4+2}:{bb+nt*4+3}], v11 offset:{ho + nt*32}")
        rdh(0)
        for h in range(16):
            if h < 15: rdh(h+1)
            e(f"s_waitcnt vmcnt({15-h}) lgkmcnt({8 if h < 15 else 0})")
            r = OFR + h*4
            e(f"v_xor_b32 v{r+3}, s61, v{r+3}")
            e(f"v_max_u32 v13, v13, v{r+3}")
            bb = (h % 2)*16
            for nt in range(4):
                a = 32 + nt*4
                cc = "0" if h == 0 else f"v[{a}:{a+3}]"
                e(f"v_mfma_f32_16x16x32_bf16 v[{a}:{a+3}], a[{bb+nt*4}:{bb+nt*4+3}], v[{r}:{r+3}], {cc}")
        e("v_cmp_gt_u32 vcc, 0x10000, v13")
        e("s_cmp_eq_u64 vcc, -1")
    ok = uid("P2OK"); rt_ = uid("P2RT")
    body("", "s62")
    if STAMP:
        e("s_cselect_b32 s95, 1, 0")
        stamp(None, 11)
        e("s_cmp_eq_u32 s95, 1")
    e(f"s_cbranch_scc1 {ok}")
    e("s_mov_b32 s78, 0")
    lab(rt_)
    stamp(None, 8)
    e("s_waitcnt vmcnt(0)")
    body(" sc0 sc1", "s57")
    e(f"s_cbranch_scc1 {ok}")
    e("s_add_u32 s78, s78, 1")
    e("s_cmp_gt_u32 s78, 0x4000")
    e(f"s_cbranch_scc0 {rt_}")
    lab(ok)
    sk = uid("NS")
    e("s_or_b32 s3, s26, s48")
    e("s_cmp_eq_u32 s3, 0")
    e(f"s_cbranch_scc0 {sk}")
    e("v_mov_b32 v12, 0")
    e("v_mov_b32 v13, s93")
    e("buffer_store_dword v13, v12, s[40:43], s60 offen sc0 sc1")
    lab(sk)
    e("s_nop 7")
    for nt in range(4):
        a = 32 + nt*4
        d = 48 + (nt >> 1)*4 + (nt & 1)*2
        e(f"v_cvt_pk_bf16_f32 v{d}, v{a}, v{a+1}")
        e(f"v_cvt_pk_bf16_f32 v{d+1}, v{a+2}, v{a+3}")
    e("s_nop 1")
    for pr in range(2):
        d = 48 + pr*4
        e(f"v_permlane16_swap_b32 v{d}, v{d+2}")
        e(f"v_permlane16_swap_b32 v{d+1}, v{d+3}")
    e("s_nop 1")
    e("buffer_store_dwordx4 v[48:51], v8, s[88:91], 0 offen")
    e("s_mov_b64 exec, s[64:65]")
    e("buffer_store_dwordx4 v[52:55], v8, s[88:91], 0 offen offset:64")
    e("s_mov_b64 exec, -1")
    stamp(None, 9)
    e("s_endpgm")

def compute(isB):
    lab("C_B" if isB else "C_A")
    vm = VM()
    comp_setup(isB)
    srds(isB)
    stamp(vm, 0)
    nonce_issue(vm)
    if PRE:
        e("s_mul_i32 s3, s25, 229376")
        e("s_mul_i32 s27, s24, 896")
        e("s_add_u32 s3, s3, s27")
        e("buffer_load_dword v30, v3, s[88:91], s3 offen"); vm.issue("pre")
        e("buffer_load_dword v30, v3, s[36:39], s56 offen"); vm.issue("pre")
        e("buffer_load_dword v30, v3, s[40:43], s59 offen"); vm.issue("pre")
        e(f"s_add_u32 s3, s59, 0x{TLQ:x}")
        e("buffer_load_dword v30, v3, s[40:43], s3 offen"); vm.issue("pre")
    gemm(vm, isB)
    stamp(vm, 3)
    if isB: epi_B(vm)
    else: epi_A(vm)
    p2(isB)

def kernel():
    lab(f"{NAME}_kernel")
    prologue()
    for lw in range(4): loader(False, lw)
    for lw in range(4): loader(True, lw)
    compute(False)
    compute(True)
    lab("K_END")
    e("s_endpgm")

HDR = open("cdna_kernels/" + NAME + ".s.ref").read().split("; @launch")[0]
kernel()
out = HDR
out += f"; @launch grid=(256,1,1) block=(512,1,1) lds={LDS_TOTAL}\n"
out += '.amdgcn_target "amdgcn-amd-amdhsa--gfx950"\n.text\n'
out += f".globl {NAME}_kernel\n.p2align 8\n.type {NAME}_kernel,@function\n"
out += "\n".join(L) + "\n"
out += f""".section .rodata,"a"
.p2align 6
.amdhsa_kernel {NAME}_kernel
  .amdhsa_next_free_vgpr 256
  .amdhsa_next_free_sgpr 96
  .amdhsa_accum_offset 144
  .amdhsa_group_segment_fixed_size 0
  .amdhsa_kernarg_size 72
  .amdhsa_user_sgpr_count 2
  .amdhsa_user_sgpr_kernarg_segment_ptr 1
  .amdhsa_system_sgpr_workgroup_id_x 1
.end_amdhsa_kernel
"""
path = sys.argv[1] if len(sys.argv) > 1 else f"cdna_kernels/{NAME}.s"
open(path, "w").write(out)
```

```python
import sys, os, struct
NAME = "concat_heads__linear_attn_block__sliding_local_dilated__prompt"
TLP = 0
TLQ = 0x400000
ACC = 0x800000
NON = 0x810000
WS_END = 0x820000
STAMP = os.environ.get("STAMP") in ("1", "2")
RT = os.environ.get("STAMP") == "2"
STB = 0x900000
if STAMP: WS_END = 0xa00000
LOG2E = 0x3FB8AA3B
EPS = 0x358637BD
for s in range(64*21): assert (s * 4682) >> 16 == s // 14
for s in range(32): assert (s * 37) >> 8 == s // 7
RS = 224
KVS = 14336; QS = 7168; XS = 16384
LDS_TOTAL = 163840
ROT = os.environ.get("ROT", "1") == "1"
PPOL = os.environ.get("PPOL", "sc0 sc1")
W0 = os.environ.get("W0") == "1"
PRE = os.environ.get("PRE", "1") == "1"
DA = int(os.environ.get("DA", "4"))
DB = int(os.environ.get("DB", "5"))
def f2u(x): return struct.unpack('<I', struct.pack('<f', x))[0]
SC2 = f2u(28 ** -0.5 * 1.4426950408889634)
CNT_Z = 40 * 4
def A_kv(i): return (i % 5) * 30720
def A_x(i): return (i % 5) * 30720 + KVS
def A_q(i): return (61440 + i*QS) if i < 4 else (92160 + (i-4)*QS)
A_SCR = 122880; KVB = 159744; A_WO = 0
B_WSL = [142336, 0, 21504, 120832]
def B_kv(i): return B_WSL[i % 4]
def B_q(i): return B_WSL[i % 4] + KVS
def B_x(i): return 43008 + (i % 3) * 18432
B_SCR = 61440; B_WO = 98304
FLG_A = 155648
FLG_B = 0
FLG_B = 83968

L = []
def e(s): L.append("    " + s)
def lab(s): L.append(s + ":")
def c(s): L.append("    ; " + s)
_uid = [0]
def uid(p):
    _uid[0] += 1
    return f"{p}_{_uid[0]}"

class CNT:
    def __init__(self, kind, mx): self.ops = []; self.kind = kind; self.mx = mx
    def issue(self, tag): self.ops.append(tag)
    def n(self, tag):
        idx = max(i for i, t in enumerate(self.ops) if t == tag)
        return min(len(self.ops) - 1 - idx, self.mx)
    def wait(self, tag): e(f"s_waitcnt {self.kind}({self.n(tag)})")
def VM(): return CNT("vmcnt", 63)
def LG(): return CNT("lgkmcnt", 15)

def stamp(vm, i):
    if not STAMP: return
    e("s_memrealtime s[72:73]" if RT else "s_memtime s[72:73]")
    e("s_waitcnt lgkmcnt(0)")
    e("v_mov_b32 v28, s72")
    e("s_lshl_b32 s74, s2, 8")
    e(f"s_add_u32 s74, s74, {STB + i*4}")
    e("v_mov_b32 v29, 0")
    e("v_and_b32 v30, 0xff, v0")
    e("v_cmp_eq_u32 vcc, 0, v30")
    e("s_and_saveexec_b64 s[76:77], vcc")
    e("buffer_store_dword v28, v29, s[40:43], s74 offen")
    e("s_mov_b64 exec, s[76:77]")
    if vm is not None: vm.issue("stamp")

def phi_pair(dst, a, b, t):
    assert b == a + 1 and a % 2 == 0 and t % 2 == 0
    return [f"v_pk_mul_f32 v[{t}:{t+1}], v[{a}:{b}], s[70:71]",
            f"v_exp_f32 v{t}, v{t} clamp",
            f"v_exp_f32 v{t+1}, v{t+1} clamp",
            f"v_max_f32 v{a}, 0, v{a}",
            f"v_max_f32 v{b}, 0, v{b}",
            f"v_pk_add_f32 v[{t}:{t+1}], v[{t}:{t+1}], v[{a}:{b}]",
            f"v_cvt_pk_bf16_f32 v{dst}, v{t}, v{t+1}"]
def ilv(seqs):
    for i in range(max(len(q) for q in seqs)):
        for q in seqs:
            if i < len(q): e(q[i])

def srd(base, lo, hi, nbytes):
    e(f"s_mov_b32 s{base}, s{lo}")
    e(f"s_and_b32 s{base+1}, s{hi}, 0xffff")
    e(f"s_mov_b32 s{base+2}, 0x{nbytes:x}")
    e(f"s_mov_b32 s{base+3}, 0x20000")

def srds(isB):
    e("s_waitcnt lgkmcnt(0)")
    o = 6 if isB else 0
    srd(32, 6+o, 7+o, 448*2688)
    srd(28, 4+o, 5+o, 2048*896)
    srd(40, 20, 21, WS_END)
    srd(36, 8+o, 9+o, 448*896)
    srd(44, 18, 19, 256)
    srd(88, 16, 17, 2048*1792)

def prologue():
    e("s_cmp_ge_u32 s2, 256")
    e("s_cbranch_scc1 K_END")
    e("s_load_dwordx4 s[4:7], s[0:1], 0")
    e("s_load_dwordx4 s[8:11], s[0:1], 16")
    e("s_load_dwordx4 s[12:15], s[0:1], 32")
    e("s_load_dwordx4 s[16:19], s[0:1], 48")
    e("s_load_dwordx2 s[20:21], s[0:1], 64")
    e("v_lshrrev_b32 v1, 6, v0")
    e("v_and_b32 v2, 63, v0")
    e("v_readfirstlane_b32 s48, v1")
    e("s_and_b32 s22, s2, 7")
    e("s_lshr_b32 s23, s2, 3")
    e("s_lshr_b32 s24, s22, 2")
    e("s_and_b32 s27, s22, 3")
    e("s_lshl_b32 s25, s27, 2")
    e("s_and_b32 s3, s23, 3")
    e("s_add_u32 s25, s25, s3")
    e("s_lshr_b32 s26, s23, 2")
    e("s_mul_i32 s56, s26, 112")
    e(f"s_mov_b32 s70, 0x{LOG2E:x}")
    e(f"s_mov_b32 s71, 0x{LOG2E:x}")
    e("s_lshl_b32 s60, s24, 4")
    e("s_add_u32 s60, s60, s25")
    e("s_lshl_b32 s59, s60, 17")
    e("s_lshl_b32 s60, s60, 7")
    e(f"s_add_u32 s60, s60, 0x{NON:x}")
    if ROT:
        e("s_mul_i32 s3, s23, 37")
        e("s_lshr_b32 s3, s3, 8")
        e("s_mul_i32 s3, s3, 7")
        e("s_sub_u32 s81, s23, s3")
    else:
        e("s_mov_b32 s81, 0")
    e("s_mov_b32 s82, s81")
    e("s_lshl_b32 s3, s24, 3")
    e("s_add_u32 s3, s3, s48")
    e("s_cmp_lt_u32 s3, 4")
    e("s_cbranch_scc1 C_A")
    for lw in range(4):
        e(f"s_cmp_eq_u32 s3, {4+lw}")
        e(f"s_cbranch_scc1 L_A{lw}")
    e("s_cmp_lt_u32 s3, 12")
    e("s_cbranch_scc1 C_B")
    for lw in range(3):
        e(f"s_cmp_eq_u32 s3, {12+lw}")
        e(f"s_cbranch_scc1 L_B{lw}")
    e("s_branch L_B3")

def nonce_issue(vm):
    e("v_mov_b32 v3, 0")
    e("buffer_load_dword v31, v3, s[40:43], s60 offen sc0 sc1")
    vm.issue("non")
def nonce_get():
    e("v_readfirstlane_b32 s93, v31")
    e("s_nop 3")
    e("s_add_u32 s93, s93, 1")
    e("s_lshl_b32 s61, s93, 16")

def div14(n):
    e(f"v_add_u32 v3, {64*n}, v2")
    e("v_mul_u32_u24 v4, 4682, v3")
    e("v_lshrrev_b32 v4, 16, v4")
    e("v_mul_u32_u24 v5, 14, v4")
    e("v_sub_u32 v3, v3, v5")
    e("v_cmp_lt_u32 vcc, 6, v3")
    e("v_cndmask_b32 v5, 0, 1, vcc")
    e("v_mul_u32_u24 v6, 7, v5")
    e("v_sub_u32 v3, v3, v6")

def w_voff(dst, n, isq):
    div14(n)
    e("v_lshrrev_b32 v6, 1, v4")
    e("v_and_b32 v6, 4, v6")
    e("v_xor_b32 v4, v4, v6")
    e("v_mul_u32_u24 v4, 2688, v4")
    if isq:
        e("v_mul_u32_u24 v5, s58, v5")
        e("v_lshl_add_u32 v3, v3, 4, v4")
        e(f"v_add_u32 v{dst}, v3, v5")
    else:
        e("v_mul_u32_u24 v5, 896, v5")
        e("v_lshl_add_u32 v3, v3, 4, v4")
        e(f"v_add3_u32 v{dst}, v3, v5, s57")

def step_hdr(sr):
    e(f"s_mul_i32 s83, s{sr}, 172032")
    e("s_add_u32 s83, s83, s56")
    e(f"s_lshl_b32 s85, s{sr}, 7")
    e("s_add_u32 s86, s85, 14336")
    e(f"s_add_u32 s{sr}, s{sr}, 1")
    e(f"s_cmp_eq_u32 s{sr}, 7")
    e(f"s_cselect_b32 s{sr}, 0, s{sr}")

FILL = []
FN = int(os.environ.get("FN", "12"))
def capture(fn, *a):
    global L
    sv = L; L = []
    fn(*a)
    r = L; L = sv
    FILL.extend(r)
def flush(n=10**9):
    while FILL and n > 0:
        L.append(FILL.pop(0)); n -= 1
def dma(vm, tag, voff, srd_, soff, lds):
    e(f"s_mov_b32 m0, {lds}")
    e("s_nop 0")
    e(f"buffer_load_dwordx4 v{voff}, s[{srd_}:{srd_+3}], {soff} offen lds")
    vm.issue(tag)
    flush(FN)

def wo_voffs(isB):
    for t in range(7):
        div14(t)
        e("v_min_u32 v4, 27, v4")
        e("v_cmp_lt_u32 vcc, 13, v4")
        e("v_cndmask_b32 v6, 0, 1, vcc")
        e("v_mul_u32_u24 v24, 14, v6")
        e("v_sub_u32 v4, v4, v24")
        e("v_lshrrev_b32 v24, 2, v4")
        e("v_and_b32 v25, 3, v4")
        e("v_cmp_lt_u32 vcc, 10, v4")
        e("v_cndmask_b32 v26, 0, 1, vcc")
        e("v_mul_u32_u24 v27, 3, v26")
        e("v_sub_u32 v27, v4, v27")
        e("v_subrev_u32 v27, 4, v27")
        e("v_cmp_lt_u32 vcc, 7, v4")
        e("v_cndmask_b32 v24, v24, v26, vcc")
        e("v_cndmask_b32 v25, v25, v27, vcc")
        e("v_lshl_add_u32 v24, v6, 1, v24")
        if not isB:
            e("v_mul_u32_u24 v24, 7, v24")
            e("v_add_u32 v4, v24, v25")
        else:
            e("v_lshl_add_u32 v4, v24, 2, v25")
            e("v_add_u32 v26, 12, v4")
            e("v_lshlrev_b32 v27, 2, v25")
            e("v_add_u32 v27, 3, v27")
            e("v_cmp_eq_u32 s[4:5], 3, v24")
            e("v_cndmask_b32 v26, v26, v27, s[4:5]")
            e("v_cndmask_b32 v4, v4, v26, vcc")
        e("v_mul_u32_u24 v5, 224, v5")
        e("v_add_u32 v4, v4, v5")
        e("v_mul_u32_u24 v4, 896, v4")
        e("v_lshl_add_u32 v3, v3, 4, v4")
        e(f"v_add_u32 v{40+t}, s56, v3")

def wo_block(vm, blk, base):
    e(f"s_mov_b32 s86, {blk*28*896}")
    for t in range(7):
        if t == 6: e("s_mov_b64 exec, 0xff")
        dma(vm, "wo", 40+t, 36, "s86", base + blk*7168 + t*1024)
    e("s_mov_b64 exec, -1")

def prepoll(lw, flg):
    lp = uid("PL"); dn = uid("PD"); ok = uid("PO")
    e("v_bfe_u32 v12, v2, 3, 2")
    e("v_lshlrev_b32 v12, 12, v12")
    e("s_lshl_b32 s3, s26, 7")
    e("s_add_u32 s3, s3, 3072")
    e("v_add_u32 v12, s3, v12")
    e("v_and_b32 v13, 7, v2")
    e("v_lshl_add_u32 v12, v13, 14, v12")
    e(f"s_add_u32 s58, s59, 0x{TLQ if lw else TLP:x}")
    e(f"v_mov_b32 v14, {flg}")
    e("s_mov_b32 s78, 0")
    lab(lp)
    e("buffer_load_dword v16, v12, s[40:43], s58 offen offset:12 " + ("sc0 sc1" if lw else PPOL))
    e("ds_read_b32 v15, v14")
    e("s_waitcnt vmcnt(0) lgkmcnt(0)")
    e("v_xor_b32 v13, s61, v16")
    e("v_cmp_gt_u32 vcc, 0x10000, v13")
    e("s_cmp_eq_u64 vcc, -1")
    e(f"s_cbranch_scc1 {ok}")
    e("v_readfirstlane_b32 s79, v15")
    e("s_add_u32 s78, s78, 1")
    e("s_nop 2")
    e("s_cmp_lg_u32 s79, 0")
    e(f"s_cbranch_scc1 {dn}")
    if lw: e("s_sleep 2")
    e("s_cmp_gt_u32 s78, 0x40000")
    e(f"s_cbranch_scc0 {lp}")
    e(f"s_branch {dn}")
    lab(ok)
    e(f"v_mov_b32 v15, {1 + lw}")
    e("ds_or_b32 v14, v15")
    e("s_waitcnt lgkmcnt(0)")
    lab(dn)

def loader(isB, lw):
    lab(f"L_{'B' if isB else 'A'}{lw}")
    vm = VM()
    SO = 32
    e("s_movk_i32 s57, 896")
    e("s_mov_b32 s58, 86016")
    e("v_lshrrev_b32 v3, 3, v2")
    e("v_lshrrev_b32 v4, 4, v2")
    e("v_and_b32 v5, 7, v2")
    e("v_xor_b32 v5, v5, v4")
    e("s_lshl_b32 s3, s25, 7")
    e(f"s_add_u32 s3, s3, {32*lw}")
    e("v_add_u32 v6, s3, v3")
    e("v_mul_u32_u24 v6, 896, v6")
    e("v_lshl_add_u32 v16, v5, 4, v6")
    e("v_xor_b32 v17, 64, v16")
    e("v_add_u32 v17, 7168, v17")
    kvn = [n for n in range(lw, 14, 4)]
    if isB:
        wn = [n for n in range(lw, 21, 4)]
        kvn = [n for n in wn if n < 14]; qn = [n-14 for n in wn if n >= 14]
    else:
        qn = [n for n in range(lw, 7, 4)]
    for j, n in enumerate(kvn): w_voff(8+j, n, False)
    if isB:
        for j, n in enumerate(qn): w_voff(12+j, n, True)
        if lw in (1, 2):
            u = lw - 1
            e("v_lshrrev_b32 v3, 3, v2")
            e("v_lshrrev_b32 v4, 4, v2")
            e("v_and_b32 v5, 7, v2")
            e("v_xor_b32 v5, v5, v4")
            if u: e("v_xor_b32 v5, 4, v5")
            e("s_lshl_b32 s3, s25, 7")
            e("s_sub_u32 s3, s3, 16")
            e("s_max_i32 s3, s3, 0")
            e(f"s_add_u32 s3, s3, {8*u}")
            e("v_add_u32 v6, s3, v3")
            e("v_mul_u32_u24 v6, 896, v6")
            e("v_lshl_add_u32 v18, v5, 4, v6")
    srds(isB)
    stamp(vm, SO + 0)
    def isW(i):
        for j, n in enumerate(kvn): dma(vm, f"c{i}", 8+j, 32, "s83", (B_kv(i) if isB else A_kv(i)) + n*1024)
        if isB:
            for j, n in enumerate(qn): dma(vm, f"c{i}", 12+j, 32, "s83", B_q(i) + n*1024)
    def isX(i):
        xb = B_x(i) if isB else A_x(i)
        for u in range(4):
            dma(vm, f"c{i}", 16 + (u & 1), 28, "s85" if u < 2 else "s86", xb + (2048 if isB else 0) + (4*lw+u)*1024)
        if isB and lw in (1, 2):
            dma(vm, f"c{i}", 18, 28, "s85", xb + (lw-1)*1024)
    flg = FLG_B if isB else FLG_A
    if not isB:
        step_hdr(81); isX(0); isW(0)
        nonce_issue(vm)
        if W0: e("s_waitcnt vmcnt(0)")
        stamp(vm, 36)
        for r in range(4): e(f"v_mov_b32 v{4+r}, 0")
        zs = uid("ZS")
        e("s_cmp_eq_u32 s25, 0")
        e(f"s_cbranch_scc0 {zs}")
        e("s_lshl_b32 s3, s26, 13")
        e(f"s_add_u32 s3, s3, 0x{ACC + lw*2048:x}")
        e("v_lshlrev_b32 v3, 5, v2")
        e("buffer_store_dwordx4 v[4:7], v3, s[40:43], s3 offen sc0 sc1")
        e("buffer_store_dwordx4 v[4:7], v3, s[40:43], s3 offen offset:16 sc0 sc1")
        lab(zs)
        step_hdr(81); isX(1); isW(1)
        def isQ(i):
            step_hdr(82)
            for j, n in enumerate(qn): dma(vm, "q", 12+j, 32, "s83", A_q(i) + n*1024)
        for i in range(7):
            if i == 0: stamp(vm, 37)
            vm.wait(f"c{i}")
            if i == 0: stamp(vm, 38)
            e("s_barrier")
            if i == 0:
                for j, n in enumerate(qn): capture(w_voff, 12+j, n, True)
                capture(wo_voffs, False)
            if i == 3:
                nonce_get()
                if lw == 0:
                    zs = uid("ZF")
                    e("s_cmp_eq_u32 s25, 0")
                    e(f"s_cbranch_scc0 {zs}")
                    e("s_lshl_b32 s3, s26, 2")
                    e(f"v_mov_b32 v22, {CNT_Z}")
                    e("v_mov_b32 v23, 1")
                    e("s_mov_b64 exec, 1")
                    e("buffer_store_dword v23, v22, s[44:47], s3 offen sc0 sc1")
                    e("s_mov_b64 exec, -1")
                    lab(zs)
            if i <= 4: step_hdr(81); isX(i+2); isW(i+2)
            if i == 4: flush()
            if i == 5:
                for k in range(4): isQ(k)
            if i == 6:
                for k in range(4, 7): isQ(k)
        zl = uid("ZL"); zd = uid("ZD")
        e("s_mov_b32 s78, 0")
        e(f"v_mov_b32 v3, {CNT_Z}")
        e("s_lshl_b32 s3, s26, 2")
        lab(zl)
        e("buffer_load_dword v19, v3, s[44:47], s3 offen sc0 sc1")
        e("s_waitcnt vmcnt(0)")
        e("v_readfirstlane_b32 s79, v19")
        e("s_add_u32 s78, s78, 1")
        e("s_nop 2")
        e("s_cmp_eq_u32 s79, 1")
        e(f"s_cbranch_scc1 {zd}")
        e("s_sleep 1")
        e("s_cmp_gt_u32 s78, 0x40000")
        e(f"s_cbranch_scc0 {zl}")
        lab(zd)
        hh = lw >> 1; et = lw & 1
        e("v_and_b32 v5, 15, v2")
        e("v_lshrrev_b32 v6, 4, v2")
        e("v_lshlrev_b32 v3, 4, v2")
        e(f"v_add_u32 v4, {A_SCR + lw*2048}, v3")
        e("s_lshl_b32 s3, s26, 13")
        e(f"s_add_u32 s57, s3, 0x{ACC + lw*2048:x}")
        e("v_lshlrev_b32 v8, 9, v6")
        e("v_lshl_add_u32 v8, v5, 2, v8")
        e("v_cmp_gt_u32 s[66:67], 3, v6")
        e("v_cmp_le_u32 s[64:65], 14, v5")
        e("v_cmp_gt_u32 s[68:69], 2, v5")
        e("v_lshlrev_b32 v9, 4, v2")
        e("v_and_b32 v10, 7, v2")
        e("v_lshrrev_b32 v11, 3, v2")
        e("v_cmp_eq_u32 s[4:5], 3, v10")
        e("v_cmp_eq_u32 s[6:7], 4, v10")
        e("s_or_b64 s[6:7], s[6:7], s[4:5]")
        if et:
            e("v_cmp_gt_u32 s[8:9], 5, v11")
            e("s_and_b64 s[10:11], s[8:9], s[6:7]")
            e("v_cmp_eq_u32 s[12:13], 4, v11")
        else:
            e("s_mov_b64 s[10:11], s[6:7]")
        e("v_and_b32 v12, 3, v10")
        e("v_lshlrev_b32 v12, 4, v12")
        e("v_lshrrev_b32 v10, 2, v10")
        e("v_lshl_add_u32 v12, v10, 3, v12")
        e(f"v_add_u32 v12, {KVB + hh*2048}, v12")
        for j in range(2):
            e(f"v_add_u32 v13, {16*et + 8*j}, v11")
            e("v_mul_u32_u24 v14, 37, v13")
            e("v_lshrrev_b32 v14, 8, v14")
            e("v_mul_u32_u24 v15, 7, v14")
            e("v_sub_u32 v15, v13, v15")
            e("v_lshrrev_b32 v16, 2, v15")
            e("v_and_b32 v15, 3, v15")
            e("v_lshl_add_u32 v15, v14, 2, v15")
            e("v_lshl_add_u32 v15, v16, 4, v15")
            if et and j:
                e("v_cndmask_b32 v15, v15, 19, s[12:13]")
            e(f"v_lshl_add_u32 v{20+j}, v15, 6, v12")
        vm.wait("q")
        e("s_barrier")
        stamp(vm, SO + 1)
        RD = 48
        for dt in range(2):
            for w in range(2):
                r = RD + dt*16 + w*4
                e(f"ds_read_b128 v[{r}:{r+3}], v4 offset:{w*8192 + dt*1024}")
        for dt in range(2):
            e(f"s_waitcnt lgkmcnt({2-2*dt})")
            b = RD + dt*16
            for r in range(4):
                e(f"v_add_f32 v{b+r}, v{b+r}, v{b+4+r}")
            for r in range(4):
                e(f"v_cndmask_b32 v{b+r}, v{b+r}, 1.0, s[{64+4*dt}:{65+4*dt}]")
        for dt in range(2):
            e(f"buffer_atomic_add_f32 v{RD+dt*16}, v8, s[40:43], s57 offen offset:{dt*64} sc1")
        if et: e("s_mov_b64 exec, s[66:67]")
        for r in range(1, 4):
            for dt in range(2):
                e(f"buffer_atomic_add_f32 v{RD+dt*16+r}, v8, s[40:43], s57 offen offset:{r*128 + dt*64} sc1")
        if et: e("s_mov_b64 exec, -1")
        stamp(vm, SO + 2)
        wo_block(vm, lw, A_WO)
        wo_block(vm, lw + 4, A_WO)
        PR = 80
        lp = uid("KVL"); dn = uid("KVD")
        e("s_mov_b32 s78, 0")
        lab(lp)
        for j in range(2):
            e(f"buffer_load_dwordx4 v[{PR+j*4}:{PR+j*4+3}], v9, s[40:43], s57 offen offset:{j*1024} sc0 sc1")
        e("s_waitcnt vmcnt(0)")
        e(f"v_cndmask_b32 v13, v{PR}, v{PR+2}, s[4:5]")
        e("v_cmp_eq_f32 vcc, 0x41800000, v13")
        e("s_and_b64 s[14:15], vcc, s[6:7]")
        e(f"v_cndmask_b32 v13, v{PR+4}, v{PR+6}, s[4:5]")
        e("v_cmp_eq_f32 vcc, 0x41800000, v13")
        e("s_and_b64 s[16:17], vcc, s[10:11]")
        e("s_xor_b64 s[14:15], s[14:15], s[6:7]")
        e("s_xor_b64 s[16:17], s[16:17], s[10:11]")
        e("s_or_b64 s[14:15], s[14:15], s[16:17]")
        e(f"s_cbranch_scc0 {dn}")
        e("s_add_u32 s78, s78, 1")
        e("s_cmp_gt_u32 s78, 0x40000")
        e(f"s_cbranch_scc0 {lp}")
        lab(dn)
        for j in range(2):
            r = PR + j*4
            e(f"v_cvt_pk_bf16_f32 v{r}, v{r}, v{r+1}")
            e(f"v_cvt_pk_bf16_f32 v{r+1}, v{r+2}, v{r+3}")
            if et and j: e("s_mov_b64 exec, s[8:9]")
            e(f"ds_write_b64 v{20+j}, v[{r}:{r+1}]")
        if et:
            e("s_mov_b64 exec, s[12:13]")
            for k in range(1, 4):
                e(f"ds_write_b64 v21, v[{PR+4}:{PR+5}] offset:{k*256}")
            e("s_mov_b64 exec, -1")
        e("s_waitcnt lgkmcnt(0)")
        e("s_barrier")
        stamp(vm, SO + 3)
    else:
        step_hdr(81); isX(0); isW(0)
        nonce_issue(vm)
        if W0: e("s_waitcnt vmcnt(0)")
        stamp(vm, 36)
        step_hdr(81); isX(1); isW(1)
        for i in range(7):
            if i == 0: stamp(vm, 37)
            vm.wait(f"c{i}")
            if i == 0: stamp(vm, 38)
            e("s_barrier")
            if i == 0: capture(wo_voffs, True)
            if i == 1: nonce_get()
            if i <= 4: step_hdr(81); isX(i+2); isW(i+2)
            if i == 4: flush()
            if i == 5: wo_block(vm, lw, B_WO)
            if i == 6:
                wo_block(vm, lw + 4, B_WO)
        e("s_waitcnt vmcnt(0)")
        e("s_barrier")
        stamp(vm, SO + 3)
    e(f"s_branch P2_{'B' if isB else 'A'}")

def tcol(isB, grp, t):
    return (t >> 1)*56 + (t & 1)*(24 if (not isB and grp < 2) else 32)

def accA(grp, rt, t): return 32 + (rt*4+t)*4
def accA2(grp, t, rt): return 32 + (grp-1)*32 + (t*4+rt)*4
def accB(grp, t, r):
    if grp == 0: return 32 + r*8 + t*4
    if grp == 1: return 64 + r*8 + t*4
    return 104 + t*20 + r*4

def comp_setup(isB):
    e("v_lshrrev_b32 v3, 4, v2")
    e("v_bfe_u32 v4, v2, 2, 2")
    e("v_lshl_add_u32 v4, v3, 3, v4")
    e("v_and_b32 v5, 1, v3")
    e("v_lshlrev_b32 v5, 2, v5")
    e("v_add_u32 v6, v4, v5")
    e("v_xor_b32 v7, 4, v6")
    e(f"v_mul_u32_u24 v6, {RS}, v6")
    e(f"v_mul_u32_u24 v7, {RS}, v7")
    e("v_and_b32 v5, 3, v2")
    e("v_lshl_add_u32 v14, v5, 3, v6")
    e("v_lshl_add_u32 v15, v5, 3, v7")
    e("s_and_b32 s49, s48, 1")
    e("s_lshr_b32 s50, s48, 1")
    e("s_mul_i32 s3, s49, 56")
    e("v_add_u32 v12, s3, v14")
    e("v_add_u32 v13, s3, v15")
    e("v_and_b32 v4, 15, v2")
    e("v_lshrrev_b32 v5, 1, v4")
    e("v_xor_b32 v5, v5, v3")
    e("v_lshlrev_b32 v5, 4, v5")
    e("v_lshl_add_u32 v18, v4, 7, v5")
    if isB:
        e("s_lshl_b32 s3, s50, 13")
        e("v_add_u32 v16, s3, v18")
        e("v_xor_b32 v17, 64, v16")
    else:
        e("v_lshl_add_u32 v16, v1, 12, v18")
        e("v_xor_b32 v17, 64, v16")
        e("v_xor_b32 v18, 0x1000, v16")
        e("v_xor_b32 v19, 0x1000, v17")

def gemm(vm, isB):
    lg = LG()
    D = DB if isB else DA
    NB = 12 if isB else 6
    assert D <= (5 if isB else 4)
    def bf(j):
        r = (j % NB)*4 + (0 if isB else 96); k = "a" if isB else "v"
        return (f"{k}[{r}:{r+3}]", f"{k}[{r}:{r+1}]", f"{k}[{r+2}:{r+3}]")
    def xr(ch, kk, rt):
        st = (2*ch + kk) % 3
        if isB: r = 48 + st*20 + rt*4
        elif rt < 2: r = (ch*4 + kk*2 + rt)*4
        else:
            r = 120 + st*8 + (rt-2)*4
            return f"v[{r}:{r+3}]"
        return f"a[{r}:{r+3}]"
    items = []
    for ch in range(7):
        for kk in range(2):
            for grp in ((0, 1, 2) if isB else (1, 2)):
                for t in range(2): items.append((ch, kk, grp, t))
    def sync(ch):
        if ch == 6: vm.wait("non")
        e("s_barrier")
        stamp(vm, 12 + ch)
        wb = 20 + (ch & 1)*2
        kvb = B_kv(ch) if isB else A_kv(ch)
        xb = B_x(ch) if isB else A_x(ch)
        e(f"v_add_u32 v24, {xb}, v16")
        e(f"v_add_u32 v25, {xb}, v17")
        if not isB:
            e(f"v_add_u32 v26, {xb}, v18")
            e(f"v_add_u32 v27, {xb}, v19")
        e(f"v_add_u32 v{wb}, {kvb}, v12")
        e(f"v_add_u32 v{wb+1}, {kvb}, v13")
    def xrd(ch, kk):
        if isB:
            for rt in (1, 2, 3, 4, 0):
                e(f"ds_read_b128 {xr(ch,kk,rt)}, v{24+kk} offset:{rt*2048}")
                lg.issue(f"x{ch}")
        else:
            for rt in range(4):
                e(f"ds_read_b128 {xr(ch,kk,rt)}, v{24+kk+(rt>>1)*2} offset:{(rt&1)*2048}")
                lg.issue(f"x{ch}")
    def rd(j):
        ch, kk, grp, t = items[j]
        if j == 0 or items[j-1][0] != ch: sync(ch)
        if j == 0 or items[j-1][:2] != (ch, kk): xrd(ch, kk)
        wb = 20 + (ch & 1)*2
        if grp == 0: off = KVS + kk*112 + t*32
        else: off = 32*kk*RS + (grp-1)*112 + t*(24 if (not isB and grp == 1) else 32)
        for hf in range(2):
            e(f"ds_read_b64_tr_b16 {bf(j)[1+hf]}, v{wb+hf} offset:{off}")
            lg.issue(f"w{j}")
    for j in range(D): rd(j)
    for j, (ch, kk, grp, t) in enumerate(items):
        if j + D < len(items): rd(j + D)
        lg.wait(f"w{j}")
        tr = isB and grp < 2
        first = (ch == 0 and kk == 0)
        for r in range(5 if (isB and grp) else 4):
            a = accB(grp, t, r) if isB else accA2(grp, t, r)
            x = xr(ch, kk, r + 1 if (isB and grp == 0) else r)
            cc = "0" if first else f"v[{a}:{a+3}]"
            if tr: e(f"v_mfma_f32_16x16x32_bf16 v[{a}:{a+3}], {bf(j)[0]}, {x}, {cc}")
            else: e(f"v_mfma_f32_16x16x32_bf16 v[{a}:{a+3}], {x}, {bf(j)[0]}, {cc}")

def pass2():
    lg = LG()
    D = 6; NB = 12
    items = [(ch, kk, t) for ch in range(7) for kk in range(2) for t in range(4)]
    e(f"v_add_u32 v20, {A_q(0)}, v14")
    e(f"v_add_u32 v21, {A_q(0)}, v15")
    def rd(j):
        ch, kk, t = items[j]
        r = 96 + (j % NB)*4
        off = A_q(ch) - A_q(0) + kk*112 + tcol(False, 0, t)
        for hf in range(2):
            e(f"ds_read_b64_tr_b16 v[{r+2*hf}:{r+2*hf+1}], v{20+hf} offset:{off}")
            lg.issue(f"w{j}")
    for j in range(D): rd(j)
    for j, (ch, kk, t) in enumerate(items):
        if j + D < len(items): rd(j + D)
        lg.wait(f"w{j}")
        r = 96 + (j % NB)*4
        for rt in range(2):
            a = accA(0, rt, t); x = (ch*4 + kk*2 + rt)*4
            cc = "0" if (ch == 0 and kk == 0) else f"v[{a}:{a+3}]"
            e(f"v_mfma_f32_16x16x32_bf16 v[{a}:{a+3}], v[{r}:{r+3}], a[{x}:{x+3}], {cc}")

def tile_addr(isB):
    if isB:
        e("s_lshl_b32 s3, s50, 13")
        e("s_lshl_b32 s27, s49, 10")
        e("s_add_u32 s3, s3, s27")
        e("v_lshlrev_b32 v3, 4, v2")
        e("v_add_u32 v3, s3, v3")
        e("v_add_u32 v4, 0x1000, v3")
    else:
        e("v_lshlrev_b32 v3, 12, v1")
        e("v_lshl_add_u32 v3, v2, 4, v3")
    e("s_lshl_b32 s27, s26, 14")
    e("s_add_u32 s3, s59, s27")
    e(f"s_add_u32 s27, s3, 0x{TLQ:x}")
def tile_store(vm, regs):
    for (va, off, n) in regs:
        e(f"buffer_store_dwordx4 v[{n}:{n+3}], v{va}, s[40:43], s3 offen offset:{off}")
    for (va, off, n) in regs:
        e(f"buffer_store_dwordx4 v[{n}:{n+3}], v{va}, s[40:43], s27 offen offset:{off} sc0 sc1")

def epi_A(vm):
    c("---- A epilogue ----")
    e("v_and_b32 v5, 15, v2")
    e("v_lshrrev_b32 v6, 4, v2")
    e("v_cmp_le_u32 s[64:65], 12, v5")
    e("v_mov_b32 v7, 0x3f803f80")
    e("s_lshl_b32 s3, s48, 12")
    e(f"s_add_u32 s3, s3, {A_SCR}")
    e("v_lshlrev_b32 v3, 4, v2")
    e("v_add_u32 v4, s3, v3")
    e("s_nop 7")
    PK = 96; VV = 112; TT = 128; KP = 32
    for t in range(2):
        for pr in range(2):
            sq = []
            for r2 in range(2):
                a = accA2(1, t, pr*2 + r2)
                d = PK + (t*2+pr)*4 + r2*2
                sq.append(phi_pair(d, a, a+1, TT + r2*4))
                sq.append(phi_pair(d + 1, a+2, a+3, TT + r2*4 + 2))
            ilv(sq)
    for t in range(2):
        for rt in range(4):
            a = accA2(2, t, rt)
            d = VV + t*8 + rt*2
            e(f"v_cvt_pk_bf16_f32 v{d}, v{a}, v{a+1}")
            e(f"v_cvt_pk_bf16_f32 v{d+1}, v{a+2}, v{a+3}")
            if t & 1:
                e(f"v_cndmask_b32 v{d}, v{d}, v7, s[64:65]")
                e(f"v_cndmask_b32 v{d+1}, v{d+1}, v7, s[64:65]")
    e("s_nop 1")
    for pr in range(2):
        for et in range(2):
            for dt in range(2):
                d = KP + (et*2 + dt)*4
                va = VV + (et*2+pr)*4; pk = PK + (dt*2+pr)*4
                cc = "0" if pr == 0 else f"v[{d}:{d+3}]"
                e(f"v_mfma_f32_16x16x32_bf16 v[{d}:{d+3}], v[{va}:{va+3}], v[{pk}:{pk+3}], {cc}")
    e("s_nop 7")
    for i in range(4):
        e("s_nop 3")
        e(f"ds_write_b128 v4, v[{KP+i*4}:{KP+i*4+3}] offset:{i*1024}")
    e("s_waitcnt lgkmcnt(0)")
    e("s_barrier")
    stamp(vm, 4)
    pass2()
    stamp(vm, 7)
    nonce_get()
    QF = 64
    e("v_cmp_eq_u32 s[10:11], 3, v6")
    e("v_cmp_eq_u32 s[12:13], 0, v6")
    e("v_lshlrev_b32 v10, 6, v5")
    e("v_lshl_add_u32 v10, v6, 4, v10")
    e(f"v_add_u32 v10, {KVB}, v10")
    tile_addr(False)
    e("v_mov_b32 v11, 0xffff")
    e("s_nop 3")
    for t in range(4):
        sq = []
        for rt in range(2):
            a = accA(0, rt, t)
            d = QF + (rt*2 + (t >> 1))*4 + (t & 1)*2
            s0 = phi_pair(d, a, a+1, TT + rt*4)
            s1 = phi_pair(d+1, a+2, a+3, TT + rt*4 + 2)
            if t & 1: s0.append(f"v_cndmask_b32 v{d}, v{d}, 0, s[12:13]")
            else: s1.append(f"v_cndmask_b32 v{d+1}, v{d+1}, 0, s[10:11]")
            sq += [s0, s1]
        ilv(sq)
    e("s_barrier")
    stamp(vm, 10)
    R = 80
    for hh in range(2):
        for f in range(2):
            r = R + (hh*2+f)*4
            e(f"ds_read_b128 v[{r}:{r+3}], v10 offset:{hh*2048 + f*1024}")
    NR = 96
    for hh in range(2):
        e(f"s_waitcnt lgkmcnt({2 - 2*hh})")
        for rt in range(2):
            n = NR + (hh*2+rt)*8
            q = QF + (rt*2+hh)*4
            for f in (1, 0):
                r = R + (hh*2+f)*4
                e(f"v_mfma_f32_16x16x32_bf16 v[{n+f*4}:{n+f*4+3}], v[{r}:{r+3}], v[{q}:{q+3}], 0")
    e("s_nop 7")
    sq = []; regs = []
    for hh in range(2):
        for rt in range(2):
            n = NR + (hh*2+rt)*8
            t = TT + (hh*2+rt)*2
            o = [f"v_add_f32 v{t}, 0x{EPS:x}, v{n+7}",
                 f"v_rcp_f32 v{t}, v{t}",
                 f"v_mov_b32 v{t+1}, v{t}"]
            for q in range(3):
                o.append(f"v_pk_mul_f32 v[{n+2*q}:{n+2*q+1}], v[{n+2*q}:{n+2*q+1}], v[{t}:{t+1}]")
            o.append(f"v_mul_f32 v{n+6}, v{n+6}, v{t}")
            for q in range(3):
                o.append(f"v_cvt_pk_bf16_f32 v{n+q}, v{n+2*q}, v{n+2*q+1}")
            o.append(f"v_cvt_pk_bf16_f32 v{n+3}, v{n+6}, v{n+6}")
            o.append(f"v_and_or_b32 v{n+3}, v{n+3}, v11, s61")
            sq.append(o); regs.append((3, rt*2048 + hh*1024, n))
    ilv(sq)
    tile_store(vm, regs)
    stamp(vm, 5)

def epi_B(vm):
    c("---- B epilogue ----")
    e("v_and_b32 v5, 15, v2")
    e("v_lshrrev_b32 v6, 4, v2")
    e("v_cmp_gt_u32 s[64:65], 3, v6")
    nonce_get()
    e("v_and_b32 v9, 1, v5")
    e("v_cmp_eq_u32 s[4:5], 1, v9")
    e("v_mov_b32 v10, 0xffff")
    e("v_mov_b32 v11, 0xffff0000")
    e("v_cndmask_b32 v12, v10, v11, s[4:5]")
    e("v_lshl_add_u32 v11, v6, 2, v9")
    e("v_sub_u32 v11, v11, v5")
    def KF(blk): return 64 + blk*8
    def QF(rt): return 32 + rt*8
    def VB(et): return 104 + et*20
    def cvt4(b):
        for q in range(4): e(f"v_cvt_pk_bf16_f32 v{b+q}, v{b+2*q}, v{b+2*q+1}")
    def C0(cb): return 32 + cb*8 + 4
    def C1(cb): return 64 + cb*8 + 4
    for rt in range(4):
        b = QF(rt)
        cvt4(b)
        e(f"v_cndmask_b32 v{b+2}, 0, v{b+2}, s[64:65]")
        e(f"v_cndmask_b32 v{b+3}, 0, v{b+3}, s[64:65]")
    for blk in range(5): cvt4(KF(blk))
    e("s_nop 1")
    for rt in range(4):
        q = QF(rt)
        for ti in range(2):
            k = KF(rt + ti)
            d = C0(rt) if ti == 0 else C1(rt)
            e(f"v_mfma_f32_16x16x32_bf16 v[{d}:{d+3}], v[{k}:{k+3}], v[{q}:{q+3}], 0")
    e("s_barrier")
    for et in range(2):
        b = VB(et)
        for blk in range(5):
            e(f"v_cvt_pk_bf16_f32 v{b+2*blk}, v{b+4*blk}, v{b+4*blk+1}")
            e(f"v_cvt_pk_bf16_f32 v{b+2*blk+1}, v{b+4*blk+2}, v{b+4*blk+3}")
    for k in range(4):
        addk = 2*k if k < 2 else 16 + 2*(k-2)
        e(f"v_add_u32 v13, {addk}, v11")
        e(f"v_cmp_le_i32 s[{6+2*k}:{7+2*k}], 2, v13")
        e(f"v_cmp_ge_i32 vcc, 16, v13")
        e(f"s_and_b64 s[{6+2*k}:{7+2*k}], s[{6+2*k}:{7+2*k}], vcc")
    e("s_or_b32 s3, s25, s50")
    e("s_cmp_eq_u32 s3, 0")
    e("s_cselect_b64 s[14:15], 0, -1")
    e("s_and_b64 s[16:17], s[6:7], s[14:15]")
    e("s_and_b64 s[18:19], s[8:9], s[14:15]")
    e("v_mov_b32 v13, 0xce6e6b28")
    e(f"s_mov_b32 s20, 0x{SC2:x}")
    tile_addr(True)
    e("v_cmp_eq_u32 s[68:69], 3, v6")
    def seq(cb):
        lgr = [C0(cb), C0(cb)+2, C1(cb), C1(cb)+2]
        m = C1(cb)+1; m2 = C1(cb)+3
        o = []
        for k in range(4):
            o.append(f"v_cndmask_b32 v{lgr[k]}, v{lgr[k]}, v{lgr[k]+1}, s[4:5]")
        for k in range(4):
            ms = (16 + 2*k) if (cb == 0 and k < 2) else (6 + 2*k)
            o.append(f"v_cndmask_b32 v{lgr[k]}, v13, v{lgr[k]}, s[{ms}:{ms+1}]")
        o.append(f"v_max3_f32 v{m}, v{lgr[0]}, v{lgr[1]}, v{lgr[2]}")
        o.append(f"v_max_f32 v{m}, v{m}, v{lgr[3]}")
        o.append(f"v_mov_b32 v{m2}, v{m}")
        o.append(f"v_permlane16_swap_b32 v{m}, v{m2}")
        o.append(f"v_max_f32 v{m}, v{m}, v{m2}")
        o.append(f"v_mov_b32 v{m2}, v{m}")
        o.append(f"v_permlane32_swap_b32 v{m}, v{m2}")
        o.append(f"v_max_f32 v{m}, v{m}, v{m2}")
        o.append(f"v_mul_f32 v{m}, 0x{SC2 ^ 0x80000000:x}, v{m}")
        for k in range(4):
            o.append(f"v_fma_f32 v{lgr[k]}, v{lgr[k]}, s20, v{m}")
        for k in range(4):
            o.append(f"v_exp_f32 v{lgr[k]}, v{lgr[k]}")
        o.append(f"v_add_f32 v{m}, v{lgr[0]}, v{lgr[1]}")
        o.append(f"v_add_f32 v{m2}, v{lgr[2]}, v{lgr[3]}")
        o.append(f"v_add_f32 v{m}, v{m}, v{m2}")
        o.append(f"v_mov_b32 v{m2}, v{m}")
        o.append(f"v_permlane16_swap_b32 v{m}, v{m2}")
        o.append(f"v_add_f32 v{m}, v{m}, v{m2}")
        o.append(f"v_mov_b32 v{m2}, v{m}")
        o.append(f"v_permlane32_swap_b32 v{m}, v{m2}")
        o.append(f"v_add_f32 v{m}, v{m}, v{m2}")
        o.append(f"v_rcp_f32 v{m}, v{m}")
        for k in range(4):
            o.append(f"v_mul_f32 v{lgr[k]}, v{lgr[k]}, v{m}")
            o.append(f"v_cvt_pk_bf16_f32 v{C0(cb)+k}, v{lgr[k]}, v{lgr[k]}")
            o.append(f"v_and_b32 v{C0(cb)+k}, v{C0(cb)+k}, v12")
        return o
    ilv([seq(cb) for cb in range(4)])
    e("s_nop 1")
    for rt in range(4):
        for et in (1, 0):
            o = QF(rt) if et == 0 else C1(rt)
            v = VB(et) + 2*rt
            e(f"v_mfma_f32_16x16x32_bf16 v[{o}:{o+3}], v[{v}:{v+3}], v[{C0(rt)}:{C0(rt)+3}], 0")
    e("s_nop 7")
    sq = []; regs = []
    for rt in range(4):
        o0 = QF(rt); o1 = C1(rt); t = C0(rt)
        o = [f"v_mov_b32 v{t}, v{o1+3}",
             f"v_cvt_pk_bf16_f32 v{o0}, v{o0}, v{o0+1}",
             f"v_permlane32_swap_b32 v{t+1}, v{t}",
             f"v_permlane16_swap_b32 v{t+2}, v{o1+3}",
             f"v_cvt_pk_bf16_f32 v{o0+1}, v{o0+2}, v{o0+3}",
             f"v_permlane16_swap_b32 v{t+3}, v{t+1}",
             f"v_cndmask_b32 v{o1+2}, v{o1+2}, v{t+2}, s[68:69]",
             f"v_cndmask_b32 v{o1+1}, v{o1+1}, v{t+1}, s[68:69]",
             f"v_cndmask_b32 v{o1}, v{o1}, v{t+3}, s[68:69]",
             f"v_cvt_pk_bf16_f32 v{o0+3}, v{o1+2}, v{o1+2}",
             f"v_cvt_pk_bf16_f32 v{o0+2}, v{o1}, v{o1+1}",
             f"v_and_or_b32 v{o0+3}, v{o0+3}, v10, s61"]
        sq.append(o); regs.append((3 + (rt >> 1), (rt & 1)*2048, o0))
    ilv(sq)
    tile_store(vm, regs)
    stamp(vm, 5)

NP = int(os.environ.get("NP", "96"))
def p2(isB):
    lab(f"P2_{'B' if isB else 'A'}")
    c("---- P2 (8 waves, 16 rows each) ----")
    wo = B_WO if isB else A_WO
    e("v_lshrrev_b32 v3, 4, v2")
    e("v_lshrrev_b32 v9, 1, v3")
    e("v_bfe_u32 v10, v2, 2, 2")
    e("v_mul_u32_u24 v11, 14, v9")
    e("v_and_b32 v12, 1, v3")
    e("v_lshl_add_u32 v13, v12, 2, v11")
    e("v_add_u32 v13, v13, v10")
    e("v_mul_u32_u24 v12, 3, v12")
    e("v_min_u32 v10, 2, v10")
    e("v_add3_u32 v11, v11, v12, v10")
    e("v_add_u32 v11, 8, v11")
    e("v_and_b32 v12, 3, v2")
    e("v_lshlrev_b32 v12, 3, v12")
    e(f"v_add_u32 v12, {wo}, v12")
    e(f"v_mul_u32_u24 v10, {RS}, v13")
    e("v_add_u32 v10, v10, v12")
    e(f"v_mul_u32_u24 v11, {RS}, v11")
    e("v_add_u32 v11, v11, v12")
    stream = [0, 2, 4, 6, 8, 10, 12, 14, 15]
    resid = [1, 3, 5, 7, 9, 11, 13]
    def wreg(h, nt):
        if h in resid: return "a", resid.index(h)*16 + nt*4
        return "v", (48, 128)[stream.index(h) % 2] + nt*4
    def rdh(h, lg=None):
        ho = (h & 7)*7168 + (h >> 3)*112
        for nt in range(4):
            k, r = wreg(h, nt)
            e(f"ds_read_b64_tr_b16 {k}[{r}:{r+1}], v10 offset:{ho + nt*32}")
            e(f"ds_read_b64_tr_b16 {k}[{r+2}:{r+3}], v11 offset:{ho + nt*32}")
            if lg: lg.issue(f"h{h}"); lg.issue(f"h{h}")
    e("v_and_b32 v12, 7, v2")
    e("v_lshlrev_b32 v12, 14, v12")
    e("v_bfe_u32 v13, v2, 3, 1")
    e("v_lshl_add_u32 v12, v13, 10, v12")
    e("v_bfe_u32 v13, v2, 4, 1")
    e("v_mul_u32_u24 v13, 1008, v13")
    e("v_add_u32 v12, v12, v13")
    e("v_lshl_add_u32 v12, v1, 11, v12")
    e("s_getreg_b32 s94, hwreg(HW_REG_XCC_ID)")
    e(f"s_add_u32 s57, s59, 0x{TLQ:x}")
    e("s_and_b32 s94, s94, 15")
    e("s_cmp_eq_u32 s94, s22")
    e("s_cselect_b32 s62, s59, s57")
    e("s_mov_b64 exec, 0xffffffff")
    e(f"buffer_load_dword v16, v12, s[40:43], s62 offen offset:12 {PPOL}")
    e("s_mov_b64 exec, -1")
    for h in stream[:2] + resid: rdh(h)
    e("v_and_b32 v4, 15, v2")
    e("v_lshl_add_u32 v5, v1, 4, v4")
    e("v_lshlrev_b32 v6, 11, v1")
    e("v_lshl_add_u32 v6, v2, 4, v6")
    e("s_lshl_b32 s3, s25, 7")
    e("v_add_u32 v5, s3, v5")
    e("v_mul_u32_u24 v8, 1792, v5")
    e("v_and_b32 v7, 1, v3")
    e("v_lshl_add_u32 v8, v7, 5, v8")
    e("v_lshl_add_u32 v8, v9, 4, v8")
    e("s_mul_i32 s3, s24, 896")
    e("s_add_u32 s3, s3, s56")
    e("v_add_u32 v8, s3, v8")
    e("v_cmp_ne_u32 s[64:65], 3, v3")
    lp = uid("PL"); dn = uid("PD")
    e("s_mov_b32 s78, 0")
    e("s_mov_b64 exec, 0xffffffff")
    lab(lp)
    e("s_waitcnt vmcnt(0)")
    e("v_xor_b32 v13, s61, v16")
    e("v_cmp_gt_u32 vcc, 0x10000, v13")
    e("s_cmp_eq_u32 vcc_lo, -1")
    e(f"s_cbranch_scc1 {dn}")
    e("s_add_u32 s78, s78, 1")
    e(f"s_cmp_gt_u32 s78, {NP}")
    e("s_cselect_b32 s62, s57, s62")
    e(f"buffer_load_dword v16, v12, s[40:43], s62 offen offset:12 {PPOL}")
    e("s_cmp_gt_u32 s78, 0x40000")
    e(f"s_cbranch_scc0 {lp}")
    lab(dn)
    e("s_mov_b64 exec, -1")
    if STAMP:
        stamp(None, 6)
        e("v_mov_b32 v28, s78")
        e("s_lshl_b32 s74, s2, 8")
        e(f"s_add_u32 s74, s74, {STB + 20*4}")
        e("v_mov_b32 v29, 0")
        e("buffer_store_dword v28, v29, s[40:43], s74 offen")
    OFR = 64
    def body(sc, base, pre):
        lg = LG()
        e(f"s_mov_b32 s58, {base}")
        for h in range(16):
            r = OFR + h*4
            e(f"buffer_load_dwordx4 v[{r}:{r+3}], v6, s[40:43], s58 offen offset:{(h&1)*1024}{sc}")
            if h & 1 and h < 15: e("s_add_u32 s58, s58, 16384")
        e("v_mov_b32 v13, 0")
        if pre:
            for h in stream[:2]: rdh(h)
        e("s_waitcnt lgkmcnt(0)")
        for h in range(16):
            w = f"s_waitcnt vmcnt({15-h})"
            if h in stream[2:]: w += f" lgkmcnt({lg.n(f'h{h}')})"
            e(w)
            r = OFR + h*4
            e(f"v_xor_b32 v{r+3}, s61, v{r+3}")
            e(f"v_max_u32 v13, v13, v{r+3}")
            for nt in range(4):
                a = 32 + nt*4
                k, wr = wreg(h, nt)
                cc = "0" if h == 0 else f"v[{a}:{a+3}]"
                e(f"v_mfma_f32_16x16x32_bf16 v[{a}:{a+3}], {k}[{wr}:{wr+3}], v[{r}:{r+3}], {cc}")
            if h in stream and stream.index(h) + 2 < len(stream): rdh(stream[stream.index(h) + 2], lg)
        e("v_cmp_gt_u32 vcc, 0x10000, v13")
        e("s_cmp_eq_u64 vcc, -1")
    ok = uid("P2OK"); rt_ = uid("P2RT")
    body("", "s62", False)
    if STAMP:
        e("s_cselect_b32 s95, 1, 0")
        stamp(None, 11)
        e("s_cmp_eq_u32 s95, 1")
    e(f"s_cbranch_scc1 {ok}")
    e("s_mov_b32 s78, 0")
    lab(rt_)
    stamp(None, 8)
    e("s_waitcnt vmcnt(0)")
    e("s_nop 7")
    body(" sc0 sc1", "s57", True)
    e(f"s_cbranch_scc1 {ok}")
    e("s_add_u32 s78, s78, 1")
    e("s_cmp_gt_u32 s78, 0x4000")
    e(f"s_cbranch_scc0 {rt_}")
    lab(ok)
    sk = uid("NS")
    e("s_or_b32 s3, s26, s48")
    e("s_cmp_eq_u32 s3, 0")
    e(f"s_cbranch_scc0 {sk}")
    e("v_mov_b32 v12, 0")
    e("v_mov_b32 v13, s93")
    e("buffer_store_dword v13, v12, s[40:43], s60 offen sc0 sc1")
    lab(sk)
    e("s_nop 7")
    for nt in range(4):
        a = 32 + nt*4
        d = 48 + (nt >> 1)*4 + (nt & 1)*2
        e(f"v_cvt_pk_bf16_f32 v{d}, v{a}, v{a+1}")
        e(f"v_cvt_pk_bf16_f32 v{d+1}, v{a+2}, v{a+3}")
    e("s_nop 1")
    for pr in range(2):
        d = 48 + pr*4
        e(f"v_permlane16_swap_b32 v{d}, v{d+2}")
        e(f"v_permlane16_swap_b32 v{d+1}, v{d+3}")
    e("s_nop 1")
    e("buffer_store_dwordx4 v[48:51], v8, s[88:91], 0 offen")
    e("s_mov_b64 exec, s[64:65]")
    e("buffer_store_dwordx4 v[52:55], v8, s[88:91], 0 offen offset:64")
    e("s_mov_b64 exec, -1")
    stamp(None, 9)
    e("s_endpgm")

def compute(isB):
    lab("C_B" if isB else "C_A")
    vm = VM()
    comp_setup(isB)
    srds(isB)
    stamp(vm, 0)
    nonce_issue(vm)
    if PRE:
        e("s_mul_i32 s3, s25, 229376")
        e("s_mul_i32 s27, s24, 896")
        e("s_add_u32 s3, s3, s27")
        e("buffer_load_dword v30, v3, s[88:91], s3 offen"); vm.issue("pre")
        e("buffer_load_dword v30, v3, s[36:39], s56 offen"); vm.issue("pre")
        e("buffer_load_dword v30, v3, s[40:43], s59 offen"); vm.issue("pre")
        e(f"s_add_u32 s3, s59, 0x{TLQ:x}")
        e("buffer_load_dword v30, v3, s[40:43], s3 offen"); vm.issue("pre")
    gemm(vm, isB)
    stamp(vm, 3)
    if isB: epi_B(vm)
    else: epi_A(vm)
    p2(isB)

def kernel():
    lab(f"{NAME}_kernel")
    prologue()
    for lw in range(4): loader(False, lw)
    for lw in range(4): loader(True, lw)
    compute(False)
    compute(True)
    lab("K_END")
    e("s_endpgm")

HDR = open("cdna_kernels/" + NAME + ".s.ref").read().split("; @launch")[0]
kernel()
out = HDR
out += f"; @launch grid=(256,1,1) block=(512,1,1) lds={LDS_TOTAL}\n"
out += '.amdgcn_target "amdgcn-amd-amdhsa--gfx950"\n.text\n'
out += f".globl {NAME}_kernel\n.p2align 8\n.type {NAME}_kernel,@function\n"
out += "\n".join(L) + "\n"
out += f""".section .rodata,"a"
.p2align 6
.amdhsa_kernel {NAME}_kernel
  .amdhsa_next_free_vgpr 256
  .amdhsa_next_free_sgpr 96
  .amdhsa_accum_offset 144
  .amdhsa_group_segment_fixed_size 0
  .amdhsa_kernarg_size 72
  .amdhsa_user_sgpr_count 2
  .amdhsa_user_sgpr_kernarg_segment_ptr 1
  .amdhsa_system_sgpr_workgroup_id_x 1
.end_amdhsa_kernel
"""
path = sys.argv[1] if len(sys.argv) > 1 else f"cdna_kernels/{NAME}.s"
open(path, "w").write(out)
```

```python
import sys, os, struct
NAME = "concat_heads__linear_attn_block__sliding_local_dilated__prompt"
TLP = 0
TLQ = 0x400000
ACC = 0xa00000
NON = 0x800000
AS = int(os.environ.get("AS", "128"))
WS_END = 0xa00000 + 512*AS
STAMP = os.environ.get("STAMP") in ("1", "2")
RT = os.environ.get("STAMP") == "2"
STB = 0x900000
LOG2E = 0x3FB8AA3B
EPS = 0x358637BD
for s in range(64*21): assert (s * 4682) >> 16 == s // 14
for s in range(32): assert (s * 37) >> 8 == s // 7
RS = 224
KVS = 14336; QS = 7168; XS = 16384
LDS_TOTAL = 163840
ROT = os.environ.get("ROT", "1") == "1"
PPOL = os.environ.get("PPOL", "sc0 sc1")
W0 = os.environ.get("W0") == "1"
PRE = os.environ.get("PRE", "1") == "1"
NOQ = os.environ.get("NOQ") == "1"
L1X = os.environ.get("L1X") == "1"
DA = int(os.environ.get("DA", "4"))
DB = int(os.environ.get("DB", "5"))
def f2u(x): return struct.unpack('<I', struct.pack('<f', x))[0]
SC2 = f2u(28 ** -0.5 * 1.4426950408889634)
CNT_Z = 40 * 4
def A_kv(i): return (i % 5) * 30720
def A_x(i): return (i % 5) * 30720 + KVS
def A_q(i): return (61440 + i*QS) if i < 4 else (92160 + (i-4)*QS)
A_SCR = 122880; KVB = 159744; A_WO = 0
B_WSL = [142336, 0, 21504, 120832]
def B_kv(i): return B_WSL[i % 4]
def B_q(i): return B_WSL[i % 4] + KVS
def B_x(i): return 43008 + (i % 3) * 18432
B_SCR = 61440; B_WO = 98304
FLG_A = 155648
FLG_B = 0
FLG_B = 83968

L = []
def e(s): L.append("    " + s)
def lab(s): L.append(s + ":")
def c(s): L.append("    ; " + s)
_uid = [0]
def uid(p):
    _uid[0] += 1
    return f"{p}_{_uid[0]}"

class CNT:
    def __init__(self, kind, mx): self.ops = []; self.kind = kind; self.mx = mx
    def issue(self, tag): self.ops.append(tag)
    def n(self, tag):
        idx = max(i for i, t in enumerate(self.ops) if t == tag)
        return min(len(self.ops) - 1 - idx, self.mx)
    def wait(self, tag): e(f"s_waitcnt {self.kind}({self.n(tag)})")
def VM(): return CNT("vmcnt", 63)
def LG(): return CNT("lgkmcnt", 15)

def stamp(vm, i, r=28):
    if not STAMP: return
    e("s_memrealtime s[72:73]" if RT else "s_memtime s[72:73]")
    e("s_waitcnt lgkmcnt(0)")
    e(f"v_mov_b32 v{r}, s72")
    e("s_lshl_b32 s74, s2, 8")
    e(f"s_add_u32 s74, s74, {STB + i*4}")
    e(f"v_and_b32 v{r+1}, 0xff, v0")
    e(f"v_cmp_eq_u32 s[76:77], 0, v{r+1}")
    e("s_mov_b64 exec, s[76:77]")
    e(f"buffer_store_dword v{r}, v{r+1}, s[40:43], s74 offen")
    e("s_mov_b64 exec, -1")
    if vm is not None: vm.issue("stamp")

def phi_pair(dst, a, b, t):
    assert b == a + 1 and a % 2 == 0 and t % 2 == 0
    return [f"v_pk_mul_f32 v[{t}:{t+1}], v[{a}:{b}], s[70:71]",
            f"v_exp_f32 v{t}, v{t} clamp",
            f"v_exp_f32 v{t+1}, v{t+1} clamp",
            f"v_max_f32 v{a}, 0, v{a}",
            f"v_max_f32 v{b}, 0, v{b}",
            f"v_pk_add_f32 v[{t}:{t+1}], v[{t}:{t+1}], v[{a}:{b}]",
            f"v_cvt_pk_bf16_f32 v{dst}, v{t}, v{t+1}"]
def ilv(seqs):
    for i in range(max(len(q) for q in seqs)):
        for q in seqs:
            if i < len(q): e(q[i])

def srd(base, lo, hi, nbytes):
    e(f"s_mov_b32 s{base}, s{lo}")
    e(f"s_and_b32 s{base+1}, s{hi}, 0xffff")
    e(f"s_mov_b32 s{base+2}, 0x{nbytes:x}")
    e(f"s_mov_b32 s{base+3}, 0x20000")

def srds(isB):
    e("s_waitcnt lgkmcnt(0)")
    o = 6 if isB else 0
    srd(32, 6+o, 7+o, 448*2688)
    srd(28, 4+o, 5+o, 2048*896)
    srd(40, 20, 21, WS_END)
    srd(36, 8+o, 9+o, 448*896)
    srd(44, 18, 19, 256)
    srd(88, 16, 17, 2048*1792)

def prologue():
    e("s_cmp_ge_u32 s2, 256")
    e("s_cbranch_scc1 K_END")
    e("s_load_dwordx4 s[4:7], s[0:1], 0")
    e("s_load_dwordx4 s[8:11], s[0:1], 16")
    e("s_load_dwordx4 s[12:15], s[0:1], 32")
    e("s_load_dwordx4 s[16:19], s[0:1], 48")
    e("s_load_dwordx2 s[20:21], s[0:1], 64")
    e("v_lshrrev_b32 v1, 6, v0")
    e("v_and_b32 v2, 63, v0")
    e("v_readfirstlane_b32 s48, v1")
    e("s_and_b32 s22, s2, 7")
    e("s_lshr_b32 s23, s2, 3")
    e("s_lshr_b32 s24, s22, 2")
    e("s_and_b32 s27, s22, 3")
    e("s_lshl_b32 s25, s27, 2")
    e("s_and_b32 s3, s23, 3")
    e("s_add_u32 s25, s25, s3")
    e("s_lshr_b32 s26, s23, 2")
    e("s_mul_i32 s56, s26, 112")
    e(f"s_mov_b32 s70, 0x{LOG2E:x}")
    e(f"s_mov_b32 s71, 0x{LOG2E:x}")
    e("s_lshl_b32 s60, s24, 4")
    e("s_add_u32 s60, s60, s25")
    e("s_lshl_b32 s59, s60, 17")
    e("s_lshl_b32 s60, s60, 7")
    e(f"s_add_u32 s60, s60, 0x{NON:x}")
    if ROT:
        e("s_mul_i32 s3, s23, 37")
        e("s_lshr_b32 s3, s3, 8")
        e("s_mul_i32 s3, s3, 7")
        e("s_sub_u32 s81, s23, s3")
    else:
        e("s_mov_b32 s81, 0")
    e("s_mov_b32 s82, s81")
    e("s_lshl_b32 s3, s24, 3")
    e("s_add_u32 s3, s3, s48")
    e("s_cmp_lt_u32 s3, 4")
    e("s_cbranch_scc1 C_A")
    for lw in range(4):
        e(f"s_cmp_eq_u32 s3, {4+lw}")
        e(f"s_cbranch_scc1 L_A{lw}")
    e("s_cmp_lt_u32 s3, 12")
    e("s_cbranch_scc1 C_B")
    for lw in range(3):
        e(f"s_cmp_eq_u32 s3, {12+lw}")
        e(f"s_cbranch_scc1 L_B{lw}")
    e("s_branch L_B3")

def nonce_issue(vm):
    e("v_mov_b32 v3, 0")
    e("buffer_load_dword v31, v3, s[40:43], s60 offen sc0 sc1")
    vm.issue("non")
def nonce_get():
    e("v_readfirstlane_b32 s93, v31")
    e("s_nop 3")
    e("s_add_u32 s93, s93, 1")
    e("s_lshl_b32 s61, s93, 16")

def div14(n):
    e(f"v_add_u32 v3, {64*n}, v2")
    e("v_mul_u32_u24 v4, 4682, v3")
    e("v_lshrrev_b32 v4, 16, v4")
    e("v_mul_u32_u24 v5, 14, v4")
    e("v_sub_u32 v3, v3, v5")
    e("v_cmp_lt_u32 vcc, 6, v3")
    e("v_cndmask_b32 v5, 0, 1, vcc")
    e("v_mul_u32_u24 v6, 7, v5")
    e("v_sub_u32 v3, v3, v6")

def w_voff(dst, n, isq):
    div14(n)
    e("v_lshrrev_b32 v6, 1, v4")
    e("v_and_b32 v6, 4, v6")
    e("v_xor_b32 v4, v4, v6")
    e("v_mul_u32_u24 v4, 2688, v4")
    if isq:
        e("v_mul_u32_u24 v5, s58, v5")
        e("v_lshl_add_u32 v3, v3, 4, v4")
        e(f"v_add_u32 v{dst}, v3, v5")
    else:
        e("v_mul_u32_u24 v5, 896, v5")
        e("v_lshl_add_u32 v3, v3, 4, v4")
        e(f"v_add3_u32 v{dst}, v3, v5, s57")

def step_hdr(sr):
    e(f"s_mul_i32 s83, s{sr}, 172032")
    e("s_add_u32 s83, s83, s56")
    e(f"s_lshl_b32 s85, s{sr}, 7")
    e("s_add_u32 s86, s85, 14336")
    e(f"s_add_u32 s{sr}, s{sr}, 1")
    e(f"s_cmp_eq_u32 s{sr}, 7")
    e(f"s_cselect_b32 s{sr}, 0, s{sr}")

FILL = []
FN = int(os.environ.get("FN", "12"))
def capture(fn, *a):
    global L
    sv = L; L = []
    fn(*a)
    r = L; L = sv
    FILL.extend(r)
def flush(n=10**9):
    while FILL and n > 0:
        L.append(FILL.pop(0)); n -= 1
def dma(vm, tag, voff, srd_, soff, lds):
    e(f"s_mov_b32 m0, {lds}")
    e("s_nop 0")
    e(f"buffer_load_dwordx4 v{voff}, s[{srd_}:{srd_+3}], {soff} offen lds")
    vm.issue(tag)
    flush(FN)

def wo_voffs(isB):
    for t in range(7):
        div14(t)
        e("v_min_u32 v4, 27, v4")
        e("v_cmp_lt_u32 vcc, 13, v4")
        e("v_cndmask_b32 v6, 0, 1, vcc")
        e("v_mul_u32_u24 v24, 14, v6")
        e("v_sub_u32 v4, v4, v24")
        e("v_lshrrev_b32 v24, 2, v4")
        e("v_and_b32 v25, 3, v4")
        e("v_cmp_lt_u32 vcc, 10, v4")
        e("v_cndmask_b32 v26, 0, 1, vcc")
        e("v_mul_u32_u24 v27, 3, v26")
        e("v_sub_u32 v27, v4, v27")
        e("v_subrev_u32 v27, 4, v27")
        e("v_cmp_lt_u32 vcc, 7, v4")
        e("v_cndmask_b32 v24, v24, v26, vcc")
        e("v_cndmask_b32 v25, v25, v27, vcc")
        e("v_lshl_add_u32 v24, v6, 1, v24")
        if not isB:
            e("v_mul_u32_u24 v24, 7, v24")
            e("v_add_u32 v4, v24, v25")
        else:
            e("v_lshl_add_u32 v4, v24, 2, v25")
            e("v_add_u32 v26, 12, v4")
            e("v_lshlrev_b32 v27, 2, v25")
            e("v_add_u32 v27, 3, v27")
            e("v_cmp_eq_u32 s[4:5], 3, v24")
            e("v_cndmask_b32 v26, v26, v27, s[4:5]")
            e("v_cndmask_b32 v4, v4, v26, vcc")
        e("v_mul_u32_u24 v5, 224, v5")
        e("v_add_u32 v4, v4, v5")
        e("v_mul_u32_u24 v4, 896, v4")
        e("v_lshl_add_u32 v3, v3, 4, v4")
        e(f"v_add_u32 v{40+t}, s56, v3")

def wo_block(vm, blk, base):
    e(f"s_mov_b32 s86, {blk*28*896}")
    for t in range(7):
        if t == 6: e("s_mov_b64 exec, 0xff")
        dma(vm, "wo", 40+t, 36, "s86", base + blk*7168 + t*1024)
    e("s_mov_b64 exec, -1")

def prepoll(lw, flg):
    lp = uid("PL"); dn = uid("PD"); ok = uid("PO")
    e("v_bfe_u32 v12, v2, 3, 2")
    e("v_lshlrev_b32 v12, 12, v12")
    e("s_lshl_b32 s3, s26, 7")
    e("s_add_u32 s3, s3, 3072")
    e("v_add_u32 v12, s3, v12")
    e("v_and_b32 v13, 7, v2")
    e("v_lshl_add_u32 v12, v13, 14, v12")
    e(f"s_add_u32 s58, s59, 0x{TLQ if lw else TLP:x}")
    e(f"v_mov_b32 v14, {flg}")
    e("s_mov_b32 s78, 0")
    lab(lp)
    e("buffer_load_dword v16, v12, s[40:43], s58 offen offset:12 " + ("sc0 sc1" if lw else PPOL))
    e("ds_read_b32 v15, v14")
    e("s_waitcnt vmcnt(0) lgkmcnt(0)")
    e("v_xor_b32 v13, s61, v16")
    e("v_cmp_gt_u32 vcc, 0x10000, v13")
    e("s_cmp_eq_u64 vcc, -1")
    e(f"s_cbranch_scc1 {ok}")
    e("v_readfirstlane_b32 s79, v15")
    e("s_add_u32 s78, s78, 1")
    e("s_nop 2")
    e("s_cmp_lg_u32 s79, 0")
    e(f"s_cbranch_scc1 {dn}")
    if lw: e("s_sleep 2")
    e("s_cmp_gt_u32 s78, 0x40000")
    e(f"s_cbranch_scc0 {lp}")
    e(f"s_branch {dn}")
    lab(ok)
    e(f"v_mov_b32 v15, {1 + lw}")
    e("ds_or_b32 v14, v15")
    e("s_waitcnt lgkmcnt(0)")
    lab(dn)

def loader(isB, lw):
    lab(f"L_{'B' if isB else 'A'}{lw}")
    vm = VM()
    SO = 32
    e("s_movk_i32 s57, 896")
    e("s_mov_b32 s58, 86016")
    e("v_lshrrev_b32 v3, 3, v2")
    e("v_lshrrev_b32 v4, 4, v2")
    e("v_and_b32 v5, 7, v2")
    e("v_xor_b32 v5, v5, v4")
    e("s_lshl_b32 s3, s25, 7")
    e(f"s_add_u32 s3, s3, {32*lw}")
    e("v_add_u32 v6, s3, v3")
    e("v_mul_u32_u24 v6, 896, v6")
    e("v_lshl_add_u32 v16, v5, 4, v6")
    e("v_xor_b32 v17, 64, v16")
    e("v_add_u32 v17, 7168, v17")
    kvn = [n for n in range(lw, 14, 4)]
    if isB:
        wn = [n for n in range(lw, 21, 4)]
        kvn = [n for n in wn if n < 14]; qn = [n-14 for n in wn if n >= 14]
    else:
        qn = [n for n in range(lw, 7, 4)]
    for j, n in enumerate(kvn): w_voff(8+j, n, False)
    if isB:
        for j, n in enumerate(qn): w_voff(12+j, n, True)
        if lw in (1, 2):
            u = lw - 1
            e("v_lshrrev_b32 v3, 3, v2")
            e("v_lshrrev_b32 v4, 4, v2")
            e("v_and_b32 v5, 7, v2")
            e("v_xor_b32 v5, v5, v4")
            if u: e("v_xor_b32 v5, 4, v5")
            e("s_lshl_b32 s3, s25, 7")
            e("s_sub_u32 s3, s3, 16")
            e("s_max_i32 s3, s3, 0")
            e(f"s_add_u32 s3, s3, {8*u}")
            e("v_add_u32 v6, s3, v3")
            e("v_mul_u32_u24 v6, 896, v6")
            e("v_lshl_add_u32 v18, v5, 4, v6")
    srds(isB)
    stamp(vm, SO + 0)
    def isW(i):
        for j, n in enumerate(kvn): dma(vm, f"c{i}", 8+j, 32, "s83", (B_kv(i) if isB else A_kv(i)) + n*1024)
        if isB:
            for j, n in enumerate(qn): dma(vm, f"c{i}", 12+j, 32, "s83", B_q(i) + n*1024)
    def isX(i):
        xb = B_x(i) if isB else A_x(i)
        for u in range(4):
            dma(vm, f"c{i}", 16 + (u & 1), 28, "s85" if u < 2 else "s86", xb + (2048 if isB else 0) + (4*lw+u)*1024)
        if isB and lw in (1, 2):
            dma(vm, f"c{i}", 18, 28, "s85", xb + (lw-1)*1024)
    flg = FLG_B if isB else FLG_A
    if not isB:
        step_hdr(81); isX(0); isW(0)
        nonce_issue(vm)
        if W0: e("s_waitcnt vmcnt(0)")
        stamp(vm, 36)
        for r in range(4): e(f"v_mov_b32 v{4+r}, 0")
        zs = uid("ZS")
        e("s_cmp_eq_u32 s25, 0")
        e(f"s_cbranch_scc0 {zs}")
        e(f"s_mul_i32 s3, s26, {64*AS}")
        e(f"s_add_u32 s3, s3, 0x{ACC + lw*16*AS:x}")
        e("v_lshrrev_b32 v3, 2, v2")
        e(f"v_mul_u32_u24 v3, {AS}, v3")
        e("v_and_b32 v19, 3, v2")
        e("v_lshl_add_u32 v3, v19, 5, v3")
        e("buffer_store_dwordx4 v[4:7], v3, s[40:43], s3 offen sc0 sc1")
        e("buffer_store_dwordx4 v[4:7], v3, s[40:43], s3 offen offset:16 sc0 sc1")
        lab(zs)
        step_hdr(81); isX(1); isW(1)
        def isQ(i):
            step_hdr(82)
            for j, n in enumerate(qn): dma(vm, "q", 12+j, 32, "s83", A_q(i) + n*1024)
        for i in range(7):
            if i == 0: stamp(vm, 37)
            vm.wait(f"c{i}")
            if i == 0: stamp(vm, 38)
            e("s_barrier")
            if i == 0:
                for j, n in enumerate(qn): capture(w_voff, 12+j, n, True)
                capture(wo_voffs, False)
            if i == 3:
                nonce_get()
                if lw == 0:
                    zs = uid("ZF")
                    e("s_cmp_eq_u32 s25, 0")
                    e(f"s_cbranch_scc0 {zs}")
                    e("s_lshl_b32 s3, s26, 2")
                    e(f"v_mov_b32 v22, {CNT_Z}")
                    e("v_mov_b32 v23, 1")
                    e("s_mov_b64 exec, 1")
                    e("buffer_store_dword v23, v22, s[44:47], s3 offen sc0 sc1")
                    e("s_mov_b64 exec, -1")
                    lab(zs)
            if i <= 4: step_hdr(81); isX(i+2); isW(i+2)
            if i == 4: flush()
            if i == 5:
                for k in range(4): isQ(k)
            if i == 6:
                for k in range(4, 7): isQ(k)
        zl = uid("ZL"); zd = uid("ZD")
        e("s_mov_b32 s78, 0")
        e(f"v_mov_b32 v3, {CNT_Z}")
        e("s_lshl_b32 s3, s26, 2")
        lab(zl)
        e("buffer_load_dword v19, v3, s[44:47], s3 offen sc0 sc1")
        e("s_waitcnt vmcnt(0)")
        e("v_readfirstlane_b32 s79, v19")
        e("s_add_u32 s78, s78, 1")
        e("s_nop 2")
        e("s_cmp_eq_u32 s79, 1")
        e(f"s_cbranch_scc1 {zd}")
        e("s_sleep 1")
        e("s_cmp_gt_u32 s78, 0x40000")
        e(f"s_cbranch_scc0 {zl}")
        lab(zd)
        hh = lw >> 1; et = lw & 1
        e("v_and_b32 v5, 15, v2")
        e("v_lshrrev_b32 v6, 4, v2")
        e("v_lshlrev_b32 v3, 4, v2")
        e(f"v_add_u32 v4, {A_SCR + lw*2048}, v3")
        e(f"s_mul_i32 s3, s26, {64*AS}")
        e(f"s_add_u32 s57, s3, 0x{ACC + lw*16*AS:x}")
        for r in range(1, 4): e(f"s_add_u32 s{50+r}, s57, {r*AS}")
        e(f"s_add_u32 s54, s57, {8*AS}")
        e(f"v_mul_u32_u24 v8, {4*AS}, v6")
        e("v_lshl_add_u32 v8, v5, 2, v8")
        e("v_cmp_gt_u32 s[66:67], 3, v6")
        e("v_cmp_le_u32 s[64:65], 14, v5")
        e("v_cmp_gt_u32 s[68:69], 2, v5")
        e("v_and_b32 v10, 7, v2")
        e("v_lshrrev_b32 v11, 3, v2")
        e(f"v_mul_u32_u24 v9, {AS}, v11")
        e("v_lshl_add_u32 v9, v10, 4, v9")
        e("v_cmp_eq_u32 s[4:5], 3, v10")
        e("v_cmp_eq_u32 s[6:7], 4, v10")
        e("s_or_b64 s[6:7], s[6:7], s[4:5]")
        if et:
            e("v_cmp_gt_u32 s[8:9], 5, v11")
            e("s_and_b64 s[10:11], s[8:9], s[6:7]")
            e("v_cmp_eq_u32 s[12:13], 4, v11")
        else:
            e("s_mov_b64 s[10:11], s[6:7]")
        e("v_and_b32 v12, 3, v10")
        e("v_lshlrev_b32 v12, 4, v12")
        e("v_lshrrev_b32 v10, 2, v10")
        e("v_lshl_add_u32 v12, v10, 3, v12")
        e(f"v_add_u32 v12, {KVB + hh*2048}, v12")
        for j in range(2):
            e(f"v_add_u32 v13, {16*et + 8*j}, v11")
            e("v_mul_u32_u24 v14, 37, v13")
            e("v_lshrrev_b32 v14, 8, v14")
            e("v_mul_u32_u24 v15, 7, v14")
            e("v_sub_u32 v15, v13, v15")
            e("v_lshrrev_b32 v16, 2, v15")
            e("v_and_b32 v15, 3, v15")
            e("v_lshl_add_u32 v15, v14, 2, v15")
            e("v_lshl_add_u32 v15, v16, 4, v15")
            if et and j:
                e("v_cndmask_b32 v15, v15, 19, s[12:13]")
            e(f"v_lshl_add_u32 v{20+j}, v15, 6, v12")
        vm.wait("q")
        e("s_barrier")
        stamp(vm, SO + 1)
        RD = 48
        for dt in range(2):
            for w in range(2):
                r = RD + dt*16 + w*4
                e(f"ds_read_b128 v[{r}:{r+3}], v4 offset:{w*8192 + dt*1024}")
        for dt in range(2):
            e(f"s_waitcnt lgkmcnt({2-2*dt})")
            b = RD + dt*16
            for r in range(4):
                e(f"v_add_f32 v{b+r}, v{b+r}, v{b+4+r}")
            for r in range(4):
                e(f"v_cndmask_b32 v{b+r}, v{b+r}, 1.0, s[{64+4*dt}:{65+4*dt}]")
        for dt in range(2):
            e(f"buffer_atomic_add_f32 v{RD+dt*16}, v8, s[40:43], s57 offen offset:{dt*64} sc1")
        if et: e("s_mov_b64 exec, s[66:67]")
        for r in range(1, 4):
            for dt in range(2):
                e(f"buffer_atomic_add_f32 v{RD+dt*16+r}, v8, s[40:43], s{50+r} offen offset:{dt*64} sc1")
        if et: e("s_mov_b64 exec, -1")
        stamp(vm, SO + 2)
        wo_block(vm, lw, A_WO)
        wo_block(vm, lw + 4, A_WO)
        PR = 80
        lp = uid("KVL"); dn = uid("KVD")
        e("s_mov_b32 s78, 0")
        lab(lp)
        for j in range(2):
            e(f"buffer_load_dwordx4 v[{PR+j*4}:{PR+j*4+3}], v9, s[40:43], s{54 if j else 57} offen sc0 sc1")
        e("s_waitcnt vmcnt(0)")
        e(f"v_cndmask_b32 v13, v{PR}, v{PR+2}, s[4:5]")
        e("v_cmp_eq_f32 vcc, 0x41800000, v13")
        e("s_and_b64 s[14:15], vcc, s[6:7]")
        e(f"v_cndmask_b32 v13, v{PR+4}, v{PR+6}, s[4:5]")
        e("v_cmp_eq_f32 vcc, 0x41800000, v13")
        e("s_and_b64 s[16:17], vcc, s[10:11]")
        e("s_xor_b64 s[14:15], s[14:15], s[6:7]")
        e("s_xor_b64 s[16:17], s[16:17], s[10:11]")
        e("s_or_b64 s[14:15], s[14:15], s[16:17]")
        e(f"s_cbranch_scc0 {dn}")
        e("s_add_u32 s78, s78, 1")
        e("s_cmp_gt_u32 s78, 0x40000")
        e(f"s_cbranch_scc0 {lp}")
        lab(dn)
        for j in range(2):
            r = PR + j*4
            e(f"v_cvt_pk_bf16_f32 v{r}, v{r}, v{r+1}")
            e(f"v_cvt_pk_bf16_f32 v{r+1}, v{r+2}, v{r+3}")
            if et and j: e("s_mov_b64 exec, s[8:9]")
            e(f"ds_write_b64 v{20+j}, v[{r}:{r+1}]")
        if et:
            e("s_mov_b64 exec, s[12:13]")
            for k in range(1, 4):
                e(f"ds_write_b64 v21, v[{PR+4}:{PR+5}] offset:{k*256}")
            e("s_mov_b64 exec, -1")
        e("s_waitcnt lgkmcnt(0)")
        e("s_barrier")
        stamp(vm, SO + 3)
    else:
        step_hdr(81); isX(0); isW(0)
        nonce_issue(vm)
        if W0: e("s_waitcnt vmcnt(0)")
        stamp(vm, 36)
        step_hdr(81); isX(1); isW(1)
        for i in range(7):
            if i == 0: stamp(vm, 37)
            vm.wait(f"c{i}")
            if i == 0: stamp(vm, 38)
            e("s_barrier")
            if i == 0: capture(wo_voffs, True)
            if i == 1: nonce_get()
            if i <= 4: step_hdr(81); isX(i+2); isW(i+2)
            if i == 4: flush()
            if i == 5: wo_block(vm, lw, B_WO)
            if i == 6:
                wo_block(vm, lw + 4, B_WO)
        e("s_waitcnt vmcnt(0)")
        e("s_barrier")
        stamp(vm, SO + 3)
    e(f"s_branch P2_{'B' if isB else 'A'}L")

def tcol(isB, grp, t):
    return (t >> 1)*56 + (t & 1)*(24 if (not isB and grp < 2) else 32)

def accA(grp, rt, t): return 32 + (rt*4+t)*4
def accA2(grp, t, rt): return 32 + (grp-1)*32 + (t*4+rt)*4
def accB(grp, t, r):
    if grp == 0: return 32 + r*8 + t*4
    if grp == 1: return 64 + r*8 + t*4
    return 104 + t*20 + r*4

def comp_setup(isB):
    e("v_lshrrev_b32 v3, 4, v2")
    e("v_bfe_u32 v4, v2, 2, 2")
    e("v_lshl_add_u32 v4, v3, 3, v4")
    e("v_and_b32 v5, 1, v3")
    e("v_lshlrev_b32 v5, 2, v5")
    e("v_add_u32 v6, v4, v5")
    e("v_xor_b32 v7, 4, v6")
    e(f"v_mul_u32_u24 v6, {RS}, v6")
    e(f"v_mul_u32_u24 v7, {RS}, v7")
    e("v_and_b32 v5, 3, v2")
    e("v_lshl_add_u32 v14, v5, 3, v6")
    e("v_lshl_add_u32 v15, v5, 3, v7")
    e("s_and_b32 s49, s48, 1")
    e("s_lshr_b32 s50, s48, 1")
    e("s_mul_i32 s3, s49, 56")
    e("v_add_u32 v12, s3, v14")
    e("v_add_u32 v13, s3, v15")
    e("v_and_b32 v4, 15, v2")
    e("v_lshrrev_b32 v5, 1, v4")
    e("v_xor_b32 v5, v5, v3")
    e("v_lshlrev_b32 v5, 4, v5")
    e("v_lshl_add_u32 v18, v4, 7, v5")
    if isB:
        e("s_lshl_b32 s3, s50, 13")
        e("v_add_u32 v16, s3, v18")
        e("v_xor_b32 v17, 64, v16")
    else:
        e("v_lshl_add_u32 v16, v1, 12, v18")
        e("v_xor_b32 v17, 64, v16")
        e("v_xor_b32 v18, 0x1000, v16")
        e("v_xor_b32 v19, 0x1000, v17")

def gemm(vm, isB):
    lg = LG()
    D = DB if isB else DA
    NB = 12 if isB else 6
    assert D <= (5 if isB else 4)
    def bf(j):
        r = (j % NB)*4 + (0 if isB else 96); k = "a" if isB else "v"
        return (f"{k}[{r}:{r+3}]", f"{k}[{r}:{r+1}]", f"{k}[{r+2}:{r+3}]")
    def xr(ch, kk, rt):
        st = (2*ch + kk) % 3
        if isB: r = 48 + st*20 + rt*4
        elif rt < 2: r = (ch*4 + kk*2 + rt)*4
        else:
            r = 120 + st*8 + (rt-2)*4
            return f"v[{r}:{r+3}]"
        return f"a[{r}:{r+3}]"
    items = []
    for ch in range(7):
        for kk in range(2):
            for grp in ((0, 1, 2) if isB else (1, 2)):
                for t in range(2): items.append((ch, kk, grp, t))
    def sync(ch):
        if ch == 6: vm.wait("pre" if PRE else "non")
        e("s_barrier")
        stamp(vm, 12 + ch)
        wb = 20 + (ch & 1)*2
        kvb = B_kv(ch) if isB else A_kv(ch)
        xb = B_x(ch) if isB else A_x(ch)
        e(f"v_add_u32 v24, {xb}, v16")
        e(f"v_add_u32 v25, {xb}, v17")
        if not isB:
            e(f"v_add_u32 v26, {xb}, v18")
            e(f"v_add_u32 v27, {xb}, v19")
        e(f"v_add_u32 v{wb}, {kvb}, v12")
        e(f"v_add_u32 v{wb+1}, {kvb}, v13")
    def xrd(ch, kk):
        if isB:
            for rt in (1, 2, 3, 4, 0):
                e(f"ds_read_b128 {xr(ch,kk,rt)}, v{24+kk} offset:{rt*2048}")
                lg.issue(f"x{ch}")
        else:
            for rt in range(4):
                e(f"ds_read_b128 {xr(ch,kk,rt)}, v{24+kk+(rt>>1)*2} offset:{(rt&1)*2048}")
                lg.issue(f"x{ch}")
    def rd(j):
        ch, kk, grp, t = items[j]
        if j == 0 or items[j-1][0] != ch: sync(ch)
        if j == 0 or items[j-1][:2] != (ch, kk): xrd(ch, kk)
        wb = 20 + (ch & 1)*2
        if grp == 0: off = KVS + kk*112 + t*32
        else: off = 32*kk*RS + (grp-1)*112 + t*(24 if (not isB and grp == 1) else 32)
        for hf in range(2):
            e(f"ds_read_b64_tr_b16 {bf(j)[1+hf]}, v{wb+hf} offset:{off}")
            lg.issue(f"w{j}")
    for j in range(D): rd(j)
    for j, (ch, kk, grp, t) in enumerate(items):
        if j + D < len(items): rd(j + D)
        lg.wait(f"w{j}")
        tr = isB and grp < 2
        first = (ch == 0 and kk == 0)
        for r in range(5 if (isB and grp) else 4):
            a = accB(grp, t, r) if isB else accA2(grp, t, r)
            x = xr(ch, kk, r + 1 if (isB and grp == 0) else r)
            cc = "0" if first else f"v[{a}:{a+3}]"
            if tr: e(f"v_mfma_f32_16x16x32_bf16 v[{a}:{a+3}], {bf(j)[0]}, {x}, {cc}")
            else: e(f"v_mfma_f32_16x16x32_bf16 v[{a}:{a+3}], {x}, {bf(j)[0]}, {cc}")

def pass2():
    lg = LG()
    D = 6; NB = 12
    items = [(ch, kk, t) for ch in range(7) for kk in range(2) for t in range(4)]
    e(f"v_add_u32 v20, {A_q(0)}, v14")
    e(f"v_add_u32 v21, {A_q(0)}, v15")
    def rd(j):
        ch, kk, t = items[j]
        r = 96 + (j % NB)*4
        off = A_q(ch) - A_q(0) + kk*112 + tcol(False, 0, t)
        for hf in range(2):
            e(f"ds_read_b64_tr_b16 v[{r+2*hf}:{r+2*hf+1}], v{20+hf} offset:{off}")
            lg.issue(f"w{j}")
    for j in range(D): rd(j)
    for j, (ch, kk, t) in enumerate(items):
        if j + D < len(items): rd(j + D)
        lg.wait(f"w{j}")
        r = 96 + (j % NB)*4
        for rt in range(2):
            a = accA(0, rt, t); x = (ch*4 + kk*2 + rt)*4
            cc = "0" if (ch == 0 and kk == 0) else f"v[{a}:{a+3}]"
            e(f"v_mfma_f32_16x16x32_bf16 v[{a}:{a+3}], v[{r}:{r+3}], a[{x}:{x+3}], {cc}")

def tile_addr(isB):
    if isB:
        e("s_lshl_b32 s3, s50, 13")
        e("s_lshl_b32 s27, s49, 10")
        e("s_add_u32 s3, s3, s27")
        e("v_lshlrev_b32 v14, 4, v2")
        e("v_add_u32 v14, s3, v14")
        e("v_add_u32 v15, 0x1000, v14")
    else:
        e("v_lshlrev_b32 v14, 12, v1")
        e("v_lshl_add_u32 v14, v2, 4, v14")
    e("s_lshl_b32 s27, s26, 14")
    e("s_add_u32 s63, s59, s27")
    e(f"s_add_u32 s51, s63, 0x{TLQ:x}")
def tile_regs(isB):
    if isB: return [(14 + (rt >> 1), (rt & 1)*2048, 16 + rt*4) for rt in range(4)]
    return [(14, rt*2048 + hh*1024, 16 + (hh*2+rt)*4) for hh in range(2) for rt in range(2)]
def tile_store(isB, q, vm=None):
    for (va, off, n) in tile_regs(isB):
        if q: e(f"buffer_store_dwordx4 v[{n}:{n+3}], v{va}, s[40:43], s51 offen offset:{off} sc0 sc1")
        else: e(f"buffer_store_dwordx4 v[{n}:{n+3}], v{va}, s[40:43], s63 offen offset:{off}")
        if vm: vm.issue("Q")

def epi_A(vm):
    c("---- A epilogue ----")
    e("v_and_b32 v5, 15, v2")
    e("v_lshrrev_b32 v6, 4, v2")
    e("v_cmp_le_u32 s[64:65], 12, v5")
    e("v_mov_b32 v7, 0x3f803f80")
    e("s_lshl_b32 s3, s48, 12")
    e(f"s_add_u32 s3, s3, {A_SCR}")
    e("v_lshlrev_b32 v3, 4, v2")
    e("v_add_u32 v4, s3, v3")
    e("s_nop 7")
    PK = 96; VV = 112; TT = 128; KP = 32
    for t in range(2):
        for pr in range(2):
            sq = []
            for r2 in range(2):
                a = accA2(1, t, pr*2 + r2)
                d = PK + (t*2+pr)*4 + r2*2
                sq.append(phi_pair(d, a, a+1, TT + r2*4))
                sq.append(phi_pair(d + 1, a+2, a+3, TT + r2*4 + 2))
            ilv(sq)
    for t in range(2):
        for rt in range(4):
            a = accA2(2, t, rt)
            d = VV + t*8 + rt*2
            e(f"v_cvt_pk_bf16_f32 v{d}, v{a}, v{a+1}")
            e(f"v_cvt_pk_bf16_f32 v{d+1}, v{a+2}, v{a+3}")
            if t & 1:
                e(f"v_cndmask_b32 v{d}, v{d}, v7, s[64:65]")
                e(f"v_cndmask_b32 v{d+1}, v{d+1}, v7, s[64:65]")
    e("s_nop 1")
    for pr in range(2):
        for et in range(2):
            for dt in range(2):
                d = KP + (et*2 + dt)*4
                va = VV + (et*2+pr)*4; pk = PK + (dt*2+pr)*4
                cc = "0" if pr == 0 else f"v[{d}:{d+3}]"
                e(f"v_mfma_f32_16x16x32_bf16 v[{d}:{d+3}], v[{va}:{va+3}], v[{pk}:{pk+3}], {cc}")
    e("s_nop 7")
    for i in range(4):
        e("s_nop 3")
        e(f"ds_write_b128 v4, v[{KP+i*4}:{KP+i*4+3}] offset:{i*1024}")
    e("s_waitcnt lgkmcnt(0)")
    e("s_barrier")
    stamp(vm, 4)
    pass2()
    stamp(vm, 7)
    nonce_get()
    QF = 64
    e("v_cmp_eq_u32 s[10:11], 3, v6")
    e("v_cmp_eq_u32 s[12:13], 0, v6")
    e("v_lshlrev_b32 v10, 6, v5")
    e("v_lshl_add_u32 v10, v6, 4, v10")
    e(f"v_add_u32 v10, {KVB}, v10")
    tile_addr(False)
    e("v_mov_b32 v11, 0xffff")
    e("s_nop 3")
    for t in range(4):
        sq = []
        for rt in range(2):
            a = accA(0, rt, t)
            d = QF + (rt*2 + (t >> 1))*4 + (t & 1)*2
            s0 = phi_pair(d, a, a+1, TT + rt*4)
            s1 = phi_pair(d+1, a+2, a+3, TT + rt*4 + 2)
            if t & 1: s0.append(f"v_cndmask_b32 v{d}, v{d}, 0, s[12:13]")
            else: s1.append(f"v_cndmask_b32 v{d+1}, v{d+1}, 0, s[10:11]")
            sq += [s0, s1]
        ilv(sq)
    e("s_barrier")
    stamp(vm, 10)
    R = 80
    for hh in range(2):
        for f in range(2):
            r = R + (hh*2+f)*4
            e(f"ds_read_b128 v[{r}:{r+3}], v10 offset:{hh*2048 + f*1024}")
    NR = 96
    for hh in range(2):
        e(f"s_waitcnt lgkmcnt({2 - 2*hh})")
        for rt in range(2):
            n = NR + (hh*2+rt)*8
            q = QF + (rt*2+hh)*4
            for f in (1, 0):
                r = R + (hh*2+f)*4
                e(f"v_mfma_f32_16x16x32_bf16 v[{n+f*4}:{n+f*4+3}], v[{r}:{r+3}], v[{q}:{q+3}], 0")
    e("s_nop 7")
    sq = []; regs = []
    for hh in range(2):
        for rt in range(2):
            n = NR + (hh*2+rt)*8
            t = TT + (hh*2+rt)*2
            o = [f"v_add_f32 v{t}, 0x{EPS:x}, v{n+7}",
                 f"v_rcp_f32 v{t}, v{t}",
                 f"v_mov_b32 v{t+1}, v{t}"]
            for q in range(3):
                o.append(f"v_pk_mul_f32 v[{n+2*q}:{n+2*q+1}], v[{n+2*q}:{n+2*q+1}], v[{t}:{t+1}]")
            o.append(f"v_mul_f32 v{n+6}, v{n+6}, v{t}")
            T = 16 + (hh*2+rt)*4
            for q in range(3):
                o.append(f"v_cvt_pk_bf16_f32 v{T+q}, v{n+2*q}, v{n+2*q+1}")
            o.append(f"v_cvt_pk_bf16_f32 v{T+3}, v{n+6}, v{n+6}")
            o.append(f"v_and_or_b32 v{T+3}, v{T+3}, v11, s61")
            sq.append(o)
    ilv(sq)
    tile_store(False, False)
    stamp(vm, 5, 4)

def epi_B(vm):
    c("---- B epilogue ----")
    e("v_and_b32 v5, 15, v2")
    e("v_lshrrev_b32 v6, 4, v2")
    e("v_cmp_gt_u32 s[64:65], 3, v6")
    nonce_get()
    e("v_and_b32 v9, 1, v5")
    e("v_cmp_eq_u32 s[4:5], 1, v9")
    e("v_mov_b32 v10, 0xffff")
    e("v_mov_b32 v11, 0xffff0000")
    e("v_cndmask_b32 v12, v10, v11, s[4:5]")
    e("v_lshl_add_u32 v11, v6, 2, v9")
    e("v_sub_u32 v11, v11, v5")
    def KF(blk): return 64 + blk*8
    def QF(rt): return 32 + rt*8
    def VB(et): return 104 + et*20
    def cvt4(b):
        for q in range(4): e(f"v_cvt_pk_bf16_f32 v{b+q}, v{b+2*q}, v{b+2*q+1}")
    def C0(cb): return 32 + cb*8 + 4
    def C1(cb): return 64 + cb*8 + 4
    for rt in range(4):
        b = QF(rt)
        cvt4(b)
        e(f"v_cndmask_b32 v{b+2}, 0, v{b+2}, s[64:65]")
        e(f"v_cndmask_b32 v{b+3}, 0, v{b+3}, s[64:65]")
    for blk in range(5): cvt4(KF(blk))
    e("s_nop 1")
    for rt in range(4):
        q = QF(rt)
        for ti in range(2):
            k = KF(rt + ti)
            d = C0(rt) if ti == 0 else C1(rt)
            e(f"v_mfma_f32_16x16x32_bf16 v[{d}:{d+3}], v[{k}:{k+3}], v[{q}:{q+3}], 0")
    e("s_barrier")
    for et in range(2):
        b = VB(et)
        for blk in range(5):
            e(f"v_cvt_pk_bf16_f32 v{b+2*blk}, v{b+4*blk}, v{b+4*blk+1}")
            e(f"v_cvt_pk_bf16_f32 v{b+2*blk+1}, v{b+4*blk+2}, v{b+4*blk+3}")
    for k in range(4):
        addk = 2*k if k < 2 else 16 + 2*(k-2)
        e(f"v_add_u32 v13, {addk}, v11")
        e(f"v_cmp_le_i32 s[{6+2*k}:{7+2*k}], 2, v13")
        e(f"v_cmp_ge_i32 vcc, 16, v13")
        e(f"s_and_b64 s[{6+2*k}:{7+2*k}], s[{6+2*k}:{7+2*k}], vcc")
    e("s_or_b32 s3, s25, s50")
    e("s_cmp_eq_u32 s3, 0")
    e("s_cselect_b64 s[14:15], 0, -1")
    e("s_and_b64 s[16:17], s[6:7], s[14:15]")
    e("s_and_b64 s[18:19], s[8:9], s[14:15]")
    e("v_mov_b32 v13, 0xce6e6b28")
    e(f"s_mov_b32 s20, 0x{SC2:x}")
    tile_addr(True)
    e("v_cmp_eq_u32 s[68:69], 3, v6")
    def seq(cb):
        lgr = [C0(cb), C0(cb)+2, C1(cb), C1(cb)+2]
        m = C1(cb)+1; m2 = C1(cb)+3
        o = []
        for k in range(4):
            o.append(f"v_cndmask_b32 v{lgr[k]}, v{lgr[k]}, v{lgr[k]+1}, s[4:5]")
        for k in range(4):
            ms = (16 + 2*k) if (cb == 0 and k < 2) else (6 + 2*k)
            o.append(f"v_cndmask_b32 v{lgr[k]}, v13, v{lgr[k]}, s[{ms}:{ms+1}]")
        o.append(f"v_max3_f32 v{m}, v{lgr[0]}, v{lgr[1]}, v{lgr[2]}")
        o.append(f"v_max_f32 v{m}, v{m}, v{lgr[3]}")
        o.append(f"v_mov_b32 v{m2}, v{m}")
        o.append(f"v_permlane16_swap_b32 v{m}, v{m2}")
        o.append(f"v_max_f32 v{m}, v{m}, v{m2}")
        o.append(f"v_mov_b32 v{m2}, v{m}")
        o.append(f"v_permlane32_swap_b32 v{m}, v{m2}")
        o.append(f"v_max_f32 v{m}, v{m}, v{m2}")
        o.append(f"v_mul_f32 v{m}, 0x{SC2 ^ 0x80000000:x}, v{m}")
        for k in range(4):
            o.append(f"v_fma_f32 v{lgr[k]}, v{lgr[k]}, s20, v{m}")
        for k in range(4):
            o.append(f"v_exp_f32 v{lgr[k]}, v{lgr[k]}")
        o.append(f"v_add_f32 v{m}, v{lgr[0]}, v{lgr[1]}")
        o.append(f"v_add_f32 v{m2}, v{lgr[2]}, v{lgr[3]}")
        o.append(f"v_add_f32 v{m}, v{m}, v{m2}")
        o.append(f"v_mov_b32 v{m2}, v{m}")
        o.append(f"v_permlane16_swap_b32 v{m}, v{m2}")
        o.append(f"v_add_f32 v{m}, v{m}, v{m2}")
        o.append(f"v_mov_b32 v{m2}, v{m}")
        o.append(f"v_permlane32_swap_b32 v{m}, v{m2}")
        o.append(f"v_add_f32 v{m}, v{m}, v{m2}")
        o.append(f"v_rcp_f32 v{m}, v{m}")
        for k in range(4):
            o.append(f"v_mul_f32 v{lgr[k]}, v{lgr[k]}, v{m}")
            o.append(f"v_cvt_pk_bf16_f32 v{C0(cb)+k}, v{lgr[k]}, v{lgr[k]}")
            o.append(f"v_and_b32 v{C0(cb)+k}, v{C0(cb)+k}, v12")
        return o
    ilv([seq(cb) for cb in range(4)])
    e("s_nop 1")
    for rt in range(4):
        for et in (1, 0):
            o = QF(rt) if et == 0 else C1(rt)
            v = VB(et) + 2*rt
            e(f"v_mfma_f32_16x16x32_bf16 v[{o}:{o+3}], v[{v}:{v+3}], v[{C0(rt)}:{C0(rt)+3}], 0")
    e("s_nop 7")
    sq = []; regs = []
    for rt in range(4):
        o0 = QF(rt); o1 = C1(rt); t = C0(rt)
        T = 16 + rt*4
        o = [f"v_mov_b32 v{t}, v{o1+3}",
             f"v_cvt_pk_bf16_f32 v{T}, v{o0}, v{o0+1}",
             f"v_permlane32_swap_b32 v{t+1}, v{t}",
             f"v_permlane16_swap_b32 v{t+2}, v{o1+3}",
             f"v_cvt_pk_bf16_f32 v{T+1}, v{o0+2}, v{o0+3}",
             f"v_permlane16_swap_b32 v{t+3}, v{t+1}",
             f"v_cndmask_b32 v{o1+2}, v{o1+2}, v{t+2}, s[68:69]",
             f"v_cndmask_b32 v{o1+1}, v{o1+1}, v{t+1}, s[68:69]",
             f"v_cndmask_b32 v{o1}, v{o1}, v{t+3}, s[68:69]",
             f"v_cvt_pk_bf16_f32 v{T+3}, v{o1+2}, v{o1+2}",
             f"v_cvt_pk_bf16_f32 v{T+2}, v{o1}, v{o1+1}",
             f"v_and_or_b32 v{T+3}, v{T+3}, v10, s61"]
        sq.append(o)
    ilv(sq)
    tile_store(True, False)
    stamp(vm, 5, 4)

NP = int(os.environ.get("NP", "64"))
LAG = int(os.environ.get("LAG", "5"))
def p2(isB, isC):
    lab(f"P2_{'B' if isB else 'A'}{'C' if isC else 'L'}")
    c("---- P2 (8 waves, 16 rows each) ----")
    wo = B_WO if isB else A_WO
    e("v_and_b32 v12, 7, v2")
    e("v_lshlrev_b32 v12, 14, v12")
    e("v_bfe_u32 v13, v2, 3, 1")
    e("v_lshl_add_u32 v12, v13, 10, v12")
    e("v_bfe_u32 v13, v2, 4, 1")
    e("v_mul_u32_u24 v13, 1008, v13")
    e("v_add_u32 v12, v12, v13")
    e("v_lshl_add_u32 v12, v1, 11, v12")
    e(f"s_add_u32 s57, s59, 0x{TLQ:x}")
    e("s_mov_b32 s62, s59")
    e("s_mov_b64 exec, 0xffffffff")
    e(f"buffer_load_dword v7, v12, s[40:43], s62 offen offset:12 {PPOL}")
    e("s_mov_b64 exec, -1")
    e("v_lshrrev_b32 v3, 4, v2")
    e("v_lshrrev_b32 v9, 1, v3")
    e("v_bfe_u32 v10, v2, 2, 2")
    e("v_mul_u32_u24 v11, 14, v9")
    e("v_and_b32 v4, 1, v3")
    e("v_lshl_add_u32 v13, v4, 2, v11")
    e("v_add_u32 v13, v13, v10")
    e("v_mul_u32_u24 v5, 3, v4")
    e("v_min_u32 v10, 2, v10")
    e("v_add3_u32 v11, v11, v5, v10")
    e("v_add_u32 v11, 8, v11")
    e("v_and_b32 v5, 3, v2")
    e("v_lshlrev_b32 v5, 3, v5")
    e(f"v_add_u32 v5, {wo}, v5")
    e(f"v_mul_u32_u24 v10, {RS}, v13")
    e("v_add_u32 v10, v10, v5")
    e(f"v_mul_u32_u24 v11, {RS}, v11")
    e("v_add_u32 v11, v11, v5")
    stream = [0, 2, 4, 6, 8, 10, 12, 14, 15]
    resid = [1, 3, 5, 7, 9, 11, 13]
    def wreg(h, nt):
        if h in resid: return "a", resid.index(h)*16 + nt*4
        return "v", (48, 128)[stream.index(h) % 2] + nt*4
    def rdh(h, lg=None):
        ho = (h & 7)*7168 + (h >> 3)*112
        for nt in range(4):
            k, r = wreg(h, nt)
            e(f"ds_read_b64_tr_b16 {k}[{r}:{r+1}], v10 offset:{ho + nt*32}")
            e(f"ds_read_b64_tr_b16 {k}[{r+2}:{r+3}], v11 offset:{ho + nt*32}")
            if lg: lg.issue(f"h{h}"); lg.issue(f"h{h}")
    lg = LG()
    for h in [0, 1, 2] + resid[1:]: rdh(h, lg)
    e("v_and_b32 v5, 15, v2")
    e("v_lshl_add_u32 v5, v1, 4, v5")
    e("v_lshlrev_b32 v6, 11, v1")
    e("v_lshl_add_u32 v6, v2, 4, v6")
    e("s_lshl_b32 s3, s25, 7")
    e("v_add_u32 v5, s3, v5")
    e("v_mul_u32_u24 v8, 1792, v5")
    e("v_lshl_add_u32 v8, v4, 5, v8")
    e("v_lshl_add_u32 v8, v9, 4, v8")
    e("s_mul_i32 s3, s24, 896")
    e("s_add_u32 s3, s3, s56")
    e("v_add_u32 v8, s3, v8")
    e("v_cmp_ne_u32 s[64:65], 3, v3")
    e("s_mov_b32 s78, 0")
    e("v_mov_b32 v13, 0")
    e("s_waitcnt vmcnt(0)")
    e("v_xor_b32 v7, s61, v7")
    e("v_cmp_gt_u32 vcc, 0x10000, v7")
    e("s_mov_b32 s79, vcc_lo")
    OFR = 64
    def mm(h, lg_, w):
        if w: e(w)
        r = OFR + h*4
        e(f"v_xor_b32 v{r+3}, s61, v{r+3}")
        e(f"v_max_u32 v13, v13, v{r+3}")
        for nt in range(4):
            a = 32 + nt*4
            k, wr = wreg(h, nt)
            cc = "0" if h == 0 else f"v[{a}:{a+3}]"
            e(f"v_mfma_f32_16x16x32_bf16 v[{a}:{a+3}], {k}[{wr}:{wr+3}], v[{r}:{r+3}], {cc}")
        if h in stream and stream.index(h) + 2 < len(stream): rdh(stream[stream.index(h) + 2], lg_)
    vm = VM()
    def M(k):
        for h in (2*k, 2*k+1):
            mm(h, lg, f"s_waitcnt vmcnt({vm.n(f'L{h}')}) lgkmcnt({lg.n(f'h{h}')})")
    for i in range(8):
        ck = uid("CK"); go = uid("GO"); nf = uid("NF")
        msk = 0x01010101 << i
        lab(ck)
        e(f"s_and_b32 s3, s79, 0x{msk:x}")
        e(f"s_cmp_eq_u32 s3, 0x{msk:x}")
        e(f"s_cbranch_scc1 {go}")
        e("s_add_u32 s78, s78, 1")
        e(f"s_cmp_eq_u32 s78, {NP}")
        e(f"s_cbranch_scc0 {nf}")
        e("s_mov_b32 s62, s57")
        if isC: tile_store(isB, True)
        lab(nf)
        e("s_mov_b64 exec, 0xffffffff")
        e(f"buffer_load_dword v7, v12, s[40:43], s62 offen offset:12 {PPOL}")
        e("s_waitcnt vmcnt(0)")
        e("v_xor_b32 v7, s61, v7")
        e("v_cmp_gt_u32 vcc, 0x10000, v7")
        e("s_mov_b32 s79, vcc_lo")
        e("s_mov_b64 exec, -1")
        e("s_cmp_gt_u32 s78, 0x40000")
        e(f"s_cbranch_scc0 {ck}")
        lab(go)
        e(f"s_add_u32 s58, s62, {i*16384}")
        for h in (2*i, 2*i+1):
            r = OFR + h*4
            e(f"buffer_load_dwordx4 v[{r}:{r+3}], v6, s[40:43], s58 offen offset:{(h&1)*1024}")
            vm.issue(f"L{h}")
        if i == 7:
            if STAMP:
                stamp(vm, 6, 4)
                e("v_mov_b32 v4, s78")
                e("s_lshl_b32 s74, s2, 8")
                e(f"s_add_u32 s74, s74, {STB + 20*4}")
                e("v_mov_b32 v5, 0")
                e("buffer_store_dword v4, v5, s[40:43], s74 offen")
                vm.issue("stamp")
            if isC and not NOQ: tile_store(isB, True, vm)
        if i - LAG >= 0: M(i - LAG)
    for k in range(8 - LAG, 8): M(k)
    e("v_cmp_gt_u32 vcc, 0x10000, v13")
    e("s_cmp_eq_u64 vcc, -1")
    ok = uid("P2OK"); rt_ = uid("P2RT")
    if STAMP:
        e("s_cselect_b32 s95, 1, 0")
        stamp(None, 11, 4)
        e("s_cmp_eq_u32 s95, 1")
    e(f"s_cbranch_scc1 {ok}")
    e("s_mov_b32 s78, 0")
    lab(rt_)
    stamp(None, 8, 4)
    e("s_waitcnt vmcnt(0)")
    e("s_nop 7")
    lg2 = LG()
    e("s_mov_b32 s58, s57")
    for h in range(16):
        r = OFR + h*4
        e(f"buffer_load_dwordx4 v[{r}:{r+3}], v6, s[40:43], s58 offen offset:{(h&1)*1024} sc0 sc1")
        if h & 1 and h < 15: e("s_add_u32 s58, s58, 16384")
    e("v_mov_b32 v13, 0")
    for h in stream[:2]: rdh(h)
    e("s_waitcnt lgkmcnt(0)")
    for h in range(16):
        w = f"s_waitcnt vmcnt({15-h})"
        if h in stream[2:]: w += f" lgkmcnt({lg2.n(f'h{h}')})"
        mm(h, lg2, w)
    e("v_cmp_gt_u32 vcc, 0x10000, v13")
    e("s_cmp_eq_u64 vcc, -1")
    e(f"s_cbranch_scc1 {ok}")
    e("s_add_u32 s78, s78, 1")
    e("s_cmp_gt_u32 s78, 0x4000")
    e(f"s_cbranch_scc0 {rt_}")
    lab(ok)
    if isC:
        sk = uid("NS")
        e("s_or_b32 s3, s26, s48")
        e("s_cmp_eq_u32 s3, 0")
        e(f"s_cbranch_scc0 {sk}")
        e("v_mov_b32 v12, 0")
        e("v_mov_b32 v13, s93")
        e("buffer_store_dword v13, v12, s[40:43], s60 offen sc0 sc1")
        lab(sk)
    e("s_nop 7")
    for nt in range(4):
        a = 32 + nt*4
        d = 48 + (nt >> 1)*4 + (nt & 1)*2
        e(f"v_cvt_pk_bf16_f32 v{d}, v{a}, v{a+1}")
        e(f"v_cvt_pk_bf16_f32 v{d+1}, v{a+2}, v{a+3}")
    e("s_nop 1")
    for pr in range(2):
        d = 48 + pr*4
        e(f"v_permlane16_swap_b32 v{d}, v{d+2}")
        e(f"v_permlane16_swap_b32 v{d+1}, v{d+3}")
    e("s_nop 1")
    e("buffer_store_dwordx4 v[48:51], v8, s[88:91], 0 offen")
    e("s_mov_b64 exec, s[64:65]")
    e("buffer_store_dwordx4 v[52:55], v8, s[88:91], 0 offen offset:64")
    e("s_mov_b64 exec, -1")
    stamp(None, 9, 4)
    e("s_endpgm")

def compute(isB):
    lab("C_B" if isB else "C_A")
    vm = VM()
    comp_setup(isB)
    srds(isB)
    stamp(vm, 0)
    nonce_issue(vm)
    if PRE:
        e("s_mul_i32 s3, s25, 229376")
        e("s_mul_i32 s27, s24, 896")
        e("s_add_u32 s3, s3, s27")
        e("buffer_load_dword v30, v3, s[88:91], s3 offen"); vm.issue("pre")
        e("buffer_load_dword v30, v3, s[36:39], s56 offen"); vm.issue("pre")
        e("buffer_load_dword v30, v3, s[40:43], s59 offen"); vm.issue("pre")
        e(f"s_add_u32 s3, s59, 0x{TLQ:x}")
        e("buffer_load_dword v30, v3, s[40:43], s3 offen"); vm.issue("pre")
    gemm(vm, isB)
    stamp(vm, 3)
    if isB: epi_B(vm)
    else: epi_A(vm)
    p2(isB, True)
    p2(isB, False)

def kernel():
    lab(f"{NAME}_kernel")
    prologue()
    for lw in range(4): loader(False, lw)
    for lw in range(4): loader(True, lw)
    compute(False)
    compute(True)
    lab("K_END")
    e("s_endpgm")

HDR = open("cdna_kernels/" + NAME + ".s.ref").read().split("; @launch")[0]
kernel()
out = HDR
out += f"; @launch grid=(256,1,1) block=(512,1,1) lds={LDS_TOTAL}\n"
out += '.amdgcn_target "amdgcn-amd-amdhsa--gfx950"\n.text\n'
out += f".globl {NAME}_kernel\n.p2align 8\n.type {NAME}_kernel,@function\n"
out += "\n".join(L) + "\n"
out += f""".section .rodata,"a"
.p2align 6
.amdhsa_kernel {NAME}_kernel
  .amdhsa_next_free_vgpr 256
  .amdhsa_next_free_sgpr 96
  .amdhsa_accum_offset 144
  .amdhsa_group_segment_fixed_size 0
  .amdhsa_kernarg_size 72
  .amdhsa_user_sgpr_count 2
  .amdhsa_user_sgpr_kernarg_segment_ptr 1
  .amdhsa_system_sgpr_workgroup_id_x 1
.end_amdhsa_kernel
"""
path = sys.argv[1] if len(sys.argv) > 1 else f"cdna_kernels/{NAME}.s"
open(path, "w").write(out)
```

```python
import sys, os, struct
NAME = "concat_heads__linear_attn_block__sliding_local_dilated__prompt"
TLP = 0
TLQ = int(os.environ.get("TLQ", "0x400000"), 0)
OPOL = os.environ.get("OPOL", "")
ACC = 0xa00000
NON = 0x800000
AS = int(os.environ.get("AS", "128"))
WS_END = 0xa00000 + 512*AS
STAMP = os.environ.get("STAMP") in ("1", "2")
RT = os.environ.get("STAMP") == "2"
STB = 0x900000
LOG2E = 0x3FB8AA3B
EPS = 0x358637BD
for s in range(64*21): assert (s * 4682) >> 16 == s // 14
for s in range(32): assert (s * 37) >> 8 == s // 7
RS = 224
KVS = 14336; QS = 7168; XS = 16384
LDS_TOTAL = 163840
ROT = os.environ.get("ROT", "1") == "1"
PPOL = os.environ.get("PPOL", "sc0 sc1")
W0 = os.environ.get("W0") == "1"
PRE = os.environ.get("PRE", "1") == "1"
NOQ = os.environ.get("NOQ") == "1"
L1X = os.environ.get("L1X") == "1"
DA = int(os.environ.get("DA", "4"))
DB = int(os.environ.get("DB", "5"))
def f2u(x): return struct.unpack('<I', struct.pack('<f', x))[0]
SC2 = f2u(28 ** -0.5 * 1.4426950408889634)
CNT_Z = 40 * 4
WB = 6272
def A_kv(i): return (i % 5) * 30720
def A_x(i): return (i % 5) * 30720 + KVS
def A_q(i): return 61440 + i*QS
UP = 111616
def A_wo(h): return h*WB if h < 8 else UP + (h-8)*WB
def A_scr(lw): return A_wo(12 + lw)
KVB = 50176
B_WSL = [140288, 0, 21504, 118784]
def B_kv(i): return B_WSL[i % 4]
def B_q(i): return B_WSL[i % 4] + KVS
def B_x(i): return 43008 + (i % 3) * 18432
def B_wo(h): return 61440 + h*WB
assert B_wo(8) == UP
FLG = 161792
RED_A = 61440; RED_B = 0
EPO = NON + 0x10000

L = []
def e(s): L.append("    " + s)
def lab(s): L.append(s + ":")
def c(s): L.append("    ; " + s)
_uid = [0]
def uid(p):
    _uid[0] += 1
    return f"{p}_{_uid[0]}"

class CNT:
    def __init__(self, kind, mx): self.ops = []; self.kind = kind; self.mx = mx
    def issue(self, tag): self.ops.append(tag)
    def n(self, tag):
        idx = max(i for i, t in enumerate(self.ops) if t == tag)
        return min(len(self.ops) - 1 - idx, self.mx)
    def wait(self, tag): e(f"s_waitcnt {self.kind}({self.n(tag)})")
def VM(): return CNT("vmcnt", 63)
def LG(): return CNT("lgkmcnt", 15)

def stamp(vm, i, r=28):
    if not STAMP: return
    e("s_memrealtime s[72:73]" if RT else "s_memtime s[72:73]")
    e("s_waitcnt lgkmcnt(0)")
    e(f"v_mov_b32 v{r}, s72")
    e("s_lshl_b32 s74, s2, 8")
    e(f"s_add_u32 s74, s74, {STB + i*4}")
    e(f"v_and_b32 v{r+1}, 0xff, v0")
    e(f"v_cmp_eq_u32 s[76:77], 0, v{r+1}")
    e("s_mov_b64 exec, s[76:77]")
    e(f"buffer_store_dword v{r}, v{r+1}, s[40:43], s74 offen")
    e("s_mov_b64 exec, -1")
    if vm is not None: vm.issue("stamp")

def phi_pair(dst, a, b, t):
    assert b == a + 1 and a % 2 == 0 and t % 2 == 0
    return [f"v_pk_mul_f32 v[{t}:{t+1}], v[{a}:{b}], s[70:71]",
            f"v_exp_f32 v{t}, v{t} clamp",
            f"v_exp_f32 v{t+1}, v{t+1} clamp",
            f"v_max_f32 v{a}, 0, v{a}",
            f"v_max_f32 v{b}, 0, v{b}",
            f"v_pk_add_f32 v[{t}:{t+1}], v[{t}:{t+1}], v[{a}:{b}]",
            f"v_cvt_pk_bf16_f32 v{dst}, v{t}, v{t+1}"]
def ilv(seqs):
    for i in range(max(len(q) for q in seqs)):
        for q in seqs:
            if i < len(q): e(q[i])

def srd(base, lo, hi, nbytes):
    e(f"s_mov_b32 s{base}, s{lo}")
    e(f"s_and_b32 s{base+1}, s{hi}, 0xffff")
    e(f"s_mov_b32 s{base+2}, 0x{nbytes:x}")
    e(f"s_mov_b32 s{base+3}, 0x20000")

def srds(isB):
    e("s_waitcnt lgkmcnt(0)")
    o = 6 if isB else 0
    srd(32, 6+o, 7+o, 448*2688)
    srd(28, 4+o, 5+o, 2048*896)
    srd(40, 20, 21, WS_END)
    srd(36, 8+o, 9+o, 448*896)
    srd(44, 18, 19, 256)
    srd(88, 16, 17, 2048*1792)

def prologue():
    e("s_cmp_ge_u32 s2, 256")
    e("s_cbranch_scc1 K_END")
    e("s_load_dwordx4 s[4:7], s[0:1], 0")
    e("s_load_dwordx4 s[8:11], s[0:1], 16")
    e("s_load_dwordx4 s[12:15], s[0:1], 32")
    e("s_load_dwordx4 s[16:19], s[0:1], 48")
    e("s_load_dwordx2 s[20:21], s[0:1], 64")
    e("v_lshrrev_b32 v1, 6, v0")
    e("v_and_b32 v2, 63, v0")
    e("v_readfirstlane_b32 s48, v1")
    e("s_and_b32 s22, s2, 7")
    e("s_lshr_b32 s23, s2, 3")
    e("s_lshr_b32 s24, s22, 2")
    e("s_and_b32 s27, s22, 3")
    e("s_lshl_b32 s25, s27, 2")
    e("s_and_b32 s3, s23, 3")
    e("s_add_u32 s25, s25, s3")
    e("s_lshr_b32 s26, s23, 2")
    e("s_mul_i32 s56, s26, 112")
    e("s_lshr_b32 s55, s26, 1")
    e("s_mul_i32 s55, s55, 224")
    e("s_getreg_b32 s92, hwreg(HW_REG_XCC_ID)")
    e("s_and_b32 s92, s92, 15")
    e(f"s_mov_b32 s70, 0x{LOG2E:x}")
    e(f"s_mov_b32 s71, 0x{LOG2E:x}")
    e("s_lshl_b32 s60, s24, 4")
    e("s_add_u32 s60, s60, s25")
    e("s_lshl_b32 s59, s60, 17")
    e("s_lshl_b32 s60, s60, 7")
    e(f"s_add_u32 s60, s60, 0x{NON:x}")
    if ROT:
        e("s_mul_i32 s3, s23, 37")
        e("s_lshr_b32 s3, s3, 8")
        e("s_mul_i32 s3, s3, 7")
        e("s_sub_u32 s81, s23, s3")
    else:
        e("s_mov_b32 s81, 0")
    e("s_mov_b32 s82, s81")
    e("s_lshl_b32 s3, s24, 3")
    e("s_add_u32 s3, s3, s48")
    e("s_cmp_lt_u32 s3, 4")
    e("s_cbranch_scc1 C_A")
    for lw in range(4):
        e(f"s_cmp_eq_u32 s3, {4+lw}")
        e(f"s_cbranch_scc1 L_A{lw}")
    e("s_cmp_lt_u32 s3, 12")
    e("s_cbranch_scc1 C_B")
    for lw in range(3):
        e(f"s_cmp_eq_u32 s3, {12+lw}")
        e(f"s_cbranch_scc1 L_B{lw}")
    e("s_branch L_B3")

def nonce_issue(vm):
    e("v_mov_b32 v3, 0")
    e("buffer_load_dword v31, v3, s[40:43], s60 offen sc0 sc1")
    vm.issue("non")
def nonce_get():
    e("v_readfirstlane_b32 s93, v31")
    e("s_nop 3")
    e("s_add_u32 s93, s93, 16")
    e("s_and_b32 s61, s93, 0xfff0")
    e("s_or_b32 s61, s61, s92")
    e("s_lshl_b32 s61, s61, 16")

def div14(n):
    e(f"v_add_u32 v3, {64*n}, v2")
    e("v_mul_u32_u24 v4, 4682, v3")
    e("v_lshrrev_b32 v4, 16, v4")
    e("v_mul_u32_u24 v5, 14, v4")
    e("v_sub_u32 v3, v3, v5")
    e("v_cmp_lt_u32 vcc, 6, v3")
    e("v_cndmask_b32 v5, 0, 1, vcc")
    e("v_mul_u32_u24 v6, 7, v5")
    e("v_sub_u32 v3, v3, v6")

def w_voff(dst, n, isq):
    div14(n)
    e("v_lshrrev_b32 v6, 1, v4")
    e("v_and_b32 v6, 4, v6")
    e("v_xor_b32 v4, v4, v6")
    e("v_mul_u32_u24 v4, 2688, v4")
    if isq:
        e("v_mul_u32_u24 v5, s58, v5")
        e("v_lshl_add_u32 v3, v3, 4, v4")
        e(f"v_add_u32 v{dst}, v3, v5")
    else:
        e("v_mul_u32_u24 v5, 896, v5")
        e("v_lshl_add_u32 v3, v3, 4, v4")
        e(f"v_add3_u32 v{dst}, v3, v5, s57")

def step_hdr(sr):
    e(f"s_mul_i32 s83, s{sr}, 172032")
    e("s_add_u32 s83, s83, s56")
    e(f"s_lshl_b32 s85, s{sr}, 7")
    e("s_add_u32 s86, s85, 14336")
    e(f"s_add_u32 s{sr}, s{sr}, 1")
    e(f"s_cmp_eq_u32 s{sr}, 7")
    e(f"s_cselect_b32 s{sr}, 0, s{sr}")

FILL = []
FN = int(os.environ.get("FN", "12"))
def capture(fn, *a):
    global L
    sv = L; L = []
    fn(*a)
    r = L; L = sv
    FILL.extend(r)
def flush(n=10**9):
    while FILL and n > 0:
        L.append(FILL.pop(0)); n -= 1
def dma(vm, tag, voff, srd_, soff, lds):
    e(f"s_mov_b32 m0, {lds}")
    e("s_nop 0")
    e(f"buffer_load_dwordx4 v{voff}, s[{srd_}:{srd_+3}], {soff} offen lds")
    vm.issue(tag)
    flush(FN)

def wo_voffs(isB):
    for t in range(7):
        div14(t)
        e("v_min_u32 v4, 27, v4")
        e("v_cmp_lt_u32 vcc, 13, v4")
        e("v_cndmask_b32 v6, 0, 1, vcc")
        e("v_mul_u32_u24 v24, 14, v6")
        e("v_sub_u32 v4, v4, v24")
        e("v_lshrrev_b32 v24, 2, v4")
        e("v_and_b32 v25, 3, v4")
        e("v_cmp_lt_u32 vcc, 10, v4")
        e("v_cndmask_b32 v26, 0, 1, vcc")
        e("v_mul_u32_u24 v27, 3, v26")
        e("v_sub_u32 v27, v4, v27")
        e("v_subrev_u32 v27, 4, v27")
        e("v_cmp_lt_u32 vcc, 7, v4")
        e("v_cndmask_b32 v24, v24, v26, vcc")
        e("v_cndmask_b32 v25, v25, v27, vcc")
        e("v_lshl_add_u32 v24, v6, 1, v24")
        if not isB:
            e("v_mul_u32_u24 v24, 7, v24")
            e("v_add_u32 v4, v24, v25")
        else:
            e("v_lshl_add_u32 v4, v24, 2, v25")
            e("v_add_u32 v26, 12, v4")
            e("v_lshlrev_b32 v27, 2, v25")
            e("v_add_u32 v27, 3, v27")
            e("v_cmp_eq_u32 s[4:5], 3, v24")
            e("v_cndmask_b32 v26, v26, v27, s[4:5]")
            e("v_cndmask_b32 v4, v4, v26, vcc")
        e("v_mul_u32_u24 v5, 112, v5")
        e("v_mul_u32_u24 v4, 896, v4")
        e("v_lshl_add_u32 v3, v3, 4, v4")
        e(f"v_add3_u32 v{40+t}, s55, v3, v5")

def wo_block(vm, h, isB):
    base = B_wo(h) if isB else A_wo(h)
    e(f"s_mov_b32 s86, {h*28*896}")
    for t in range(7):
        if t == 6: e("s_mov_b64 exec, 0xff")
        dma(vm, "wo", 40+t, 36, "s86", base + t*1024)
    e("s_mov_b64 exec, -1")

def flg_init(lw):
    if lw == 0:
        e(f"v_mov_b32 v3, {FLG}")
        e("v_mov_b32 v4, 0")
        e("v_mov_b32 v5, 0")
        e("ds_write_b64 v3, v[4:5]")
        e("s_waitcnt lgkmcnt(0)")

def loader(isB, lw):
    lab(f"L_{'B' if isB else 'A'}{lw}")
    vm = VM()
    SO = 32
    e("s_movk_i32 s57, 896")
    e("s_mov_b32 s58, 86016")
    e("v_lshrrev_b32 v3, 3, v2")
    e("v_lshrrev_b32 v4, 4, v2")
    e("v_and_b32 v5, 7, v2")
    e("v_xor_b32 v5, v5, v4")
    e("s_lshl_b32 s3, s25, 7")
    e(f"s_add_u32 s3, s3, {32*lw}")
    e("v_add_u32 v6, s3, v3")
    e("v_mul_u32_u24 v6, 896, v6")
    e("v_lshl_add_u32 v16, v5, 4, v6")
    e("v_xor_b32 v17, 64, v16")
    e("v_add_u32 v17, 7168, v17")
    kvn = [n for n in range(lw, 14, 4)]
    if isB:
        wn = [n for n in range(lw, 21, 4)]
        kvn = [n for n in wn if n < 14]; qn = [n-14 for n in wn if n >= 14]
    else:
        qn = [n for n in range(lw, 7, 4)]
    for j, n in enumerate(kvn): w_voff(8+j, n, False)
    if isB:
        for j, n in enumerate(qn): w_voff(12+j, n, True)
        if lw in (1, 2):
            u = lw - 1
            e("v_lshrrev_b32 v3, 3, v2")
            e("v_lshrrev_b32 v4, 4, v2")
            e("v_and_b32 v5, 7, v2")
            e("v_xor_b32 v5, v5, v4")
            if u: e("v_xor_b32 v5, 4, v5")
            e("s_lshl_b32 s3, s25, 7")
            e("s_sub_u32 s3, s3, 16")
            e("s_max_i32 s3, s3, 0")
            e(f"s_add_u32 s3, s3, {8*u}")
            e("v_add_u32 v6, s3, v3")
            e("v_mul_u32_u24 v6, 896, v6")
            e("v_lshl_add_u32 v18, v5, 4, v6")
    srds(isB)
    stamp(vm, SO + 0)
    def isW(i):
        for j, n in enumerate(kvn): dma(vm, f"c{i}", 8+j, 32, "s83", (B_kv(i) if isB else A_kv(i)) + n*1024)
        if isB:
            for j, n in enumerate(qn): dma(vm, f"c{i}", 12+j, 32, "s83", B_q(i) + n*1024)
    def isX(i):
        xb = B_x(i) if isB else A_x(i)
        for u in range(4):
            dma(vm, f"c{i}", 16 + (u & 1), 28, "s85" if u < 2 else "s86", xb + (2048 if isB else 0) + (4*lw+u)*1024)
        if isB and lw in (1, 2):
            dma(vm, f"c{i}", 18, 28, "s85", xb + (lw-1)*1024)
    if not isB:
        step_hdr(81); isX(0); isW(0)
        nonce_issue(vm)
        if W0: e("s_waitcnt vmcnt(0)")
        stamp(vm, 36)
        for r in range(4): e(f"v_mov_b32 v{4+r}, 0")
        zs = uid("ZS")
        e("s_cmp_eq_u32 s25, 0")
        e(f"s_cbranch_scc0 {zs}")
        e(f"s_mul_i32 s3, s26, {64*AS}")
        e(f"s_add_u32 s3, s3, 0x{ACC + lw*16*AS:x}")
        e("v_lshrrev_b32 v3, 2, v2")
        e(f"v_mul_u32_u24 v3, {AS}, v3")
        e("v_and_b32 v19, 3, v2")
        e("v_lshl_add_u32 v3, v19, 5, v3")
        e("buffer_store_dwordx4 v[4:7], v3, s[40:43], s3 offen sc0 sc1")
        e("buffer_store_dwordx4 v[4:7], v3, s[40:43], s3 offen offset:16 sc0 sc1")
        lab(zs)
        step_hdr(81); isX(1); isW(1)
        flg_init(lw)
        def isQ(i):
            step_hdr(82)
            for j, n in enumerate(qn): dma(vm, "q", 12+j, 32, "s83", A_q(i) + n*1024)
        for i in range(7):
            if i == 0: stamp(vm, 37)
            vm.wait(f"c{i}")
            if i == 0: stamp(vm, 38)
            e("s_barrier")
            if i == 0:
                for j, n in enumerate(qn): capture(w_voff, 12+j, n, True)
                capture(wo_voffs, False)
            if i == 3:
                nonce_get()
                if lw == 0:
                    zs = uid("ZF")
                    e("s_cmp_eq_u32 s25, 0")
                    e(f"s_cbranch_scc0 {zs}")
                    e("s_lshl_b32 s3, s26, 2")
                    e(f"v_mov_b32 v22, {CNT_Z}")
                    e("v_mov_b32 v23, 1")
                    e("s_mov_b64 exec, 1")
                    e("buffer_store_dword v23, v22, s[44:47], s3 offen sc0 sc1")
                    e("s_mov_b64 exec, -1")
                    lab(zs)
            if i <= 4: step_hdr(81); isX(i+2); isW(i+2)
            if i == 4: flush()
            if i == 5:
                for k in range(4): isQ(k)
            if i == 6:
                for k in range(4, 7): isQ(k)
        zl = uid("ZL"); zd = uid("ZD"); z1 = uid("Z1")
        e("s_mov_b32 s78, 0")
        e(f"v_mov_b32 v3, {CNT_Z}")
        e("s_lshl_b32 s3, s26, 2")
        e("buffer_load_dword v19, v3, s[44:47], s3 offen sc0 sc1")
        vm.issue("z")
        wo_block(vm, 8 + lw, False)
        vm.wait("z")
        e(f"s_branch {z1}")
        lab(zl)
        e("buffer_load_dword v19, v3, s[44:47], s3 offen sc0 sc1")
        e("s_waitcnt vmcnt(0)")
        lab(z1)
        e("v_readfirstlane_b32 s79, v19")
        e("s_add_u32 s78, s78, 1")
        e("s_nop 2")
        e("s_cmp_eq_u32 s79, 1")
        e(f"s_cbranch_scc1 {zd}")
        e("s_sleep 1")
        e("s_cmp_gt_u32 s78, 0x40000")
        e(f"s_cbranch_scc0 {zl}")
        lab(zd)
        hh = lw >> 1; et = lw & 1
        e("v_and_b32 v5, 15, v2")
        e("v_lshrrev_b32 v6, 4, v2")
        e("v_lshlrev_b32 v3, 4, v2")
        e(f"v_add_u32 v4, {A_scr(lw)}, v3")
        e(f"s_mul_i32 s3, s26, {64*AS}")
        e(f"s_add_u32 s57, s3, 0x{ACC + lw*16*AS:x}")
        for r in range(1, 4): e(f"s_add_u32 s{50+r}, s57, {r*AS}")
        e(f"s_add_u32 s54, s57, {8*AS}")
        e(f"v_mul_u32_u24 v8, {4*AS}, v6")
        e("v_lshl_add_u32 v8, v5, 2, v8")
        e("v_cmp_gt_u32 s[66:67], 3, v6")
        e("v_cmp_le_u32 s[64:65], 14, v5")
        e("v_cmp_gt_u32 s[68:69], 2, v5")
        e("v_and_b32 v10, 7, v2")
        e("v_lshrrev_b32 v11, 3, v2")
        e(f"v_mul_u32_u24 v9, {AS}, v11")
        e("v_lshl_add_u32 v9, v10, 4, v9")
        e("v_cmp_eq_u32 s[4:5], 3, v10")
        e("v_cmp_eq_u32 s[6:7], 4, v10")
        e("s_or_b64 s[6:7], s[6:7], s[4:5]")
        if et:
            e("v_cmp_gt_u32 s[8:9], 5, v11")
            e("s_and_b64 s[10:11], s[8:9], s[6:7]")
            e("v_cmp_eq_u32 s[12:13], 4, v11")
        else:
            e("s_mov_b64 s[10:11], s[6:7]")
        e("v_and_b32 v12, 3, v10")
        e("v_lshlrev_b32 v12, 4, v12")
        e("v_lshrrev_b32 v10, 2, v10")
        e("v_lshl_add_u32 v12, v10, 3, v12")
        e(f"v_add_u32 v12, {KVB + hh*2048}, v12")
        for j in range(2):
            e(f"v_add_u32 v13, {16*et + 8*j}, v11")
            e("v_mul_u32_u24 v14, 37, v13")
            e("v_lshrrev_b32 v14, 8, v14")
            e("v_mul_u32_u24 v15, 7, v14")
            e("v_sub_u32 v15, v13, v15")
            e("v_lshrrev_b32 v16, 2, v15")
            e("v_and_b32 v15, 3, v15")
            e("v_lshl_add_u32 v15, v14, 2, v15")
            e("v_lshl_add_u32 v15, v16, 4, v15")
            if et and j:
                e("v_cndmask_b32 v15, v15, 19, s[12:13]")
            e(f"v_lshl_add_u32 v{20+j}, v15, 6, v12")
        vm.wait("q")
        e("s_barrier")
        stamp(vm, SO + 1)
        RD = 48
        for dt in range(2):
            for w in range(2):
                r = RD + dt*16 + w*4
                e(f"ds_read_b128 v[{r}:{r+3}], v4 offset:{w*2048 + dt*1024}")
        for dt in range(2):
            e(f"s_waitcnt lgkmcnt({2-2*dt})")
            b = RD + dt*16
            for r in range(4):
                e(f"v_add_f32 v{b+r}, v{b+r}, v{b+4+r}")
            for r in range(4):
                e(f"v_cndmask_b32 v{b+r}, v{b+r}, 1.0, s[{64+4*dt}:{65+4*dt}]")
        for dt in range(2):
            e(f"buffer_atomic_add_f32 v{RD+dt*16}, v8, s[40:43], s57 offen offset:{dt*64} sc1")
        if et: e("s_mov_b64 exec, s[66:67]")
        for r in range(1, 4):
            for dt in range(2):
                e(f"buffer_atomic_add_f32 v{RD+dt*16+r}, v8, s[40:43], s{50+r} offen offset:{dt*64} sc1")
        if et: e("s_mov_b64 exec, -1")
        stamp(vm, SO + 2)
        wo_block(vm, lw, False)
        wo_block(vm, lw + 4, False)
        wo_block(vm, lw + 12, False)
        PR = 80
        lp = uid("KVL"); dn = uid("KVD")
        e("s_mov_b32 s78, 0")
        lab(lp)
        for j in range(2):
            e(f"buffer_load_dwordx4 v[{PR+j*4}:{PR+j*4+3}], v9, s[40:43], s{54 if j else 57} offen sc0 sc1")
        e("s_waitcnt vmcnt(0)")
        e(f"v_cndmask_b32 v13, v{PR}, v{PR+2}, s[4:5]")
        e("v_cmp_eq_f32 vcc, 0x41800000, v13")
        e("s_and_b64 s[14:15], vcc, s[6:7]")
        e(f"v_cndmask_b32 v13, v{PR+4}, v{PR+6}, s[4:5]")
        e("v_cmp_eq_f32 vcc, 0x41800000, v13")
        e("s_and_b64 s[16:17], vcc, s[10:11]")
        e("s_xor_b64 s[14:15], s[14:15], s[6:7]")
        e("s_xor_b64 s[16:17], s[16:17], s[10:11]")
        e("s_or_b64 s[14:15], s[14:15], s[16:17]")
        e(f"s_cbranch_scc0 {dn}")
        e("s_add_u32 s78, s78, 1")
        e("s_cmp_gt_u32 s78, 0x40000")
        e(f"s_cbranch_scc0 {lp}")
        lab(dn)
        for j in range(2):
            r = PR + j*4
            e(f"v_cvt_pk_bf16_f32 v{r}, v{r}, v{r+1}")
            e(f"v_cvt_pk_bf16_f32 v{r+1}, v{r+2}, v{r+3}")
            if et and j: e("s_mov_b64 exec, s[8:9]")
            e(f"ds_write_b64 v{20+j}, v[{r}:{r+1}]")
        if et:
            e("s_mov_b64 exec, s[12:13]")
            for k in range(1, 4):
                e(f"ds_write_b64 v21, v[{PR+4}:{PR+5}] offset:{k*256}")
            e("s_mov_b64 exec, -1")
        e("s_waitcnt lgkmcnt(0)")
        e("s_barrier")
        stamp(vm, SO + 3)
    else:
        step_hdr(81); isX(0); isW(0)
        nonce_issue(vm)
        if W0: e("s_waitcnt vmcnt(0)")
        stamp(vm, 36)
        step_hdr(81); isX(1); isW(1)
        flg_init(lw)
        for i in range(7):
            if i == 0: stamp(vm, 37)
            vm.wait(f"c{i}")
            if i == 0: stamp(vm, 38)
            e("s_barrier")
            if i == 0: capture(wo_voffs, True)
            if i == 1: nonce_get()
            if i <= 4: step_hdr(81); isX(i+2); isW(i+2)
            if i == 4: flush()
            if i == 5:
                for h in [0, 1, 6, 7, 8, 9, 10, 11][2*lw:2*lw+2]: wo_block(vm, h, True)
            if i == 6:
                for h in [2, 3, 4, 5, 12, 13, 14, 15][2*lw:2*lw+2]: wo_block(vm, h, True)
        e(f"v_mov_b32 v3, {FLG}")
        e("v_mov_b32 v4, 1")
        e("s_barrier")
        e("s_waitcnt vmcnt(0)")
        e("s_mov_b64 exec, 1")
        e("ds_add_u32 v3, v4")
        e("s_mov_b64 exec, -1")
        stamp(vm, SO + 3)
    e(f"s_branch P2_{'B' if isB else 'A'}L")

NP = int(os.environ.get("NP", "64"))
NRES = 10
SLP = int(os.environ.get("SLP", "0"))
EARLY = os.environ.get("EARLY", "1") == "1"
AC = 16; OF = 44; WV = 76; ST = 124
def oreg(j, hh): return OF + (j*2+hh)*4
def wreg(j, f):
    if f >= NRES: return "v", ST + (f-NRES)*4
    i = j*NRES + f
    return ("a", i*4) if i < 28 else ("v", WV + (i-28)*4)
def rdf(j, f):
    hh, nt = divmod(f, 7)
    k, r = wreg(j, f)
    o = (2*j+hh)*WB + nt*32
    e(f"ds_read_b64_tr_b16 {k}[{r}:{r+1}], v8 offset:{o}")
    e(f"ds_read_b64_tr_b16 {k}[{r+2}:{r+3}], v9 offset:{o}")
def rd_res(kind):
    for j in range(4):
        for f in range(NRES):
            if wreg(j, f)[0] in kind: rdf(j, f)
def wo_bases(wo):
    e("v_lshrrev_b32 v7, 4, v2")
    e("v_lshrrev_b32 v3, 1, v7")
    e("v_bfe_u32 v8, v2, 2, 2")
    e("v_mul_u32_u24 v9, 14, v3")
    e("v_and_b32 v4, 1, v7")
    e("v_lshl_add_u32 v6, v4, 2, v9")
    e("v_add_u32 v6, v6, v8")
    e("v_mul_u32_u24 v5, 3, v4")
    e("v_min_u32 v8, 2, v8")
    e("v_add3_u32 v9, v9, v5, v8")
    e("v_add_u32 v9, 8, v9")
    e("v_and_b32 v5, 3, v2")
    e("v_lshlrev_b32 v5, 3, v5")
    e(f"v_add_u32 v5, {wo}, v5")
    e(f"v_mul_u32_u24 v8, {RS}, v6")
    e("v_add_u32 v8, v8, v5")
    e(f"v_mul_u32_u24 v9, {RS}, v9")
    e("v_add_u32 v9, v9, v5")
def spin_flag(off, val, cmp_):
    lp = uid("SP")
    e(f"v_mov_b32 v3, {FLG}")
    lab(lp)
    e(f"ds_read_b32 v4, v3 offset:{off}")
    e("s_waitcnt lgkmcnt(0)")
    e("v_readfirstlane_b32 s3, v4")
    e("s_nop 3")
    e(f"s_cmp_{cmp_}_u32 s3, {val}")
    e(f"s_cbranch_scc0 {lp}")
def tcol(isB, grp, t):
    return (t >> 1)*56 + (t & 1)*(24 if (not isB and grp < 2) else 32)

def accA(grp, rt, t): return 32 + (rt*4+t)*4
def accA2(grp, t, rt): return 32 + (grp-1)*32 + (t*4+rt)*4
def accB(grp, t, r):
    if grp == 0: return 32 + r*8 + t*4
    if grp == 1: return 64 + r*8 + t*4
    return 104 + t*20 + r*4

def comp_setup(isB):
    wo_bases((B_wo if isB else A_wo)(0))
    e("v_lshrrev_b32 v3, 4, v2")
    e("v_bfe_u32 v4, v2, 2, 2")
    e("v_lshl_add_u32 v4, v3, 3, v4")
    e("v_and_b32 v5, 1, v3")
    e("v_lshlrev_b32 v5, 2, v5")
    e("v_add_u32 v6, v4, v5")
    e("v_xor_b32 v7, 4, v6")
    e(f"v_mul_u32_u24 v6, {RS}, v6")
    e(f"v_mul_u32_u24 v7, {RS}, v7")
    e("v_and_b32 v5, 3, v2")
    e("v_lshl_add_u32 v14, v5, 3, v6")
    e("v_lshl_add_u32 v15, v5, 3, v7")
    e("s_and_b32 s49, s48, 1")
    e("s_lshr_b32 s50, s48, 1")
    e("s_mul_i32 s3, s49, 56")
    e("v_add_u32 v12, s3, v14")
    e("v_add_u32 v13, s3, v15")
    e("v_and_b32 v4, 15, v2")
    e("v_lshrrev_b32 v5, 1, v4")
    e("v_xor_b32 v5, v5, v3")
    e("v_lshlrev_b32 v5, 4, v5")
    e("v_lshl_add_u32 v18, v4, 7, v5")
    if isB:
        e("s_lshl_b32 s3, s50, 13")
        e("v_add_u32 v16, s3, v18")
        e("v_xor_b32 v17, 64, v16")
    else:
        e("v_lshl_add_u32 v16, v1, 12, v18")
        e("v_xor_b32 v17, 64, v16")
        e("v_xor_b32 v18, 0x1000, v16")
        e("v_xor_b32 v19, 0x1000, v17")

def gemm(vm, isB):
    lg = LG()
    D = DB if isB else DA
    NB = 12 if isB else 6
    assert D <= (5 if isB else 4)
    def bf(j):
        r = (j % NB)*4 + (0 if isB else 96); k = "a" if isB else "v"
        return (f"{k}[{r}:{r+3}]", f"{k}[{r}:{r+1}]", f"{k}[{r+2}:{r+3}]")
    def xr(ch, kk, rt):
        st = (2*ch + kk) % 3
        if isB: r = 48 + st*20 + rt*4
        elif rt < 2: r = (ch*4 + kk*2 + rt)*4
        else:
            r = 120 + st*8 + (rt-2)*4
            return f"v[{r}:{r+3}]"
        return f"a[{r}:{r+3}]"
    items = []
    for ch in range(7):
        for kk in range(2):
            for grp in ((0, 1, 2) if isB else (1, 2)):
                for t in range(2): items.append((ch, kk, grp, t))
    def sync(ch):
        if ch == 6: vm.wait("pre" if PRE else "non")
        e("s_barrier")
        stamp(vm, 12 + ch)
        wb = 20 + (ch & 1)*2
        kvb = B_kv(ch) if isB else A_kv(ch)
        xb = B_x(ch) if isB else A_x(ch)
        e(f"v_add_u32 v24, {xb}, v16")
        e(f"v_add_u32 v25, {xb}, v17")
        if not isB:
            e(f"v_add_u32 v26, {xb}, v18")
            e(f"v_add_u32 v27, {xb}, v19")
        e(f"v_add_u32 v{wb}, {kvb}, v12")
        e(f"v_add_u32 v{wb+1}, {kvb}, v13")
    def xrd(ch, kk):
        if isB:
            for rt in (1, 2, 3, 4, 0):
                e(f"ds_read_b128 {xr(ch,kk,rt)}, v{24+kk} offset:{rt*2048}")
                lg.issue(f"x{ch}")
        else:
            for rt in range(4):
                e(f"ds_read_b128 {xr(ch,kk,rt)}, v{24+kk+(rt>>1)*2} offset:{(rt&1)*2048}")
                lg.issue(f"x{ch}")
    def rd(j):
        ch, kk, grp, t = items[j]
        if j == 0 or items[j-1][0] != ch: sync(ch)
        if j == 0 or items[j-1][:2] != (ch, kk): xrd(ch, kk)
        wb = 20 + (ch & 1)*2
        if grp == 0: off = KVS + kk*112 + t*32
        else: off = 32*kk*RS + (grp-1)*112 + t*(24 if (not isB and grp == 1) else 32)
        for hf in range(2):
            e(f"ds_read_b64_tr_b16 {bf(j)[1+hf]}, v{wb+hf} offset:{off}")
            lg.issue(f"w{j}")
    for j in range(D): rd(j)
    for j, (ch, kk, grp, t) in enumerate(items):
        if j + D < len(items): rd(j + D)
        lg.wait(f"w{j}")
        tr = isB and grp < 2
        first = (ch == 0 and kk == 0)
        for r in range(5 if (isB and grp) else 4):
            a = accB(grp, t, r) if isB else accA2(grp, t, r)
            x = xr(ch, kk, r + 1 if (isB and grp == 0) else r)
            cc = "0" if first else f"v[{a}:{a+3}]"
            if tr: e(f"v_mfma_f32_16x16x32_bf16 v[{a}:{a+3}], {bf(j)[0]}, {x}, {cc}")
            else: e(f"v_mfma_f32_16x16x32_bf16 v[{a}:{a+3}], {x}, {bf(j)[0]}, {cc}")

def pass2():
    lg = LG()
    D = 6; NB = 12
    items = [(ch, kk, t) for ch in range(7) for kk in range(2) for t in range(4)]
    e(f"v_add_u32 v20, {A_q(0)}, v14")
    e(f"v_add_u32 v21, {A_q(0)}, v15")
    def rd(j):
        ch, kk, t = items[j]
        r = 96 + (j % NB)*4
        off = A_q(ch) - A_q(0) + kk*112 + tcol(False, 0, t)
        for hf in range(2):
            e(f"ds_read_b64_tr_b16 v[{r+2*hf}:{r+2*hf+1}], v{20+hf} offset:{off}")
            lg.issue(f"w{j}")
    for j in range(D): rd(j)
    for j, (ch, kk, t) in enumerate(items):
        if j + D < len(items): rd(j + D)
        lg.wait(f"w{j}")
        r = 96 + (j % NB)*4
        for rt in range(2):
            a = accA(0, rt, t); x = (ch*4 + kk*2 + rt)*4
            cc = "0" if (ch == 0 and kk == 0) else f"v[{a}:{a+3}]"
            e(f"v_mfma_f32_16x16x32_bf16 v[{a}:{a+3}], v[{r}:{r+3}], a[{x}:{x+3}], {cc}")

def tile_addr(isB):
    if isB:
        e("s_lshl_b32 s3, s50, 13")
        e("s_lshl_b32 s27, s49, 10")
        e("s_add_u32 s3, s3, s27")
        e("v_lshlrev_b32 v14, 4, v2")
        e("v_add_u32 v14, s3, v14")
        e("v_add_u32 v15, 0x1000, v14")
    else:
        e("v_lshlrev_b32 v14, 12, v1")
        e("v_lshl_add_u32 v14, v2, 4, v14")
    e("s_lshl_b32 s27, s26, 14")
    e("s_add_u32 s63, s59, s27")
def tile_regs(isB):
    if isB: return [(14 + (rt >> 1), (rt & 1)*2048, 16 + rt*4) for rt in range(4)]
    return [(14, rt*2048 + hh*1024, 16 + (hh*2+rt)*4) for hh in range(2) for rt in range(2)]
def tile_store(isB, q, vm=None):
    for (va, off, n) in tile_regs(isB):
        if q: e(f"buffer_store_dwordx4 v[{n}:{n+3}], v{va}, s[40:43], s51 offen offset:{off} sc0 sc1")
        else: e(f"buffer_store_dwordx4 v[{n}:{n+3}], v{va}, s[40:43], s63 offen offset:{off}")
        if vm: vm.issue("Q")

def epi_A(vm):
    c("---- A epilogue ----")
    e("v_and_b32 v5, 15, v2")
    e("v_lshrrev_b32 v6, 4, v2")
    e("v_cmp_le_u32 s[64:65], 12, v5")
    e("v_mov_b32 v7, 0x3f803f80")
    e(f"s_mul_i32 s3, s49, {2*WB}")
    e("s_lshl_b32 s27, s50, 11")
    e("s_add_u32 s3, s3, s27")
    e(f"s_add_u32 s3, s3, {A_scr(0)}")
    e("v_lshlrev_b32 v3, 4, v2")
    e("v_add_u32 v4, s3, v3")
    e("s_nop 7")
    PK = 96; VV = 112; TT = 128; KP = 32
    for t in range(2):
        for pr in range(2):
            sq = []
            for r2 in range(2):
                a = accA2(1, t, pr*2 + r2)
                d = PK + (t*2+pr)*4 + r2*2
                sq.append(phi_pair(d, a, a+1, TT + r2*4))
                sq.append(phi_pair(d + 1, a+2, a+3, TT + r2*4 + 2))
            ilv(sq)
    for t in range(2):
        for rt in range(4):
            a = accA2(2, t, rt)
            d = VV + t*8 + rt*2
            e(f"v_cvt_pk_bf16_f32 v{d}, v{a}, v{a+1}")
            e(f"v_cvt_pk_bf16_f32 v{d+1}, v{a+2}, v{a+3}")
            if t & 1:
                e(f"v_cndmask_b32 v{d}, v{d}, v7, s[64:65]")
                e(f"v_cndmask_b32 v{d+1}, v{d+1}, v7, s[64:65]")
    e("s_nop 1")
    for pr in range(2):
        for et in range(2):
            for dt in range(2):
                d = KP + (et*2 + dt)*4
                va = VV + (et*2+pr)*4; pk = PK + (dt*2+pr)*4
                cc = "0" if pr == 0 else f"v[{d}:{d+3}]"
                e(f"v_mfma_f32_16x16x32_bf16 v[{d}:{d+3}], v[{va}:{va+3}], v[{pk}:{pk+3}], {cc}")
    e("s_nop 7")
    for i in range(4):
        e("s_nop 3")
        e(f"ds_write_b128 v4, v[{KP+i*4}:{KP+i*4+3}] offset:{(i>>1)*WB + (i&1)*1024}")
    e("s_waitcnt lgkmcnt(0)")
    e("s_barrier")
    stamp(vm, 4)
    pass2()
    stamp(vm, 7)
    nonce_get()
    QF = 64
    e("v_cmp_eq_u32 s[10:11], 3, v6")
    e("v_cmp_eq_u32 s[12:13], 0, v6")
    e("v_lshlrev_b32 v10, 6, v5")
    e("v_lshl_add_u32 v10, v6, 4, v10")
    e(f"v_add_u32 v10, {KVB}, v10")
    tile_addr(False)
    e("v_mov_b32 v11, 0xffff")
    e("s_nop 3")
    for t in range(4):
        sq = []
        for rt in range(2):
            a = accA(0, rt, t)
            d = QF + (rt*2 + (t >> 1))*4 + (t & 1)*2
            s0 = phi_pair(d, a, a+1, TT + rt*4)
            s1 = phi_pair(d+1, a+2, a+3, TT + rt*4 + 2)
            if t & 1: s0.append(f"v_cndmask_b32 v{d}, v{d}, 0, s[12:13]")
            else: s1.append(f"v_cndmask_b32 v{d+1}, v{d+1}, 0, s[10:11]")
            sq += [s0, s1]
        ilv(sq)
    e("s_barrier")
    stamp(vm, 10)
    R = 80
    for hh in range(2):
        for f in range(2):
            r = R + (hh*2+f)*4
            e(f"ds_read_b128 v[{r}:{r+3}], v10 offset:{hh*2048 + f*1024}")
    NR = 96
    for hh in range(2):
        e(f"s_waitcnt lgkmcnt({2 - 2*hh})")
        for rt in range(2):
            n = NR + (hh*2+rt)*8
            q = QF + (rt*2+hh)*4
            for f in (1, 0):
                r = R + (hh*2+f)*4
                e(f"v_mfma_f32_16x16x32_bf16 v[{n+f*4}:{n+f*4+3}], v[{r}:{r+3}], v[{q}:{q+3}], 0")
    if EARLY: rd_res("a")
    e("s_nop 7")
    sq = []; regs = []
    for hh in range(2):
        for rt in range(2):
            n = NR + (hh*2+rt)*8
            t = TT + (hh*2+rt)*2
            o = [f"v_add_f32 v{t}, 0x{EPS:x}, v{n+7}",
                 f"v_rcp_f32 v{t}, v{t}",
                 f"v_mov_b32 v{t+1}, v{t}"]
            for q in range(3):
                o.append(f"v_pk_mul_f32 v[{n+2*q}:{n+2*q+1}], v[{n+2*q}:{n+2*q+1}], v[{t}:{t+1}]")
            o.append(f"v_mul_f32 v{n+6}, v{n+6}, v{t}")
            T = 16 + (hh*2+rt)*4
            for q in range(3):
                o.append(f"v_cvt_pk_bf16_f32 v{T+q}, v{n+2*q}, v{n+2*q+1}")
            o.append(f"v_cvt_pk_bf16_f32 v{T+3}, v{n+6}, v{n+6}")
            o.append(f"v_and_or_b32 v{T+3}, v{T+3}, v11, s61")
            sq.append(o)
    ilv(sq)
    tile_store(False, False)
    stamp(vm, 5, 4)

def epi_B(vm):
    c("---- B epilogue ----")
    e("v_and_b32 v5, 15, v2")
    e("v_lshrrev_b32 v6, 4, v2")
    e("v_cmp_gt_u32 s[64:65], 3, v6")
    nonce_get()
    e("v_and_b32 v3, 1, v5")
    e("v_cmp_eq_u32 s[4:5], 1, v3")
    e("v_mov_b32 v10, 0xffff")
    e("v_mov_b32 v11, 0xffff0000")
    e("v_cndmask_b32 v12, v10, v11, s[4:5]")
    e("v_lshl_add_u32 v11, v6, 2, v3")
    e("v_sub_u32 v11, v11, v5")
    def KF(blk): return 64 + blk*8
    def QF(rt): return 32 + rt*8
    def VB(et): return 104 + et*20
    def cvt4(b):
        for q in range(4): e(f"v_cvt_pk_bf16_f32 v{b+q}, v{b+2*q}, v{b+2*q+1}")
    def C0(cb): return 32 + cb*8 + 4
    def C1(cb): return 64 + cb*8 + 4
    for rt in range(4):
        b = QF(rt)
        cvt4(b)
        e(f"v_cndmask_b32 v{b+2}, 0, v{b+2}, s[64:65]")
        e(f"v_cndmask_b32 v{b+3}, 0, v{b+3}, s[64:65]")
    for blk in range(5): cvt4(KF(blk))
    e("s_nop 1")
    for rt in range(4):
        q = QF(rt)
        for ti in range(2):
            k = KF(rt + ti)
            d = C0(rt) if ti == 0 else C1(rt)
            e(f"v_mfma_f32_16x16x32_bf16 v[{d}:{d+3}], v[{k}:{k+3}], v[{q}:{q+3}], 0")
    e("s_barrier")
    for et in range(2):
        b = VB(et)
        for blk in range(5):
            e(f"v_cvt_pk_bf16_f32 v{b+2*blk}, v{b+4*blk}, v{b+4*blk+1}")
            e(f"v_cvt_pk_bf16_f32 v{b+2*blk+1}, v{b+4*blk+2}, v{b+4*blk+3}")
    for k in range(4):
        addk = 2*k if k < 2 else 16 + 2*(k-2)
        e(f"v_add_u32 v13, {addk}, v11")
        e(f"v_cmp_le_i32 s[{6+2*k}:{7+2*k}], 2, v13")
        e(f"v_cmp_ge_i32 vcc, 16, v13")
        e(f"s_and_b64 s[{6+2*k}:{7+2*k}], s[{6+2*k}:{7+2*k}], vcc")
    e("s_or_b32 s3, s25, s50")
    e("s_cmp_eq_u32 s3, 0")
    e("s_cselect_b64 s[14:15], 0, -1")
    e("s_and_b64 s[16:17], s[6:7], s[14:15]")
    e("s_and_b64 s[18:19], s[8:9], s[14:15]")
    e("v_mov_b32 v13, 0xce6e6b28")
    e(f"s_mov_b32 s20, 0x{SC2:x}")
    tile_addr(True)
    e("v_cmp_eq_u32 s[68:69], 3, v6")
    def seq(cb):
        lgr = [C0(cb), C0(cb)+2, C1(cb), C1(cb)+2]
        m = C1(cb)+1; m2 = C1(cb)+3
        o = []
        for k in range(4):
            o.append(f"v_cndmask_b32 v{lgr[k]}, v{lgr[k]}, v{lgr[k]+1}, s[4:5]")
        for k in range(4):
            ms = (16 + 2*k) if (cb == 0 and k < 2) else (6 + 2*k)
            o.append(f"v_cndmask_b32 v{lgr[k]}, v13, v{lgr[k]}, s[{ms}:{ms+1}]")
        o.append(f"v_max3_f32 v{m}, v{lgr[0]}, v{lgr[1]}, v{lgr[2]}")
        o.append(f"v_max_f32 v{m}, v{m}, v{lgr[3]}")
        o.append(f"v_mov_b32 v{m2}, v{m}")
        o.append(f"v_permlane16_swap_b32 v{m}, v{m2}")
        o.append(f"v_max_f32 v{m}, v{m}, v{m2}")
        o.append(f"v_mov_b32 v{m2}, v{m}")
        o.append(f"v_permlane32_swap_b32 v{m}, v{m2}")
        o.append(f"v_max_f32 v{m}, v{m}, v{m2}")
        o.append(f"v_mul_f32 v{m}, 0x{SC2 ^ 0x80000000:x}, v{m}")
        for k in range(4):
            o.append(f"v_fma_f32 v{lgr[k]}, v{lgr[k]}, s20, v{m}")
        for k in range(4):
            o.append(f"v_exp_f32 v{lgr[k]}, v{lgr[k]}")
        o.append(f"v_add_f32 v{m}, v{lgr[0]}, v{lgr[1]}")
        o.append(f"v_add_f32 v{m2}, v{lgr[2]}, v{lgr[3]}")
        o.append(f"v_add_f32 v{m}, v{m}, v{m2}")
        o.append(f"v_mov_b32 v{m2}, v{m}")
        o.append(f"v_permlane16_swap_b32 v{m}, v{m2}")
        o.append(f"v_add_f32 v{m}, v{m}, v{m2}")
        o.append(f"v_mov_b32 v{m2}, v{m}")
        o.append(f"v_permlane32_swap_b32 v{m}, v{m2}")
        o.append(f"v_add_f32 v{m}, v{m}, v{m2}")
        o.append(f"v_rcp_f32 v{m}, v{m}")
        for k in range(4):
            o.append(f"v_mul_f32 v{lgr[k]}, v{lgr[k]}, v{m}")
            o.append(f"v_cvt_pk_bf16_f32 v{C0(cb)+k}, v{lgr[k]}, v{lgr[k]}")
            o.append(f"v_and_b32 v{C0(cb)+k}, v{C0(cb)+k}, v12")
        return o
    ilv([seq(cb) for cb in range(4)])
    if EARLY:
        spin_flag(0, 4, "eq")
        rd_res("a")
    e("s_nop 1")
    for rt in range(4):
        for et in (1, 0):
            o = QF(rt) if et == 0 else C1(rt)
            v = VB(et) + 2*rt
            e(f"v_mfma_f32_16x16x32_bf16 v[{o}:{o+3}], v[{v}:{v+3}], v[{C0(rt)}:{C0(rt)+3}], 0")
    e("s_nop 7")
    sq = []; regs = []
    for rt in range(4):
        o0 = QF(rt); o1 = C1(rt); t = C0(rt)
        T = 16 + rt*4
        o = [f"v_mov_b32 v{t}, v{o1+3}",
             f"v_cvt_pk_bf16_f32 v{T}, v{o0}, v{o0+1}",
             f"v_permlane32_swap_b32 v{t+1}, v{t}",
             f"v_permlane16_swap_b32 v{t+2}, v{o1+3}",
             f"v_cvt_pk_bf16_f32 v{T+1}, v{o0+2}, v{o0+3}",
             f"v_permlane16_swap_b32 v{t+3}, v{t+1}",
             f"v_cndmask_b32 v{o1+2}, v{o1+2}, v{t+2}, s[68:69]",
             f"v_cndmask_b32 v{o1+1}, v{o1+1}, v{t+1}, s[68:69]",
             f"v_cndmask_b32 v{o1}, v{o1}, v{t+3}, s[68:69]",
             f"v_cvt_pk_bf16_f32 v{T+3}, v{o1+2}, v{o1+2}",
             f"v_cvt_pk_bf16_f32 v{T+2}, v{o1}, v{o1+1}",
             f"v_and_or_b32 v{T+3}, v{T+3}, v10, s61"]
        sq.append(o)
    ilv(sq)
    tile_store(True, False)
    stamp(vm, 5, 4)

def p2(isB, isC):
    lab(f"P2_{'B' if isB else 'A'}{'C' if isC else 'L'}")
    c("---- P2: wave = (16 rows, K half) x 112 cols ----")
    kh = 0 if isC else 1
    wo = (B_wo if isB else A_wo)(8*kh)
    def ld(j):
        for hh in range(2):
            r = oreg(j, hh)
            e(f"buffer_load_dwordx4 v[{r}:{r+3}], v6, s[40:43], s{64+j} offen offset:{hh*1024} {PPOL}")
    if isC:
        e(f"v_mov_b32 v3, {FLG}")
        e("v_mov_b32 v4, 1")
        e("s_mov_b64 exec, 1")
        e("ds_add_u32 v3, v4 offset:4")
        e("s_mov_b64 exec, -1")
    e("s_and_b32 s49, s48, 3")
    e("s_and_b32 s50, s26, 1")
    e("s_lshl_b32 s3, s50, 13")
    e("s_lshl_b32 s27, s49, 11")
    e("s_add_u32 s3, s3, s27")
    e("s_add_u32 s64, s59, s3")
    if kh: e("s_add_u32 s64, s64, 0x10000")
    for j in range(1, 4): e(f"s_add_u32 s{64+j}, s64, {j*16384}")
    e("v_lshlrev_b32 v6, 4, v2")
    if isC:
        for j in range(4): ld(j)
    if not isC:
        wo_bases(wo)
        e("v_lshlrev_b32 v6, 4, v2")
    if isB and not (isC and EARLY): spin_flag(0, 4, "eq")
    rd_res("v" if (isC and EARLY) else "av")
    e("v_lshrrev_b32 v7, 4, v2")
    e("v_lshrrev_b32 v11, 1, v7")
    e("v_and_b32 v12, 1, v7")
    e("v_and_b32 v5, 15, v2")
    e("s_lshl_b32 s3, s25, 7")
    e("s_lshl_b32 s27, s50, 6")
    e("s_add_u32 s3, s3, s27")
    e("s_lshl_b32 s27, s49, 4")
    e("s_add_u32 s3, s3, s27")
    e("v_add_u32 v5, s3, v5")
    e("v_mul_u32_u24 v10, 1792, v5")
    e("s_mul_i32 s3, s24, 896")
    e("s_add_u32 s3, s3, s55")
    e("v_add_u32 v10, s3, v10")
    if kh: e("v_lshl_add_u32 v14, v7, 3, v10")
    e("v_lshl_add_u32 v10, v12, 5, v10")
    e("v_lshl_add_u32 v10, v11, 4, v10")
    e("s_mul_i32 s3, s49, 7168")
    e(f"s_add_u32 s3, s3, {RED_B if isB else RED_A}")
    e("v_add_u32 v12, s3, v6")
    for r in range(28): e(f"v_mov_b32 v{AC+r}, 0")
    e("s_mov_b32 s78, 0")
    e("s_mov_b32 s79, 15")
    e("s_mov_b32 s68, 0x10000")
    if not isC:
        e("s_waitcnt lgkmcnt(0)")
        spin_flag(4, 1, "ge")
        for j in range(4): ld(j)
    e("s_waitcnt lgkmcnt(0)")
    stamp(None, 6 if isC else 39, 4)
    top = uid("PT"); done = uid("PDN"); fb = uid("PFB")
    lab(top)
    for j in range(4):
        nx = uid("NX"); dm = uid("DM"); bad = uid("BD")
        e("s_waitcnt vmcnt(6)")
        e(f"s_bitcmp1_b32 s79, {j}")
        e(f"s_cbranch_scc0 {dm}")
        r0 = oreg(j, 0) + 3; r1 = oreg(j, 1) + 3
        e(f"v_xor_b32 v{r0}, s61, v{r0}")
        e(f"v_xor_b32 v{r1}, s61, v{r1}")
        e(f"v_or_b32 v13, v{r0}, v{r1}")
        e("v_cmp_gt_u32 vcc, s68, v13")
        e("s_cmp_eq_u64 vcc, -1")
        e(f"s_cbranch_scc0 {bad}")
        for f in range(NRES, 14): rdf(j, f)
        e(f"buffer_load_dword v15, off, s[40:43], s{64+j}")
        e(f"buffer_load_dword v15, off, s[40:43], s{64+j}")
        e(f"s_bitset0_b32 s79, {j}")
        for f in range(14):
            hh, nt = divmod(f, 7)
            k, wr = wreg(j, f)
            a = AC + nt*4; r = oreg(j, hh)
            if f == NRES: e("s_waitcnt lgkmcnt(0)")
            e(f"v_mfma_f32_16x16x32_bf16 v[{a}:{a+3}], {k}[{wr}:{wr+3}], v[{r}:{r+3}], v[{a}:{a+3}]")
        e("s_cmp_eq_u32 s79, 0")
        e(f"s_cbranch_scc1 {done}")
        e(f"s_branch {nx}")
        lab(bad)
        if SLP: e(f"s_sleep {SLP}")
        ld(j)
        e(f"s_branch {nx}")
        lab(dm)
        e(f"buffer_load_dword v15, off, s[40:43], s{64+j}")
        e(f"buffer_load_dword v15, off, s[40:43], s{64+j}")
        lab(nx)
    e("s_add_u32 s78, s78, 1")
    e(f"s_cmp_lt_u32 s78, {NP}")
    e(f"s_cbranch_scc1 {top}")
    nc = uid("NC"); cp = uid("CP")
    e("s_waitcnt vmcnt(0)")
    e("s_lshl_b32 s57, s24, 4")
    e("s_add_u32 s57, s57, s25")
    e("s_lshl_b32 s57, s57, 7")
    e(f"s_add_u32 s57, s57, 0x{EPO:x}")
    e(f"s_cmp_eq_u32 s78, {NP}")
    e(f"s_cbranch_scc0 {nc}")
    e("s_lshl_b32 s3, s26, 14")
    e("s_add_u32 s62, s59, s3")
    e("s_mov_b32 s69, 0")
    lab(cp)
    for half in range(2):
        rl = uid("RL")
        lab(rl)
        e("v_mov_b32 v13, 0")
        for b in range(8):
            r = OF + b*4
            e(f"s_add_u32 s3, s62, {(half*8+b)*1024}")
            e(f"buffer_load_dwordx4 v[{r}:{r+3}], v6, s[40:43], s3 offen sc0 sc1")
        e("s_waitcnt vmcnt(0)")
        for b in range(8):
            e(f"v_xor_b32 v15, s61, v{OF+b*4+3}")
            e("v_or_b32 v13, v13, v15")
        e("v_cmp_gt_u32 vcc, 0x10000, v13")
        e("s_add_u32 s69, s69, 1")
        e("s_cmp_gt_u32 s69, 0x40000")
        e(f"s_cbranch_scc1 {done}")
        e("s_cmp_eq_u64 vcc, -1")
        e(f"s_cbranch_scc0 {rl}")
        for b in range(8):
            r = OF + b*4
            e(f"s_add_u32 s3, s62, 0x{TLQ + (half*8+b)*1024:x}")
            e(f"buffer_store_dwordx4 v[{r}:{r+3}], v6, s[40:43], s3 offen sc0 sc1")
        e("s_waitcnt vmcnt(0)")
    e("s_lshl_b32 s3, s26, 2")
    e("s_add_u32 s3, s3, s57")
    e("v_mov_b32 v15, s93")
    e("buffer_store_dword v15, off, s[40:43], s3 sc0 sc1")
    e("s_mov_b32 s68, 0x100000")
    lab(nc)
    e("v_and_b32 v15, 3, v2")
    e("v_lshlrev_b32 v15, 2, v15")
    e(f"buffer_load_dword v13, v15, s[40:43], s57 offen offset:{kh*16} sc0 sc1")
    e("s_waitcnt vmcnt(0)")
    e("v_cmp_eq_u32 vcc, s93, v13")
    for j in range(4):
        e(f"s_or_b32 s3, s{64+j}, 0x{TLQ:x}")
        e(f"s_bitcmp1_b32 vcc_lo, {j}")
        e(f"s_cselect_b32 s{64+j}, s3, s{64+j}")
    for j in range(4): ld(j)
    e("s_cmp_lt_u32 s78, 0x40000")
    e(f"s_cbranch_scc1 {top}")
    lab(done)
    if STAMP:
        stamp(None, 11 if isC else 40, 4)
        e("v_mov_b32 v4, s78")
        e("s_lshl_b32 s74, s2, 8")
        e(f"s_add_u32 s74, s74, {STB + (20+kh)*4}")
        e("v_mov_b32 v5, 0")
        e("buffer_store_dword v4, v5, s[40:43], s74 offen")
    e("s_nop 7")
    e("s_nop 7")
    snd = range(4, 7) if isC else range(0, 4)
    kp = range(0, 4) if isC else range(4, 7)
    for t in snd:
        e(f"ds_write_b128 v12, v[{AC+t*4}:{AC+t*4+3}] offset:{t*1024}")
    e("s_waitcnt lgkmcnt(0)")
    e("s_barrier")
    RR = 76
    for t in kp:
        e(f"ds_read_b128 v[{RR+t*4}:{RR+t*4+3}], v12 offset:{t*1024}")
    if isC:
        sk = uid("NS")
        e("s_or_b32 s3, s26, s48")
        e("s_cmp_eq_u32 s3, 0")
        e(f"s_cbranch_scc0 {sk}")
        e("v_mov_b32 v13, s93")
        e("buffer_store_dword v13, off, s[40:43], s60 sc0 sc1")
        lab(sk)
    D = 108
    for n, t in enumerate(kp):
        e(f"s_waitcnt lgkmcnt({len(kp)-1-n})")
        a = AC + t*4; r = RR + t*4
        e(f"v_pk_add_f32 v[{a}:{a+1}], v[{a}:{a+1}], v[{r}:{r+1}]")
        e(f"v_pk_add_f32 v[{a+2}:{a+3}], v[{a+2}:{a+3}], v[{r+2}:{r+3}]")
        d = D + n*2
        e(f"v_cvt_pk_bf16_f32 v{d}, v{a}, v{a+1}")
        e(f"v_cvt_pk_bf16_f32 v{d+1}, v{a+2}, v{a+3}")
    e("s_nop 1")
    for pr in range(2 if isC else 1):
        d = D + pr*4
        e(f"v_permlane16_swap_b32 v{d}, v{d+2}")
        e(f"v_permlane16_swap_b32 v{d+1}, v{d+3}")
    e("s_nop 1")
    if isC:
        e(f"buffer_store_dwordx4 v[{D}:{D+3}], v10, s[88:91], 0 offen " + OPOL)
        e(f"buffer_store_dwordx4 v[{D+4}:{D+7}], v10, s[88:91], 0 offen offset:64 " + OPOL)
    else:
        e(f"buffer_store_dwordx4 v[{D}:{D+3}], v10, s[88:91], 0 offen offset:128 " + OPOL)
        e(f"buffer_store_dwordx2 v[{D+4}:{D+5}], v14, s[88:91], 0 offen offset:192 " + OPOL)
    stamp(None, 9 if isC else 41, 4)
    e("s_endpgm")

def compute(isB):
    lab("C_B" if isB else "C_A")
    vm = VM()
    comp_setup(isB)
    srds(isB)
    stamp(vm, 0)
    nonce_issue(vm)
    if PRE:
        e("s_mul_i32 s3, s25, 229376")
        e("s_mul_i32 s27, s24, 896")
        e("s_add_u32 s3, s3, s27")
        e("buffer_load_dword v30, v3, s[88:91], s3 offen"); vm.issue("pre")
        e("buffer_load_dword v30, v3, s[36:39], s55 offen"); vm.issue("pre")
        e("buffer_load_dword v30, v3, s[40:43], s59 offen"); vm.issue("pre")
    gemm(vm, isB)
    stamp(vm, 3)
    if isB: epi_B(vm)
    else: epi_A(vm)
    p2(isB, True)
    p2(isB, False)

def kernel():
    lab(f"{NAME}_kernel")
    prologue()
    for lw in range(4): loader(False, lw)
    for lw in range(4): loader(True, lw)
    compute(False)
    compute(True)
    lab("K_END")
    e("s_endpgm")

HDR = open("cdna_kernels/" + NAME + ".s.ref").read().split("; @launch")[0]
kernel()
out = HDR
out += f"; @launch grid=(256,1,1) block=(512,1,1) lds={LDS_TOTAL}\n"
out += '.amdgcn_target "amdgcn-amd-amdhsa--gfx950"\n.text\n'
out += f".globl {NAME}_kernel\n.p2align 8\n.type {NAME}_kernel,@function\n"
out += "\n".join(L) + "\n"
out += f""".section .rodata,"a"
.p2align 6
.amdhsa_kernel {NAME}_kernel
  .amdhsa_next_free_vgpr 256
  .amdhsa_next_free_sgpr 96
  .amdhsa_accum_offset 144
  .amdhsa_group_segment_fixed_size 0
  .amdhsa_kernarg_size 72
  .amdhsa_user_sgpr_count 2
  .amdhsa_user_sgpr_kernarg_segment_ptr 1
  .amdhsa_system_sgpr_workgroup_id_x 1
.end_amdhsa_kernel
"""
path = sys.argv[1] if len(sys.argv) > 1 else f"cdna_kernels/{NAME}.s"
open(path, "w").write(out)
```

```python
import sys, os, struct
NAME = "concat_heads__linear_attn_block__sliding_local_dilated__prompt"
TLP = 0
TLQ = int(os.environ.get("TLQ", "0x400000"), 0)
OPOL = os.environ.get("OPOL", "")
ACC = 0xa00000
NON = 0x800000
AS = int(os.environ.get("AS", "128"))
WS_END = 0xa00000 + 512*AS
STAMP = os.environ.get("STAMP") in ("1", "2")
RT = os.environ.get("STAMP") == "2"
STB = 0x900000
LOG2E = 0x3FB8AA3B
EPS = 0x358637BD
for s in range(64*21): assert (s * 4682) >> 16 == s // 14
for s in range(32): assert (s * 37) >> 8 == s // 7
RS = 224
KVS = 14336; QS = 7168; XS = 16384
LDS_TOTAL = 163840
ROT = os.environ.get("ROT", "1") == "1"
PPOL = os.environ.get("PPOL", "nt")
W0 = os.environ.get("W0") == "1"
PRE = os.environ.get("PRE", "1") == "1"
NOQ = os.environ.get("NOQ") == "1"
L1X = os.environ.get("L1X") == "1"
DA = int(os.environ.get("DA", "4"))
DB = int(os.environ.get("DB", "5"))
def f2u(x): return struct.unpack('<I', struct.pack('<f', x))[0]
SC2 = f2u(28 ** -0.5 * 1.4426950408889634)
CNT_Z = 40 * 4
WB = 6272
def A_kv(i): return (i % 5) * 30720
def A_x(i): return (i % 5) * 30720 + KVS
def A_q(i): return 61440 + i*QS
UP = 111616
def A_wo(h): return h*WB if h < 8 else UP + (h-8)*WB
def A_scr(lw): return A_wo(12 + lw)
KVB = 50176
B_WSL = [140288, 0, 21504, 118784]
def B_kv(i): return B_WSL[i % 4]
def B_q(i): return B_WSL[i % 4] + KVS
def B_x(i): return 43008 + (i % 3) * 18432
def B_wo(h): return 61440 + h*WB
assert B_wo(8) == UP
FLG = 161792
RED_A = 61440; RED_B = 0
EPO = NON + 0x10000

L = []
def e(s): L.append("    " + s)
def lab(s): L.append(s + ":")
def c(s): L.append("    ; " + s)
_uid = [0]
def uid(p):
    _uid[0] += 1
    return f"{p}_{_uid[0]}"

class CNT:
    def __init__(self, kind, mx): self.ops = []; self.kind = kind; self.mx = mx
    def issue(self, tag): self.ops.append(tag)
    def n(self, tag):
        idx = max(i for i, t in enumerate(self.ops) if t == tag)
        return min(len(self.ops) - 1 - idx, self.mx)
    def wait(self, tag): e(f"s_waitcnt {self.kind}({self.n(tag)})")
def VM(): return CNT("vmcnt", 63)
def LG(): return CNT("lgkmcnt", 15)

SIDS = [int(x) for x in os.environ["SIDS"].split(",")] if os.environ.get("SIDS") else None
def stamp(vm, i, r=28):
    if not STAMP: return
    if SIDS is not None and i not in SIDS: return
    if i in (1, 2):
        e(f"v_mov_b32 v{r}, s94")
    else:
        e("s_memrealtime s[72:73]" if RT else "s_memtime s[72:73]")
        e("s_waitcnt lgkmcnt(0)")
        e(f"v_mov_b32 v{r}, s72")
    e("s_lshl_b32 s74, s2, 8")
    e(f"s_add_u32 s74, s74, {STB + i*4}")
    e(f"v_and_b32 v{r+1}, 0xff, v0")
    e(f"v_cmp_eq_u32 s[76:77], 0, v{r+1}")
    e("s_mov_b64 exec, s[76:77]")
    e(f"buffer_store_dword v{r}, v{r+1}, s[40:43], s74 offen")
    e("s_mov_b64 exec, -1")
    if vm is not None: vm.issue("stamp")

def phi_pair(dst, a, b, t):
    assert b == a + 1 and a % 2 == 0 and t % 2 == 0
    return [f"v_pk_mul_f32 v[{t}:{t+1}], v[{a}:{b}], s[70:71]",
            f"v_exp_f32 v{t}, v{t} clamp",
            f"v_exp_f32 v{t+1}, v{t+1} clamp",
            f"v_max_f32 v{a}, 0, v{a}",
            f"v_max_f32 v{b}, 0, v{b}",
            f"v_pk_add_f32 v[{t}:{t+1}], v[{t}:{t+1}], v[{a}:{b}]",
            f"v_cvt_pk_bf16_f32 v{dst}, v{t}, v{t+1}"]
def ilv(seqs):
    for i in range(max(len(q) for q in seqs)):
        for q in seqs:
            if i < len(q): e(q[i])

def srd(base, lo, hi, nbytes):
    e(f"s_mov_b32 s{base}, s{lo}")
    e(f"s_and_b32 s{base+1}, s{hi}, 0xffff")
    e(f"s_mov_b32 s{base+2}, 0x{nbytes:x}")
    e(f"s_mov_b32 s{base+3}, 0x20000")

def srds(isB):
    e("s_waitcnt lgkmcnt(0)")
    o = 6 if isB else 0
    srd(32, 6+o, 7+o, 448*2688)
    srd(28, 4+o, 5+o, 2048*896)
    srd(40, 20, 21, WS_END)
    srd(36, 8+o, 9+o, 448*896)
    srd(44, 18, 19, 256)
    srd(88, 16, 17, 2048*1792)

def prologue():
    if STAMP: e("s_memrealtime s[94:95]")
    e("s_cmp_ge_u32 s2, 256")
    e("s_cbranch_scc1 K_END")
    e("s_load_dwordx4 s[4:7], s[0:1], 0")
    e("s_load_dwordx4 s[8:11], s[0:1], 16")
    e("s_load_dwordx4 s[12:15], s[0:1], 32")
    e("s_load_dwordx4 s[16:19], s[0:1], 48")
    e("s_load_dwordx2 s[20:21], s[0:1], 64")
    e("v_lshrrev_b32 v1, 6, v0")
    e("v_and_b32 v2, 63, v0")
    e("v_readfirstlane_b32 s48, v1")
    e("s_and_b32 s22, s2, 7")
    e("s_lshr_b32 s23, s2, 3")
    e("s_lshr_b32 s24, s22, 2")
    e("s_and_b32 s27, s22, 3")
    e("s_lshl_b32 s25, s27, 2")
    e("s_and_b32 s3, s23, 3")
    e("s_add_u32 s25, s25, s3")
    e("s_lshr_b32 s26, s23, 2")
    e("s_mul_i32 s56, s26, 112")
    e("s_lshr_b32 s55, s26, 1")
    e("s_mul_i32 s55, s55, 224")
    e("s_getreg_b32 s92, hwreg(HW_REG_XCC_ID)")
    e("s_and_b32 s92, s92, 15")
    e(f"s_mov_b32 s70, 0x{LOG2E:x}")
    e(f"s_mov_b32 s71, 0x{LOG2E:x}")
    e("s_lshl_b32 s60, s24, 4")
    e("s_add_u32 s60, s60, s25")
    e("s_lshl_b32 s59, s60, 17")
    e("s_lshl_b32 s60, s60, 7")
    e(f"s_add_u32 s60, s60, 0x{NON:x}")
    if ROT:
        e("s_mul_i32 s3, s23, 37")
        e("s_lshr_b32 s3, s3, 8")
        e("s_mul_i32 s3, s3, 7")
        e("s_sub_u32 s81, s23, s3")
    else:
        e("s_mov_b32 s81, 0")
    e("s_mov_b32 s82, s81")
    e("s_lshl_b32 s3, s24, 3")
    e("s_add_u32 s3, s3, s48")
    e("s_cmp_lt_u32 s3, 4")
    e("s_cbranch_scc1 C_A")
    for lw in range(4):
        e(f"s_cmp_eq_u32 s3, {4+lw}")
        e(f"s_cbranch_scc1 L_A{lw}")
    e("s_cmp_lt_u32 s3, 12")
    e("s_cbranch_scc1 C_B")
    for lw in range(3):
        e(f"s_cmp_eq_u32 s3, {12+lw}")
        e(f"s_cbranch_scc1 L_B{lw}")
    e("s_branch L_B3")

def nonce_issue(vm):
    e("v_mov_b32 v3, 0")
    e("buffer_load_dword v31, v3, s[40:43], s60 offen sc0 sc1")
    vm.issue("non")
def nonce_get():
    e("v_readfirstlane_b32 s93, v31")
    e("s_nop 3")
    e("s_add_u32 s93, s93, 16")
    e("s_and_b32 s61, s93, 0x7ff0")
    e("s_or_b32 s61, s61, s92")
    e("s_or_b32 s61, s61, 0x8000")
    e("s_lshl_b32 s61, s61, 16")

def div14(n):
    e(f"v_add_u32 v3, {64*n}, v2")
    e("v_mul_u32_u24 v4, 4682, v3")
    e("v_lshrrev_b32 v4, 16, v4")
    e("v_mul_u32_u24 v5, 14, v4")
    e("v_sub_u32 v3, v3, v5")
    e("v_cmp_lt_u32 vcc, 6, v3")
    e("v_cndmask_b32 v5, 0, 1, vcc")
    e("v_mul_u32_u24 v6, 7, v5")
    e("v_sub_u32 v3, v3, v6")

def w_voff(dst, n, isq):
    div14(n)
    e("v_lshrrev_b32 v6, 1, v4")
    e("v_and_b32 v6, 4, v6")
    e("v_xor_b32 v4, v4, v6")
    e("v_mul_u32_u24 v4, 2688, v4")
    if isq:
        e("v_mul_u32_u24 v5, s58, v5")
        e("v_lshl_add_u32 v3, v3, 4, v4")
        e(f"v_add_u32 v{dst}, v3, v5")
    else:
        e("v_mul_u32_u24 v5, 896, v5")
        e("v_lshl_add_u32 v3, v3, 4, v4")
        e(f"v_add3_u32 v{dst}, v3, v5, s57")

def step_hdr(sr):
    e(f"s_mul_i32 s83, s{sr}, 172032")
    e("s_add_u32 s83, s83, s56")
    e(f"s_lshl_b32 s85, s{sr}, 7")
    e("s_add_u32 s86, s85, 14336")
    e(f"s_add_u32 s{sr}, s{sr}, 1")
    e(f"s_cmp_eq_u32 s{sr}, 7")
    e(f"s_cselect_b32 s{sr}, 0, s{sr}")

FILL = []
FN = int(os.environ.get("FN", "12"))
def capture(fn, *a):
    global L
    sv = L; L = []
    fn(*a)
    r = L; L = sv
    FILL.extend(r)
def flush(n=10**9):
    while FILL and n > 0:
        L.append(FILL.pop(0)); n -= 1
def dma(vm, tag, voff, srd_, soff, lds):
    e(f"s_mov_b32 m0, {lds}")
    e("s_nop 0")
    e(f"buffer_load_dwordx4 v{voff}, s[{srd_}:{srd_+3}], {soff} offen lds")
    vm.issue(tag)
    flush(FN)

def wo_voffs(isB):
    for t in range(7):
        div14(t)
        e("v_min_u32 v4, 27, v4")
        e("v_cmp_lt_u32 vcc, 13, v4")
        e("v_cndmask_b32 v6, 0, 1, vcc")
        e("v_mul_u32_u24 v24, 14, v6")
        e("v_sub_u32 v4, v4, v24")
        e("v_lshrrev_b32 v24, 2, v4")
        e("v_and_b32 v25, 3, v4")
        e("v_cmp_lt_u32 vcc, 10, v4")
        e("v_cndmask_b32 v26, 0, 1, vcc")
        e("v_mul_u32_u24 v27, 3, v26")
        e("v_sub_u32 v27, v4, v27")
        e("v_subrev_u32 v27, 4, v27")
        e("v_cmp_lt_u32 vcc, 7, v4")
        e("v_cndmask_b32 v24, v24, v26, vcc")
        e("v_cndmask_b32 v25, v25, v27, vcc")
        e("v_lshl_add_u32 v24, v6, 1, v24")
        if not isB:
            e("v_mul_u32_u24 v24, 7, v24")
            e("v_add_u32 v4, v24, v25")
        else:
            e("v_lshl_add_u32 v4, v24, 2, v25")
            e("v_add_u32 v26, 12, v4")
            e("v_lshlrev_b32 v27, 2, v25")
            e("v_add_u32 v27, 3, v27")
            e("v_cmp_eq_u32 s[4:5], 3, v24")
            e("v_cndmask_b32 v26, v26, v27, s[4:5]")
            e("v_cndmask_b32 v4, v4, v26, vcc")
        e("v_mul_u32_u24 v5, 112, v5")
        e("v_mul_u32_u24 v4, 896, v4")
        e("v_lshl_add_u32 v3, v3, 4, v4")
        e(f"v_add3_u32 v{40+t}, s55, v3, v5")

def wo_block(vm, h, isB):
    base = B_wo(h) if isB else A_wo(h)
    e(f"s_mov_b32 s86, {h*28*896}")
    for t in range(7):
        if t == 6: e("s_mov_b64 exec, 0xff")
        dma(vm, "wo", 40+t, 36, "s86", base + t*1024)
    e("s_mov_b64 exec, -1")

def flg_init(lw):
    if lw == 0:
        e(f"v_mov_b32 v3, {FLG}")
        e("v_mov_b32 v4, 0")
        e("v_mov_b32 v5, 0")
        e("ds_write_b64 v3, v[4:5]")
        e("s_waitcnt lgkmcnt(0)")

def loader(isB, lw):
    lab(f"L_{'B' if isB else 'A'}{lw}")
    vm = VM()
    SO = 32
    e("s_movk_i32 s57, 896")
    e("s_mov_b32 s58, 86016")
    e("v_lshrrev_b32 v3, 3, v2")
    e("v_lshrrev_b32 v4, 4, v2")
    e("v_and_b32 v5, 7, v2")
    e("v_xor_b32 v5, v5, v4")
    e("s_lshl_b32 s3, s25, 7")
    e(f"s_add_u32 s3, s3, {32*lw}")
    e("v_add_u32 v6, s3, v3")
    e("v_mul_u32_u24 v6, 896, v6")
    e("v_lshl_add_u32 v16, v5, 4, v6")
    e("v_xor_b32 v17, 64, v16")
    e("v_add_u32 v17, 7168, v17")
    kvn = [n for n in range(lw, 14, 4)]
    if isB:
        wn = [n for n in range(lw, 21, 4)]
        kvn = [n for n in wn if n < 14]; qn = [n-14 for n in wn if n >= 14]
    else:
        qn = [n for n in range(lw, 7, 4)]
    for j, n in enumerate(kvn): w_voff(8+j, n, False)
    if isB:
        for j, n in enumerate(qn): w_voff(12+j, n, True)
        if lw in (1, 2):
            u = lw - 1
            e("v_lshrrev_b32 v3, 3, v2")
            e("v_lshrrev_b32 v4, 4, v2")
            e("v_and_b32 v5, 7, v2")
            e("v_xor_b32 v5, v5, v4")
            if u: e("v_xor_b32 v5, 4, v5")
            e("s_lshl_b32 s3, s25, 7")
            e("s_sub_u32 s3, s3, 16")
            e("s_max_i32 s3, s3, 0")
            e(f"s_add_u32 s3, s3, {8*u}")
            e("v_add_u32 v6, s3, v3")
            e("v_mul_u32_u24 v6, 896, v6")
            e("v_lshl_add_u32 v18, v5, 4, v6")
    srds(isB)
    stamp(vm, SO + 0)
    def isW(i):
        for j, n in enumerate(kvn): dma(vm, f"c{i}", 8+j, 32, "s83", (B_kv(i) if isB else A_kv(i)) + n*1024)
        if isB:
            for j, n in enumerate(qn): dma(vm, f"c{i}", 12+j, 32, "s83", B_q(i) + n*1024)
    def isX(i):
        xb = B_x(i) if isB else A_x(i)
        for u in range(4):
            dma(vm, f"c{i}", 16 + (u & 1), 28, "s85" if u < 2 else "s86", xb + (2048 if isB else 0) + (4*lw+u)*1024)
        if isB and lw in (1, 2):
            dma(vm, f"c{i}", 18, 28, "s85", xb + (lw-1)*1024)
    if not isB:
        step_hdr(81); isX(0); isW(0)
        nonce_issue(vm)
        if W0: e("s_waitcnt vmcnt(0)")
        stamp(vm, 36)
        for r in range(4): e(f"v_mov_b32 v{4+r}, 0")
        zs = uid("ZS")
        e("s_cmp_eq_u32 s25, 0")
        e(f"s_cbranch_scc0 {zs}")
        e(f"s_mul_i32 s3, s26, {64*AS}")
        e(f"s_add_u32 s3, s3, 0x{ACC + lw*16*AS:x}")
        e("v_lshrrev_b32 v3, 2, v2")
        e(f"v_mul_u32_u24 v3, {AS}, v3")
        e("v_and_b32 v19, 3, v2")
        e("v_lshl_add_u32 v3, v19, 5, v3")
        e("buffer_store_dwordx4 v[4:7], v3, s[40:43], s3 offen sc0 sc1")
        e("buffer_store_dwordx4 v[4:7], v3, s[40:43], s3 offen offset:16 sc0 sc1")
        lab(zs)
        step_hdr(81); isX(1); isW(1)
        flg_init(lw)
        def isQ(i):
            step_hdr(82)
            for j, n in enumerate(qn): dma(vm, "q", 12+j, 32, "s83", A_q(i) + n*1024)
        for i in range(7):
            if i == 0: stamp(vm, 37)
            vm.wait(f"c{i}")
            if i == 0: stamp(vm, 38)
            e("s_barrier")
            if i == 0:
                for j, n in enumerate(qn): capture(w_voff, 12+j, n, True)
                capture(wo_voffs, False)
            if i == 3:
                nonce_get()
                if lw == 0:
                    zs = uid("ZF")
                    e("s_cmp_eq_u32 s25, 0")
                    e(f"s_cbranch_scc0 {zs}")
                    e("s_lshl_b32 s3, s26, 2")
                    e(f"v_mov_b32 v22, {CNT_Z}")
                    e("v_mov_b32 v23, 1")
                    e("s_mov_b64 exec, 1")
                    e("buffer_store_dword v23, v22, s[44:47], s3 offen sc0 sc1")
                    e("s_mov_b64 exec, -1")
                    lab(zs)
            if i <= 4: step_hdr(81); isX(i+2); isW(i+2)
            if i == 4: flush()
            if i == 5:
                for k in range(4): isQ(k)
            if i == 6:
                for k in range(4, 7): isQ(k)
        zl = uid("ZL"); zd = uid("ZD"); z1 = uid("Z1")
        e("s_mov_b32 s78, 0")
        e(f"v_mov_b32 v3, {CNT_Z}")
        e("s_lshl_b32 s3, s26, 2")
        e("buffer_load_dword v19, v3, s[44:47], s3 offen sc0 sc1")
        vm.issue("z")
        wo_block(vm, 8 + lw, False)
        vm.wait("z")
        e(f"s_branch {z1}")
        lab(zl)
        e("buffer_load_dword v19, v3, s[44:47], s3 offen sc0 sc1")
        e("s_waitcnt vmcnt(0)")
        lab(z1)
        e("v_readfirstlane_b32 s79, v19")
        e("s_add_u32 s78, s78, 1")
        e("s_nop 2")
        e("s_cmp_eq_u32 s79, 1")
        e(f"s_cbranch_scc1 {zd}")
        e("s_sleep 1")
        e("s_cmp_gt_u32 s78, 0x40000")
        e(f"s_cbranch_scc0 {zl}")
        lab(zd)
        hh = lw >> 1; et = lw & 1
        e("v_and_b32 v5, 15, v2")
        e("v_lshrrev_b32 v6, 4, v2")
        e("v_lshlrev_b32 v3, 4, v2")
        e(f"v_add_u32 v4, {A_scr(lw)}, v3")
        e(f"s_mul_i32 s3, s26, {64*AS}")
        e(f"s_add_u32 s57, s3, 0x{ACC + lw*16*AS:x}")
        for r in range(1, 4): e(f"s_add_u32 s{50+r}, s57, {r*AS}")
        e(f"s_add_u32 s54, s57, {8*AS}")
        e(f"v_mul_u32_u24 v8, {4*AS}, v6")
        e("v_lshl_add_u32 v8, v5, 2, v8")
        e("v_cmp_gt_u32 s[66:67], 3, v6")
        e("v_cmp_le_u32 s[64:65], 14, v5")
        e("v_cmp_gt_u32 s[68:69], 2, v5")
        e("v_and_b32 v10, 7, v2")
        e("v_lshrrev_b32 v11, 3, v2")
        e(f"v_mul_u32_u24 v9, {AS}, v11")
        e("v_lshl_add_u32 v9, v10, 4, v9")
        e("v_cmp_eq_u32 s[4:5], 3, v10")
        e("v_cmp_eq_u32 s[6:7], 4, v10")
        e("s_or_b64 s[6:7], s[6:7], s[4:5]")
        if et:
            e("v_cmp_gt_u32 s[8:9], 5, v11")
            e("s_and_b64 s[10:11], s[8:9], s[6:7]")
            e("v_cmp_eq_u32 s[12:13], 4, v11")
        else:
            e("s_mov_b64 s[10:11], s[6:7]")
        e("v_and_b32 v12, 3, v10")
        e("v_lshlrev_b32 v12, 4, v12")
        e("v_lshrrev_b32 v10, 2, v10")
        e("v_lshl_add_u32 v12, v10, 3, v12")
        e(f"v_add_u32 v12, {KVB + hh*2048}, v12")
        for j in range(2):
            e(f"v_add_u32 v13, {16*et + 8*j}, v11")
            e("v_mul_u32_u24 v14, 37, v13")
            e("v_lshrrev_b32 v14, 8, v14")
            e("v_mul_u32_u24 v15, 7, v14")
            e("v_sub_u32 v15, v13, v15")
            e("v_lshrrev_b32 v16, 2, v15")
            e("v_and_b32 v15, 3, v15")
            e("v_lshl_add_u32 v15, v14, 2, v15")
            e("v_lshl_add_u32 v15, v16, 4, v15")
            if et and j:
                e("v_cndmask_b32 v15, v15, 19, s[12:13]")
            e(f"v_lshl_add_u32 v{20+j}, v15, 6, v12")
        vm.wait("q")
        e("s_barrier")
        stamp(vm, SO + 1)
        RD = 48
        for dt in range(2):
            for w in range(2):
                r = RD + dt*16 + w*4
                e(f"ds_read_b128 v[{r}:{r+3}], v4 offset:{w*2048 + dt*1024}")
        for dt in range(2):
            e(f"s_waitcnt lgkmcnt({2-2*dt})")
            b = RD + dt*16
            for r in range(4):
                e(f"v_add_f32 v{b+r}, v{b+r}, v{b+4+r}")
            for r in range(4):
                e(f"v_cndmask_b32 v{b+r}, v{b+r}, 1.0, s[{64+4*dt}:{65+4*dt}]")
        for dt in range(2):
            e(f"buffer_atomic_add_f32 v{RD+dt*16}, v8, s[40:43], s57 offen offset:{dt*64} sc1")
        if et: e("s_mov_b64 exec, s[66:67]")
        for r in range(1, 4):
            for dt in range(2):
                e(f"buffer_atomic_add_f32 v{RD+dt*16+r}, v8, s[40:43], s{50+r} offen offset:{dt*64} sc1")
        if et: e("s_mov_b64 exec, -1")
        stamp(vm, SO + 2)
        wo_block(vm, lw, False)
        wo_block(vm, lw + 4, False)
        wo_block(vm, lw + 12, False)
        PR = 80
        lp = uid("KVL"); dn = uid("KVD")
        e("s_mov_b32 s78, 0")
        lab(lp)
        for j in range(2):
            e(f"buffer_load_dwordx4 v[{PR+j*4}:{PR+j*4+3}], v9, s[40:43], s{54 if j else 57} offen sc0 sc1")
        e("s_waitcnt vmcnt(0)")
        e(f"v_cndmask_b32 v13, v{PR}, v{PR+2}, s[4:5]")
        e("v_cmp_eq_f32 vcc, 0x41800000, v13")
        e("s_and_b64 s[14:15], vcc, s[6:7]")
        e(f"v_cndmask_b32 v13, v{PR+4}, v{PR+6}, s[4:5]")
        e("v_cmp_eq_f32 vcc, 0x41800000, v13")
        e("s_and_b64 s[16:17], vcc, s[10:11]")
        e("s_xor_b64 s[14:15], s[14:15], s[6:7]")
        e("s_xor_b64 s[16:17], s[16:17], s[10:11]")
        e("s_or_b64 s[14:15], s[14:15], s[16:17]")
        e(f"s_cbranch_scc0 {dn}")
        e("s_add_u32 s78, s78, 1")
        e("s_cmp_gt_u32 s78, 0x40000")
        e(f"s_cbranch_scc0 {lp}")
        lab(dn)
        for j in range(2):
            r = PR + j*4
            e(f"v_cvt_pk_bf16_f32 v{r}, v{r}, v{r+1}")
            e(f"v_cvt_pk_bf16_f32 v{r+1}, v{r+2}, v{r+3}")
            if et and j: e("s_mov_b64 exec, s[8:9]")
            e(f"ds_write_b64 v{20+j}, v[{r}:{r+1}]")
        if et:
            e("s_mov_b64 exec, s[12:13]")
            for k in range(1, 4):
                e(f"ds_write_b64 v21, v[{PR+4}:{PR+5}] offset:{k*256}")
            e("s_mov_b64 exec, -1")
        e("s_waitcnt lgkmcnt(0)")
        e("s_barrier")
        stamp(vm, SO + 3)
    else:
        step_hdr(81); isX(0); isW(0)
        nonce_issue(vm)
        if W0: e("s_waitcnt vmcnt(0)")
        stamp(vm, 36)
        step_hdr(81); isX(1); isW(1)
        flg_init(lw)
        for i in range(7):
            if i == 0: stamp(vm, 37)
            vm.wait(f"c{i}")
            if i == 0: stamp(vm, 38)
            e("s_barrier")
            if i == 0: capture(wo_voffs, True)
            if i == 1: nonce_get()
            if i <= 4: step_hdr(81); isX(i+2); isW(i+2)
            if i == 4: flush()
            if i == 5:
                for h in [0, 1, 6, 7, 8, 9, 10, 11][2*lw:2*lw+2]: wo_block(vm, h, True)
            if i == 6:
                for h in [2, 3, 4, 5, 12, 13, 14, 15][2*lw:2*lw+2]: wo_block(vm, h, True)
        e(f"v_mov_b32 v3, {FLG}")
        e("v_mov_b32 v4, 1")
        e("s_barrier")
        e("s_waitcnt vmcnt(0)")
        e("s_mov_b64 exec, 1")
        e("ds_add_u32 v3, v4")
        e("s_mov_b64 exec, -1")
        stamp(vm, SO + 3)
    e(f"s_branch P2_{'B' if isB else 'A'}L")

NP = int(os.environ.get("NP", "64"))
NRES = 10
SLP = int(os.environ.get("SLP", "0"))
EARLY = os.environ.get("EARLY", "0") == "1"
FPOL = os.environ.get("FPOL", "nt")
TR = os.environ.get("TR") == "1"
def tr(k):
    if TR: e(f"s_memrealtime s[{4+2*k}:{5+2*k}]")
PST = int(os.environ.get("PST", "0"))
AC = 16; OF = 44; WV = 76; ST = 124
def oreg(j, hh): return OF + (j*2+hh)*4
def wreg(j, f):
    if f >= NRES: return "v", ST + (f-NRES)*4
    i = j*NRES + f
    return ("a", i*4) if i < 28 else ("v", WV + (i-28)*4)
def rdf(j, f):
    hh, nt = divmod(f, 7)
    k, r = wreg(j, f)
    o = (2*j+hh)*WB + nt*32
    e(f"ds_read_b64_tr_b16 {k}[{r}:{r+1}], v8 offset:{o}")
    e(f"ds_read_b64_tr_b16 {k}[{r+2}:{r+3}], v9 offset:{o}")
def rd_res(kind):
    for j in range(4):
        for f in range(NRES):
            if wreg(j, f)[0] in kind: rdf(j, f)
def wo_bases(wo):
    e("v_lshrrev_b32 v7, 4, v2")
    e("v_lshrrev_b32 v3, 1, v7")
    e("v_bfe_u32 v8, v2, 2, 2")
    e("v_mul_u32_u24 v9, 14, v3")
    e("v_and_b32 v4, 1, v7")
    e("v_lshl_add_u32 v6, v4, 2, v9")
    e("v_add_u32 v6, v6, v8")
    e("v_mul_u32_u24 v5, 3, v4")
    e("v_min_u32 v8, 2, v8")
    e("v_add3_u32 v9, v9, v5, v8")
    e("v_add_u32 v9, 8, v9")
    e("v_and_b32 v5, 3, v2")
    e("v_lshlrev_b32 v5, 3, v5")
    e(f"v_add_u32 v5, {wo}, v5")
    e(f"v_mul_u32_u24 v8, {RS}, v6")
    e("v_add_u32 v8, v8, v5")
    e(f"v_mul_u32_u24 v9, {RS}, v9")
    e("v_add_u32 v9, v9, v5")
def spin_flag(off, val, cmp_):
    lp = uid("SP")
    e(f"v_mov_b32 v3, {FLG}")
    lab(lp)
    e(f"ds_read_b32 v4, v3 offset:{off}")
    e("s_waitcnt lgkmcnt(0)")
    e("v_readfirstlane_b32 s3, v4")
    e("s_nop 3")
    e(f"s_cmp_{cmp_}_u32 s3, {val}")
    e(f"s_cbranch_scc0 {lp}")
def tcol(isB, grp, t):
    return (t >> 1)*56 + (t & 1)*(24 if (not isB and grp < 2) else 32)

def accA(grp, rt, t): return 32 + (rt*4+t)*4
def accA2(grp, t, rt): return 32 + (grp-1)*32 + (t*4+rt)*4
def accB(grp, t, r):
    if grp == 0: return 32 + r*8 + t*4
    if grp == 1: return 64 + r*8 + t*4
    return 104 + t*20 + r*4

def comp_setup(isB):
    wo_bases((B_wo if isB else A_wo)(0))
    e("v_lshrrev_b32 v3, 4, v2")
    e("v_bfe_u32 v4, v2, 2, 2")
    e("v_lshl_add_u32 v4, v3, 3, v4")
    e("v_and_b32 v5, 1, v3")
    e("v_lshlrev_b32 v5, 2, v5")
    e("v_add_u32 v6, v4, v5")
    e("v_xor_b32 v7, 4, v6")
    e(f"v_mul_u32_u24 v6, {RS}, v6")
    e(f"v_mul_u32_u24 v7, {RS}, v7")
    e("v_and_b32 v5, 3, v2")
    e("v_lshl_add_u32 v14, v5, 3, v6")
    e("v_lshl_add_u32 v15, v5, 3, v7")
    e("s_and_b32 s49, s48, 1")
    e("s_lshr_b32 s50, s48, 1")
    e("s_mul_i32 s3, s49, 56")
    e("v_add_u32 v12, s3, v14")
    e("v_add_u32 v13, s3, v15")
    e("v_and_b32 v4, 15, v2")
    e("v_lshrrev_b32 v5, 1, v4")
    e("v_xor_b32 v5, v5, v3")
    e("v_lshlrev_b32 v5, 4, v5")
    e("v_lshl_add_u32 v18, v4, 7, v5")
    if isB:
        e("s_lshl_b32 s3, s50, 13")
        e("v_add_u32 v16, s3, v18")
        e("v_xor_b32 v17, 64, v16")
    else:
        e("v_lshl_add_u32 v16, v1, 12, v18")
        e("v_xor_b32 v17, 64, v16")
        e("v_xor_b32 v18, 0x1000, v16")
        e("v_xor_b32 v19, 0x1000, v17")

def gemm(vm, isB):
    lg = LG()
    D = DB if isB else DA
    NB = 12 if isB else 6
    assert D <= (5 if isB else 4)
    def bf(j):
        r = (j % NB)*4 + (0 if isB else 96); k = "a" if isB else "v"
        return (f"{k}[{r}:{r+3}]", f"{k}[{r}:{r+1}]", f"{k}[{r+2}:{r+3}]")
    def xr(ch, kk, rt):
        st = (2*ch + kk) % 3
        if isB: r = 48 + st*20 + rt*4
        elif rt < 2: r = (ch*4 + kk*2 + rt)*4
        else:
            r = 120 + st*8 + (rt-2)*4
            return f"v[{r}:{r+3}]"
        return f"a[{r}:{r+3}]"
    items = []
    for ch in range(7):
        for kk in range(2):
            for grp in ((0, 1, 2) if isB else (1, 2)):
                for t in range(2): items.append((ch, kk, grp, t))
    def sync(ch):
        if ch == 6: vm.wait("pre" if PRE else "non")
        e("s_barrier")
        stamp(vm, 12 + ch)
        if PST == ch + 2: prestore(vm, isB)
        wb = 20 + (ch & 1)*2
        kvb = B_kv(ch) if isB else A_kv(ch)
        xb = B_x(ch) if isB else A_x(ch)
        e(f"v_add_u32 v24, {xb}, v16")
        e(f"v_add_u32 v25, {xb}, v17")
        if not isB:
            e(f"v_add_u32 v26, {xb}, v18")
            e(f"v_add_u32 v27, {xb}, v19")
        e(f"v_add_u32 v{wb}, {kvb}, v12")
        e(f"v_add_u32 v{wb+1}, {kvb}, v13")
    def xrd(ch, kk):
        if isB:
            for rt in (1, 2, 3, 4, 0):
                e(f"ds_read_b128 {xr(ch,kk,rt)}, v{24+kk} offset:{rt*2048}")
                lg.issue(f"x{ch}")
        else:
            for rt in range(4):
                e(f"ds_read_b128 {xr(ch,kk,rt)}, v{24+kk+(rt>>1)*2} offset:{(rt&1)*2048}")
                lg.issue(f"x{ch}")
    def rd(j):
        ch, kk, grp, t = items[j]
        if j == 0 or items[j-1][0] != ch: sync(ch)
        if j == 0 or items[j-1][:2] != (ch, kk): xrd(ch, kk)
        wb = 20 + (ch & 1)*2
        if grp == 0: off = KVS + kk*112 + t*32
        else: off = 32*kk*RS + (grp-1)*112 + t*(24 if (not isB and grp == 1) else 32)
        for hf in range(2):
            e(f"ds_read_b64_tr_b16 {bf(j)[1+hf]}, v{wb+hf} offset:{off}")
            lg.issue(f"w{j}")
    for j in range(D): rd(j)
    for j, (ch, kk, grp, t) in enumerate(items):
        if j + D < len(items): rd(j + D)
        lg.wait(f"w{j}")
        tr = isB and grp < 2
        first = (ch == 0 and kk == 0)
        for r in range(5 if (isB and grp) else 4):
            a = accB(grp, t, r) if isB else accA2(grp, t, r)
            x = xr(ch, kk, r + 1 if (isB and grp == 0) else r)
            cc = "0" if first else f"v[{a}:{a+3}]"
            if tr: e(f"v_mfma_f32_16x16x32_bf16 v[{a}:{a+3}], {bf(j)[0]}, {x}, {cc}")
            else: e(f"v_mfma_f32_16x16x32_bf16 v[{a}:{a+3}], {x}, {bf(j)[0]}, {cc}")

def pass2():
    lg = LG()
    D = 6; NB = 12
    items = [(ch, kk, t) for ch in range(7) for kk in range(2) for t in range(4)]
    e(f"v_add_u32 v20, {A_q(0)}, v14")
    e(f"v_add_u32 v21, {A_q(0)}, v15")
    def rd(j):
        ch, kk, t = items[j]
        r = 96 + (j % NB)*4
        off = A_q(ch) - A_q(0) + kk*112 + tcol(False, 0, t)
        for hf in range(2):
            e(f"ds_read_b64_tr_b16 v[{r+2*hf}:{r+2*hf+1}], v{20+hf} offset:{off}")
            lg.issue(f"w{j}")
    for j in range(D): rd(j)
    for j, (ch, kk, t) in enumerate(items):
        if j + D < len(items): rd(j + D)
        lg.wait(f"w{j}")
        r = 96 + (j % NB)*4
        for rt in range(2):
            a = accA(0, rt, t); x = (ch*4 + kk*2 + rt)*4
            cc = "0" if (ch == 0 and kk == 0) else f"v[{a}:{a+3}]"
            e(f"v_mfma_f32_16x16x32_bf16 v[{a}:{a+3}], v[{r}:{r+3}], a[{x}:{x+3}], {cc}")

def tile_addr(isB, r=14):
    if isB:
        e("s_lshl_b32 s3, s50, 13")
        e("s_lshl_b32 s27, s49, 10")
        e("s_add_u32 s3, s3, s27")
        e(f"v_lshlrev_b32 v{r}, 4, v2")
        e(f"v_add_u32 v{r}, s3, v{r}")
        e(f"v_add_u32 v{r+1}, 0x1000, v{r}")
    else:
        e(f"v_lshlrev_b32 v{r}, 12, v1")
        e(f"v_lshl_add_u32 v{r}, v2, 4, v{r}")
    e("s_lshl_b32 s27, s26, 14")
    e("s_add_u32 s63, s59, s27")
PLD = os.environ.get("PLD", "0") == "1"
def prestore(vm, isB):
    if PLD:
        e("v_lshlrev_b32 v10, 7, v2")
        e("v_lshl_add_u32 v10, v1, 12, v10")
        e("s_lshl_b32 s27, s26, 14")
        e("s_add_u32 s63, s59, s27")
        e("s_mov_b64 exec, 0xffffffff")
        e("buffer_load_dword v30, v10, s[40:43], s63 offen nt")
        e("s_mov_b64 exec, -1")
        vm.issue("pre")
        return
    tile_addr(isB, 10)
    for r in range(4): e(f"v_mov_b32 v{4+r}, 0")
    for (va, off, n) in tile_regs(isB):
        e(f"buffer_store_dwordx4 v[4:7], v{va-4}, s[40:43], s63 offen offset:{off}")
        vm.issue("pre")
def tile_regs(isB):
    if isB: return [(14 + (rt >> 1), (rt & 1)*2048, 16 + rt*4) for rt in range(4)]
    return [(14, rt*2048 + hh*1024, 16 + (hh*2+rt)*4) for hh in range(2) for rt in range(2)]
def tile_store(isB, q, vm=None):
    for (va, off, n) in tile_regs(isB):
        if q: e(f"buffer_store_dwordx4 v[{n}:{n+3}], v{va}, s[40:43], s51 offen offset:{off} sc0 sc1")
        else: e(f"buffer_store_dwordx4 v[{n}:{n+3}], v{va}, s[40:43], s63 offen offset:{off}")
        if vm: vm.issue("Q")

def epi_A(vm):
    c("---- A epilogue ----")
    e("v_and_b32 v5, 15, v2")
    e("v_lshrrev_b32 v6, 4, v2")
    e("v_cmp_le_u32 s[64:65], 12, v5")
    e("v_mov_b32 v7, 0x3f803f80")
    e(f"s_mul_i32 s3, s49, {2*WB}")
    e("s_lshl_b32 s27, s50, 11")
    e("s_add_u32 s3, s3, s27")
    e(f"s_add_u32 s3, s3, {A_scr(0)}")
    e("v_lshlrev_b32 v3, 4, v2")
    e("v_add_u32 v4, s3, v3")
    e("s_nop 7")
    PK = 96; VV = 112; TT = 128; KP = 32
    for t in range(2):
        for pr in range(2):
            sq = []
            for r2 in range(2):
                a = accA2(1, t, pr*2 + r2)
                d = PK + (t*2+pr)*4 + r2*2
                sq.append(phi_pair(d, a, a+1, TT + r2*4))
                sq.append(phi_pair(d + 1, a+2, a+3, TT + r2*4 + 2))
            ilv(sq)
    for t in range(2):
        for rt in range(4):
            a = accA2(2, t, rt)
            d = VV + t*8 + rt*2
            e(f"v_cvt_pk_bf16_f32 v{d}, v{a}, v{a+1}")
            e(f"v_cvt_pk_bf16_f32 v{d+1}, v{a+2}, v{a+3}")
            if t & 1:
                e(f"v_cndmask_b32 v{d}, v{d}, v7, s[64:65]")
                e(f"v_cndmask_b32 v{d+1}, v{d+1}, v7, s[64:65]")
    e("s_nop 1")
    for pr in range(2):
        for et in range(2):
            for dt in range(2):
                d = KP + (et*2 + dt)*4
                va = VV + (et*2+pr)*4; pk = PK + (dt*2+pr)*4
                cc = "0" if pr == 0 else f"v[{d}:{d+3}]"
                e(f"v_mfma_f32_16x16x32_bf16 v[{d}:{d+3}], v[{va}:{va+3}], v[{pk}:{pk+3}], {cc}")
    e("s_nop 7")
    for i in range(4):
        e("s_nop 3")
        e(f"ds_write_b128 v4, v[{KP+i*4}:{KP+i*4+3}] offset:{(i>>1)*WB + (i&1)*1024}")
    e("s_waitcnt lgkmcnt(0)")
    e("s_barrier")
    stamp(vm, 4)
    pass2()
    stamp(vm, 7)
    nonce_get()
    QF = 64
    e("v_cmp_eq_u32 s[10:11], 3, v6")
    e("v_cmp_eq_u32 s[12:13], 0, v6")
    e("v_lshlrev_b32 v10, 6, v5")
    e("v_lshl_add_u32 v10, v6, 4, v10")
    e(f"v_add_u32 v10, {KVB}, v10")
    tile_addr(False)
    e("v_mov_b32 v11, 0xffff")
    e("s_nop 3")
    for t in range(4):
        sq = []
        for rt in range(2):
            a = accA(0, rt, t)
            d = QF + (rt*2 + (t >> 1))*4 + (t & 1)*2
            s0 = phi_pair(d, a, a+1, TT + rt*4)
            s1 = phi_pair(d+1, a+2, a+3, TT + rt*4 + 2)
            if t & 1: s0.append(f"v_cndmask_b32 v{d}, v{d}, 0, s[12:13]")
            else: s1.append(f"v_cndmask_b32 v{d+1}, v{d+1}, 0, s[10:11]")
            sq += [s0, s1]
        ilv(sq)
    e("s_barrier")
    stamp(vm, 10)
    R = 80
    for hh in range(2):
        for f in range(2):
            r = R + (hh*2+f)*4
            e(f"ds_read_b128 v[{r}:{r+3}], v10 offset:{hh*2048 + f*1024}")
    NR = 96
    for hh in range(2):
        e(f"s_waitcnt lgkmcnt({2 - 2*hh})")
        for rt in range(2):
            n = NR + (hh*2+rt)*8
            q = QF + (rt*2+hh)*4
            for f in (1, 0):
                r = R + (hh*2+f)*4
                e(f"v_mfma_f32_16x16x32_bf16 v[{n+f*4}:{n+f*4+3}], v[{r}:{r+3}], v[{q}:{q+3}], 0")
    if EARLY: rd_res("a")
    e("s_nop 7")
    sq = []; regs = []
    for hh in range(2):
        for rt in range(2):
            n = NR + (hh*2+rt)*8
            t = TT + (hh*2+rt)*2
            o = [f"v_add_f32 v{t}, 0x{EPS:x}, v{n+7}",
                 f"v_rcp_f32 v{t}, v{t}",
                 f"v_mov_b32 v{t+1}, v{t}"]
            for q in range(3):
                o.append(f"v_pk_mul_f32 v[{n+2*q}:{n+2*q+1}], v[{n+2*q}:{n+2*q+1}], v[{t}:{t+1}]")
            o.append(f"v_mul_f32 v{n+6}, v{n+6}, v{t}")
            T = 16 + (hh*2+rt)*4
            for q in range(3):
                o.append(f"v_cvt_pk_bf16_f32 v{T+q}, v{n+2*q}, v{n+2*q+1}")
            o.append(f"v_cvt_pk_bf16_f32 v{T+3}, v{n+6}, v{n+6}")
            o.append(f"v_and_or_b32 v{T+3}, v{T+3}, v11, s61")
            sq.append(o)
    ilv(sq)
    tile_store(False, False)
    stamp(vm, 5, 4)

def epi_B(vm):
    c("---- B epilogue ----")
    e("v_and_b32 v5, 15, v2")
    e("v_lshrrev_b32 v6, 4, v2")
    e("v_cmp_gt_u32 s[64:65], 3, v6")
    nonce_get()
    e("v_and_b32 v3, 1, v5")
    e("v_cmp_eq_u32 s[4:5], 1, v3")
    e("v_mov_b32 v10, 0xffff")
    e("v_mov_b32 v11, 0xffff0000")
    e("v_cndmask_b32 v12, v10, v11, s[4:5]")
    e("v_lshl_add_u32 v11, v6, 2, v3")
    e("v_sub_u32 v11, v11, v5")
    def KF(blk): return 64 + blk*8
    def QF(rt): return 32 + rt*8
    def VB(et): return 104 + et*20
    def cvt4(b):
        for q in range(4): e(f"v_cvt_pk_bf16_f32 v{b+q}, v{b+2*q}, v{b+2*q+1}")
    def C0(cb): return 32 + cb*8 + 4
    def C1(cb): return 64 + cb*8 + 4
    for rt in range(4):
        b = QF(rt)
        cvt4(b)
        e(f"v_cndmask_b32 v{b+2}, 0, v{b+2}, s[64:65]")
        e(f"v_cndmask_b32 v{b+3}, 0, v{b+3}, s[64:65]")
    for blk in range(5): cvt4(KF(blk))
    e("s_nop 1")
    for rt in range(4):
        q = QF(rt)
        for ti in range(2):
            k = KF(rt + ti)
            d = C0(rt) if ti == 0 else C1(rt)
            e(f"v_mfma_f32_16x16x32_bf16 v[{d}:{d+3}], v[{k}:{k+3}], v[{q}:{q+3}], 0")
    e("s_barrier")
    for et in range(2):
        b = VB(et)
        for blk in range(5):
            e(f"v_cvt_pk_bf16_f32 v{b+2*blk}, v{b+4*blk}, v{b+4*blk+1}")
            e(f"v_cvt_pk_bf16_f32 v{b+2*blk+1}, v{b+4*blk+2}, v{b+4*blk+3}")
    for k in range(4):
        addk = 2*k if k < 2 else 16 + 2*(k-2)
        e(f"v_add_u32 v13, {addk}, v11")
        e(f"v_cmp_le_i32 s[{6+2*k}:{7+2*k}], 2, v13")
        e(f"v_cmp_ge_i32 vcc, 16, v13")
        e(f"s_and_b64 s[{6+2*k}:{7+2*k}], s[{6+2*k}:{7+2*k}], vcc")
    e("s_or_b32 s3, s25, s50")
    e("s_cmp_eq_u32 s3, 0")
    e("s_cselect_b64 s[14:15], 0, -1")
    e("s_and_b64 s[16:17], s[6:7], s[14:15]")
    e("s_and_b64 s[18:19], s[8:9], s[14:15]")
    e("v_mov_b32 v13, 0xce6e6b28")
    e(f"s_mov_b32 s20, 0x{SC2:x}")
    tile_addr(True)
    e("v_cmp_eq_u32 s[68:69], 3, v6")
    def seq(cb):
        lgr = [C0(cb), C0(cb)+2, C1(cb), C1(cb)+2]
        m = C1(cb)+1; m2 = C1(cb)+3
        o = []
        for k in range(4):
            o.append(f"v_cndmask_b32 v{lgr[k]}, v{lgr[k]}, v{lgr[k]+1}, s[4:5]")
        for k in range(4):
            ms = (16 + 2*k) if (cb == 0 and k < 2) else (6 + 2*k)
            o.append(f"v_cndmask_b32 v{lgr[k]}, v13, v{lgr[k]}, s[{ms}:{ms+1}]")
        o.append(f"v_max3_f32 v{m}, v{lgr[0]}, v{lgr[1]}, v{lgr[2]}")
        o.append(f"v_max_f32 v{m}, v{m}, v{lgr[3]}")
        o.append(f"v_mov_b32 v{m2}, v{m}")
        o.append(f"v_permlane16_swap_b32 v{m}, v{m2}")
        o.append(f"v_max_f32 v{m}, v{m}, v{m2}")
        o.append(f"v_mov_b32 v{m2}, v{m}")
        o.append(f"v_permlane32_swap_b32 v{m}, v{m2}")
        o.append(f"v_max_f32 v{m}, v{m}, v{m2}")
        o.append(f"v_mul_f32 v{m}, 0x{SC2 ^ 0x80000000:x}, v{m}")
        for k in range(4):
            o.append(f"v_fma_f32 v{lgr[k]}, v{lgr[k]}, s20, v{m}")
        for k in range(4):
            o.append(f"v_exp_f32 v{lgr[k]}, v{lgr[k]}")
        o.append(f"v_add_f32 v{m}, v{lgr[0]}, v{lgr[1]}")
        o.append(f"v_add_f32 v{m2}, v{lgr[2]}, v{lgr[3]}")
        o.append(f"v_add_f32 v{m}, v{m}, v{m2}")
        o.append(f"v_mov_b32 v{m2}, v{m}")
        o.append(f"v_permlane16_swap_b32 v{m}, v{m2}")
        o.append(f"v_add_f32 v{m}, v{m}, v{m2}")
        o.append(f"v_mov_b32 v{m2}, v{m}")
        o.append(f"v_permlane32_swap_b32 v{m}, v{m2}")
        o.append(f"v_add_f32 v{m}, v{m}, v{m2}")
        o.append(f"v_rcp_f32 v{m}, v{m}")
        for k in range(4):
            o.append(f"v_mul_f32 v{lgr[k]}, v{lgr[k]}, v{m}")
            o.append(f"v_cvt_pk_bf16_f32 v{C0(cb)+k}, v{lgr[k]}, v{lgr[k]}")
            o.append(f"v_and_b32 v{C0(cb)+k}, v{C0(cb)+k}, v12")
        return o
    ilv([seq(cb) for cb in range(4)])
    if EARLY:
        spin_flag(0, 4, "eq")
        rd_res("a")
    e("s_nop 1")
    for rt in range(4):
        for et in (1, 0):
            o = QF(rt) if et == 0 else C1(rt)
            v = VB(et) + 2*rt
            e(f"v_mfma_f32_16x16x32_bf16 v[{o}:{o+3}], v[{v}:{v+3}], v[{C0(rt)}:{C0(rt)+3}], 0")
    e("s_nop 7")
    sq = []; regs = []
    for rt in range(4):
        o0 = QF(rt); o1 = C1(rt); t = C0(rt)
        T = 16 + rt*4
        o = [f"v_mov_b32 v{t}, v{o1+3}",
             f"v_cvt_pk_bf16_f32 v{T}, v{o0}, v{o0+1}",
             f"v_permlane32_swap_b32 v{t+1}, v{t}",
             f"v_permlane16_swap_b32 v{t+2}, v{o1+3}",
             f"v_cvt_pk_bf16_f32 v{T+1}, v{o0+2}, v{o0+3}",
             f"v_permlane16_swap_b32 v{t+3}, v{t+1}",
             f"v_cndmask_b32 v{o1+2}, v{o1+2}, v{t+2}, s[68:69]",
             f"v_cndmask_b32 v{o1+1}, v{o1+1}, v{t+1}, s[68:69]",
             f"v_cndmask_b32 v{o1}, v{o1}, v{t+3}, s[68:69]",
             f"v_cvt_pk_bf16_f32 v{T+3}, v{o1+2}, v{o1+2}",
             f"v_cvt_pk_bf16_f32 v{T+2}, v{o1}, v{o1+1}",
             f"v_and_or_b32 v{T+3}, v{T+3}, v10, s61"]
        sq.append(o)
    ilv(sq)
    tile_store(True, False)
    stamp(vm, 5, 4)

def p2(isB, isC):
    lab(f"P2_{'B' if isB else 'A'}{'C' if isC else 'L'}")
    c("---- P2: wave = (16 rows, K half) x 112 cols ----")
    kh = 0 if isC else 1
    wo = (B_wo if isB else A_wo)(8*kh)
    def ld(j, pol=None):
        for hh in range(2):
            r = oreg(j, hh)
            e(f"buffer_load_dwordx4 v[{r}:{r+3}], v6, s[40:43], s{64+j} offen offset:{hh*1024} {PPOL if pol is None else pol}")
    tr(0)
    if isC:
        e(f"v_mov_b32 v3, {FLG}")
        e("v_mov_b32 v4, 1")
        e("s_mov_b64 exec, 1")
        e("ds_add_u32 v3, v4 offset:4")
        e("s_mov_b64 exec, -1")
    e("s_and_b32 s49, s48, 3")
    e("s_and_b32 s50, s26, 1")
    e("s_lshl_b32 s3, s50, 13")
    e("s_lshl_b32 s27, s49, 11")
    e("s_add_u32 s3, s3, s27")
    e("s_add_u32 s64, s59, s3")
    if kh: e("s_add_u32 s64, s64, 0x10000")
    for j in range(1, 4): e(f"s_add_u32 s{64+j}, s64, {j*16384}")
    e("v_lshlrev_b32 v6, 4, v2")
    if isC:
        for j in range(4): ld(j, FPOL)
    if not isC:
        wo_bases(wo)
        e("v_lshlrev_b32 v6, 4, v2")
    if isB and not (isC and EARLY): spin_flag(0, 4, "eq")
    rd_res("v" if (isC and EARLY) else "av")
    e("v_lshrrev_b32 v7, 4, v2")
    e("v_lshrrev_b32 v11, 1, v7")
    e("v_and_b32 v12, 1, v7")
    e("v_and_b32 v5, 15, v2")
    e("s_lshl_b32 s3, s25, 7")
    e("s_lshl_b32 s27, s50, 6")
    e("s_add_u32 s3, s3, s27")
    e("s_lshl_b32 s27, s49, 4")
    e("s_add_u32 s3, s3, s27")
    e("v_add_u32 v5, s3, v5")
    e("v_mul_u32_u24 v10, 1792, v5")
    e("s_mul_i32 s3, s24, 896")
    e("s_add_u32 s3, s3, s55")
    e("v_add_u32 v10, s3, v10")
    if kh: e("v_lshl_add_u32 v14, v7, 3, v10")
    e("v_lshl_add_u32 v10, v12, 5, v10")
    e("v_lshl_add_u32 v10, v11, 4, v10")
    e("s_mul_i32 s3, s49, 7168")
    e(f"s_add_u32 s3, s3, {RED_B if isB else RED_A}")
    e("v_add_u32 v12, s3, v6")
    for r in range(28): e(f"v_mov_b32 v{AC+r}, 0")
    e("s_mov_b32 s78, 0")
    e("s_mov_b32 s79, 15")
    e("s_mov_b32 s68, 0x10000")
    if not isC:
        e("s_waitcnt lgkmcnt(0)")
        spin_flag(4, 1, "ge")
        for j in range(4): ld(j, FPOL)
    e("s_waitcnt lgkmcnt(0)")
    stamp(None, 6 if isC else 39, 4)
    tr(1)
    top = uid("PT"); done = uid("PDN"); fb = uid("PFB")
    lab(top)
    for j in range(4):
        nx = uid("NX"); dm = uid("DM"); bad = uid("BD")
        e("s_waitcnt vmcnt(6)")
        e(f"s_bitcmp1_b32 s79, {j}")
        e(f"s_cbranch_scc0 {dm}")
        r0 = oreg(j, 0) + 3; r1 = oreg(j, 1) + 3
        e(f"v_xor_b32 v{r0}, s61, v{r0}")
        e(f"v_xor_b32 v{r1}, s61, v{r1}")
        e(f"v_or_b32 v13, v{r0}, v{r1}")
        e("v_cmp_gt_u32 vcc, s68, v13")
        e("s_cmp_eq_u64 vcc, -1")
        e(f"s_cbranch_scc0 {bad}")
        tr(2 + j)
        for f in range(NRES, 14): rdf(j, f)
        e(f"buffer_load_dword v15, off, s[40:43], s{64+j}")
        e(f"buffer_load_dword v15, off, s[40:43], s{64+j}")
        e(f"s_bitset0_b32 s79, {j}")
        for f in range(14):
            hh, nt = divmod(f, 7)
            k, wr = wreg(j, f)
            a = AC + nt*4; r = oreg(j, hh)
            if f == NRES: e("s_waitcnt lgkmcnt(0)")
            e(f"v_mfma_f32_16x16x32_bf16 v[{a}:{a+3}], {k}[{wr}:{wr+3}], v[{r}:{r+3}], v[{a}:{a+3}]")
        e("s_cmp_eq_u32 s79, 0")
        e(f"s_cbranch_scc1 {done}")
        e(f"s_branch {nx}")
        lab(bad)
        if SLP: e(f"s_sleep {SLP}")
        ld(j)
        e(f"s_branch {nx}")
        lab(dm)
        e(f"buffer_load_dword v15, off, s[40:43], s{64+j}")
        e(f"buffer_load_dword v15, off, s[40:43], s{64+j}")
        lab(nx)
    e("s_add_u32 s78, s78, 1")
    e(f"s_cmp_lt_u32 s78, {NP}")
    e(f"s_cbranch_scc1 {top}")
    nc = uid("NC"); cp = uid("CP")
    e("s_waitcnt vmcnt(0)")
    e("s_lshl_b32 s57, s24, 4")
    e("s_add_u32 s57, s57, s25")
    e("s_lshl_b32 s57, s57, 7")
    e(f"s_add_u32 s57, s57, 0x{EPO:x}")
    e(f"s_cmp_eq_u32 s78, {NP}")
    e(f"s_cbranch_scc0 {nc}")
    e("s_lshl_b32 s3, s26, 14")
    e("s_add_u32 s62, s59, s3")
    e("s_mov_b32 s69, 0")
    lab(cp)
    for half in range(2):
        rl = uid("RL")
        lab(rl)
        e("v_mov_b32 v13, 0")
        for b in range(8):
            r = OF + b*4
            e(f"s_add_u32 s3, s62, {(half*8+b)*1024}")
            e(f"buffer_load_dwordx4 v[{r}:{r+3}], v6, s[40:43], s3 offen sc0 sc1")
        e("s_waitcnt vmcnt(0)")
        for b in range(8):
            e(f"v_xor_b32 v15, s61, v{OF+b*4+3}")
            e("v_or_b32 v13, v13, v15")
        e("v_cmp_gt_u32 vcc, 0x10000, v13")
        e("s_add_u32 s69, s69, 1")
        e("s_cmp_gt_u32 s69, 0x40000")
        e(f"s_cbranch_scc1 {done}")
        e("s_cmp_eq_u64 vcc, -1")
        e(f"s_cbranch_scc0 {rl}")
        for b in range(8):
            r = OF + b*4
            e(f"s_add_u32 s3, s62, 0x{TLQ + (half*8+b)*1024:x}")
            e(f"buffer_store_dwordx4 v[{r}:{r+3}], v6, s[40:43], s3 offen sc0 sc1")
        e("s_waitcnt vmcnt(0)")
    e("s_lshl_b32 s3, s26, 2")
    e("s_add_u32 s3, s3, s57")
    e("v_mov_b32 v15, s93")
    e("buffer_store_dword v15, off, s[40:43], s3 sc0 sc1")
    e("s_mov_b32 s68, 0x100000")
    lab(nc)
    e("v_and_b32 v15, 3, v2")
    e("v_lshlrev_b32 v15, 2, v15")
    e(f"buffer_load_dword v13, v15, s[40:43], s57 offen offset:{kh*16} sc0 sc1")
    e("s_waitcnt vmcnt(0)")
    e("v_cmp_eq_u32 vcc, s93, v13")
    for j in range(4):
        e(f"s_or_b32 s3, s{64+j}, 0x{TLQ:x}")
        e(f"s_bitcmp1_b32 vcc_lo, {j}")
        e(f"s_cselect_b32 s{64+j}, s3, s{64+j}")
    for j in range(4): ld(j, "sc0 sc1")
    e("s_cmp_lt_u32 s78, 0x40000")
    e(f"s_cbranch_scc1 {top}")
    lab(done)
    tr(6)
    if STAMP and (SIDS is None or 11 in SIDS):
        stamp(None, 11 if isC else 40, 4)
        e("v_mov_b32 v4, s78")
        e("s_lshl_b32 s74, s2, 8")
        e(f"s_add_u32 s74, s74, {STB + (20+kh)*4}")
        e("v_mov_b32 v5, 0")
        e("buffer_store_dword v4, v5, s[40:43], s74 offen")
    e("s_nop 7")
    e("s_nop 7")
    snd = range(4, 7) if isC else range(0, 4)
    kp = range(0, 4) if isC else range(4, 7)
    for t in snd:
        e(f"ds_write_b128 v12, v[{AC+t*4}:{AC+t*4+3}] offset:{t*1024}")
    e("s_waitcnt lgkmcnt(0)")
    e("s_barrier")
    tr(7)
    RR = 76
    for t in kp:
        e(f"ds_read_b128 v[{RR+t*4}:{RR+t*4+3}], v12 offset:{t*1024}")
    if isC:
        sk = uid("NS")
        e("s_or_b32 s3, s26, s48")
        e("s_cmp_eq_u32 s3, 0")
        e(f"s_cbranch_scc0 {sk}")
        e("v_mov_b32 v13, s93")
        e("buffer_store_dword v13, off, s[40:43], s60 sc0 sc1")
        lab(sk)
    D = 108
    for n, t in enumerate(kp):
        e(f"s_waitcnt lgkmcnt({len(kp)-1-n})")
        a = AC + t*4; r = RR + t*4
        e(f"v_pk_add_f32 v[{a}:{a+1}], v[{a}:{a+1}], v[{r}:{r+1}]")
        e(f"v_pk_add_f32 v[{a+2}:{a+3}], v[{a+2}:{a+3}], v[{r+2}:{r+3}]")
        d = D + n*2
        e(f"v_cvt_pk_bf16_f32 v{d}, v{a}, v{a+1}")
        e(f"v_cvt_pk_bf16_f32 v{d+1}, v{a+2}, v{a+3}")
    e("s_nop 1")
    for pr in range(2 if isC else 1):
        d = D + pr*4
        e(f"v_permlane16_swap_b32 v{d}, v{d+2}")
        e(f"v_permlane16_swap_b32 v{d+1}, v{d+3}")
    e("s_nop 1")
    if isC:
        e(f"buffer_store_dwordx4 v[{D}:{D+3}], v10, s[88:91], 0 offen " + OPOL)
        e(f"buffer_store_dwordx4 v[{D+4}:{D+7}], v10, s[88:91], 0 offen offset:64 " + OPOL)
    else:
        e(f"buffer_store_dwordx4 v[{D}:{D+3}], v10, s[88:91], 0 offen offset:128 " + OPOL)
        e(f"buffer_store_dwordx2 v[{D+4}:{D+5}], v14, s[88:91], 0 offen offset:192 " + OPOL)
    stamp(None, 9 if isC else 41, 4)
    if TR:
        tr(8)
        e("s_waitcnt lgkmcnt(0)")
        e("s_lshl_b32 s74, s2, 9")
        e("s_lshl_b32 s3, s48, 6")
        e("s_add_u32 s74, s74, s3")
        e("s_add_u32 s74, s74, 0x910000")
        e("s_mov_b64 exec, 1")
        for k in range(9):
            e(f"v_mov_b32 v4, s{4+2*k}")
            e(f"buffer_store_dword v4, off, s[40:43], s74 offset:{k*4}")
        e("v_mov_b32 v4, s78")
        e(f"buffer_store_dword v4, off, s[40:43], s74 offset:36")
        e("s_mov_b64 exec, -1")
    if not isC: stamp(None, 2, 4)
    e("s_endpgm")

def compute(isB):
    lab("C_B" if isB else "C_A")
    vm = VM()
    comp_setup(isB)
    srds(isB)
    stamp(vm, 0)
    stamp(vm, 1)
    nonce_issue(vm)
    if PRE:
        e("s_mul_i32 s3, s25, 229376")
        e("s_mul_i32 s27, s24, 896")
        e("s_add_u32 s3, s3, s27")
        e("buffer_load_dword v30, v3, s[88:91], s3 offen"); vm.issue("pre")
        e("buffer_load_dword v30, v3, s[36:39], s55 offen"); vm.issue("pre")
        if not PST: e("buffer_load_dword v30, v3, s[40:43], s59 offen"); vm.issue("pre")
    if PST == 1: prestore(vm, isB)
    gemm(vm, isB)
    stamp(vm, 3)
    if isB: epi_B(vm)
    else: epi_A(vm)
    p2(isB, True)
    p2(isB, False)

def kernel():
    lab(f"{NAME}_kernel")
    prologue()
    for lw in range(4): loader(False, lw)
    for lw in range(4): loader(True, lw)
    compute(False)
    compute(True)
    lab("K_END")
    e("s_endpgm")

HDR = open("cdna_kernels/" + NAME + ".s.ref").read().split("; @launch")[0]
kernel()
out = HDR
out += f"; @launch grid=(256,1,1) block=(512,1,1) lds={LDS_TOTAL}\n"
out += '.amdgcn_target "amdgcn-amd-amdhsa--gfx950"\n.text\n'
out += f".globl {NAME}_kernel\n.p2align 8\n.type {NAME}_kernel,@function\n"
out += "\n".join(L) + "\n"
out += f""".section .rodata,"a"
.p2align 6
.amdhsa_kernel {NAME}_kernel
  .amdhsa_next_free_vgpr 256
  .amdhsa_next_free_sgpr 96
  .amdhsa_accum_offset 144
  .amdhsa_group_segment_fixed_size 0
  .amdhsa_kernarg_size 72
  .amdhsa_user_sgpr_count 2
  .amdhsa_user_sgpr_kernarg_segment_ptr 1
  .amdhsa_system_sgpr_workgroup_id_x 1
.end_amdhsa_kernel
"""
path = sys.argv[1] if len(sys.argv) > 1 else f"cdna_kernels/{NAME}.s"
open(path, "w").write(out)
```

```python
import sys, os, struct
NAME = "concat_heads__linear_attn_block__sliding_local_dilated__prompt"
TLP = 0
TLQ = int(os.environ.get("TLQ", "0x400000"), 0)
OPOL = os.environ.get("OPOL", "")
ACC = 0xa00000
NON = 0x800000
AS = int(os.environ.get("AS", "128"))
WS_END = 0xa00000 + 512*AS
STAMP = os.environ.get("STAMP") in ("1", "2")
RT = os.environ.get("STAMP") == "2"
STB = 0x900000
LOG2E = 0x3FB8AA3B
EPS = 0x358637BD
for s in range(64*21): assert (s * 4682) >> 16 == s // 14
for s in range(32): assert (s * 37) >> 8 == s // 7
RS = 224
KVS = 14336; QS = 7168; XS = 16384
LDS_TOTAL = 163840
ROT = os.environ.get("ROT", "1") == "1"
PPOL = os.environ.get("PPOL", "nt")
ROTM = os.environ.get("ROTM", "2*p")
XM = int(os.environ.get("XM", "2"))
SWP = os.environ.get("SWP", "0") == "1"
XNOX = os.environ.get("XNOX") == "1"
XNOW = os.environ.get("XNOW") == "1"
BWM = os.environ.get("BWM", "0") == "1"
XNOR = os.environ.get("XNOR") == "1"
XNOM = os.environ.get("XNOM") == "1"
XNOL = os.environ.get("XNOL") == "1"
LAA = int(os.environ.get("LAA", "2"))
LAB = int(os.environ.get("LAB", "0"))
ROTMB = os.environ.get("ROTMB", ROTM)
XMB = int(os.environ.get("XMB", str(XM)))
W0 = os.environ.get("W0") == "1"
PRE = os.environ.get("PRE", "1") == "1"
NOQ = os.environ.get("NOQ") == "1"
L1X = os.environ.get("L1X") == "1"
DA = int(os.environ.get("DA", "4"))
DB = int(os.environ.get("DB", "5"))
def f2u(x): return struct.unpack('<I', struct.pack('<f', x))[0]
SC2 = f2u(28 ** -0.5 * 1.4426950408889634)
CNT_Z = 40 * 4
WB = 6272
def A_kv(i): return (i % 5) * 30720
def A_x(i): return (i % 5) * 30720 + KVS
def A_q(i): return 61440 + i*QS
UP = 111616
def A_wo(h): return h*WB if h < 8 else UP + (h-8)*WB
def A_scr(lw): return A_wo(12 + lw)
KVB = 50176
B_WSL = [140288, 0, 21504, 118784]
def B_kv(i): return B_WSL[i % 4]
def B_q(i): return B_WSL[i % 4] + KVS
def B_x(i): return 43008 + (i % 3) * 18432
def B_wo(h): return 61440 + h*WB
assert B_wo(8) == UP
FLG = 161792
RED_A = 61440; RED_B = 0
EPO = NON + 0x10000

L = []
def e(s): L.append("    " + s)
def lab(s): L.append(s + ":")
def c(s): L.append("    ; " + s)
_uid = [0]
def uid(p):
    _uid[0] += 1
    return f"{p}_{_uid[0]}"

class CNT:
    def __init__(self, kind, mx): self.ops = []; self.kind = kind; self.mx = mx
    def issue(self, tag): self.ops.append(tag)
    def n(self, tag):
        idx = max(i for i, t in enumerate(self.ops) if t == tag)
        return min(len(self.ops) - 1 - idx, self.mx)
    def wait(self, tag): e(f"s_waitcnt {self.kind}({self.n(tag)})")
def VM(): return CNT("vmcnt", 63)
def LG(): return CNT("lgkmcnt", 15)

SIDS = [int(x) for x in os.environ["SIDS"].split(",")] if os.environ.get("SIDS") else None
def stamp(vm, i, r=28):
    if not STAMP: return
    if SIDS is not None and i not in SIDS: return
    if i in (1, 2):
        e(f"v_mov_b32 v{r}, s94")
    else:
        e("s_memrealtime s[72:73]" if RT else "s_memtime s[72:73]")
        e("s_waitcnt lgkmcnt(0)")
        e(f"v_mov_b32 v{r}, s72")
    e("s_lshl_b32 s74, s2, 8")
    e(f"s_add_u32 s74, s74, {STB + i*4}")
    e(f"v_and_b32 v{r+1}, 0xff, v0")
    e(f"v_cmp_eq_u32 s[76:77], 0, v{r+1}")
    e("s_mov_b64 exec, s[76:77]")
    e(f"buffer_store_dword v{r}, v{r+1}, s[40:43], s74 offen")
    e("s_mov_b64 exec, -1")
    if vm is not None: vm.issue("stamp")

def phi_pair(dst, a, b, t):
    assert b == a + 1 and a % 2 == 0 and t % 2 == 0
    return [f"v_pk_mul_f32 v[{t}:{t+1}], v[{a}:{b}], s[70:71]",
            f"v_exp_f32 v{t}, v{t} clamp",
            f"v_exp_f32 v{t+1}, v{t+1} clamp",
            f"v_max_f32 v{a}, 0, v{a}",
            f"v_max_f32 v{b}, 0, v{b}",
            f"v_pk_add_f32 v[{t}:{t+1}], v[{t}:{t+1}], v[{a}:{b}]",
            f"v_cvt_pk_bf16_f32 v{dst}, v{t}, v{t+1}"]
def ilv(seqs):
    for i in range(max(len(q) for q in seqs)):
        for q in seqs:
            if i < len(q): e(q[i])

def srd(base, lo, hi, nbytes):
    e(f"s_mov_b32 s{base}, s{lo}")
    e(f"s_and_b32 s{base+1}, s{hi}, 0xffff")
    e(f"s_mov_b32 s{base+2}, 0x{nbytes:x}")
    e(f"s_mov_b32 s{base+3}, 0x20000")

def srds(isB):
    e("s_waitcnt lgkmcnt(0)")
    o = 6 if isB else 0
    srd(32, 6+o, 7+o, 448*2688)
    srd(28, 4+o, 5+o, 2048*896)
    srd(40, 20, 21, WS_END)
    srd(36, 8+o, 9+o, 448*896)
    srd(44, 18, 19, 256)
    srd(88, 16, 17, 2048*1792)

def prologue():
    if STAMP: e("s_memrealtime s[94:95]")
    e("s_cmp_ge_u32 s2, 256")
    e("s_cbranch_scc1 K_END")
    e("s_load_dwordx4 s[4:7], s[0:1], 0")
    e("s_load_dwordx4 s[8:11], s[0:1], 16")
    e("s_load_dwordx4 s[12:15], s[0:1], 32")
    e("s_load_dwordx4 s[16:19], s[0:1], 48")
    e("s_load_dwordx2 s[20:21], s[0:1], 64")
    e("v_lshrrev_b32 v1, 6, v0")
    e("v_and_b32 v2, 63, v0")
    e("v_readfirstlane_b32 s48, v1")
    e("s_and_b32 s22, s2, 7")
    e("s_lshr_b32 s23, s2, 3")
    e("s_lshr_b32 s24, s22, 2")
    if SWP: e("s_xor_b32 s24, s24, 1")
    e("s_and_b32 s27, s22, 3")
    e("s_lshl_b32 s25, s27, 2")
    e("s_and_b32 s3, s23, 3")
    e("s_add_u32 s25, s25, s3")
    e("s_lshr_b32 s26, s23, 2")
    e("s_mul_i32 s56, s26, 112")
    e("s_lshr_b32 s55, s26, 1")
    e("s_mul_i32 s55, s55, 224")
    e("s_getreg_b32 s92, hwreg(HW_REG_XCC_ID)")
    e("s_and_b32 s92, s92, 15")
    e(f"s_mov_b32 s70, 0x{LOG2E:x}")
    e(f"s_mov_b32 s71, 0x{LOG2E:x}")
    e("s_lshl_b32 s60, s24, 4")
    e("s_add_u32 s60, s60, s25")
    e("s_lshl_b32 s59, s60, 17")
    e("s_lshl_b32 s60, s60, 7")
    e(f"s_add_u32 s60, s60, 0x{NON:x}")
    if ROTM:
        def tbl(f):
            tb = [eval(f, {"slot": sl, "p": sl >> 2, "r": sl & 3}) % 7 for sl in range(32)]
            return [sum(tb[8*k+i] << (4*i) for i in range(8)) for k in range(4)]
        wa = tbl(ROTM); wb = tbl(ROTMB)
        for k in range(4): e(f"s_mov_b32 s{74+k}, 0x{wa[k]:x}")
        e(f"s_mov_b32 s78, {XM}")
        if (wa, XM) != (wb, XMB):
            e("s_cmp_eq_u32 s24, 0")
            for k in range(4): e(f"s_cselect_b32 s{74+k}, s{74+k}, 0x{wb[k]:x}")
            e(f"s_cselect_b32 s78, s78, {XMB}")
        e("s_cmp_lt_u32 s23, 16")
        e("s_cselect_b64 s[74:75], s[74:75], s[76:77]")
        e("s_and_b32 s3, s23, 15")
        e("s_lshl_b32 s3, s3, 2")
        e("s_lshr_b64 s[74:75], s[74:75], s3")
        e("s_and_b32 s81, s74, 7")
        if XM or XMB:
            e(f"s_mul_i32 s3, s27, s78")
            e("s_add_u32 s81, s81, s3")
            e("s_mul_i32 s3, s81, 37")
            e("s_lshr_b32 s3, s3, 8")
            e("s_mul_i32 s3, s3, 7")
            e("s_sub_u32 s81, s81, s3")
    elif ROT:
        e("s_mul_i32 s3, s23, 37")
        e("s_lshr_b32 s3, s3, 8")
        e("s_mul_i32 s3, s3, 7")
        e("s_sub_u32 s81, s23, s3")
    else:
        e("s_mov_b32 s81, 0")
    e("s_mov_b32 s82, s81")
    e("s_lshl_b32 s3, s24, 3")
    e("s_add_u32 s3, s3, s48")
    e("s_cmp_lt_u32 s3, 4")
    e("s_cbranch_scc1 C_A")
    for lw in range(4):
        e(f"s_cmp_eq_u32 s3, {4+lw}")
        e(f"s_cbranch_scc1 L_A{lw}")
    e("s_cmp_lt_u32 s3, 12")
    e("s_cbranch_scc1 C_B")
    for lw in range(3):
        e(f"s_cmp_eq_u32 s3, {12+lw}")
        e(f"s_cbranch_scc1 L_B{lw}")
    e("s_branch L_B3")

def nonce_issue(vm):
    e("v_mov_b32 v3, 0")
    e("buffer_load_dword v31, v3, s[40:43], s60 offen sc0 sc1")
    vm.issue("non")
def nonce_get():
    e("v_readfirstlane_b32 s93, v31")
    e("s_nop 3")
    e("s_add_u32 s93, s93, 16")
    e("s_and_b32 s61, s93, 0x7ff0")
    e("s_or_b32 s61, s61, s92")
    e("s_or_b32 s61, s61, 0x8000")
    e("s_lshl_b32 s61, s61, 16")

def div14(n):
    e(f"v_add_u32 v3, {64*n}, v2")
    e("v_mul_u32_u24 v4, 4682, v3")
    e("v_lshrrev_b32 v4, 16, v4")
    e("v_mul_u32_u24 v5, 14, v4")
    e("v_sub_u32 v3, v3, v5")
    e("v_cmp_lt_u32 vcc, 6, v3")
    e("v_cndmask_b32 v5, 0, 1, vcc")
    e("v_mul_u32_u24 v6, 7, v5")
    e("v_sub_u32 v3, v3, v6")

def w_voff(dst, n, isq):
    div14(n)
    e("v_lshrrev_b32 v6, 1, v4")
    e("v_and_b32 v6, 4, v6")
    e("v_xor_b32 v4, v4, v6")
    e("v_mul_u32_u24 v4, 2688, v4")
    if isq:
        e("v_mul_u32_u24 v5, s58, v5")
        e("v_lshl_add_u32 v3, v3, 4, v4")
        e(f"v_add_u32 v{dst}, v3, v5")
    else:
        e("v_mul_u32_u24 v5, 896, v5")
        e("v_lshl_add_u32 v3, v3, 4, v4")
        e(f"v_add3_u32 v{dst}, v3, v5, s57")

def step_hdr(sr, w=True, x=True):
    if w:
        e(f"s_mul_i32 s83, s{sr}, 172032")
        e("s_add_u32 s83, s83, s56")
    if x:
        e(f"s_lshl_b32 s85, s{sr}, 7")
        e("s_add_u32 s86, s85, 14336")
    e(f"s_add_u32 s{sr}, s{sr}, 1")
    e(f"s_cmp_eq_u32 s{sr}, 7")
    e(f"s_cselect_b32 s{sr}, 0, s{sr}")

FILL = []
FN = int(os.environ.get("FN", "12"))
def capture(fn, *a):
    global L
    sv = L; L = []
    fn(*a)
    r = L; L = sv
    FILL.extend(r)
def flush(n=10**9):
    while FILL and n > 0:
        L.append(FILL.pop(0)); n -= 1
def dma(vm, tag, voff, srd_, soff, lds):
    e(f"s_mov_b32 m0, {lds}")
    e("s_nop 0")
    e(f"buffer_load_dwordx4 v{voff}, s[{srd_}:{srd_+3}], {soff} offen lds")
    vm.issue(tag)
    flush(FN)

def wo_voffs(isB):
    for t in range(7):
        div14(t)
        e("v_min_u32 v4, 27, v4")
        e("v_cmp_lt_u32 vcc, 13, v4")
        e("v_cndmask_b32 v6, 0, 1, vcc")
        e("v_mul_u32_u24 v24, 14, v6")
        e("v_sub_u32 v4, v4, v24")
        e("v_lshrrev_b32 v24, 2, v4")
        e("v_and_b32 v25, 3, v4")
        e("v_cmp_lt_u32 vcc, 10, v4")
        e("v_cndmask_b32 v26, 0, 1, vcc")
        e("v_mul_u32_u24 v27, 3, v26")
        e("v_sub_u32 v27, v4, v27")
        e("v_subrev_u32 v27, 4, v27")
        e("v_cmp_lt_u32 vcc, 7, v4")
        e("v_cndmask_b32 v24, v24, v26, vcc")
        e("v_cndmask_b32 v25, v25, v27, vcc")
        e("v_lshl_add_u32 v24, v6, 1, v24")
        if not isB:
            e("v_mul_u32_u24 v24, 7, v24")
            e("v_add_u32 v4, v24, v25")
        else:
            e("v_lshl_add_u32 v4, v24, 2, v25")
            e("v_add_u32 v26, 12, v4")
            e("v_lshlrev_b32 v27, 2, v25")
            e("v_add_u32 v27, 3, v27")
            e("v_cmp_eq_u32 s[4:5], 3, v24")
            e("v_cndmask_b32 v26, v26, v27, s[4:5]")
            e("v_cndmask_b32 v4, v4, v26, vcc")
        e("v_mul_u32_u24 v5, 112, v5")
        e("v_mul_u32_u24 v4, 896, v4")
        e("v_lshl_add_u32 v3, v3, 4, v4")
        e(f"v_add3_u32 v{40+t}, s55, v3, v5")

def wo_block(vm, h, isB):
    base = B_wo(h) if isB else A_wo(h)
    e(f"s_mov_b32 s86, {h*28*896}")
    for t in range(7):
        if t == 6: e("s_mov_b64 exec, 0xff")
        dma(vm, "wo", 40+t, 36, "s86", base + t*1024)
    e("s_mov_b64 exec, -1")

def flg_init(lw):
    if lw == 0:
        e(f"v_mov_b32 v3, {FLG}")
        e("v_mov_b32 v4, 0")
        e("v_mov_b32 v5, 0")
        e("ds_write_b64 v3, v[4:5]")
        e("s_waitcnt lgkmcnt(0)")

def loader(isB, lw):
    lab(f"L_{'B' if isB else 'A'}{lw}")
    vm = VM()
    SO = 32
    e("s_movk_i32 s57, 896")
    e("s_mov_b32 s58, 86016")
    e("v_lshrrev_b32 v3, 3, v2")
    e("v_lshrrev_b32 v4, 4, v2")
    e("v_and_b32 v5, 7, v2")
    e("v_xor_b32 v5, v5, v4")
    e("s_lshl_b32 s3, s25, 7")
    e(f"s_add_u32 s3, s3, {32*lw}")
    e("v_add_u32 v6, s3, v3")
    e("v_mul_u32_u24 v6, 896, v6")
    e("v_lshl_add_u32 v16, v5, 4, v6")
    e("v_xor_b32 v17, 64, v16")
    e("v_add_u32 v17, 7168, v17")
    kvn = [n for n in range(lw, 14, 4)]
    if isB:
        wn = [n for n in range(lw, 21, 4)]
        kvn = [n for n in wn if n < 14]; qn = [n-14 for n in wn if n >= 14]
    else:
        qn = [n for n in range(lw, 7, 4)]
    for j, n in enumerate(kvn): w_voff(8+j, n, False)
    if isB:
        for j, n in enumerate(qn): w_voff(12+j, n, True)
        if lw in (1, 2):
            u = lw - 1
            e("v_lshrrev_b32 v3, 3, v2")
            e("v_lshrrev_b32 v4, 4, v2")
            e("v_and_b32 v5, 7, v2")
            e("v_xor_b32 v5, v5, v4")
            if u: e("v_xor_b32 v5, 4, v5")
            e("s_lshl_b32 s3, s25, 7")
            e("s_sub_u32 s3, s3, 16")
            e("s_max_i32 s3, s3, 0")
            e(f"s_add_u32 s3, s3, {8*u}")
            e("v_add_u32 v6, s3, v3")
            e("v_mul_u32_u24 v6, 896, v6")
            e("v_lshl_add_u32 v18, v5, 4, v6")
    srds(isB)
    stamp(vm, SO + 0)
    def isW(i):
        if XNOL and i >= 2:
            e("buffer_load_dword v30, off, s[40:43], s60"); vm.issue(f"c{i}")
            return
        for j, n in enumerate(kvn): dma(vm, f"c{i}", 8+j, 32, "s83", (B_kv(i) if isB else A_kv(i)) + n*1024)
        if isB:
            for j, n in enumerate(qn): dma(vm, f"c{i}", 12+j, 32, "s83", B_q(i) + n*1024)
    def isX(i):
        if XNOL and i >= 2: return
        xb = B_x(i) if isB else A_x(i)
        for u in range(4):
            dma(vm, f"c{i}", 16 + (u & 1), 28, "s85" if u < 2 else "s86", xb + (2048 if isB else 0) + (4*lw+u)*1024)
        if isB and lw in (1, 2):
            dma(vm, f"c{i}", 18, 28, "s85", xb + (lw-1)*1024)
    if not isB:
        step_hdr(81); isX(0); isW(0)
        nonce_issue(vm)
        if W0: e("s_waitcnt vmcnt(0)")
        stamp(vm, 36)
        for r in range(4): e(f"v_mov_b32 v{4+r}, 0")
        zs = uid("ZS")
        e("s_cmp_eq_u32 s25, 0")
        e(f"s_cbranch_scc0 {zs}")
        e(f"s_mul_i32 s3, s26, {64*AS}")
        e(f"s_add_u32 s3, s3, 0x{ACC + lw*16*AS:x}")
        e("v_lshrrev_b32 v3, 2, v2")
        e(f"v_mul_u32_u24 v3, {AS}, v3")
        e("v_and_b32 v19, 3, v2")
        e("v_lshl_add_u32 v3, v19, 5, v3")
        e("buffer_store_dwordx4 v[4:7], v3, s[40:43], s3 offen sc0 sc1")
        e("buffer_store_dwordx4 v[4:7], v3, s[40:43], s3 offen offset:16 sc0 sc1")
        lab(zs)
        for k in range(1, LAA): step_hdr(81); isX(k); isW(k)
        flg_init(lw)
        def isQ(i):
            step_hdr(82)
            for j, n in enumerate(qn): dma(vm, "q", 12+j, 32, "s83", A_q(i) + n*1024)
        for i in range(7):
            if i == 0: stamp(vm, 37)
            vm.wait(f"c{i}")
            if i == 0: stamp(vm, 38)
            e("s_barrier")
            if i == 0:
                for j, n in enumerate(qn): capture(w_voff, 12+j, n, True)
                capture(wo_voffs, False)
            if i == 3:
                nonce_get()
                if lw == 0:
                    zs = uid("ZF")
                    e("s_cmp_eq_u32 s25, 0")
                    e(f"s_cbranch_scc0 {zs}")
                    e("s_lshl_b32 s3, s26, 2")
                    e(f"v_mov_b32 v22, {CNT_Z}")
                    e("v_mov_b32 v23, 1")
                    e("s_mov_b64 exec, 1")
                    e("buffer_store_dword v23, v22, s[44:47], s3 offen sc0 sc1")
                    e("s_mov_b64 exec, -1")
                    lab(zs)
            if i + LAA <= 6: step_hdr(81); isX(i+LAA); isW(i+LAA)
            if i == 4: flush()
            if i == 5:
                for k in range(4): isQ(k)
            if i == 6:
                for k in range(4, 7): isQ(k)
        zl = uid("ZL"); zd = uid("ZD"); z1 = uid("Z1")
        e("s_mov_b32 s78, 0")
        e(f"v_mov_b32 v3, {CNT_Z}")
        e("s_lshl_b32 s3, s26, 2")
        e("buffer_load_dword v19, v3, s[44:47], s3 offen sc0 sc1")
        vm.issue("z")
        wo_block(vm, 8 + lw, False)
        vm.wait("z")
        e(f"s_branch {z1}")
        lab(zl)
        e("buffer_load_dword v19, v3, s[44:47], s3 offen sc0 sc1")
        e("s_waitcnt vmcnt(0)")
        lab(z1)
        e("v_readfirstlane_b32 s79, v19")
        e("s_add_u32 s78, s78, 1")
        e("s_nop 2")
        e("s_cmp_eq_u32 s79, 1")
        e(f"s_cbranch_scc1 {zd}")
        e("s_sleep 1")
        e("s_cmp_gt_u32 s78, 0x40000")
        e(f"s_cbranch_scc0 {zl}")
        lab(zd)
        hh = lw >> 1; et = lw & 1
        e("v_and_b32 v5, 15, v2")
        e("v_lshrrev_b32 v6, 4, v2")
        e("v_lshlrev_b32 v3, 4, v2")
        e(f"v_add_u32 v4, {A_scr(lw)}, v3")
        e(f"s_mul_i32 s3, s26, {64*AS}")
        e(f"s_add_u32 s57, s3, 0x{ACC + lw*16*AS:x}")
        for r in range(1, 4): e(f"s_add_u32 s{50+r}, s57, {r*AS}")
        e(f"s_add_u32 s54, s57, {8*AS}")
        e(f"v_mul_u32_u24 v8, {4*AS}, v6")
        e("v_lshl_add_u32 v8, v5, 2, v8")
        e("v_cmp_gt_u32 s[66:67], 3, v6")
        e("v_cmp_le_u32 s[64:65], 14, v5")
        e("v_cmp_gt_u32 s[68:69], 2, v5")
        e("v_and_b32 v10, 7, v2")
        e("v_lshrrev_b32 v11, 3, v2")
        e(f"v_mul_u32_u24 v9, {AS}, v11")
        e("v_lshl_add_u32 v9, v10, 4, v9")
        e("v_cmp_eq_u32 s[4:5], 3, v10")
        e("v_cmp_eq_u32 s[6:7], 4, v10")
        e("s_or_b64 s[6:7], s[6:7], s[4:5]")
        if et:
            e("v_cmp_gt_u32 s[8:9], 5, v11")
            e("s_and_b64 s[10:11], s[8:9], s[6:7]")
            e("v_cmp_eq_u32 s[12:13], 4, v11")
        else:
            e("s_mov_b64 s[10:11], s[6:7]")
        e("v_and_b32 v12, 3, v10")
        e("v_lshlrev_b32 v12, 4, v12")
        e("v_lshrrev_b32 v10, 2, v10")
        e("v_lshl_add_u32 v12, v10, 3, v12")
        e(f"v_add_u32 v12, {KVB + hh*2048}, v12")
        for j in range(2):
            e(f"v_add_u32 v13, {16*et + 8*j}, v11")
            e("v_mul_u32_u24 v14, 37, v13")
            e("v_lshrrev_b32 v14, 8, v14")
            e("v_mul_u32_u24 v15, 7, v14")
            e("v_sub_u32 v15, v13, v15")
            e("v_lshrrev_b32 v16, 2, v15")
            e("v_and_b32 v15, 3, v15")
            e("v_lshl_add_u32 v15, v14, 2, v15")
            e("v_lshl_add_u32 v15, v16, 4, v15")
            if et and j:
                e("v_cndmask_b32 v15, v15, 19, s[12:13]")
            e(f"v_lshl_add_u32 v{20+j}, v15, 6, v12")
        vm.wait("q")
        e("s_barrier")
        stamp(vm, SO + 1)
        RD = 48
        for dt in range(2):
            for w in range(2):
                r = RD + dt*16 + w*4
                e(f"ds_read_b128 v[{r}:{r+3}], v4 offset:{w*2048 + dt*1024}")
        for dt in range(2):
            e(f"s_waitcnt lgkmcnt({2-2*dt})")
            b = RD + dt*16
            for r in range(4):
                e(f"v_add_f32 v{b+r}, v{b+r}, v{b+4+r}")
            for r in range(4):
                e(f"v_cndmask_b32 v{b+r}, v{b+r}, 1.0, s[{64+4*dt}:{65+4*dt}]")
        for dt in range(2):
            e(f"buffer_atomic_add_f32 v{RD+dt*16}, v8, s[40:43], s57 offen offset:{dt*64} sc1")
        if et: e("s_mov_b64 exec, s[66:67]")
        for r in range(1, 4):
            for dt in range(2):
                e(f"buffer_atomic_add_f32 v{RD+dt*16+r}, v8, s[40:43], s{50+r} offen offset:{dt*64} sc1")
        if et: e("s_mov_b64 exec, -1")
        stamp(vm, SO + 2)
        wo_block(vm, lw, False)
        wo_block(vm, lw + 4, False)
        wo_block(vm, lw + 12, False)
        PR = 80
        lp = uid("KVL"); dn = uid("KVD")
        e("s_mov_b32 s78, 0")
        lab(lp)
        for j in range(2):
            e(f"buffer_load_dwordx4 v[{PR+j*4}:{PR+j*4+3}], v9, s[40:43], s{54 if j else 57} offen sc0 sc1")
        e("s_waitcnt vmcnt(0)")
        e(f"v_cndmask_b32 v13, v{PR}, v{PR+2}, s[4:5]")
        e("v_cmp_eq_f32 vcc, 0x41800000, v13")
        e("s_and_b64 s[14:15], vcc, s[6:7]")
        e(f"v_cndmask_b32 v13, v{PR+4}, v{PR+6}, s[4:5]")
        e("v_cmp_eq_f32 vcc, 0x41800000, v13")
        e("s_and_b64 s[16:17], vcc, s[10:11]")
        e("s_xor_b64 s[14:15], s[14:15], s[6:7]")
        e("s_xor_b64 s[16:17], s[16:17], s[10:11]")
        e("s_or_b64 s[14:15], s[14:15], s[16:17]")
        e(f"s_cbranch_scc0 {dn}")
        e("s_add_u32 s78, s78, 1")
        e("s_cmp_gt_u32 s78, 0x40000")
        e(f"s_cbranch_scc0 {lp}")
        lab(dn)
        for j in range(2):
            r = PR + j*4
            e(f"v_cvt_pk_bf16_f32 v{r}, v{r}, v{r+1}")
            e(f"v_cvt_pk_bf16_f32 v{r+1}, v{r+2}, v{r+3}")
            if et and j: e("s_mov_b64 exec, s[8:9]")
            e(f"ds_write_b64 v{20+j}, v[{r}:{r+1}]")
        if et:
            e("s_mov_b64 exec, s[12:13]")
            for k in range(1, 4):
                e(f"ds_write_b64 v21, v[{PR+4}:{PR+5}] offset:{k*256}")
            e("s_mov_b64 exec, -1")
        e("s_waitcnt lgkmcnt(0)")
        e("s_barrier")
        stamp(vm, SO + 3)
    else:
        step_hdr(81); isX(0); isW(0)
        nonce_issue(vm)
        if W0: e("s_waitcnt vmcnt(0)")
        stamp(vm, 36)
        step_hdr(81); isX(1); isW(1)
        if LAB:
            step_hdr(81); isX(2); isW(2)
            e("s_mov_b32 s84, s81")
            if LAB == 2: step_hdr(81, x=False); isW(3)
        flg_init(lw)
        for i in range(7):
            if i == 0: stamp(vm, 37)
            vm.wait(f"c{i}")
            if i == 0: stamp(vm, 38)
            e("s_barrier")
            if i == 0: capture(wo_voffs, True)
            if i == 1: nonce_get()
            if not LAB:
                if i <= 4: step_hdr(81); isX(i+2); isW(i+2)
            else:
                if 1 <= i <= 4: step_hdr(84, w=False); isX(i+2)
                if (LAB == 1 or i >= 1) and i <= 3: step_hdr(81, x=False); isW(i+3)
            if i == 4: flush()
            if i == 5:
                for h in [0, 1, 6, 7, 8, 9, 10, 11][2*lw:2*lw+2]: wo_block(vm, h, True)
            if i == 6:
                for h in [2, 3, 4, 5, 12, 13, 14, 15][2*lw:2*lw+2]: wo_block(vm, h, True)
        e(f"v_mov_b32 v3, {FLG}")
        e("v_mov_b32 v4, 1")
        if not BWM: e("s_barrier")
        e("s_waitcnt vmcnt(0)")
        e("s_mov_b64 exec, 1")
        e("ds_add_u32 v3, v4")
        e("s_mov_b64 exec, -1")
        stamp(vm, SO + 3)
    e(f"s_branch P2_{'B' if isB else 'A'}L")

NP = int(os.environ.get("NP", "64"))
NRES = 10
SLP = int(os.environ.get("SLP", "4"))
EARLY = os.environ.get("EARLY", "0") == "1"
FPOL = os.environ.get("FPOL", "nt")
TR = os.environ.get("TR") == "1"
def tr(k):
    if TR: e(f"s_memrealtime s[{4+2*k}:{5+2*k}]")
PST = int(os.environ.get("PST", "0"))
AC = 16; OF = 44; WV = 76; ST = 124
def oreg(j, hh): return OF + (j*2+hh)*4
def wreg(j, f):
    if f >= NRES: return "v", ST + (f-NRES)*4
    i = j*NRES + f
    return ("a", i*4) if i < 28 else ("v", WV + (i-28)*4)
def rdf(j, f):
    hh, nt = divmod(f, 7)
    k, r = wreg(j, f)
    o = (2*j+hh)*WB + nt*32
    e(f"ds_read_b64_tr_b16 {k}[{r}:{r+1}], v8 offset:{o}")
    e(f"ds_read_b64_tr_b16 {k}[{r+2}:{r+3}], v9 offset:{o}")
def rd_res(kind):
    for j in range(4):
        for f in range(NRES):
            if wreg(j, f)[0] in kind: rdf(j, f)
def wo_bases(wo):
    e("v_lshrrev_b32 v7, 4, v2")
    e("v_lshrrev_b32 v3, 1, v7")
    e("v_bfe_u32 v8, v2, 2, 2")
    e("v_mul_u32_u24 v9, 14, v3")
    e("v_and_b32 v4, 1, v7")
    e("v_lshl_add_u32 v6, v4, 2, v9")
    e("v_add_u32 v6, v6, v8")
    e("v_mul_u32_u24 v5, 3, v4")
    e("v_min_u32 v8, 2, v8")
    e("v_add3_u32 v9, v9, v5, v8")
    e("v_add_u32 v9, 8, v9")
    e("v_and_b32 v5, 3, v2")
    e("v_lshlrev_b32 v5, 3, v5")
    e(f"v_add_u32 v5, {wo}, v5")
    e(f"v_mul_u32_u24 v8, {RS}, v6")
    e("v_add_u32 v8, v8, v5")
    e(f"v_mul_u32_u24 v9, {RS}, v9")
    e("v_add_u32 v9, v9, v5")
def spin_flag(off, val, cmp_):
    lp = uid("SP")
    e(f"v_mov_b32 v3, {FLG}")
    lab(lp)
    e(f"ds_read_b32 v4, v3 offset:{off}")
    e("s_waitcnt lgkmcnt(0)")
    e("v_readfirstlane_b32 s3, v4")
    e("s_nop 3")
    e(f"s_cmp_{cmp_}_u32 s3, {val}")
    e(f"s_cbranch_scc0 {lp}")
def tcol(isB, grp, t):
    return (t >> 1)*56 + (t & 1)*(24 if (not isB and grp < 2) else 32)

def accA(grp, rt, t): return 32 + (rt*4+t)*4
def accA2(grp, t, rt): return 32 + (grp-1)*32 + (t*4+rt)*4
def accB(grp, t, r):
    if grp == 0: return 32 + r*8 + t*4
    if grp == 1: return 64 + r*8 + t*4
    return 104 + t*20 + r*4

def comp_setup(isB):
    wo_bases((B_wo if isB else A_wo)(0))
    e("v_lshrrev_b32 v3, 4, v2")
    e("v_bfe_u32 v4, v2, 2, 2")
    e("v_lshl_add_u32 v4, v3, 3, v4")
    e("v_and_b32 v5, 1, v3")
    e("v_lshlrev_b32 v5, 2, v5")
    e("v_add_u32 v6, v4, v5")
    e("v_xor_b32 v7, 4, v6")
    e(f"v_mul_u32_u24 v6, {RS}, v6")
    e(f"v_mul_u32_u24 v7, {RS}, v7")
    e("v_and_b32 v5, 3, v2")
    e("v_lshl_add_u32 v14, v5, 3, v6")
    e("v_lshl_add_u32 v15, v5, 3, v7")
    e("s_and_b32 s49, s48, 1")
    e("s_lshr_b32 s50, s48, 1")
    e("s_mul_i32 s3, s49, 56")
    e("v_add_u32 v12, s3, v14")
    e("v_add_u32 v13, s3, v15")
    e("v_and_b32 v4, 15, v2")
    e("v_lshrrev_b32 v5, 1, v4")
    e("v_xor_b32 v5, v5, v3")
    e("v_lshlrev_b32 v5, 4, v5")
    e("v_lshl_add_u32 v18, v4, 7, v5")
    if isB:
        e("s_lshl_b32 s3, s50, 13")
        e("v_add_u32 v16, s3, v18")
        e("v_xor_b32 v17, 64, v16")
    else:
        e("v_lshl_add_u32 v16, v1, 12, v18")
        e("v_xor_b32 v17, 64, v16")
        e("v_xor_b32 v18, 0x1000, v16")
        e("v_xor_b32 v19, 0x1000, v17")

def gemm(vm, isB):
    lg = LG()
    D = DB if isB else DA
    NB = 12 if isB else 6
    assert D <= (5 if isB else 4)
    def bf(j):
        r = (j % NB)*4 + (0 if isB else 96); k = "a" if isB else "v"
        return (f"{k}[{r}:{r+3}]", f"{k}[{r}:{r+1}]", f"{k}[{r+2}:{r+3}]")
    def xr(ch, kk, rt):
        st = (2*ch + kk) % 3
        if isB: r = 48 + st*20 + rt*4
        elif rt < 2: r = (ch*4 + kk*2 + rt)*4
        else:
            r = 120 + st*8 + (rt-2)*4
            return f"v[{r}:{r+3}]"
        return f"a[{r}:{r+3}]"
    items = []
    for ch in range(7):
        for kk in range(2):
            for grp in ((0, 1, 2) if isB else (1, 2)):
                for t in range(2): items.append((ch, kk, grp, t))
    def sync(ch):
        if ch == 6: vm.wait("pre" if PRE else "non")
        e("s_barrier")
        stamp(vm, 12 + ch)
        if PST == ch + 2: prestore(vm, isB)
        pf_bar(vm, isB, ch)
        wb = 20 + (ch & 1)*2
        kvb = B_kv(ch) if isB else A_kv(ch)
        xb = B_x(ch) if isB else A_x(ch)
        e(f"v_add_u32 v24, {xb}, v16")
        e(f"v_add_u32 v25, {xb}, v17")
        if not isB:
            e(f"v_add_u32 v26, {xb}, v18")
            e(f"v_add_u32 v27, {xb}, v19")
        e(f"v_add_u32 v{wb}, {kvb}, v12")
        e(f"v_add_u32 v{wb+1}, {kvb}, v13")
    def xrd(ch, kk):
        if XNOR or XNOX: return
        if isB:
            for rt in (1, 2, 3, 4, 0):
                e(f"ds_read_b128 {xr(ch,kk,rt)}, v{24+kk} offset:{rt*2048}")
                lg.issue(f"x{ch}")
        else:
            for rt in range(4):
                e(f"ds_read_b128 {xr(ch,kk,rt)}, v{24+kk+(rt>>1)*2} offset:{(rt&1)*2048}")
                lg.issue(f"x{ch}")
    def rd(j):
        ch, kk, grp, t = items[j]
        if j == 0 or items[j-1][0] != ch: sync(ch)
        if j == 0 or items[j-1][:2] != (ch, kk): xrd(ch, kk)
        wb = 20 + (ch & 1)*2
        if grp == 0: off = KVS + kk*112 + t*32
        else: off = 32*kk*RS + (grp-1)*112 + t*(24 if (not isB and grp == 1) else 32)
        for hf in range(2):
            if XNOR or (XNOW and hf): continue
            e(f"ds_read_b64_tr_b16 {bf(j)[1+hf]}, v{wb+hf} offset:{off}")
            lg.issue(f"w{j}")
    for j in range(D): rd(j)
    for j, (ch, kk, grp, t) in enumerate(items):
        if j + D < len(items): rd(j + D)
        if not XNOR: lg.wait(f"w{j}")
        if XNOM and ch > 0: continue
        tr = isB and grp < 2
        first = (ch == 0 and kk == 0)
        for r in range(5 if (isB and grp) else 4):
            a = accB(grp, t, r) if isB else accA2(grp, t, r)
            x = xr(ch, kk, r + 1 if (isB and grp == 0) else r)
            cc = "0" if first else f"v[{a}:{a+3}]"
            if tr: e(f"v_mfma_f32_16x16x32_bf16 v[{a}:{a+3}], {bf(j)[0]}, {x}, {cc}")
            else: e(f"v_mfma_f32_16x16x32_bf16 v[{a}:{a+3}], {x}, {bf(j)[0]}, {cc}")

def pass2():
    lg = LG()
    D = 6; NB = 12
    items = [(ch, kk, t) for ch in range(7) for kk in range(2) for t in range(4)]
    e(f"v_add_u32 v20, {A_q(0)}, v14")
    e(f"v_add_u32 v21, {A_q(0)}, v15")
    def rd(j):
        ch, kk, t = items[j]
        r = 96 + (j % NB)*4
        off = A_q(ch) - A_q(0) + kk*112 + tcol(False, 0, t)
        for hf in range(2):
            e(f"ds_read_b64_tr_b16 v[{r+2*hf}:{r+2*hf+1}], v{20+hf} offset:{off}")
            lg.issue(f"w{j}")
    for j in range(D): rd(j)
    for j, (ch, kk, t) in enumerate(items):
        if j + D < len(items): rd(j + D)
        lg.wait(f"w{j}")
        r = 96 + (j % NB)*4
        for rt in range(2):
            a = accA(0, rt, t); x = (ch*4 + kk*2 + rt)*4
            cc = "0" if (ch == 0 and kk == 0) else f"v[{a}:{a+3}]"
            e(f"v_mfma_f32_16x16x32_bf16 v[{a}:{a+3}], v[{r}:{r+3}], a[{x}:{x+3}], {cc}")

def tile_addr(isB, r=14):
    if isB:
        e("s_lshl_b32 s3, s50, 13")
        e("s_lshl_b32 s27, s49, 10")
        e("s_add_u32 s3, s3, s27")
        e(f"v_lshlrev_b32 v{r}, 4, v2")
        e(f"v_add_u32 v{r}, s3, v{r}")
        e(f"v_add_u32 v{r+1}, 0x1000, v{r}")
    else:
        e(f"v_lshlrev_b32 v{r}, 12, v1")
        e(f"v_lshl_add_u32 v{r}, v2, 4, v{r}")
    e("s_lshl_b32 s27, s26, 14")
    e("s_add_u32 s63, s59, s27")
PLD = os.environ.get("PLD", "0") == "1"
def prestore(vm, isB):
    if PLD:
        e("v_lshlrev_b32 v10, 7, v2")
        e("v_lshl_add_u32 v10, v1, 12, v10")
        e("s_lshl_b32 s27, s26, 14")
        e("s_add_u32 s63, s59, s27")
        e("s_mov_b64 exec, 0xffffffff")
        e("buffer_load_dword v30, v10, s[40:43], s63 offen nt")
        e("s_mov_b64 exec, -1")
        vm.issue("pre")
        return
    tile_addr(isB, 10)
    for r in range(4): e(f"v_mov_b32 v{4+r}, 0")
    for (va, off, n) in tile_regs(isB):
        e(f"buffer_store_dwordx4 v[4:7], v{va-4}, s[40:43], s63 offen offset:{off}")
        vm.issue("pre")
def tile_regs(isB):
    if isB: return [(14 + (rt >> 1), (rt & 1)*2048, 16 + rt*4) for rt in range(4)]
    return [(14, rt*2048 + hh*1024, 16 + (hh*2+rt)*4) for hh in range(2) for rt in range(2)]
def tile_store(isB, q, vm=None):
    for (va, off, n) in tile_regs(isB):
        if q: e(f"buffer_store_dwordx4 v[{n}:{n+3}], v{va}, s[40:43], s51 offen offset:{off} sc0 sc1")
        else: e(f"buffer_store_dwordx4 v[{n}:{n+3}], v{va}, s[40:43], s63 offen offset:{off}")
        if vm: vm.issue("Q")

def epi_A(vm):
    c("---- A epilogue ----")
    e("v_and_b32 v5, 15, v2")
    e("v_lshrrev_b32 v6, 4, v2")
    e("v_cmp_le_u32 s[64:65], 12, v5")
    e("v_mov_b32 v7, 0x3f803f80")
    e(f"s_mul_i32 s3, s49, {2*WB}")
    e("s_lshl_b32 s27, s50, 11")
    e("s_add_u32 s3, s3, s27")
    e(f"s_add_u32 s3, s3, {A_scr(0)}")
    e("v_lshlrev_b32 v3, 4, v2")
    e("v_add_u32 v4, s3, v3")
    e("s_nop 7")
    PK = 96; VV = 112; TT = 128; KP = 32
    for t in range(2):
        for pr in range(2):
            sq = []
            for r2 in range(2):
                a = accA2(1, t, pr*2 + r2)
                d = PK + (t*2+pr)*4 + r2*2
                sq.append(phi_pair(d, a, a+1, TT + r2*4))
                sq.append(phi_pair(d + 1, a+2, a+3, TT + r2*4 + 2))
            ilv(sq)
    for t in range(2):
        for rt in range(4):
            a = accA2(2, t, rt)
            d = VV + t*8 + rt*2
            e(f"v_cvt_pk_bf16_f32 v{d}, v{a}, v{a+1}")
            e(f"v_cvt_pk_bf16_f32 v{d+1}, v{a+2}, v{a+3}")
            if t & 1:
                e(f"v_cndmask_b32 v{d}, v{d}, v7, s[64:65]")
                e(f"v_cndmask_b32 v{d+1}, v{d+1}, v7, s[64:65]")
    e("s_nop 1")
    for pr in range(2):
        for et in range(2):
            for dt in range(2):
                d = KP + (et*2 + dt)*4
                va = VV + (et*2+pr)*4; pk = PK + (dt*2+pr)*4
                cc = "0" if pr == 0 else f"v[{d}:{d+3}]"
                e(f"v_mfma_f32_16x16x32_bf16 v[{d}:{d+3}], v[{va}:{va+3}], v[{pk}:{pk+3}], {cc}")
    e("s_nop 7")
    for i in range(4):
        e("s_nop 3")
        e(f"ds_write_b128 v4, v[{KP+i*4}:{KP+i*4+3}] offset:{(i>>1)*WB + (i&1)*1024}")
    e("s_waitcnt lgkmcnt(0)")
    e("s_barrier")
    stamp(vm, 4)
    pass2()
    stamp(vm, 7)
    nonce_get()
    QF = 64
    e("v_cmp_eq_u32 s[10:11], 3, v6")
    e("v_cmp_eq_u32 s[12:13], 0, v6")
    e("v_lshlrev_b32 v10, 6, v5")
    e("v_lshl_add_u32 v10, v6, 4, v10")
    e(f"v_add_u32 v10, {KVB}, v10")
    tile_addr(False)
    e("v_mov_b32 v11, 0xffff")
    e("s_nop 3")
    for t in range(4):
        sq = []
        for rt in range(2):
            a = accA(0, rt, t)
            d = QF + (rt*2 + (t >> 1))*4 + (t & 1)*2
            s0 = phi_pair(d, a, a+1, TT + rt*4)
            s1 = phi_pair(d+1, a+2, a+3, TT + rt*4 + 2)
            if t & 1: s0.append(f"v_cndmask_b32 v{d}, v{d}, 0, s[12:13]")
            else: s1.append(f"v_cndmask_b32 v{d+1}, v{d+1}, 0, s[10:11]")
            sq += [s0, s1]
        ilv(sq)
    e("s_barrier")
    stamp(vm, 10)
    R = 80
    for hh in range(2):
        for f in range(2):
            r = R + (hh*2+f)*4
            e(f"ds_read_b128 v[{r}:{r+3}], v10 offset:{hh*2048 + f*1024}")
    NR = 96
    for hh in range(2):
        e(f"s_waitcnt lgkmcnt({2 - 2*hh})")
        for rt in range(2):
            n = NR + (hh*2+rt)*8
            q = QF + (rt*2+hh)*4
            for f in (1, 0):
                r = R + (hh*2+f)*4
                e(f"v_mfma_f32_16x16x32_bf16 v[{n+f*4}:{n+f*4+3}], v[{r}:{r+3}], v[{q}:{q+3}], 0")
    if EARLY: rd_res("a")
    e("s_nop 7")
    sq = []; regs = []
    for hh in range(2):
        for rt in range(2):
            n = NR + (hh*2+rt)*8
            t = TT + (hh*2+rt)*2
            o = [f"v_add_f32 v{t}, 0x{EPS:x}, v{n+7}",
                 f"v_rcp_f32 v{t}, v{t}",
                 f"v_mov_b32 v{t+1}, v{t}"]
            for q in range(3):
                o.append(f"v_pk_mul_f32 v[{n+2*q}:{n+2*q+1}], v[{n+2*q}:{n+2*q+1}], v[{t}:{t+1}]")
            o.append(f"v_mul_f32 v{n+6}, v{n+6}, v{t}")
            T = 16 + (hh*2+rt)*4
            for q in range(3):
                o.append(f"v_cvt_pk_bf16_f32 v{T+q}, v{n+2*q}, v{n+2*q+1}")
            o.append(f"v_cvt_pk_bf16_f32 v{T+3}, v{n+6}, v{n+6}")
            o.append(f"v_and_or_b32 v{T+3}, v{T+3}, v11, s61")
            sq.append(o)
    ilv(sq)
    tile_store(False, False)
    stamp(vm, 5, 4)

def epi_B(vm):
    c("---- B epilogue ----")
    e("v_and_b32 v5, 15, v2")
    e("v_lshrrev_b32 v6, 4, v2")
    e("v_cmp_gt_u32 s[64:65], 3, v6")
    nonce_get()
    e("v_and_b32 v3, 1, v5")
    e("v_cmp_eq_u32 s[4:5], 1, v3")
    e("v_mov_b32 v10, 0xffff")
    e("v_mov_b32 v11, 0xffff0000")
    e("v_cndmask_b32 v12, v10, v11, s[4:5]")
    e("v_lshl_add_u32 v11, v6, 2, v3")
    e("v_sub_u32 v11, v11, v5")
    def KF(blk): return 64 + blk*8
    def QF(rt): return 32 + rt*8
    def VB(et): return 104 + et*20
    def cvt4(b):
        for q in range(4): e(f"v_cvt_pk_bf16_f32 v{b+q}, v{b+2*q}, v{b+2*q+1}")
    def C0(cb): return 32 + cb*8 + 4
    def C1(cb): return 64 + cb*8 + 4
    for rt in range(4):
        b = QF(rt)
        cvt4(b)
        e(f"v_cndmask_b32 v{b+2}, 0, v{b+2}, s[64:65]")
        e(f"v_cndmask_b32 v{b+3}, 0, v{b+3}, s[64:65]")
    for blk in range(5): cvt4(KF(blk))
    e("s_nop 1")
    for rt in range(4):
        q = QF(rt)
        for ti in range(2):
            k = KF(rt + ti)
            d = C0(rt) if ti == 0 else C1(rt)
            e(f"v_mfma_f32_16x16x32_bf16 v[{d}:{d+3}], v[{k}:{k+3}], v[{q}:{q+3}], 0")
    if not BWM: e("s_barrier")
    for et in range(2):
        b = VB(et)
        for blk in range(5):
            e(f"v_cvt_pk_bf16_f32 v{b+2*blk}, v{b+4*blk}, v{b+4*blk+1}")
            e(f"v_cvt_pk_bf16_f32 v{b+2*blk+1}, v{b+4*blk+2}, v{b+4*blk+3}")
    for k in range(4):
        addk = 2*k if k < 2 else 16 + 2*(k-2)
        e(f"v_add_u32 v13, {addk}, v11")
        e(f"v_cmp_le_i32 s[{6+2*k}:{7+2*k}], 2, v13")
        e(f"v_cmp_ge_i32 vcc, 16, v13")
        e(f"s_and_b64 s[{6+2*k}:{7+2*k}], s[{6+2*k}:{7+2*k}], vcc")
    e("s_or_b32 s3, s25, s50")
    e("s_cmp_eq_u32 s3, 0")
    e("s_cselect_b64 s[14:15], 0, -1")
    e("s_and_b64 s[16:17], s[6:7], s[14:15]")
    e("s_and_b64 s[18:19], s[8:9], s[14:15]")
    e("v_mov_b32 v13, 0xce6e6b28")
    e(f"s_mov_b32 s20, 0x{SC2:x}")
    tile_addr(True)
    e("v_cmp_eq_u32 s[68:69], 3, v6")
    def seq(cb):
        lgr = [C0(cb), C0(cb)+2, C1(cb), C1(cb)+2]
        m = C1(cb)+1; m2 = C1(cb)+3
        o = []
        for k in range(4):
            o.append(f"v_cndmask_b32 v{lgr[k]}, v{lgr[k]}, v{lgr[k]+1}, s[4:5]")
        for k in range(4):
            ms = (16 + 2*k) if (cb == 0 and k < 2) else (6 + 2*k)
            o.append(f"v_cndmask_b32 v{lgr[k]}, v13, v{lgr[k]}, s[{ms}:{ms+1}]")
        o.append(f"v_max3_f32 v{m}, v{lgr[0]}, v{lgr[1]}, v{lgr[2]}")
        o.append(f"v_max_f32 v{m}, v{m}, v{lgr[3]}")
        o.append(f"v_mov_b32 v{m2}, v{m}")
        o.append(f"v_permlane16_swap_b32 v{m}, v{m2}")
        o.append(f"v_max_f32 v{m}, v{m}, v{m2}")
        o.append(f"v_mov_b32 v{m2}, v{m}")
        o.append(f"v_permlane32_swap_b32 v{m}, v{m2}")
        o.append(f"v_max_f32 v{m}, v{m}, v{m2}")
        o.append(f"v_mul_f32 v{m}, 0x{SC2 ^ 0x80000000:x}, v{m}")
        for k in range(4):
            o.append(f"v_fma_f32 v{lgr[k]}, v{lgr[k]}, s20, v{m}")
        for k in range(4):
            o.append(f"v_exp_f32 v{lgr[k]}, v{lgr[k]}")
        o.append(f"v_add_f32 v{m}, v{lgr[0]}, v{lgr[1]}")
        o.append(f"v_add_f32 v{m2}, v{lgr[2]}, v{lgr[3]}")
        o.append(f"v_add_f32 v{m}, v{m}, v{m2}")
        o.append(f"v_mov_b32 v{m2}, v{m}")
        o.append(f"v_permlane16_swap_b32 v{m}, v{m2}")
        o.append(f"v_add_f32 v{m}, v{m}, v{m2}")
        o.append(f"v_mov_b32 v{m2}, v{m}")
        o.append(f"v_permlane32_swap_b32 v{m}, v{m2}")
        o.append(f"v_add_f32 v{m}, v{m}, v{m2}")
        o.append(f"v_rcp_f32 v{m}, v{m}")
        for k in range(4):
            o.append(f"v_mul_f32 v{lgr[k]}, v{lgr[k]}, v{m}")
            o.append(f"v_cvt_pk_bf16_f32 v{C0(cb)+k}, v{lgr[k]}, v{lgr[k]}")
            o.append(f"v_and_b32 v{C0(cb)+k}, v{C0(cb)+k}, v12")
        return o
    ilv([seq(cb) for cb in range(4)])
    if EARLY:
        spin_flag(0, 4, "eq")
        rd_res("a")
    e("s_nop 1")
    for rt in range(4):
        for et in (1, 0):
            o = QF(rt) if et == 0 else C1(rt)
            v = VB(et) + 2*rt
            e(f"v_mfma_f32_16x16x32_bf16 v[{o}:{o+3}], v[{v}:{v+3}], v[{C0(rt)}:{C0(rt)+3}], 0")
    e("s_nop 7")
    sq = []; regs = []
    for rt in range(4):
        o0 = QF(rt); o1 = C1(rt); t = C0(rt)
        T = 16 + rt*4
        o = [f"v_mov_b32 v{t}, v{o1+3}",
             f"v_cvt_pk_bf16_f32 v{T}, v{o0}, v{o0+1}",
             f"v_permlane32_swap_b32 v{t+1}, v{t}",
             f"v_permlane16_swap_b32 v{t+2}, v{o1+3}",
             f"v_cvt_pk_bf16_f32 v{T+1}, v{o0+2}, v{o0+3}",
             f"v_permlane16_swap_b32 v{t+3}, v{t+1}",
             f"v_cndmask_b32 v{o1+2}, v{o1+2}, v{t+2}, s[68:69]",
             f"v_cndmask_b32 v{o1+1}, v{o1+1}, v{t+1}, s[68:69]",
             f"v_cndmask_b32 v{o1}, v{o1}, v{t+3}, s[68:69]",
             f"v_cvt_pk_bf16_f32 v{T+3}, v{o1+2}, v{o1+2}",
             f"v_cvt_pk_bf16_f32 v{T+2}, v{o1}, v{o1+1}",
             f"v_and_or_b32 v{T+3}, v{T+3}, v10, s61"]
        sq.append(o)
    ilv(sq)
    tile_store(True, False)
    if BWM: e("s_barrier")
    stamp(vm, 5, 4)

def p2(isB, isC):
    lab(f"P2_{'B' if isB else 'A'}{'C' if isC else 'L'}")
    c("---- P2: wave = (16 rows, K half) x 112 cols ----")
    kh = 0 if isC else 1
    wo = (B_wo if isB else A_wo)(8*kh)
    def ld(j, pol=None):
        for hh in range(2):
            r = oreg(j, hh)
            e(f"buffer_load_dwordx4 v[{r}:{r+3}], v6, s[40:43], s{64+j} offen offset:{hh*1024} {PPOL if pol is None else pol}")
    tr(0)
    if isC:
        e(f"v_mov_b32 v3, {FLG}")
        e("v_mov_b32 v4, 1")
        e("s_mov_b64 exec, 1")
        e("ds_add_u32 v3, v4 offset:4")
        e("s_mov_b64 exec, -1")
    e("s_and_b32 s49, s48, 3")
    e("s_and_b32 s50, s26, 1")
    e("s_lshl_b32 s3, s50, 13")
    e("s_lshl_b32 s27, s49, 11")
    e("s_add_u32 s3, s3, s27")
    e("s_add_u32 s64, s59, s3")
    if kh: e("s_add_u32 s64, s64, 0x10000")
    for j in range(1, 4): e(f"s_add_u32 s{64+j}, s64, {j*16384}")
    e("v_lshlrev_b32 v6, 4, v2")
    if isC:
        for j in range(4): ld(j, FPOL)
    if not isC:
        wo_bases(wo)
        e("v_lshlrev_b32 v6, 4, v2")
    if isB and not (isC and EARLY): spin_flag(0, 4, "eq")
    rd_res("v" if (isC and EARLY) else "av")
    e("v_lshrrev_b32 v7, 4, v2")
    e("v_lshrrev_b32 v11, 1, v7")
    e("v_and_b32 v12, 1, v7")
    e("v_and_b32 v5, 15, v2")
    e("s_lshl_b32 s3, s25, 7")
    e("s_lshl_b32 s27, s50, 6")
    e("s_add_u32 s3, s3, s27")
    e("s_lshl_b32 s27, s49, 4")
    e("s_add_u32 s3, s3, s27")
    e("v_add_u32 v5, s3, v5")
    e("v_mul_u32_u24 v10, 1792, v5")
    e("s_mul_i32 s3, s24, 896")
    e("s_add_u32 s3, s3, s55")
    e("v_add_u32 v10, s3, v10")
    if kh: e("v_lshl_add_u32 v14, v7, 3, v10")
    e("v_lshl_add_u32 v10, v12, 5, v10")
    e("v_lshl_add_u32 v10, v11, 4, v10")
    e("s_mul_i32 s3, s49, 7168")
    e(f"s_add_u32 s3, s3, {RED_B if isB else RED_A}")
    e("v_add_u32 v12, s3, v6")
    for r in range(28): e(f"v_mov_b32 v{AC+r}, 0")
    e("s_mov_b32 s78, 0")
    e("s_mov_b32 s79, 15")
    e("s_mov_b32 s68, 0x10000")
    if not isC:
        e("s_waitcnt lgkmcnt(0)")
        if isB and BWM: e("s_barrier")
        else: spin_flag(4, 1, "ge")
        for j in range(4): ld(j, FPOL)
    e("s_waitcnt lgkmcnt(0)")
    stamp(None, 6 if isC else 39, 4)
    tr(1)
    top = uid("PT"); done = uid("PDN"); fb = uid("PFB")
    lab(top)
    for j in range(4):
        nx = uid("NX"); dm = uid("DM"); bad = uid("BD")
        e("s_waitcnt vmcnt(6)")
        e(f"s_bitcmp1_b32 s79, {j}")
        e(f"s_cbranch_scc0 {dm}")
        r0 = oreg(j, 0) + 3; r1 = oreg(j, 1) + 3
        e(f"v_xor_b32 v{r0}, s61, v{r0}")
        e(f"v_xor_b32 v{r1}, s61, v{r1}")
        e(f"v_or_b32 v13, v{r0}, v{r1}")
        e("v_cmp_gt_u32 vcc, s68, v13")
        e("s_cmp_eq_u64 vcc, -1")
        e(f"s_cbranch_scc0 {bad}")
        tr(2 + j)
        for f in range(NRES, 14): rdf(j, f)
        e(f"buffer_load_dword v15, off, s[40:43], s{64+j}")
        e(f"buffer_load_dword v15, off, s[40:43], s{64+j}")
        e(f"s_bitset0_b32 s79, {j}")
        for f in range(14):
            hh, nt = divmod(f, 7)
            k, wr = wreg(j, f)
            a = AC + nt*4; r = oreg(j, hh)
            if f == NRES: e("s_waitcnt lgkmcnt(0)")
            e(f"v_mfma_f32_16x16x32_bf16 v[{a}:{a+3}], {k}[{wr}:{wr+3}], v[{r}:{r+3}], v[{a}:{a+3}]")
        e("s_cmp_eq_u32 s79, 0")
        e(f"s_cbranch_scc1 {done}")
        e(f"s_branch {nx}")
        lab(bad)
        if SLP: e(f"s_sleep {SLP}")
        ld(j)
        e(f"s_branch {nx}")
        lab(dm)
        e(f"buffer_load_dword v15, off, s[40:43], s{64+j}")
        e(f"buffer_load_dword v15, off, s[40:43], s{64+j}")
        lab(nx)
    e("s_add_u32 s78, s78, 1")
    e(f"s_cmp_lt_u32 s78, {NP}")
    e(f"s_cbranch_scc1 {top}")
    nc = uid("NC"); cp = uid("CP")
    e("s_waitcnt vmcnt(0)")
    e("s_lshl_b32 s57, s24, 4")
    e("s_add_u32 s57, s57, s25")
    e("s_lshl_b32 s57, s57, 7")
    e(f"s_add_u32 s57, s57, 0x{EPO:x}")
    e(f"s_cmp_eq_u32 s78, {NP}")
    e(f"s_cbranch_scc0 {nc}")
    e("s_lshl_b32 s3, s26, 14")
    e("s_add_u32 s62, s59, s3")
    e("s_mov_b32 s69, 0")
    lab(cp)
    for half in range(2):
        rl = uid("RL")
        lab(rl)
        e("v_mov_b32 v13, 0")
        for b in range(8):
            r = OF + b*4
            e(f"s_add_u32 s3, s62, {(half*8+b)*1024}")
            e(f"buffer_load_dwordx4 v[{r}:{r+3}], v6, s[40:43], s3 offen sc0 sc1")
        e("s_waitcnt vmcnt(0)")
        for b in range(8):
            e(f"v_xor_b32 v15, s61, v{OF+b*4+3}")
            e("v_or_b32 v13, v13, v15")
        e("v_cmp_gt_u32 vcc, 0x10000, v13")
        e("s_add_u32 s69, s69, 1")
        e("s_cmp_gt_u32 s69, 0x40000")
        e(f"s_cbranch_scc1 {done}")
        e("s_cmp_eq_u64 vcc, -1")
        e(f"s_cbranch_scc0 {rl}")
        for b in range(8):
            r = OF + b*4
            e(f"s_add_u32 s3, s62, 0x{TLQ + (half*8+b)*1024:x}")
            e(f"buffer_store_dwordx4 v[{r}:{r+3}], v6, s[40:43], s3 offen sc0 sc1")
        e("s_waitcnt vmcnt(0)")
    e("s_lshl_b32 s3, s26, 2")
    e("s_add_u32 s3, s3, s57")
    e("v_mov_b32 v15, s93")
    e("buffer_store_dword v15, off, s[40:43], s3 sc0 sc1")
    e("s_mov_b32 s68, 0x100000")
    lab(nc)
    e("v_and_b32 v15, 3, v2")
    e("v_lshlrev_b32 v15, 2, v15")
    e(f"buffer_load_dword v13, v15, s[40:43], s57 offen offset:{kh*16} sc0 sc1")
    e("s_waitcnt vmcnt(0)")
    e("v_cmp_eq_u32 vcc, s93, v13")
    for j in range(4):
        e(f"s_or_b32 s3, s{64+j}, 0x{TLQ:x}")
        e(f"s_bitcmp1_b32 vcc_lo, {j}")
        e(f"s_cselect_b32 s{64+j}, s3, s{64+j}")
    for j in range(4): ld(j, "sc0 sc1")
    e("s_cmp_lt_u32 s78, 0x40000")
    e(f"s_cbranch_scc1 {top}")
    lab(done)
    tr(6)
    if STAMP and (SIDS is None or 11 in SIDS):
        stamp(None, 11 if isC else 40, 4)
        e("v_mov_b32 v4, s78")
        e("s_lshl_b32 s74, s2, 8")
        e(f"s_add_u32 s74, s74, {STB + (20+kh)*4}")
        e("v_mov_b32 v5, 0")
        e("buffer_store_dword v4, v5, s[40:43], s74 offen")
    e("s_nop 7")
    e("s_nop 7")
    snd = range(4, 7) if isC else range(0, 4)
    kp = range(0, 4) if isC else range(4, 7)
    for t in snd:
        e(f"ds_write_b128 v12, v[{AC+t*4}:{AC+t*4+3}] offset:{t*1024}")
    e("s_waitcnt lgkmcnt(0)")
    e("s_barrier")
    tr(7)
    RR = 76
    for t in kp:
        e(f"ds_read_b128 v[{RR+t*4}:{RR+t*4+3}], v12 offset:{t*1024}")
    if isC:
        sk = uid("NS")
        e("s_or_b32 s3, s26, s48")
        e("s_cmp_eq_u32 s3, 0")
        e(f"s_cbranch_scc0 {sk}")
        e("v_mov_b32 v13, s93")
        e("buffer_store_dword v13, off, s[40:43], s60 sc0 sc1")
        lab(sk)
    D = 108
    for n, t in enumerate(kp):
        e(f"s_waitcnt lgkmcnt({len(kp)-1-n})")
        a = AC + t*4; r = RR + t*4
        e(f"v_pk_add_f32 v[{a}:{a+1}], v[{a}:{a+1}], v[{r}:{r+1}]")
        e(f"v_pk_add_f32 v[{a+2}:{a+3}], v[{a+2}:{a+3}], v[{r+2}:{r+3}]")
        d = D + n*2
        e(f"v_cvt_pk_bf16_f32 v{d}, v{a}, v{a+1}")
        e(f"v_cvt_pk_bf16_f32 v{d+1}, v{a+2}, v{a+3}")
    e("s_nop 1")
    for pr in range(2 if isC else 1):
        d = D + pr*4
        e(f"v_permlane16_swap_b32 v{d}, v{d+2}")
        e(f"v_permlane16_swap_b32 v{d+1}, v{d+3}")
    e("s_nop 1")
    if isC:
        e(f"buffer_store_dwordx4 v[{D}:{D+3}], v10, s[88:91], 0 offen " + OPOL)
        e(f"buffer_store_dwordx4 v[{D+4}:{D+7}], v10, s[88:91], 0 offen offset:64 " + OPOL)
    else:
        e(f"buffer_store_dwordx4 v[{D}:{D+3}], v10, s[88:91], 0 offen offset:128 " + OPOL)
        e(f"buffer_store_dwordx2 v[{D+4}:{D+5}], v14, s[88:91], 0 offen offset:192 " + OPOL)
    stamp(None, 9 if isC else 41, 4)
    if TR:
        tr(8)
        e("s_waitcnt lgkmcnt(0)")
        e("s_lshl_b32 s74, s2, 9")
        e("s_lshl_b32 s3, s48, 6")
        e("s_add_u32 s74, s74, s3")
        e("s_add_u32 s74, s74, 0x910000")
        e("s_mov_b64 exec, 1")
        for k in range(9):
            e(f"v_mov_b32 v4, s{4+2*k}")
            e(f"buffer_store_dword v4, off, s[40:43], s74 offset:{k*4}")
        e("v_mov_b32 v4, s78")
        e(f"buffer_store_dword v4, off, s[40:43], s74 offset:36")
        e("s_mov_b64 exec, -1")
    if not isC: stamp(None, 2, 4)
    e("s_endpgm")

PF = os.environ.get("PF", "1") == "1"
PFT0 = int(os.environ.get("PFT0", "4"))
PFC = os.environ.get("PFC", "0") == "1"
PFD = int(os.environ.get("PFD", "6"))
PF2 = os.environ.get("PF2", "0")
PFW = [int(x) for x in os.environ.get("PFW", "5,2").split(",")]
PFQ = int(os.environ.get("PFQ", "-1"))
PFPOL = os.environ.get("PFPOL", "")
def pf_setup(isB):
    NW = 42 if isB else 28
    e("s_lshl_b32 s3, s23, 2")
    e("s_add_u32 s3, s3, s48")
    e("s_and_b32 s27, s3, 63")
    e("s_lshr_b32 s80, s3, 6")
    e("s_lshl_b32 s3, s3, 6")
    e("v_add_u32 v4, s3, v2")
    e("v_min_u32 v4, 6271, v4")
    e("v_lshlrev_b32 v11, 6, v4")
    if not isB:
        e("v_mul_u32_u24 v5, 9363, v4")
        e("v_lshrrev_b32 v5, 17, v5")
        e("v_mul_u32_u24 v5, 1792, v5")
        e("v_add_u32 v4, v5, v11")
    e("s_lshl_b32 s3, s27, 6")
    e("v_add_u32 v5, s3, v2")
    if isB:
        e("v_lshlrev_b32 v10, 6, v5")
    else:
        e("v_mul_u32_u24 v6, 2341, v5")
        e("v_lshrrev_b32 v6, 16, v6")
        e("v_mul_u32_u24 v6, 896, v6")
        e("v_lshl_add_u32 v10, v5, 6, v6")
        e("v_add_u32 v10, 896, v10")
    e(f"v_subrev_u32 v5, {NW*64}, v5")
    e("v_min_u32 v5, 1023, v5")
    e("v_lshrrev_b32 v6, 1, v5")
    e("s_and_b32 s3, s22, 3")
    e("s_lshl_b32 s3, s3, 9")
    e("v_add_u32 v6, s3, v6")
    e("v_mul_u32_u24 v6, 896, v6")
    e("v_and_b32 v5, 1, v5")
    e("v_lshl_add_u32 v6, v5, 6, v6")
    e(f"s_cmp_lt_u32 s27, {NW}")
    e("s_cselect_b64 vcc, -1, 0")
    e("v_cndmask_b32 v10, v6, v10, vcc")
def pf_setup2(isB):
    NW = 42 if isB else 28
    e(f"s_cmp_lt_u32 s27, {NW}")
    e("s_cselect_b32 s4, s32, s28")
    e("s_cselect_b32 s5, s33, s29")
    e("s_cselect_b32 s6, s34, s30")
    e("s_mov_b32 s7, 0x20000")
    e("s_cselect_b32 s12, 1344, 1")
    e("s_lshl_b32 s12, s12, 7")
    e("s_add_u32 s3, s80, 2")
    e("s_mul_i32 s13, s12, s3")
    e("s_mul_i32 s15, s12, 6")
    e("s_lshl_b32 s12, s12, 1")
def pf_step(vm):
    e(f"buffer_load_dword v30, v10, s[4:7], s13 offen {PFPOL}")
    vm.issue("pf")
    e("s_add_u32 s13, s13, s12")
    e("s_min_u32 s13, s13, s15")
def slp(n):
    while n > 0:
        e(f"s_sleep {min(n, 127)}"); n -= 127
def pf_pre(vm):
    slp(PFT0)
    sk = uid("PFS")
    e("s_cmp_eq_u32 s80, 0")
    e(f"s_cbranch_scc1 {sk}")
    slp(PFD)
    lab(sk)
    pf_step(vm)
    slp(2*PFD)
    pf_step(vm)
    if PF2 == "t":
        slp(2*PFD)
        pf_step(vm)
CPF = int(os.environ.get("CPF", "0"))
def code_pf(vm):
    lb = uid("CPC")
    e("s_getpc_b64 s[8:9]")
    lab(lb)
    e(f"s_sub_u32 s8, s8, {lb}-{NAME}_kernel")
    e("s_subb_u32 s9, s9, 0")
    e("s_and_b32 s9, s9, 0xffff")
    e(f"s_mov_b32 s10, K_END-{NAME}_kernel")
    e("s_mov_b32 s11, 0x20000")
    e("s_lshl_b32 s3, s23, 2")
    e("s_add_u32 s3, s3, s48")
    e("s_lshl_b32 s3, s3, 10")
    e("v_lshlrev_b32 v5, 6, v2")
    e("s_mov_b64 exec, 0xffff")
    e("buffer_load_dword v30, v5, s[8:11], s3 offen")
    e("s_mov_b64 exec, -1")
    vm.issue("pf")
def pf_bar(vm, isB, ch):
    if CPF == ch: code_pf(vm)
    if not PF: return
    if PFC and PF2 == str(ch): pf_step(vm)
    if PFW[isB] == ch:
        e(f"buffer_load_dword v30, v11, s[36:39], 0 offen {PFPOL}")
        vm.issue("pf")
    if not isB and PFQ == ch:
        e(f"buffer_load_dword v30, v4, s[32:35], 0 offen {PFPOL}")
        vm.issue("pf")

def compute(isB):
    lab("C_B" if isB else "C_A")
    vm = VM()
    comp_setup(isB)
    if PF: pf_setup(isB)
    srds(isB)
    if PF: pf_setup2(isB)
    stamp(vm, 0)
    stamp(vm, 1)
    nonce_issue(vm)
    if PRE:
        e("s_mul_i32 s3, s25, 229376")
        e("s_mul_i32 s27, s24, 896")
        e("s_add_u32 s3, s3, s27")
        e("buffer_load_dword v30, v3, s[88:91], s3 offen"); vm.issue("pre")
        e("buffer_load_dword v30, v3, s[36:39], s55 offen"); vm.issue("pre")
        if not PST: e("buffer_load_dword v30, v3, s[40:43], s59 offen"); vm.issue("pre")
    if PST == 1: prestore(vm, isB)
    if PF and PFC: pf_pre(vm)
    if CPF == -1: code_pf(vm)
    gemm(vm, isB)
    stamp(vm, 3)
    if isB: epi_B(vm)
    else: epi_A(vm)
    p2(isB, True)
    p2(isB, False)

def kernel():
    lab(f"{NAME}_kernel")
    prologue()
    for lw in range(4): loader(False, lw)
    for lw in range(4): loader(True, lw)
    compute(False)
    compute(True)
    lab("K_END")
    e("s_endpgm")

HDR = open("cdna_kernels/" + NAME + ".s.ref").read().split("; @launch")[0]
kernel()
out = HDR
out += f"; @launch grid=(256,1,1) block=(512,1,1) lds={LDS_TOTAL}\n"
out += '.amdgcn_target "amdgcn-amd-amdhsa--gfx950"\n.text\n'
out += f".globl {NAME}_kernel\n.p2align 8\n.type {NAME}_kernel,@function\n"
out += "\n".join(L) + "\n"
out += f""".section .rodata,"a"
.p2align 6
.amdhsa_kernel {NAME}_kernel
  .amdhsa_next_free_vgpr 256
  .amdhsa_next_free_sgpr 96
  .amdhsa_accum_offset 144
  .amdhsa_group_segment_fixed_size 0
  .amdhsa_kernarg_size 72
  .amdhsa_user_sgpr_count 2
  .amdhsa_user_sgpr_kernarg_segment_ptr 1
  .amdhsa_system_sgpr_workgroup_id_x 1
.end_amdhsa_kernel
"""
path = sys.argv[1] if len(sys.argv) > 1 else f"cdna_kernels/{NAME}.s"
open(path, "w").write(out)
```

```python
import sys, os, struct
NAME = "concat_heads__linear_attn_block__sliding_local_dilated__prompt"
TLP = 0
TLQ = int(os.environ.get("TLQ", "0x400000"), 0)
OPOL = os.environ.get("OPOL", "")
TPOL = os.environ.get("TPOL", "")
ACC = 0xa00000
NON = 0x800000
AS = int(os.environ.get("AS", "128"))
WS_END = 0xa00000 + 512*AS
STAMP = os.environ.get("STAMP") in ("1", "2")
RT = os.environ.get("STAMP") == "2"
STB = 0x900000
LOG2E = 0x3FB8AA3B
EPS = 0x358637BD
for s in range(64*21): assert (s * 4682) >> 16 == s // 14
for s in range(32): assert (s * 37) >> 8 == s // 7
RS = 224
KVS = 14336; QS = 7168; XS = 16384
LDS_TOTAL = 163840
ROT = os.environ.get("ROT", "1") == "1"
PPOL = os.environ.get("PPOL", "nt")
ROTM = os.environ.get("ROTM", "2*p")
XM = int(os.environ.get("XM", "2"))
SWP = os.environ.get("SWP", "0") == "1"
XNOX = os.environ.get("XNOX") == "1"
XNOW = os.environ.get("XNOW") == "1"
BWM = os.environ.get("BWM", "0") == "1"
XNOR = os.environ.get("XNOR") == "1"
XNOM = os.environ.get("XNOM") == "1"
XNOL = os.environ.get("XNOL") == "1"
LAA = int(os.environ.get("LAA", "2"))
LAB = int(os.environ.get("LAB", "0"))
ROTMB = os.environ.get("ROTMB", ROTM)
XMB = int(os.environ.get("XMB", str(XM)))
W0 = os.environ.get("W0") == "1"
PRE = os.environ.get("PRE", "1") == "1"
NOQ = os.environ.get("NOQ") == "1"
L1X = os.environ.get("L1X") == "1"
DA = int(os.environ.get("DA", "4"))
DB = int(os.environ.get("DB", "5"))
def f2u(x): return struct.unpack('<I', struct.pack('<f', x))[0]
SC2 = f2u(28 ** -0.5 * 1.4426950408889634)
CNT_Z = 40 * 4
WB = 6272
def A_kv(i): return (i % 5) * 30720
def A_x(i): return (i % 5) * 30720 + KVS
def A_q(i): return 61440 + i*QS
UP = 111616
def A_wo(h): return h*WB if h < 8 else UP + (h-8)*WB
def A_scr(lw): return A_wo(12 + lw)
KVB = 50176
B_WSL = [140288, 0, 21504, 118784]
def B_kv(i): return B_WSL[i % 4]
def B_q(i): return B_WSL[i % 4] + KVS
def B_x(i): return 43008 + (i % 3) * 18432
def B_wo(h): return 61440 + h*WB
assert B_wo(8) == UP
FLG = 161792
RED_A = 61440; RED_B = 0
EPO = NON + 0x10000

L = []
def e(s): L.append("    " + s)
def lab(s): L.append(s + ":")
def c(s): L.append("    ; " + s)
_uid = [0]
def uid(p):
    _uid[0] += 1
    return f"{p}_{_uid[0]}"

class CNT:
    def __init__(self, kind, mx): self.ops = []; self.kind = kind; self.mx = mx
    def issue(self, tag): self.ops.append(tag)
    def n(self, tag):
        idx = max(i for i, t in enumerate(self.ops) if t == tag)
        return min(len(self.ops) - 1 - idx, self.mx)
    def wait(self, tag): e(f"s_waitcnt {self.kind}({self.n(tag)})")
def VM(): return CNT("vmcnt", 63)
def LG(): return CNT("lgkmcnt", 15)

SIDS = [int(x) for x in os.environ["SIDS"].split(",")] if os.environ.get("SIDS") else None
def stamp(vm, i, r=28):
    if not STAMP: return
    if SIDS is not None and i not in SIDS: return
    if i in (1, 2):
        e(f"v_mov_b32 v{r}, s94")
    else:
        e("s_memrealtime s[72:73]" if RT else "s_memtime s[72:73]")
        e("s_waitcnt lgkmcnt(0)")
        e(f"v_mov_b32 v{r}, s72")
    e("s_lshl_b32 s74, s2, 8")
    e(f"s_add_u32 s74, s74, {STB + i*4}")
    e(f"v_and_b32 v{r+1}, 0xff, v0")
    e(f"v_cmp_eq_u32 s[76:77], 0, v{r+1}")
    e("s_mov_b64 exec, s[76:77]")
    e(f"buffer_store_dword v{r}, v{r+1}, s[40:43], s74 offen")
    e("s_mov_b64 exec, -1")
    if vm is not None: vm.issue("stamp")

WST = os.environ.get("WST") == "1"
def wmark(k):
    if not WST: return
    e("s_memrealtime s[72:73]")
    e("s_waitcnt lgkmcnt(0)")
    e(f"s_mov_b32 s{96+k}, s72")
def wdump(vm):
    if not WST: return
    e("s_lshl_b32 s74, s2, 9")
    e("s_lshl_b32 s75, s48, 6")
    e("s_add_u32 s74, s74, s75")
    e("s_add_u32 s74, s74, 0x910000")
    e("s_mov_b64 exec, 1")
    e("v_mov_b32 v28, s94")
    e("buffer_store_dword v28, off, s[40:43], s74")
    for k in range(6):
        e(f"v_mov_b32 v28, s{96+k}")
        e(f"buffer_store_dword v28, off, s[40:43], s74 offset:{4+k*4}")
        if vm is not None: vm.issue("stamp")
    e("s_mov_b64 exec, -1")
    if vm is not None: vm.issue("stamp")

def phi_pair(dst, a, b, t):
    assert b == a + 1 and a % 2 == 0 and t % 2 == 0
    return [f"v_pk_mul_f32 v[{t}:{t+1}], v[{a}:{b}], s[70:71]",
            f"v_exp_f32 v{t}, v{t} clamp",
            f"v_exp_f32 v{t+1}, v{t+1} clamp",
            f"v_max_f32 v{a}, 0, v{a}",
            f"v_max_f32 v{b}, 0, v{b}",
            f"v_pk_add_f32 v[{t}:{t+1}], v[{t}:{t+1}], v[{a}:{b}]",
            f"v_cvt_pk_bf16_f32 v{dst}, v{t}, v{t+1}"]
def ilv(seqs):
    for i in range(max(len(q) for q in seqs)):
        for q in seqs:
            if i < len(q): e(q[i])

def srd(base, lo, hi, nbytes):
    e(f"s_mov_b32 s{base}, s{lo}")
    e(f"s_and_b32 s{base+1}, s{hi}, 0xffff")
    e(f"s_mov_b32 s{base+2}, 0x{nbytes:x}")
    e(f"s_mov_b32 s{base+3}, 0x20000")

def srds(isB):
    e("s_waitcnt lgkmcnt(0)")
    o = 6 if isB else 0
    srd(32, 6+o, 7+o, 448*2688)
    srd(28, 4+o, 5+o, 2048*896)
    srd(40, 20, 21, WS_END)
    srd(36, 8+o, 9+o, 448*896)
    srd(44, 18, 19, 256)
    srd(88, 16, 17, 2048*1792)

def prologue():
    if STAMP or WST: e("s_memrealtime s[94:95]")
    e("s_cmp_ge_u32 s2, 256")
    e("s_cbranch_scc1 K_END")
    e("s_load_dwordx4 s[4:7], s[0:1], 0")
    e("s_load_dwordx4 s[8:11], s[0:1], 16")
    e("s_load_dwordx4 s[12:15], s[0:1], 32")
    e("s_load_dwordx4 s[16:19], s[0:1], 48")
    e("s_load_dwordx2 s[20:21], s[0:1], 64")
    e("v_lshrrev_b32 v1, 6, v0")
    e("v_and_b32 v2, 63, v0")
    e("v_readfirstlane_b32 s48, v1")
    e("s_and_b32 s22, s2, 7")
    e("s_lshr_b32 s23, s2, 3")
    e("s_lshr_b32 s24, s22, 2")
    if SWP: e("s_xor_b32 s24, s24, 1")
    e("s_and_b32 s27, s22, 3")
    e("s_lshl_b32 s25, s27, 2")
    e("s_and_b32 s3, s23, 3")
    e("s_add_u32 s25, s25, s3")
    e("s_lshr_b32 s26, s23, 2")
    e("s_mul_i32 s56, s26, 112")
    e("s_lshr_b32 s55, s26, 1")
    e("s_mul_i32 s55, s55, 224")
    e("s_getreg_b32 s92, hwreg(HW_REG_XCC_ID)")
    e("s_and_b32 s92, s92, 15")
    e(f"s_mov_b32 s70, 0x{LOG2E:x}")
    e(f"s_mov_b32 s71, 0x{LOG2E:x}")
    e("s_lshl_b32 s60, s24, 4")
    e("s_add_u32 s60, s60, s25")
    e("s_lshl_b32 s59, s60, 17")
    e("s_lshl_b32 s60, s60, 7")
    e(f"s_add_u32 s60, s60, 0x{NON:x}")
    if ROTM:
        def tbl(f):
            tb = [eval(f, {"slot": sl, "p": sl >> 2, "r": sl & 3}) % 7 for sl in range(32)]
            return [sum(tb[8*k+i] << (4*i) for i in range(8)) for k in range(4)]
        wa = tbl(ROTM); wb = tbl(ROTMB)
        for k in range(4): e(f"s_mov_b32 s{74+k}, 0x{wa[k]:x}")
        e(f"s_mov_b32 s78, {XM}")
        if (wa, XM) != (wb, XMB):
            e("s_cmp_eq_u32 s24, 0")
            for k in range(4): e(f"s_cselect_b32 s{74+k}, s{74+k}, 0x{wb[k]:x}")
            e(f"s_cselect_b32 s78, s78, {XMB}")
        e("s_cmp_lt_u32 s23, 16")
        e("s_cselect_b64 s[74:75], s[74:75], s[76:77]")
        e("s_and_b32 s3, s23, 15")
        e("s_lshl_b32 s3, s3, 2")
        e("s_lshr_b64 s[74:75], s[74:75], s3")
        e("s_and_b32 s81, s74, 7")
        if XM or XMB:
            e(f"s_mul_i32 s3, s27, s78")
            e("s_add_u32 s81, s81, s3")
            e("s_mul_i32 s3, s81, 37")
            e("s_lshr_b32 s3, s3, 8")
            e("s_mul_i32 s3, s3, 7")
            e("s_sub_u32 s81, s81, s3")
    elif ROT:
        e("s_mul_i32 s3, s23, 37")
        e("s_lshr_b32 s3, s3, 8")
        e("s_mul_i32 s3, s3, 7")
        e("s_sub_u32 s81, s23, s3")
    else:
        e("s_mov_b32 s81, 0")
    e("s_mov_b32 s82, s81")
    e("s_lshl_b32 s3, s24, 3")
    e("s_add_u32 s3, s3, s48")
    e("s_cmp_lt_u32 s3, 4")
    e("s_cbranch_scc1 C_A")
    for lw in range(4):
        e(f"s_cmp_eq_u32 s3, {4+lw}")
        e(f"s_cbranch_scc1 L_A{lw}")
    e("s_cmp_lt_u32 s3, 12")
    e("s_cbranch_scc1 C_B")
    for lw in range(3):
        e(f"s_cmp_eq_u32 s3, {12+lw}")
        e(f"s_cbranch_scc1 L_B{lw}")
    e("s_branch L_B3")

def nonce_issue(vm):
    e("v_mov_b32 v3, 0")
    e("buffer_load_dword v31, v3, s[40:43], s60 offen sc0 sc1")
    vm.issue("non")
def nonce_get():
    e("v_readfirstlane_b32 s93, v31")
    e("s_nop 3")
    e("s_add_u32 s93, s93, 16")
    e("s_and_b32 s61, s93, 0x7ff0")
    e("s_or_b32 s61, s61, s92")
    e("s_or_b32 s61, s61, 0x8000")
    e("s_lshl_b32 s61, s61, 16")

def div14(n):
    e(f"v_add_u32 v3, {64*n}, v2")
    e("v_mul_u32_u24 v4, 4682, v3")
    e("v_lshrrev_b32 v4, 16, v4")
    e("v_mul_u32_u24 v5, 14, v4")
    e("v_sub_u32 v3, v3, v5")
    e("v_cmp_lt_u32 vcc, 6, v3")
    e("v_cndmask_b32 v5, 0, 1, vcc")
    e("v_mul_u32_u24 v6, 7, v5")
    e("v_sub_u32 v3, v3, v6")

def w_voff(dst, n, isq):
    div14(n)
    e("v_lshrrev_b32 v6, 1, v4")
    e("v_and_b32 v6, 4, v6")
    e("v_xor_b32 v4, v4, v6")
    e("v_mul_u32_u24 v4, 2688, v4")
    if isq:
        e("v_mul_u32_u24 v5, s58, v5")
        e("v_lshl_add_u32 v3, v3, 4, v4")
        e(f"v_add_u32 v{dst}, v3, v5")
    else:
        e("v_mul_u32_u24 v5, 896, v5")
        e("v_lshl_add_u32 v3, v3, 4, v4")
        e(f"v_add3_u32 v{dst}, v3, v5, s57")

def step_hdr(sr, w=True, x=True):
    if w:
        e(f"s_mul_i32 s83, s{sr}, 172032")
        e("s_add_u32 s83, s83, s56")
    if x:
        e(f"s_lshl_b32 s85, s{sr}, 7")
        e("s_add_u32 s86, s85, 14336")
    e(f"s_add_u32 s{sr}, s{sr}, 1")
    e(f"s_cmp_eq_u32 s{sr}, 7")
    e(f"s_cselect_b32 s{sr}, 0, s{sr}")

FILL = []
FN = int(os.environ.get("FN", "12"))
def capture(fn, *a):
    global L
    sv = L; L = []
    fn(*a)
    r = L; L = sv
    FILL.extend(r)
def flush(n=10**9):
    while FILL and n > 0:
        L.append(FILL.pop(0)); n -= 1
def dma(vm, tag, voff, srd_, soff, lds):
    e(f"s_mov_b32 m0, {lds}")
    e("s_nop 0")
    e(f"buffer_load_dwordx4 v{voff}, s[{srd_}:{srd_+3}], {soff} offen lds")
    vm.issue(tag)
    flush(FN)

def wo_voffs(isB):
    for t in range(7):
        div14(t)
        e("v_min_u32 v4, 27, v4")
        e("v_cmp_lt_u32 vcc, 13, v4")
        e("v_cndmask_b32 v6, 0, 1, vcc")
        e("v_mul_u32_u24 v24, 14, v6")
        e("v_sub_u32 v4, v4, v24")
        e("v_lshrrev_b32 v24, 2, v4")
        e("v_and_b32 v25, 3, v4")
        e("v_cmp_lt_u32 vcc, 10, v4")
        e("v_cndmask_b32 v26, 0, 1, vcc")
        e("v_mul_u32_u24 v27, 3, v26")
        e("v_sub_u32 v27, v4, v27")
        e("v_subrev_u32 v27, 4, v27")
        e("v_cmp_lt_u32 vcc, 7, v4")
        e("v_cndmask_b32 v24, v24, v26, vcc")
        e("v_cndmask_b32 v25, v25, v27, vcc")
        e("v_lshl_add_u32 v24, v6, 1, v24")
        if not isB:
            e("v_mul_u32_u24 v24, 7, v24")
            e("v_add_u32 v4, v24, v25")
        else:
            e("v_lshl_add_u32 v4, v24, 2, v25")
            e("v_add_u32 v26, 12, v4")
            e("v_lshlrev_b32 v27, 2, v25")
            e("v_add_u32 v27, 3, v27")
            e("v_cmp_eq_u32 s[4:5], 3, v24")
            e("v_cndmask_b32 v26, v26, v27, s[4:5]")
            e("v_cndmask_b32 v4, v4, v26, vcc")
        e("v_mul_u32_u24 v5, 112, v5")
        e("v_mul_u32_u24 v4, 896, v4")
        e("v_lshl_add_u32 v3, v3, 4, v4")
        e(f"v_add3_u32 v{40+t}, s55, v3, v5")

def wo_block(vm, h, isB):
    base = B_wo(h) if isB else A_wo(h)
    e(f"s_mov_b32 s86, {h*28*896}")
    for t in range(7):
        if t == 6: e("s_mov_b64 exec, 0xff")
        dma(vm, "wo", 40+t, 36, "s86", base + t*1024)
    e("s_mov_b64 exec, -1")

def flg_init(lw):
    if lw == 0:
        e(f"v_mov_b32 v3, {FLG}")
        e("v_mov_b32 v4, 0")
        e("v_mov_b32 v5, 0")
        e("ds_write_b64 v3, v[4:5]")
        e("s_waitcnt lgkmcnt(0)")

def loader(isB, lw):
    lab(f"L_{'B' if isB else 'A'}{lw}")
    if WST: e("s_memrealtime s[96:97]")
    vm = VM()
    SO = 32
    e("s_movk_i32 s57, 896")
    e("s_mov_b32 s58, 86016")
    e("v_lshrrev_b32 v3, 3, v2")
    e("v_lshrrev_b32 v4, 4, v2")
    e("v_and_b32 v5, 7, v2")
    e("v_xor_b32 v5, v5, v4")
    e("s_lshl_b32 s3, s25, 7")
    e(f"s_add_u32 s3, s3, {32*lw}")
    e("v_add_u32 v6, s3, v3")
    e("v_mul_u32_u24 v6, 896, v6")
    e("v_lshl_add_u32 v16, v5, 4, v6")
    e("v_xor_b32 v17, 64, v16")
    e("v_add_u32 v17, 7168, v17")
    kvn = [n for n in range(lw, 14, 4)]
    if isB:
        wn = [n for n in range(lw, 21, 4)]
        kvn = [n for n in wn if n < 14]; qn = [n-14 for n in wn if n >= 14]
    else:
        qn = [n for n in range(lw, 7, 4)]
    for j, n in enumerate(kvn): w_voff(8+j, n, False)
    if isB:
        for j, n in enumerate(qn): w_voff(12+j, n, True)
        if lw in (1, 2):
            u = lw - 1
            e("v_lshrrev_b32 v3, 3, v2")
            e("v_lshrrev_b32 v4, 4, v2")
            e("v_and_b32 v5, 7, v2")
            e("v_xor_b32 v5, v5, v4")
            if u: e("v_xor_b32 v5, 4, v5")
            e("s_lshl_b32 s3, s25, 7")
            e("s_sub_u32 s3, s3, 16")
            e("s_max_i32 s3, s3, 0")
            e(f"s_add_u32 s3, s3, {8*u}")
            e("v_add_u32 v6, s3, v3")
            e("v_mul_u32_u24 v6, 896, v6")
            e("v_lshl_add_u32 v18, v5, 4, v6")
    srds(isB)
    wmark(1)
    stamp(vm, SO + 0)
    slp(LDL)
    def isW(i):
        if XNOL and i >= 2:
            e("buffer_load_dword v30, off, s[40:43], s60"); vm.issue(f"c{i}")
            return
        for j, n in enumerate(kvn): dma(vm, f"c{i}", 8+j, 32, "s83", (B_kv(i) if isB else A_kv(i)) + n*1024)
        if isB:
            for j, n in enumerate(qn): dma(vm, f"c{i}", 12+j, 32, "s83", B_q(i) + n*1024)
    def isX(i):
        if XNOL and i >= 2: return
        xb = B_x(i) if isB else A_x(i)
        for u in range(4):
            dma(vm, f"c{i}", 16 + (u & 1), 28, "s85" if u < 2 else "s86", xb + (2048 if isB else 0) + (4*lw+u)*1024)
        if isB and lw in (1, 2):
            dma(vm, f"c{i}", 18, 28, "s85", xb + (lw-1)*1024)
    if not isB:
        step_hdr(81); isX(0); isW(0)
        nonce_issue(vm)
        if W0: e("s_waitcnt vmcnt(0)")
        stamp(vm, 36)
        wmark(2)
        for r in range(4): e(f"v_mov_b32 v{4+r}, 0")
        zs = uid("ZS")
        e("s_cmp_eq_u32 s25, 0")
        e(f"s_cbranch_scc0 {zs}")
        e(f"s_mul_i32 s3, s26, {64*AS}")
        e(f"s_add_u32 s3, s3, 0x{ACC + lw*16*AS:x}")
        e("v_lshrrev_b32 v3, 2, v2")
        e(f"v_mul_u32_u24 v3, {AS}, v3")
        e("v_and_b32 v19, 3, v2")
        e("v_lshl_add_u32 v3, v19, 5, v3")
        e("buffer_store_dwordx4 v[4:7], v3, s[40:43], s3 offen sc0 sc1")
        e("buffer_store_dwordx4 v[4:7], v3, s[40:43], s3 offen offset:16 sc0 sc1")
        lab(zs)
        for k in range(1, LAA): step_hdr(81); isX(k); isW(k)
        flg_init(lw)
        def isQ(i):
            step_hdr(82)
            for j, n in enumerate(qn): dma(vm, "q", 12+j, 32, "s83", A_q(i) + n*1024)
        for i in range(7):
            if i == 0: stamp(vm, 37); wmark(3)
            vm.wait(f"c{i}")
            if i == 0: stamp(vm, 38); wmark(4)
            e("s_barrier")
            if i == 0: wmark(5); wdump(vm)
            if i == 0:
                for j, n in enumerate(qn): capture(w_voff, 12+j, n, True)
                capture(wo_voffs, False)
            if i == 3:
                nonce_get()
                if lw == 0:
                    zs = uid("ZF")
                    e("s_cmp_eq_u32 s25, 0")
                    e(f"s_cbranch_scc0 {zs}")
                    e("s_lshl_b32 s3, s26, 2")
                    e(f"v_mov_b32 v22, {CNT_Z}")
                    e("v_mov_b32 v23, 1")
                    e("s_mov_b64 exec, 1")
                    e("buffer_store_dword v23, v22, s[44:47], s3 offen sc0 sc1")
                    e("s_mov_b64 exec, -1")
                    lab(zs)
            if i + LAA <= 6: step_hdr(81); isX(i+LAA); isW(i+LAA)
            if i == 4: flush()
            if i == 5:
                for k in range(4): isQ(k)
            if i == 6:
                for k in range(4, 7): isQ(k)
        zl = uid("ZL"); zd = uid("ZD"); z1 = uid("Z1")
        e("s_mov_b32 s78, 0")
        e(f"v_mov_b32 v3, {CNT_Z}")
        e("s_lshl_b32 s3, s26, 2")
        e("buffer_load_dword v19, v3, s[44:47], s3 offen sc0 sc1")
        vm.issue("z")
        wo_block(vm, 8 + lw, False)
        vm.wait("z")
        e(f"s_branch {z1}")
        lab(zl)
        e("buffer_load_dword v19, v3, s[44:47], s3 offen sc0 sc1")
        e("s_waitcnt vmcnt(0)")
        lab(z1)
        e("v_readfirstlane_b32 s79, v19")
        e("s_add_u32 s78, s78, 1")
        e("s_nop 2")
        e("s_cmp_eq_u32 s79, 1")
        e(f"s_cbranch_scc1 {zd}")
        e("s_sleep 1")
        e("s_cmp_gt_u32 s78, 0x40000")
        e(f"s_cbranch_scc0 {zl}")
        lab(zd)
        hh = lw >> 1; et = lw & 1
        e("v_and_b32 v5, 15, v2")
        e("v_lshrrev_b32 v6, 4, v2")
        e("v_lshlrev_b32 v3, 4, v2")
        e(f"v_add_u32 v4, {A_scr(lw)}, v3")
        e(f"s_mul_i32 s3, s26, {64*AS}")
        e(f"s_add_u32 s57, s3, 0x{ACC + lw*16*AS:x}")
        for r in range(1, 4): e(f"s_add_u32 s{50+r}, s57, {r*AS}")
        e(f"s_add_u32 s54, s57, {8*AS}")
        e(f"v_mul_u32_u24 v8, {4*AS}, v6")
        e("v_lshl_add_u32 v8, v5, 2, v8")
        e("v_cmp_gt_u32 s[66:67], 3, v6")
        e("v_cmp_le_u32 s[64:65], 14, v5")
        e("v_cmp_gt_u32 s[68:69], 2, v5")
        e("v_and_b32 v10, 7, v2")
        e("v_lshrrev_b32 v11, 3, v2")
        e(f"v_mul_u32_u24 v9, {AS}, v11")
        e("v_lshl_add_u32 v9, v10, 4, v9")
        e("v_cmp_eq_u32 s[4:5], 3, v10")
        e("v_cmp_eq_u32 s[6:7], 4, v10")
        e("s_or_b64 s[6:7], s[6:7], s[4:5]")
        if et:
            e("v_cmp_gt_u32 s[8:9], 5, v11")
            e("s_and_b64 s[10:11], s[8:9], s[6:7]")
            e("v_cmp_eq_u32 s[12:13], 4, v11")
        else:
            e("s_mov_b64 s[10:11], s[6:7]")
        e("v_and_b32 v12, 3, v10")
        e("v_lshlrev_b32 v12, 4, v12")
        e("v_lshrrev_b32 v10, 2, v10")
        e("v_lshl_add_u32 v12, v10, 3, v12")
        e(f"v_add_u32 v12, {KVB + hh*2048}, v12")
        for j in range(2):
            e(f"v_add_u32 v13, {16*et + 8*j}, v11")
            e("v_mul_u32_u24 v14, 37, v13")
            e("v_lshrrev_b32 v14, 8, v14")
            e("v_mul_u32_u24 v15, 7, v14")
            e("v_sub_u32 v15, v13, v15")
            e("v_lshrrev_b32 v16, 2, v15")
            e("v_and_b32 v15, 3, v15")
            e("v_lshl_add_u32 v15, v14, 2, v15")
            e("v_lshl_add_u32 v15, v16, 4, v15")
            if et and j:
                e("v_cndmask_b32 v15, v15, 19, s[12:13]")
            e(f"v_lshl_add_u32 v{20+j}, v15, 6, v12")
        vm.wait("q")
        e("s_barrier")
        stamp(vm, SO + 1)
        RD = 48
        for dt in range(2):
            for w in range(2):
                r = RD + dt*16 + w*4
                e(f"ds_read_b128 v[{r}:{r+3}], v4 offset:{w*2048 + dt*1024}")
        for dt in range(2):
            e(f"s_waitcnt lgkmcnt({2-2*dt})")
            b = RD + dt*16
            for r in range(4):
                e(f"v_add_f32 v{b+r}, v{b+r}, v{b+4+r}")
            for r in range(4):
                e(f"v_cndmask_b32 v{b+r}, v{b+r}, 1.0, s[{64+4*dt}:{65+4*dt}]")
        for dt in range(2):
            e(f"buffer_atomic_add_f32 v{RD+dt*16}, v8, s[40:43], s57 offen offset:{dt*64} sc1")
        if et: e("s_mov_b64 exec, s[66:67]")
        for r in range(1, 4):
            for dt in range(2):
                e(f"buffer_atomic_add_f32 v{RD+dt*16+r}, v8, s[40:43], s{50+r} offen offset:{dt*64} sc1")
        if et: e("s_mov_b64 exec, -1")
        stamp(vm, SO + 2)
        wo_block(vm, lw, False)
        wo_block(vm, lw + 4, False)
        wo_block(vm, lw + 12, False)
        PR = 80
        lp = uid("KVL"); dn = uid("KVD")
        e("s_mov_b32 s78, 0")
        lab(lp)
        for j in range(2):
            e(f"buffer_load_dwordx4 v[{PR+j*4}:{PR+j*4+3}], v9, s[40:43], s{54 if j else 57} offen sc0 sc1")
        e("s_waitcnt vmcnt(0)")
        e(f"v_cndmask_b32 v13, v{PR}, v{PR+2}, s[4:5]")
        e("v_cmp_eq_f32 vcc, 0x41800000, v13")
        e("s_and_b64 s[14:15], vcc, s[6:7]")
        e(f"v_cndmask_b32 v13, v{PR+4}, v{PR+6}, s[4:5]")
        e("v_cmp_eq_f32 vcc, 0x41800000, v13")
        e("s_and_b64 s[16:17], vcc, s[10:11]")
        e("s_xor_b64 s[14:15], s[14:15], s[6:7]")
        e("s_xor_b64 s[16:17], s[16:17], s[10:11]")
        e("s_or_b64 s[14:15], s[14:15], s[16:17]")
        e(f"s_cbranch_scc0 {dn}")
        e("s_add_u32 s78, s78, 1")
        e("s_cmp_gt_u32 s78, 0x40000")
        e(f"s_cbranch_scc0 {lp}")
        lab(dn)
        for j in range(2):
            r = PR + j*4
            e(f"v_cvt_pk_bf16_f32 v{r}, v{r}, v{r+1}")
            e(f"v_cvt_pk_bf16_f32 v{r+1}, v{r+2}, v{r+3}")
            if et and j: e("s_mov_b64 exec, s[8:9]")
            e(f"ds_write_b64 v{20+j}, v[{r}:{r+1}]")
        if et:
            e("s_mov_b64 exec, s[12:13]")
            for k in range(1, 4):
                e(f"ds_write_b64 v21, v[{PR+4}:{PR+5}] offset:{k*256}")
            e("s_mov_b64 exec, -1")
        e("s_waitcnt lgkmcnt(0)")
        e("s_barrier")
        stamp(vm, SO + 3)
    else:
        step_hdr(81); isX(0); isW(0)
        nonce_issue(vm)
        if W0: e("s_waitcnt vmcnt(0)")
        stamp(vm, 36)
        wmark(2)
        step_hdr(81); isX(1); isW(1)
        if LAB:
            step_hdr(81); isX(2); isW(2)
            e("s_mov_b32 s84, s81")
            if LAB == 2: step_hdr(81, x=False); isW(3)
        flg_init(lw)
        for i in range(7):
            if i == 0: stamp(vm, 37); wmark(3)
            vm.wait(f"c{i}")
            if i == 0: stamp(vm, 38); wmark(4)
            e("s_barrier")
            if i == 0: wmark(5); wdump(vm)
            if i == 0: capture(wo_voffs, True)
            if i == 1: nonce_get()
            if not LAB:
                if i <= 4: step_hdr(81); isX(i+2); isW(i+2)
            else:
                if 1 <= i <= 4: step_hdr(84, w=False); isX(i+2)
                if (LAB == 1 or i >= 1) and i <= 3: step_hdr(81, x=False); isW(i+3)
            if i == 4: flush()
            if i == 5:
                for h in [0, 1, 6, 7, 8, 9, 10, 11][2*lw:2*lw+2]: wo_block(vm, h, True)
            if i == 6:
                for h in [2, 3, 4, 5, 12, 13, 14, 15][2*lw:2*lw+2]: wo_block(vm, h, True)
        e(f"v_mov_b32 v3, {FLG}")
        e("v_mov_b32 v4, 1")
        if not BWM: e("s_barrier")
        e("s_waitcnt vmcnt(0)")
        e("s_mov_b64 exec, 1")
        e("ds_add_u32 v3, v4")
        e("s_mov_b64 exec, -1")
        stamp(vm, SO + 3)
    e(f"s_branch P2_{'B' if isB else 'A'}L")

NP = int(os.environ.get("NP", "64"))
NRES = 10
SLP = int(os.environ.get("SLP", "4"))
EARLY = os.environ.get("EARLY", "0") == "1"
FPOL = os.environ.get("FPOL", "nt")
TR = os.environ.get("TR") == "1"
def tr(k):
    if TR: e(f"s_memrealtime s[{4+2*k}:{5+2*k}]")
PST = int(os.environ.get("PST", "0"))
AC = 16; OF = 44; WV = 76; ST = 124
def oreg(j, hh): return OF + (j*2+hh)*4
def wreg(j, f):
    if f >= NRES: return "v", ST + (f-NRES)*4
    i = j*NRES + f
    return ("a", i*4) if i < 28 else ("v", WV + (i-28)*4)
def rdf(j, f):
    hh, nt = divmod(f, 7)
    k, r = wreg(j, f)
    o = (2*j+hh)*WB + nt*32
    e(f"ds_read_b64_tr_b16 {k}[{r}:{r+1}], v8 offset:{o}")
    e(f"ds_read_b64_tr_b16 {k}[{r+2}:{r+3}], v9 offset:{o}")
def rd_res(kind):
    for j in range(4):
        for f in range(NRES):
            if wreg(j, f)[0] in kind: rdf(j, f)
def wo_bases(wo):
    e("v_lshrrev_b32 v7, 4, v2")
    e("v_lshrrev_b32 v3, 1, v7")
    e("v_bfe_u32 v8, v2, 2, 2")
    e("v_mul_u32_u24 v9, 14, v3")
    e("v_and_b32 v4, 1, v7")
    e("v_lshl_add_u32 v6, v4, 2, v9")
    e("v_add_u32 v6, v6, v8")
    e("v_mul_u32_u24 v5, 3, v4")
    e("v_min_u32 v8, 2, v8")
    e("v_add3_u32 v9, v9, v5, v8")
    e("v_add_u32 v9, 8, v9")
    e("v_and_b32 v5, 3, v2")
    e("v_lshlrev_b32 v5, 3, v5")
    e(f"v_add_u32 v5, {wo}, v5")
    e(f"v_mul_u32_u24 v8, {RS}, v6")
    e("v_add_u32 v8, v8, v5")
    e(f"v_mul_u32_u24 v9, {RS}, v9")
    e("v_add_u32 v9, v9, v5")
def spin_flag(off, val, cmp_):
    lp = uid("SP")
    e(f"v_mov_b32 v3, {FLG}")
    lab(lp)
    e(f"ds_read_b32 v4, v3 offset:{off}")
    e("s_waitcnt lgkmcnt(0)")
    e("v_readfirstlane_b32 s3, v4")
    e("s_nop 3")
    e(f"s_cmp_{cmp_}_u32 s3, {val}")
    e(f"s_cbranch_scc0 {lp}")
def tcol(isB, grp, t):
    return (t >> 1)*56 + (t & 1)*(24 if (not isB and grp < 2) else 32)

def accA(grp, rt, t): return 32 + (rt*4+t)*4
def accA2(grp, t, rt): return 32 + (grp-1)*32 + (t*4+rt)*4
def accB(grp, t, r):
    if grp == 0: return 32 + r*8 + t*4
    if grp == 1: return 64 + r*8 + t*4
    return 104 + t*20 + r*4

def comp_setup(isB):
    wo_bases((B_wo if isB else A_wo)(0))
    e("v_lshrrev_b32 v3, 4, v2")
    e("v_bfe_u32 v4, v2, 2, 2")
    e("v_lshl_add_u32 v4, v3, 3, v4")
    e("v_and_b32 v5, 1, v3")
    e("v_lshlrev_b32 v5, 2, v5")
    e("v_add_u32 v6, v4, v5")
    e("v_xor_b32 v7, 4, v6")
    e(f"v_mul_u32_u24 v6, {RS}, v6")
    e(f"v_mul_u32_u24 v7, {RS}, v7")
    e("v_and_b32 v5, 3, v2")
    e("v_lshl_add_u32 v14, v5, 3, v6")
    e("v_lshl_add_u32 v15, v5, 3, v7")
    e("s_and_b32 s49, s48, 1")
    e("s_lshr_b32 s50, s48, 1")
    e("s_mul_i32 s3, s49, 56")
    e("v_add_u32 v12, s3, v14")
    e("v_add_u32 v13, s3, v15")
    e("v_and_b32 v4, 15, v2")
    e("v_lshrrev_b32 v5, 1, v4")
    e("v_xor_b32 v5, v5, v3")
    e("v_lshlrev_b32 v5, 4, v5")
    e("v_lshl_add_u32 v18, v4, 7, v5")
    if isB:
        e("s_lshl_b32 s3, s50, 13")
        e("v_add_u32 v16, s3, v18")
        e("v_xor_b32 v17, 64, v16")
    else:
        e("v_lshl_add_u32 v16, v1, 12, v18")
        e("v_xor_b32 v17, 64, v16")
        e("v_xor_b32 v18, 0x1000, v16")
        e("v_xor_b32 v19, 0x1000, v17")

def gemm(vm, isB):
    lg = LG()
    D = DB if isB else DA
    NB = 12 if isB else 6
    assert D <= (5 if isB else 4)
    def bf(j):
        r = (j % NB)*4 + (0 if isB else 96); k = "a" if isB else "v"
        return (f"{k}[{r}:{r+3}]", f"{k}[{r}:{r+1}]", f"{k}[{r+2}:{r+3}]")
    def xr(ch, kk, rt):
        st = (2*ch + kk) % 3
        if isB: r = 48 + st*20 + rt*4
        elif rt < 2: r = (ch*4 + kk*2 + rt)*4
        else:
            r = 120 + st*8 + (rt-2)*4
            return f"v[{r}:{r+3}]"
        return f"a[{r}:{r+3}]"
    items = []
    for ch in range(7):
        for kk in range(2):
            for grp in ((0, 1, 2) if isB else (1, 2)):
                for t in range(2): items.append((ch, kk, grp, t))
    def sync(ch):
        if ch == 6: vm.wait("pre" if PRE else "non")
        if ch == 0: wmark(4)
        e("s_barrier")
        if ch == 0: wmark(5); wdump(vm)
        stamp(vm, 12 + ch)
        if PST == ch + 2: prestore(vm, isB)
        pf_bar(vm, isB, ch)
        wb = 20 + (ch & 1)*2
        kvb = B_kv(ch) if isB else A_kv(ch)
        xb = B_x(ch) if isB else A_x(ch)
        e(f"v_add_u32 v24, {xb}, v16")
        e(f"v_add_u32 v25, {xb}, v17")
        if not isB:
            e(f"v_add_u32 v26, {xb}, v18")
            e(f"v_add_u32 v27, {xb}, v19")
        e(f"v_add_u32 v{wb}, {kvb}, v12")
        e(f"v_add_u32 v{wb+1}, {kvb}, v13")
    def xrd(ch, kk):
        if XNOR or XNOX: return
        if isB:
            for rt in (1, 2, 3, 4, 0):
                e(f"ds_read_b128 {xr(ch,kk,rt)}, v{24+kk} offset:{rt*2048}")
                lg.issue(f"x{ch}")
        else:
            for rt in range(4):
                e(f"ds_read_b128 {xr(ch,kk,rt)}, v{24+kk+(rt>>1)*2} offset:{(rt&1)*2048}")
                lg.issue(f"x{ch}")
    def rd(j):
        ch, kk, grp, t = items[j]
        if j == 0 or items[j-1][0] != ch: sync(ch)
        if j == 0 or items[j-1][:2] != (ch, kk): xrd(ch, kk)
        wb = 20 + (ch & 1)*2
        if grp == 0: off = KVS + kk*112 + t*32
        else: off = 32*kk*RS + (grp-1)*112 + t*(24 if (not isB and grp == 1) else 32)
        for hf in range(2):
            if XNOR or (XNOW and hf): continue
            e(f"ds_read_b64_tr_b16 {bf(j)[1+hf]}, v{wb+hf} offset:{off}")
            lg.issue(f"w{j}")
    for j in range(D): rd(j)
    for j, (ch, kk, grp, t) in enumerate(items):
        if j + D < len(items): rd(j + D)
        if not XNOR: lg.wait(f"w{j}")
        if XNOM and ch > 0: continue
        tr = isB and grp < 2
        first = (ch == 0 and kk == 0)
        for r in range(5 if (isB and grp) else 4):
            a = accB(grp, t, r) if isB else accA2(grp, t, r)
            x = xr(ch, kk, r + 1 if (isB and grp == 0) else r)
            cc = "0" if first else f"v[{a}:{a+3}]"
            if tr: e(f"v_mfma_f32_16x16x32_bf16 v[{a}:{a+3}], {bf(j)[0]}, {x}, {cc}")
            else: e(f"v_mfma_f32_16x16x32_bf16 v[{a}:{a+3}], {x}, {bf(j)[0]}, {cc}")

def pass2():
    lg = LG()
    D = 6; NB = 12
    items = [(ch, kk, t) for ch in range(7) for kk in range(2) for t in range(4)]
    e(f"v_add_u32 v20, {A_q(0)}, v14")
    e(f"v_add_u32 v21, {A_q(0)}, v15")
    def rd(j):
        ch, kk, t = items[j]
        r = 96 + (j % NB)*4
        off = A_q(ch) - A_q(0) + kk*112 + tcol(False, 0, t)
        for hf in range(2):
            e(f"ds_read_b64_tr_b16 v[{r+2*hf}:{r+2*hf+1}], v{20+hf} offset:{off}")
            lg.issue(f"w{j}")
    for j in range(D): rd(j)
    for j, (ch, kk, t) in enumerate(items):
        if j + D < len(items): rd(j + D)
        lg.wait(f"w{j}")
        r = 96 + (j % NB)*4
        for rt in range(2):
            a = accA(0, rt, t); x = (ch*4 + kk*2 + rt)*4
            cc = "0" if (ch == 0 and kk == 0) else f"v[{a}:{a+3}]"
            e(f"v_mfma_f32_16x16x32_bf16 v[{a}:{a+3}], v[{r}:{r+3}], a[{x}:{x+3}], {cc}")

def tile_addr(isB, r=14):
    if isB:
        e("s_lshl_b32 s3, s50, 13")
        e("s_lshl_b32 s27, s49, 10")
        e("s_add_u32 s3, s3, s27")
        e(f"v_lshlrev_b32 v{r}, 4, v2")
        e(f"v_add_u32 v{r}, s3, v{r}")
        e(f"v_add_u32 v{r+1}, 0x1000, v{r}")
    else:
        e(f"v_lshlrev_b32 v{r}, 12, v1")
        e(f"v_lshl_add_u32 v{r}, v2, 4, v{r}")
    e("s_lshl_b32 s27, s26, 14")
    e("s_add_u32 s63, s59, s27")
PLD = os.environ.get("PLD", "0") == "1"
def prestore(vm, isB):
    if PLD:
        e("v_lshlrev_b32 v10, 7, v2")
        e("v_lshl_add_u32 v10, v1, 12, v10")
        e("s_lshl_b32 s27, s26, 14")
        e("s_add_u32 s63, s59, s27")
        e("s_mov_b64 exec, 0xffffffff")
        e("buffer_load_dword v30, v10, s[40:43], s63 offen nt")
        e("s_mov_b64 exec, -1")
        vm.issue("pre")
        return
    tile_addr(isB, 10)
    for r in range(4): e(f"v_mov_b32 v{4+r}, 0")
    for (va, off, n) in tile_regs(isB):
        e(f"buffer_store_dwordx4 v[4:7], v{va-4}, s[40:43], s63 offen offset:{off}")
        vm.issue("pre")
def tile_regs(isB):
    if isB: return [(14 + (rt >> 1), (rt & 1)*2048, 16 + rt*4) for rt in range(4)]
    return [(14, rt*2048 + hh*1024, 16 + (hh*2+rt)*4) for hh in range(2) for rt in range(2)]
def tile_store(isB, q, vm=None):
    for (va, off, n) in tile_regs(isB):
        if q: e(f"buffer_store_dwordx4 v[{n}:{n+3}], v{va}, s[40:43], s51 offen offset:{off} sc0 sc1")
        else: e(f"buffer_store_dwordx4 v[{n}:{n+3}], v{va}, s[40:43], s63 offen offset:{off} {TPOL}")
        if vm: vm.issue("Q")

def epi_A(vm):
    c("---- A epilogue ----")
    e("v_and_b32 v5, 15, v2")
    e("v_lshrrev_b32 v6, 4, v2")
    e("v_cmp_le_u32 s[64:65], 12, v5")
    e("v_mov_b32 v7, 0x3f803f80")
    e(f"s_mul_i32 s3, s49, {2*WB}")
    e("s_lshl_b32 s27, s50, 11")
    e("s_add_u32 s3, s3, s27")
    e(f"s_add_u32 s3, s3, {A_scr(0)}")
    e("v_lshlrev_b32 v3, 4, v2")
    e("v_add_u32 v4, s3, v3")
    e("s_nop 7")
    PK = 96; VV = 112; TT = 128; KP = 32
    for t in range(2):
        for pr in range(2):
            sq = []
            for r2 in range(2):
                a = accA2(1, t, pr*2 + r2)
                d = PK + (t*2+pr)*4 + r2*2
                sq.append(phi_pair(d, a, a+1, TT + r2*4))
                sq.append(phi_pair(d + 1, a+2, a+3, TT + r2*4 + 2))
            ilv(sq)
    for t in range(2):
        for rt in range(4):
            a = accA2(2, t, rt)
            d = VV + t*8 + rt*2
            e(f"v_cvt_pk_bf16_f32 v{d}, v{a}, v{a+1}")
            e(f"v_cvt_pk_bf16_f32 v{d+1}, v{a+2}, v{a+3}")
            if t & 1:
                e(f"v_cndmask_b32 v{d}, v{d}, v7, s[64:65]")
                e(f"v_cndmask_b32 v{d+1}, v{d+1}, v7, s[64:65]")
    e("s_nop 1")
    for pr in range(2):
        for et in range(2):
            for dt in range(2):
                d = KP + (et*2 + dt)*4
                va = VV + (et*2+pr)*4; pk = PK + (dt*2+pr)*4
                cc = "0" if pr == 0 else f"v[{d}:{d+3}]"
                e(f"v_mfma_f32_16x16x32_bf16 v[{d}:{d+3}], v[{va}:{va+3}], v[{pk}:{pk+3}], {cc}")
    e("s_nop 7")
    for i in range(4):
        e("s_nop 3")
        e(f"ds_write_b128 v4, v[{KP+i*4}:{KP+i*4+3}] offset:{(i>>1)*WB + (i&1)*1024}")
    e("s_waitcnt lgkmcnt(0)")
    e("s_barrier")
    stamp(vm, 4)
    pass2()
    stamp(vm, 7)
    nonce_get()
    QF = 64
    e("v_cmp_eq_u32 s[10:11], 3, v6")
    e("v_cmp_eq_u32 s[12:13], 0, v6")
    e("v_lshlrev_b32 v10, 6, v5")
    e("v_lshl_add_u32 v10, v6, 4, v10")
    e(f"v_add_u32 v10, {KVB}, v10")
    tile_addr(False)
    e("v_mov_b32 v11, 0xffff")
    e("s_nop 3")
    for t in range(4):
        sq = []
        for rt in range(2):
            a = accA(0, rt, t)
            d = QF + (rt*2 + (t >> 1))*4 + (t & 1)*2
            s0 = phi_pair(d, a, a+1, TT + rt*4)
            s1 = phi_pair(d+1, a+2, a+3, TT + rt*4 + 2)
            if t & 1: s0.append(f"v_cndmask_b32 v{d}, v{d}, 0, s[12:13]")
            else: s1.append(f"v_cndmask_b32 v{d+1}, v{d+1}, 0, s[10:11]")
            sq += [s0, s1]
        ilv(sq)
    e("s_barrier")
    stamp(vm, 10)
    R = 80
    for hh in range(2):
        for f in range(2):
            r = R + (hh*2+f)*4
            e(f"ds_read_b128 v[{r}:{r+3}], v10 offset:{hh*2048 + f*1024}")
    NR = 96
    for hh in range(2):
        e(f"s_waitcnt lgkmcnt({2 - 2*hh})")
        for rt in range(2):
            n = NR + (hh*2+rt)*8
            q = QF + (rt*2+hh)*4
            for f in (1, 0):
                r = R + (hh*2+f)*4
                e(f"v_mfma_f32_16x16x32_bf16 v[{n+f*4}:{n+f*4+3}], v[{r}:{r+3}], v[{q}:{q+3}], 0")
    if EARLY: rd_res("a")
    e("s_nop 7")
    sq = []; regs = []
    for hh in range(2):
        for rt in range(2):
            n = NR + (hh*2+rt)*8
            t = TT + (hh*2+rt)*2
            o = [f"v_add_f32 v{t}, 0x{EPS:x}, v{n+7}",
                 f"v_rcp_f32 v{t}, v{t}",
                 f"v_mov_b32 v{t+1}, v{t}"]
            for q in range(3):
                o.append(f"v_pk_mul_f32 v[{n+2*q}:{n+2*q+1}], v[{n+2*q}:{n+2*q+1}], v[{t}:{t+1}]")
            o.append(f"v_mul_f32 v{n+6}, v{n+6}, v{t}")
            T = 16 + (hh*2+rt)*4
            for q in range(3):
                o.append(f"v_cvt_pk_bf16_f32 v{T+q}, v{n+2*q}, v{n+2*q+1}")
            o.append(f"v_cvt_pk_bf16_f32 v{T+3}, v{n+6}, v{n+6}")
            o.append(f"v_and_or_b32 v{T+3}, v{T+3}, v11, s61")
            sq.append(o)
    ilv(sq)
    tile_store(False, False)
    stamp(vm, 5, 4)

def epi_B(vm):
    c("---- B epilogue ----")
    e("v_and_b32 v5, 15, v2")
    e("v_lshrrev_b32 v6, 4, v2")
    e("v_cmp_gt_u32 s[64:65], 3, v6")
    nonce_get()
    e("v_and_b32 v3, 1, v5")
    e("v_cmp_eq_u32 s[4:5], 1, v3")
    e("v_mov_b32 v10, 0xffff")
    e("v_mov_b32 v11, 0xffff0000")
    e("v_cndmask_b32 v12, v10, v11, s[4:5]")
    e("v_lshl_add_u32 v11, v6, 2, v3")
    e("v_sub_u32 v11, v11, v5")
    def KF(blk): return 64 + blk*8
    def QF(rt): return 32 + rt*8
    def VB(et): return 104 + et*20
    def cvt4(b):
        for q in range(4): e(f"v_cvt_pk_bf16_f32 v{b+q}, v{b+2*q}, v{b+2*q+1}")
    def C0(cb): return 32 + cb*8 + 4
    def C1(cb): return 64 + cb*8 + 4
    for rt in range(4):
        b = QF(rt)
        cvt4(b)
        e(f"v_cndmask_b32 v{b+2}, 0, v{b+2}, s[64:65]")
        e(f"v_cndmask_b32 v{b+3}, 0, v{b+3}, s[64:65]")
    for blk in range(5): cvt4(KF(blk))
    e("s_nop 1")
    for rt in range(4):
        q = QF(rt)
        for ti in range(2):
            k = KF(rt + ti)
            d = C0(rt) if ti == 0 else C1(rt)
            e(f"v_mfma_f32_16x16x32_bf16 v[{d}:{d+3}], v[{k}:{k+3}], v[{q}:{q+3}], 0")
    if not BWM: e("s_barrier")
    for et in range(2):
        b = VB(et)
        for blk in range(5):
            e(f"v_cvt_pk_bf16_f32 v{b+2*blk}, v{b+4*blk}, v{b+4*blk+1}")
            e(f"v_cvt_pk_bf16_f32 v{b+2*blk+1}, v{b+4*blk+2}, v{b+4*blk+3}")
    for k in range(4):
        addk = 2*k if k < 2 else 16 + 2*(k-2)
        e(f"v_add_u32 v13, {addk}, v11")
        e(f"v_cmp_le_i32 s[{6+2*k}:{7+2*k}], 2, v13")
        e(f"v_cmp_ge_i32 vcc, 16, v13")
        e(f"s_and_b64 s[{6+2*k}:{7+2*k}], s[{6+2*k}:{7+2*k}], vcc")
    e("s_or_b32 s3, s25, s50")
    e("s_cmp_eq_u32 s3, 0")
    e("s_cselect_b64 s[14:15], 0, -1")
    e("s_and_b64 s[16:17], s[6:7], s[14:15]")
    e("s_and_b64 s[18:19], s[8:9], s[14:15]")
    e("v_mov_b32 v13, 0xce6e6b28")
    e(f"s_mov_b32 s20, 0x{SC2:x}")
    tile_addr(True)
    e("v_cmp_eq_u32 s[68:69], 3, v6")
    def seq(cb):
        lgr = [C0(cb), C0(cb)+2, C1(cb), C1(cb)+2]
        m = C1(cb)+1; m2 = C1(cb)+3
        o = []
        for k in range(4):
            o.append(f"v_cndmask_b32 v{lgr[k]}, v{lgr[k]}, v{lgr[k]+1}, s[4:5]")
        for k in range(4):
            ms = (16 + 2*k) if (cb == 0 and k < 2) else (6 + 2*k)
            o.append(f"v_cndmask_b32 v{lgr[k]}, v13, v{lgr[k]}, s[{ms}:{ms+1}]")
        o.append(f"v_max3_f32 v{m}, v{lgr[0]}, v{lgr[1]}, v{lgr[2]}")
        o.append(f"v_max_f32 v{m}, v{m}, v{lgr[3]}")
        o.append(f"v_mov_b32 v{m2}, v{m}")
        o.append(f"v_permlane16_swap_b32 v{m}, v{m2}")
        o.append(f"v_max_f32 v{m}, v{m}, v{m2}")
        o.append(f"v_mov_b32 v{m2}, v{m}")
        o.append(f"v_permlane32_swap_b32 v{m}, v{m2}")
        o.append(f"v_max_f32 v{m}, v{m}, v{m2}")
        o.append(f"v_mul_f32 v{m}, 0x{SC2 ^ 0x80000000:x}, v{m}")
        for k in range(4):
            o.append(f"v_fma_f32 v{lgr[k]}, v{lgr[k]}, s20, v{m}")
        for k in range(4):
            o.append(f"v_exp_f32 v{lgr[k]}, v{lgr[k]}")
        o.append(f"v_add_f32 v{m}, v{lgr[0]}, v{lgr[1]}")
        o.append(f"v_add_f32 v{m2}, v{lgr[2]}, v{lgr[3]}")
        o.append(f"v_add_f32 v{m}, v{m}, v{m2}")
        o.append(f"v_mov_b32 v{m2}, v{m}")
        o.append(f"v_permlane16_swap_b32 v{m}, v{m2}")
        o.append(f"v_add_f32 v{m}, v{m}, v{m2}")
        o.append(f"v_mov_b32 v{m2}, v{m}")
        o.append(f"v_permlane32_swap_b32 v{m}, v{m2}")
        o.append(f"v_add_f32 v{m}, v{m}, v{m2}")
        o.append(f"v_rcp_f32 v{m}, v{m}")
        for k in range(4):
            o.append(f"v_mul_f32 v{lgr[k]}, v{lgr[k]}, v{m}")
            o.append(f"v_cvt_pk_bf16_f32 v{C0(cb)+k}, v{lgr[k]}, v{lgr[k]}")
            o.append(f"v_and_b32 v{C0(cb)+k}, v{C0(cb)+k}, v12")
        return o
    ilv([seq(cb) for cb in range(4)])
    if EARLY:
        spin_flag(0, 4, "eq")
        rd_res("a")
    e("s_nop 1")
    for rt in range(4):
        for et in (1, 0):
            o = QF(rt) if et == 0 else C1(rt)
            v = VB(et) + 2*rt
            e(f"v_mfma_f32_16x16x32_bf16 v[{o}:{o+3}], v[{v}:{v+3}], v[{C0(rt)}:{C0(rt)+3}], 0")
    e("s_nop 7")
    sq = []; regs = []
    for rt in range(4):
        o0 = QF(rt); o1 = C1(rt); t = C0(rt)
        T = 16 + rt*4
        o = [f"v_mov_b32 v{t}, v{o1+3}",
             f"v_cvt_pk_bf16_f32 v{T}, v{o0}, v{o0+1}",
             f"v_permlane32_swap_b32 v{t+1}, v{t}",
             f"v_permlane16_swap_b32 v{t+2}, v{o1+3}",
             f"v_cvt_pk_bf16_f32 v{T+1}, v{o0+2}, v{o0+3}",
             f"v_permlane16_swap_b32 v{t+3}, v{t+1}",
             f"v_cndmask_b32 v{o1+2}, v{o1+2}, v{t+2}, s[68:69]",
             f"v_cndmask_b32 v{o1+1}, v{o1+1}, v{t+1}, s[68:69]",
             f"v_cndmask_b32 v{o1}, v{o1}, v{t+3}, s[68:69]",
             f"v_cvt_pk_bf16_f32 v{T+3}, v{o1+2}, v{o1+2}",
             f"v_cvt_pk_bf16_f32 v{T+2}, v{o1}, v{o1+1}",
             f"v_and_or_b32 v{T+3}, v{T+3}, v10, s61"]
        sq.append(o)
    ilv(sq)
    tile_store(True, False)
    if BWM: e("s_barrier")
    stamp(vm, 5, 4)

def p2(isB, isC):
    lab(f"P2_{'B' if isB else 'A'}{'C' if isC else 'L'}")
    c("---- P2: wave = (16 rows, K half) x 112 cols ----")
    kh = 0 if isC else 1
    wo = (B_wo if isB else A_wo)(8*kh)
    def ld(j, pol=None):
        for hh in range(2):
            r = oreg(j, hh)
            e(f"buffer_load_dwordx4 v[{r}:{r+3}], v6, s[40:43], s{64+j} offen offset:{hh*1024} {PPOL if pol is None else pol}")
    tr(0)
    if isC:
        e(f"v_mov_b32 v3, {FLG}")
        e("v_mov_b32 v4, 1")
        e("s_mov_b64 exec, 1")
        e("ds_add_u32 v3, v4 offset:4")
        e("s_mov_b64 exec, -1")
    e("s_and_b32 s49, s48, 3")
    e("s_and_b32 s50, s26, 1")
    e("s_lshl_b32 s3, s50, 13")
    e("s_lshl_b32 s27, s49, 11")
    e("s_add_u32 s3, s3, s27")
    e("s_add_u32 s64, s59, s3")
    if kh: e("s_add_u32 s64, s64, 0x10000")
    for j in range(1, 4): e(f"s_add_u32 s{64+j}, s64, {j*16384}")
    e("v_lshlrev_b32 v6, 4, v2")
    if isC:
        for j in range(4): ld(j, FPOL)
    if not isC:
        wo_bases(wo)
        e("v_lshlrev_b32 v6, 4, v2")
    if isB and not (isC and EARLY): spin_flag(0, 4, "eq")
    rd_res("v" if (isC and EARLY) else "av")
    e("v_lshrrev_b32 v7, 4, v2")
    e("v_lshrrev_b32 v11, 1, v7")
    e("v_and_b32 v12, 1, v7")
    e("v_and_b32 v5, 15, v2")
    e("s_lshl_b32 s3, s25, 7")
    e("s_lshl_b32 s27, s50, 6")
    e("s_add_u32 s3, s3, s27")
    e("s_lshl_b32 s27, s49, 4")
    e("s_add_u32 s3, s3, s27")
    e("v_add_u32 v5, s3, v5")
    e("v_mul_u32_u24 v10, 1792, v5")
    e("s_mul_i32 s3, s24, 896")
    e("s_add_u32 s3, s3, s55")
    e("v_add_u32 v10, s3, v10")
    if kh: e("v_lshl_add_u32 v14, v7, 3, v10")
    e("v_lshl_add_u32 v10, v12, 5, v10")
    e("v_lshl_add_u32 v10, v11, 4, v10")
    e("s_mul_i32 s3, s49, 7168")
    e(f"s_add_u32 s3, s3, {RED_B if isB else RED_A}")
    e("v_add_u32 v12, s3, v6")
    for r in range(28): e(f"v_mov_b32 v{AC+r}, 0")
    e("s_mov_b32 s78, 0")
    e("s_mov_b32 s79, 15")
    e("s_mov_b32 s68, 0x10000")
    if not isC:
        e("s_waitcnt lgkmcnt(0)")
        if isB and BWM: e("s_barrier")
        else: spin_flag(4, 1, "ge")
        for j in range(4): ld(j, FPOL)
    e("s_waitcnt lgkmcnt(0)")
    stamp(None, 6 if isC else 39, 4)
    tr(1)
    top = uid("PT"); done = uid("PDN"); fb = uid("PFB")
    lab(top)
    for j in range(4):
        nx = uid("NX"); dm = uid("DM"); bad = uid("BD")
        e("s_waitcnt vmcnt(6)")
        e(f"s_bitcmp1_b32 s79, {j}")
        e(f"s_cbranch_scc0 {dm}")
        r0 = oreg(j, 0) + 3; r1 = oreg(j, 1) + 3
        e(f"v_xor_b32 v{r0}, s61, v{r0}")
        e(f"v_xor_b32 v{r1}, s61, v{r1}")
        e(f"v_or_b32 v13, v{r0}, v{r1}")
        e("v_cmp_gt_u32 vcc, s68, v13")
        e("s_cmp_eq_u64 vcc, -1")
        e(f"s_cbranch_scc0 {bad}")
        tr(2 + j)
        for f in range(NRES, 14): rdf(j, f)
        e(f"buffer_load_dword v15, off, s[40:43], s{64+j}")
        e(f"buffer_load_dword v15, off, s[40:43], s{64+j}")
        e(f"s_bitset0_b32 s79, {j}")
        for f in range(14):
            hh, nt = divmod(f, 7)
            k, wr = wreg(j, f)
            a = AC + nt*4; r = oreg(j, hh)
            if f == NRES: e("s_waitcnt lgkmcnt(0)")
            e(f"v_mfma_f32_16x16x32_bf16 v[{a}:{a+3}], {k}[{wr}:{wr+3}], v[{r}:{r+3}], v[{a}:{a+3}]")
        e("s_cmp_eq_u32 s79, 0")
        e(f"s_cbranch_scc1 {done}")
        e(f"s_branch {nx}")
        lab(bad)
        if SLP: e(f"s_sleep {SLP}")
        ld(j)
        e(f"s_branch {nx}")
        lab(dm)
        e(f"buffer_load_dword v15, off, s[40:43], s{64+j}")
        e(f"buffer_load_dword v15, off, s[40:43], s{64+j}")
        lab(nx)
    e("s_add_u32 s78, s78, 1")
    e(f"s_cmp_lt_u32 s78, {NP}")
    e(f"s_cbranch_scc1 {top}")
    nc = uid("NC"); cp = uid("CP")
    e("s_waitcnt vmcnt(0)")
    e("s_lshl_b32 s57, s24, 4")
    e("s_add_u32 s57, s57, s25")
    e("s_lshl_b32 s57, s57, 7")
    e(f"s_add_u32 s57, s57, 0x{EPO:x}")
    e(f"s_cmp_eq_u32 s78, {NP}")
    e(f"s_cbranch_scc0 {nc}")
    e("s_lshl_b32 s3, s26, 14")
    e("s_add_u32 s62, s59, s3")
    e("s_mov_b32 s69, 0")
    lab(cp)
    for half in range(2):
        rl = uid("RL")
        lab(rl)
        e("v_mov_b32 v13, 0")
        for b in range(8):
            r = OF + b*4
            e(f"s_add_u32 s3, s62, {(half*8+b)*1024}")
            e(f"buffer_load_dwordx4 v[{r}:{r+3}], v6, s[40:43], s3 offen sc0 sc1")
        e("s_waitcnt vmcnt(0)")
        for b in range(8):
            e(f"v_xor_b32 v15, s61, v{OF+b*4+3}")
            e("v_or_b32 v13, v13, v15")
        e("v_cmp_gt_u32 vcc, 0x10000, v13")
        e("s_add_u32 s69, s69, 1")
        e("s_cmp_gt_u32 s69, 0x40000")
        e(f"s_cbranch_scc1 {done}")
        e("s_cmp_eq_u64 vcc, -1")
        e(f"s_cbranch_scc0 {rl}")
        for b in range(8):
            r = OF + b*4
            e(f"s_add_u32 s3, s62, 0x{TLQ + (half*8+b)*1024:x}")
            e(f"buffer_store_dwordx4 v[{r}:{r+3}], v6, s[40:43], s3 offen sc0 sc1")
        e("s_waitcnt vmcnt(0)")
    e("s_lshl_b32 s3, s26, 2")
    e("s_add_u32 s3, s3, s57")
    e("v_mov_b32 v15, s93")
    e("buffer_store_dword v15, off, s[40:43], s3 sc0 sc1")
    e("s_mov_b32 s68, 0x100000")
    lab(nc)
    e("v_and_b32 v15, 3, v2")
    e("v_lshlrev_b32 v15, 2, v15")
    e(f"buffer_load_dword v13, v15, s[40:43], s57 offen offset:{kh*16} sc0 sc1")
    e("s_waitcnt vmcnt(0)")
    e("v_cmp_eq_u32 vcc, s93, v13")
    for j in range(4):
        e(f"s_or_b32 s3, s{64+j}, 0x{TLQ:x}")
        e(f"s_bitcmp1_b32 vcc_lo, {j}")
        e(f"s_cselect_b32 s{64+j}, s3, s{64+j}")
    for j in range(4): ld(j, "sc0 sc1")
    e("s_cmp_lt_u32 s78, 0x40000")
    e(f"s_cbranch_scc1 {top}")
    lab(done)
    tr(6)
    if STAMP and (SIDS is None or 11 in SIDS):
        stamp(None, 11 if isC else 40, 4)
        e("v_mov_b32 v4, s78")
        e("s_lshl_b32 s74, s2, 8")
        e(f"s_add_u32 s74, s74, {STB + (20+kh)*4}")
        e("v_mov_b32 v5, 0")
        e("buffer_store_dword v4, v5, s[40:43], s74 offen")
    e("s_nop 7")
    e("s_nop 7")
    snd = range(4, 7) if isC else range(0, 4)
    kp = range(0, 4) if isC else range(4, 7)
    for t in snd:
        e(f"ds_write_b128 v12, v[{AC+t*4}:{AC+t*4+3}] offset:{t*1024}")
    e("s_waitcnt lgkmcnt(0)")
    e("s_barrier")
    tr(7)
    RR = 76
    for t in kp:
        e(f"ds_read_b128 v[{RR+t*4}:{RR+t*4+3}], v12 offset:{t*1024}")
    if isC:
        sk = uid("NS")
        e("s_or_b32 s3, s26, s48")
        e("s_cmp_eq_u32 s3, 0")
        e(f"s_cbranch_scc0 {sk}")
        e("v_mov_b32 v13, s93")
        e("buffer_store_dword v13, off, s[40:43], s60 sc0 sc1")
        lab(sk)
    D = 108
    for n, t in enumerate(kp):
        e(f"s_waitcnt lgkmcnt({len(kp)-1-n})")
        a = AC + t*4; r = RR + t*4
        e(f"v_pk_add_f32 v[{a}:{a+1}], v[{a}:{a+1}], v[{r}:{r+1}]")
        e(f"v_pk_add_f32 v[{a+2}:{a+3}], v[{a+2}:{a+3}], v[{r+2}:{r+3}]")
        d = D + n*2
        e(f"v_cvt_pk_bf16_f32 v{d}, v{a}, v{a+1}")
        e(f"v_cvt_pk_bf16_f32 v{d+1}, v{a+2}, v{a+3}")
    e("s_nop 1")
    for pr in range(2 if isC else 1):
        d = D + pr*4
        e(f"v_permlane16_swap_b32 v{d}, v{d+2}")
        e(f"v_permlane16_swap_b32 v{d+1}, v{d+3}")
    e("s_nop 1")
    if isC:
        e(f"buffer_store_dwordx4 v[{D}:{D+3}], v10, s[88:91], 0 offen " + OPOL)
        e(f"buffer_store_dwordx4 v[{D+4}:{D+7}], v10, s[88:91], 0 offen offset:64 " + OPOL)
    else:
        e(f"buffer_store_dwordx4 v[{D}:{D+3}], v10, s[88:91], 0 offen offset:128 " + OPOL)
        e(f"buffer_store_dwordx2 v[{D+4}:{D+5}], v14, s[88:91], 0 offen offset:192 " + OPOL)
    stamp(None, 9 if isC else 41, 4)
    if TR:
        tr(8)
        e("s_waitcnt lgkmcnt(0)")
        e("s_lshl_b32 s74, s2, 9")
        e("s_lshl_b32 s3, s48, 6")
        e("s_add_u32 s74, s74, s3")
        e("s_add_u32 s74, s74, 0x910000")
        e("s_mov_b64 exec, 1")
        for k in range(9):
            e(f"v_mov_b32 v4, s{4+2*k}")
            e(f"buffer_store_dword v4, off, s[40:43], s74 offset:{k*4}")
        e("v_mov_b32 v4, s78")
        e(f"buffer_store_dword v4, off, s[40:43], s74 offset:36")
        e("s_mov_b64 exec, -1")
    if not isC: stamp(None, 2, 4)
    e("s_endpgm")

PF = os.environ.get("PF", "1") == "1"
PFT0 = int(os.environ.get("PFT0", "4"))
PFC = os.environ.get("PFC", "0") == "1"
PFD = int(os.environ.get("PFD", "6"))
PF2 = os.environ.get("PF2", "0")
PFW = [int(x) for x in os.environ.get("PFW", "5,2").split(",")]
PFQ = int(os.environ.get("PFQ", "-1"))
PFPOL = os.environ.get("PFPOL", "")
def pf_setup(isB):
    NW = 42 if isB else 28
    e("s_lshl_b32 s3, s23, 2")
    e("s_add_u32 s3, s3, s48")
    e("s_and_b32 s27, s3, 63")
    e("s_lshr_b32 s80, s3, 6")
    e("s_lshl_b32 s3, s3, 6")
    e("v_add_u32 v4, s3, v2")
    e("v_min_u32 v4, 6271, v4")
    e("v_lshlrev_b32 v11, 6, v4")
    if not isB:
        e("v_mul_u32_u24 v5, 9363, v4")
        e("v_lshrrev_b32 v5, 17, v5")
        e("v_mul_u32_u24 v5, 1792, v5")
        e("v_add_u32 v4, v5, v11")
    e("s_lshl_b32 s3, s27, 6")
    e("v_add_u32 v5, s3, v2")
    if isB:
        e("v_lshlrev_b32 v10, 6, v5")
    else:
        e("v_mul_u32_u24 v6, 2341, v5")
        e("v_lshrrev_b32 v6, 16, v6")
        e("v_mul_u32_u24 v6, 896, v6")
        e("v_lshl_add_u32 v10, v5, 6, v6")
        e("v_add_u32 v10, 896, v10")
    e(f"v_subrev_u32 v5, {NW*64}, v5")
    e("v_min_u32 v5, 1023, v5")
    e("v_lshrrev_b32 v6, 1, v5")
    e("s_and_b32 s3, s22, 3")
    e("s_lshl_b32 s3, s3, 9")
    e("v_add_u32 v6, s3, v6")
    e("v_mul_u32_u24 v6, 896, v6")
    e("v_and_b32 v5, 1, v5")
    e("v_lshl_add_u32 v6, v5, 6, v6")
    e(f"s_cmp_lt_u32 s27, {NW}")
    e("s_cselect_b64 vcc, -1, 0")
    e("v_cndmask_b32 v10, v6, v10, vcc")
def pf_setup2(isB):
    NW = 42 if isB else 28
    e(f"s_cmp_lt_u32 s27, {NW}")
    e("s_cselect_b32 s4, s32, s28")
    e("s_cselect_b32 s5, s33, s29")
    e("s_cselect_b32 s6, s34, s30")
    e("s_mov_b32 s7, 0x20000")
    e("s_cselect_b32 s12, 1344, 1")
    e("s_lshl_b32 s12, s12, 7")
    e("s_add_u32 s3, s80, 2")
    e("s_mul_i32 s13, s12, s3")
    e("s_mul_i32 s15, s12, 6")
    e("s_lshl_b32 s12, s12, 1")
def pf_step(vm):
    e(f"buffer_load_dword v30, v10, s[4:7], s13 offen {PFPOL}")
    vm.issue("pf")
    e("s_add_u32 s13, s13, s12")
    e("s_min_u32 s13, s13, s15")
def slp(n):
    while n > 0:
        e(f"s_sleep {min(n, 127)}"); n -= 127
def pf_pre(vm):
    slp(PFT0)
    sk = uid("PFS")
    e("s_cmp_eq_u32 s80, 0")
    e(f"s_cbranch_scc1 {sk}")
    slp(PFD)
    lab(sk)
    pf_step(vm)
    slp(2*PFD)
    pf_step(vm)
    if PF2 == "t":
        slp(2*PFD)
        pf_step(vm)
PFA = os.environ.get("PFA", "0") == "1"
PFAM = int(os.environ.get("PFAM", "3"))
PFNQ = os.environ.get("PFNQ", "1") == "1"
PFW4S = [int(x) for x in os.environ.get("PFW4", "4,4").split(",")]
if len(PFW4S) == 1: PFW4S = PFW4S*2
PFR = int(os.environ.get("PFR", "0"))
PFRO = int(os.environ.get("PFRO", "0"))
PFG = int(os.environ.get("PFG", "128"))
PFN = int(os.environ.get("PFN", "7"))
LDL = int(os.environ.get("LDL", "0"))
def pfa_setup(isB):
    e("s_lshl_b32 s3, s23, 6")
    e("v_add_u32 v5, s3, v2")
    e("v_lshlrev_b32 v10, 7, v5")
    if not isB and PFNQ:
        e("v_min_u32 v6, 895, v5")
        e("v_mul_u32_u24 v7, 4682, v6")
        e("v_lshrrev_b32 v7, 16, v7")
        e("v_mul_u32_u24 v7, 896, v7")
        e("v_lshl_add_u32 v10, v6, 7, v7")
        e("v_add_u32 v10, 896, v10")
    e(f"v_subrev_u32 v5, {1344+16}, v5")
    e("v_min_i32 v5, 511, v5")
    e("s_and_b32 s3, s22, 3")
    e("s_lshl_b32 s3, s3, 9")
    e("v_add_u32 v5, s3, v5")
    e("v_max_i32 v5, 0, v5")
    e("v_mul_u32_u24 v5, 896, v5")
    e("s_cmp_lt_u32 s23, 21")
    e("s_cselect_b64 vcc, -1, 0")
    e("v_cndmask_b32 v10, v5, v10, vcc")
    e("s_add_u32 s80, s81, s48")
def pfa_issue(vm, isB):
    PFW4 = PFW4S[isB]
    e("s_cmp_lt_u32 s23, 21")
    e("s_cselect_b32 s4, s32, s28")
    e("s_cselect_b32 s5, s33, s29")
    e("s_cselect_b32 s6, s34, s30")
    e("s_mov_b32 s7, 0x20000")
    e("s_cselect_b32 s12, 1344, 1")
    e("s_lshl_b32 s12, s12, 7")
    sk = uid("PFK")
    if PFW4 < 4:
        e(f"s_cmp_ge_u32 s48, {PFW4}")
        e(f"s_cbranch_scc1 {sk}")
    for k in range(2):
        if k == 1:
            if PFN <= 4: break
            e("s_add_u32 s80, s80, 4")
        e("s_cmp_ge_u32 s80, 7")
        e("s_cselect_b32 s3, 7, 0")
        e("s_sub_u32 s80, s80, s3")
        e("s_mul_i32 s13, s12, s80")
        e(f"buffer_load_dword v30, v10, s[4:7], s13 offen {PFPOL}")
        vm.issue("pf")
        if PFG == 64:
            e(f"buffer_load_dword v30, v10, s[4:7], s13 offen offset:64 {PFPOL}")
            vm.issue("pf")
    lab(sk)
CPF = int(os.environ.get("CPF", "0"))
def code_pf(vm):
    lb = uid("CPC")
    e("s_getpc_b64 s[8:9]")
    lab(lb)
    e(f"s_sub_u32 s8, s8, {lb}-{NAME}_kernel")
    e("s_subb_u32 s9, s9, 0")
    e("s_and_b32 s9, s9, 0xffff")
    e(f"s_mov_b32 s10, K_END-{NAME}_kernel")
    e("s_mov_b32 s11, 0x20000")
    e("s_lshl_b32 s3, s23, 2")
    e("s_add_u32 s3, s3, s48")
    e("s_lshl_b32 s3, s3, 10")
    e("v_lshlrev_b32 v5, 6, v2")
    e("s_mov_b64 exec, 0xffff")
    e("buffer_load_dword v30, v5, s[8:11], s3 offen")
    e("s_mov_b64 exec, -1")
    vm.issue("pf")
def pf_bar(vm, isB, ch):
    k = PFW4S[isB] + ch - PFRO
    if PFA and (PFAM >> isB) & 1 and (PFR >> isB) & 1 and PFW4S[isB] <= k < 7:
        sk = uid("PFR")
        e(f"s_cmp_eq_u32 s48, {k % 4}")
        e(f"s_cbranch_scc0 {sk}")
        e(f"s_add_u32 s80, s81, {k}")
        e("s_cmp_ge_u32 s80, 7")
        e("s_cselect_b32 s3, 7, 0")
        e("s_sub_u32 s80, s80, s3")
        e("s_mul_i32 s13, s12, s80")
        e(f"buffer_load_dword v30, v10, s[4:7], s13 offen {PFPOL}")
        lab(sk)
    if CPF == ch: code_pf(vm)
    if not PF: return
    if PFC and PF2 == str(ch): pf_step(vm)
    if PFW[isB] == ch:
        e(f"buffer_load_dword v30, v11, s[36:39], 0 offen {PFPOL}")
        vm.issue("pf")
    if not isB and PFQ == ch:
        e(f"buffer_load_dword v30, v4, s[32:35], 0 offen {PFPOL}")
        vm.issue("pf")

def compute(isB):
    lab("C_B" if isB else "C_A")
    if WST: e("s_memrealtime s[96:97]")
    vm = VM()
    comp_setup(isB)
    if PF: pf_setup(isB)
    pfa = PFA and (PFAM >> isB) & 1
    if pfa: pfa_setup(isB)
    srds(isB)
    if pfa: pfa_issue(vm, isB)
    elif PF: pf_setup2(isB)
    wmark(1); wmark(2); wmark(3)
    stamp(vm, 0)
    stamp(vm, 1)
    nonce_issue(vm)
    if PRE:
        e("s_mul_i32 s3, s25, 229376")
        e("s_mul_i32 s27, s24, 896")
        e("s_add_u32 s3, s3, s27")
        e("buffer_load_dword v30, v3, s[88:91], s3 offen"); vm.issue("pre")
        e("buffer_load_dword v30, v3, s[36:39], s55 offen"); vm.issue("pre")
        if not PST: e("buffer_load_dword v30, v3, s[40:43], s59 offen"); vm.issue("pre")
    if PST == 1: prestore(vm, isB)
    if PF and PFC: pf_pre(vm)
    if CPF == -1: code_pf(vm)
    gemm(vm, isB)
    stamp(vm, 3)
    if isB: epi_B(vm)
    else: epi_A(vm)
    p2(isB, True)
    p2(isB, False)

def kernel():
    lab(f"{NAME}_kernel")
    prologue()
    for lw in range(4): loader(False, lw)
    for lw in range(4): loader(True, lw)
    compute(False)
    compute(True)
    lab("K_END")
    e("s_endpgm")

HDR = open("cdna_kernels/" + NAME + ".s.ref").read().split("; @launch")[0]
kernel()
out = HDR
out += f"; @launch grid=(256,1,1) block=(512,1,1) lds={LDS_TOTAL}\n"
out += '.amdgcn_target "amdgcn-amd-amdhsa--gfx950"\n.text\n'
out += f".globl {NAME}_kernel\n.p2align 8\n.type {NAME}_kernel,@function\n"
out += "\n".join(L) + "\n"
out += f""".section .rodata,"a"
.p2align 6
.amdhsa_kernel {NAME}_kernel
  .amdhsa_next_free_vgpr 256
  .amdhsa_next_free_sgpr {102 if WST else 96}
  .amdhsa_accum_offset 144
  .amdhsa_group_segment_fixed_size 0
  .amdhsa_kernarg_size 72
  .amdhsa_user_sgpr_count 2
  .amdhsa_user_sgpr_kernarg_segment_ptr 1
  .amdhsa_system_sgpr_workgroup_id_x 1
.end_amdhsa_kernel
"""
path = sys.argv[1] if len(sys.argv) > 1 else f"cdna_kernels/{NAME}.s"
open(path, "w").write(out)
```

```python
import sys, os, struct, re
NAME = "concat_heads__linear_attn_block__sliding_local_dilated__prompt"
TLP = 0
TLQ = int(os.environ.get("TLQ", "0x400000"), 0)
OPOL = os.environ.get("OPOL", "")
TPOL = os.environ.get("TPOL", "")
ACC = 0xa00000
NON = 0x800000
AS = int(os.environ.get("AS", "128"))
XDW = int(os.environ.get("XDW", "0"))
WS_END = 0xa00000 + 512*AS if not XDW else 0x3000000
STAMP = os.environ.get("STAMP") in ("1", "2")
RT = os.environ.get("STAMP") == "2"
STB = 0x900000
LOG2E = 0x3FB8AA3B
EPS = 0x358637BD
for s in range(64*21): assert (s * 4682) >> 16 == s // 14
for s in range(32): assert (s * 37) >> 8 == s // 7
RS = 224
KVS = 14336; QS = 7168; XS = 16384
LDS_TOTAL = 163840
ROT = os.environ.get("ROT", "1") == "1"
PPOL = os.environ.get("PPOL", "nt")
ROTM = os.environ.get("ROTM", "2*p")
XM = int(os.environ.get("XM", "2"))
SWP = os.environ.get("SWP", "0") == "1"
XNOX = os.environ.get("XNOX") == "1"
XNOW = os.environ.get("XNOW") == "1"
BWM = os.environ.get("BWM", "0") == "1"
XNOR = os.environ.get("XNOR") == "1"
XNOM = os.environ.get("XNOM") == "1"
XNOL = os.environ.get("XNOL") == "1"
LAA = int(os.environ.get("LAA", "2"))
LAB = int(os.environ.get("LAB", "0"))
ROTMB = os.environ.get("ROTMB", ROTM)
XMB = int(os.environ.get("XMB", str(XM)))
W0 = os.environ.get("W0") == "1"
PRE = os.environ.get("PRE", "1") == "1"
NOQ = os.environ.get("NOQ") == "1"
L1X = os.environ.get("L1X") == "1"
DA = int(os.environ.get("DA", "4"))
DB = int(os.environ.get("DB", "5"))
def f2u(x): return struct.unpack('<I', struct.pack('<f', x))[0]
SC2 = f2u(28 ** -0.5 * 1.4426950408889634)
CNT_Z = 40 * 4
WB = 6272
def A_kv(i): return (i % 5) * 30720
def A_x(i): return (i % 5) * 30720 + KVS
def A_q(i): return 61440 + i*QS
UP = 111616
def A_wo(h): return h*WB if h < 8 else UP + (h-8)*WB
def A_scr(lw): return A_wo(12 + lw)
KVB = 50176
B_WSL = [140288, 0, 21504, 118784]
def B_kv(i): return B_WSL[i % 4]
def B_q(i): return B_WSL[i % 4] + KVS
def B_x(i): return 43008 + (i % 3) * 18432
def B_wo(h): return 61440 + h*WB
assert B_wo(8) == UP
FLG = 161792
RED_A = 61440; RED_B = 0
EPO = NON + 0x10000

L = []
def e(s): L.append("    " + s)
def lab(s): L.append(s + ":")
def c(s): L.append("    ; " + s)
_uid = [0]
def uid(p):
    _uid[0] += 1
    return f"{p}_{_uid[0]}"

class CNT:
    def __init__(self, kind, mx): self.ops = []; self.kind = kind; self.mx = mx
    def issue(self, tag): self.ops.append(tag)
    def n(self, tag):
        idx = max(i for i, t in enumerate(self.ops) if t == tag)
        return min(len(self.ops) - 1 - idx, self.mx)
    def wait(self, tag): e(f"s_waitcnt {self.kind}({self.n(tag)})")
def VM(): return CNT("vmcnt", 63)
def LG(): return CNT("lgkmcnt", 15)

SIDS = [int(x) for x in os.environ["SIDS"].split(",")] if os.environ.get("SIDS") else None
def stamp(vm, i, r=28):
    if not STAMP: return
    if SIDS is not None and i not in SIDS: return
    if i in (1, 2):
        e(f"v_mov_b32 v{r}, s94")
    else:
        e("s_memrealtime s[72:73]" if RT else "s_memtime s[72:73]")
        e("s_waitcnt lgkmcnt(0)")
        e(f"v_mov_b32 v{r}, s72")
    e("s_lshl_b32 s74, s2, 8")
    e(f"s_add_u32 s74, s74, {STB + i*4}")
    e(f"v_and_b32 v{r+1}, 0xff, v0")
    e(f"v_cmp_eq_u32 s[76:77], 0, v{r+1}")
    e("s_mov_b64 exec, s[76:77]")
    e(f"buffer_store_dword v{r}, v{r+1}, s[40:43], s74 offen")
    e("s_mov_b64 exec, -1")
    if vm is not None: vm.issue("stamp")

WST = os.environ.get("WST") in ("1", "2")
WST2 = os.environ.get("WST") == "2"
def wmark(k):
    if not WST: return
    e("s_memrealtime s[72:73]")
    e("s_waitcnt lgkmcnt(0)")
    e(f"s_mov_b32 s{96+k}, s72")
def wdump(vm):
    if not WST: return
    e("s_lshl_b32 s74, s2, 9")
    e("s_lshl_b32 s75, s48, 6")
    e("s_add_u32 s74, s74, s75")
    e("s_add_u32 s74, s74, 0x910000")
    e("s_mov_b64 exec, 1")
    e("v_mov_b32 v28, s94")
    e("buffer_store_dword v28, off, s[40:43], s74")
    for k in range(6):
        e(f"v_mov_b32 v28, s{96+k}")
        e(f"buffer_store_dword v28, off, s[40:43], s74 offset:{4+k*4}")
        if vm is not None: vm.issue("stamp")
    e("s_mov_b64 exec, -1")
    if vm is not None: vm.issue("stamp")

def phi_pair(dst, a, b, t):
    assert b == a + 1 and a % 2 == 0 and t % 2 == 0
    return [f"v_pk_mul_f32 v[{t}:{t+1}], v[{a}:{b}], s[70:71]",
            f"v_exp_f32 v{t}, v{t} clamp",
            f"v_exp_f32 v{t+1}, v{t+1} clamp",
            f"v_max_f32 v{a}, 0, v{a}",
            f"v_max_f32 v{b}, 0, v{b}",
            f"v_pk_add_f32 v[{t}:{t+1}], v[{t}:{t+1}], v[{a}:{b}]",
            f"v_cvt_pk_bf16_f32 v{dst}, v{t}, v{t+1}"]
def ilv(seqs):
    for i in range(max(len(q) for q in seqs)):
        for q in seqs:
            if i < len(q): e(q[i])

def srd(base, lo, hi, nbytes):
    e(f"s_mov_b32 s{base}, s{lo}")
    e(f"s_and_b32 s{base+1}, s{hi}, 0xffff")
    e(f"s_mov_b32 s{base+2}, 0x{nbytes:x}")
    e(f"s_mov_b32 s{base+3}, 0x20000")

def srd23(base, nbytes):
    e(f"s_mov_b32 s{base+2}, 0x{nbytes:x}")
    e(f"s_mov_b32 s{base+3}, 0x20000")
def ka_rest():
    e("s_load_dwordx2 s[40:41], s[0:1], 64")
    e("s_load_dwordx2 s[88:89], s[0:1], 48")
    e("s_load_dwordx2 s[44:45], s[0:1], 56")
def srd_xw_pre():
    srd23(28, 2048*896)
    srd23(32, 448*2688)
def srd_xw():
    e("s_waitcnt lgkmcnt(0)")
    e("s_and_b32 s29, s29, 0xffff")
    e("s_and_b32 s33, s33, 0xffff")
def srd_rest():
    srd23(40, WS_END)
    srd23(36, 448*896)
    srd23(44, 256)
    srd23(88, 2048*1792)
    e("s_waitcnt lgkmcnt(0)")
    for b in (40, 36, 44, 88): e(f"s_and_b32 s{b+1}, s{b+1}, 0xffff")

LPRIO = int(os.environ.get("LPRIO", "3"))
CSLP = int(os.environ.get("CSLP", "0"))
def prologue():
    if STAMP or WST: e("s_memrealtime s[94:95]")
    e("s_cmp_ge_u32 s2, 256")
    e("s_cbranch_scc1 K_END")
    e("s_bfe_u32 s24, s2, 0x10002")
    e("v_lshrrev_b32 v1, 6, v0")
    if SWP: e("s_xor_b32 s24, s24, 1")
    e("s_mul_i32 s3, s24, 24")
    e("v_readfirstlane_b32 s48, v1")
    e("s_load_dwordx2 s[28:29], s[0:1], s3")
    e("s_load_dwordx2 s[32:33], s[0:1], s3 offset:8")
    e("s_load_dwordx2 s[36:37], s[0:1], s3 offset:16")
    e("v_and_b32 v2, 63, v0")
    if WST2:
        e("s_waitcnt lgkmcnt(0)")
        e("s_memrealtime s[96:97]")
    e("s_bitcmp1_b32 s48, 2")
    e("s_cbranch_scc0 C_X")
    if LPRIO: e(f"s_setprio {LPRIO}")
    e("s_cmp_eq_u32 s24, 0")
    e("s_cbranch_scc0 L_BX")
    for X in "AB":
        if X == "B": lab("L_BX")
        e("s_bitcmp1_b32 s48, 1")
        e(f"s_cbranch_scc1 L_{X}Y")
        e("s_bitcmp1_b32 s48, 0")
        e(f"s_cbranch_scc1 L_{X}1")
        e(f"s_branch L_{X}0")
        lab(f"L_{X}Y")
        e("s_bitcmp1_b32 s48, 0")
        e(f"s_cbranch_scc1 L_{X}3")
        e(f"s_branch L_{X}2")
    lab("C_X")
    slp(CSLP)
    e("s_cmp_eq_u32 s24, 0")
    e("s_cbranch_scc1 C_A")
    e("s_branch C_B")

def scal1(isB):
    e("s_lshr_b32 s23, s2, 3")
    e("s_and_b32 s27, s2, 3")
    e("s_and_b32 s3, s23, 3")
    e("s_lshl2_add_u32 s25, s27, s3")
    e("s_lshr_b32 s26, s23, 2")
    e("s_mul_i32 s56, s26, 112")
    rm = ROTMB if isB else ROTM; xm = XMB if isB else XM
    m = re.fullmatch(r"(\d+)(\*p)?", rm)
    a = int(m.group(1)) if m.group(2) else 0
    assert m.group(2) or m.group(1) == "0"
    if a == xm:
        e("s_add_u32 s81, s26, s27")
        e(f"s_mul_i32 s81, s81, {a}")
    elif a == 0:
        e(f"s_mul_i32 s81, s27, {xm}")
    else:
        e(f"s_mul_i32 s81, s26, {a}")
        e(f"s_mul_i32 s3, s27, {xm}")
        e("s_add_u32 s81, s81, s3")
    mx = 7*a + 3*xm
    assert mx < 32
    if mx >= 7:
        e("s_mul_i32 s3, s81, 37")
        e("s_lshr_b32 s3, s3, 8")
        e("s_mul_i32 s3, s3, 7")
        e("s_sub_u32 s81, s81, s3")
    e("s_mov_b32 s82, s81")
def scal2():
    e("s_and_b32 s22, s2, 7")
    e("s_lshr_b32 s55, s26, 1")
    e("s_mul_i32 s55, s55, 224")
    e("s_getreg_b32 s92, hwreg(HW_REG_XCC_ID)")
    e("s_and_b32 s92, s92, 15")
    e(f"s_mov_b32 s70, 0x{LOG2E:x}")
    e(f"s_mov_b32 s71, 0x{LOG2E:x}")
    e("s_lshl_b32 s60, s24, 4")
    e("s_add_u32 s60, s60, s25")
    e("s_lshl_b32 s59, s60, 17")
    e("s_lshl_b32 s60, s60, 7")
    e(f"s_add_u32 s60, s60, 0x{NON:x}")

def nonce_issue(vm):
    e("v_mov_b32 v3, 0")
    e("buffer_load_dword v31, v3, s[40:43], s60 offen sc0 sc1")
    vm.issue("non")
def nonce_get():
    e("v_readfirstlane_b32 s93, v31")
    e("s_nop 3")
    e("s_add_u32 s93, s93, 16")
    e("s_and_b32 s61, s93, 0x7ff0")
    e("s_or_b32 s61, s61, s92")
    e("s_or_b32 s61, s61, 0x8000")
    e("s_lshl_b32 s61, s61, 16")

def div14(n):
    e(f"v_add_u32 v3, {64*n}, v2")
    e("v_mul_u32_u24 v4, 4682, v3")
    e("v_lshrrev_b32 v4, 16, v4")
    e("v_mul_u32_u24 v5, 14, v4")
    e("v_sub_u32 v3, v3, v5")
    e("v_cmp_lt_u32 vcc, 6, v3")
    e("v_cndmask_b32 v5, 0, 1, vcc")
    e("v_mul_u32_u24 v6, 7, v5")
    e("v_sub_u32 v3, v3, v6")

def w_voff(dst, n, isq):
    div14(n)
    e("v_lshrrev_b32 v6, 1, v4")
    e("v_and_b32 v6, 4, v6")
    e("v_xor_b32 v4, v4, v6")
    e("v_mul_u32_u24 v4, 2688, v4")
    if isq:
        e("v_mul_u32_u24 v5, s58, v5")
        e("v_lshl_add_u32 v3, v3, 4, v4")
        e(f"v_add_u32 v{dst}, v3, v5")
    else:
        e("v_mul_u32_u24 v5, 896, v5")
        e("v_lshl_add_u32 v3, v3, 4, v4")
        e(f"v_add3_u32 v{dst}, v3, v5, s57")

def step_hdr(sr, w=True, x=True):
    if w:
        e(f"s_mul_i32 s83, s{sr}, 172032")
        e("s_add_u32 s83, s83, s56")
    if x:
        e(f"s_lshl_b32 s85, s{sr}, 7")
        e("s_add_u32 s86, s85, 14336")
    e(f"s_add_u32 s{sr}, s{sr}, 1")
    e(f"s_cmp_eq_u32 s{sr}, 7")
    e(f"s_cselect_b32 s{sr}, 0, s{sr}")

FILL = []
FN = int(os.environ.get("FN", "12"))
def capture(fn, *a):
    global L
    sv = L; L = []
    fn(*a)
    r = L; L = sv
    FILL.extend(r)
def flush(n=10**9):
    while FILL and n > 0:
        L.append(FILL.pop(0)); n -= 1
def dma(vm, tag, voff, srd_, soff, lds):
    e(f"s_mov_b32 m0, {lds}")
    e("s_nop 0")
    e(f"buffer_load_dwordx4 v{voff}, s[{srd_}:{srd_+3}], {soff} offen lds")
    vm.issue(tag)
    flush(FN)

def wo_voffs(isB):
    for t in range(7):
        div14(t)
        e("v_min_u32 v4, 27, v4")
        e("v_cmp_lt_u32 vcc, 13, v4")
        e("v_cndmask_b32 v6, 0, 1, vcc")
        e("v_mul_u32_u24 v24, 14, v6")
        e("v_sub_u32 v4, v4, v24")
        e("v_lshrrev_b32 v24, 2, v4")
        e("v_and_b32 v25, 3, v4")
        e("v_cmp_lt_u32 vcc, 10, v4")
        e("v_cndmask_b32 v26, 0, 1, vcc")
        e("v_mul_u32_u24 v27, 3, v26")
        e("v_sub_u32 v27, v4, v27")
        e("v_subrev_u32 v27, 4, v27")
        e("v_cmp_lt_u32 vcc, 7, v4")
        e("v_cndmask_b32 v24, v24, v26, vcc")
        e("v_cndmask_b32 v25, v25, v27, vcc")
        e("v_lshl_add_u32 v24, v6, 1, v24")
        if not isB:
            e("v_mul_u32_u24 v24, 7, v24")
            e("v_add_u32 v4, v24, v25")
        else:
            e("v_lshl_add_u32 v4, v24, 2, v25")
            e("v_add_u32 v26, 12, v4")
            e("v_lshlrev_b32 v27, 2, v25")
            e("v_add_u32 v27, 3, v27")
            e("v_cmp_eq_u32 s[4:5], 3, v24")
            e("v_cndmask_b32 v26, v26, v27, s[4:5]")
            e("v_cndmask_b32 v4, v4, v26, vcc")
        e("v_mul_u32_u24 v5, 112, v5")
        e("v_mul_u32_u24 v4, 896, v4")
        e("v_lshl_add_u32 v3, v3, 4, v4")
        e(f"v_add3_u32 v{40+t}, s55, v3, v5")

def wo_block(vm, h, isB):
    base = B_wo(h) if isB else A_wo(h)
    e(f"s_mov_b32 s86, {h*28*896}")
    for t in range(7):
        if t == 6: e("s_mov_b64 exec, 0xff")
        dma(vm, "wo", 40+t, 36, "s86", base + t*1024)
    e("s_mov_b64 exec, -1")

def flg_init(lw):
    if lw == 0:
        e(f"v_mov_b32 v3, {FLG}")
        e("v_mov_b32 v4, 0")
        e("v_mov_b32 v5, 0")
        e("ds_write_b64 v3, v[4:5]")
        e("s_waitcnt lgkmcnt(0)")

NPW = int(os.environ.get("NPW", "2"))
SEC = int(os.environ.get("SEC", "1"))
LPR2 = int(os.environ.get("LPR2", "0"))
def loader(isB, lw):
    lab(f"L_{'B' if isB else 'A'}{lw}")
    if WST and not WST2: e("s_memrealtime s[96:97]")
    vm = VM()
    SO = 32
    scal1(isB)
    e("s_movk_i32 s57, 896")
    e("s_mov_b32 s58, 86016")
    e("v_lshrrev_b32 v3, 3, v2")
    e("v_lshrrev_b32 v4, 4, v2")
    e("v_and_b32 v5, 7, v2")
    e("v_xor_b32 v5, v5, v4")
    e("s_lshl_b32 s3, s25, 7")
    e(f"s_add_u32 s3, s3, {32*lw}")
    e("v_add_u32 v6, s3, v3")
    e("v_mul_u32_u24 v6, 896, v6")
    e("v_lshl_add_u32 v16, v5, 4, v6")
    e("v_xor_b32 v17, 64, v16")
    e("v_add_u32 v17, 7168, v17")
    kvn = [n for n in range(lw, 14, 4)]
    if isB:
        wn = [n for n in range(lw, 21, 4)]
        kvn = [n for n in wn if n < 14]; qn = [n-14 for n in wn if n >= 14]
    else:
        qn = [n for n in range(lw, 7, 4)]
    def halo_voff():
        u = lw - 1
        e("v_lshrrev_b32 v3, 3, v2")
        e("v_lshrrev_b32 v4, 4, v2")
        e("v_and_b32 v5, 7, v2")
        e("v_xor_b32 v5, v5, v4")
        if u: e("v_xor_b32 v5, 4, v5")
        e("s_lshl_b32 s3, s25, 7")
        e("s_sub_u32 s3, s3, 16")
        e("s_max_i32 s3, s3, 0")
        e(f"s_add_u32 s3, s3, {8*u}")
        e("v_add_u32 v6, s3, v3")
        e("v_mul_u32_u24 v6, 896, v6")
        e("v_lshl_add_u32 v18, v5, 4, v6")
    jobs = [(w_voff, 8+j, n, False) for j, n in enumerate(kvn)]
    if isB:
        jobs += [(w_voff, 12+j, n, True) for j, n in enumerate(qn)]
        if lw in (1, 2): jobs.append((halo_voff,))
    srd_xw_pre()
    step_hdr(81)
    for jb in jobs[:NPW]: jb[0](*jb[1:])
    jobs = jobs[NPW:]
    srd_xw()
    wmark(1)
    slp(LDL)
    def first():
        xb = B_x(0) if isB else A_x(0)
        for u in range(4):
            dma(vm, "c0", 16 + (u & 1), 28, "s85" if u < 2 else "s86", xb + (2048 if isB else 0) + (4*lw+u)*1024)
            if u == 0: ka_rest()
            if jobs:
                jb = jobs.pop(0); jb[0](*jb[1:])
        while jobs:
            jb = jobs.pop(0); jb[0](*jb[1:])
        isW(0)
        if isB and lw in (1, 2):
            dma(vm, "c0", 18, 28, "s85", xb + (lw-1)*1024)
    def second():
        scal2()
        srd_rest()
        stamp(vm, SO + 0)
        nonce_issue(vm)
    def isW(i):
        if XNOL and i >= 2:
            e("buffer_load_dword v30, off, s[40:43], s60"); vm.issue(f"c{i}")
            return
        for j, n in enumerate(kvn): dma(vm, f"c{i}", 8+j, 32, "s83", (B_kv(i) if isB else A_kv(i)) + n*1024)
        if isB:
            for j, n in enumerate(qn): dma(vm, f"c{i}", 12+j, 32, "s83", B_q(i) + n*1024)
    def isX(i):
        if XNOL and i >= 2: return
        xb = B_x(i) if isB else A_x(i)
        for u in range(4):
            dma(vm, f"c{i}", 16 + (u & 1), 28, "s85" if u < 2 else "s86", xb + (2048 if isB else 0) + (4*lw+u)*1024)
        if isB and lw in (1, 2):
            dma(vm, f"c{i}", 18, 28, "s85", xb + (lw-1)*1024)
    if not isB:
        first()
        wmark(2)
        if SEC == 1:
            for k in range(1, LAA): step_hdr(81); isX(k); isW(k)
        second()
        stamp(vm, 36)
        for r in range(4): e(f"v_mov_b32 v{4+r}, 0")
        zs = uid("ZS")
        e("s_cmp_eq_u32 s25, 0")
        e(f"s_cbranch_scc0 {zs}")
        e(f"s_mul_i32 s3, s26, {64*AS}")
        e(f"s_add_u32 s3, s3, 0x{ACC + lw*16*AS:x}")
        e("v_lshrrev_b32 v3, 2, v2")
        e(f"v_mul_u32_u24 v3, {AS}, v3")
        e("v_and_b32 v19, 3, v2")
        e("v_lshl_add_u32 v3, v19, 5, v3")
        e("buffer_store_dwordx4 v[4:7], v3, s[40:43], s3 offen sc0 sc1")
        e("buffer_store_dwordx4 v[4:7], v3, s[40:43], s3 offen offset:16 sc0 sc1")
        lab(zs)
        if SEC == 0:
            for k in range(1, LAA): step_hdr(81); isX(k); isW(k)
        flg_init(lw)
        if LPRIO and LPR2 >= 0: e(f"s_setprio {LPR2}")
        def isQ(i):
            step_hdr(82)
            for j, n in enumerate(qn): dma(vm, "q", 12+j, 32, "s83", A_q(i) + n*1024)
        for i in range(7):
            if i == 0: stamp(vm, 37); wmark(3)
            vm.wait(f"c{i}")
            if i == 0: stamp(vm, 38); wmark(4)
            e("s_barrier")
            if i == 0: wmark(5); wdump(vm)
            if i == 0:
                for j, n in enumerate(qn): capture(w_voff, 12+j, n, True)
                capture(wo_voffs, False)
            if i == 3:
                nonce_get()
                if lw == 0:
                    zs = uid("ZF")
                    e("s_cmp_eq_u32 s25, 0")
                    e(f"s_cbranch_scc0 {zs}")
                    e("s_lshl_b32 s3, s26, 2")
                    e(f"v_mov_b32 v22, {CNT_Z}")
                    e("v_mov_b32 v23, 1")
                    e("s_mov_b64 exec, 1")
                    e("buffer_store_dword v23, v22, s[44:47], s3 offen sc0 sc1")
                    e("s_mov_b64 exec, -1")
                    lab(zs)
            if i + LAA <= 6: step_hdr(81); isX(i+LAA); isW(i+LAA)
            if i == 4: flush()
            if i == 5:
                for k in range(4): isQ(k)
            if i == 6:
                for k in range(4, 7): isQ(k)
        zl = uid("ZL"); zd = uid("ZD"); z1 = uid("Z1")
        e("s_mov_b32 s78, 0")
        e(f"v_mov_b32 v3, {CNT_Z}")
        e("s_lshl_b32 s3, s26, 2")
        e("buffer_load_dword v19, v3, s[44:47], s3 offen sc0 sc1")
        vm.issue("z")
        wo_block(vm, 8 + lw, False)
        vm.wait("z")
        e(f"s_branch {z1}")
        lab(zl)
        e("buffer_load_dword v19, v3, s[44:47], s3 offen sc0 sc1")
        e("s_waitcnt vmcnt(0)")
        lab(z1)
        e("v_readfirstlane_b32 s79, v19")
        e("s_add_u32 s78, s78, 1")
        e("s_nop 2")
        e("s_cmp_eq_u32 s79, 1")
        e(f"s_cbranch_scc1 {zd}")
        e("s_sleep 1")
        e("s_cmp_gt_u32 s78, 0x40000")
        e(f"s_cbranch_scc0 {zl}")
        lab(zd)
        hh = lw >> 1; et = lw & 1
        e("v_and_b32 v5, 15, v2")
        e("v_lshrrev_b32 v6, 4, v2")
        e("v_lshlrev_b32 v3, 4, v2")
        e(f"v_add_u32 v4, {A_scr(lw)}, v3")
        e(f"s_mul_i32 s3, s26, {64*AS}")
        e(f"s_add_u32 s57, s3, 0x{ACC + lw*16*AS:x}")
        for r in range(1, 4): e(f"s_add_u32 s{50+r}, s57, {r*AS}")
        e(f"s_add_u32 s54, s57, {8*AS}")
        e(f"v_mul_u32_u24 v8, {4*AS}, v6")
        e("v_lshl_add_u32 v8, v5, 2, v8")
        e("v_cmp_gt_u32 s[66:67], 3, v6")
        e("v_cmp_le_u32 s[64:65], 14, v5")
        e("v_cmp_gt_u32 s[68:69], 2, v5")
        e("v_and_b32 v10, 7, v2")
        e("v_lshrrev_b32 v11, 3, v2")
        e(f"v_mul_u32_u24 v9, {AS}, v11")
        e("v_lshl_add_u32 v9, v10, 4, v9")
        e("v_cmp_eq_u32 s[4:5], 3, v10")
        e("v_cmp_eq_u32 s[6:7], 4, v10")
        e("s_or_b64 s[6:7], s[6:7], s[4:5]")
        if et:
            e("v_cmp_gt_u32 s[8:9], 5, v11")
            e("s_and_b64 s[10:11], s[8:9], s[6:7]")
            e("v_cmp_eq_u32 s[12:13], 4, v11")
        else:
            e("s_mov_b64 s[10:11], s[6:7]")
        e("v_and_b32 v12, 3, v10")
        e("v_lshlrev_b32 v12, 4, v12")
        e("v_lshrrev_b32 v10, 2, v10")
        e("v_lshl_add_u32 v12, v10, 3, v12")
        e(f"v_add_u32 v12, {KVB + hh*2048}, v12")
        for j in range(2):
            e(f"v_add_u32 v13, {16*et + 8*j}, v11")
            e("v_mul_u32_u24 v14, 37, v13")
            e("v_lshrrev_b32 v14, 8, v14")
            e("v_mul_u32_u24 v15, 7, v14")
            e("v_sub_u32 v15, v13, v15")
            e("v_lshrrev_b32 v16, 2, v15")
            e("v_and_b32 v15, 3, v15")
            e("v_lshl_add_u32 v15, v14, 2, v15")
            e("v_lshl_add_u32 v15, v16, 4, v15")
            if et and j:
                e("v_cndmask_b32 v15, v15, 19, s[12:13]")
            e(f"v_lshl_add_u32 v{20+j}, v15, 6, v12")
        vm.wait("q")
        e("s_barrier")
        stamp(vm, SO + 1)
        RD = 48
        for dt in range(2):
            for w in range(2):
                r = RD + dt*16 + w*4
                e(f"ds_read_b128 v[{r}:{r+3}], v4 offset:{w*2048 + dt*1024}")
        for dt in range(2):
            e(f"s_waitcnt lgkmcnt({2-2*dt})")
            b = RD + dt*16
            for r in range(4):
                e(f"v_add_f32 v{b+r}, v{b+r}, v{b+4+r}")
            for r in range(4):
                e(f"v_cndmask_b32 v{b+r}, v{b+r}, 1.0, s[{64+4*dt}:{65+4*dt}]")
        for dt in range(2):
            e(f"buffer_atomic_add_f32 v{RD+dt*16}, v8, s[40:43], s57 offen offset:{dt*64} sc1")
        if et: e("s_mov_b64 exec, s[66:67]")
        for r in range(1, 4):
            for dt in range(2):
                e(f"buffer_atomic_add_f32 v{RD+dt*16+r}, v8, s[40:43], s{50+r} offen offset:{dt*64} sc1")
        if et: e("s_mov_b64 exec, -1")
        stamp(vm, SO + 2)
        wo_block(vm, lw, False)
        wo_block(vm, lw + 4, False)
        wo_block(vm, lw + 12, False)
        PR = 80
        lp = uid("KVL"); dn = uid("KVD")
        e("s_mov_b32 s78, 0")
        lab(lp)
        for j in range(2):
            e(f"buffer_load_dwordx4 v[{PR+j*4}:{PR+j*4+3}], v9, s[40:43], s{54 if j else 57} offen sc0 sc1")
        e("s_waitcnt vmcnt(0)")
        e(f"v_cndmask_b32 v13, v{PR}, v{PR+2}, s[4:5]")
        e("v_cmp_eq_f32 vcc, 0x41800000, v13")
        e("s_and_b64 s[14:15], vcc, s[6:7]")
        e(f"v_cndmask_b32 v13, v{PR+4}, v{PR+6}, s[4:5]")
        e("v_cmp_eq_f32 vcc, 0x41800000, v13")
        e("s_and_b64 s[16:17], vcc, s[10:11]")
        e("s_xor_b64 s[14:15], s[14:15], s[6:7]")
        e("s_xor_b64 s[16:17], s[16:17], s[10:11]")
        e("s_or_b64 s[14:15], s[14:15], s[16:17]")
        e(f"s_cbranch_scc0 {dn}")
        e("s_add_u32 s78, s78, 1")
        e("s_cmp_gt_u32 s78, 0x40000")
        e(f"s_cbranch_scc0 {lp}")
        lab(dn)
        for j in range(2):
            r = PR + j*4
            e(f"v_cvt_pk_bf16_f32 v{r}, v{r}, v{r+1}")
            e(f"v_cvt_pk_bf16_f32 v{r+1}, v{r+2}, v{r+3}")
            if et and j: e("s_mov_b64 exec, s[8:9]")
            e(f"ds_write_b64 v{20+j}, v[{r}:{r+1}]")
        if et:
            e("s_mov_b64 exec, s[12:13]")
            for k in range(1, 4):
                e(f"ds_write_b64 v21, v[{PR+4}:{PR+5}] offset:{k*256}")
            e("s_mov_b64 exec, -1")
        e("s_waitcnt lgkmcnt(0)")
        e("s_barrier")
        stamp(vm, SO + 3)
    else:
        first()
        wmark(2)
        if SEC == 0: second()
        step_hdr(81); isX(1); isW(1)
        if SEC == 1: second()
        stamp(vm, 36)
        if LPRIO and LPR2 >= 0: e(f"s_setprio {LPR2}")
        if LAB:
            step_hdr(81); isX(2); isW(2)
            e("s_mov_b32 s84, s81")
            if LAB == 2: step_hdr(81, x=False); isW(3)
        flg_init(lw)
        for i in range(7):
            if i == 0: stamp(vm, 37); wmark(3)
            vm.wait(f"c{i}")
            if i == 0: stamp(vm, 38); wmark(4)
            e("s_barrier")
            if i == 0: wmark(5); wdump(vm)
            if i == 0: capture(wo_voffs, True)
            if i == 2: nonce_get()
            if not LAB:
                if i <= 4: step_hdr(81); isX(i+2); isW(i+2)
            else:
                if 1 <= i <= 4: step_hdr(84, w=False); isX(i+2)
                if (LAB == 1 or i >= 1) and i <= 3: step_hdr(81, x=False); isW(i+3)
            if i == 4: flush()
            if i == 5:
                for h in [0, 1, 6, 7, 8, 9, 10, 11][2*lw:2*lw+2]: wo_block(vm, h, True)
            if i == 6:
                for h in [2, 3, 4, 5, 12, 13, 14, 15][2*lw:2*lw+2]: wo_block(vm, h, True)
        e(f"v_mov_b32 v3, {FLG}")
        e("v_mov_b32 v4, 1")
        if not BWM: e("s_barrier")
        e("s_waitcnt vmcnt(0)")
        e("s_mov_b64 exec, 1")
        e("ds_add_u32 v3, v4")
        e("s_mov_b64 exec, -1")
        stamp(vm, SO + 3)
    e(f"s_branch P2_{'B' if isB else 'A'}L")

NP = int(os.environ.get("NP", "64"))
NRES = 10
SLP = int(os.environ.get("SLP", "4"))
EARLY = os.environ.get("EARLY", "0") == "1"
FPOL = os.environ.get("FPOL", "nt")
TR = os.environ.get("TR") == "1"
def tr(k):
    if TR: e(f"s_memrealtime s[{4+2*k}:{5+2*k}]")
PST = int(os.environ.get("PST", "0"))
AC = 16; OF = 44; WV = 76; ST = 124
def oreg(j, hh): return OF + (j*2+hh)*4
def wreg(j, f):
    if f >= NRES: return "v", ST + (f-NRES)*4
    i = j*NRES + f
    return ("a", i*4) if i < 28 else ("v", WV + (i-28)*4)
def rdf(j, f):
    hh, nt = divmod(f, 7)
    k, r = wreg(j, f)
    o = (2*j+hh)*WB + nt*32
    e(f"ds_read_b64_tr_b16 {k}[{r}:{r+1}], v8 offset:{o}")
    e(f"ds_read_b64_tr_b16 {k}[{r+2}:{r+3}], v9 offset:{o}")
def rd_res(kind):
    for j in range(4):
        for f in range(NRES):
            if wreg(j, f)[0] in kind: rdf(j, f)
def wo_bases(wo):
    e("v_lshrrev_b32 v7, 4, v2")
    e("v_lshrrev_b32 v3, 1, v7")
    e("v_bfe_u32 v8, v2, 2, 2")
    e("v_mul_u32_u24 v9, 14, v3")
    e("v_and_b32 v4, 1, v7")
    e("v_lshl_add_u32 v6, v4, 2, v9")
    e("v_add_u32 v6, v6, v8")
    e("v_mul_u32_u24 v5, 3, v4")
    e("v_min_u32 v8, 2, v8")
    e("v_add3_u32 v9, v9, v5, v8")
    e("v_add_u32 v9, 8, v9")
    e("v_and_b32 v5, 3, v2")
    e("v_lshlrev_b32 v5, 3, v5")
    e(f"v_add_u32 v5, {wo}, v5")
    e(f"v_mul_u32_u24 v8, {RS}, v6")
    e("v_add_u32 v8, v8, v5")
    e(f"v_mul_u32_u24 v9, {RS}, v9")
    e("v_add_u32 v9, v9, v5")
def spin_flag(off, val, cmp_):
    lp = uid("SP")
    e(f"v_mov_b32 v3, {FLG}")
    lab(lp)
    e(f"ds_read_b32 v4, v3 offset:{off}")
    e("s_waitcnt lgkmcnt(0)")
    e("v_readfirstlane_b32 s3, v4")
    e("s_nop 3")
    e(f"s_cmp_{cmp_}_u32 s3, {val}")
    e(f"s_cbranch_scc0 {lp}")
def tcol(isB, grp, t):
    return (t >> 1)*56 + (t & 1)*(24 if (not isB and grp < 2) else 32)

def accA(grp, rt, t): return 32 + (rt*4+t)*4
def accA2(grp, t, rt): return 32 + (grp-1)*32 + (t*4+rt)*4
def accB(grp, t, r):
    if grp == 0: return 32 + r*8 + t*4
    if grp == 1: return 64 + r*8 + t*4
    return 104 + t*20 + r*4

def comp_setup(isB):
    wo_bases((B_wo if isB else A_wo)(0))
    e("v_lshrrev_b32 v3, 4, v2")
    e("v_bfe_u32 v4, v2, 2, 2")
    e("v_lshl_add_u32 v4, v3, 3, v4")
    e("v_and_b32 v5, 1, v3")
    e("v_lshlrev_b32 v5, 2, v5")
    e("v_add_u32 v6, v4, v5")
    e("v_xor_b32 v7, 4, v6")
    e(f"v_mul_u32_u24 v6, {RS}, v6")
    e(f"v_mul_u32_u24 v7, {RS}, v7")
    e("v_and_b32 v5, 3, v2")
    e("v_lshl_add_u32 v14, v5, 3, v6")
    e("v_lshl_add_u32 v15, v5, 3, v7")
    e("s_and_b32 s49, s48, 1")
    e("s_lshr_b32 s50, s48, 1")
    e("s_mul_i32 s3, s49, 56")
    e("v_add_u32 v12, s3, v14")
    e("v_add_u32 v13, s3, v15")
    e("v_and_b32 v4, 15, v2")
    e("v_lshrrev_b32 v5, 1, v4")
    e("v_xor_b32 v5, v5, v3")
    e("v_lshlrev_b32 v5, 4, v5")
    e("v_lshl_add_u32 v18, v4, 7, v5")
    if isB:
        e("s_lshl_b32 s3, s50, 13")
        e("v_add_u32 v16, s3, v18")
        e("v_xor_b32 v17, 64, v16")
    else:
        e("v_lshl_add_u32 v16, v1, 12, v18")
        e("v_xor_b32 v17, 64, v16")
        e("v_xor_b32 v18, 0x1000, v16")
        e("v_xor_b32 v19, 0x1000, v17")

def gemm(vm, isB):
    lg = LG()
    D = DB if isB else DA
    NB = 12 if isB else 6
    assert D <= (5 if isB else 4)
    def bf(j):
        r = (j % NB)*4 + (0 if isB else 96); k = "a" if isB else "v"
        return (f"{k}[{r}:{r+3}]", f"{k}[{r}:{r+1}]", f"{k}[{r+2}:{r+3}]")
    def xr(ch, kk, rt):
        st = (2*ch + kk) % 3
        if isB: r = 48 + st*20 + rt*4
        elif rt < 2: r = (ch*4 + kk*2 + rt)*4
        else:
            r = 120 + st*8 + (rt-2)*4
            return f"v[{r}:{r+3}]"
        return f"a[{r}:{r+3}]"
    items = []
    for ch in range(7):
        for kk in range(2):
            for grp in ((0, 1, 2) if isB else (1, 2)):
                for t in range(2): items.append((ch, kk, grp, t))
    def sync(ch):
        if ch == 6: vm.wait("pre" if PRE else "non")
        if ch == 0: wmark(4)
        e("s_barrier")
        if ch == 0: wmark(5); wdump(vm)
        stamp(vm, 12 + ch)
        if PST == ch + 2: prestore(vm, isB)
        pf_bar(vm, isB, ch)
        wb = 20 + (ch & 1)*2
        kvb = B_kv(ch) if isB else A_kv(ch)
        xb = B_x(ch) if isB else A_x(ch)
        e(f"v_add_u32 v24, {xb}, v16")
        e(f"v_add_u32 v25, {xb}, v17")
        if not isB:
            e(f"v_add_u32 v26, {xb}, v18")
            e(f"v_add_u32 v27, {xb}, v19")
        e(f"v_add_u32 v{wb}, {kvb}, v12")
        e(f"v_add_u32 v{wb+1}, {kvb}, v13")
    def xrd(ch, kk):
        if XNOR or XNOX: return
        if isB:
            for rt in (1, 2, 3, 4, 0):
                e(f"ds_read_b128 {xr(ch,kk,rt)}, v{24+kk} offset:{rt*2048}")
                lg.issue(f"x{ch}")
        else:
            for rt in range(4):
                e(f"ds_read_b128 {xr(ch,kk,rt)}, v{24+kk+(rt>>1)*2} offset:{(rt&1)*2048}")
                lg.issue(f"x{ch}")
    def rd(j):
        ch, kk, grp, t = items[j]
        if j == 0 or items[j-1][0] != ch: sync(ch)
        if j == 0 or items[j-1][:2] != (ch, kk): xrd(ch, kk)
        wb = 20 + (ch & 1)*2
        if grp == 0: off = KVS + kk*112 + t*32
        else: off = 32*kk*RS + (grp-1)*112 + t*(24 if (not isB and grp == 1) else 32)
        for hf in range(2):
            if XNOR or (XNOW and hf): continue
            e(f"ds_read_b64_tr_b16 {bf(j)[1+hf]}, v{wb+hf} offset:{off}")
            lg.issue(f"w{j}")
    for j in range(D): rd(j)
    for j, (ch, kk, grp, t) in enumerate(items):
        if j + D < len(items): rd(j + D)
        if not XNOR: lg.wait(f"w{j}")
        if XNOM and ch > 0: continue
        tr = isB and grp < 2
        first = (ch == 0 and kk == 0)
        for r in range(5 if (isB and grp) else 4):
            a = accB(grp, t, r) if isB else accA2(grp, t, r)
            x = xr(ch, kk, r + 1 if (isB and grp == 0) else r)
            cc = "0" if first else f"v[{a}:{a+3}]"
            if tr: e(f"v_mfma_f32_16x16x32_bf16 v[{a}:{a+3}], {bf(j)[0]}, {x}, {cc}")
            else: e(f"v_mfma_f32_16x16x32_bf16 v[{a}:{a+3}], {x}, {bf(j)[0]}, {cc}")

def pass2():
    lg = LG()
    D = 6; NB = 12
    items = [(ch, kk, t) for ch in range(7) for kk in range(2) for t in range(4)]
    e(f"v_add_u32 v20, {A_q(0)}, v14")
    e(f"v_add_u32 v21, {A_q(0)}, v15")
    def rd(j):
        ch, kk, t = items[j]
        r = 96 + (j % NB)*4
        off = A_q(ch) - A_q(0) + kk*112 + tcol(False, 0, t)
        for hf in range(2):
            e(f"ds_read_b64_tr_b16 v[{r+2*hf}:{r+2*hf+1}], v{20+hf} offset:{off}")
            lg.issue(f"w{j}")
    for j in range(D): rd(j)
    for j, (ch, kk, t) in enumerate(items):
        if j + D < len(items): rd(j + D)
        lg.wait(f"w{j}")
        r = 96 + (j % NB)*4
        for rt in range(2):
            a = accA(0, rt, t); x = (ch*4 + kk*2 + rt)*4
            cc = "0" if (ch == 0 and kk == 0) else f"v[{a}:{a+3}]"
            e(f"v_mfma_f32_16x16x32_bf16 v[{a}:{a+3}], v[{r}:{r+3}], a[{x}:{x+3}], {cc}")

def tile_addr(isB, r=14):
    if isB:
        e("s_lshl_b32 s3, s50, 13")
        e("s_lshl_b32 s27, s49, 10")
        e("s_add_u32 s3, s3, s27")
        e(f"v_lshlrev_b32 v{r}, 4, v2")
        e(f"v_add_u32 v{r}, s3, v{r}")
        e(f"v_add_u32 v{r+1}, 0x1000, v{r}")
    else:
        e(f"v_lshlrev_b32 v{r}, 12, v1")
        e(f"v_lshl_add_u32 v{r}, v2, 4, v{r}")
    e("s_lshl_b32 s27, s26, 14")
    e("s_add_u32 s63, s59, s27")
PLD = os.environ.get("PLD", "0") == "1"
def prestore(vm, isB):
    if PLD:
        e("v_lshlrev_b32 v10, 7, v2")
        e("v_lshl_add_u32 v10, v1, 12, v10")
        e("s_lshl_b32 s27, s26, 14")
        e("s_add_u32 s63, s59, s27")
        e("s_mov_b64 exec, 0xffffffff")
        e("buffer_load_dword v30, v10, s[40:43], s63 offen nt")
        e("s_mov_b64 exec, -1")
        vm.issue("pre")
        return
    tile_addr(isB, 10)
    for r in range(4): e(f"v_mov_b32 v{4+r}, 0")
    for (va, off, n) in tile_regs(isB):
        e(f"buffer_store_dwordx4 v[4:7], v{va-4}, s[40:43], s63 offen offset:{off}")
        vm.issue("pre")
def tile_regs(isB):
    if isB: return [(14 + (rt >> 1), (rt & 1)*2048, 16 + rt*4) for rt in range(4)]
    return [(14, rt*2048 + hh*1024, 16 + (hh*2+rt)*4) for hh in range(2) for rt in range(2)]
def tile_store(isB, q, vm=None):
    for (va, off, n) in tile_regs(isB):
        if q: e(f"buffer_store_dwordx4 v[{n}:{n+3}], v{va}, s[40:43], s51 offen offset:{off} sc0 sc1")
        else: e(f"buffer_store_dwordx4 v[{n}:{n+3}], v{va}, s[40:43], s63 offen offset:{off} {TPOL}")
        if vm: vm.issue("Q")

def epi_A(vm):
    c("---- A epilogue ----")
    e("v_and_b32 v5, 15, v2")
    e("v_lshrrev_b32 v6, 4, v2")
    e("v_cmp_le_u32 s[64:65], 12, v5")
    e("v_mov_b32 v7, 0x3f803f80")
    e(f"s_mul_i32 s3, s49, {2*WB}")
    e("s_lshl_b32 s27, s50, 11")
    e("s_add_u32 s3, s3, s27")
    e(f"s_add_u32 s3, s3, {A_scr(0)}")
    e("v_lshlrev_b32 v3, 4, v2")
    e("v_add_u32 v4, s3, v3")
    e("s_nop 7")
    PK = 96; VV = 112; TT = 128; KP = 32
    for t in range(2):
        for pr in range(2):
            sq = []
            for r2 in range(2):
                a = accA2(1, t, pr*2 + r2)
                d = PK + (t*2+pr)*4 + r2*2
                sq.append(phi_pair(d, a, a+1, TT + r2*4))
                sq.append(phi_pair(d + 1, a+2, a+3, TT + r2*4 + 2))
            ilv(sq)
    for t in range(2):
        for rt in range(4):
            a = accA2(2, t, rt)
            d = VV + t*8 + rt*2
            e(f"v_cvt_pk_bf16_f32 v{d}, v{a}, v{a+1}")
            e(f"v_cvt_pk_bf16_f32 v{d+1}, v{a+2}, v{a+3}")
            if t & 1:
                e(f"v_cndmask_b32 v{d}, v{d}, v7, s[64:65]")
                e(f"v_cndmask_b32 v{d+1}, v{d+1}, v7, s[64:65]")
    e("s_nop 1")
    for pr in range(2):
        for et in range(2):
            for dt in range(2):
                d = KP + (et*2 + dt)*4
                va = VV + (et*2+pr)*4; pk = PK + (dt*2+pr)*4
                cc = "0" if pr == 0 else f"v[{d}:{d+3}]"
                e(f"v_mfma_f32_16x16x32_bf16 v[{d}:{d+3}], v[{va}:{va+3}], v[{pk}:{pk+3}], {cc}")
    e("s_nop 7")
    for i in range(4):
        e("s_nop 3")
        e(f"ds_write_b128 v4, v[{KP+i*4}:{KP+i*4+3}] offset:{(i>>1)*WB + (i&1)*1024}")
    e("s_waitcnt lgkmcnt(0)")
    e("s_barrier")
    stamp(vm, 4)
    pass2()
    stamp(vm, 7)
    nonce_get()
    QF = 64
    e("v_cmp_eq_u32 s[10:11], 3, v6")
    e("v_cmp_eq_u32 s[12:13], 0, v6")
    e("v_lshlrev_b32 v10, 6, v5")
    e("v_lshl_add_u32 v10, v6, 4, v10")
    e(f"v_add_u32 v10, {KVB}, v10")
    tile_addr(False)
    e("v_mov_b32 v11, 0xffff")
    e("s_nop 3")
    for t in range(4):
        sq = []
        for rt in range(2):
            a = accA(0, rt, t)
            d = QF + (rt*2 + (t >> 1))*4 + (t & 1)*2
            s0 = phi_pair(d, a, a+1, TT + rt*4)
            s1 = phi_pair(d+1, a+2, a+3, TT + rt*4 + 2)
            if t & 1: s0.append(f"v_cndmask_b32 v{d}, v{d}, 0, s[12:13]")
            else: s1.append(f"v_cndmask_b32 v{d+1}, v{d+1}, 0, s[10:11]")
            sq += [s0, s1]
        ilv(sq)
    e("s_barrier")
    stamp(vm, 10)
    R = 80
    for hh in range(2):
        for f in range(2):
            r = R + (hh*2+f)*4
            e(f"ds_read_b128 v[{r}:{r+3}], v10 offset:{hh*2048 + f*1024}")
    NR = 96
    for hh in range(2):
        e(f"s_waitcnt lgkmcnt({2 - 2*hh})")
        for rt in range(2):
            n = NR + (hh*2+rt)*8
            q = QF + (rt*2+hh)*4
            for f in (1, 0):
                r = R + (hh*2+f)*4
                e(f"v_mfma_f32_16x16x32_bf16 v[{n+f*4}:{n+f*4+3}], v[{r}:{r+3}], v[{q}:{q+3}], 0")
    if EARLY: rd_res("a")
    e("s_nop 7")
    sq = []; regs = []
    for hh in range(2):
        for rt in range(2):
            n = NR + (hh*2+rt)*8
            t = TT + (hh*2+rt)*2
            o = [f"v_add_f32 v{t}, 0x{EPS:x}, v{n+7}",
                 f"v_rcp_f32 v{t}, v{t}",
                 f"v_mov_b32 v{t+1}, v{t}"]
            for q in range(3):
                o.append(f"v_pk_mul_f32 v[{n+2*q}:{n+2*q+1}], v[{n+2*q}:{n+2*q+1}], v[{t}:{t+1}]")
            o.append(f"v_mul_f32 v{n+6}, v{n+6}, v{t}")
            T = 16 + (hh*2+rt)*4
            for q in range(3):
                o.append(f"v_cvt_pk_bf16_f32 v{T+q}, v{n+2*q}, v{n+2*q+1}")
            o.append(f"v_cvt_pk_bf16_f32 v{T+3}, v{n+6}, v{n+6}")
            o.append(f"v_and_or_b32 v{T+3}, v{T+3}, v11, s61")
            sq.append(o)
    ilv(sq)
    tile_store(False, False)
    stamp(vm, 5, 4)

def epi_B(vm):
    c("---- B epilogue ----")
    e("v_and_b32 v5, 15, v2")
    e("v_lshrrev_b32 v6, 4, v2")
    e("v_cmp_gt_u32 s[64:65], 3, v6")
    nonce_get()
    e("v_and_b32 v3, 1, v5")
    e("v_cmp_eq_u32 s[4:5], 1, v3")
    e("v_mov_b32 v10, 0xffff")
    e("v_mov_b32 v11, 0xffff0000")
    e("v_cndmask_b32 v12, v10, v11, s[4:5]")
    e("v_lshl_add_u32 v11, v6, 2, v3")
    e("v_sub_u32 v11, v11, v5")
    def KF(blk): return 64 + blk*8
    def QF(rt): return 32 + rt*8
    def VB(et): return 104 + et*20
    def cvt4(b):
        for q in range(4): e(f"v_cvt_pk_bf16_f32 v{b+q}, v{b+2*q}, v{b+2*q+1}")
    def C0(cb): return 32 + cb*8 + 4
    def C1(cb): return 64 + cb*8 + 4
    for rt in range(4):
        b = QF(rt)
        cvt4(b)
        e(f"v_cndmask_b32 v{b+2}, 0, v{b+2}, s[64:65]")
        e(f"v_cndmask_b32 v{b+3}, 0, v{b+3}, s[64:65]")
    for blk in range(5): cvt4(KF(blk))
    e("s_nop 1")
    for rt in range(4):
        q = QF(rt)
        for ti in range(2):
            k = KF(rt + ti)
            d = C0(rt) if ti == 0 else C1(rt)
            e(f"v_mfma_f32_16x16x32_bf16 v[{d}:{d+3}], v[{k}:{k+3}], v[{q}:{q+3}], 0")
    if not BWM: e("s_barrier")
    for et in range(2):
        b = VB(et)
        for blk in range(5):
            e(f"v_cvt_pk_bf16_f32 v{b+2*blk}, v{b+4*blk}, v{b+4*blk+1}")
            e(f"v_cvt_pk_bf16_f32 v{b+2*blk+1}, v{b+4*blk+2}, v{b+4*blk+3}")
    for k in range(4):
        addk = 2*k if k < 2 else 16 + 2*(k-2)
        e(f"v_add_u32 v13, {addk}, v11")
        e(f"v_cmp_le_i32 s[{6+2*k}:{7+2*k}], 2, v13")
        e(f"v_cmp_ge_i32 vcc, 16, v13")
        e(f"s_and_b64 s[{6+2*k}:{7+2*k}], s[{6+2*k}:{7+2*k}], vcc")
    e("s_or_b32 s3, s25, s50")
    e("s_cmp_eq_u32 s3, 0")
    e("s_cselect_b64 s[14:15], 0, -1")
    e("s_and_b64 s[16:17], s[6:7], s[14:15]")
    e("s_and_b64 s[18:19], s[8:9], s[14:15]")
    e("v_mov_b32 v13, 0xce6e6b28")
    e(f"s_mov_b32 s20, 0x{SC2:x}")
    tile_addr(True)
    e("v_cmp_eq_u32 s[68:69], 3, v6")
    def seq(cb):
        lgr = [C0(cb), C0(cb)+2, C1(cb), C1(cb)+2]
        m = C1(cb)+1; m2 = C1(cb)+3
        o = []
        for k in range(4):
            o.append(f"v_cndmask_b32 v{lgr[k]}, v{lgr[k]}, v{lgr[k]+1}, s[4:5]")
        for k in range(4):
            ms = (16 + 2*k) if (cb == 0 and k < 2) else (6 + 2*k)
            o.append(f"v_cndmask_b32 v{lgr[k]}, v13, v{lgr[k]}, s[{ms}:{ms+1}]")
        o.append(f"v_max3_f32 v{m}, v{lgr[0]}, v{lgr[1]}, v{lgr[2]}")
        o.append(f"v_max_f32 v{m}, v{m}, v{lgr[3]}")
        o.append(f"v_mov_b32 v{m2}, v{m}")
        o.append(f"v_permlane16_swap_b32 v{m}, v{m2}")
        o.append(f"v_max_f32 v{m}, v{m}, v{m2}")
        o.append(f"v_mov_b32 v{m2}, v{m}")
        o.append(f"v_permlane32_swap_b32 v{m}, v{m2}")
        o.append(f"v_max_f32 v{m}, v{m}, v{m2}")
        o.append(f"v_mul_f32 v{m}, 0x{SC2 ^ 0x80000000:x}, v{m}")
        for k in range(4):
            o.append(f"v_fma_f32 v{lgr[k]}, v{lgr[k]}, s20, v{m}")
        for k in range(4):
            o.append(f"v_exp_f32 v{lgr[k]}, v{lgr[k]}")
        o.append(f"v_add_f32 v{m}, v{lgr[0]}, v{lgr[1]}")
        o.append(f"v_add_f32 v{m2}, v{lgr[2]}, v{lgr[3]}")
        o.append(f"v_add_f32 v{m}, v{m}, v{m2}")
        o.append(f"v_mov_b32 v{m2}, v{m}")
        o.append(f"v_permlane16_swap_b32 v{m}, v{m2}")
        o.append(f"v_add_f32 v{m}, v{m}, v{m2}")
        o.append(f"v_mov_b32 v{m2}, v{m}")
        o.append(f"v_permlane32_swap_b32 v{m}, v{m2}")
        o.append(f"v_add_f32 v{m}, v{m}, v{m2}")
        o.append(f"v_rcp_f32 v{m}, v{m}")
        for k in range(4):
            o.append(f"v_mul_f32 v{lgr[k]}, v{lgr[k]}, v{m}")
            o.append(f"v_cvt_pk_bf16_f32 v{C0(cb)+k}, v{lgr[k]}, v{lgr[k]}")
            o.append(f"v_and_b32 v{C0(cb)+k}, v{C0(cb)+k}, v12")
        return o
    ilv([seq(cb) for cb in range(4)])
    if EARLY:
        spin_flag(0, 4, "eq")
        rd_res("a")
    e("s_nop 1")
    for rt in range(4):
        for et in (1, 0):
            o = QF(rt) if et == 0 else C1(rt)
            v = VB(et) + 2*rt
            e(f"v_mfma_f32_16x16x32_bf16 v[{o}:{o+3}], v[{v}:{v+3}], v[{C0(rt)}:{C0(rt)+3}], 0")
    e("s_nop 7")
    sq = []; regs = []
    for rt in range(4):
        o0 = QF(rt); o1 = C1(rt); t = C0(rt)
        T = 16 + rt*4
        o = [f"v_mov_b32 v{t}, v{o1+3}",
             f"v_cvt_pk_bf16_f32 v{T}, v{o0}, v{o0+1}",
             f"v_permlane32_swap_b32 v{t+1}, v{t}",
             f"v_permlane16_swap_b32 v{t+2}, v{o1+3}",
             f"v_cvt_pk_bf16_f32 v{T+1}, v{o0+2}, v{o0+3}",
             f"v_permlane16_swap_b32 v{t+3}, v{t+1}",
             f"v_cndmask_b32 v{o1+2}, v{o1+2}, v{t+2}, s[68:69]",
             f"v_cndmask_b32 v{o1+1}, v{o1+1}, v{t+1}, s[68:69]",
             f"v_cndmask_b32 v{o1}, v{o1}, v{t+3}, s[68:69]",
             f"v_cvt_pk_bf16_f32 v{T+3}, v{o1+2}, v{o1+2}",
             f"v_cvt_pk_bf16_f32 v{T+2}, v{o1}, v{o1+1}",
             f"v_and_or_b32 v{T+3}, v{T+3}, v10, s61"]
        sq.append(o)
    ilv(sq)
    tile_store(True, False)
    if BWM: e("s_barrier")
    stamp(vm, 5, 4)

def p2(isB, isC):
    lab(f"P2_{'B' if isB else 'A'}{'C' if isC else 'L'}")
    c("---- P2: wave = (16 rows, K half) x 112 cols ----")
    kh = 0 if isC else 1
    wo = (B_wo if isB else A_wo)(8*kh)
    def ld(j, pol=None):
        for hh in range(2):
            r = oreg(j, hh)
            e(f"buffer_load_dwordx4 v[{r}:{r+3}], v6, s[40:43], s{64+j} offen offset:{hh*1024} {PPOL if pol is None else pol}")
    tr(0)
    if isC:
        e(f"v_mov_b32 v3, {FLG}")
        e("v_mov_b32 v4, 1")
        e("s_mov_b64 exec, 1")
        e("ds_add_u32 v3, v4 offset:4")
        e("s_mov_b64 exec, -1")
    e("s_and_b32 s49, s48, 3")
    e("s_and_b32 s50, s26, 1")
    e("s_lshl_b32 s3, s50, 13")
    e("s_lshl_b32 s27, s49, 11")
    e("s_add_u32 s3, s3, s27")
    e("s_add_u32 s64, s59, s3")
    if kh: e("s_add_u32 s64, s64, 0x10000")
    for j in range(1, 4): e(f"s_add_u32 s{64+j}, s64, {j*16384}")
    e("v_lshlrev_b32 v6, 4, v2")
    if isC:
        for j in range(4): ld(j, FPOL)
    if not isC:
        wo_bases(wo)
        e("v_lshlrev_b32 v6, 4, v2")
    if isB and not (isC and EARLY): spin_flag(0, 4, "eq")
    rd_res("v" if (isC and EARLY) else "av")
    e("v_lshrrev_b32 v7, 4, v2")
    e("v_lshrrev_b32 v11, 1, v7")
    e("v_and_b32 v12, 1, v7")
    e("v_and_b32 v5, 15, v2")
    e("s_lshl_b32 s3, s25, 7")
    e("s_lshl_b32 s27, s50, 6")
    e("s_add_u32 s3, s3, s27")
    e("s_lshl_b32 s27, s49, 4")
    e("s_add_u32 s3, s3, s27")
    e("v_add_u32 v5, s3, v5")
    e("v_mul_u32_u24 v10, 1792, v5")
    e("s_mul_i32 s3, s24, 896")
    e("s_add_u32 s3, s3, s55")
    e("v_add_u32 v10, s3, v10")
    if kh: e("v_lshl_add_u32 v14, v7, 3, v10")
    e("v_lshl_add_u32 v10, v12, 5, v10")
    e("v_lshl_add_u32 v10, v11, 4, v10")
    e("s_mul_i32 s3, s49, 7168")
    e(f"s_add_u32 s3, s3, {RED_B if isB else RED_A}")
    e("v_add_u32 v12, s3, v6")
    for r in range(28): e(f"v_mov_b32 v{AC+r}, 0")
    e("s_mov_b32 s78, 0")
    e("s_mov_b32 s79, 15")
    e("s_mov_b32 s68, 0x10000")
    if not isC:
        e("s_waitcnt lgkmcnt(0)")
        if isB and BWM: e("s_barrier")
        else: spin_flag(4, 1, "ge")
        for j in range(4): ld(j, FPOL)
    e("s_waitcnt lgkmcnt(0)")
    stamp(None, 6 if isC else 39, 4)
    tr(1)
    top = uid("PT"); done = uid("PDN"); fb = uid("PFB")
    lab(top)
    for j in range(4):
        nx = uid("NX"); dm = uid("DM"); bad = uid("BD")
        e("s_waitcnt vmcnt(6)")
        e(f"s_bitcmp1_b32 s79, {j}")
        e(f"s_cbranch_scc0 {dm}")
        r0 = oreg(j, 0) + 3; r1 = oreg(j, 1) + 3
        e(f"v_xor_b32 v{r0}, s61, v{r0}")
        e(f"v_xor_b32 v{r1}, s61, v{r1}")
        e(f"v_or_b32 v13, v{r0}, v{r1}")
        e("v_cmp_gt_u32 vcc, s68, v13")
        e("s_cmp_eq_u64 vcc, -1")
        e(f"s_cbranch_scc0 {bad}")
        tr(2 + j)
        for f in range(NRES, 14): rdf(j, f)
        e(f"buffer_load_dword v15, off, s[40:43], s{64+j}")
        e(f"buffer_load_dword v15, off, s[40:43], s{64+j}")
        e(f"s_bitset0_b32 s79, {j}")
        for f in range(14):
            hh, nt = divmod(f, 7)
            k, wr = wreg(j, f)
            a = AC + nt*4; r = oreg(j, hh)
            if f == NRES: e("s_waitcnt lgkmcnt(0)")
            e(f"v_mfma_f32_16x16x32_bf16 v[{a}:{a+3}], {k}[{wr}:{wr+3}], v[{r}:{r+3}], v[{a}:{a+3}]")
        e("s_cmp_eq_u32 s79, 0")
        e(f"s_cbranch_scc1 {done}")
        e(f"s_branch {nx}")
        lab(bad)
        if SLP: e(f"s_sleep {SLP}")
        ld(j)
        e(f"s_branch {nx}")
        lab(dm)
        e(f"buffer_load_dword v15, off, s[40:43], s{64+j}")
        e(f"buffer_load_dword v15, off, s[40:43], s{64+j}")
        lab(nx)
    e("s_add_u32 s78, s78, 1")
    e(f"s_cmp_lt_u32 s78, {NP}")
    e(f"s_cbranch_scc1 {top}")
    nc = uid("NC"); cp = uid("CP")
    e("s_waitcnt vmcnt(0)")
    e("s_lshl_b32 s57, s24, 4")
    e("s_add_u32 s57, s57, s25")
    e("s_lshl_b32 s57, s57, 7")
    e(f"s_add_u32 s57, s57, 0x{EPO:x}")
    e(f"s_cmp_eq_u32 s78, {NP}")
    e(f"s_cbranch_scc0 {nc}")
    e("s_lshl_b32 s3, s26, 14")
    e("s_add_u32 s62, s59, s3")
    e("s_mov_b32 s69, 0")
    lab(cp)
    for half in range(2):
        rl = uid("RL")
        lab(rl)
        e("v_mov_b32 v13, 0")
        for b in range(8):
            r = OF + b*4
            e(f"s_add_u32 s3, s62, {(half*8+b)*1024}")
            e(f"buffer_load_dwordx4 v[{r}:{r+3}], v6, s[40:43], s3 offen sc0 sc1")
        e("s_waitcnt vmcnt(0)")
        for b in range(8):
            e(f"v_xor_b32 v15, s61, v{OF+b*4+3}")
            e("v_or_b32 v13, v13, v15")
        e("v_cmp_gt_u32 vcc, 0x10000, v13")
        e("s_add_u32 s69, s69, 1")
        e("s_cmp_gt_u32 s69, 0x40000")
        e(f"s_cbranch_scc1 {done}")
        e("s_cmp_eq_u64 vcc, -1")
        e(f"s_cbranch_scc0 {rl}")
        for b in range(8):
            r = OF + b*4
            e(f"s_add_u32 s3, s62, 0x{TLQ + (half*8+b)*1024:x}")
            e(f"buffer_store_dwordx4 v[{r}:{r+3}], v6, s[40:43], s3 offen sc0 sc1")
        e("s_waitcnt vmcnt(0)")
    e("s_lshl_b32 s3, s26, 2")
    e("s_add_u32 s3, s3, s57")
    e("v_mov_b32 v15, s93")
    e("buffer_store_dword v15, off, s[40:43], s3 sc0 sc1")
    e("s_mov_b32 s68, 0x100000")
    lab(nc)
    e("v_and_b32 v15, 3, v2")
    e("v_lshlrev_b32 v15, 2, v15")
    e(f"buffer_load_dword v13, v15, s[40:43], s57 offen offset:{kh*16} sc0 sc1")
    e("s_waitcnt vmcnt(0)")
    e("v_cmp_eq_u32 vcc, s93, v13")
    for j in range(4):
        e(f"s_or_b32 s3, s{64+j}, 0x{TLQ:x}")
        e(f"s_bitcmp1_b32 vcc_lo, {j}")
        e(f"s_cselect_b32 s{64+j}, s3, s{64+j}")
    for j in range(4): ld(j, "sc0 sc1")
    e("s_cmp_lt_u32 s78, 0x40000")
    e(f"s_cbranch_scc1 {top}")
    lab(done)
    tr(6)
    if STAMP and (SIDS is None or 11 in SIDS):
        stamp(None, 11 if isC else 40, 4)
        e("v_mov_b32 v4, s78")
        e("s_lshl_b32 s74, s2, 8")
        e(f"s_add_u32 s74, s74, {STB + (20+kh)*4}")
        e("v_mov_b32 v5, 0")
        e("buffer_store_dword v4, v5, s[40:43], s74 offen")
    e("s_nop 7")
    e("s_nop 7")
    snd = range(4, 7) if isC else range(0, 4)
    kp = range(0, 4) if isC else range(4, 7)
    for t in snd:
        e(f"ds_write_b128 v12, v[{AC+t*4}:{AC+t*4+3}] offset:{t*1024}")
    e("s_waitcnt lgkmcnt(0)")
    e("s_barrier")
    tr(7)
    RR = 76
    for t in kp:
        e(f"ds_read_b128 v[{RR+t*4}:{RR+t*4+3}], v12 offset:{t*1024}")
    if isC:
        sk = uid("NS")
        e("s_or_b32 s3, s26, s48")
        e("s_cmp_eq_u32 s3, 0")
        e(f"s_cbranch_scc0 {sk}")
        e("v_mov_b32 v13, s93")
        e("buffer_store_dword v13, off, s[40:43], s60 sc0 sc1")
        lab(sk)
    D = 108
    for n, t in enumerate(kp):
        e(f"s_waitcnt lgkmcnt({len(kp)-1-n})")
        a = AC + t*4; r = RR + t*4
        e(f"v_pk_add_f32 v[{a}:{a+1}], v[{a}:{a+1}], v[{r}:{r+1}]")
        e(f"v_pk_add_f32 v[{a+2}:{a+3}], v[{a+2}:{a+3}], v[{r+2}:{r+3}]")
        d = D + n*2
        e(f"v_cvt_pk_bf16_f32 v{d}, v{a}, v{a+1}")
        e(f"v_cvt_pk_bf16_f32 v{d+1}, v{a+2}, v{a+3}")
    e("s_nop 1")
    for pr in range(2 if isC else 1):
        d = D + pr*4
        e(f"v_permlane16_swap_b32 v{d}, v{d+2}")
        e(f"v_permlane16_swap_b32 v{d+1}, v{d+3}")
    e("s_nop 1")
    if isC:
        e(f"buffer_store_dwordx4 v[{D}:{D+3}], v10, s[88:91], 0 offen " + OPOL)
        e(f"buffer_store_dwordx4 v[{D+4}:{D+7}], v10, s[88:91], 0 offen offset:64 " + OPOL)
    else:
        e(f"buffer_store_dwordx4 v[{D}:{D+3}], v10, s[88:91], 0 offen offset:128 " + OPOL)
        e(f"buffer_store_dwordx2 v[{D+4}:{D+5}], v14, s[88:91], 0 offen offset:192 " + OPOL)
    stamp(None, 9 if isC else 41, 4)
    if TR:
        tr(8)
        e("s_waitcnt lgkmcnt(0)")
        e("s_lshl_b32 s74, s2, 9")
        e("s_lshl_b32 s3, s48, 6")
        e("s_add_u32 s74, s74, s3")
        e("s_add_u32 s74, s74, 0x910000")
        e("s_mov_b64 exec, 1")
        for k in range(9):
            e(f"v_mov_b32 v4, s{4+2*k}")
            e(f"buffer_store_dword v4, off, s[40:43], s74 offset:{k*4}")
        e("v_mov_b32 v4, s78")
        e(f"buffer_store_dword v4, off, s[40:43], s74 offset:36")
        e("s_mov_b64 exec, -1")
    if not isC: stamp(None, 2, 4)
    e("s_endpgm")

PF = os.environ.get("PF", "1") == "1"
PFT0 = int(os.environ.get("PFT0", "4"))
PFC = os.environ.get("PFC", "0") == "1"
PFD = int(os.environ.get("PFD", "6"))
PF2 = os.environ.get("PF2", "0")
PFW = [int(x) for x in os.environ.get("PFW", "5,2").split(",")]
PFQ = int(os.environ.get("PFQ", "-1"))
PFPOL = os.environ.get("PFPOL", "")
def pf_setup(isB):
    NW = 42 if isB else 28
    e("s_lshl_b32 s3, s23, 2")
    e("s_add_u32 s3, s3, s48")
    e("s_and_b32 s27, s3, 63")
    e("s_lshr_b32 s80, s3, 6")
    e("s_lshl_b32 s3, s3, 6")
    e("v_add_u32 v4, s3, v2")
    e("v_min_u32 v4, 6271, v4")
    e("v_lshlrev_b32 v11, 6, v4")
    if not isB:
        e("v_mul_u32_u24 v5, 9363, v4")
        e("v_lshrrev_b32 v5, 17, v5")
        e("v_mul_u32_u24 v5, 1792, v5")
        e("v_add_u32 v4, v5, v11")
    e("s_lshl_b32 s3, s27, 6")
    e("v_add_u32 v5, s3, v2")
    if isB:
        e("v_lshlrev_b32 v10, 6, v5")
    else:
        e("v_mul_u32_u24 v6, 2341, v5")
        e("v_lshrrev_b32 v6, 16, v6")
        e("v_mul_u32_u24 v6, 896, v6")
        e("v_lshl_add_u32 v10, v5, 6, v6")
        e("v_add_u32 v10, 896, v10")
    e(f"v_subrev_u32 v5, {NW*64}, v5")
    e("v_min_u32 v5, 1023, v5")
    e("v_lshrrev_b32 v6, 1, v5")
    e("s_and_b32 s3, s22, 3")
    e("s_lshl_b32 s3, s3, 9")
    e("v_add_u32 v6, s3, v6")
    e("v_mul_u32_u24 v6, 896, v6")
    e("v_and_b32 v5, 1, v5")
    e("v_lshl_add_u32 v6, v5, 6, v6")
    e(f"s_cmp_lt_u32 s27, {NW}")
    e("s_cselect_b64 vcc, -1, 0")
    e("v_cndmask_b32 v10, v6, v10, vcc")
def pf_setup2(isB):
    NW = 42 if isB else 28
    e(f"s_cmp_lt_u32 s27, {NW}")
    e("s_cselect_b32 s4, s32, s28")
    e("s_cselect_b32 s5, s33, s29")
    e("s_cselect_b32 s6, s34, s30")
    e("s_mov_b32 s7, 0x20000")
    e("s_cselect_b32 s12, 1344, 1")
    e("s_lshl_b32 s12, s12, 7")
    e("s_add_u32 s3, s80, 2")
    e("s_mul_i32 s13, s12, s3")
    e("s_mul_i32 s15, s12, 6")
    e("s_lshl_b32 s12, s12, 1")
def pf_step(vm):
    e(f"buffer_load_dword v30, v10, s[4:7], s13 offen {PFPOL}")
    vm.issue("pf")
    e("s_add_u32 s13, s13, s12")
    e("s_min_u32 s13, s13, s15")
def slp(n):
    while n > 0:
        e(f"s_sleep {min(n, 127)}"); n -= 127
def pf_pre(vm):
    slp(PFT0)
    sk = uid("PFS")
    e("s_cmp_eq_u32 s80, 0")
    e(f"s_cbranch_scc1 {sk}")
    slp(PFD)
    lab(sk)
    pf_step(vm)
    slp(2*PFD)
    pf_step(vm)
    if PF2 == "t":
        slp(2*PFD)
        pf_step(vm)
PFA = os.environ.get("PFA", "0") == "1"
PFAM = int(os.environ.get("PFAM", "3"))
PFNQ = os.environ.get("PFNQ", "1") == "1"
PFW4S = [int(x) for x in os.environ.get("PFW4", "4,4").split(",")]
if len(PFW4S) == 1: PFW4S = PFW4S*2
PFR = int(os.environ.get("PFR", "0"))
PFRO = int(os.environ.get("PFRO", "0"))
PFG = int(os.environ.get("PFG", "128"))
PFN = int(os.environ.get("PFN", "7"))
LDL = int(os.environ.get("LDL", "0"))
def pfa_setup(isB):
    e("s_lshl_b32 s3, s23, 6")
    e("v_add_u32 v5, s3, v2")
    e("v_lshlrev_b32 v10, 7, v5")
    if not isB and PFNQ:
        e("v_min_u32 v6, 895, v5")
        e("v_mul_u32_u24 v7, 4682, v6")
        e("v_lshrrev_b32 v7, 16, v7")
        e("v_mul_u32_u24 v7, 896, v7")
        e("v_lshl_add_u32 v10, v6, 7, v7")
        e("v_add_u32 v10, 896, v10")
    e(f"v_subrev_u32 v5, {1344+16}, v5")
    e("v_min_i32 v5, 511, v5")
    e("s_and_b32 s3, s22, 3")
    e("s_lshl_b32 s3, s3, 9")
    e("v_add_u32 v5, s3, v5")
    e("v_max_i32 v5, 0, v5")
    e("v_mul_u32_u24 v5, 896, v5")
    e("s_cmp_lt_u32 s23, 21")
    e("s_cselect_b64 vcc, -1, 0")
    e("v_cndmask_b32 v10, v5, v10, vcc")
    e("s_add_u32 s80, s81, s48")
def pfa_issue(vm, isB):
    PFW4 = PFW4S[isB]
    e("s_cmp_lt_u32 s23, 21")
    e("s_cselect_b32 s4, s32, s28")
    e("s_cselect_b32 s5, s33, s29")
    e("s_cselect_b32 s6, s34, s30")
    e("s_mov_b32 s7, 0x20000")
    e("s_cselect_b32 s12, 1344, 1")
    e("s_lshl_b32 s12, s12, 7")
    sk = uid("PFK")
    if PFW4 < 4:
        e(f"s_cmp_ge_u32 s48, {PFW4}")
        e(f"s_cbranch_scc1 {sk}")
    for k in range(2):
        if k == 1:
            if PFN <= 4: break
            e("s_add_u32 s80, s80, 4")
        e("s_cmp_ge_u32 s80, 7")
        e("s_cselect_b32 s3, 7, 0")
        e("s_sub_u32 s80, s80, s3")
        e("s_mul_i32 s13, s12, s80")
        e(f"buffer_load_dword v30, v10, s[4:7], s13 offen {PFPOL}")
        vm.issue("pf")
        if PFG == 64:
            e(f"buffer_load_dword v30, v10, s[4:7], s13 offen offset:64 {PFPOL}")
            vm.issue("pf")
    lab(sk)
CPF = int(os.environ.get("CPF", "0"))
def code_pf(vm):
    lb = uid("CPC")
    e("s_getpc_b64 s[8:9]")
    lab(lb)
    e(f"s_sub_u32 s8, s8, {lb}-{NAME}_kernel")
    e("s_subb_u32 s9, s9, 0")
    e("s_and_b32 s9, s9, 0xffff")
    e(f"s_mov_b32 s10, K_END-{NAME}_kernel")
    e("s_mov_b32 s11, 0x20000")
    e("s_lshl_b32 s3, s23, 2")
    e("s_add_u32 s3, s3, s48")
    e("s_lshl_b32 s3, s3, 10")
    e("v_lshlrev_b32 v5, 6, v2")
    e("s_mov_b64 exec, 0xffff")
    e("buffer_load_dword v30, v5, s[8:11], s3 offen")
    e("s_mov_b64 exec, -1")
    vm.issue("pf")
def pf_bar(vm, isB, ch):
    k = PFW4S[isB] + ch - PFRO
    if PFA and (PFAM >> isB) & 1 and (PFR >> isB) & 1 and PFW4S[isB] <= k < 7:
        sk = uid("PFR")
        e(f"s_cmp_eq_u32 s48, {k % 4}")
        e(f"s_cbranch_scc0 {sk}")
        e(f"s_add_u32 s80, s81, {k}")
        e("s_cmp_ge_u32 s80, 7")
        e("s_cselect_b32 s3, 7, 0")
        e("s_sub_u32 s80, s80, s3")
        e("s_mul_i32 s13, s12, s80")
        e(f"buffer_load_dword v30, v10, s[4:7], s13 offen {PFPOL}")
        lab(sk)
    if CPF == ch: code_pf(vm)
    if not PF: return
    if PFC and PF2 == str(ch): pf_step(vm)
    if PFW[isB] == ch:
        e(f"buffer_load_dword v30, v11, s[36:39], 0 offen {PFPOL}")
        vm.issue("pf")
    if not isB and PFQ == ch:
        e(f"buffer_load_dword v30, v4, s[32:35], 0 offen {PFPOL}")
        vm.issue("pf")

def compute(isB):
    lab("C_B" if isB else "C_A")
    if WST and not WST2: e("s_memrealtime s[96:97]")
    vm = VM()
    ka_rest()
    scal1(isB)
    scal2()
    comp_setup(isB)
    if PF: pf_setup(isB)
    pfa = PFA and (PFAM >> isB) & 1
    if pfa: pfa_setup(isB)
    srd_xw_pre()
    srd_rest()
    srd_xw()
    if pfa: pfa_issue(vm, isB)
    elif PF: pf_setup2(isB)
    wmark(1); wmark(2); wmark(3)
    stamp(vm, 0)
    stamp(vm, 1)
    nonce_issue(vm)
    if PRE:
        e("s_mul_i32 s3, s25, 229376")
        e("s_mul_i32 s27, s24, 896")
        e("s_add_u32 s3, s3, s27")
        e("buffer_load_dword v30, v3, s[88:91], s3 offen"); vm.issue("pre")
        e("buffer_load_dword v30, v3, s[36:39], s55 offen"); vm.issue("pre")
        if not PST: e("buffer_load_dword v30, v3, s[40:43], s59 offen"); vm.issue("pre")
    if XDW:
        e("v_lshlrev_b32 v30, 4, v0")
        e("s_lshl_b32 s3, s2, 12")
        e("s_add_u32 s3, s3, 0x1000000")
        for k in range(XDW):
            e("buffer_store_dwordx4 v[12:15], v30, s[40:43], s3 offen"); vm.issue("xdw")
            e("s_add_u32 s3, s3, 0x100000")
    if PST == 1: prestore(vm, isB)
    if PF and PFC: pf_pre(vm)
    if CPF == -1: code_pf(vm)
    gemm(vm, isB)
    stamp(vm, 3)
    if isB: epi_B(vm)
    else: epi_A(vm)
    p2(isB, True)
    p2(isB, False)

def kernel():
    lab(f"{NAME}_kernel")
    prologue()
    for lw in range(4): loader(False, lw)
    for lw in range(4): loader(True, lw)
    compute(False)
    compute(True)
    lab("K_END")
    e("s_endpgm")

HDR = open("cdna_kernels/" + NAME + ".s.ref").read().split("; @launch")[0]
kernel()
out = HDR
out += f"; @launch grid=(256,1,1) block=(512,1,1) lds={LDS_TOTAL}\n"
out += '.amdgcn_target "amdgcn-amd-amdhsa--gfx950"\n.text\n'
out += f".globl {NAME}_kernel\n.p2align 8\n.type {NAME}_kernel,@function\n"
out += "\n".join(L) + "\n"
out += f""".section .rodata,"a"
.p2align 6
.amdhsa_kernel {NAME}_kernel
  .amdhsa_next_free_vgpr 256
  .amdhsa_next_free_sgpr {102 if WST else 96}
  .amdhsa_accum_offset 144
  .amdhsa_group_segment_fixed_size 0
  .amdhsa_kernarg_size 72
  .amdhsa_user_sgpr_count 2
  .amdhsa_user_sgpr_kernarg_segment_ptr 1
  .amdhsa_system_sgpr_workgroup_id_x 1
.end_amdhsa_kernel
"""
path = sys.argv[1] if len(sys.argv) > 1 else f"cdna_kernels/{NAME}.s"
open(path, "w").write(out)
```

```python
import sys, os, struct, re
NAME = "concat_heads__linear_attn_block__sliding_local_dilated__prompt"
TLP = 0
TLQ = int(os.environ.get("TLQ", "0x400000"), 0)
OPOL = os.environ.get("OPOL", "")
TPOL = os.environ.get("TPOL", "")
ACC = 0xa00000
NON = 0x800000
AS = int(os.environ.get("AS", "128"))
XDW = int(os.environ.get("XDW", "0"))
WS_END = 0xa00000 + 512*AS if not XDW else 0x3000000
STAMP = os.environ.get("STAMP") in ("1", "2")
RT = os.environ.get("STAMP") == "2"
STB = 0x900000
LOG2E = 0x3FB8AA3B
EPS = 0x358637BD
for s in range(64*21): assert (s * 4682) >> 16 == s // 14
for s in range(32): assert (s * 37) >> 8 == s // 7
RS = 224
KVS = 14336; QS = 7168; XS = 16384
LDS_TOTAL = 163840
ROT = os.environ.get("ROT", "1") == "1"
PPOL = os.environ.get("PPOL", "nt")
ROTM = os.environ.get("ROTM", "2*p")
XM = int(os.environ.get("XM", "2"))
SWP = os.environ.get("SWP", "0") == "1"
XNOX = os.environ.get("XNOX") == "1"
XNOW = os.environ.get("XNOW") == "1"
BWM = os.environ.get("BWM", "0") == "1"
XNOR = os.environ.get("XNOR") == "1"
XNOM = os.environ.get("XNOM") == "1"
XNOL = os.environ.get("XNOL") == "1"
LAA = int(os.environ.get("LAA", "2"))
LAB = int(os.environ.get("LAB", "0"))
ROTMB = os.environ.get("ROTMB", ROTM)
XMB = int(os.environ.get("XMB", str(XM)))
W0 = os.environ.get("W0") == "1"
PRE = os.environ.get("PRE", "1") == "1"
NOQ = os.environ.get("NOQ") == "1"
L1X = os.environ.get("L1X") == "1"
DA = int(os.environ.get("DA", "4"))
DB = int(os.environ.get("DB", "5"))
def f2u(x): return struct.unpack('<I', struct.pack('<f', x))[0]
SC2 = f2u(28 ** -0.5 * 1.4426950408889634)
CNT_Z = 40 * 4
WB = 6272
def A_kv(i): return (i % 5) * 30720
def A_x(i): return (i % 5) * 30720 + KVS
def A_q(i): return 61440 + i*QS
UP = 111616
def A_wo(h): return h*WB if h < 8 else UP + (h-8)*WB
def A_scr(lw): return A_wo(12 + lw)
KVB = 50176
B_WSL = [140288, 0, 21504, 118784]
def B_kv(i): return B_WSL[i % 4]
def B_q(i): return B_WSL[i % 4] + KVS
def B_x(i): return 43008 + (i % 3) * 18432
def B_wo(h): return 61440 + h*WB
assert B_wo(8) == UP
FLG = 161792
RED_A = 61440; RED_B = 0
EPO = NON + 0x10000

L = []
def e(s): L.append("    " + s)
def lab(s): L.append(s + ":")
def c(s): L.append("    ; " + s)
_uid = [0]
def uid(p):
    _uid[0] += 1
    return f"{p}_{_uid[0]}"

class CNT:
    def __init__(self, kind, mx): self.ops = []; self.kind = kind; self.mx = mx
    def issue(self, tag): self.ops.append(tag)
    def n(self, tag):
        idx = max(i for i, t in enumerate(self.ops) if t == tag)
        return min(len(self.ops) - 1 - idx, self.mx)
    def wait(self, tag): e(f"s_waitcnt {self.kind}({self.n(tag)})")
def VM(): return CNT("vmcnt", 63)
def LG(): return CNT("lgkmcnt", 15)

SIDS = [int(x) for x in os.environ["SIDS"].split(",")] if os.environ.get("SIDS") else None
def stamp(vm, i, r=28):
    if not STAMP: return
    if SIDS is not None and i not in SIDS: return
    if i in (1, 2):
        e(f"v_mov_b32 v{r}, s94")
    else:
        e("s_memrealtime s[72:73]" if RT else "s_memtime s[72:73]")
        e("s_waitcnt lgkmcnt(0)")
        e(f"v_mov_b32 v{r}, s72")
    e("s_lshl_b32 s74, s2, 8")
    e(f"s_add_u32 s74, s74, {STB + i*4}")
    e(f"v_and_b32 v{r+1}, 0xff, v0")
    e(f"v_cmp_eq_u32 s[76:77], 0, v{r+1}")
    e("s_mov_b64 exec, s[76:77]")
    e(f"buffer_store_dword v{r}, v{r+1}, s[40:43], s74 offen")
    e("s_mov_b64 exec, -1")
    if vm is not None: vm.issue("stamp")

WST = os.environ.get("WST") in ("1", "2")
WST2 = os.environ.get("WST") == "2"
def wmark(k):
    if not WST: return
    e("s_memrealtime s[72:73]")
    e("s_waitcnt lgkmcnt(0)")
    e(f"s_mov_b32 s{96+k}, s72")
def wdump(vm):
    if not WST: return
    e("s_lshl_b32 s74, s2, 9")
    e("s_lshl_b32 s75, s48, 6")
    e("s_add_u32 s74, s74, s75")
    e("s_add_u32 s74, s74, 0x910000")
    e("s_mov_b64 exec, 1")
    e("v_mov_b32 v28, s94")
    e("buffer_store_dword v28, off, s[40:43], s74")
    for k in range(6):
        e(f"v_mov_b32 v28, s{96+k}")
        e(f"buffer_store_dword v28, off, s[40:43], s74 offset:{4+k*4}")
        if vm is not None: vm.issue("stamp")
    e("s_mov_b64 exec, -1")
    if vm is not None: vm.issue("stamp")

def phi_pair(dst, a, b, t):
    assert b == a + 1 and a % 2 == 0 and t % 2 == 0
    return [f"v_pk_mul_f32 v[{t}:{t+1}], v[{a}:{b}], s[70:71]",
            f"v_exp_f32 v{t}, v{t} clamp",
            f"v_exp_f32 v{t+1}, v{t+1} clamp",
            f"v_max_f32 v{a}, 0, v{a}",
            f"v_max_f32 v{b}, 0, v{b}",
            f"v_pk_add_f32 v[{t}:{t+1}], v[{t}:{t+1}], v[{a}:{b}]",
            f"v_cvt_pk_bf16_f32 v{dst}, v{t}, v{t+1}"]
def ilv(seqs):
    for i in range(max(len(q) for q in seqs)):
        for q in seqs:
            if i < len(q): e(q[i])

def srd(base, lo, hi, nbytes):
    e(f"s_mov_b32 s{base}, s{lo}")
    e(f"s_and_b32 s{base+1}, s{hi}, 0xffff")
    e(f"s_mov_b32 s{base+2}, 0x{nbytes:x}")
    e(f"s_mov_b32 s{base+3}, 0x20000")

def srd23(base, nbytes):
    e(f"s_mov_b32 s{base+2}, 0x{nbytes:x}")
    e(f"s_mov_b32 s{base+3}, 0x20000")
def ka_rest():
    e("s_load_dwordx2 s[40:41], s[0:1], 64")
    e("s_load_dwordx2 s[88:89], s[0:1], 48")
    e("s_load_dwordx2 s[44:45], s[0:1], 56")
def srd_xw_pre():
    srd23(28, 2048*896)
    srd23(32, 448*2688)
def srd_xw():
    e("s_waitcnt lgkmcnt(0)")
    e("s_and_b32 s29, s29, 0xffff")
    e("s_and_b32 s33, s33, 0xffff")
def srd_rest():
    srd23(40, WS_END)
    srd23(36, 448*896)
    srd23(44, 256)
    srd23(88, 2048*1792)
    e("s_waitcnt lgkmcnt(0)")
    for b in (40, 36, 44, 88): e(f"s_and_b32 s{b+1}, s{b+1}, 0xffff")

LPRIO = int(os.environ.get("LPRIO", "3"))
CSLP = int(os.environ.get("CSLP", "0"))
CPE = int(os.environ.get("CPE", "0"))
PP = os.environ.get("PP", "0") == "1"
PPT = int(os.environ.get("PPT", "4"))
PPT0 = int(os.environ.get("PPT0", "2"))
PPT2 = int(os.environ.get("PPT2", "4"))
PPW = os.environ.get("PPW", "1") == "1"
def pp_common():
    e("s_lshr_b32 s23, s2, 3")
    e("s_and_b32 s27, s2, 3")
    e("s_lshl_b32 s3, s23, 6")
    e("v_add_u32 v5, s3, v2")
    e("s_movk_i32 s3, 1343")
    e("s_cmp_eq_u32 s24, 0")
    e("s_cselect_b32 s3, 895, s3")
    e("s_cselect_b32 s12, 896, 0")
    e("v_min_u32 v6, s3, v5")
    e("v_mul_u32_u24 v7, 4682, v6")
    e("v_lshrrev_b32 v7, 16, v7")
    e("v_add_u32 v7, 1, v7")
    e("v_mul_u32_u24 v7, s12, v7")
    e("v_lshl_add_u32 v10, v6, 7, v7")
    e(f"v_subrev_u32 v5, {1344+16}, v5")
    e("v_min_i32 v5, 511, v5")
    e("s_lshl_b32 s3, s27, 9")
    e("v_add_u32 v5, s3, v5")
    e("v_max_i32 v5, 0, v5")
    e("v_mul_u32_u24 v5, 896, v5")
    e(f"s_mul_i32 s80, s27, {XM}")
    e("s_cmp_lt_u32 s23, 21")
    e("s_cselect_b64 vcc, -1, 0")
    e("v_cndmask_b32 v10, v5, v10, vcc")
    e(f"s_cselect_b32 s6, 0x{448*2688:x}, s23")
    e(f"s_cselect_b32 s6, s6, 0x{2048*896:x}")
    e("s_mov_b32 s7, 0x20000")
    e("s_cselect_b32 s12, 1344, 1")
    e("s_lshl_b32 s12, s12, 7")
    e("s_mul_i32 s13, s12, s80")
    e("s_cmp_lt_u32 s23, 21")
    e("s_waitcnt lgkmcnt(0)")
    e("s_cselect_b32 s4, s32, s28")
    e("s_cselect_b32 s5, s33, s29")
    e("s_and_b32 s5, s5, 0xffff")
def pp_issue(sw, k):
    e(f"s_add_u32 s13, s80, {sw}")
    e(f"s_add_u32 s13, s13, {k}")
    e("s_cmp_ge_u32 s13, 7")
    e("s_cselect_b32 s3, 7, 0")
    e("s_sub_u32 s13, s13, s3")
    e("s_mul_i32 s13, s12, s13")
    e("buffer_load_dword v30, v10, s[4:7], s13 offen")
def prologue():
    if STAMP or WST: e("s_memrealtime s[94:95]")
    e("s_cmp_ge_u32 s2, 256")
    e("s_cbranch_scc1 K_END")
    e("s_bfe_u32 s24, s2, 0x10002")
    e("v_lshrrev_b32 v1, 6, v0")
    if SWP: e("s_xor_b32 s24, s24, 1")
    e("s_mul_i32 s3, s24, 24")
    e("v_readfirstlane_b32 s48, v1")
    e("s_load_dwordx2 s[28:29], s[0:1], s3")
    e("s_load_dwordx2 s[32:33], s[0:1], s3 offset:8")
    e("s_load_dwordx2 s[36:37], s[0:1], s3 offset:16")
    e("v_and_b32 v2, 63, v0")
    if WST2:
        e("s_waitcnt lgkmcnt(0)")
        e("s_memrealtime s[96:97]")
    if PP: pp_common()
    e("s_bitcmp1_b32 s48, 2")
    e("s_cbranch_scc0 C_X")
    if LPRIO: e(f"s_setprio {LPRIO}")
    if PP:
        e("s_and_b32 s3, s48, 3")
        e("s_lshl_b32 s3, s3, 4")
        e("s_lshl_b64 exec, 0xffff, s3")
        e("buffer_load_dword v30, v10, s[4:7], s13 offen")
        e("s_mov_b64 exec, -1")
    e("s_cmp_eq_u32 s24, 0")
    e("s_cbranch_scc1 L_A")
    e("s_branch L_B")
    lab("C_X")
    if CPE >= 0:
        sk = uid("CPS"); lb = uid("CPC")
        if CPE:
            e(f"s_and_b32 s3, s2, {CPE << 3}")
            e(f"s_cbranch_scc1 {sk}")
        e("s_getpc_b64 s[8:9]")
        lab(lb)
        e(f"s_sub_u32 s8, s8, {lb}-{NAME}_kernel")
        e("s_subb_u32 s9, s9, 0")
        e("s_and_b32 s9, s9, 0xffff")
        e(f"s_mov_b32 s10, K_END-{NAME}_kernel")
        e("s_mov_b32 s11, 0x20000")
        e("s_cmp_eq_u32 s24, 0")
        e(f"s_cselect_b32 s3, C_A-C_B, 0")
        e("s_lshl_b32 s14, s48, 13")
        e("s_add_u32 s3, s3, s14")
        e(f"s_add_u32 s3, s3, C_B-{NAME}_kernel-8192")
        e("s_cmp_eq_u32 s48, 0")
        e("s_cselect_b32 s3, 0, s3")
        e("v_lshlrev_b32 v5, 7, v2")
        e("buffer_load_dword v30, v5, s[8:11], s3 offen")
        lab(sk)
    if PP:
        for w in range(1, 4):
            e(f"s_cmp_lt_u32 s48, {w}")
            e("s_cbranch_scc1 PP_GO")
            slp(PPT)
        lab("PP_GO")
        slp(PPT0)
        pp_issue("s48", 1)
    slp(CSLP)
    e("s_cmp_eq_u32 s24, 0")
    e("s_cbranch_scc1 C_A")
    e("s_branch C_B")

def scal1(isB):
    e("s_lshr_b32 s23, s2, 3")
    e("s_and_b32 s27, s2, 3")
    e("s_and_b32 s3, s23, 3")
    e("s_lshl2_add_u32 s25, s27, s3")
    e("s_lshr_b32 s26, s23, 2")
    e("s_mul_i32 s56, s26, 112")
    rm = ROTMB if isB else ROTM; xm = XMB if isB else XM
    m = re.fullmatch(r"(\d+)(\*p)?", rm)
    a = int(m.group(1)) if m.group(2) else 0
    assert m.group(2) or m.group(1) == "0"
    if a == xm:
        e("s_add_u32 s81, s26, s27")
        e(f"s_mul_i32 s81, s81, {a}")
    elif a == 0:
        e(f"s_mul_i32 s81, s27, {xm}")
    else:
        e(f"s_mul_i32 s81, s26, {a}")
        e(f"s_mul_i32 s3, s27, {xm}")
        e("s_add_u32 s81, s81, s3")
    mx = 7*a + 3*xm
    assert mx < 32
    if mx >= 7:
        e("s_mul_i32 s3, s81, 37")
        e("s_lshr_b32 s3, s3, 8")
        e("s_mul_i32 s3, s3, 7")
        e("s_sub_u32 s81, s81, s3")
    e("s_mov_b32 s82, s81")
def scal2():
    e("s_and_b32 s22, s2, 7")
    e("s_lshr_b32 s55, s26, 1")
    e("s_mul_i32 s55, s55, 224")
    e("s_getreg_b32 s92, hwreg(HW_REG_XCC_ID)")
    e("s_and_b32 s92, s92, 15")
    e(f"s_mov_b32 s70, 0x{LOG2E:x}")
    e(f"s_mov_b32 s71, 0x{LOG2E:x}")
    e("s_lshl_b32 s60, s24, 4")
    e("s_add_u32 s60, s60, s25")
    e("s_lshl_b32 s59, s60, 17")
    e("s_lshl_b32 s60, s60, 7")
    e(f"s_add_u32 s60, s60, 0x{NON:x}")

def nonce_issue(vm):
    e("v_mov_b32 v3, 0")
    e("buffer_load_dword v31, v3, s[40:43], s60 offen sc0 sc1")
    vm.issue("non")
def nonce_get():
    e("v_readfirstlane_b32 s93, v31")
    e("s_nop 3")
    e("s_add_u32 s93, s93, 16")
    e("s_and_b32 s61, s93, 0x7ff0")
    e("s_or_b32 s61, s61, s92")
    e("s_or_b32 s61, s61, 0x8000")
    e("s_lshl_b32 s61, s61, 16")

def div14(n):
    e(f"v_add_u32 v3, {64*n}, v2")
    e("v_mul_u32_u24 v4, 4682, v3")
    e("v_lshrrev_b32 v4, 16, v4")
    e("v_mul_u32_u24 v5, 14, v4")
    e("v_sub_u32 v3, v3, v5")
    e("v_cmp_lt_u32 vcc, 6, v3")
    e("v_cndmask_b32 v5, 0, 1, vcc")
    e("v_mul_u32_u24 v6, 7, v5")
    e("v_sub_u32 v3, v3, v6")

def w_voff(dst, n, isq):
    div14(n)
    e("v_lshrrev_b32 v6, 1, v4")
    e("v_and_b32 v6, 4, v6")
    e("v_xor_b32 v4, v4, v6")
    e("v_mul_u32_u24 v4, 2688, v4")
    if isq:
        e("v_mul_u32_u24 v5, s58, v5")
        e("v_lshl_add_u32 v3, v3, 4, v4")
        e(f"v_add_u32 v{dst}, v3, v5")
    else:
        e("v_mul_u32_u24 v5, 896, v5")
        e("v_lshl_add_u32 v3, v3, 4, v4")
        e(f"v_add3_u32 v{dst}, v3, v5, s57")

def step_hdr(sr, w=True, x=True):
    if w:
        e(f"s_mul_i32 s83, s{sr}, 172032")
        e("s_add_u32 s83, s83, s56")
    if x:
        e(f"s_lshl_b32 s85, s{sr}, 7")
        e("s_add_u32 s86, s85, 14336")
    e(f"s_add_u32 s{sr}, s{sr}, 1")
    e(f"s_cmp_eq_u32 s{sr}, 7")
    e(f"s_cselect_b32 s{sr}, 0, s{sr}")

FILL = []
FN = int(os.environ.get("FN", "24"))
def capture(fn, *a):
    global L
    sv = L; L = []
    fn(*a)
    r = L; L = sv
    FILL.extend(r)
def flush(n=10**9):
    while FILL and n > 0:
        L.append(FILL.pop(0)); n -= 1
def dma(vm, tag, voff, srd_, soff, lds):
    e(f"s_mov_b32 m0, {lds}")
    e("s_nop 0")
    e(f"buffer_load_dwordx4 v{voff}, s[{srd_}:{srd_+3}], {soff} offen lds")
    vm.issue(tag)
    flush(FN)

def wo_voffs(isB):
    for t in range(7):
        div14(t)
        e("v_min_u32 v4, 27, v4")
        e("v_cmp_lt_u32 vcc, 13, v4")
        e("v_cndmask_b32 v6, 0, 1, vcc")
        e("v_mul_u32_u24 v24, 14, v6")
        e("v_sub_u32 v4, v4, v24")
        e("v_lshrrev_b32 v24, 2, v4")
        e("v_and_b32 v25, 3, v4")
        e("v_cmp_lt_u32 vcc, 10, v4")
        e("v_cndmask_b32 v26, 0, 1, vcc")
        e("v_mul_u32_u24 v27, 3, v26")
        e("v_sub_u32 v27, v4, v27")
        e("v_subrev_u32 v27, 4, v27")
        e("v_cmp_lt_u32 vcc, 7, v4")
        e("v_cndmask_b32 v24, v24, v26, vcc")
        e("v_cndmask_b32 v25, v25, v27, vcc")
        e("v_lshl_add_u32 v24, v6, 1, v24")
        if not isB:
            e("v_mul_u32_u24 v24, 7, v24")
            e("v_add_u32 v4, v24, v25")
        else:
            e("v_lshl_add_u32 v4, v24, 2, v25")
            e("v_add_u32 v26, 12, v4")
            e("v_lshlrev_b32 v27, 2, v25")
            e("v_add_u32 v27, 3, v27")
            e("v_cmp_eq_u32 s[4:5], 3, v24")
            e("v_cndmask_b32 v26, v26, v27, s[4:5]")
            e("v_cndmask_b32 v4, v4, v26, vcc")
        e("v_mul_u32_u24 v5, 112, v5")
        e("v_mul_u32_u24 v4, 896, v4")
        e("v_lshl_add_u32 v3, v3, 4, v4")
        e(f"v_add3_u32 v{40+t}, s55, v3, v5")

def wo_block(vm, h, isB):
    base = B_wo(h) if isB else A_wo(h)
    e(f"s_mov_b32 s86, {h*28*896}")
    for t in range(7):
        if t == 6: e("s_mov_b64 exec, 0xff")
        dma(vm, "wo", 40+t, 36, "s86", base + t*1024)
    e("s_mov_b64 exec, -1")

def flg_init(lw):
    if lw == 0:
        e(f"v_mov_b32 v3, {FLG}")
        e("v_mov_b32 v4, 0")
        e("v_mov_b32 v5, 0")
        e("ds_write_b64 v3, v[4:5]")
        e("s_waitcnt lgkmcnt(0)")

SEC = int(os.environ.get("SEC", "1"))
LPR2 = int(os.environ.get("LPR2", "0"))
WF = os.environ.get("WF", "0") == "1"
def dmag(vm, tag, voff, srd_, soff, sadd, lreg, lds, fl=True):
    e(f"s_add_u32 m0, s{lreg}, {lds}")
    if sadd:
        e(f"s_add_u32 s84, {soff}, {sadd}")
        soff = "s84"
    else: e("s_nop 0")
    e(f"buffer_load_dwordx4 v{voff}, s[{srd_}:{srd_+3}], {soff} offen lds")
    vm.issue(tag)
    if fl: flush(FN)
def wo_blockg(vm, dh, isB):
    for t in range(7):
        if t == 6: e("s_mov_b64 exec, 0xff")
        dmag(vm, "wo", 40+t, 36, "s54", dh*28*896, 53, dh*WB + t*1024, False)
    e("s_mov_b64 exec, -1")
def loader(isB):
    lab(f"L_{'B' if isB else 'A'}")
    if WST and not WST2: e("s_memrealtime s[96:97]")
    vm = VM()
    SO = 32
    scal1(isB)
    e("s_and_b32 s49, s48, 3")
    e("v_lshrrev_b32 v3, 3, v2")
    e("v_lshrrev_b32 v4, 4, v2")
    e("v_and_b32 v5, 7, v2")
    e("v_xor_b32 v5, v5, v4")
    e("s_lshl_b32 s3, s25, 2")
    e("s_add_u32 s3, s3, s49")
    e("s_lshl_b32 s3, s3, 5")
    e("v_add_u32 v6, s3, v3")
    e("v_mul_u32_u24 v6, 896, v6")
    e("v_lshl_add_u32 v16, v5, 4, v6")
    e("v_xor_b32 v17, 64, v16")
    e("v_add_u32 v17, 7168, v17")
    e("s_lshl_b32 s51, s49, 12")
    e("s_lshr_b32 s3, s49, 1")
    e("s_xor_b32 s3, s3, s49")
    e("s_mul_i32 s3, s3, 10752")
    e("s_add_u32 s56, s56, s3")
    e("s_mul_i32 s50, s49, 896")
    srd_xw_pre()
    step_hdr(81)
    def wv():
        e("v_mul_u32_u24 v4, 4682, v2")
        e("v_lshrrev_b32 v4, 16, v4")
        e("v_mul_u32_u24 v6, 14, v4")
        e("v_sub_u32 v6, v2, v6")
        e("v_mul_u32_u24 v4, 2688, v4")
        e("v_cmp_lt_u32 vcc, 6, v6")
        e("v_lshl_add_u32 v4, v6, 4, v4")
        e("v_cndmask_b32 v6, 0, 1, vcc")
        e("s_movk_i32 s57, 784")
        e(f"s_mov_b32 s58, {86016-112}")
        e("v_mad_u32_u24 v8, v6, s57, v4")
        e("v_add_u32 v8, 896, v8")
        e("v_mad_u32_u24 v12, v6, s58, v4")
        if isB:
            e("s_lshl_b32 s3, s25, 7")
            e("s_sub_u32 s3, s3, 16")
            e("s_max_i32 s3, s3, 0")
            e("s_lshl2_add_u32 s3, s49, s3")
            e("v_add_u32 v6, s3, v3")
            e("v_mul_u32_u24 v6, 896, v6")
            e("s_lshl_b32 s3, s49, 1")
            e("v_xor_b32 v5, s3, v5")
            e("v_lshl_add_u32 v18, v5, 4, v6")
            e("s_lshl_b32 s52, s49, 9")
    wv()
    srd_xw()
    if PP and PPW: e("s_waitcnt vmcnt(0)")
    wmark(1)
    slp(LDL)
    def isW(i):
        e("s_mov_b32 exec_hi, 0xffffff")
        for j in range(4): dmag(vm, f"c{i}", 8, 32, "s83", j*43008, 50, (B_kv(i) if isB else A_kv(i)) + j*3584, False)
        if isB:
            for j in range(2): dmag(vm, f"c{i}", 12, 32, "s83", j*43008, 50, B_q(i) + j*3584, False)
        e("s_mov_b32 exec_hi, -1")
    def isX(i):
        xb = B_x(i) if isB else A_x(i)
        for u in range(4):
            dmag(vm, f"c{i}", 16 + (u & 1), 28, "s85" if u < 2 else "s86", 0, 51, xb + (2048 if isB else 0) + u*1024)
            if i == 0 and u == 0 and not WF: ka_rest()
        if isB:
            e("s_mov_b32 exec_hi, 0")
            dmag(vm, f"c{i}", 18, 28, "s85", 0, 52, xb, False)
            if WF: e("s_mov_b32 exec_hi, -1")
    def isC(i):
        if WF:
            isW(i)
            if i == 0: ka_rest()
            isX(i)
        else:
            isX(i); isW(i)
    def second():
        scal2()
        srd_rest()
        stamp(vm, SO + 0)
        nonce_issue(vm)
    def flg():
        e(f"v_mov_b32 v3, {FLG}")
        e("v_mov_b32 v4, 0")
        e("v_mov_b32 v5, 0")
        e("ds_write_b64 v3, v[4:5]")
        e("s_waitcnt lgkmcnt(0)")
    if isB:
        isC(0)
        wmark(2)
        if SEC == 0 or SEC == 2: second()
        if SEC != 2: step_hdr(81); isC(1)
        if SEC == 1: second()
        stamp(vm, 36)
        if LPRIO and LPR2 >= 0: e(f"s_setprio {LPR2}")
        flg()
        for i in range(7):
            if i == 0: stamp(vm, 37); wmark(3)
            vm.wait(f"c{i}")
            if i == 0: stamp(vm, 38); wmark(4)
            e("s_barrier")
            if i == 0: wmark(5); wdump(vm)
            if i == 0: capture(wo_voffs, True)
            if i == 2: nonce_get()
            if i == 0 and SEC == 2: step_hdr(81); isC(1)
            if i <= 4: step_hdr(81); isC(i+2)
            if i == 4: flush()
            if i >= 5:
                tb = 0xa860 if i == 5 else 0xec42
                e("s_lshl_b32 s3, s49, 2")
                e(f"s_lshr_b32 s52, 0x{tb:x}, s3")
                e("s_and_b32 s52, s52, 15")
                e(f"s_mul_i32 s53, s52, {WB}")
                e(f"s_add_u32 s53, s53, {B_wo(0)}")
                e(f"s_mul_i32 s54, s52, {28*896}")
                for dh in range(2): wo_blockg(vm, dh, True)
        e(f"v_mov_b32 v3, {FLG}")
        e("v_mov_b32 v4, 1")
        e("s_barrier")
        e("s_waitcnt vmcnt(0)")
        e("s_mov_b64 exec, 1")
        e("ds_add_u32 v3, v4")
        e("s_mov_b64 exec, -1")
        stamp(vm, SO + 3)
        e("s_branch P2_BL")
        return
    isC(0)
    wmark(2)
    if SEC == 1:
        step_hdr(81); isC(1)
    second()
    stamp(vm, 36)
    for r in range(4): e(f"v_mov_b32 v{4+r}, 0")
    zs = uid("ZS")
    e("s_cmp_eq_u32 s25, 0")
    e(f"s_cbranch_scc0 {zs}")
    e("s_lshl2_add_u32 s3, s26, s49")
    e(f"s_mul_i32 s3, s3, {16*AS}")
    e(f"s_add_u32 s3, s3, 0x{ACC:x}")
    e("v_lshrrev_b32 v3, 2, v2")
    e(f"v_mul_u32_u24 v3, {AS}, v3")
    e("v_and_b32 v19, 3, v2")
    e("v_lshl_add_u32 v3, v19, 5, v3")
    e("buffer_store_dwordx4 v[4:7], v3, s[40:43], s3 offen sc0 sc1")
    e("buffer_store_dwordx4 v[4:7], v3, s[40:43], s3 offen offset:16 sc0 sc1")
    lab(zs)
    if SEC == 0:
        step_hdr(81); isC(1)
    flg()
    if LPRIO and LPR2 >= 0: e(f"s_setprio {LPR2}")
    def isQ(i):
        step_hdr(82, x=False)
        for j in range(2): dmag(vm, "q", 12, 32, "s83", j*43008, 50, A_q(i) + j*3584, False)
    for i in range(7):
        if i == 0: stamp(vm, 37); wmark(3)
        vm.wait(f"c{i}")
        if i == 0: stamp(vm, 38); wmark(4)
        e("s_barrier")
        if i == 0: wmark(5); wdump(vm)
        if i == 0: capture(wo_voffs, False)
        if i == 3:
            nonce_get()
            zs = uid("ZF")
            e("s_or_b32 s3, s25, s49")
            e(f"s_cbranch_scc1 {zs}")
            e("s_lshl_b32 s3, s26, 2")
            e(f"v_mov_b32 v22, {CNT_Z}")
            e("v_mov_b32 v23, 1")
            e("s_mov_b64 exec, 1")
            e("buffer_store_dword v23, v22, s[44:47], s3 offen sc0 sc1")
            e("s_mov_b64 exec, -1")
            lab(zs)
        if i == 0 and SEC == 2: step_hdr(81); isC(1)
        if i + 2 <= 6: step_hdr(81); isC(i+2)
        if i == 4: flush()
        if i >= 5:
            e("s_mov_b32 exec_hi, 0xffffff")
            for k in (range(4) if i == 5 else range(4, 7)): isQ(k)
            e("s_mov_b32 exec_hi, -1")
    e("s_bitcmp1_b32 s49, 1")
    e("s_cbranch_scc1 T_AY")
    e("s_bitcmp1_b32 s49, 0")
    e("s_cbranch_scc1 T_A1")
    e("s_branch T_A0")
    lab("T_AY")
    e("s_bitcmp1_b32 s49, 0")
    e("s_cbranch_scc1 T_A3")
    e("s_branch T_A2")
    global VMA
    VMA = vm

def tailA(lw):
    lab(f"T_A{lw}")
    vm = VM(); vm.ops = list(VMA.ops)
    SO = 32
    isB = False
    if True:
        zl = uid("ZL"); zd = uid("ZD"); z1 = uid("Z1")
        e("s_mov_b32 s78, 0")
        e(f"v_mov_b32 v3, {CNT_Z}")
        e("s_lshl_b32 s3, s26, 2")
        e("buffer_load_dword v19, v3, s[44:47], s3 offen sc0 sc1")
        vm.issue("z")
        wo_block(vm, 8 + lw, False)
        vm.wait("z")
        e(f"s_branch {z1}")
        lab(zl)
        e("buffer_load_dword v19, v3, s[44:47], s3 offen sc0 sc1")
        e("s_waitcnt vmcnt(0)")
        lab(z1)
        e("v_readfirstlane_b32 s79, v19")
        e("s_add_u32 s78, s78, 1")
        e("s_nop 2")
        e("s_cmp_eq_u32 s79, 1")
        e(f"s_cbranch_scc1 {zd}")
        e("s_sleep 1")
        e("s_cmp_gt_u32 s78, 0x40000")
        e(f"s_cbranch_scc0 {zl}")
        lab(zd)
        hh = lw >> 1; et = lw & 1
        e("v_and_b32 v5, 15, v2")
        e("v_lshrrev_b32 v6, 4, v2")
        e("v_lshlrev_b32 v3, 4, v2")
        e(f"v_add_u32 v4, {A_scr(lw)}, v3")
        e(f"s_mul_i32 s3, s26, {64*AS}")
        e(f"s_add_u32 s57, s3, 0x{ACC + lw*16*AS:x}")
        for r in range(1, 4): e(f"s_add_u32 s{50+r}, s57, {r*AS}")
        e(f"s_add_u32 s54, s57, {8*AS}")
        e(f"v_mul_u32_u24 v8, {4*AS}, v6")
        e("v_lshl_add_u32 v8, v5, 2, v8")
        e("v_cmp_gt_u32 s[66:67], 3, v6")
        e("v_cmp_le_u32 s[64:65], 14, v5")
        e("v_cmp_gt_u32 s[68:69], 2, v5")
        e("v_and_b32 v10, 7, v2")
        e("v_lshrrev_b32 v11, 3, v2")
        e(f"v_mul_u32_u24 v9, {AS}, v11")
        e("v_lshl_add_u32 v9, v10, 4, v9")
        e("v_cmp_eq_u32 s[4:5], 3, v10")
        e("v_cmp_eq_u32 s[6:7], 4, v10")
        e("s_or_b64 s[6:7], s[6:7], s[4:5]")
        if et:
            e("v_cmp_gt_u32 s[8:9], 5, v11")
            e("s_and_b64 s[10:11], s[8:9], s[6:7]")
            e("v_cmp_eq_u32 s[12:13], 4, v11")
        else:
            e("s_mov_b64 s[10:11], s[6:7]")
        e("v_and_b32 v12, 3, v10")
        e("v_lshlrev_b32 v12, 4, v12")
        e("v_lshrrev_b32 v10, 2, v10")
        e("v_lshl_add_u32 v12, v10, 3, v12")
        e(f"v_add_u32 v12, {KVB + hh*2048}, v12")
        for j in range(2):
            e(f"v_add_u32 v13, {16*et + 8*j}, v11")
            e("v_mul_u32_u24 v14, 37, v13")
            e("v_lshrrev_b32 v14, 8, v14")
            e("v_mul_u32_u24 v15, 7, v14")
            e("v_sub_u32 v15, v13, v15")
            e("v_lshrrev_b32 v16, 2, v15")
            e("v_and_b32 v15, 3, v15")
            e("v_lshl_add_u32 v15, v14, 2, v15")
            e("v_lshl_add_u32 v15, v16, 4, v15")
            if et and j:
                e("v_cndmask_b32 v15, v15, 19, s[12:13]")
            e(f"v_lshl_add_u32 v{20+j}, v15, 6, v12")
        vm.wait("q")
        e("s_barrier")
        stamp(vm, SO + 1)
        RD = 48
        for dt in range(2):
            for w in range(2):
                r = RD + dt*16 + w*4
                e(f"ds_read_b128 v[{r}:{r+3}], v4 offset:{w*2048 + dt*1024}")
        for dt in range(2):
            e(f"s_waitcnt lgkmcnt({2-2*dt})")
            b = RD + dt*16
            for r in range(4):
                e(f"v_add_f32 v{b+r}, v{b+r}, v{b+4+r}")
            for r in range(4):
                e(f"v_cndmask_b32 v{b+r}, v{b+r}, 1.0, s[{64+4*dt}:{65+4*dt}]")
        for dt in range(2):
            e(f"buffer_atomic_add_f32 v{RD+dt*16}, v8, s[40:43], s57 offen offset:{dt*64} sc1")
        if et: e("s_mov_b64 exec, s[66:67]")
        for r in range(1, 4):
            for dt in range(2):
                e(f"buffer_atomic_add_f32 v{RD+dt*16+r}, v8, s[40:43], s{50+r} offen offset:{dt*64} sc1")
        if et: e("s_mov_b64 exec, -1")
        stamp(vm, SO + 2)
        wo_block(vm, lw, False)
        wo_block(vm, lw + 4, False)
        wo_block(vm, lw + 12, False)
        PR = 80
        lp = uid("KVL"); dn = uid("KVD")
        e("s_mov_b32 s78, 0")
        lab(lp)
        for j in range(2):
            e(f"buffer_load_dwordx4 v[{PR+j*4}:{PR+j*4+3}], v9, s[40:43], s{54 if j else 57} offen sc0 sc1")
        e("s_waitcnt vmcnt(0)")
        e(f"v_cndmask_b32 v13, v{PR}, v{PR+2}, s[4:5]")
        e("v_cmp_eq_f32 vcc, 0x41800000, v13")
        e("s_and_b64 s[14:15], vcc, s[6:7]")
        e(f"v_cndmask_b32 v13, v{PR+4}, v{PR+6}, s[4:5]")
        e("v_cmp_eq_f32 vcc, 0x41800000, v13")
        e("s_and_b64 s[16:17], vcc, s[10:11]")
        e("s_xor_b64 s[14:15], s[14:15], s[6:7]")
        e("s_xor_b64 s[16:17], s[16:17], s[10:11]")
        e("s_or_b64 s[14:15], s[14:15], s[16:17]")
        e(f"s_cbranch_scc0 {dn}")
        e("s_add_u32 s78, s78, 1")
        e("s_cmp_gt_u32 s78, 0x40000")
        e(f"s_cbranch_scc0 {lp}")
        lab(dn)
        for j in range(2):
            r = PR + j*4
            e(f"v_cvt_pk_bf16_f32 v{r}, v{r}, v{r+1}")
            e(f"v_cvt_pk_bf16_f32 v{r+1}, v{r+2}, v{r+3}")
            if et and j: e("s_mov_b64 exec, s[8:9]")
            e(f"ds_write_b64 v{20+j}, v[{r}:{r+1}]")
        if et:
            e("s_mov_b64 exec, s[12:13]")
            for k in range(1, 4):
                e(f"ds_write_b64 v21, v[{PR+4}:{PR+5}] offset:{k*256}")
            e("s_mov_b64 exec, -1")
        e("s_waitcnt lgkmcnt(0)")
        e("s_barrier")
        stamp(vm, SO + 3)
    e(f"s_branch P2_{'B' if isB else 'A'}L")

NP = int(os.environ.get("NP", "64"))
NRES = 10
SLP = int(os.environ.get("SLP", "4"))
EARLY = os.environ.get("EARLY", "0") == "1"
FPOL = os.environ.get("FPOL", "nt")
TR = os.environ.get("TR") == "1"
def tr(k):
    if TR: e(f"s_memrealtime s[{4+2*k}:{5+2*k}]")
PST = int(os.environ.get("PST", "0"))
AC = 16; OF = 44; WV = 76; ST = 124
def oreg(j, hh): return OF + (j*2+hh)*4
def wreg(j, f):
    if f >= NRES: return "v", ST + (f-NRES)*4
    i = j*NRES + f
    return ("a", i*4) if i < 28 else ("v", WV + (i-28)*4)
def rdf(j, f):
    hh, nt = divmod(f, 7)
    k, r = wreg(j, f)
    o = (2*j+hh)*WB + nt*32
    e(f"ds_read_b64_tr_b16 {k}[{r}:{r+1}], v8 offset:{o}")
    e(f"ds_read_b64_tr_b16 {k}[{r+2}:{r+3}], v9 offset:{o}")
def rd_res(kind):
    for j in range(4):
        for f in range(NRES):
            if wreg(j, f)[0] in kind: rdf(j, f)
def wo_bases(wo):
    e("v_lshrrev_b32 v7, 4, v2")
    e("v_lshrrev_b32 v3, 1, v7")
    e("v_bfe_u32 v8, v2, 2, 2")
    e("v_mul_u32_u24 v9, 14, v3")
    e("v_and_b32 v4, 1, v7")
    e("v_lshl_add_u32 v6, v4, 2, v9")
    e("v_add_u32 v6, v6, v8")
    e("v_mul_u32_u24 v5, 3, v4")
    e("v_min_u32 v8, 2, v8")
    e("v_add3_u32 v9, v9, v5, v8")
    e("v_add_u32 v9, 8, v9")
    e("v_and_b32 v5, 3, v2")
    e("v_lshlrev_b32 v5, 3, v5")
    e(f"v_add_u32 v5, {wo}, v5")
    e(f"v_mul_u32_u24 v8, {RS}, v6")
    e("v_add_u32 v8, v8, v5")
    e(f"v_mul_u32_u24 v9, {RS}, v9")
    e("v_add_u32 v9, v9, v5")
def spin_flag(off, val, cmp_):
    lp = uid("SP")
    e(f"v_mov_b32 v3, {FLG}")
    lab(lp)
    e(f"ds_read_b32 v4, v3 offset:{off}")
    e("s_waitcnt lgkmcnt(0)")
    e("v_readfirstlane_b32 s3, v4")
    e("s_nop 3")
    e(f"s_cmp_{cmp_}_u32 s3, {val}")
    e(f"s_cbranch_scc0 {lp}")
def tcol(isB, grp, t):
    return (t >> 1)*56 + (t & 1)*(24 if (not isB and grp < 2) else 32)

def accA(grp, rt, t): return 32 + (rt*4+t)*4
def accA2(grp, t, rt): return 32 + (grp-1)*32 + (t*4+rt)*4
def accB(grp, t, r):
    if grp == 0: return 32 + r*8 + t*4
    if grp == 1: return 64 + r*8 + t*4
    return 104 + t*20 + r*4

def comp_setup(isB):
    wo_bases((B_wo if isB else A_wo)(0))
    e("v_lshrrev_b32 v3, 4, v2")
    e("v_bfe_u32 v4, v2, 2, 2")
    e("v_lshl_add_u32 v4, v3, 3, v4")
    e("v_and_b32 v5, 1, v3")
    e("v_lshlrev_b32 v5, 2, v5")
    e("v_add_u32 v6, v4, v5")
    e("v_xor_b32 v7, 4, v6")
    e(f"v_mul_u32_u24 v6, {RS}, v6")
    e(f"v_mul_u32_u24 v7, {RS}, v7")
    e("v_and_b32 v5, 3, v2")
    e("v_lshl_add_u32 v14, v5, 3, v6")
    e("v_lshl_add_u32 v15, v5, 3, v7")
    e("s_and_b32 s49, s48, 1")
    e("s_lshr_b32 s50, s48, 1")
    e("s_mul_i32 s3, s49, 56")
    e("v_add_u32 v12, s3, v14")
    e("v_add_u32 v13, s3, v15")
    e("v_and_b32 v4, 15, v2")
    e("v_lshrrev_b32 v5, 1, v4")
    e("v_xor_b32 v5, v5, v3")
    e("v_lshlrev_b32 v5, 4, v5")
    e("v_lshl_add_u32 v18, v4, 7, v5")
    if isB:
        e("s_lshl_b32 s3, s50, 13")
        e("v_add_u32 v16, s3, v18")
        e("v_xor_b32 v17, 64, v16")
    else:
        e("v_lshl_add_u32 v16, v1, 12, v18")
        e("v_xor_b32 v17, 64, v16")
        e("v_xor_b32 v18, 0x1000, v16")
        e("v_xor_b32 v19, 0x1000, v17")

def gemm(vm, isB):
    lg = LG()
    D = DB if isB else DA
    NB = 12 if isB else 6
    assert D <= (5 if isB else 4)
    def bf(j):
        r = (j % NB)*4 + (0 if isB else 96); k = "a" if isB else "v"
        return (f"{k}[{r}:{r+3}]", f"{k}[{r}:{r+1}]", f"{k}[{r+2}:{r+3}]")
    def xr(ch, kk, rt):
        st = (2*ch + kk) % 3
        if isB: r = 48 + st*20 + rt*4
        elif rt < 2: r = (ch*4 + kk*2 + rt)*4
        else:
            r = 120 + st*8 + (rt-2)*4
            return f"v[{r}:{r+3}]"
        return f"a[{r}:{r+3}]"
    items = []
    for ch in range(7):
        for kk in range(2):
            for grp in ((0, 1, 2) if isB else (1, 2)):
                for t in range(2): items.append((ch, kk, grp, t))
    def sync(ch):
        if ch == 6: vm.wait("pre" if PRE else "non")
        if ch == 0: wmark(4)
        e("s_barrier")
        if ch == 0: wmark(5); wdump(vm)
        stamp(vm, 12 + ch)
        if PST == ch + 2: prestore(vm, isB)
        pf_bar(vm, isB, ch)
        wb = 20 + (ch & 1)*2
        kvb = B_kv(ch) if isB else A_kv(ch)
        xb = B_x(ch) if isB else A_x(ch)
        e(f"v_add_u32 v24, {xb}, v16")
        e(f"v_add_u32 v25, {xb}, v17")
        if not isB:
            e(f"v_add_u32 v26, {xb}, v18")
            e(f"v_add_u32 v27, {xb}, v19")
        e(f"v_add_u32 v{wb}, {kvb}, v12")
        e(f"v_add_u32 v{wb+1}, {kvb}, v13")
    def xrd(ch, kk):
        if XNOR or XNOX: return
        if isB:
            for rt in (1, 2, 3, 4, 0):
                e(f"ds_read_b128 {xr(ch,kk,rt)}, v{24+kk} offset:{rt*2048}")
                lg.issue(f"x{ch}")
        else:
            for rt in range(4):
                e(f"ds_read_b128 {xr(ch,kk,rt)}, v{24+kk+(rt>>1)*2} offset:{(rt&1)*2048}")
                lg.issue(f"x{ch}")
    def rd(j):
        ch, kk, grp, t = items[j]
        if j == 0 or items[j-1][0] != ch: sync(ch)
        if j == 0 or items[j-1][:2] != (ch, kk): xrd(ch, kk)
        wb = 20 + (ch & 1)*2
        if grp == 0: off = KVS + kk*112 + t*32
        else: off = 32*kk*RS + (grp-1)*112 + t*(24 if (not isB and grp == 1) else 32)
        for hf in range(2):
            if XNOR or (XNOW and hf): continue
            e(f"ds_read_b64_tr_b16 {bf(j)[1+hf]}, v{wb+hf} offset:{off}")
            lg.issue(f"w{j}")
    for j in range(D): rd(j)
    for j, (ch, kk, grp, t) in enumerate(items):
        if j + D < len(items): rd(j + D)
        if not XNOR: lg.wait(f"w{j}")
        if XNOM and ch > 0: continue
        tr = isB and grp < 2
        first = (ch == 0 and kk == 0)
        for r in range(5 if (isB and grp) else 4):
            a = accB(grp, t, r) if isB else accA2(grp, t, r)
            x = xr(ch, kk, r + 1 if (isB and grp == 0) else r)
            cc = "0" if first else f"v[{a}:{a+3}]"
            if tr: e(f"v_mfma_f32_16x16x32_bf16 v[{a}:{a+3}], {bf(j)[0]}, {x}, {cc}")
            else: e(f"v_mfma_f32_16x16x32_bf16 v[{a}:{a+3}], {x}, {bf(j)[0]}, {cc}")

def pass2():
    lg = LG()
    D = 6; NB = 12
    items = [(ch, kk, t) for ch in range(7) for kk in range(2) for t in range(4)]
    e(f"v_add_u32 v20, {A_q(0)}, v14")
    e(f"v_add_u32 v21, {A_q(0)}, v15")
    def rd(j):
        ch, kk, t = items[j]
        r = 96 + (j % NB)*4
        off = A_q(ch) - A_q(0) + kk*112 + tcol(False, 0, t)
        for hf in range(2):
            e(f"ds_read_b64_tr_b16 v[{r+2*hf}:{r+2*hf+1}], v{20+hf} offset:{off}")
            lg.issue(f"w{j}")
    for j in range(D): rd(j)
    for j, (ch, kk, t) in enumerate(items):
        if j + D < len(items): rd(j + D)
        lg.wait(f"w{j}")
        r = 96 + (j % NB)*4
        for rt in range(2):
            a = accA(0, rt, t); x = (ch*4 + kk*2 + rt)*4
            cc = "0" if (ch == 0 and kk == 0) else f"v[{a}:{a+3}]"
            e(f"v_mfma_f32_16x16x32_bf16 v[{a}:{a+3}], v[{r}:{r+3}], a[{x}:{x+3}], {cc}")

def tile_addr(isB, r=14):
    if isB:
        e("s_lshl_b32 s3, s50, 13")
        e("s_lshl_b32 s27, s49, 10")
        e("s_add_u32 s3, s3, s27")
        e(f"v_lshlrev_b32 v{r}, 4, v2")
        e(f"v_add_u32 v{r}, s3, v{r}")
        e(f"v_add_u32 v{r+1}, 0x1000, v{r}")
    else:
        e(f"v_lshlrev_b32 v{r}, 12, v1")
        e(f"v_lshl_add_u32 v{r}, v2, 4, v{r}")
    e("s_lshl_b32 s27, s26, 14")
    e("s_add_u32 s63, s59, s27")
PLD = os.environ.get("PLD", "0") == "1"
def prestore(vm, isB):
    if PLD:
        e("v_lshlrev_b32 v10, 7, v2")
        e("v_lshl_add_u32 v10, v1, 12, v10")
        e("s_lshl_b32 s27, s26, 14")
        e("s_add_u32 s63, s59, s27")
        e("s_mov_b64 exec, 0xffffffff")
        e("buffer_load_dword v30, v10, s[40:43], s63 offen nt")
        e("s_mov_b64 exec, -1")
        vm.issue("pre")
        return
    tile_addr(isB, 10)
    for r in range(4): e(f"v_mov_b32 v{4+r}, 0")
    for (va, off, n) in tile_regs(isB):
        e(f"buffer_store_dwordx4 v[4:7], v{va-4}, s[40:43], s63 offen offset:{off}")
        vm.issue("pre")
def tile_regs(isB):
    if isB: return [(14 + (rt >> 1), (rt & 1)*2048, 16 + rt*4) for rt in range(4)]
    return [(14, rt*2048 + hh*1024, 16 + (hh*2+rt)*4) for hh in range(2) for rt in range(2)]
def tile_store(isB, q, vm=None):
    for (va, off, n) in tile_regs(isB):
        if q: e(f"buffer_store_dwordx4 v[{n}:{n+3}], v{va}, s[40:43], s51 offen offset:{off} sc0 sc1")
        else: e(f"buffer_store_dwordx4 v[{n}:{n+3}], v{va}, s[40:43], s63 offen offset:{off} {TPOL}")
        if vm: vm.issue("Q")

def epi_A(vm):
    c("---- A epilogue ----")
    e("v_and_b32 v5, 15, v2")
    e("v_lshrrev_b32 v6, 4, v2")
    e("v_cmp_le_u32 s[64:65], 12, v5")
    e("v_mov_b32 v7, 0x3f803f80")
    e(f"s_mul_i32 s3, s49, {2*WB}")
    e("s_lshl_b32 s27, s50, 11")
    e("s_add_u32 s3, s3, s27")
    e(f"s_add_u32 s3, s3, {A_scr(0)}")
    e("v_lshlrev_b32 v3, 4, v2")
    e("v_add_u32 v4, s3, v3")
    e("s_nop 7")
    PK = 96; VV = 112; TT = 128; KP = 32
    for t in range(2):
        for pr in range(2):
            sq = []
            for r2 in range(2):
                a = accA2(1, t, pr*2 + r2)
                d = PK + (t*2+pr)*4 + r2*2
                sq.append(phi_pair(d, a, a+1, TT + r2*4))
                sq.append(phi_pair(d + 1, a+2, a+3, TT + r2*4 + 2))
            ilv(sq)
    for t in range(2):
        for rt in range(4):
            a = accA2(2, t, rt)
            d = VV + t*8 + rt*2
            e(f"v_cvt_pk_bf16_f32 v{d}, v{a}, v{a+1}")
            e(f"v_cvt_pk_bf16_f32 v{d+1}, v{a+2}, v{a+3}")
            if t & 1:
                e(f"v_cndmask_b32 v{d}, v{d}, v7, s[64:65]")
                e(f"v_cndmask_b32 v{d+1}, v{d+1}, v7, s[64:65]")
    e("s_nop 1")
    for pr in range(2):
        for et in range(2):
            for dt in range(2):
                d = KP + (et*2 + dt)*4
                va = VV + (et*2+pr)*4; pk = PK + (dt*2+pr)*4
                cc = "0" if pr == 0 else f"v[{d}:{d+3}]"
                e(f"v_mfma_f32_16x16x32_bf16 v[{d}:{d+3}], v[{va}:{va+3}], v[{pk}:{pk+3}], {cc}")
    e("s_nop 7")
    for i in range(4):
        e("s_nop 3")
        e(f"ds_write_b128 v4, v[{KP+i*4}:{KP+i*4+3}] offset:{(i>>1)*WB + (i&1)*1024}")
    e("s_waitcnt lgkmcnt(0)")
    e("s_barrier")
    stamp(vm, 4)
    pass2()
    stamp(vm, 7)
    nonce_get()
    QF = 64
    e("v_cmp_eq_u32 s[10:11], 3, v6")
    e("v_cmp_eq_u32 s[12:13], 0, v6")
    e("v_lshlrev_b32 v10, 6, v5")
    e("v_lshl_add_u32 v10, v6, 4, v10")
    e(f"v_add_u32 v10, {KVB}, v10")
    tile_addr(False)
    e("v_mov_b32 v11, 0xffff")
    e("s_nop 3")
    for t in range(4):
        sq = []
        for rt in range(2):
            a = accA(0, rt, t)
            d = QF + (rt*2 + (t >> 1))*4 + (t & 1)*2
            s0 = phi_pair(d, a, a+1, TT + rt*4)
            s1 = phi_pair(d+1, a+2, a+3, TT + rt*4 + 2)
            if t & 1: s0.append(f"v_cndmask_b32 v{d}, v{d}, 0, s[12:13]")
            else: s1.append(f"v_cndmask_b32 v{d+1}, v{d+1}, 0, s[10:11]")
            sq += [s0, s1]
        ilv(sq)
    e("s_barrier")
    stamp(vm, 10)
    R = 80
    for hh in range(2):
        for f in range(2):
            r = R + (hh*2+f)*4
            e(f"ds_read_b128 v[{r}:{r+3}], v10 offset:{hh*2048 + f*1024}")
    NR = 96
    for hh in range(2):
        e(f"s_waitcnt lgkmcnt({2 - 2*hh})")
        for rt in range(2):
            n = NR + (hh*2+rt)*8
            q = QF + (rt*2+hh)*4
            for f in (1, 0):
                r = R + (hh*2+f)*4
                e(f"v_mfma_f32_16x16x32_bf16 v[{n+f*4}:{n+f*4+3}], v[{r}:{r+3}], v[{q}:{q+3}], 0")
    if EARLY: rd_res("a")
    e("s_nop 7")
    sq = []; regs = []
    for hh in range(2):
        for rt in range(2):
            n = NR + (hh*2+rt)*8
            t = TT + (hh*2+rt)*2
            o = [f"v_add_f32 v{t}, 0x{EPS:x}, v{n+7}",
                 f"v_rcp_f32 v{t}, v{t}",
                 f"v_mov_b32 v{t+1}, v{t}"]
            for q in range(3):
                o.append(f"v_pk_mul_f32 v[{n+2*q}:{n+2*q+1}], v[{n+2*q}:{n+2*q+1}], v[{t}:{t+1}]")
            o.append(f"v_mul_f32 v{n+6}, v{n+6}, v{t}")
            T = 16 + (hh*2+rt)*4
            for q in range(3):
                o.append(f"v_cvt_pk_bf16_f32 v{T+q}, v{n+2*q}, v{n+2*q+1}")
            o.append(f"v_cvt_pk_bf16_f32 v{T+3}, v{n+6}, v{n+6}")
            o.append(f"v_and_or_b32 v{T+3}, v{T+3}, v11, s61")
            sq.append(o)
    ilv(sq)
    tile_store(False, False)
    stamp(vm, 5, 4)

def epi_B(vm):
    c("---- B epilogue ----")
    e("v_and_b32 v5, 15, v2")
    e("v_lshrrev_b32 v6, 4, v2")
    e("v_cmp_gt_u32 s[64:65], 3, v6")
    nonce_get()
    e("v_and_b32 v3, 1, v5")
    e("v_cmp_eq_u32 s[4:5], 1, v3")
    e("v_mov_b32 v10, 0xffff")
    e("v_mov_b32 v11, 0xffff0000")
    e("v_cndmask_b32 v12, v10, v11, s[4:5]")
    e("v_lshl_add_u32 v11, v6, 2, v3")
    e("v_sub_u32 v11, v11, v5")
    def KF(blk): return 64 + blk*8
    def QF(rt): return 32 + rt*8
    def VB(et): return 104 + et*20
    def cvt4(b):
        for q in range(4): e(f"v_cvt_pk_bf16_f32 v{b+q}, v{b+2*q}, v{b+2*q+1}")
    def C0(cb): return 32 + cb*8 + 4
    def C1(cb): return 64 + cb*8 + 4
    for rt in range(4):
        b = QF(rt)
        cvt4(b)
        e(f"v_cndmask_b32 v{b+2}, 0, v{b+2}, s[64:65]")
        e(f"v_cndmask_b32 v{b+3}, 0, v{b+3}, s[64:65]")
    for blk in range(5): cvt4(KF(blk))
    e("s_nop 1")
    for rt in range(4):
        q = QF(rt)
        for ti in range(2):
            k = KF(rt + ti)
            d = C0(rt) if ti == 0 else C1(rt)
            e(f"v_mfma_f32_16x16x32_bf16 v[{d}:{d+3}], v[{k}:{k+3}], v[{q}:{q+3}], 0")
    if not BWM: e("s_barrier")
    for et in range(2):
        b = VB(et)
        for blk in range(5):
            e(f"v_cvt_pk_bf16_f32 v{b+2*blk}, v{b+4*blk}, v{b+4*blk+1}")
            e(f"v_cvt_pk_bf16_f32 v{b+2*blk+1}, v{b+4*blk+2}, v{b+4*blk+3}")
    for k in range(4):
        addk = 2*k if k < 2 else 16 + 2*(k-2)
        e(f"v_add_u32 v13, {addk}, v11")
        e(f"v_cmp_le_i32 s[{6+2*k}:{7+2*k}], 2, v13")
        e(f"v_cmp_ge_i32 vcc, 16, v13")
        e(f"s_and_b64 s[{6+2*k}:{7+2*k}], s[{6+2*k}:{7+2*k}], vcc")
    e("s_or_b32 s3, s25, s50")
    e("s_cmp_eq_u32 s3, 0")
    e("s_cselect_b64 s[14:15], 0, -1")
    e("s_and_b64 s[16:17], s[6:7], s[14:15]")
    e("s_and_b64 s[18:19], s[8:9], s[14:15]")
    e("v_mov_b32 v13, 0xce6e6b28")
    e(f"s_mov_b32 s20, 0x{SC2:x}")
    tile_addr(True)
    e("v_cmp_eq_u32 s[68:69], 3, v6")
    def seq(cb):
        lgr = [C0(cb), C0(cb)+2, C1(cb), C1(cb)+2]
        m = C1(cb)+1; m2 = C1(cb)+3
        o = []
        for k in range(4):
            o.append(f"v_cndmask_b32 v{lgr[k]}, v{lgr[k]}, v{lgr[k]+1}, s[4:5]")
        for k in range(4):
            ms = (16 + 2*k) if (cb == 0 and k < 2) else (6 + 2*k)
            o.append(f"v_cndmask_b32 v{lgr[k]}, v13, v{lgr[k]}, s[{ms}:{ms+1}]")
        o.append(f"v_max3_f32 v{m}, v{lgr[0]}, v{lgr[1]}, v{lgr[2]}")
        o.append(f"v_max_f32 v{m}, v{m}, v{lgr[3]}")
        o.append(f"v_mov_b32 v{m2}, v{m}")
        o.append(f"v_permlane16_swap_b32 v{m}, v{m2}")
        o.append(f"v_max_f32 v{m}, v{m}, v{m2}")
        o.append(f"v_mov_b32 v{m2}, v{m}")
        o.append(f"v_permlane32_swap_b32 v{m}, v{m2}")
        o.append(f"v_max_f32 v{m}, v{m}, v{m2}")
        o.append(f"v_mul_f32 v{m}, 0x{SC2 ^ 0x80000000:x}, v{m}")
        for k in range(4):
            o.append(f"v_fma_f32 v{lgr[k]}, v{lgr[k]}, s20, v{m}")
        for k in range(4):
            o.append(f"v_exp_f32 v{lgr[k]}, v{lgr[k]}")
        o.append(f"v_add_f32 v{m}, v{lgr[0]}, v{lgr[1]}")
        o.append(f"v_add_f32 v{m2}, v{lgr[2]}, v{lgr[3]}")
        o.append(f"v_add_f32 v{m}, v{m}, v{m2}")
        o.append(f"v_mov_b32 v{m2}, v{m}")
        o.append(f"v_permlane16_swap_b32 v{m}, v{m2}")
        o.append(f"v_add_f32 v{m}, v{m}, v{m2}")
        o.append(f"v_mov_b32 v{m2}, v{m}")
        o.append(f"v_permlane32_swap_b32 v{m}, v{m2}")
        o.append(f"v_add_f32 v{m}, v{m}, v{m2}")
        o.append(f"v_rcp_f32 v{m}, v{m}")
        for k in range(4):
            o.append(f"v_mul_f32 v{lgr[k]}, v{lgr[k]}, v{m}")
            o.append(f"v_cvt_pk_bf16_f32 v{C0(cb)+k}, v{lgr[k]}, v{lgr[k]}")
            o.append(f"v_and_b32 v{C0(cb)+k}, v{C0(cb)+k}, v12")
        return o
    ilv([seq(cb) for cb in range(4)])
    if EARLY:
        spin_flag(0, 4, "eq")
        rd_res("a")
    e("s_nop 1")
    for rt in range(4):
        for et in (1, 0):
            o = QF(rt) if et == 0 else C1(rt)
            v = VB(et) + 2*rt
            e(f"v_mfma_f32_16x16x32_bf16 v[{o}:{o+3}], v[{v}:{v+3}], v[{C0(rt)}:{C0(rt)+3}], 0")
    e("s_nop 7")
    sq = []; regs = []
    for rt in range(4):
        o0 = QF(rt); o1 = C1(rt); t = C0(rt)
        T = 16 + rt*4
        o = [f"v_mov_b32 v{t}, v{o1+3}",
             f"v_cvt_pk_bf16_f32 v{T}, v{o0}, v{o0+1}",
             f"v_permlane32_swap_b32 v{t+1}, v{t}",
             f"v_permlane16_swap_b32 v{t+2}, v{o1+3}",
             f"v_cvt_pk_bf16_f32 v{T+1}, v{o0+2}, v{o0+3}",
             f"v_permlane16_swap_b32 v{t+3}, v{t+1}",
             f"v_cndmask_b32 v{o1+2}, v{o1+2}, v{t+2}, s[68:69]",
             f"v_cndmask_b32 v{o1+1}, v{o1+1}, v{t+1}, s[68:69]",
             f"v_cndmask_b32 v{o1}, v{o1}, v{t+3}, s[68:69]",
             f"v_cvt_pk_bf16_f32 v{T+3}, v{o1+2}, v{o1+2}",
             f"v_cvt_pk_bf16_f32 v{T+2}, v{o1}, v{o1+1}",
             f"v_and_or_b32 v{T+3}, v{T+3}, v10, s61"]
        sq.append(o)
    ilv(sq)
    tile_store(True, False)
    if BWM: e("s_barrier")
    stamp(vm, 5, 4)

def p2(isB, isC):
    lab(f"P2_{'B' if isB else 'A'}{'C' if isC else 'L'}")
    c("---- P2: wave = (16 rows, K half) x 112 cols ----")
    kh = 0 if isC else 1
    wo = (B_wo if isB else A_wo)(8*kh)
    def ld(j, pol=None):
        for hh in range(2):
            r = oreg(j, hh)
            e(f"buffer_load_dwordx4 v[{r}:{r+3}], v6, s[40:43], s{64+j} offen offset:{hh*1024} {PPOL if pol is None else pol}")
    tr(0)
    if isC:
        e(f"v_mov_b32 v3, {FLG}")
        e("v_mov_b32 v4, 1")
        e("s_mov_b64 exec, 1")
        e("ds_add_u32 v3, v4 offset:4")
        e("s_mov_b64 exec, -1")
    e("s_and_b32 s49, s48, 3")
    e("s_and_b32 s50, s26, 1")
    e("s_lshl_b32 s3, s50, 13")
    e("s_lshl_b32 s27, s49, 11")
    e("s_add_u32 s3, s3, s27")
    e("s_add_u32 s64, s59, s3")
    if kh: e("s_add_u32 s64, s64, 0x10000")
    for j in range(1, 4): e(f"s_add_u32 s{64+j}, s64, {j*16384}")
    e("v_lshlrev_b32 v6, 4, v2")
    if isC:
        for j in range(4): ld(j, FPOL)
    if not isC:
        wo_bases(wo)
        e("v_lshlrev_b32 v6, 4, v2")
    if isB and not (isC and EARLY): spin_flag(0, 4, "eq")
    rd_res("v" if (isC and EARLY) else "av")
    e("v_lshrrev_b32 v7, 4, v2")
    e("v_lshrrev_b32 v11, 1, v7")
    e("v_and_b32 v12, 1, v7")
    e("v_and_b32 v5, 15, v2")
    e("s_lshl_b32 s3, s25, 7")
    e("s_lshl_b32 s27, s50, 6")
    e("s_add_u32 s3, s3, s27")
    e("s_lshl_b32 s27, s49, 4")
    e("s_add_u32 s3, s3, s27")
    e("v_add_u32 v5, s3, v5")
    e("v_mul_u32_u24 v10, 1792, v5")
    e("s_mul_i32 s3, s24, 896")
    e("s_add_u32 s3, s3, s55")
    e("v_add_u32 v10, s3, v10")
    if kh: e("v_lshl_add_u32 v14, v7, 3, v10")
    e("v_lshl_add_u32 v10, v12, 5, v10")
    e("v_lshl_add_u32 v10, v11, 4, v10")
    e("s_mul_i32 s3, s49, 7168")
    e(f"s_add_u32 s3, s3, {RED_B if isB else RED_A}")
    e("v_add_u32 v12, s3, v6")
    for r in range(28): e(f"v_mov_b32 v{AC+r}, 0")
    e("s_mov_b32 s78, 0")
    e("s_mov_b32 s79, 15")
    e("s_mov_b32 s68, 0x10000")
    if not isC:
        e("s_waitcnt lgkmcnt(0)")
        if isB and BWM: e("s_barrier")
        else: spin_flag(4, 1, "ge")
        for j in range(4): ld(j, FPOL)
    e("s_waitcnt lgkmcnt(0)")
    stamp(None, 6 if isC else 39, 4)
    tr(1)
    top = uid("PT"); done = uid("PDN"); fb = uid("PFB")
    lab(top)
    for j in range(4):
        nx = uid("NX"); dm = uid("DM"); bad = uid("BD")
        e("s_waitcnt vmcnt(6)")
        e(f"s_bitcmp1_b32 s79, {j}")
        e(f"s_cbranch_scc0 {dm}")
        r0 = oreg(j, 0) + 3; r1 = oreg(j, 1) + 3
        e(f"v_xor_b32 v{r0}, s61, v{r0}")
        e(f"v_xor_b32 v{r1}, s61, v{r1}")
        e(f"v_or_b32 v13, v{r0}, v{r1}")
        e("v_cmp_gt_u32 vcc, s68, v13")
        e("s_cmp_eq_u64 vcc, -1")
        e(f"s_cbranch_scc0 {bad}")
        tr(2 + j)
        for f in range(NRES, 14): rdf(j, f)
        e(f"buffer_load_dword v15, off, s[40:43], s{64+j}")
        e(f"buffer_load_dword v15, off, s[40:43], s{64+j}")
        e(f"s_bitset0_b32 s79, {j}")
        for f in range(14):
            hh, nt = divmod(f, 7)
            k, wr = wreg(j, f)
            a = AC + nt*4; r = oreg(j, hh)
            if f == NRES: e("s_waitcnt lgkmcnt(0)")
            e(f"v_mfma_f32_16x16x32_bf16 v[{a}:{a+3}], {k}[{wr}:{wr+3}], v[{r}:{r+3}], v[{a}:{a+3}]")
        e("s_cmp_eq_u32 s79, 0")
        e(f"s_cbranch_scc1 {done}")
        e(f"s_branch {nx}")
        lab(bad)
        if SLP: e(f"s_sleep {SLP}")
        ld(j)
        e(f"s_branch {nx}")
        lab(dm)
        e(f"buffer_load_dword v15, off, s[40:43], s{64+j}")
        e(f"buffer_load_dword v15, off, s[40:43], s{64+j}")
        lab(nx)
    e("s_add_u32 s78, s78, 1")
    e(f"s_cmp_lt_u32 s78, {NP}")
    e(f"s_cbranch_scc1 {top}")
    nc = uid("NC"); cp = uid("CP")
    e("s_waitcnt vmcnt(0)")
    e("s_lshl_b32 s57, s24, 4")
    e("s_add_u32 s57, s57, s25")
    e("s_lshl_b32 s57, s57, 7")
    e(f"s_add_u32 s57, s57, 0x{EPO:x}")
    e(f"s_cmp_eq_u32 s78, {NP}")
    e(f"s_cbranch_scc0 {nc}")
    e("s_lshl_b32 s3, s26, 14")
    e("s_add_u32 s62, s59, s3")
    e("s_mov_b32 s69, 0")
    lab(cp)
    for half in range(2):
        rl = uid("RL")
        lab(rl)
        e("v_mov_b32 v13, 0")
        for b in range(8):
            r = OF + b*4
            e(f"s_add_u32 s3, s62, {(half*8+b)*1024}")
            e(f"buffer_load_dwordx4 v[{r}:{r+3}], v6, s[40:43], s3 offen sc0 sc1")
        e("s_waitcnt vmcnt(0)")
        for b in range(8):
            e(f"v_xor_b32 v15, s61, v{OF+b*4+3}")
            e("v_or_b32 v13, v13, v15")
        e("v_cmp_gt_u32 vcc, 0x10000, v13")
        e("s_add_u32 s69, s69, 1")
        e("s_cmp_gt_u32 s69, 0x40000")
        e(f"s_cbranch_scc1 {done}")
        e("s_cmp_eq_u64 vcc, -1")
        e(f"s_cbranch_scc0 {rl}")
        for b in range(8):
            r = OF + b*4
            e(f"s_add_u32 s3, s62, 0x{TLQ + (half*8+b)*1024:x}")
            e(f"buffer_store_dwordx4 v[{r}:{r+3}], v6, s[40:43], s3 offen sc0 sc1")
        e("s_waitcnt vmcnt(0)")
    e("s_lshl_b32 s3, s26, 2")
    e("s_add_u32 s3, s3, s57")
    e("v_mov_b32 v15, s93")
    e("buffer_store_dword v15, off, s[40:43], s3 sc0 sc1")
    e("s_mov_b32 s68, 0x100000")
    lab(nc)
    e("v_and_b32 v15, 3, v2")
    e("v_lshlrev_b32 v15, 2, v15")
    e(f"buffer_load_dword v13, v15, s[40:43], s57 offen offset:{kh*16} sc0 sc1")
    e("s_waitcnt vmcnt(0)")
    e("v_cmp_eq_u32 vcc, s93, v13")
    for j in range(4):
        e(f"s_or_b32 s3, s{64+j}, 0x{TLQ:x}")
        e(f"s_bitcmp1_b32 vcc_lo, {j}")
        e(f"s_cselect_b32 s{64+j}, s3, s{64+j}")
    for j in range(4): ld(j, "sc0 sc1")
    e("s_cmp_lt_u32 s78, 0x40000")
    e(f"s_cbranch_scc1 {top}")
    lab(done)
    tr(6)
    if STAMP and (SIDS is None or 11 in SIDS):
        stamp(None, 11 if isC else 40, 4)
        e("v_mov_b32 v4, s78")
        e("s_lshl_b32 s74, s2, 8")
        e(f"s_add_u32 s74, s74, {STB + (20+kh)*4}")
        e("v_mov_b32 v5, 0")
        e("buffer_store_dword v4, v5, s[40:43], s74 offen")
    e("s_nop 7")
    e("s_nop 7")
    snd = range(4, 7) if isC else range(0, 4)
    kp = range(0, 4) if isC else range(4, 7)
    for t in snd:
        e(f"ds_write_b128 v12, v[{AC+t*4}:{AC+t*4+3}] offset:{t*1024}")
    e("s_waitcnt lgkmcnt(0)")
    e("s_barrier")
    tr(7)
    RR = 76
    for t in kp:
        e(f"ds_read_b128 v[{RR+t*4}:{RR+t*4+3}], v12 offset:{t*1024}")
    if isC:
        sk = uid("NS")
        e("s_or_b32 s3, s26, s48")
        e("s_cmp_eq_u32 s3, 0")
        e(f"s_cbranch_scc0 {sk}")
        e("v_mov_b32 v13, s93")
        e("buffer_store_dword v13, off, s[40:43], s60 sc0 sc1")
        lab(sk)
    D = 108
    for n, t in enumerate(kp):
        e(f"s_waitcnt lgkmcnt({len(kp)-1-n})")
        a = AC + t*4; r = RR + t*4
        e(f"v_pk_add_f32 v[{a}:{a+1}], v[{a}:{a+1}], v[{r}:{r+1}]")
        e(f"v_pk_add_f32 v[{a+2}:{a+3}], v[{a+2}:{a+3}], v[{r+2}:{r+3}]")
        d = D + n*2
        e(f"v_cvt_pk_bf16_f32 v{d}, v{a}, v{a+1}")
        e(f"v_cvt_pk_bf16_f32 v{d+1}, v{a+2}, v{a+3}")
    e("s_nop 1")
    for pr in range(2 if isC else 1):
        d = D + pr*4
        e(f"v_permlane16_swap_b32 v{d}, v{d+2}")
        e(f"v_permlane16_swap_b32 v{d+1}, v{d+3}")
    e("s_nop 1")
    if isC:
        e(f"buffer_store_dwordx4 v[{D}:{D+3}], v10, s[88:91], 0 offen " + OPOL)
        e(f"buffer_store_dwordx4 v[{D+4}:{D+7}], v10, s[88:91], 0 offen offset:64 " + OPOL)
    else:
        e(f"buffer_store_dwordx4 v[{D}:{D+3}], v10, s[88:91], 0 offen offset:128 " + OPOL)
        e(f"buffer_store_dwordx2 v[{D+4}:{D+5}], v14, s[88:91], 0 offen offset:192 " + OPOL)
    stamp(None, 9 if isC else 41, 4)
    if TR:
        tr(8)
        e("s_waitcnt lgkmcnt(0)")
        e("s_lshl_b32 s74, s2, 9")
        e("s_lshl_b32 s3, s48, 6")
        e("s_add_u32 s74, s74, s3")
        e("s_add_u32 s74, s74, 0x910000")
        e("s_mov_b64 exec, 1")
        for k in range(9):
            e(f"v_mov_b32 v4, s{4+2*k}")
            e(f"buffer_store_dword v4, off, s[40:43], s74 offset:{k*4}")
        e("v_mov_b32 v4, s78")
        e(f"buffer_store_dword v4, off, s[40:43], s74 offset:36")
        e("s_mov_b64 exec, -1")
    if not isC: stamp(None, 2, 4)
    e("s_endpgm")

PF = os.environ.get("PF", "1") == "1"
PFT0 = int(os.environ.get("PFT0", "4"))
PFC = os.environ.get("PFC", "0") == "1"
PFD = int(os.environ.get("PFD", "6"))
PF2 = os.environ.get("PF2", "0")
PFW = [int(x) for x in os.environ.get("PFW", "5,2").split(",")]
PFQ = int(os.environ.get("PFQ", "-1"))
PFPOL = os.environ.get("PFPOL", "")
def pf_setup(isB):
    NW = 42 if isB else 28
    e("s_lshl_b32 s3, s23, 2")
    e("s_add_u32 s3, s3, s48")
    e("s_and_b32 s27, s3, 63")
    if PFC: e("s_lshr_b32 s80, s3, 6")
    e("s_lshl_b32 s3, s3, 6")
    e("v_add_u32 v4, s3, v2")
    e("v_min_u32 v4, 6271, v4")
    e("v_lshlrev_b32 v11, 6, v4")
    if not isB:
        e("v_mul_u32_u24 v5, 9363, v4")
        e("v_lshrrev_b32 v5, 17, v5")
        e("v_mul_u32_u24 v5, 1792, v5")
        e("v_add_u32 v4, v5, v11")
    if not PFC: return
    e("s_lshl_b32 s3, s27, 6")
    e("v_add_u32 v5, s3, v2")
    if isB:
        e("v_lshlrev_b32 v10, 6, v5")
    else:
        e("v_mul_u32_u24 v6, 2341, v5")
        e("v_lshrrev_b32 v6, 16, v6")
        e("v_mul_u32_u24 v6, 896, v6")
        e("v_lshl_add_u32 v10, v5, 6, v6")
        e("v_add_u32 v10, 896, v10")
    e(f"v_subrev_u32 v5, {NW*64}, v5")
    e("v_min_u32 v5, 1023, v5")
    e("v_lshrrev_b32 v6, 1, v5")
    e("s_and_b32 s3, s22, 3")
    e("s_lshl_b32 s3, s3, 9")
    e("v_add_u32 v6, s3, v6")
    e("v_mul_u32_u24 v6, 896, v6")
    e("v_and_b32 v5, 1, v5")
    e("v_lshl_add_u32 v6, v5, 6, v6")
    e(f"s_cmp_lt_u32 s27, {NW}")
    e("s_cselect_b64 vcc, -1, 0")
    e("v_cndmask_b32 v10, v6, v10, vcc")
def pf_setup2(isB):
    NW = 42 if isB else 28
    e(f"s_cmp_lt_u32 s27, {NW}")
    e("s_cselect_b32 s4, s32, s28")
    e("s_cselect_b32 s5, s33, s29")
    e("s_cselect_b32 s6, s34, s30")
    e("s_mov_b32 s7, 0x20000")
    e("s_cselect_b32 s12, 1344, 1")
    e("s_lshl_b32 s12, s12, 7")
    e("s_add_u32 s3, s80, 2")
    e("s_mul_i32 s13, s12, s3")
    e("s_mul_i32 s15, s12, 6")
    e("s_lshl_b32 s12, s12, 1")
def pf_step(vm):
    e(f"buffer_load_dword v30, v10, s[4:7], s13 offen {PFPOL}")
    vm.issue("pf")
    e("s_add_u32 s13, s13, s12")
    e("s_min_u32 s13, s13, s15")
def slp(n):
    while n > 0:
        e(f"s_sleep {min(n, 127)}"); n -= 127
def pf_pre(vm):
    slp(PFT0)
    sk = uid("PFS")
    e("s_cmp_eq_u32 s80, 0")
    e(f"s_cbranch_scc1 {sk}")
    slp(PFD)
    lab(sk)
    pf_step(vm)
    slp(2*PFD)
    pf_step(vm)
    if PF2 == "t":
        slp(2*PFD)
        pf_step(vm)
PFA = os.environ.get("PFA", "0") == "1"
PFAM = int(os.environ.get("PFAM", "3"))
PFNQ = os.environ.get("PFNQ", "1") == "1"
PFW4S = [int(x) for x in os.environ.get("PFW4", "4,4").split(",")]
if len(PFW4S) == 1: PFW4S = PFW4S*2
PFR = int(os.environ.get("PFR", "0"))
PFRO = int(os.environ.get("PFRO", "0"))
PFG = int(os.environ.get("PFG", "128"))
PFN = int(os.environ.get("PFN", "7"))
LDL = int(os.environ.get("LDL", "0"))
def pfa_setup(isB):
    e("s_lshl_b32 s3, s23, 6")
    e("v_add_u32 v5, s3, v2")
    e("v_lshlrev_b32 v10, 7, v5")
    if not isB and PFNQ:
        e("v_min_u32 v6, 895, v5")
        e("v_mul_u32_u24 v7, 4682, v6")
        e("v_lshrrev_b32 v7, 16, v7")
        e("v_mul_u32_u24 v7, 896, v7")
        e("v_lshl_add_u32 v10, v6, 7, v7")
        e("v_add_u32 v10, 896, v10")
    e(f"v_subrev_u32 v5, {1344+16}, v5")
    e("v_min_i32 v5, 511, v5")
    e("s_and_b32 s3, s22, 3")
    e("s_lshl_b32 s3, s3, 9")
    e("v_add_u32 v5, s3, v5")
    e("v_max_i32 v5, 0, v5")
    e("v_mul_u32_u24 v5, 896, v5")
    e("s_cmp_lt_u32 s23, 21")
    e("s_cselect_b64 vcc, -1, 0")
    e("v_cndmask_b32 v10, v5, v10, vcc")
    e("s_add_u32 s80, s81, s48")
def pfa_issue(vm, isB):
    PFW4 = PFW4S[isB]
    e("s_cmp_lt_u32 s23, 21")
    e("s_cselect_b32 s4, s32, s28")
    e("s_cselect_b32 s5, s33, s29")
    e("s_cselect_b32 s6, s34, s30")
    e("s_mov_b32 s7, 0x20000")
    e("s_cselect_b32 s12, 1344, 1")
    e("s_lshl_b32 s12, s12, 7")
    sk = uid("PFK")
    if PFW4 < 4:
        e(f"s_cmp_ge_u32 s48, {PFW4}")
        e(f"s_cbranch_scc1 {sk}")
    for k in range(2):
        if k == 1:
            if PFN <= 4: break
            e("s_add_u32 s80, s80, 4")
        e("s_cmp_ge_u32 s80, 7")
        e("s_cselect_b32 s3, 7, 0")
        e("s_sub_u32 s80, s80, s3")
        e("s_mul_i32 s13, s12, s80")
        e(f"buffer_load_dword v30, v10, s[4:7], s13 offen {PFPOL}")
        vm.issue("pf")
        if PFG == 64:
            e(f"buffer_load_dword v30, v10, s[4:7], s13 offen offset:64 {PFPOL}")
            vm.issue("pf")
    lab(sk)
CPF = int(os.environ.get("CPF", "0"))
def code_pf(vm):
    lb = uid("CPC")
    e("s_getpc_b64 s[8:9]")
    lab(lb)
    e(f"s_sub_u32 s8, s8, {lb}-{NAME}_kernel")
    e("s_subb_u32 s9, s9, 0")
    e("s_and_b32 s9, s9, 0xffff")
    e(f"s_mov_b32 s10, K_END-{NAME}_kernel")
    e("s_mov_b32 s11, 0x20000")
    e("s_lshl_b32 s3, s23, 2")
    e("s_add_u32 s3, s3, s48")
    e("s_lshl_b32 s3, s3, 10")
    e("v_lshlrev_b32 v5, 6, v2")
    e("s_mov_b64 exec, 0xffff")
    e("buffer_load_dword v30, v5, s[8:11], s3 offen")
    e("s_mov_b64 exec, -1")
    vm.issue("pf")
def pf_bar(vm, isB, ch):
    k = PFW4S[isB] + ch - PFRO
    if PFA and (PFAM >> isB) & 1 and (PFR >> isB) & 1 and PFW4S[isB] <= k < 7:
        sk = uid("PFR")
        e(f"s_cmp_eq_u32 s48, {k % 4}")
        e(f"s_cbranch_scc0 {sk}")
        e(f"s_add_u32 s80, s81, {k}")
        e("s_cmp_ge_u32 s80, 7")
        e("s_cselect_b32 s3, 7, 0")
        e("s_sub_u32 s80, s80, s3")
        e("s_mul_i32 s13, s12, s80")
        e(f"buffer_load_dword v30, v10, s[4:7], s13 offen {PFPOL}")
        lab(sk)
    if CPF == ch: code_pf(vm)
    if not PF: return
    if PFC and PF2 == str(ch): pf_step(vm)
    if PFW[isB] == ch:
        e(f"buffer_load_dword v30, v11, s[36:39], 0 offen {PFPOL}")
        vm.issue("pf")
    if not isB and PFQ == ch:
        e(f"buffer_load_dword v30, v4, s[32:35], 0 offen {PFPOL}")
        vm.issue("pf")

def compute(isB):
    lab("C_B" if isB else "C_A")
    if WST and not WST2: e("s_memrealtime s[96:97]")
    vm = VM()
    ka_rest()
    scal1(isB)
    scal2()
    comp_setup(isB)
    if PF: pf_setup(isB)
    pfa = PFA and (PFAM >> isB) & 1
    if pfa: pfa_setup(isB)
    srd_xw_pre()
    srd_rest()
    srd_xw()
    if pfa: pfa_issue(vm, isB)
    elif PF and PFC: pf_setup2(isB)
    if PP:
        sk = uid("PP2")
        e("s_cmp_ge_u32 s48, 2")
        e(f"s_cbranch_scc1 {sk}")
        slp(PPT2)
        pp_issue("s48", 5)
        lab(sk)
    wmark(1); wmark(2); wmark(3)
    stamp(vm, 0)
    stamp(vm, 1)
    nonce_issue(vm)
    if PRE:
        e("s_mul_i32 s3, s25, 229376")
        e("s_mul_i32 s27, s24, 896")
        e("s_add_u32 s3, s3, s27")
        e("buffer_load_dword v30, v3, s[88:91], s3 offen"); vm.issue("pre")
        e("buffer_load_dword v30, v3, s[36:39], s55 offen"); vm.issue("pre")
        if not PST: e("buffer_load_dword v30, v3, s[40:43], s59 offen"); vm.issue("pre")
    if XDW:
        e("v_lshlrev_b32 v30, 4, v0")
        e("s_lshl_b32 s3, s2, 12")
        e("s_add_u32 s3, s3, 0x1000000")
        for k in range(XDW):
            e("buffer_store_dwordx4 v[12:15], v30, s[40:43], s3 offen"); vm.issue("xdw")
            e("s_add_u32 s3, s3, 0x100000")
    if PST == 1: prestore(vm, isB)
    if PF and PFC: pf_pre(vm)
    if CPF == -1: code_pf(vm)
    gemm(vm, isB)
    stamp(vm, 3)
    if isB: epi_B(vm)
    else: epi_A(vm)
    p2(isB, True)
    p2(isB, False)

def kernel():
    lab(f"{NAME}_kernel")
    prologue()
    if os.environ.get("LAF") == "1":
        loader(False); loader(True)
    else:
        loader(True); loader(False)
    compute(True)
    compute(False)
    for lw in range(4): tailA(lw)
    lab("K_END")
    e("s_endpgm")

HDR = open("cdna_kernels/" + NAME + ".s.ref").read().split("; @launch")[0]
kernel()
out = HDR
out += f"; @launch grid=(256,1,1) block=(512,1,1) lds={LDS_TOTAL}\n"
out += '.amdgcn_target "amdgcn-amd-amdhsa--gfx950"\n.text\n'
out += f".globl {NAME}_kernel\n.p2align 8\n.type {NAME}_kernel,@function\n"
out += "\n".join(L) + "\n"
out += f""".section .rodata,"a"
.p2align 6
.amdhsa_kernel {NAME}_kernel
  .amdhsa_next_free_vgpr 256
  .amdhsa_next_free_sgpr {102 if WST else 96}
  .amdhsa_accum_offset 144
  .amdhsa_group_segment_fixed_size 0
  .amdhsa_kernarg_size 72
  .amdhsa_user_sgpr_count 2
  .amdhsa_user_sgpr_kernarg_segment_ptr 1
  .amdhsa_system_sgpr_workgroup_id_x 1
.end_amdhsa_kernel
"""
path = sys.argv[1] if len(sys.argv) > 1 else f"cdna_kernels/{NAME}.s"
open(path, "w").write(out)
```

```python
import sys, os, struct, re
NAME = "concat_heads__linear_attn_block__sliding_local_dilated__prompt"
TLP = 0
TLQ = int(os.environ.get("TLQ", "0x400000"), 0)
OPOL = os.environ.get("OPOL", "")
TPOL = os.environ.get("TPOL", "")
ACC = 0xa00000
NON = 0x800000
AS = int(os.environ.get("AS", "128"))
XDW = int(os.environ.get("XDW", "0"))
WS_END = 0x1c00000
PKB = 0x1000000
IMG = 43008
PK = os.environ.get("PK", "1") == "1"
GAs = [int(x) for x in os.environ.get("GA", "1,1").split(",")]
GBs = [int(x) for x in os.environ.get("GB", "2,2").split(",")]
PKP = [int(x) for x in os.environ.get("PKP", "4,5,6").split(",")]
PKF = os.environ.get("PKF", "0") == "1"
PKN = os.environ.get("PKN", "1") == "1"
if PKN: PKP = []
PKT = os.environ.get("PKT", "0") == "1"
PKNS = int(os.environ.get("PKNS", "9"))
PKNF = os.environ.get("PKNF", "0") == "1"
PKSP = os.environ.get("PKSP", "")
def order(w): return [w, 4 + w % 3, 4 + (w+1) % 3, 4 + (w+2) % 3, (w+1) & 3, (w+2) & 3, (w+3) & 3]
STAMP = os.environ.get("STAMP") in ("1", "2")
RT = os.environ.get("STAMP") == "2"
STB = 0x900000
LOG2E = 0x3FB8AA3B
EPS = 0x358637BD
for s in range(64*21): assert (s * 4682) >> 16 == s // 14
for s in range(64): assert (s * 37) >> 8 == s // 7
RS = 224
KVS = 14336; QS = 7168; XS = 16384
LDS_TOTAL = 163840
ROT = os.environ.get("ROT", "1") == "1"
PPOL = os.environ.get("PPOL", "nt")
ROTM = os.environ.get("ROTM", "2*p")
XM = int(os.environ.get("XM", "2"))
SWP = os.environ.get("SWP", "0") == "1"
XNOX = os.environ.get("XNOX") == "1"
XNOW = os.environ.get("XNOW") == "1"
BWM = os.environ.get("BWM", "0") == "1"
XNOR = os.environ.get("XNOR") == "1"
XNOM = os.environ.get("XNOM") == "1"
XNOL = os.environ.get("XNOL") == "1"
LAA = int(os.environ.get("LAA", "2"))
LAB = int(os.environ.get("LAB", "0"))
ROTMB = os.environ.get("ROTMB", ROTM)
XMB = int(os.environ.get("XMB", str(XM)))
W0 = os.environ.get("W0") == "1"
PRE = os.environ.get("PRE", "1") == "1"
NOQ = os.environ.get("NOQ") == "1"
L1X = os.environ.get("L1X") == "1"
DA = int(os.environ.get("DA", "4"))
DB = int(os.environ.get("DB", "5"))
def f2u(x): return struct.unpack('<I', struct.pack('<f', x))[0]
SC2 = f2u(28 ** -0.5 * 1.4426950408889634)
CNT_Z = 40 * 4
WB = 6272
def A_kv(i): return (i % 5) * 30720
def A_x(i): return (i % 5) * 30720 + KVS
def A_q(i): return 61440 + i*QS
UP = 111616
def A_wo(h): return h*WB if h < 8 else UP + (h-8)*WB
def A_scr(lw): return A_wo(12 + lw)
KVB = 50176
B_WSL = [140288, 0, 21504, 118784]
def B_kv(i): return B_WSL[i % 4]
def B_q(i): return B_WSL[i % 4] + KVS
def B_x(i): return 43008 + (i % 3) * 18432
def B_wo(h): return 61440 + h*WB
assert B_wo(8) == UP
FLG = 161792
RED_A = 61440; RED_B = 0
EPO = NON + 0x10000

L = []
def e(s): L.append("    " + s)
def lab(s): L.append(s + ":")
def c(s): L.append("    ; " + s)
_uid = [0]
def uid(p):
    _uid[0] += 1
    return f"{p}_{_uid[0]}"

class CNT:
    def __init__(self, kind, mx): self.ops = []; self.kind = kind; self.mx = mx
    def issue(self, tag): self.ops.append(tag)
    def n(self, tag):
        idx = max(i for i, t in enumerate(self.ops) if t == tag)
        return min(len(self.ops) - 1 - idx, self.mx)
    def wait(self, tag): e(f"s_waitcnt {self.kind}({self.n(tag)})")
def VM(): return CNT("vmcnt", 63)
def LG(): return CNT("lgkmcnt", 15)

SIDS = [int(x) for x in os.environ["SIDS"].split(",")] if os.environ.get("SIDS") else None
def stamp(vm, i, r=28):
    if not STAMP: return
    if SIDS is not None and i not in SIDS: return
    if i in (1, 2):
        e(f"v_mov_b32 v{r}, s94")
    else:
        e("s_memrealtime s[72:73]" if RT else "s_memtime s[72:73]")
        e("s_waitcnt lgkmcnt(0)")
        e(f"v_mov_b32 v{r}, s72")
    e("s_lshl_b32 s74, s2, 8")
    e(f"s_add_u32 s74, s74, {STB + i*4}")
    e(f"v_and_b32 v{r+1}, 0xff, v0")
    e(f"v_cmp_eq_u32 s[76:77], 0, v{r+1}")
    e("s_mov_b64 exec, s[76:77]")
    e(f"buffer_store_dword v{r}, v{r+1}, s[40:43], s74 offen")
    e("s_mov_b64 exec, -1")
    if vm is not None: vm.issue("stamp")

WST = os.environ.get("WST") in ("1", "2")
WST2 = os.environ.get("WST") == "2"
def wmark(k):
    if not WST: return
    e("s_memrealtime s[72:73]")
    e("s_waitcnt lgkmcnt(0)")
    e(f"s_mov_b32 s{96+k}, s72")
def wdump(vm):
    if not WST: return
    e("s_lshl_b32 s74, s2, 9")
    e("s_lshl_b32 s75, s48, 6")
    e("s_add_u32 s74, s74, s75")
    e("s_add_u32 s74, s74, 0x910000")
    e("s_mov_b64 exec, 1")
    e("v_mov_b32 v28, s94")
    e("buffer_store_dword v28, off, s[40:43], s74")
    for k in range(6):
        e(f"v_mov_b32 v28, s{96+k}")
        e(f"buffer_store_dword v28, off, s[40:43], s74 offset:{4+k*4}")
        if vm is not None: vm.issue("stamp")
    e("s_mov_b64 exec, -1")
    if vm is not None: vm.issue("stamp")

def phi_pair(dst, a, b, t):
    assert b == a + 1 and a % 2 == 0 and t % 2 == 0
    return [f"v_pk_mul_f32 v[{t}:{t+1}], v[{a}:{b}], s[70:71]",
            f"v_exp_f32 v{t}, v{t} clamp",
            f"v_exp_f32 v{t+1}, v{t+1} clamp",
            f"v_max_f32 v{a}, 0, v{a}",
            f"v_max_f32 v{b}, 0, v{b}",
            f"v_pk_add_f32 v[{t}:{t+1}], v[{t}:{t+1}], v[{a}:{b}]",
            f"v_cvt_pk_bf16_f32 v{dst}, v{t}, v{t+1}"]
def ilv(seqs):
    for i in range(max(len(q) for q in seqs)):
        for q in seqs:
            if i < len(q): e(q[i])

def srd(base, lo, hi, nbytes):
    e(f"s_mov_b32 s{base}, s{lo}")
    e(f"s_and_b32 s{base+1}, s{hi}, 0xffff")
    e(f"s_mov_b32 s{base+2}, 0x{nbytes:x}")
    e(f"s_mov_b32 s{base+3}, 0x20000")

def srd23(base, nbytes):
    e(f"s_mov_b32 s{base+2}, 0x{nbytes:x}")
    e(f"s_mov_b32 s{base+3}, 0x20000")
def ka_rest():
    e("s_load_dwordx2 s[40:41], s[0:1], 64")
    e("s_load_dwordx2 s[88:89], s[0:1], 48")
    e("s_load_dwordx2 s[44:45], s[0:1], 56")
def srd_xw_pre():
    srd23(28, 2048*896)
    srd23(32, 448*2688)
def srd_xw():
    e("s_waitcnt lgkmcnt(0)")
    e("s_and_b32 s29, s29, 0xffff")
    e("s_and_b32 s33, s33, 0xffff")
def srd_rest():
    srd23(40, WS_END)
    srd23(36, 448*896)
    srd23(44, 256)
    srd23(88, 2048*1792)
    e("s_waitcnt lgkmcnt(0)")
    for b in (40, 36, 44, 88): e(f"s_and_b32 s{b+1}, s{b+1}, 0xffff")

LPRIO = int(os.environ.get("LPRIO", "3"))
CSLP = int(os.environ.get("CSLP", "0"))
CPE = int(os.environ.get("CPE", "0"))
PP = os.environ.get("PP", "0") == "1"
PPT = int(os.environ.get("PPT", "4"))
PPT0 = int(os.environ.get("PPT0", "2"))
PPT2 = int(os.environ.get("PPT2", "4"))
PPW = os.environ.get("PPW", "1") == "1"
def pp_common():
    e("s_lshr_b32 s23, s2, 3")
    e("s_and_b32 s27, s2, 3")
    e("s_lshl_b32 s3, s23, 6")
    e("v_add_u32 v5, s3, v2")
    e("s_movk_i32 s3, 1343")
    e("s_cmp_eq_u32 s24, 0")
    e("s_cselect_b32 s3, 895, s3")
    e("s_cselect_b32 s12, 896, 0")
    e("v_min_u32 v6, s3, v5")
    e("v_mul_u32_u24 v7, 4682, v6")
    e("v_lshrrev_b32 v7, 16, v7")
    e("v_add_u32 v7, 1, v7")
    e("v_mul_u32_u24 v7, s12, v7")
    e("v_lshl_add_u32 v10, v6, 7, v7")
    e(f"v_subrev_u32 v5, {1344+16}, v5")
    e("v_min_i32 v5, 511, v5")
    e("s_lshl_b32 s3, s27, 9")
    e("v_add_u32 v5, s3, v5")
    e("v_max_i32 v5, 0, v5")
    e("v_mul_u32_u24 v5, 896, v5")
    e(f"s_mul_i32 s80, s27, {XM}")
    e("s_cmp_lt_u32 s23, 21")
    e("s_cselect_b64 vcc, -1, 0")
    e("v_cndmask_b32 v10, v5, v10, vcc")
    e(f"s_cselect_b32 s6, 0x{448*2688:x}, s23")
    e(f"s_cselect_b32 s6, s6, 0x{2048*896:x}")
    e("s_mov_b32 s7, 0x20000")
    e("s_cselect_b32 s12, 1344, 1")
    e("s_lshl_b32 s12, s12, 7")
    e("s_mul_i32 s13, s12, s80")
    e("s_cmp_lt_u32 s23, 21")
    e("s_waitcnt lgkmcnt(0)")
    e("s_cselect_b32 s4, s32, s28")
    e("s_cselect_b32 s5, s33, s29")
    e("s_and_b32 s5, s5, 0xffff")
def pp_issue(sw, k):
    e(f"s_add_u32 s13, s80, {sw}")
    e(f"s_add_u32 s13, s13, {k}")
    e("s_cmp_ge_u32 s13, 7")
    e("s_cselect_b32 s3, 7, 0")
    e("s_sub_u32 s13, s13, s3")
    e("s_mul_i32 s13, s12, s13")
    e("buffer_load_dword v30, v10, s[4:7], s13 offen")
def prologue():
    if STAMP or WST: e("s_memrealtime s[94:95]")
    e("s_cmp_ge_u32 s2, 256")
    e("s_cbranch_scc1 K_END")
    e("s_bfe_u32 s24, s2, 0x10002")
    e("v_lshrrev_b32 v1, 6, v0")
    if SWP: e("s_xor_b32 s24, s24, 1")
    e("s_mul_i32 s3, s24, 24")
    e("v_readfirstlane_b32 s48, v1")
    e("s_load_dwordx2 s[28:29], s[0:1], s3")
    e("s_load_dwordx2 s[32:33], s[0:1], s3 offset:8")
    e("s_load_dwordx2 s[36:37], s[0:1], s3 offset:16")
    e("v_and_b32 v2, 63, v0")
    if WST2:
        e("s_waitcnt lgkmcnt(0)")
        e("s_memrealtime s[96:97]")
    if PP: pp_common()
    e("s_bitcmp1_b32 s48, 2")
    e("s_cbranch_scc0 C_X")
    if LPRIO: e(f"s_setprio {LPRIO}")
    if PP:
        e("s_and_b32 s3, s48, 3")
        e("s_lshl_b32 s3, s3, 4")
        e("s_lshl_b64 exec, 0xffff, s3")
        e("buffer_load_dword v30, v10, s[4:7], s13 offen")
        e("s_mov_b64 exec, -1")
    e("s_cmp_eq_u32 s24, 0")
    e("s_cbranch_scc1 L_A")
    e("s_branch L_B")
    lab("C_X")
    if CPE >= 0:
        sk = uid("CPS"); lb = uid("CPC")
        if CPE:
            e(f"s_and_b32 s3, s2, {CPE << 3}")
            e(f"s_cbranch_scc1 {sk}")
        e("s_getpc_b64 s[8:9]")
        lab(lb)
        e(f"s_sub_u32 s8, s8, {lb}-{NAME}_kernel")
        e("s_subb_u32 s9, s9, 0")
        e("s_and_b32 s9, s9, 0xffff")
        e(f"s_mov_b32 s10, K_END-{NAME}_kernel")
        e("s_mov_b32 s11, 0x20000")
        e("s_cmp_eq_u32 s24, 0")
        e(f"s_cselect_b32 s3, C_A-C_B, 0")
        e("s_lshl_b32 s14, s48, 13")
        e("s_add_u32 s3, s3, s14")
        e(f"s_add_u32 s3, s3, C_B-{NAME}_kernel-8192")
        e("s_cmp_eq_u32 s48, 0")
        e("s_cselect_b32 s3, 0, s3")
        e("v_lshlrev_b32 v5, 7, v2")
        e("buffer_load_dword v30, v5, s[8:11], s3 offen")
        lab(sk)
    if PP:
        for w in range(1, 4):
            e(f"s_cmp_lt_u32 s48, {w}")
            e("s_cbranch_scc1 PP_GO")
            slp(PPT)
        lab("PP_GO")
        slp(PPT0)
        pp_issue("s48", 1)
    slp(CSLP)
    e("s_cmp_eq_u32 s24, 0")
    e("s_cbranch_scc1 C_A")
    e("s_branch C_B")

def scal1(isB):
    e("s_lshr_b32 s23, s2, 3")
    e("s_and_b32 s27, s2, 3")
    e("s_and_b32 s3, s23, 3")
    e("s_lshl2_add_u32 s25, s27, s3")
    e("s_lshr_b32 s26, s23, 2")
    e("s_mul_i32 s56, s26, 112")
    if PK:
        ga = GAs[isB]; gb = GBs[isB]
        e("s_mov_b32 s80, s3")
        e(f"s_mul_i32 s81, s27, {gb}")
        if ga:
            e(f"s_mul_i32 s3, s26, {ga}")
            e("s_add_u32 s81, s81, s3")
        e("s_add_u32 s81, s81, s80")
        assert 3 + 7*ga + 3*gb < 64
        e("s_mul_i32 s3, s81, 37")
        e("s_lshr_b32 s3, s3, 8")
        e("s_mul_i32 s3, s3, 7")
        e("s_sub_u32 s81, s81, s3")
        return
    rm = ROTMB if isB else ROTM; xm = XMB if isB else XM
    m = re.fullmatch(r"(\d+)(\*p)?", rm)
    a = int(m.group(1)) if m.group(2) else 0
    assert m.group(2) or m.group(1) == "0"
    if a == xm:
        e("s_add_u32 s81, s26, s27")
        e(f"s_mul_i32 s81, s81, {a}")
    elif a == 0:
        e(f"s_mul_i32 s81, s27, {xm}")
    else:
        e(f"s_mul_i32 s81, s26, {a}")
        e(f"s_mul_i32 s3, s27, {xm}")
        e("s_add_u32 s81, s81, s3")
    mx = 7*a + 3*xm
    assert mx < 32
    if mx >= 7:
        e("s_mul_i32 s3, s81, 37")
        e("s_lshr_b32 s3, s3, 8")
        e("s_mul_i32 s3, s3, 7")
        e("s_sub_u32 s81, s81, s3")
    e("s_mov_b32 s82, s81")
def scal2():
    e("s_and_b32 s22, s2, 7")
    e("s_lshr_b32 s55, s26, 1")
    e("s_mul_i32 s55, s55, 224")
    e("s_getreg_b32 s92, hwreg(HW_REG_XCC_ID)")
    e("s_and_b32 s92, s92, 15")
    e(f"s_mov_b32 s70, 0x{LOG2E:x}")
    e(f"s_mov_b32 s71, 0x{LOG2E:x}")
    e("s_lshl_b32 s60, s24, 4")
    e("s_add_u32 s60, s60, s25")
    e("s_lshl_b32 s59, s60, 17")
    e("s_lshl_b32 s60, s60, 7")
    e(f"s_add_u32 s60, s60, 0x{NON:x}")

def nonce_issue(vm):
    e("v_mov_b32 v3, 0")
    e("buffer_load_dword v31, v3, s[40:43], s60 offen sc0 sc1")
    vm.issue("non")
def nonce_get():
    e("v_readfirstlane_b32 s93, v31")
    e("s_nop 3")
    e("s_add_u32 s93, s93, 16")
    e("s_and_b32 s61, s93, 0x7ff0")
    e("s_or_b32 s61, s61, s92")
    e("s_or_b32 s61, s61, 0x8000")
    e("s_lshl_b32 s61, s61, 16")

def div14(n):
    e(f"v_add_u32 v3, {64*n}, v2")
    e("v_mul_u32_u24 v4, 4682, v3")
    e("v_lshrrev_b32 v4, 16, v4")
    e("v_mul_u32_u24 v5, 14, v4")
    e("v_sub_u32 v3, v3, v5")
    e("v_cmp_lt_u32 vcc, 6, v3")
    e("v_cndmask_b32 v5, 0, 1, vcc")
    e("v_mul_u32_u24 v6, 7, v5")
    e("v_sub_u32 v3, v3, v6")

def w_voff(dst, n, isq):
    div14(n)
    e("v_lshrrev_b32 v6, 1, v4")
    e("v_and_b32 v6, 4, v6")
    e("v_xor_b32 v4, v4, v6")
    e("v_mul_u32_u24 v4, 2688, v4")
    if isq:
        e("v_mul_u32_u24 v5, s58, v5")
        e("v_lshl_add_u32 v3, v3, 4, v4")
        e(f"v_add_u32 v{dst}, v3, v5")
    else:
        e("v_mul_u32_u24 v5, 896, v5")
        e("v_lshl_add_u32 v3, v3, 4, v4")
        e(f"v_add3_u32 v{dst}, v3, v5, s57")

def step_hdr(sr, w=True, x=True, first=False):
    if PK:
        if first: c_ = f"s{sr}"
        else:
            e(f"s_and_b32 s3, s{sr}, 15")
            e(f"s_lshr_b32 s{sr}, s{sr}, 4")
            c_ = "s3"
        if w:
            e(f"s_mul_i32 s83, {c_}, 172032")
            e("s_add_u32 s83, s83, s56")
        if x:
            e(f"s_lshl_b32 s85, {c_}, 7")
            e("s_add_u32 s86, s85, 14336")
        return
    if w:
        e(f"s_mul_i32 s83, s{sr}, 172032")
        e("s_add_u32 s83, s83, s56")
    if x:
        e(f"s_lshl_b32 s85, s{sr}, 7")
        e("s_add_u32 s86, s85, 14336")
    e(f"s_add_u32 s{sr}, s{sr}, 1")
    e(f"s_cmp_eq_u32 s{sr}, 7")
    e(f"s_cselect_b32 s{sr}, 0, s{sr}")
def mk_table():
    T = [sum(order(w)[i] << (4*i) for i in range(7)) for w in range(4)]
    e(f"s_mov_b32 s82, 0x{T[0]:x}")
    e(f"s_mov_b32 s3, 0x{T[2]:x}")
    e("s_bitcmp1_b32 s80, 0")
    e(f"s_cselect_b32 s82, 0x{T[1]:x}, s82")
    e(f"s_cselect_b32 s3, 0x{T[3]:x}, s3")
    e("s_bitcmp1_b32 s80, 1")
    e("s_cselect_b32 s82, s3, s82")
    e("s_sub_u32 s81, s81, s80")
    e("s_cselect_b32 s3, 7, 0")
    e("s_add_u32 s81, s81, s3")
    e("s_mul_i32 s81, s81, 0x1111111")
    e("s_add_u32 s82, s82, s81")
    e("s_add_u32 s3, s82, 0x1111111")
    e("s_and_b32 s3, s3, 0x8888888")
    e("s_lshr_b32 s3, s3, 3")
    e("s_mul_i32 s3, s3, 7")
    e("s_sub_u32 s82, s82, s3")
    e("s_lshr_b32 s81, s82, 4")

FILL = []
FN = int(os.environ.get("FN", "24"))
def capture(fn, *a):
    global L
    sv = L; L = []
    fn(*a)
    r = L; L = sv
    FILL.extend(r)
def flush(n=10**9):
    while FILL and n > 0:
        L.append(FILL.pop(0)); n -= 1
def dma(vm, tag, voff, srd_, soff, lds):
    e(f"s_mov_b32 m0, {lds}")
    e("s_nop 0")
    e(f"buffer_load_dwordx4 v{voff}, s[{srd_}:{srd_+3}], {soff} offen lds")
    vm.issue(tag)
    flush(FN)

def wo_voffs(isB):
    for t in range(7):
        div14(t)
        e("v_min_u32 v4, 27, v4")
        e("v_cmp_lt_u32 vcc, 13, v4")
        e("v_cndmask_b32 v6, 0, 1, vcc")
        e("v_mul_u32_u24 v24, 14, v6")
        e("v_sub_u32 v4, v4, v24")
        e("v_lshrrev_b32 v24, 2, v4")
        e("v_and_b32 v25, 3, v4")
        e("v_cmp_lt_u32 vcc, 10, v4")
        e("v_cndmask_b32 v26, 0, 1, vcc")
        e("v_mul_u32_u24 v27, 3, v26")
        e("v_sub_u32 v27, v4, v27")
        e("v_subrev_u32 v27, 4, v27")
        e("v_cmp_lt_u32 vcc, 7, v4")
        e("v_cndmask_b32 v24, v24, v26, vcc")
        e("v_cndmask_b32 v25, v25, v27, vcc")
        e("v_lshl_add_u32 v24, v6, 1, v24")
        if not isB:
            e("v_mul_u32_u24 v24, 7, v24")
            e("v_add_u32 v4, v24, v25")
        else:
            e("v_lshl_add_u32 v4, v24, 2, v25")
            e("v_add_u32 v26, 12, v4")
            e("v_lshlrev_b32 v27, 2, v25")
            e("v_add_u32 v27, 3, v27")
            e("v_cmp_eq_u32 s[4:5], 3, v24")
            e("v_cndmask_b32 v26, v26, v27, s[4:5]")
            e("v_cndmask_b32 v4, v4, v26, vcc")
        e("v_mul_u32_u24 v5, 112, v5")
        e("v_mul_u32_u24 v4, 896, v4")
        e("v_lshl_add_u32 v3, v3, 4, v4")
        e(f"v_add3_u32 v{40+t}, s55, v3, v5")

def wo_block(vm, h, isB):
    base = B_wo(h) if isB else A_wo(h)
    e(f"s_mov_b32 s86, {h*28*896}")
    for t in range(7):
        if t == 6: e("s_mov_b64 exec, 0xff")
        dma(vm, "wo", 40+t, 36, "s86", base + t*1024)
    e("s_mov_b64 exec, -1")

def flg_init(lw):
    if lw == 0:
        e(f"v_mov_b32 v3, {FLG}")
        e("v_mov_b32 v4, 0")
        e("v_mov_b32 v5, 0")
        e("ds_write_b64 v3, v[4:5]")
        e("s_waitcnt lgkmcnt(0)")

SEC = int(os.environ.get("SEC", "1"))
WPOL = os.environ.get("WPOL", ""); XPOL = os.environ.get("XPOL", ""); OWPOL = os.environ.get("OWPOL", "")
LPR2 = int(os.environ.get("LPR2", "0"))
WF = os.environ.get("WF", "0") == "1"
def dmag(vm, tag, voff, srd_, soff, sadd, lreg, lds, fl=True):
    e(f"s_add_u32 m0, s{lreg}, {lds}")
    if sadd:
        e(f"s_add_u32 s84, {soff}, {sadd}")
        soff = "s84"
    else: e("s_nop 0")
    pol = {32: WPOL, 28: XPOL, 36: OWPOL}[srd_]
    e(f"buffer_load_dwordx4 v{voff}, s[{srd_}:{srd_+3}], {soff} offen {pol} lds")
    vm.issue(tag)
    if fl: flush(FN)
def wo_blockg(vm, dh, isB):
    for t in range(7):
        if t == 6: e("s_mov_b64 exec, 0xff")
        dmag(vm, "wo", 40+t, 36, "s54", dh*28*896, 53, dh*WB + t*1024, False)
    e("s_mov_b64 exec, -1")
def loader(isB):
    lab(f"L_{'B' if isB else 'A'}")
    if WST and not WST2: e("s_memrealtime s[96:97]")
    vm = VM()
    SO = 32
    scal1(isB)
    e("s_and_b32 s49, s48, 3")
    e("v_lshrrev_b32 v3, 3, v2")
    e("v_lshrrev_b32 v4, 4, v2")
    e("v_and_b32 v5, 7, v2")
    e("v_xor_b32 v5, v5, v4")
    e("s_lshl_b32 s3, s25, 2")
    e("s_add_u32 s3, s3, s49")
    e("s_lshl_b32 s3, s3, 5")
    e("v_add_u32 v6, s3, v3")
    e("v_mul_u32_u24 v6, 896, v6")
    e("v_lshl_add_u32 v16, v5, 4, v6")
    e("v_xor_b32 v17, 64, v16")
    e("v_add_u32 v17, 7168, v17")
    e("s_lshl_b32 s51, s49, 12")
    e("s_lshr_b32 s3, s49, 1")
    e("s_xor_b32 s3, s3, s49")
    e("s_mul_i32 s3, s3, 10752")
    e("s_add_u32 s56, s56, s3")
    e("s_mul_i32 s50, s49, 896")
    srd_xw_pre()
    step_hdr(81, first=True)
    def wv():
        e("v_mul_u32_u24 v4, 4682, v2")
        e("v_lshrrev_b32 v4, 16, v4")
        e("v_mul_u32_u24 v6, 14, v4")
        e("v_sub_u32 v6, v2, v6")
        e("v_mul_u32_u24 v4, 2688, v4")
        e("v_cmp_lt_u32 vcc, 6, v6")
        e("v_lshl_add_u32 v4, v6, 4, v4")
        e("v_cndmask_b32 v6, 0, 1, vcc")
        e("s_movk_i32 s57, 784")
        e(f"s_mov_b32 s58, {86016-112}")
        e("v_mad_u32_u24 v8, v6, s57, v4")
        e("v_add_u32 v8, 896, v8")
        e("v_mad_u32_u24 v12, v6, s58, v4")
        if isB:
            e("s_lshl_b32 s3, s25, 7")
            e("s_sub_u32 s3, s3, 16")
            e("s_max_i32 s3, s3, 0")
            e("s_lshl2_add_u32 s3, s49, s3")
            e("v_add_u32 v6, s3, v3")
            e("v_mul_u32_u24 v6, 896, v6")
            e("s_lshl_b32 s3, s49, 1")
            e("v_xor_b32 v5, s3, v5")
            e("v_lshl_add_u32 v18, v5, 4, v6")
            e("s_lshl_b32 s52, s49, 9")
    wv()
    srd_xw()
    if PP and PPW: e("s_waitcnt vmcnt(0)")
    wmark(1)
    slp(LDL)
    NPC = 6 if isB else 4
    def isW(i):
        e("s_mov_b32 exec_hi, 0xffffff")
        if PK and i in PKP:
            e(f"s_add_u32 s3, s80, {i-3}")
            e("s_and_b32 s3, s3, 3")
            e(f"s_mul_i32 s84, s3, {8*IMG}")
            e("s_add_u32 s84, s84, s16")
            e("s_bitcmp1_b32 s14, s3")
            if PKF: e("s_cmp_eq_u32 s14, 0x12345")
            e("s_cselect_b64 s[8:9], s[40:41], s[32:33]")
            e("s_cselect_b32 s10, s42, s34")
            e("s_cselect_b32 s83, s84, s83")
            e("s_cselect_b32 s17, 3584, s18")
            e("s_cselect_b64 s[12:13], -1, 0")
            if STAMP and (SIDS is None or 50 in SIDS): e(f"s_addc_u32 s19, s19, s19")
            e("v_cndmask_b32 v9, v8, v32, s[12:13]")
            if isB: e("v_cndmask_b32 v13, v12, v33, s[12:13]")
            for j in range(NPC):
                jj = j & 3
                e(f"s_add_u32 m0, s50, {(B_kv(i) if isB else A_kv(i)) + j*3584}")
                if jj == 0: e("s_nop 0")
                else: e(f"s_add_u32 s84, {'s83' if jj == 1 else 's84'}, s17")
                e(f"buffer_load_dwordx4 v{9 if j < 4 else 13}, s[8:11], {'s84' if jj else 's83'} offen lds")
                vm.issue(f"c{i}")
        else:
            for j in range(4): dmag(vm, f"c{i}", 8, 32, "s83", j*43008, 50, (B_kv(i) if isB else A_kv(i)) + j*3584, False)
            if isB:
                for j in range(2): dmag(vm, f"c{i}", 12, 32, "s83", j*43008, 50, B_q(i) + j*3584, False)
        e("s_mov_b32 exec_hi, -1")
    def pk_setup():
        e("v_lshlrev_b32 v32, 4, v2")
        e("v_add_u32 v32, s50, v32")
        if isB: e("v_add_u32 v33, 14336, v32")
        e("s_andn2_b32 s16, s2, 0x18")
        e(f"s_mul_i32 s16, s16, {IMG}")
        e(f"s_add_u32 s16, s16, 0x{PKB:x}")
        e(f"s_mul_i32 s20, s2, {IMG}")
        e(f"s_add_u32 s20, s20, 0x{PKB:x}")
        e("s_mov_b32 s18, 43008")
        e("s_mov_b32 s11, 0x20000")
        e("s_mov_b32 s19, 0")
        e("s_and_b32 s3, s92, 7")
        e("s_lshl3_add_u32 s21, s22, s3")
        e("s_or_b32 s21, s21, 0x40")
        e("v_mov_b32 v36, s21")
        e("s_lshl2_add_u32 s3, s23, s49")
        e("v_mov_b32 v37, s3")
        e("s_lshl4_add_u32 s3, s26, s49")
        e("v_and_b32 v34, 3, v2")
        e("v_lshl_add_u32 v34, v34, 2, s3")
    def pk_rd():
        b = B_kv(0) if isB else A_kv(0)
        e(f"v_add_u32 v35, {b}, v32")
        for j in range(NPC): e(f"ds_read_b128 v[{48+4*j}:{51+4*j}], v35 offset:{j*3584}")
    def pk_st():
        e("s_waitcnt lgkmcnt(0)")
        e("s_mov_b32 exec_hi, 0xffffff")
        for j in range(min(NPC, PKNS)):
            if j and not (j & 1): e(f"s_add_u32 s84, {'s20' if j == 2 else 's84'}, 7168")
            e(f"buffer_store_dwordx4 v[{48+4*j}:{51+4*j}], v32, s[40:43], {'s20' if j < 2 else 's84'} offen offset:{(j&1)*3584} {PKSP}")
            vm.issue("pub")
        e("s_mov_b32 exec_hi, -1")
    def pk_flag():
        if PKNS and not PKNF: vm.wait("pub")
        e("s_mov_b64 exec, 1")
        e("buffer_store_byte v36, v37, s[44:47], 0 offen")
        vm.issue("flag")
        e("s_mov_b64 exec, -1")
    def pk_poll(i):
        e("buffer_load_ubyte v35, v34, s[44:47], 0 offen nt")
        vm.issue(f"F{i}")
    def pk_pre(i):
        if PK and (i + 2) in PKP:
            vm.wait(f"F{i}")
            e("v_cmp_eq_u32 s[14:15], s21, v35")
        else: vm.wait(f"c{i}")
        if PK and i == 0 and not PKN: pk_rd()
    def pk_stat():
        if not (PK and STAMP and (SIDS is None or 50 in SIDS)): return
        e("s_lshl_b32 s74, s2, 8")
        e(f"s_add_u32 s74, s74, {STB + 50*4}")
        e("s_lshl_b32 s75, s49, 2")
        e("s_add_u32 s74, s74, s75")
        e("v_mov_b32 v28, s19")
        e("s_mov_b64 exec, 1")
        e("buffer_store_dword v28, off, s[40:43], s74")
        e("s_mov_b64 exec, -1")
        vm.issue("stamp")
    def pk_post(i):
        if not PK or PKN: return
        if i == 0: pk_st()
        if (i + 3) in PKP: pk_poll(i + 1)
    def isX(i):
        xb = B_x(i) if isB else A_x(i)
        for u in range(4):
            dmag(vm, f"c{i}", 16 + (u & 1), 28, "s85" if u < 2 else "s86", 0, 51, xb + (2048 if isB else 0) + u*1024)
            if i == 0 and u == 0 and not WF: ka_rest()
        if isB:
            e("s_mov_b32 exec_hi, 0")
            dmag(vm, f"c{i}", 18, 28, "s85", 0, 52, xb, False)
            if WF: e("s_mov_b32 exec_hi, -1")
    def isC(i):
        if XNOL and i >= 2:
            e("buffer_load_dword v30, off, s[40:43], 0"); vm.issue(f"c{i}")
            if PK and i == 3 and not PKN: pk_flag()
            return
        if WF:
            isW(i)
            if i == 0: ka_rest()
            isX(i)
        else:
            isX(i)
            if PK and i == 3 and not PKN: pk_flag()
            isW(i)
        if PK and i == 0: mk_table()
    def second():
        scal2()
        srd_rest()
        stamp(vm, SO + 0)
        nonce_issue(vm)
        if PK: pk_setup()
    def flg():
        e(f"v_mov_b32 v3, {FLG}")
        e("v_mov_b32 v4, 0")
        e("v_mov_b32 v5, 0")
        e("ds_write_b64 v3, v[4:5]")
        e("s_waitcnt lgkmcnt(0)")
    if isB:
        isC(0)
        wmark(2)
        if SEC == 0 or SEC == 2: second()
        if SEC != 2: step_hdr(81); isC(1)
        if SEC == 1: second()
        stamp(vm, 36)
        if LPRIO and LPR2 >= 0: e(f"s_setprio {LPR2}")
        flg()
        for i in range(7):
            if i == 0: stamp(vm, 37); wmark(3)
            if i == 0 and XNOL: wo_voffs(True)
            pk_pre(i)
            if i == 0: stamp(vm, 38); wmark(4)
            e("s_barrier")
            if i == 0: wmark(5); wdump(vm)
            pk_post(i)
            if i == 5: pk_stat()
            if i == 0 and not XNOL: capture(wo_voffs, True)
            if i == 2: nonce_get()
            if i == 0 and SEC == 2: step_hdr(81); isC(1)
            if i <= 4: step_hdr(81); isC(i+2)
            if i == 4: flush()
            if i >= 5:
                tb = 0xa860 if i == 5 else 0xec42
                e("s_lshl_b32 s3, s49, 2")
                e(f"s_lshr_b32 s52, 0x{tb:x}, s3")
                e("s_and_b32 s52, s52, 15")
                e(f"s_mul_i32 s53, s52, {WB}")
                e(f"s_add_u32 s53, s53, {B_wo(0)}")
                e(f"s_mul_i32 s54, s52, {28*896}")
                for dh in range(2): wo_blockg(vm, dh, True)
        e(f"v_mov_b32 v3, {FLG}")
        e("v_mov_b32 v4, 1")
        e("s_barrier")
        e("s_waitcnt vmcnt(0)")
        e("s_mov_b64 exec, 1")
        e("ds_add_u32 v3, v4")
        e("s_mov_b64 exec, -1")
        stamp(vm, SO + 3)
        e("s_branch P2_BL")
        return
    isC(0)
    wmark(2)
    if SEC == 1:
        step_hdr(81); isC(1)
    second()
    stamp(vm, 36)
    for r in range(4): e(f"v_mov_b32 v{4+r}, 0")
    zs = uid("ZS")
    e("s_cmp_eq_u32 s25, 0")
    e(f"s_cbranch_scc0 {zs}")
    e("s_lshl2_add_u32 s3, s26, s49")
    e(f"s_mul_i32 s3, s3, {16*AS}")
    e(f"s_add_u32 s3, s3, 0x{ACC:x}")
    e("v_lshrrev_b32 v3, 2, v2")
    e(f"v_mul_u32_u24 v3, {AS}, v3")
    e("v_and_b32 v19, 3, v2")
    e("v_lshl_add_u32 v3, v19, 5, v3")
    e("buffer_store_dwordx4 v[4:7], v3, s[40:43], s3 offen sc0 sc1")
    e("buffer_store_dwordx4 v[4:7], v3, s[40:43], s3 offen offset:16 sc0 sc1")
    lab(zs)
    if SEC == 0:
        step_hdr(81); isC(1)
    flg()
    if LPRIO and LPR2 >= 0: e(f"s_setprio {LPR2}")
    def isQ(i):
        step_hdr(82, x=False)
        for j in range(2): dmag(vm, "q", 12, 32, "s83", j*43008, 50, A_q(i) + j*3584, False)
    for i in range(7):
        if i == 0: stamp(vm, 37); wmark(3)
        if i == 0 and XNOL: wo_voffs(False)
        pk_pre(i)
        if i == 0: stamp(vm, 38); wmark(4)
        e("s_barrier")
        if i == 0: wmark(5); wdump(vm)
        pk_post(i)
        if i == 5: pk_stat()
        if i == 0 and not XNOL: capture(wo_voffs, False)
        if i == 3:
            nonce_get()
            zs = uid("ZF")
            e("s_or_b32 s3, s25, s49")
            e(f"s_cbranch_scc1 {zs}")
            e("s_lshl_b32 s3, s26, 2")
            e(f"v_mov_b32 v22, {CNT_Z}")
            e("v_mov_b32 v23, 1")
            e("s_mov_b64 exec, 1")
            e("buffer_store_dword v23, v22, s[44:47], s3 offen sc0 sc1")
            e("s_mov_b64 exec, -1")
            lab(zs)
        if i == 0 and SEC == 2: step_hdr(81); isC(1)
        if i + 2 <= 6: step_hdr(81); isC(i+2)
        if i == 4: flush()
        if i >= 5:
            e("s_mov_b32 exec_hi, 0xffffff")
            for k in (range(4) if i == 5 else range(4, 7)): isQ(k)
            e("s_mov_b32 exec_hi, -1")
    e("s_bitcmp1_b32 s49, 1")
    e("s_cbranch_scc1 T_AY")
    e("s_bitcmp1_b32 s49, 0")
    e("s_cbranch_scc1 T_A1")
    e("s_branch T_A0")
    lab("T_AY")
    e("s_bitcmp1_b32 s49, 0")
    e("s_cbranch_scc1 T_A3")
    e("s_branch T_A2")
    global VMA
    VMA = vm

def tailA(lw):
    lab(f"T_A{lw}")
    vm = VM(); vm.ops = list(VMA.ops)
    SO = 32
    isB = False
    if True:
        zl = uid("ZL"); zd = uid("ZD"); z1 = uid("Z1")
        e("s_mov_b32 s78, 0")
        e(f"v_mov_b32 v3, {CNT_Z}")
        e("s_lshl_b32 s3, s26, 2")
        e("buffer_load_dword v19, v3, s[44:47], s3 offen sc0 sc1")
        vm.issue("z")
        wo_block(vm, 8 + lw, False)
        vm.wait("z")
        e(f"s_branch {z1}")
        lab(zl)
        e("buffer_load_dword v19, v3, s[44:47], s3 offen sc0 sc1")
        e("s_waitcnt vmcnt(0)")
        lab(z1)
        e("v_readfirstlane_b32 s79, v19")
        e("s_add_u32 s78, s78, 1")
        e("s_nop 2")
        e("s_cmp_eq_u32 s79, 1")
        e(f"s_cbranch_scc1 {zd}")
        e("s_sleep 1")
        e("s_cmp_gt_u32 s78, 0x40000")
        e(f"s_cbranch_scc0 {zl}")
        lab(zd)
        hh = lw >> 1; et = lw & 1
        e("v_and_b32 v5, 15, v2")
        e("v_lshrrev_b32 v6, 4, v2")
        e("v_lshlrev_b32 v3, 4, v2")
        e(f"v_add_u32 v4, {A_scr(lw)}, v3")
        e(f"s_mul_i32 s3, s26, {64*AS}")
        e(f"s_add_u32 s57, s3, 0x{ACC + lw*16*AS:x}")
        for r in range(1, 4): e(f"s_add_u32 s{50+r}, s57, {r*AS}")
        e(f"s_add_u32 s54, s57, {8*AS}")
        e(f"v_mul_u32_u24 v8, {4*AS}, v6")
        e("v_lshl_add_u32 v8, v5, 2, v8")
        e("v_cmp_gt_u32 s[66:67], 3, v6")
        e("v_cmp_le_u32 s[64:65], 14, v5")
        e("v_cmp_gt_u32 s[68:69], 2, v5")
        e("v_and_b32 v10, 7, v2")
        e("v_lshrrev_b32 v11, 3, v2")
        e(f"v_mul_u32_u24 v9, {AS}, v11")
        e("v_lshl_add_u32 v9, v10, 4, v9")
        e("v_cmp_eq_u32 s[4:5], 3, v10")
        e("v_cmp_eq_u32 s[6:7], 4, v10")
        e("s_or_b64 s[6:7], s[6:7], s[4:5]")
        if et:
            e("v_cmp_gt_u32 s[8:9], 5, v11")
            e("s_and_b64 s[10:11], s[8:9], s[6:7]")
            e("v_cmp_eq_u32 s[12:13], 4, v11")
        else:
            e("s_mov_b64 s[10:11], s[6:7]")
        e("v_and_b32 v12, 3, v10")
        e("v_lshlrev_b32 v12, 4, v12")
        e("v_lshrrev_b32 v10, 2, v10")
        e("v_lshl_add_u32 v12, v10, 3, v12")
        e(f"v_add_u32 v12, {KVB + hh*2048}, v12")
        for j in range(2):
            e(f"v_add_u32 v13, {16*et + 8*j}, v11")
            e("v_mul_u32_u24 v14, 37, v13")
            e("v_lshrrev_b32 v14, 8, v14")
            e("v_mul_u32_u24 v15, 7, v14")
            e("v_sub_u32 v15, v13, v15")
            e("v_lshrrev_b32 v16, 2, v15")
            e("v_and_b32 v15, 3, v15")
            e("v_lshl_add_u32 v15, v14, 2, v15")
            e("v_lshl_add_u32 v15, v16, 4, v15")
            if et and j:
                e("v_cndmask_b32 v15, v15, 19, s[12:13]")
            e(f"v_lshl_add_u32 v{20+j}, v15, 6, v12")
        vm.wait("q")
        e("s_barrier")
        stamp(vm, SO + 1)
        RD = 48
        for dt in range(2):
            for w in range(2):
                r = RD + dt*16 + w*4
                e(f"ds_read_b128 v[{r}:{r+3}], v4 offset:{w*2048 + dt*1024}")
        for dt in range(2):
            e(f"s_waitcnt lgkmcnt({2-2*dt})")
            b = RD + dt*16
            for r in range(4):
                e(f"v_add_f32 v{b+r}, v{b+r}, v{b+4+r}")
            for r in range(4):
                e(f"v_cndmask_b32 v{b+r}, v{b+r}, 1.0, s[{64+4*dt}:{65+4*dt}]")
        for dt in range(2):
            e(f"buffer_atomic_add_f32 v{RD+dt*16}, v8, s[40:43], s57 offen offset:{dt*64} sc1")
        if et: e("s_mov_b64 exec, s[66:67]")
        for r in range(1, 4):
            for dt in range(2):
                e(f"buffer_atomic_add_f32 v{RD+dt*16+r}, v8, s[40:43], s{50+r} offen offset:{dt*64} sc1")
        if et: e("s_mov_b64 exec, -1")
        stamp(vm, SO + 2)
        wo_block(vm, lw, False)
        wo_block(vm, lw + 4, False)
        wo_block(vm, lw + 12, False)
        PR = 80
        lp = uid("KVL"); dn = uid("KVD")
        e("s_mov_b32 s78, 0")
        lab(lp)
        for j in range(2):
            e(f"buffer_load_dwordx4 v[{PR+j*4}:{PR+j*4+3}], v9, s[40:43], s{54 if j else 57} offen sc0 sc1")
        e("s_waitcnt vmcnt(0)")
        e(f"v_cndmask_b32 v13, v{PR}, v{PR+2}, s[4:5]")
        e("v_cmp_eq_f32 vcc, 0x41800000, v13")
        e("s_and_b64 s[14:15], vcc, s[6:7]")
        e(f"v_cndmask_b32 v13, v{PR+4}, v{PR+6}, s[4:5]")
        e("v_cmp_eq_f32 vcc, 0x41800000, v13")
        e("s_and_b64 s[16:17], vcc, s[10:11]")
        e("s_xor_b64 s[14:15], s[14:15], s[6:7]")
        e("s_xor_b64 s[16:17], s[16:17], s[10:11]")
        e("s_or_b64 s[14:15], s[14:15], s[16:17]")
        e(f"s_cbranch_scc0 {dn}")
        e("s_add_u32 s78, s78, 1")
        e("s_cmp_gt_u32 s78, 0x40000")
        e(f"s_cbranch_scc0 {lp}")
        lab(dn)
        for j in range(2):
            r = PR + j*4
            e(f"v_cvt_pk_bf16_f32 v{r}, v{r}, v{r+1}")
            e(f"v_cvt_pk_bf16_f32 v{r+1}, v{r+2}, v{r+3}")
            if et and j: e("s_mov_b64 exec, s[8:9]")
            e(f"ds_write_b64 v{20+j}, v[{r}:{r+1}]")
        if et:
            e("s_mov_b64 exec, s[12:13]")
            for k in range(1, 4):
                e(f"ds_write_b64 v21, v[{PR+4}:{PR+5}] offset:{k*256}")
            e("s_mov_b64 exec, -1")
        e("s_waitcnt lgkmcnt(0)")
        e("s_barrier")
        stamp(vm, SO + 3)
    e(f"s_branch P2_{'B' if isB else 'A'}L")

NP = int(os.environ.get("NP", "64"))
NRES = 10
SLP = int(os.environ.get("SLP", "4"))
EARLY = os.environ.get("EARLY", "0") == "1"
FPOL = os.environ.get("FPOL", "nt")
TR = os.environ.get("TR") == "1"
def tr(k):
    if TR: e(f"s_memrealtime s[{4+2*k}:{5+2*k}]")
PST = int(os.environ.get("PST", "0"))
AC = 16; OF = 44; WV = 76; ST = 124
def oreg(j, hh): return OF + (j*2+hh)*4
def wreg(j, f):
    if f >= NRES: return "v", ST + (f-NRES)*4
    i = j*NRES + f
    return ("a", i*4) if i < 28 else ("v", WV + (i-28)*4)
def rdf(j, f):
    hh, nt = divmod(f, 7)
    k, r = wreg(j, f)
    o = (2*j+hh)*WB + nt*32
    e(f"ds_read_b64_tr_b16 {k}[{r}:{r+1}], v8 offset:{o}")
    e(f"ds_read_b64_tr_b16 {k}[{r+2}:{r+3}], v9 offset:{o}")
def rd_res(kind):
    for j in range(4):
        for f in range(NRES):
            if wreg(j, f)[0] in kind: rdf(j, f)
def wo_bases(wo):
    e("v_lshrrev_b32 v7, 4, v2")
    e("v_lshrrev_b32 v3, 1, v7")
    e("v_bfe_u32 v8, v2, 2, 2")
    e("v_mul_u32_u24 v9, 14, v3")
    e("v_and_b32 v4, 1, v7")
    e("v_lshl_add_u32 v6, v4, 2, v9")
    e("v_add_u32 v6, v6, v8")
    e("v_mul_u32_u24 v5, 3, v4")
    e("v_min_u32 v8, 2, v8")
    e("v_add3_u32 v9, v9, v5, v8")
    e("v_add_u32 v9, 8, v9")
    e("v_and_b32 v5, 3, v2")
    e("v_lshlrev_b32 v5, 3, v5")
    e(f"v_add_u32 v5, {wo}, v5")
    e(f"v_mul_u32_u24 v8, {RS}, v6")
    e("v_add_u32 v8, v8, v5")
    e(f"v_mul_u32_u24 v9, {RS}, v9")
    e("v_add_u32 v9, v9, v5")
def spin_flag(off, val, cmp_):
    lp = uid("SP")
    e(f"v_mov_b32 v3, {FLG}")
    lab(lp)
    e(f"ds_read_b32 v4, v3 offset:{off}")
    e("s_waitcnt lgkmcnt(0)")
    e("v_readfirstlane_b32 s3, v4")
    e("s_nop 3")
    e(f"s_cmp_{cmp_}_u32 s3, {val}")
    e(f"s_cbranch_scc0 {lp}")
def tcol(isB, grp, t):
    return (t >> 1)*56 + (t & 1)*(24 if (not isB and grp < 2) else 32)

def accA(grp, rt, t): return 32 + (rt*4+t)*4
def accA2(grp, t, rt): return 32 + (grp-1)*32 + (t*4+rt)*4
def accB(grp, t, r):
    if grp == 0: return 32 + r*8 + t*4
    if grp == 1: return 64 + r*8 + t*4
    return 104 + t*20 + r*4

def comp_setup(isB):
    wo_bases((B_wo if isB else A_wo)(0))
    e("v_lshrrev_b32 v3, 4, v2")
    e("v_bfe_u32 v4, v2, 2, 2")
    e("v_lshl_add_u32 v4, v3, 3, v4")
    e("v_and_b32 v5, 1, v3")
    e("v_lshlrev_b32 v5, 2, v5")
    e("v_add_u32 v6, v4, v5")
    e("v_xor_b32 v7, 4, v6")
    e(f"v_mul_u32_u24 v6, {RS}, v6")
    e(f"v_mul_u32_u24 v7, {RS}, v7")
    e("v_and_b32 v5, 3, v2")
    e("v_lshl_add_u32 v14, v5, 3, v6")
    e("v_lshl_add_u32 v15, v5, 3, v7")
    e("s_and_b32 s49, s48, 1")
    e("s_lshr_b32 s50, s48, 1")
    e("s_mul_i32 s3, s49, 56")
    e("v_add_u32 v12, s3, v14")
    e("v_add_u32 v13, s3, v15")
    e("v_and_b32 v4, 15, v2")
    e("v_lshrrev_b32 v5, 1, v4")
    e("v_xor_b32 v5, v5, v3")
    e("v_lshlrev_b32 v5, 4, v5")
    e("v_lshl_add_u32 v18, v4, 7, v5")
    if isB:
        e("s_lshl_b32 s3, s50, 13")
        e("v_add_u32 v16, s3, v18")
        e("v_xor_b32 v17, 64, v16")
    else:
        e("v_lshl_add_u32 v16, v1, 12, v18")
        e("v_xor_b32 v17, 64, v16")
        e("v_xor_b32 v18, 0x1000, v16")
        e("v_xor_b32 v19, 0x1000, v17")

ILV = os.environ.get("ILV", "1") == "1"
def pr2(n, d):
    v = [int(x) for x in os.environ.get(n, d).split(",")]
    return v if len(v) == 2 else v*2
LAs = pr2("LA", "16,18"); URGs = pr2("URG", "8,8"); BLs = pr2("BL", "6,6"); BLLs = pr2("BLL", "3,3")
SYC = int(os.environ.get("SYC", "1"))
def gemm(vm, isB):
    global L
    lg = LG()
    D = DB if isB else DA
    NB = 12 if isB else 6
    assert D <= (5 if isB else 4)
    def bf(j):
        r = (j % NB)*4 + (0 if isB else 96); k = "a" if isB else "v"
        return (f"{k}[{r}:{r+3}]", f"{k}[{r}:{r+1}]", f"{k}[{r+2}:{r+3}]")
    def xr(ch, kk, rt):
        st = (2*ch + kk) % 3
        if isB: r = 48 + st*20 + rt*4
        elif rt < 2: r = (ch*4 + kk*2 + rt)*4
        else:
            r = 120 + st*8 + (rt-2)*4
            return f"v[{r}:{r+3}]"
        return f"a[{r}:{r+3}]"
    items = []
    for ch in range(7):
        for kk in range(2):
            for grp in ((0, 1, 2) if isB else (1, 2)):
                for t in range(2): items.append((ch, kk, grp, t))
    def sync(ch):
        if ch == 6: vm.wait("pre" if PRE else "non")
        if ch == 0: wmark(4)
        e("s_barrier")
        if ch == 0: wmark(5); wdump(vm)
        stamp(vm, 12 + ch)
        if PST == ch + 2: prestore(vm, isB)
        pf_bar(vm, isB, ch)
        wb = 20 + (ch & 1)*2
        kvb = B_kv(ch) if isB else A_kv(ch)
        xb = B_x(ch) if isB else A_x(ch)
        e(f"v_add_u32 v24, {xb}, v16")
        e(f"v_add_u32 v25, {xb}, v17")
        if not isB:
            e(f"v_add_u32 v26, {xb}, v18")
            e(f"v_add_u32 v27, {xb}, v19")
        e(f"v_add_u32 v{wb}, {kvb}, v12")
        e(f"v_add_u32 v{wb+1}, {kvb}, v13")
    def xrd(ch, kk):
        if XNOR or XNOX: return
        if isB:
            for rt in (1, 2, 3, 4, 0):
                e(f"ds_read_b128 {xr(ch,kk,rt)}, v{24+kk} offset:{rt*2048}")
                lg.issue(f"x{ch}")
        else:
            for rt in range(4):
                e(f"ds_read_b128 {xr(ch,kk,rt)}, v{24+kk+(rt>>1)*2} offset:{(rt&1)*2048}")
                lg.issue(f"x{ch}")
    def wrd(j):
        ch, kk, grp, t = items[j]
        wb = 20 + (ch & 1)*2
        if grp == 0: off = KVS + kk*112 + t*32
        else: off = 32*kk*RS + (grp-1)*112 + t*(24 if (not isB and grp == 1) else 32)
        for hf in range(2):
            if XNOR or (XNOW and hf): continue
            e(f"ds_read_b64_tr_b16 {bf(j)[1+hf]}, v{wb+hf} offset:{off}")
            lg.issue(f"w{j}")
    def rd(j):
        ch, kk, grp, t = items[j]
        if j == 0 or items[j-1][0] != ch: sync(ch)
        if j == 0 or items[j-1][:2] != (ch, kk): xrd(ch, kk)
        wrd(j)
    def mfmas(j):
        ch, kk, grp, t = items[j]
        tr = isB and grp < 2
        first = (ch == 0 and kk == 0)
        o = []
        for r in range(5 if (isB and grp) else 4):
            a = accB(grp, t, r) if isB else accA2(grp, t, r)
            x = xr(ch, kk, r + 1 if (isB and grp == 0) else r)
            cc = "0" if first else f"v[{a}:{a+3}]"
            if tr: o.append(f"v_mfma_f32_16x16x32_bf16 v[{a}:{a+3}], {bf(j)[0]}, {x}, {cc}")
            else: o.append(f"v_mfma_f32_16x16x32_bf16 v[{a}:{a+3}], {x}, {bf(j)[0]}, {cc}")
        return o
    if ILV:
        LA = LAs[isB]; URG = URGs[isB]; BL = BLs[isB]; BLL = BLLs[isB]
        F = []; n = 0
        for j in range(len(items)): F.append(n); n += len(mfmas(j))
        F.append(n)
        ipc = len(items) // 7
        ops = []
        lg0 = lg
        for j in range(len(items)):
            ch, kk, grp, t = items[j]
            bufe = F[j - NB + 1] if j >= NB else -10**9
            if j % ipc == 0:
                bl = BLL if ch == 6 else BL
                ops.append((j, F[j] - bl, "S", ch, None))
            class Rec:
                def __init__(s_): s_.t = []
                def issue(s_, tag): s_.t.append(tag)
            sv = L; L = []; lg = Rec()
            if j % (ipc//2) == 0: xrd(ch, kk)
            nx = len(L)
            wrd(j)
            ins = L; L = sv
            for q, (ln, tg) in enumerate(zip(ins, lg.t)):
                ear = F[j] - LA
                if q >= nx: ear = max(ear, bufe)
                else:
                    jp = j - 2*(ipc//2)
                    if jp >= 0: ear = max(ear, F[jp])
                ops.append((j, ear, "L", ln, tg))
            lg = lg0
        qi = 0
        def emit(op):
            if op[2] == "S": sync(op[3])
            else: L.append(op[3]); lg.issue(op[4])
        g = 0
        for j in range(len(items)):
            for m, ins in enumerate(mfmas(j)):
                if m == 0:
                    while qi < len(ops) and ops[qi][0] <= j: emit(ops[qi]); qi += 1
                cnt = 0
                while qi < len(ops) and ops[qi][1] <= g:
                    lim = 2 if F[ops[qi][0]] - g < URG else 1
                    if ops[qi][2] == "L" and cnt >= lim: break
                    if ops[qi][2] == "L": cnt += 1
                    else: cnt += SYC
                    emit(ops[qi]); qi += 1
                if m == 0: lg.wait(f"w{j}")
                e(ins); g += 1
        return
    for j in range(D): rd(j)
    for j, (ch, kk, grp, t) in enumerate(items):
        if j + D < len(items): rd(j + D)
        if not XNOR: lg.wait(f"w{j}")
        if XNOM and ch > 0: continue
        for ins in mfmas(j): e(ins)

def pass2():
    lg = LG()
    D = int(os.environ.get("D2", "6")); NB = 12
    items = [(ch, kk, t) for ch in range(7) for kk in range(2) for t in range(4)]
    e(f"v_add_u32 v20, {A_q(0)}, v14")
    e(f"v_add_u32 v21, {A_q(0)}, v15")
    def rd(j, hfs=(0, 1)):
        if j >= len(items): return
        ch, kk, t = items[j]
        r = 96 + (j % NB)*4
        off = A_q(ch) - A_q(0) + kk*112 + tcol(False, 0, t)
        for hf in hfs:
            e(f"ds_read_b64_tr_b16 v[{r+2*hf}:{r+2*hf+1}], v{20+hf} offset:{off}")
            lg.issue(f"w{j}")
    for j in range(D): rd(j)
    for j, (ch, kk, t) in enumerate(items):
        rd(j + D, (0,) if ILV else (0, 1))
        lg.wait(f"w{j}")
        r = 96 + (j % NB)*4
        for rt in range(2):
            a = accA(0, rt, t); x = (ch*4 + kk*2 + rt)*4
            cc = "0" if (ch == 0 and kk == 0) else f"v[{a}:{a+3}]"
            e(f"v_mfma_f32_16x16x32_bf16 v[{a}:{a+3}], v[{r}:{r+3}], a[{x}:{x+3}], {cc}")
            if rt == 0 and ILV: rd(j + D, (1,))

def tile_addr(isB, r=14):
    if isB:
        e("s_lshl_b32 s3, s50, 13")
        e("s_lshl_b32 s27, s49, 10")
        e("s_add_u32 s3, s3, s27")
        e(f"v_lshlrev_b32 v{r}, 4, v2")
        e(f"v_add_u32 v{r}, s3, v{r}")
        e(f"v_add_u32 v{r+1}, 0x1000, v{r}")
    else:
        e(f"v_lshlrev_b32 v{r}, 12, v1")
        e(f"v_lshl_add_u32 v{r}, v2, 4, v{r}")
    e("s_lshl_b32 s27, s26, 14")
    e("s_add_u32 s63, s59, s27")
PLD = os.environ.get("PLD", "0") == "1"
def prestore(vm, isB):
    if PLD:
        e("v_lshlrev_b32 v10, 7, v2")
        e("v_lshl_add_u32 v10, v1, 12, v10")
        e("s_lshl_b32 s27, s26, 14")
        e("s_add_u32 s63, s59, s27")
        e("s_mov_b64 exec, 0xffffffff")
        e("buffer_load_dword v30, v10, s[40:43], s63 offen nt")
        e("s_mov_b64 exec, -1")
        vm.issue("pre")
        return
    tile_addr(isB, 10)
    for r in range(4): e(f"v_mov_b32 v{4+r}, 0")
    for (va, off, n) in tile_regs(isB):
        e(f"buffer_store_dwordx4 v[4:7], v{va-4}, s[40:43], s63 offen offset:{off}")
        vm.issue("pre")
def tile_regs(isB):
    if isB: return [(14 + (rt >> 1), (rt & 1)*2048, 16 + rt*4) for rt in range(4)]
    return [(14, rt*2048 + hh*1024, 16 + (hh*2+rt)*4) for hh in range(2) for rt in range(2)]
def tile_store(isB, q, vm=None):
    for (va, off, n) in tile_regs(isB):
        if q: e(f"buffer_store_dwordx4 v[{n}:{n+3}], v{va}, s[40:43], s51 offen offset:{off} sc0 sc1")
        else: e(f"buffer_store_dwordx4 v[{n}:{n+3}], v{va}, s[40:43], s63 offen offset:{off} {TPOL}")
        if vm: vm.issue("Q")

def epi_A(vm):
    c("---- A epilogue ----")
    e("v_and_b32 v5, 15, v2")
    e("v_lshrrev_b32 v6, 4, v2")
    e("v_cmp_le_u32 s[64:65], 12, v5")
    e("v_mov_b32 v7, 0x3f803f80")
    e(f"s_mul_i32 s3, s49, {2*WB}")
    e("s_lshl_b32 s27, s50, 11")
    e("s_add_u32 s3, s3, s27")
    e(f"s_add_u32 s3, s3, {A_scr(0)}")
    e("v_lshlrev_b32 v3, 4, v2")
    e("v_add_u32 v4, s3, v3")
    e("s_nop 7")
    PK = 96; VV = 112; TT = 128; KP = 32
    for t in range(2):
        for pr in range(2):
            sq = []
            for r2 in range(2):
                a = accA2(1, t, pr*2 + r2)
                d = PK + (t*2+pr)*4 + r2*2
                sq.append(phi_pair(d, a, a+1, TT + r2*4))
                sq.append(phi_pair(d + 1, a+2, a+3, TT + r2*4 + 2))
            ilv(sq)
    for t in range(2):
        for rt in range(4):
            a = accA2(2, t, rt)
            d = VV + t*8 + rt*2
            e(f"v_cvt_pk_bf16_f32 v{d}, v{a}, v{a+1}")
            e(f"v_cvt_pk_bf16_f32 v{d+1}, v{a+2}, v{a+3}")
            if t & 1:
                e(f"v_cndmask_b32 v{d}, v{d}, v7, s[64:65]")
                e(f"v_cndmask_b32 v{d+1}, v{d+1}, v7, s[64:65]")
    e("s_nop 1")
    for pr in range(2):
        for et in range(2):
            for dt in range(2):
                d = KP + (et*2 + dt)*4
                va = VV + (et*2+pr)*4; pk = PK + (dt*2+pr)*4
                cc = "0" if pr == 0 else f"v[{d}:{d+3}]"
                e(f"v_mfma_f32_16x16x32_bf16 v[{d}:{d+3}], v[{va}:{va+3}], v[{pk}:{pk+3}], {cc}")
    e("s_nop 7")
    for i in range(4):
        e("s_nop 3")
        e(f"ds_write_b128 v4, v[{KP+i*4}:{KP+i*4+3}] offset:{(i>>1)*WB + (i&1)*1024}")
    e("s_waitcnt lgkmcnt(0)")
    e("s_barrier")
    stamp(vm, 4)
    pass2()
    stamp(vm, 7)
    nonce_get()
    QF = 64
    e("v_cmp_eq_u32 s[10:11], 3, v6")
    e("v_cmp_eq_u32 s[12:13], 0, v6")
    e("v_lshlrev_b32 v10, 6, v5")
    e("v_lshl_add_u32 v10, v6, 4, v10")
    e(f"v_add_u32 v10, {KVB}, v10")
    tile_addr(False)
    e("v_mov_b32 v11, 0xffff")
    e("s_nop 3")
    for t in range(4):
        sq = []
        for rt in range(2):
            a = accA(0, rt, t)
            d = QF + (rt*2 + (t >> 1))*4 + (t & 1)*2
            s0 = phi_pair(d, a, a+1, TT + rt*4)
            s1 = phi_pair(d+1, a+2, a+3, TT + rt*4 + 2)
            if t & 1: s0.append(f"v_cndmask_b32 v{d}, v{d}, 0, s[12:13]")
            else: s1.append(f"v_cndmask_b32 v{d+1}, v{d+1}, 0, s[10:11]")
            sq += [s0, s1]
        ilv(sq)
    e("s_barrier")
    stamp(vm, 10)
    R = 80
    for hh in range(2):
        for f in range(2):
            r = R + (hh*2+f)*4
            e(f"ds_read_b128 v[{r}:{r+3}], v10 offset:{hh*2048 + f*1024}")
    NR = 96
    for hh in range(2):
        e(f"s_waitcnt lgkmcnt({2 - 2*hh})")
        for rt in range(2):
            n = NR + (hh*2+rt)*8
            q = QF + (rt*2+hh)*4
            for f in (1, 0):
                r = R + (hh*2+f)*4
                e(f"v_mfma_f32_16x16x32_bf16 v[{n+f*4}:{n+f*4+3}], v[{r}:{r+3}], v[{q}:{q+3}], 0")
    if EARLY: rd_res("a")
    e("s_nop 7")
    sq = []; regs = []
    for hh in range(2):
        for rt in range(2):
            n = NR + (hh*2+rt)*8
            t = TT + (hh*2+rt)*2
            o = [f"v_add_f32 v{t}, 0x{EPS:x}, v{n+7}",
                 f"v_rcp_f32 v{t}, v{t}",
                 f"v_mov_b32 v{t+1}, v{t}"]
            for q in range(3):
                o.append(f"v_pk_mul_f32 v[{n+2*q}:{n+2*q+1}], v[{n+2*q}:{n+2*q+1}], v[{t}:{t+1}]")
            o.append(f"v_mul_f32 v{n+6}, v{n+6}, v{t}")
            T = 16 + (hh*2+rt)*4
            for q in range(3):
                o.append(f"v_cvt_pk_bf16_f32 v{T+q}, v{n+2*q}, v{n+2*q+1}")
            o.append(f"v_cvt_pk_bf16_f32 v{T+3}, v{n+6}, v{n+6}")
            o.append(f"v_and_or_b32 v{T+3}, v{T+3}, v11, s61")
            sq.append(o)
    ilv(sq)
    tile_store(False, False)
    stamp(vm, 5, 4)

def epi_B(vm):
    c("---- B epilogue ----")
    e("v_and_b32 v5, 15, v2")
    e("v_lshrrev_b32 v6, 4, v2")
    e("v_cmp_gt_u32 s[64:65], 3, v6")
    nonce_get()
    e("v_and_b32 v3, 1, v5")
    e("v_cmp_eq_u32 s[4:5], 1, v3")
    e("v_mov_b32 v10, 0xffff")
    e("v_mov_b32 v11, 0xffff0000")
    e("v_cndmask_b32 v12, v10, v11, s[4:5]")
    e("v_lshl_add_u32 v11, v6, 2, v3")
    e("v_sub_u32 v11, v11, v5")
    def KF(blk): return 64 + blk*8
    def QF(rt): return 32 + rt*8
    def VB(et): return 104 + et*20
    def cvt4(b):
        for q in range(4): e(f"v_cvt_pk_bf16_f32 v{b+q}, v{b+2*q}, v{b+2*q+1}")
    def C0(cb): return 32 + cb*8 + 4
    def C1(cb): return 64 + cb*8 + 4
    for rt in range(4):
        b = QF(rt)
        cvt4(b)
        e(f"v_cndmask_b32 v{b+2}, 0, v{b+2}, s[64:65]")
        e(f"v_cndmask_b32 v{b+3}, 0, v{b+3}, s[64:65]")
    for blk in range(5): cvt4(KF(blk))
    e("s_nop 1")
    for rt in range(4):
        q = QF(rt)
        for ti in range(2):
            k = KF(rt + ti)
            d = C0(rt) if ti == 0 else C1(rt)
            e(f"v_mfma_f32_16x16x32_bf16 v[{d}:{d+3}], v[{k}:{k+3}], v[{q}:{q+3}], 0")
    if not BWM: e("s_barrier")
    for et in range(2):
        b = VB(et)
        for blk in range(5):
            e(f"v_cvt_pk_bf16_f32 v{b+2*blk}, v{b+4*blk}, v{b+4*blk+1}")
            e(f"v_cvt_pk_bf16_f32 v{b+2*blk+1}, v{b+4*blk+2}, v{b+4*blk+3}")
    for k in range(4):
        addk = 2*k if k < 2 else 16 + 2*(k-2)
        e(f"v_add_u32 v13, {addk}, v11")
        e(f"v_cmp_le_i32 s[{6+2*k}:{7+2*k}], 2, v13")
        e(f"v_cmp_ge_i32 vcc, 16, v13")
        e(f"s_and_b64 s[{6+2*k}:{7+2*k}], s[{6+2*k}:{7+2*k}], vcc")
    e("s_or_b32 s3, s25, s50")
    e("s_cmp_eq_u32 s3, 0")
    e("s_cselect_b64 s[14:15], 0, -1")
    e("s_and_b64 s[16:17], s[6:7], s[14:15]")
    e("s_and_b64 s[18:19], s[8:9], s[14:15]")
    e("v_mov_b32 v13, 0xce6e6b28")
    e(f"s_mov_b32 s20, 0x{SC2:x}")
    tile_addr(True)
    e("v_cmp_eq_u32 s[68:69], 3, v6")
    def seq(cb):
        lgr = [C0(cb), C0(cb)+2, C1(cb), C1(cb)+2]
        m = C1(cb)+1; m2 = C1(cb)+3
        o = []
        for k in range(4):
            o.append(f"v_cndmask_b32 v{lgr[k]}, v{lgr[k]}, v{lgr[k]+1}, s[4:5]")
        for k in range(4):
            ms = (16 + 2*k) if (cb == 0 and k < 2) else (6 + 2*k)
            o.append(f"v_cndmask_b32 v{lgr[k]}, v13, v{lgr[k]}, s[{ms}:{ms+1}]")
        o.append(f"v_max3_f32 v{m}, v{lgr[0]}, v{lgr[1]}, v{lgr[2]}")
        o.append(f"v_max_f32 v{m}, v{m}, v{lgr[3]}")
        o.append(f"v_mov_b32 v{m2}, v{m}")
        o.append(f"v_permlane16_swap_b32 v{m}, v{m2}")
        o.append(f"v_max_f32 v{m}, v{m}, v{m2}")
        o.append(f"v_mov_b32 v{m2}, v{m}")
        o.append(f"v_permlane32_swap_b32 v{m}, v{m2}")
        o.append(f"v_max_f32 v{m}, v{m}, v{m2}")
        o.append(f"v_mul_f32 v{m}, 0x{SC2 ^ 0x80000000:x}, v{m}")
        for k in range(4):
            o.append(f"v_fma_f32 v{lgr[k]}, v{lgr[k]}, s20, v{m}")
        for k in range(4):
            o.append(f"v_exp_f32 v{lgr[k]}, v{lgr[k]}")
        o.append(f"v_add_f32 v{m}, v{lgr[0]}, v{lgr[1]}")
        o.append(f"v_add_f32 v{m2}, v{lgr[2]}, v{lgr[3]}")
        o.append(f"v_add_f32 v{m}, v{m}, v{m2}")
        o.append(f"v_mov_b32 v{m2}, v{m}")
        o.append(f"v_permlane16_swap_b32 v{m}, v{m2}")
        o.append(f"v_add_f32 v{m}, v{m}, v{m2}")
        o.append(f"v_mov_b32 v{m2}, v{m}")
        o.append(f"v_permlane32_swap_b32 v{m}, v{m2}")
        o.append(f"v_add_f32 v{m}, v{m}, v{m2}")
        o.append(f"v_rcp_f32 v{m}, v{m}")
        for k in range(4):
            o.append(f"v_mul_f32 v{lgr[k]}, v{lgr[k]}, v{m}")
            o.append(f"v_cvt_pk_bf16_f32 v{C0(cb)+k}, v{lgr[k]}, v{lgr[k]}")
            o.append(f"v_and_b32 v{C0(cb)+k}, v{C0(cb)+k}, v12")
        return o
    ilv([seq(cb) for cb in range(4)])
    if EARLY:
        spin_flag(0, 4, "eq")
        rd_res("a")
    e("s_nop 1")
    for rt in range(4):
        for et in (1, 0):
            o = QF(rt) if et == 0 else C1(rt)
            v = VB(et) + 2*rt
            e(f"v_mfma_f32_16x16x32_bf16 v[{o}:{o+3}], v[{v}:{v+3}], v[{C0(rt)}:{C0(rt)+3}], 0")
    e("s_nop 7")
    sq = []; regs = []
    for rt in range(4):
        o0 = QF(rt); o1 = C1(rt); t = C0(rt)
        T = 16 + rt*4
        o = [f"v_mov_b32 v{t}, v{o1+3}",
             f"v_cvt_pk_bf16_f32 v{T}, v{o0}, v{o0+1}",
             f"v_permlane32_swap_b32 v{t+1}, v{t}",
             f"v_permlane16_swap_b32 v{t+2}, v{o1+3}",
             f"v_cvt_pk_bf16_f32 v{T+1}, v{o0+2}, v{o0+3}",
             f"v_permlane16_swap_b32 v{t+3}, v{t+1}",
             f"v_cndmask_b32 v{o1+2}, v{o1+2}, v{t+2}, s[68:69]",
             f"v_cndmask_b32 v{o1+1}, v{o1+1}, v{t+1}, s[68:69]",
             f"v_cndmask_b32 v{o1}, v{o1}, v{t+3}, s[68:69]",
             f"v_cvt_pk_bf16_f32 v{T+3}, v{o1+2}, v{o1+2}",
             f"v_cvt_pk_bf16_f32 v{T+2}, v{o1}, v{o1+1}",
             f"v_and_or_b32 v{T+3}, v{T+3}, v10, s61"]
        sq.append(o)
    ilv(sq)
    tile_store(True, False)
    if BWM: e("s_barrier")
    stamp(vm, 5, 4)

def p2(isB, isC):
    lab(f"P2_{'B' if isB else 'A'}{'C' if isC else 'L'}")
    c("---- P2: wave = (16 rows, K half) x 112 cols ----")
    kh = 0 if isC else 1
    wo = (B_wo if isB else A_wo)(8*kh)
    def ld(j, pol=None):
        for hh in range(2):
            r = oreg(j, hh)
            e(f"buffer_load_dwordx4 v[{r}:{r+3}], v6, s[40:43], s{64+j} offen offset:{hh*1024} {PPOL if pol is None else pol}")
    tr(0)
    if isC:
        e(f"v_mov_b32 v3, {FLG}")
        e("v_mov_b32 v4, 1")
        e("s_mov_b64 exec, 1")
        e("ds_add_u32 v3, v4 offset:4")
        e("s_mov_b64 exec, -1")
    e("s_and_b32 s49, s48, 3")
    e("s_and_b32 s50, s26, 1")
    e("s_lshl_b32 s3, s50, 13")
    e("s_lshl_b32 s27, s49, 11")
    e("s_add_u32 s3, s3, s27")
    e("s_add_u32 s64, s59, s3")
    if kh: e("s_add_u32 s64, s64, 0x10000")
    for j in range(1, 4): e(f"s_add_u32 s{64+j}, s64, {j*16384}")
    e("v_lshlrev_b32 v6, 4, v2")
    if isC:
        for j in range(4): ld(j, FPOL)
    if not isC:
        wo_bases(wo)
        e("v_lshlrev_b32 v6, 4, v2")
    if isB and not (isC and EARLY): spin_flag(0, 4, "eq")
    rd_res("v" if (isC and EARLY) else "av")
    e("v_lshrrev_b32 v7, 4, v2")
    e("v_lshrrev_b32 v11, 1, v7")
    e("v_and_b32 v12, 1, v7")
    e("v_and_b32 v5, 15, v2")
    e("s_lshl_b32 s3, s25, 7")
    e("s_lshl_b32 s27, s50, 6")
    e("s_add_u32 s3, s3, s27")
    e("s_lshl_b32 s27, s49, 4")
    e("s_add_u32 s3, s3, s27")
    e("v_add_u32 v5, s3, v5")
    e("v_mul_u32_u24 v10, 1792, v5")
    e("s_mul_i32 s3, s24, 896")
    e("s_add_u32 s3, s3, s55")
    e("v_add_u32 v10, s3, v10")
    if kh: e("v_lshl_add_u32 v14, v7, 3, v10")
    e("v_lshl_add_u32 v10, v12, 5, v10")
    e("v_lshl_add_u32 v10, v11, 4, v10")
    e("s_mul_i32 s3, s49, 7168")
    e(f"s_add_u32 s3, s3, {RED_B if isB else RED_A}")
    e("v_add_u32 v12, s3, v6")
    for r in range(28): e(f"v_mov_b32 v{AC+r}, 0")
    e("s_mov_b32 s78, 0")
    e("s_mov_b32 s79, 15")
    e("s_mov_b32 s68, 0x10000")
    if not isC:
        e("s_waitcnt lgkmcnt(0)")
        if isB and BWM: e("s_barrier")
        else: spin_flag(4, 1, "ge")
        for j in range(4): ld(j, FPOL)
    e("s_waitcnt lgkmcnt(0)")
    stamp(None, 6 if isC else 39, 4)
    tr(1)
    top = uid("PT"); done = uid("PDN"); fb = uid("PFB")
    lab(top)
    for j in range(4):
        nx = uid("NX"); dm = uid("DM"); bad = uid("BD")
        e("s_waitcnt vmcnt(6)")
        e(f"s_bitcmp1_b32 s79, {j}")
        e(f"s_cbranch_scc0 {dm}")
        r0 = oreg(j, 0) + 3; r1 = oreg(j, 1) + 3
        e(f"v_xor_b32 v{r0}, s61, v{r0}")
        e(f"v_xor_b32 v{r1}, s61, v{r1}")
        e(f"v_or_b32 v13, v{r0}, v{r1}")
        e("v_cmp_gt_u32 vcc, s68, v13")
        e("s_cmp_eq_u64 vcc, -1")
        e(f"s_cbranch_scc0 {bad}")
        tr(2 + j)
        for f in range(NRES, 14): rdf(j, f)
        e(f"buffer_load_dword v15, off, s[40:43], s{64+j}")
        e(f"buffer_load_dword v15, off, s[40:43], s{64+j}")
        e(f"s_bitset0_b32 s79, {j}")
        for f in range(14):
            hh, nt = divmod(f, 7)
            k, wr = wreg(j, f)
            a = AC + nt*4; r = oreg(j, hh)
            if f == NRES: e("s_waitcnt lgkmcnt(0)")
            e(f"v_mfma_f32_16x16x32_bf16 v[{a}:{a+3}], {k}[{wr}:{wr+3}], v[{r}:{r+3}], v[{a}:{a+3}]")
        e("s_cmp_eq_u32 s79, 0")
        e(f"s_cbranch_scc1 {done}")
        e(f"s_branch {nx}")
        lab(bad)
        if SLP: e(f"s_sleep {SLP}")
        ld(j)
        e(f"s_branch {nx}")
        lab(dm)
        e(f"buffer_load_dword v15, off, s[40:43], s{64+j}")
        e(f"buffer_load_dword v15, off, s[40:43], s{64+j}")
        lab(nx)
    e("s_add_u32 s78, s78, 1")
    e(f"s_cmp_lt_u32 s78, {NP}")
    e(f"s_cbranch_scc1 {top}")
    nc = uid("NC"); cp = uid("CP")
    e("s_waitcnt vmcnt(0)")
    e("s_lshl_b32 s57, s24, 4")
    e("s_add_u32 s57, s57, s25")
    e("s_lshl_b32 s57, s57, 7")
    e(f"s_add_u32 s57, s57, 0x{EPO:x}")
    e(f"s_cmp_eq_u32 s78, {NP}")
    e(f"s_cbranch_scc0 {nc}")
    e("s_lshl_b32 s3, s26, 14")
    e("s_add_u32 s62, s59, s3")
    e("s_mov_b32 s69, 0")
    lab(cp)
    for half in range(2):
        rl = uid("RL")
        lab(rl)
        e("v_mov_b32 v13, 0")
        for b in range(8):
            r = OF + b*4
            e(f"s_add_u32 s3, s62, {(half*8+b)*1024}")
            e(f"buffer_load_dwordx4 v[{r}:{r+3}], v6, s[40:43], s3 offen sc0 sc1")
        e("s_waitcnt vmcnt(0)")
        for b in range(8):
            e(f"v_xor_b32 v15, s61, v{OF+b*4+3}")
            e("v_or_b32 v13, v13, v15")
        e("v_cmp_gt_u32 vcc, 0x10000, v13")
        e("s_add_u32 s69, s69, 1")
        e("s_cmp_gt_u32 s69, 0x40000")
        e(f"s_cbranch_scc1 {done}")
        e("s_cmp_eq_u64 vcc, -1")
        e(f"s_cbranch_scc0 {rl}")
        for b in range(8):
            r = OF + b*4
            e(f"s_add_u32 s3, s62, 0x{TLQ + (half*8+b)*1024:x}")
            e(f"buffer_store_dwordx4 v[{r}:{r+3}], v6, s[40:43], s3 offen sc0 sc1")
        e("s_waitcnt vmcnt(0)")
    e("s_lshl_b32 s3, s26, 2")
    e("s_add_u32 s3, s3, s57")
    e("v_mov_b32 v15, s93")
    e("buffer_store_dword v15, off, s[40:43], s3 sc0 sc1")
    e("s_mov_b32 s68, 0x100000")
    lab(nc)
    e("v_and_b32 v15, 3, v2")
    e("v_lshlrev_b32 v15, 2, v15")
    e(f"buffer_load_dword v13, v15, s[40:43], s57 offen offset:{kh*16} sc0 sc1")
    e("s_waitcnt vmcnt(0)")
    e("v_cmp_eq_u32 vcc, s93, v13")
    for j in range(4):
        e(f"s_or_b32 s3, s{64+j}, 0x{TLQ:x}")
        e(f"s_bitcmp1_b32 vcc_lo, {j}")
        e(f"s_cselect_b32 s{64+j}, s3, s{64+j}")
    for j in range(4): ld(j, "sc0 sc1")
    e("s_cmp_lt_u32 s78, 0x40000")
    e(f"s_cbranch_scc1 {top}")
    lab(done)
    tr(6)
    if STAMP and (SIDS is None or 11 in SIDS):
        stamp(None, 11 if isC else 40, 4)
        e("v_mov_b32 v4, s78")
        e("s_lshl_b32 s74, s2, 8")
        e(f"s_add_u32 s74, s74, {STB + (20+kh)*4}")
        e("v_mov_b32 v5, 0")
        e("buffer_store_dword v4, v5, s[40:43], s74 offen")
    e("s_nop 7")
    e("s_nop 7")
    snd = range(4, 7) if isC else range(0, 4)
    kp = range(0, 4) if isC else range(4, 7)
    for t in snd:
        e(f"ds_write_b128 v12, v[{AC+t*4}:{AC+t*4+3}] offset:{t*1024}")
    e("s_waitcnt lgkmcnt(0)")
    e("s_barrier")
    tr(7)
    RR = 76
    for t in kp:
        e(f"ds_read_b128 v[{RR+t*4}:{RR+t*4+3}], v12 offset:{t*1024}")
    if isC:
        sk = uid("NS")
        e("s_or_b32 s3, s26, s48")
        e("s_cmp_eq_u32 s3, 0")
        e(f"s_cbranch_scc0 {sk}")
        e("v_mov_b32 v13, s93")
        e("buffer_store_dword v13, off, s[40:43], s60 sc0 sc1")
        lab(sk)
    D = 108
    for n, t in enumerate(kp):
        e(f"s_waitcnt lgkmcnt({len(kp)-1-n})")
        a = AC + t*4; r = RR + t*4
        e(f"v_pk_add_f32 v[{a}:{a+1}], v[{a}:{a+1}], v[{r}:{r+1}]")
        e(f"v_pk_add_f32 v[{a+2}:{a+3}], v[{a+2}:{a+3}], v[{r+2}:{r+3}]")
        d = D + n*2
        e(f"v_cvt_pk_bf16_f32 v{d}, v{a}, v{a+1}")
        e(f"v_cvt_pk_bf16_f32 v{d+1}, v{a+2}, v{a+3}")
    e("s_nop 1")
    for pr in range(2 if isC else 1):
        d = D + pr*4
        e(f"v_permlane16_swap_b32 v{d}, v{d+2}")
        e(f"v_permlane16_swap_b32 v{d+1}, v{d+3}")
    e("s_nop 1")
    if isC:
        e(f"buffer_store_dwordx4 v[{D}:{D+3}], v10, s[88:91], 0 offen " + OPOL)
        e(f"buffer_store_dwordx4 v[{D+4}:{D+7}], v10, s[88:91], 0 offen offset:64 " + OPOL)
    else:
        e(f"buffer_store_dwordx4 v[{D}:{D+3}], v10, s[88:91], 0 offen offset:128 " + OPOL)
        e(f"buffer_store_dwordx2 v[{D+4}:{D+5}], v14, s[88:91], 0 offen offset:192 " + OPOL)
    stamp(None, 9 if isC else 41, 4)
    if TR:
        tr(8)
        e("s_waitcnt lgkmcnt(0)")
        e("s_lshl_b32 s74, s2, 9")
        e("s_lshl_b32 s3, s48, 6")
        e("s_add_u32 s74, s74, s3")
        e("s_add_u32 s74, s74, 0x910000")
        e("s_mov_b64 exec, 1")
        for k in range(9):
            e(f"v_mov_b32 v4, s{4+2*k}")
            e(f"buffer_store_dword v4, off, s[40:43], s74 offset:{k*4}")
        e("v_mov_b32 v4, s78")
        e(f"buffer_store_dword v4, off, s[40:43], s74 offset:36")
        e("s_mov_b64 exec, -1")
    if not isC: stamp(None, 2, 4)
    e("s_endpgm")

PF = os.environ.get("PF", "1") == "1"
PFT0 = int(os.environ.get("PFT0", "4"))
PFC = os.environ.get("PFC", "0") == "1"
PFD = int(os.environ.get("PFD", "6"))
PF2 = os.environ.get("PF2", "0")
PFW = [int(x) for x in os.environ.get("PFW", "5,2").split(",")]
PFQ = int(os.environ.get("PFQ", "-1"))
PFPOL = os.environ.get("PFPOL", "")
def pf_setup(isB):
    NW = 42 if isB else 28
    e("s_lshl_b32 s3, s23, 2")
    e("s_add_u32 s3, s3, s48")
    e("s_and_b32 s27, s3, 63")
    if PFC: e("s_lshr_b32 s80, s3, 6")
    e("s_lshl_b32 s3, s3, 6")
    e("v_add_u32 v4, s3, v2")
    e("v_min_u32 v4, 6271, v4")
    e("v_lshlrev_b32 v11, 6, v4")
    if not isB:
        e("v_mul_u32_u24 v5, 9363, v4")
        e("v_lshrrev_b32 v5, 17, v5")
        e("v_mul_u32_u24 v5, 1792, v5")
        e("v_add_u32 v4, v5, v11")
    if not PFC: return
    e("s_lshl_b32 s3, s27, 6")
    e("v_add_u32 v5, s3, v2")
    if isB:
        e("v_lshlrev_b32 v10, 6, v5")
    else:
        e("v_mul_u32_u24 v6, 2341, v5")
        e("v_lshrrev_b32 v6, 16, v6")
        e("v_mul_u32_u24 v6, 896, v6")
        e("v_lshl_add_u32 v10, v5, 6, v6")
        e("v_add_u32 v10, 896, v10")
    e(f"v_subrev_u32 v5, {NW*64}, v5")
    e("v_min_u32 v5, 1023, v5")
    e("v_lshrrev_b32 v6, 1, v5")
    e("s_and_b32 s3, s22, 3")
    e("s_lshl_b32 s3, s3, 9")
    e("v_add_u32 v6, s3, v6")
    e("v_mul_u32_u24 v6, 896, v6")
    e("v_and_b32 v5, 1, v5")
    e("v_lshl_add_u32 v6, v5, 6, v6")
    e(f"s_cmp_lt_u32 s27, {NW}")
    e("s_cselect_b64 vcc, -1, 0")
    e("v_cndmask_b32 v10, v6, v10, vcc")
def pf_setup2(isB):
    NW = 42 if isB else 28
    e(f"s_cmp_lt_u32 s27, {NW}")
    e("s_cselect_b32 s4, s32, s28")
    e("s_cselect_b32 s5, s33, s29")
    e("s_cselect_b32 s6, s34, s30")
    e("s_mov_b32 s7, 0x20000")
    e("s_cselect_b32 s12, 1344, 1")
    e("s_lshl_b32 s12, s12, 7")
    e("s_add_u32 s3, s80, 2")
    e("s_mul_i32 s13, s12, s3")
    e("s_mul_i32 s15, s12, 6")
    e("s_lshl_b32 s12, s12, 1")
def pf_step(vm):
    e(f"buffer_load_dword v30, v10, s[4:7], s13 offen {PFPOL}")
    vm.issue("pf")
    e("s_add_u32 s13, s13, s12")
    e("s_min_u32 s13, s13, s15")
def slp(n):
    while n > 0:
        e(f"s_sleep {min(n, 127)}"); n -= 127
def pf_pre(vm):
    slp(PFT0)
    sk = uid("PFS")
    e("s_cmp_eq_u32 s80, 0")
    e(f"s_cbranch_scc1 {sk}")
    slp(PFD)
    lab(sk)
    pf_step(vm)
    slp(2*PFD)
    pf_step(vm)
    if PF2 == "t":
        slp(2*PFD)
        pf_step(vm)
PFA = os.environ.get("PFA", "0") == "1"
PFAM = int(os.environ.get("PFAM", "3"))
PFNQ = os.environ.get("PFNQ", "1") == "1"
PFW4S = [int(x) for x in os.environ.get("PFW4", "4,4").split(",")]
if len(PFW4S) == 1: PFW4S = PFW4S*2
PFR = int(os.environ.get("PFR", "0"))
PFRO = int(os.environ.get("PFRO", "0"))
PFG = int(os.environ.get("PFG", "128"))
PFN = int(os.environ.get("PFN", "7"))
LDL = int(os.environ.get("LDL", "0"))
def pfa_setup(isB):
    e("s_lshl_b32 s3, s23, 6")
    e("v_add_u32 v5, s3, v2")
    e("v_lshlrev_b32 v10, 7, v5")
    if not isB and PFNQ:
        e("v_min_u32 v6, 895, v5")
        e("v_mul_u32_u24 v7, 4682, v6")
        e("v_lshrrev_b32 v7, 16, v7")
        e("v_mul_u32_u24 v7, 896, v7")
        e("v_lshl_add_u32 v10, v6, 7, v7")
        e("v_add_u32 v10, 896, v10")
    e(f"v_subrev_u32 v5, {1344+16}, v5")
    e("v_min_i32 v5, 511, v5")
    e("s_and_b32 s3, s22, 3")
    e("s_lshl_b32 s3, s3, 9")
    e("v_add_u32 v5, s3, v5")
    e("v_max_i32 v5, 0, v5")
    e("v_mul_u32_u24 v5, 896, v5")
    e("s_cmp_lt_u32 s23, 21")
    e("s_cselect_b64 vcc, -1, 0")
    e("v_cndmask_b32 v10, v5, v10, vcc")
    e("s_add_u32 s80, s81, s48")
def pfa_issue(vm, isB):
    PFW4 = PFW4S[isB]
    e("s_cmp_lt_u32 s23, 21")
    e("s_cselect_b32 s4, s32, s28")
    e("s_cselect_b32 s5, s33, s29")
    e("s_cselect_b32 s6, s34, s30")
    e("s_mov_b32 s7, 0x20000")
    e("s_cselect_b32 s12, 1344, 1")
    e("s_lshl_b32 s12, s12, 7")
    sk = uid("PFK")
    if PFW4 < 4:
        e(f"s_cmp_ge_u32 s48, {PFW4}")
        e(f"s_cbranch_scc1 {sk}")
    for k in range(2):
        if k == 1:
            if PFN <= 4: break
            e("s_add_u32 s80, s80, 4")
        e("s_cmp_ge_u32 s80, 7")
        e("s_cselect_b32 s3, 7, 0")
        e("s_sub_u32 s80, s80, s3")
        e("s_mul_i32 s13, s12, s80")
        e(f"buffer_load_dword v30, v10, s[4:7], s13 offen {PFPOL}")
        vm.issue("pf")
        if PFG == 64:
            e(f"buffer_load_dword v30, v10, s[4:7], s13 offen offset:64 {PFPOL}")
            vm.issue("pf")
    lab(sk)
CPF = int(os.environ.get("CPF", "-2"))
def code_pf(vm):
    lb = uid("CPC")
    e("s_getpc_b64 s[8:9]")
    lab(lb)
    e(f"s_sub_u32 s8, s8, {lb}-{NAME}_kernel")
    e("s_subb_u32 s9, s9, 0")
    e("s_and_b32 s9, s9, 0xffff")
    e(f"s_mov_b32 s10, K_END-{NAME}_kernel")
    e("s_mov_b32 s11, 0x20000")
    e("s_lshl_b32 s3, s23, 2")
    e("s_add_u32 s3, s3, s48")
    e("s_lshl_b32 s3, s3, 10")
    e("v_lshlrev_b32 v5, 6, v2")
    e("s_mov_b64 exec, 0xffff")
    e("buffer_load_dword v30, v5, s[8:11], s3 offen")
    e("s_mov_b64 exec, -1")
    vm.issue("pf")
def pf_bar(vm, isB, ch):
    k = PFW4S[isB] + ch - PFRO
    if PFA and (PFAM >> isB) & 1 and (PFR >> isB) & 1 and PFW4S[isB] <= k < 7:
        sk = uid("PFR")
        e(f"s_cmp_eq_u32 s48, {k % 4}")
        e(f"s_cbranch_scc0 {sk}")
        e(f"s_add_u32 s80, s81, {k}")
        e("s_cmp_ge_u32 s80, 7")
        e("s_cselect_b32 s3, 7, 0")
        e("s_sub_u32 s80, s80, s3")
        e("s_mul_i32 s13, s12, s80")
        e(f"buffer_load_dword v30, v10, s[4:7], s13 offen {PFPOL}")
        lab(sk)
    if CPF == ch: code_pf(vm)
    if not PF: return
    if PFC and PF2 == str(ch): pf_step(vm)
    if PFW[isB] == ch:
        e(f"buffer_load_dword v30, v11, s[36:39], 0 offen {PFPOL}")
        vm.issue("pf")
    if not isB and PFQ == ch:
        e(f"buffer_load_dword v30, v4, s[32:35], 0 offen {PFPOL}")
        vm.issue("pf")

def compute(isB):
    lab("C_B" if isB else "C_A")
    if WST and not WST2: e("s_memrealtime s[96:97]")
    vm = VM()
    ka_rest()
    scal1(isB)
    scal2()
    comp_setup(isB)
    if PF: pf_setup(isB)
    pfa = PFA and (PFAM >> isB) & 1
    if pfa: pfa_setup(isB)
    srd_xw_pre()
    srd_rest()
    srd_xw()
    if pfa: pfa_issue(vm, isB)
    elif PF and PFC: pf_setup2(isB)
    if PP:
        sk = uid("PP2")
        e("s_cmp_ge_u32 s48, 2")
        e(f"s_cbranch_scc1 {sk}")
        slp(PPT2)
        pp_issue("s48", 5)
        lab(sk)
    wmark(1); wmark(2); wmark(3)
    stamp(vm, 0)
    stamp(vm, 1)
    nonce_issue(vm)
    if PRE:
        e("s_mul_i32 s3, s25, 229376")
        e("s_mul_i32 s27, s24, 896")
        e("s_add_u32 s3, s3, s27")
        e("buffer_load_dword v30, v3, s[88:91], s3 offen"); vm.issue("pre")
        e("buffer_load_dword v30, v3, s[36:39], s55 offen"); vm.issue("pre")
        if not PST: e("buffer_load_dword v30, v3, s[40:43], s59 offen"); vm.issue("pre")
    if PK and PKT:
        e("s_andn2_b32 s3, s2, 0x18")
        e("s_lshl3_add_u32 s3, s48, s3")
        e(f"s_mul_i32 s3, s3, {IMG}")
        e(f"s_add_u32 s3, s3, 0x{PKB:x}")
        e("buffer_load_dword v30, v3, s[40:43], s3 offen"); vm.issue("pre")
        e("buffer_load_dword v30, v3, s[44:47], 0 offen"); vm.issue("pre")
    if XDW:
        e("v_lshlrev_b32 v30, 4, v0")
        e("s_lshl_b32 s3, s2, 12")
        e("s_add_u32 s3, s3, 0x1000000")
        for k in range(XDW):
            e("buffer_store_dwordx4 v[12:15], v30, s[40:43], s3 offen"); vm.issue("xdw")
            e("s_add_u32 s3, s3, 0x100000")
    if PST == 1: prestore(vm, isB)
    if PF and PFC: pf_pre(vm)
    if CPF == -1: code_pf(vm)
    gemm(vm, isB)
    stamp(vm, 3)
    if isB: epi_B(vm)
    else: epi_A(vm)
    p2(isB, True)
    p2(isB, False)

def kernel():
    lab(f"{NAME}_kernel")
    prologue()
    if os.environ.get("LAF") == "1":
        loader(False); loader(True)
    else:
        loader(True); loader(False)
    compute(True)
    compute(False)
    for lw in range(4): tailA(lw)
    lab("K_END")
    e("s_endpgm")

HDR = open("cdna_kernels/" + NAME + ".s.ref").read().split("; @launch")[0]
kernel()
out = HDR
out += f"; @launch grid=(256,1,1) block=(512,1,1) lds={LDS_TOTAL}\n"
out += '.amdgcn_target "amdgcn-amd-amdhsa--gfx950"\n.text\n'
out += f".globl {NAME}_kernel\n.p2align 8\n.type {NAME}_kernel,@function\n"
out += "\n".join(L) + "\n"
out += f""".section .rodata,"a"
.p2align 6
.amdhsa_kernel {NAME}_kernel
  .amdhsa_next_free_vgpr 256
  .amdhsa_next_free_sgpr {102 if WST else 96}
  .amdhsa_accum_offset 144
  .amdhsa_group_segment_fixed_size 0
  .amdhsa_kernarg_size 72
  .amdhsa_user_sgpr_count 2
  .amdhsa_user_sgpr_kernarg_segment_ptr 1
  .amdhsa_system_sgpr_workgroup_id_x 1
.end_amdhsa_kernel
"""
path = sys.argv[1] if len(sys.argv) > 1 else f"cdna_kernels/{NAME}.s"
open(path, "w").write(out)
```

```python
import sys
NAME = "concat_heads__linear_attn_block__sliding_local_dilated__prompt"
HDR = open("cdna_kernels/" + NAME + ".s.ref").read().split("; @launch")[0]
def gen(var, path, blk, N=512):
    L = []
    e = lambda s: L.append("    " + s)
    L.append(f"{NAME}_kernel:")
    e("s_load_dwordx2 s[20:21], s[0:1], 64")
    e("v_lshrrev_b32 v1, 6, v0")
    e("v_and_b32 v2, 63, v0")
    e("v_readfirstlane_b32 s48, v1")
    for r in range(16, 128): e(f"v_mov_b32 v{r}, 0")
    e("v_lshrrev_b32 v7, 4, v2")
    e("v_lshrrev_b32 v3, 1, v7")
    e("v_bfe_u32 v8, v2, 2, 2")
    e("v_mul_u32_u24 v9, 14, v3")
    e("v_and_b32 v4, 1, v7")
    e("v_lshl_add_u32 v6, v4, 2, v9")
    e("v_add_u32 v6, v6, v8")
    e("v_mul_u32_u24 v5, 3, v4")
    e("v_min_u32 v8, 2, v8")
    e("v_add3_u32 v9, v9, v5, v8")
    e("v_add_u32 v9, 8, v9")
    e("v_and_b32 v5, 3, v2")
    e("v_lshlrev_b32 v5, 3, v5")
    e("v_mul_u32_u24 v8, 224, v6")
    e("v_add_u32 v8, v8, v5")
    e("v_mul_u32_u24 v9, 224, v9")
    e("v_add_u32 v9, v9, v5")
    e("v_lshlrev_b32 v10, 4, v2")
    e("v_lshlrev_b32 v11, 3, v2")
    e("s_waitcnt lgkmcnt(0)")
    e("s_mov_b32 s40, s20"); e("s_and_b32 s41, s21, 0xffff"); e("s_mov_b32 s42, 0x1000000"); e("s_mov_b32 s43, 0x20000")
    e("s_mov_b32 s50, 0x3f000000"); e("s_mov_b32 s51, 0x3f000000")
    e("s_barrier")
    e("s_memtime s[4:5]"); e("s_memrealtime s[6:7]")
    e("s_waitcnt lgkmcnt(0)")
    for n in range(N):
        r = 16 + (n % 28)*4
        if var == "tr": e(f"ds_read_b64_tr_b16 v[{r}:{r+1}], v{8+(n&1)} offset:{((n>>1)%8)*6272 + ((n>>4)%7)*32}")
        elif var == "b128": e(f"ds_read_b128 v[{r}:{r+3}], v10 offset:{(n%56)*1024}")
        elif var == "b64": e(f"ds_read_b64 v[{r}:{r+1}], v11 offset:{(n%56)*512}")
        elif var == "w128": e(f"ds_write_b128 v10, v[{r}:{r+3}] offset:{(n%56)*1024}")
        elif var == "exp": e(f"v_exp_f32 v{16+n%64}, v{16+n%64}")
        elif var == "rcp": e(f"v_rcp_f32 v{16+n%64}, v{16+n%64}")
        elif var == "pkmul": e(f"v_pk_mul_f32 v[{16+2*(n%32)}:{17+2*(n%32)}], v[{16+2*(n%32)}:{17+2*(n%32)}], s[50:51]")
        elif var == "cvt": e(f"v_cvt_pk_bf16_f32 v{16+n%64}, v{16+n%64}, v{17+n%64}")
        elif var == "perm": e(f"v_perm_b32 v{16+n%64}, v{16+n%64}, v{17+n%64}, v10")
        elif var == "cnd": e(f"v_cndmask_b32 v{16+n%64}, v{16+n%64}, v{17+n%64}, s[50:51]")
        elif var == "pl16": e(f"v_permlane16_swap_b32 v{16+2*(n%32)}, v{17+2*(n%32)}")
        elif var == "pl32": e(f"v_permlane32_swap_b32 v{16+2*(n%32)}, v{17+2*(n%32)}")
        elif var == "add": e(f"v_add_f32 v{16+n%64}, v{16+n%64}, v{17+n%64}")
        elif var == "k16": e(f"v_mfma_f32_16x16x16_bf16 v[{r}:{r+3}], v[8:9], v[10:11], v[{r}:{r+3}]")
        elif var == "expadd":
            if n & 1: e(f"v_exp_f32 v{16+n%64}, v{16+n%64}")
            else: e(f"v_add_f32 v{16+n%64}, v{16+n%64}, v{16+n%64}")
    e("s_waitcnt lgkmcnt(0)")
    e("s_nop 7"); e("s_nop 7")
    e("s_memtime s[8:9]"); e("s_memrealtime s[10:11]")
    e("s_waitcnt lgkmcnt(0)")
    e("s_sub_u32 s8, s8, s4"); e("s_sub_u32 s10, s10, s6")
    e("s_lshl_b32 s3, s2, 6"); e("s_lshl_b32 s12, s48, 3"); e("s_add_u32 s3, s3, s12")
    e("v_mov_b32 v4, s8"); e("v_mov_b32 v5, s10")
    e("s_mov_b64 exec, 1")
    e("buffer_store_dwordx2 v[4:5], off, s[40:43], s3")
    e("s_endpgm")
    out = HDR + f"; @launch grid=(256,1,1) block=({blk},1,1) lds=65536\n"
    out += '.amdgcn_target "amdgcn-amd-amdhsa--gfx950"\n.text\n'
    out += f".globl {NAME}_kernel\n.p2align 8\n.type {NAME}_kernel,@function\n" + "\n".join(L) + "\n"
    out += f""".section .rodata,"a"
.p2align 6
.amdhsa_kernel {NAME}_kernel
  .amdhsa_next_free_vgpr 256
  .amdhsa_next_free_sgpr 96
  .amdhsa_accum_offset 128
  .amdhsa_group_segment_fixed_size 0
  .amdhsa_kernarg_size 72
  .amdhsa_user_sgpr_count 2
  .amdhsa_user_sgpr_kernarg_segment_ptr 1
  .amdhsa_system_sgpr_workgroup_id_x 1
.end_amdhsa_kernel
"""
    open(path, "w").write(out)
fs = []
for v in ("tr", "b128", "b64", "w128"):
    for blk in (64, 256, 512):
        gen(v, f"mb4/{v}_{blk}.s", blk); fs.append(f"mb4/{v}_{blk}.s")
for v in ("exp", "rcp", "pkmul", "cvt", "perm", "cnd", "pl16", "pl32", "add", "k16", "expadd"):
    gen(v, f"mb4/{v}_256.s", 256); fs.append(f"mb4/{v}_256.s")
print(" ".join(fs))
import json; print(json.dumps(fs))
```

```python
import sys, os, struct, re
NAME = "concat_heads__linear_attn_block__sliding_local_dilated__prompt"
TLP = 0
TLQ = int(os.environ.get("TLQ", "0x400000"), 0)
OPOL = os.environ.get("OPOL", "")
TPOL = os.environ.get("TPOL", "")
ACC = 0xa00000
NON = 0x800000
AS = int(os.environ.get("AS", "128"))
XDW = int(os.environ.get("XDW", "0"))
WS_END = 0x1c00000
PKB = 0x1000000
IMG = 43008
PK = os.environ.get("PK", "1") == "1"
GAs = [int(x) for x in os.environ.get("GA", "1,1").split(",")]
GBs = [int(x) for x in os.environ.get("GB", "2,2").split(",")]
PKP = [int(x) for x in os.environ.get("PKP", "4,5,6").split(",")]
PKF = os.environ.get("PKF", "0") == "1"
PKN = os.environ.get("PKN", "1") == "1"
if PKN: PKP = []
PKT = os.environ.get("PKT", "0") == "1"
PKNS = int(os.environ.get("PKNS", "9"))
PKNF = os.environ.get("PKNF", "0") == "1"
PKSP = os.environ.get("PKSP", "")
def order(w): return [w, 4 + w % 3, 4 + (w+1) % 3, 4 + (w+2) % 3, (w+1) & 3, (w+2) & 3, (w+3) & 3]
STAMP = os.environ.get("STAMP") in ("1", "2")
RT = os.environ.get("STAMP") == "2"
STB = 0x900000
LOG2E = 0x3FB8AA3B
EPS = 0x358637BD
for s in range(64*21): assert (s * 4682) >> 16 == s // 14
for s in range(64): assert (s * 37) >> 8 == s // 7
RS = 224
KVS = 14336; QS = 7168; XS = 16384
LDS_TOTAL = 163840
ROT = os.environ.get("ROT", "1") == "1"
PPOL = os.environ.get("PPOL", "nt")
ROTM = os.environ.get("ROTM", "2*p")
XM = int(os.environ.get("XM", "2"))
SWP = os.environ.get("SWP", "0") == "1"
XNOX = os.environ.get("XNOX") == "1"
XNOW = os.environ.get("XNOW") == "1"
BWM = os.environ.get("BWM", "0") == "1"
XNOR = os.environ.get("XNOR") == "1"
XNOM = os.environ.get("XNOM") == "1"
XNOL = os.environ.get("XNOL") == "1"
LAA = int(os.environ.get("LAA", "2"))
LAB = int(os.environ.get("LAB", "0"))
ROTMB = os.environ.get("ROTMB", ROTM)
XMB = int(os.environ.get("XMB", str(XM)))
W0 = os.environ.get("W0") == "1"
PRE = os.environ.get("PRE", "1") == "1"
NOQ = os.environ.get("NOQ") == "1"
L1X = os.environ.get("L1X") == "1"
DA = int(os.environ.get("DA", "4"))
DB = int(os.environ.get("DB", "5"))
def f2u(x): return struct.unpack('<I', struct.pack('<f', x))[0]
SC2 = f2u(28 ** -0.5 * 1.4426950408889634)
CNT_Z = 40 * 4
WB = 6272
def A_kv(i): return (i % 5) * 30720
def A_x(i): return (i % 5) * 30720 + KVS
def A_q(i): return 61440 + i*QS
UP = 111616
def A_wo(h): return h*WB if h < 8 else UP + (h-8)*WB
QE = os.environ.get("QE", "0") == "1"
def A_scr(lw): return A_wo(lw if QE else 12 + lw)
KVB = 50176
B_WSL = [140288, 0, 21504, 118784]
def B_kv(i): return B_WSL[i % 4]
def B_q(i): return B_WSL[i % 4] + KVS
def B_x(i): return 43008 + (i % 3) * 18432
def B_wo(h): return 61440 + h*WB
assert B_wo(8) == UP
FLG = 161792
RED_A = 61440; RED_B = 0
EPO = NON + 0x10000

L = []
def e(s): L.append("    " + s)
def lab(s): L.append(s + ":")
def c(s): L.append("    ; " + s)
_uid = [0]
def uid(p):
    _uid[0] += 1
    return f"{p}_{_uid[0]}"

class CNT:
    def __init__(self, kind, mx): self.ops = []; self.kind = kind; self.mx = mx
    def issue(self, tag): self.ops.append(tag)
    def n(self, tag):
        idx = max(i for i, t in enumerate(self.ops) if t == tag)
        return min(len(self.ops) - 1 - idx, self.mx)
    def wait(self, tag): e(f"s_waitcnt {self.kind}({self.n(tag)})")
def VM(): return CNT("vmcnt", 63)
def LG(): return CNT("lgkmcnt", 15)

SIDS = [int(x) for x in os.environ["SIDS"].split(",")] if os.environ.get("SIDS") else None
def stamp(vm, i, r=28):
    if not STAMP: return
    if SIDS is not None and i not in SIDS: return
    if i in (1, 2):
        e(f"v_mov_b32 v{r}, s94")
    else:
        e("s_memrealtime s[72:73]" if RT else "s_memtime s[72:73]")
        e("s_waitcnt lgkmcnt(0)")
        e(f"v_mov_b32 v{r}, s72")
    e("s_lshl_b32 s74, s2, 8")
    e(f"s_add_u32 s74, s74, {STB + i*4}")
    e(f"v_and_b32 v{r+1}, 0xff, v0")
    e(f"v_cmp_eq_u32 s[76:77], 0, v{r+1}")
    e("s_mov_b64 exec, s[76:77]")
    e(f"buffer_store_dword v{r}, v{r+1}, s[40:43], s74 offen")
    e("s_mov_b64 exec, -1")
    if vm is not None: vm.issue("stamp")

WST = os.environ.get("WST") in ("1", "2")
WST2 = os.environ.get("WST") == "2"
def wmark(k):
    if not WST: return
    e("s_memrealtime s[72:73]")
    e("s_waitcnt lgkmcnt(0)")
    e(f"s_mov_b32 s{96+k}, s72")
def wdump(vm):
    if not WST: return
    e("s_lshl_b32 s74, s2, 9")
    e("s_lshl_b32 s75, s48, 6")
    e("s_add_u32 s74, s74, s75")
    e("s_add_u32 s74, s74, 0x910000")
    e("s_mov_b64 exec, 1")
    e("v_mov_b32 v28, s94")
    e("buffer_store_dword v28, off, s[40:43], s74")
    for k in range(6):
        e(f"v_mov_b32 v28, s{96+k}")
        e(f"buffer_store_dword v28, off, s[40:43], s74 offset:{4+k*4}")
        if vm is not None: vm.issue("stamp")
    e("s_mov_b64 exec, -1")
    if vm is not None: vm.issue("stamp")

def phi_pair(dst, a, b, t):
    assert b == a + 1 and a % 2 == 0 and t % 2 == 0
    return [f"v_pk_mul_f32 v[{t}:{t+1}], v[{a}:{b}], s[70:71]",
            f"v_exp_f32 v{t}, v{t} clamp",
            f"v_exp_f32 v{t+1}, v{t+1} clamp",
            f"v_max_f32 v{a}, 0, v{a}",
            f"v_max_f32 v{b}, 0, v{b}",
            f"v_pk_add_f32 v[{t}:{t+1}], v[{t}:{t+1}], v[{a}:{b}]",
            f"v_cvt_pk_bf16_f32 v{dst}, v{t}, v{t+1}"]
def ilv(seqs):
    for i in range(max(len(q) for q in seqs)):
        for q in seqs:
            if i < len(q): e(q[i])

def srd(base, lo, hi, nbytes):
    e(f"s_mov_b32 s{base}, s{lo}")
    e(f"s_and_b32 s{base+1}, s{hi}, 0xffff")
    e(f"s_mov_b32 s{base+2}, 0x{nbytes:x}")
    e(f"s_mov_b32 s{base+3}, 0x20000")

def srd23(base, nbytes):
    e(f"s_mov_b32 s{base+2}, 0x{nbytes:x}")
    e(f"s_mov_b32 s{base+3}, 0x20000")
def ka_rest():
    e("s_load_dwordx2 s[40:41], s[0:1], 64")
    e("s_load_dwordx2 s[88:89], s[0:1], 48")
    e("s_load_dwordx2 s[44:45], s[0:1], 56")
def srd_xw_pre():
    srd23(28, 2048*896)
    srd23(32, 448*2688)
def srd_xw():
    e("s_waitcnt lgkmcnt(0)")
    e("s_and_b32 s29, s29, 0xffff")
    e("s_and_b32 s33, s33, 0xffff")
def srd_rest():
    srd23(40, WS_END)
    srd23(36, 448*896)
    srd23(44, 256)
    srd23(88, 2048*1792)
    e("s_waitcnt lgkmcnt(0)")
    for b in (40, 36, 44, 88): e(f"s_and_b32 s{b+1}, s{b+1}, 0xffff")

LPRIO = int(os.environ.get("LPRIO", "3"))
CSLP = int(os.environ.get("CSLP", "0"))
CPE = int(os.environ.get("CPE", "0"))
PP = os.environ.get("PP", "0") == "1"
PPT = int(os.environ.get("PPT", "4"))
PPT0 = int(os.environ.get("PPT0", "2"))
PPT2 = int(os.environ.get("PPT2", "4"))
PPW = os.environ.get("PPW", "1") == "1"
def pp_common():
    e("s_lshr_b32 s23, s2, 3")
    e("s_and_b32 s27, s2, 3")
    e("s_lshl_b32 s3, s23, 6")
    e("v_add_u32 v5, s3, v2")
    e("s_movk_i32 s3, 1343")
    e("s_cmp_eq_u32 s24, 0")
    e("s_cselect_b32 s3, 895, s3")
    e("s_cselect_b32 s12, 896, 0")
    e("v_min_u32 v6, s3, v5")
    e("v_mul_u32_u24 v7, 4682, v6")
    e("v_lshrrev_b32 v7, 16, v7")
    e("v_add_u32 v7, 1, v7")
    e("v_mul_u32_u24 v7, s12, v7")
    e("v_lshl_add_u32 v10, v6, 7, v7")
    e(f"v_subrev_u32 v5, {1344+16}, v5")
    e("v_min_i32 v5, 511, v5")
    e("s_lshl_b32 s3, s27, 9")
    e("v_add_u32 v5, s3, v5")
    e("v_max_i32 v5, 0, v5")
    e("v_mul_u32_u24 v5, 896, v5")
    e(f"s_mul_i32 s80, s27, {XM}")
    e("s_cmp_lt_u32 s23, 21")
    e("s_cselect_b64 vcc, -1, 0")
    e("v_cndmask_b32 v10, v5, v10, vcc")
    e(f"s_cselect_b32 s6, 0x{448*2688:x}, s23")
    e(f"s_cselect_b32 s6, s6, 0x{2048*896:x}")
    e("s_mov_b32 s7, 0x20000")
    e("s_cselect_b32 s12, 1344, 1")
    e("s_lshl_b32 s12, s12, 7")
    e("s_mul_i32 s13, s12, s80")
    e("s_cmp_lt_u32 s23, 21")
    e("s_waitcnt lgkmcnt(0)")
    e("s_cselect_b32 s4, s32, s28")
    e("s_cselect_b32 s5, s33, s29")
    e("s_and_b32 s5, s5, 0xffff")
def pp_issue(sw, k):
    e(f"s_add_u32 s13, s80, {sw}")
    e(f"s_add_u32 s13, s13, {k}")
    e("s_cmp_ge_u32 s13, 7")
    e("s_cselect_b32 s3, 7, 0")
    e("s_sub_u32 s13, s13, s3")
    e("s_mul_i32 s13, s12, s13")
    e("buffer_load_dword v30, v10, s[4:7], s13 offen")
def prologue():
    if STAMP or WST: e("s_memrealtime s[94:95]")
    e("s_cmp_ge_u32 s2, 256")
    e("s_cbranch_scc1 K_END")
    e("s_bfe_u32 s24, s2, 0x10002")
    e("v_lshrrev_b32 v1, 6, v0")
    if SWP: e("s_xor_b32 s24, s24, 1")
    e("s_mul_i32 s3, s24, 24")
    e("v_readfirstlane_b32 s48, v1")
    e("s_load_dwordx2 s[28:29], s[0:1], s3")
    e("s_load_dwordx2 s[32:33], s[0:1], s3 offset:8")
    e("s_load_dwordx2 s[36:37], s[0:1], s3 offset:16")
    e("v_and_b32 v2, 63, v0")
    if WST2:
        e("s_waitcnt lgkmcnt(0)")
        e("s_memrealtime s[96:97]")
    if PP: pp_common()
    e("s_bitcmp1_b32 s48, 2")
    e("s_cbranch_scc0 C_X")
    if LPRIO: e(f"s_setprio {LPRIO}")
    if PP:
        e("s_and_b32 s3, s48, 3")
        e("s_lshl_b32 s3, s3, 4")
        e("s_lshl_b64 exec, 0xffff, s3")
        e("buffer_load_dword v30, v10, s[4:7], s13 offen")
        e("s_mov_b64 exec, -1")
    e("s_cmp_eq_u32 s24, 0")
    e("s_cbranch_scc1 L_A")
    e("s_branch L_B")
    lab("C_X")
    if CPE >= 0:
        sk = uid("CPS"); lb = uid("CPC")
        if CPE:
            e(f"s_and_b32 s3, s2, {CPE << 3}")
            e(f"s_cbranch_scc1 {sk}")
        e("s_getpc_b64 s[8:9]")
        lab(lb)
        e(f"s_sub_u32 s8, s8, {lb}-{NAME}_kernel")
        e("s_subb_u32 s9, s9, 0")
        e("s_and_b32 s9, s9, 0xffff")
        e(f"s_mov_b32 s10, K_END-{NAME}_kernel")
        e("s_mov_b32 s11, 0x20000")
        e("s_cmp_eq_u32 s24, 0")
        e(f"s_cselect_b32 s3, C_A-C_B, 0")
        e("s_lshl_b32 s14, s48, 13")
        e("s_add_u32 s3, s3, s14")
        e(f"s_add_u32 s3, s3, C_B-{NAME}_kernel-8192")
        e("s_cmp_eq_u32 s48, 0")
        e("s_cselect_b32 s3, 0, s3")
        e("v_lshlrev_b32 v5, 7, v2")
        e("buffer_load_dword v30, v5, s[8:11], s3 offen")
        lab(sk)
    if PP:
        for w in range(1, 4):
            e(f"s_cmp_lt_u32 s48, {w}")
            e("s_cbranch_scc1 PP_GO")
            slp(PPT)
        lab("PP_GO")
        slp(PPT0)
        pp_issue("s48", 1)
    slp(CSLP)
    e("s_cmp_eq_u32 s24, 0")
    e("s_cbranch_scc1 C_A")
    e("s_branch C_B")

def scal1(isB):
    e("s_lshr_b32 s23, s2, 3")
    e("s_and_b32 s27, s2, 3")
    e("s_and_b32 s3, s23, 3")
    e("s_lshl2_add_u32 s25, s27, s3")
    e("s_lshr_b32 s26, s23, 2")
    e("s_mul_i32 s56, s26, 112")
    if PK:
        ga = GAs[isB]; gb = GBs[isB]
        e("s_mov_b32 s80, s3")
        e(f"s_mul_i32 s81, s27, {gb}")
        if ga:
            e(f"s_mul_i32 s3, s26, {ga}")
            e("s_add_u32 s81, s81, s3")
        e("s_add_u32 s81, s81, s80")
        assert 3 + 7*ga + 3*gb < 64
        e("s_mul_i32 s3, s81, 37")
        e("s_lshr_b32 s3, s3, 8")
        e("s_mul_i32 s3, s3, 7")
        e("s_sub_u32 s81, s81, s3")
        return
    rm = ROTMB if isB else ROTM; xm = XMB if isB else XM
    m = re.fullmatch(r"(\d+)(\*p)?", rm)
    a = int(m.group(1)) if m.group(2) else 0
    assert m.group(2) or m.group(1) == "0"
    if a == xm:
        e("s_add_u32 s81, s26, s27")
        e(f"s_mul_i32 s81, s81, {a}")
    elif a == 0:
        e(f"s_mul_i32 s81, s27, {xm}")
    else:
        e(f"s_mul_i32 s81, s26, {a}")
        e(f"s_mul_i32 s3, s27, {xm}")
        e("s_add_u32 s81, s81, s3")
    mx = 7*a + 3*xm
    assert mx < 32
    if mx >= 7:
        e("s_mul_i32 s3, s81, 37")
        e("s_lshr_b32 s3, s3, 8")
        e("s_mul_i32 s3, s3, 7")
        e("s_sub_u32 s81, s81, s3")
    e("s_mov_b32 s82, s81")
def scal2():
    e("s_and_b32 s22, s2, 7")
    e("s_lshr_b32 s55, s26, 1")
    e("s_mul_i32 s55, s55, 224")
    e("s_getreg_b32 s92, hwreg(HW_REG_XCC_ID)")
    e("s_and_b32 s92, s92, 15")
    e(f"s_mov_b32 s70, 0x{LOG2E:x}")
    e(f"s_mov_b32 s71, 0x{LOG2E:x}")
    e("s_lshl_b32 s60, s24, 4")
    e("s_add_u32 s60, s60, s25")
    e("s_lshl_b32 s59, s60, 17")
    e("s_lshl_b32 s60, s60, 7")
    e(f"s_add_u32 s60, s60, 0x{NON:x}")

def nonce_issue(vm):
    e("v_mov_b32 v3, 0")
    e("buffer_load_dword v31, v3, s[40:43], s60 offen sc0 sc1")
    vm.issue("non")
def nonce_get():
    e("v_readfirstlane_b32 s93, v31")
    e("s_nop 3")
    e("s_add_u32 s93, s93, 16")
    e("s_and_b32 s61, s93, 0x7ff0")
    e("s_or_b32 s61, s61, s92")
    e("s_or_b32 s61, s61, 0x8000")
    e("s_lshl_b32 s61, s61, 16")

def div14(n):
    e(f"v_add_u32 v3, {64*n}, v2")
    e("v_mul_u32_u24 v4, 4682, v3")
    e("v_lshrrev_b32 v4, 16, v4")
    e("v_mul_u32_u24 v5, 14, v4")
    e("v_sub_u32 v3, v3, v5")
    e("v_cmp_lt_u32 vcc, 6, v3")
    e("v_cndmask_b32 v5, 0, 1, vcc")
    e("v_mul_u32_u24 v6, 7, v5")
    e("v_sub_u32 v3, v3, v6")

def w_voff(dst, n, isq):
    div14(n)
    e("v_lshrrev_b32 v6, 1, v4")
    e("v_and_b32 v6, 4, v6")
    e("v_xor_b32 v4, v4, v6")
    e("v_mul_u32_u24 v4, 2688, v4")
    if isq:
        e("v_mul_u32_u24 v5, s58, v5")
        e("v_lshl_add_u32 v3, v3, 4, v4")
        e(f"v_add_u32 v{dst}, v3, v5")
    else:
        e("v_mul_u32_u24 v5, 896, v5")
        e("v_lshl_add_u32 v3, v3, 4, v4")
        e(f"v_add3_u32 v{dst}, v3, v5, s57")

def step_hdr(sr, w=True, x=True, first=False):
    if PK:
        if first: c_ = f"s{sr}"
        else:
            e(f"s_and_b32 s3, s{sr}, 15")
            e(f"s_lshr_b32 s{sr}, s{sr}, 4")
            c_ = "s3"
        if w:
            e(f"s_mul_i32 s83, {c_}, 172032")
            e("s_add_u32 s83, s83, s56")
        if x:
            e(f"s_lshl_b32 s85, {c_}, 7")
            e("s_add_u32 s86, s85, 14336")
        return
    if w:
        e(f"s_mul_i32 s83, s{sr}, 172032")
        e("s_add_u32 s83, s83, s56")
    if x:
        e(f"s_lshl_b32 s85, s{sr}, 7")
        e("s_add_u32 s86, s85, 14336")
    e(f"s_add_u32 s{sr}, s{sr}, 1")
    e(f"s_cmp_eq_u32 s{sr}, 7")
    e(f"s_cselect_b32 s{sr}, 0, s{sr}")
def mk_table():
    T = [sum(order(w)[i] << (4*i) for i in range(7)) for w in range(4)]
    e(f"s_mov_b32 s82, 0x{T[0]:x}")
    e(f"s_mov_b32 s3, 0x{T[2]:x}")
    e("s_bitcmp1_b32 s80, 0")
    e(f"s_cselect_b32 s82, 0x{T[1]:x}, s82")
    e(f"s_cselect_b32 s3, 0x{T[3]:x}, s3")
    e("s_bitcmp1_b32 s80, 1")
    e("s_cselect_b32 s82, s3, s82")
    e("s_sub_u32 s81, s81, s80")
    e("s_cselect_b32 s3, 7, 0")
    e("s_add_u32 s81, s81, s3")
    e("s_mul_i32 s81, s81, 0x1111111")
    e("s_add_u32 s82, s82, s81")
    e("s_add_u32 s3, s82, 0x1111111")
    e("s_and_b32 s3, s3, 0x8888888")
    e("s_lshr_b32 s3, s3, 3")
    e("s_mul_i32 s3, s3, 7")
    e("s_sub_u32 s82, s82, s3")
    e("s_lshr_b32 s81, s82, 4")

FILL = []
FN = int(os.environ.get("FN", "24"))
def capture(fn, *a):
    global L
    sv = L; L = []
    fn(*a)
    r = L; L = sv
    FILL.extend(r)
def flush(n=10**9):
    while FILL and n > 0:
        L.append(FILL.pop(0)); n -= 1
def dma(vm, tag, voff, srd_, soff, lds):
    e(f"s_mov_b32 m0, {lds}")
    e("s_nop 0")
    e(f"buffer_load_dwordx4 v{voff}, s[{srd_}:{srd_+3}], {soff} offen lds")
    vm.issue(tag)
    flush(FN)

def wo_voffs(isB):
    for t in range(7):
        div14(t)
        e("v_min_u32 v4, 27, v4")
        e("v_cmp_lt_u32 vcc, 13, v4")
        e("v_cndmask_b32 v6, 0, 1, vcc")
        e("v_mul_u32_u24 v24, 14, v6")
        e("v_sub_u32 v4, v4, v24")
        e("v_lshrrev_b32 v24, 2, v4")
        e("v_and_b32 v25, 3, v4")
        e("v_cmp_lt_u32 vcc, 10, v4")
        e("v_cndmask_b32 v26, 0, 1, vcc")
        e("v_mul_u32_u24 v27, 3, v26")
        e("v_sub_u32 v27, v4, v27")
        e("v_subrev_u32 v27, 4, v27")
        e("v_cmp_lt_u32 vcc, 7, v4")
        e("v_cndmask_b32 v24, v24, v26, vcc")
        e("v_cndmask_b32 v25, v25, v27, vcc")
        e("v_lshl_add_u32 v24, v6, 1, v24")
        if not isB:
            e("v_mul_u32_u24 v24, 7, v24")
            e("v_add_u32 v4, v24, v25")
        else:
            e("v_lshl_add_u32 v4, v24, 2, v25")
            e("v_add_u32 v26, 12, v4")
            e("v_lshlrev_b32 v27, 2, v25")
            e("v_add_u32 v27, 3, v27")
            e("v_cmp_eq_u32 s[4:5], 3, v24")
            e("v_cndmask_b32 v26, v26, v27, s[4:5]")
            e("v_cndmask_b32 v4, v4, v26, vcc")
        e("v_mul_u32_u24 v5, 112, v5")
        e("v_mul_u32_u24 v4, 896, v4")
        e("v_lshl_add_u32 v3, v3, 4, v4")
        e(f"v_add3_u32 v{40+t}, s55, v3, v5")

def wo_block(vm, h, isB):
    base = B_wo(h) if isB else A_wo(h)
    e(f"s_mov_b32 s86, {h*28*896}")
    for t in range(7):
        if t == 6: e("s_mov_b64 exec, 0xff")
        dma(vm, "wo", 40+t, 36, "s86", base + t*1024)
    e("s_mov_b64 exec, -1")

def flg_init(lw):
    if lw == 0:
        e(f"v_mov_b32 v3, {FLG}")
        e("v_mov_b32 v4, 0")
        e("v_mov_b32 v5, 0")
        e("ds_write_b64 v3, v[4:5]")
        e("s_waitcnt lgkmcnt(0)")

SEC = int(os.environ.get("SEC", "1"))
ZFI = int(os.environ.get("ZFI", "2"))
WPOL = os.environ.get("WPOL", ""); XPOL = os.environ.get("XPOL", ""); OWPOL = os.environ.get("OWPOL", "")
LPR2 = int(os.environ.get("LPR2", "0"))
WF = os.environ.get("WF", "0") == "1"
def dmag(vm, tag, voff, srd_, soff, sadd, lreg, lds, fl=True):
    e(f"s_add_u32 m0, s{lreg}, {lds}")
    if sadd:
        e(f"s_add_u32 s84, {soff}, {sadd}")
        soff = "s84"
    else: e("s_nop 0")
    pol = {32: WPOL, 28: XPOL, 36: OWPOL}[srd_]
    e(f"buffer_load_dwordx4 v{voff}, s[{srd_}:{srd_+3}], {soff} offen {pol} lds")
    vm.issue(tag)
    if fl: flush(FN)
def wo_blockg(vm, dh, isB):
    for t in range(7):
        if t == 6: e("s_mov_b64 exec, 0xff")
        dmag(vm, "wo", 40+t, 36, "s54", dh*28*896, 53, dh*WB + t*1024, False)
    e("s_mov_b64 exec, -1")
def loader(isB):
    lab(f"L_{'B' if isB else 'A'}")
    if WST and not WST2: e("s_memrealtime s[96:97]")
    vm = VM()
    SO = 32
    scal1(isB)
    e("s_and_b32 s49, s48, 3")
    e("v_lshrrev_b32 v3, 3, v2")
    e("v_lshrrev_b32 v4, 4, v2")
    e("v_and_b32 v5, 7, v2")
    e("v_xor_b32 v5, v5, v4")
    e("s_lshl_b32 s3, s25, 2")
    e("s_add_u32 s3, s3, s49")
    e("s_lshl_b32 s3, s3, 5")
    e("v_add_u32 v6, s3, v3")
    e("v_mul_u32_u24 v6, 896, v6")
    e("v_lshl_add_u32 v16, v5, 4, v6")
    e("v_xor_b32 v17, 64, v16")
    e("v_add_u32 v17, 7168, v17")
    e("s_lshl_b32 s51, s49, 12")
    e("s_lshr_b32 s3, s49, 1")
    e("s_xor_b32 s3, s3, s49")
    e("s_mul_i32 s3, s3, 10752")
    e("s_add_u32 s56, s56, s3")
    e("s_mul_i32 s50, s49, 896")
    srd_xw_pre()
    step_hdr(81, first=True)
    def wv():
        e("v_mul_u32_u24 v4, 4682, v2")
        e("v_lshrrev_b32 v4, 16, v4")
        e("v_mul_u32_u24 v6, 14, v4")
        e("v_sub_u32 v6, v2, v6")
        e("v_mul_u32_u24 v4, 2688, v4")
        e("v_cmp_lt_u32 vcc, 6, v6")
        e("v_lshl_add_u32 v4, v6, 4, v4")
        e("v_cndmask_b32 v6, 0, 1, vcc")
        e("s_movk_i32 s57, 784")
        e(f"s_mov_b32 s58, {86016-112}")
        e("v_mad_u32_u24 v8, v6, s57, v4")
        e("v_add_u32 v8, 896, v8")
        e("v_mad_u32_u24 v12, v6, s58, v4")
        if isB:
            e("s_lshl_b32 s3, s25, 7")
            e("s_sub_u32 s3, s3, 16")
            e("s_max_i32 s3, s3, 0")
            e("s_lshl2_add_u32 s3, s49, s3")
            e("v_add_u32 v6, s3, v3")
            e("v_mul_u32_u24 v6, 896, v6")
            e("s_lshl_b32 s3, s49, 1")
            e("v_xor_b32 v5, s3, v5")
            e("v_lshl_add_u32 v18, v5, 4, v6")
            e("s_lshl_b32 s52, s49, 9")
    wv()
    srd_xw()
    if PP and PPW: e("s_waitcnt vmcnt(0)")
    wmark(1)
    slp(LDL)
    NPC = 6 if isB else 4
    def isW(i):
        e("s_mov_b32 exec_hi, 0xffffff")
        if PK and i in PKP:
            e(f"s_add_u32 s3, s80, {i-3}")
            e("s_and_b32 s3, s3, 3")
            e(f"s_mul_i32 s84, s3, {8*IMG}")
            e("s_add_u32 s84, s84, s16")
            e("s_bitcmp1_b32 s14, s3")
            if PKF: e("s_cmp_eq_u32 s14, 0x12345")
            e("s_cselect_b64 s[8:9], s[40:41], s[32:33]")
            e("s_cselect_b32 s10, s42, s34")
            e("s_cselect_b32 s83, s84, s83")
            e("s_cselect_b32 s17, 3584, s18")
            e("s_cselect_b64 s[12:13], -1, 0")
            if STAMP and (SIDS is None or 50 in SIDS): e(f"s_addc_u32 s19, s19, s19")
            e("v_cndmask_b32 v9, v8, v32, s[12:13]")
            if isB: e("v_cndmask_b32 v13, v12, v33, s[12:13]")
            for j in range(NPC):
                jj = j & 3
                e(f"s_add_u32 m0, s50, {(B_kv(i) if isB else A_kv(i)) + j*3584}")
                if jj == 0: e("s_nop 0")
                else: e(f"s_add_u32 s84, {'s83' if jj == 1 else 's84'}, s17")
                e(f"buffer_load_dwordx4 v{9 if j < 4 else 13}, s[8:11], {'s84' if jj else 's83'} offen lds")
                vm.issue(f"c{i}")
        else:
            for j in range(4): dmag(vm, f"c{i}", 8, 32, "s83", j*43008, 50, (B_kv(i) if isB else A_kv(i)) + j*3584, False)
            if isB:
                for j in range(2): dmag(vm, f"c{i}", 12, 32, "s83", j*43008, 50, B_q(i) + j*3584, False)
        e("s_mov_b32 exec_hi, -1")
    def pk_setup():
        e("v_lshlrev_b32 v32, 4, v2")
        e("v_add_u32 v32, s50, v32")
        if isB: e("v_add_u32 v33, 14336, v32")
        e("s_andn2_b32 s16, s2, 0x18")
        e(f"s_mul_i32 s16, s16, {IMG}")
        e(f"s_add_u32 s16, s16, 0x{PKB:x}")
        e(f"s_mul_i32 s20, s2, {IMG}")
        e(f"s_add_u32 s20, s20, 0x{PKB:x}")
        e("s_mov_b32 s18, 43008")
        e("s_mov_b32 s11, 0x20000")
        e("s_mov_b32 s19, 0")
        e("s_and_b32 s3, s92, 7")
        e("s_lshl3_add_u32 s21, s22, s3")
        e("s_or_b32 s21, s21, 0x40")
        e("v_mov_b32 v36, s21")
        e("s_lshl2_add_u32 s3, s23, s49")
        e("v_mov_b32 v37, s3")
        e("s_lshl4_add_u32 s3, s26, s49")
        e("v_and_b32 v34, 3, v2")
        e("v_lshl_add_u32 v34, v34, 2, s3")
    def pk_rd():
        b = B_kv(0) if isB else A_kv(0)
        e(f"v_add_u32 v35, {b}, v32")
        for j in range(NPC): e(f"ds_read_b128 v[{48+4*j}:{51+4*j}], v35 offset:{j*3584}")
    def pk_st():
        e("s_waitcnt lgkmcnt(0)")
        e("s_mov_b32 exec_hi, 0xffffff")
        for j in range(min(NPC, PKNS)):
            if j and not (j & 1): e(f"s_add_u32 s84, {'s20' if j == 2 else 's84'}, 7168")
            e(f"buffer_store_dwordx4 v[{48+4*j}:{51+4*j}], v32, s[40:43], {'s20' if j < 2 else 's84'} offen offset:{(j&1)*3584} {PKSP}")
            vm.issue("pub")
        e("s_mov_b32 exec_hi, -1")
    def pk_flag():
        if PKNS and not PKNF: vm.wait("pub")
        e("s_mov_b64 exec, 1")
        e("buffer_store_byte v36, v37, s[44:47], 0 offen")
        vm.issue("flag")
        e("s_mov_b64 exec, -1")
    def pk_poll(i):
        e("buffer_load_ubyte v35, v34, s[44:47], 0 offen nt")
        vm.issue(f"F{i}")
    def pk_pre(i):
        if PK and (i + 2) in PKP:
            vm.wait(f"F{i}")
            e("v_cmp_eq_u32 s[14:15], s21, v35")
        else: vm.wait(f"c{i}")
        if PK and i == 0 and not PKN: pk_rd()
    def pk_stat():
        if not (PK and STAMP and (SIDS is None or 50 in SIDS)): return
        e("s_lshl_b32 s74, s2, 8")
        e(f"s_add_u32 s74, s74, {STB + 50*4}")
        e("s_lshl_b32 s75, s49, 2")
        e("s_add_u32 s74, s74, s75")
        e("v_mov_b32 v28, s19")
        e("s_mov_b64 exec, 1")
        e("buffer_store_dword v28, off, s[40:43], s74")
        e("s_mov_b64 exec, -1")
        vm.issue("stamp")
    def pk_post(i):
        if not PK or PKN: return
        if i == 0: pk_st()
        if (i + 3) in PKP: pk_poll(i + 1)
    def isX(i):
        xb = B_x(i) if isB else A_x(i)
        for u in range(4):
            dmag(vm, f"c{i}", 16 + (u & 1), 28, "s85" if u < 2 else "s86", 0, 51, xb + (2048 if isB else 0) + u*1024)
            if i == 0 and u == 0 and not WF: ka_rest()
        if isB:
            e("s_mov_b32 exec_hi, 0")
            dmag(vm, f"c{i}", 18, 28, "s85", 0, 52, xb, False)
            if WF: e("s_mov_b32 exec_hi, -1")
    def isC(i):
        if XNOL and i >= 2:
            e("buffer_load_dword v30, off, s[40:43], 0"); vm.issue(f"c{i}")
            if PK and i == 3 and not PKN: pk_flag()
            return
        if WF:
            isW(i)
            if i == 0: ka_rest()
            isX(i)
        else:
            isX(i)
            if PK and i == 3 and not PKN: pk_flag()
            isW(i)
        if PK and i == 0: mk_table()
    def second():
        scal2()
        srd_rest()
        stamp(vm, SO + 0)
        nonce_issue(vm)
        if PK: pk_setup()
    def flg():
        e(f"v_mov_b32 v3, {FLG}")
        e("v_mov_b32 v4, 0")
        e("v_mov_b32 v5, 0")
        e("ds_write_b64 v3, v[4:5]")
        e("s_waitcnt lgkmcnt(0)")
    if isB:
        isC(0)
        wmark(2)
        if SEC == 0 or SEC == 2: second()
        if SEC != 2: step_hdr(81); isC(1)
        if SEC == 1: second()
        stamp(vm, 36)
        if LPRIO and LPR2 >= 0: e(f"s_setprio {LPR2}")
        flg()
        for i in range(7):
            if i == 0: stamp(vm, 37); wmark(3)
            if i == 0 and XNOL: wo_voffs(True)
            pk_pre(i)
            if i == 0: stamp(vm, 38); wmark(4)
            e("s_barrier")
            if i == 0: wmark(5); wdump(vm)
            pk_post(i)
            if i == 5: pk_stat()
            if i == 0 and not XNOL: capture(wo_voffs, True)
            if i == 2: nonce_get()
            if i == 0 and SEC == 2: step_hdr(81); isC(1)
            if i <= 4: step_hdr(81); isC(i+2)
            if i == 4: flush()
            if i >= 5:
                tb = 0xa860 if i == 5 else 0xec42
                e("s_lshl_b32 s3, s49, 2")
                e(f"s_lshr_b32 s52, 0x{tb:x}, s3")
                e("s_and_b32 s52, s52, 15")
                e(f"s_mul_i32 s53, s52, {WB}")
                e(f"s_add_u32 s53, s53, {B_wo(0)}")
                e(f"s_mul_i32 s54, s52, {28*896}")
                for dh in range(2): wo_blockg(vm, dh, True)
        e(f"v_mov_b32 v3, {FLG}")
        e("v_mov_b32 v4, 1")
        e("s_barrier")
        e("s_waitcnt vmcnt(0)")
        e("s_mov_b64 exec, 1")
        e("ds_add_u32 v3, v4")
        e("s_mov_b64 exec, -1")
        stamp(vm, SO + 3)
        e("s_branch P2_BL")
        return
    isC(0)
    wmark(2)
    if SEC == 1:
        step_hdr(81); isC(1)
    second()
    stamp(vm, 36)
    for r in range(4): e(f"v_mov_b32 v{4+r}, 0")
    zs = uid("ZS")
    e("s_cmp_eq_u32 s25, 0")
    e(f"s_cbranch_scc0 {zs}")
    e("s_lshl2_add_u32 s3, s26, s49")
    e(f"s_mul_i32 s3, s3, {16*AS}")
    e(f"s_add_u32 s3, s3, 0x{ACC:x}")
    e("v_lshrrev_b32 v3, 2, v2")
    e(f"v_mul_u32_u24 v3, {AS}, v3")
    e("v_and_b32 v19, 3, v2")
    e("v_lshl_add_u32 v3, v19, 5, v3")
    e("buffer_store_dwordx4 v[4:7], v3, s[40:43], s3 offen sc0 sc1")
    e("buffer_store_dwordx4 v[4:7], v3, s[40:43], s3 offen offset:16 sc0 sc1")
    lab(zs)
    if SEC == 0:
        step_hdr(81); isC(1)
    flg()
    if LPRIO and LPR2 >= 0: e(f"s_setprio {LPR2}")
    def isQ(i):
        step_hdr(82, x=False)
        for j in range(2): dmag(vm, "q", 12, 32, "s83", j*43008, 50, A_q(i) + j*3584, False)
    for i in range(7):
        if i == 0: stamp(vm, 37); wmark(3)
        if i == 0 and XNOL: wo_voffs(False)
        pk_pre(i)
        if i == 0: stamp(vm, 38); wmark(4)
        e("s_barrier")
        if i == 0: wmark(5); wdump(vm)
        pk_post(i)
        if i == 5: pk_stat()
        if i == 0 and not XNOL: capture(wo_voffs, False)
        if i == (ZFI if QE else 3):
            nonce_get()
            zs = uid("ZF")
            e("s_or_b32 s3, s25, s49")
            e(f"s_cbranch_scc1 {zs}")
            e("s_lshl_b32 s3, s26, 2")
            e(f"v_mov_b32 v22, {CNT_Z}")
            e("v_mov_b32 v23, 1")
            e("s_mov_b64 exec, 1")
            e("buffer_store_dword v23, v22, s[44:47], s3 offen sc0 sc1")
            e("s_mov_b64 exec, -1")
            lab(zs)
        if i == 0 and SEC == 2: step_hdr(81); isC(1)
        if i + 2 <= 6: step_hdr(81); isC(i+2)
        if i == 4: flush()
        if QE:
            if i == 5:
                e(f"v_mov_b32 v3, {CNT_Z}")
                e("s_lshl_b32 s3, s26, 2")
                e("buffer_load_dword v19, v3, s[44:47], s3 offen sc0 sc1")
                vm.issue("z")
            if i in (4, 5):
                e("s_mov_b32 exec_hi, 0xffffff")
                for k in (range(4) if i == 4 else range(4, 7)): isQ(k)
                e("s_mov_b32 exec_hi, -1")
        elif i >= 5:
            e("s_mov_b32 exec_hi, 0xffffff")
            for k in (range(4) if i == 5 else range(4, 7)): isQ(k)
            e("s_mov_b32 exec_hi, -1")
    e("s_bitcmp1_b32 s49, 1")
    e("s_cbranch_scc1 T_AY")
    e("s_bitcmp1_b32 s49, 0")
    e("s_cbranch_scc1 T_A1")
    e("s_branch T_A0")
    lab("T_AY")
    e("s_bitcmp1_b32 s49, 0")
    e("s_cbranch_scc1 T_A3")
    e("s_branch T_A2")
    global VMA
    VMA = vm

TPR = int(os.environ.get("TPR", "3"))
TPR3 = int(os.environ.get("TPR3", "0"))
TPR2 = int(os.environ.get("TPR2", "-1"))
def tailA(lw):
    lab(f"T_A{lw}")
    vm = VM(); vm.ops = list(VMA.ops)
    SO = 32
    isB = False
    if True:
        zl = uid("ZL"); zd = uid("ZD"); z1 = uid("Z1")
        e("s_mov_b32 s78, 0")
        e(f"v_mov_b32 v3, {CNT_Z}")
        e("s_lshl_b32 s3, s26, 2")
        if not QE:
            e("buffer_load_dword v19, v3, s[44:47], s3 offen sc0 sc1")
            vm.issue("z")
        wo_block(vm, 8 + lw, False)
        if QE: wo_block(vm, 12 + lw, False)
        vm.wait("z")
        e(f"s_branch {z1}")
        lab(zl)
        e("buffer_load_dword v19, v3, s[44:47], s3 offen sc0 sc1")
        e("s_waitcnt vmcnt(0)")
        lab(z1)
        e("v_readfirstlane_b32 s79, v19")
        e("s_add_u32 s78, s78, 1")
        e("s_nop 2")
        e("s_cmp_eq_u32 s79, 1")
        e(f"s_cbranch_scc1 {zd}")
        e("s_sleep 1")
        e("s_cmp_gt_u32 s78, 0x40000")
        e(f"s_cbranch_scc0 {zl}")
        lab(zd)
        hh = lw >> 1; et = lw & 1
        e("v_and_b32 v5, 15, v2")
        e("v_lshrrev_b32 v6, 4, v2")
        e("v_lshlrev_b32 v3, 4, v2")
        e(f"v_add_u32 v4, {A_scr(lw)}, v3")
        e(f"s_mul_i32 s3, s26, {64*AS}")
        e(f"s_add_u32 s57, s3, 0x{ACC + lw*16*AS:x}")
        for r in range(1, 4): e(f"s_add_u32 s{50+r}, s57, {r*AS}")
        e(f"s_add_u32 s54, s57, {8*AS}")
        e(f"v_mul_u32_u24 v8, {4*AS}, v6")
        e("v_lshl_add_u32 v8, v5, 2, v8")
        e("v_cmp_gt_u32 s[66:67], 3, v6")
        e("v_cmp_le_u32 s[64:65], 14, v5")
        e("v_cmp_gt_u32 s[68:69], 2, v5")
        e("v_and_b32 v10, 7, v2")
        e("v_lshrrev_b32 v11, 3, v2")
        e(f"v_mul_u32_u24 v9, {AS}, v11")
        e("v_lshl_add_u32 v9, v10, 4, v9")
        e("v_cmp_eq_u32 s[4:5], 3, v10")
        e("v_cmp_eq_u32 s[6:7], 4, v10")
        e("s_or_b64 s[6:7], s[6:7], s[4:5]")
        if et:
            e("v_cmp_gt_u32 s[8:9], 5, v11")
            e("s_and_b64 s[10:11], s[8:9], s[6:7]")
            e("v_cmp_eq_u32 s[12:13], 4, v11")
        else:
            e("s_mov_b64 s[10:11], s[6:7]")
        e("v_and_b32 v12, 3, v10")
        e("v_lshlrev_b32 v12, 4, v12")
        e("v_lshrrev_b32 v10, 2, v10")
        e("v_lshl_add_u32 v12, v10, 3, v12")
        e(f"v_add_u32 v12, {KVB + hh*2048}, v12")
        for j in range(2):
            e(f"v_add_u32 v13, {16*et + 8*j}, v11")
            e("v_mul_u32_u24 v14, 37, v13")
            e("v_lshrrev_b32 v14, 8, v14")
            e("v_mul_u32_u24 v15, 7, v14")
            e("v_sub_u32 v15, v13, v15")
            e("v_lshrrev_b32 v16, 2, v15")
            e("v_and_b32 v15, 3, v15")
            e("v_lshl_add_u32 v15, v14, 2, v15")
            e("v_lshl_add_u32 v15, v16, 4, v15")
            if et and j:
                e("v_cndmask_b32 v15, v15, 19, s[12:13]")
            e(f"v_lshl_add_u32 v{20+j}, v15, 6, v12")
        if TPR: e(f"s_setprio {TPR}")
        vm.wait("q")
        e("s_barrier")
        stamp(vm, SO + 1)
        RD = 48
        for dt in range(2):
            for w in range(2):
                r = RD + dt*16 + w*4
                e(f"ds_read_b128 v[{r}:{r+3}], v4 offset:{w*2048 + dt*1024}")
        for dt in range(2):
            e(f"s_waitcnt lgkmcnt({2-2*dt})")
            b = RD + dt*16
            for r in range(4):
                e(f"v_add_f32 v{b+r}, v{b+r}, v{b+4+r}")
            for r in range(4):
                e(f"v_cndmask_b32 v{b+r}, v{b+r}, 1.0, s[{64+4*dt}:{65+4*dt}]")
        for dt in range(2):
            e(f"buffer_atomic_add_f32 v{RD+dt*16}, v8, s[40:43], s57 offen offset:{dt*64} sc1")
        if et: e("s_mov_b64 exec, s[66:67]")
        for r in range(1, 4):
            for dt in range(2):
                e(f"buffer_atomic_add_f32 v{RD+dt*16+r}, v8, s[40:43], s{50+r} offen offset:{dt*64} sc1")
        if et: e("s_mov_b64 exec, -1")
        stamp(vm, SO + 2)
        if TPR2 >= 0: e(f"s_setprio {TPR2}")
        wo_block(vm, lw, False)
        wo_block(vm, lw + 4, False)
        if not QE: wo_block(vm, lw + 12, False)
        PR = 80
        lp = uid("KVL"); dn = uid("KVD")
        e("s_mov_b32 s78, 0")
        lab(lp)
        for j in range(2):
            e(f"buffer_load_dwordx4 v[{PR+j*4}:{PR+j*4+3}], v9, s[40:43], s{54 if j else 57} offen sc0 sc1")
        e("s_waitcnt vmcnt(0)")
        e(f"v_cndmask_b32 v13, v{PR}, v{PR+2}, s[4:5]")
        e("v_cmp_eq_f32 vcc, 0x41800000, v13")
        e("s_and_b64 s[14:15], vcc, s[6:7]")
        e(f"v_cndmask_b32 v13, v{PR+4}, v{PR+6}, s[4:5]")
        e("v_cmp_eq_f32 vcc, 0x41800000, v13")
        e("s_and_b64 s[16:17], vcc, s[10:11]")
        e("s_xor_b64 s[14:15], s[14:15], s[6:7]")
        e("s_xor_b64 s[16:17], s[16:17], s[10:11]")
        e("s_or_b64 s[14:15], s[14:15], s[16:17]")
        e(f"s_cbranch_scc0 {dn}")
        e("s_add_u32 s78, s78, 1")
        e("s_cmp_gt_u32 s78, 0x40000")
        e(f"s_cbranch_scc0 {lp}")
        lab(dn)
        for j in range(2):
            r = PR + j*4
            e(f"v_cvt_pk_bf16_f32 v{r}, v{r}, v{r+1}")
            e(f"v_cvt_pk_bf16_f32 v{r+1}, v{r+2}, v{r+3}")
            if et and j: e("s_mov_b64 exec, s[8:9]")
            e(f"ds_write_b64 v{20+j}, v[{r}:{r+1}]")
        if et:
            e("s_mov_b64 exec, s[12:13]")
            for k in range(1, 4):
                e(f"ds_write_b64 v21, v[{PR+4}:{PR+5}] offset:{k*256}")
            e("s_mov_b64 exec, -1")
        e("s_waitcnt lgkmcnt(0)")
        e("s_barrier")
        if TPR and TPR3 >= 0: e(f"s_setprio {TPR3}")
        stamp(vm, SO + 3)
    e(f"s_branch P2_{'B' if isB else 'A'}L")

NP = int(os.environ.get("NP", "64"))
NRES = 10
SLP = int(os.environ.get("SLP", "4"))
EARLY = os.environ.get("EARLY", "0") == "1"
FPOL = os.environ.get("FPOL", "nt")
TR = os.environ.get("TR") == "1"
def tr(k):
    if TR: e(f"s_memrealtime s[{4+2*k}:{5+2*k}]")
PST = int(os.environ.get("PST", "0"))
AC = 16; OF = 44; WV = 76; ST = 124
def oreg(j, hh): return OF + (j*2+hh)*4
def wreg(j, f):
    if f >= NRES: return "v", ST + (f-NRES)*4
    i = j*NRES + f
    return ("a", i*4) if i < 28 else ("v", WV + (i-28)*4)
def rdf(j, f):
    hh, nt = divmod(f, 7)
    k, r = wreg(j, f)
    o = (2*j+hh)*WB + nt*32
    e(f"ds_read_b64_tr_b16 {k}[{r}:{r+1}], v8 offset:{o}")
    e(f"ds_read_b64_tr_b16 {k}[{r+2}:{r+3}], v9 offset:{o}")
def rd_res(kind):
    for j in range(4):
        for f in range(NRES):
            if wreg(j, f)[0] in kind: rdf(j, f)
def wo_bases(wo):
    e("v_lshrrev_b32 v7, 4, v2")
    e("v_lshrrev_b32 v3, 1, v7")
    e("v_bfe_u32 v8, v2, 2, 2")
    e("v_mul_u32_u24 v9, 14, v3")
    e("v_and_b32 v4, 1, v7")
    e("v_lshl_add_u32 v6, v4, 2, v9")
    e("v_add_u32 v6, v6, v8")
    e("v_mul_u32_u24 v5, 3, v4")
    e("v_min_u32 v8, 2, v8")
    e("v_add3_u32 v9, v9, v5, v8")
    e("v_add_u32 v9, 8, v9")
    e("v_and_b32 v5, 3, v2")
    e("v_lshlrev_b32 v5, 3, v5")
    e(f"v_add_u32 v5, {wo}, v5")
    e(f"v_mul_u32_u24 v8, {RS}, v6")
    e("v_add_u32 v8, v8, v5")
    e(f"v_mul_u32_u24 v9, {RS}, v9")
    e("v_add_u32 v9, v9, v5")
def spin_flag(off, val, cmp_):
    lp = uid("SP")
    e(f"v_mov_b32 v3, {FLG}")
    lab(lp)
    e(f"ds_read_b32 v4, v3 offset:{off}")
    e("s_waitcnt lgkmcnt(0)")
    e("v_readfirstlane_b32 s3, v4")
    e("s_nop 3")
    e(f"s_cmp_{cmp_}_u32 s3, {val}")
    e(f"s_cbranch_scc0 {lp}")
def tcol(isB, grp, t):
    return (t >> 1)*56 + (t & 1)*(24 if (not isB and grp < 2) else 32)

def accA(grp, rt, t): return 32 + (rt*4+t)*4
def accA2(grp, t, rt): return 32 + (grp-1)*32 + (t*4+rt)*4
def accB(grp, t, r):
    if grp == 0: return 32 + r*8 + t*4
    if grp == 1: return 64 + r*8 + t*4
    return 104 + t*20 + r*4

def comp_setup(isB):
    wo_bases((B_wo if isB else A_wo)(0))
    e("v_lshrrev_b32 v3, 4, v2")
    e("v_bfe_u32 v4, v2, 2, 2")
    e("v_lshl_add_u32 v4, v3, 3, v4")
    e("v_and_b32 v5, 1, v3")
    e("v_lshlrev_b32 v5, 2, v5")
    e("v_add_u32 v6, v4, v5")
    e("v_xor_b32 v7, 4, v6")
    e(f"v_mul_u32_u24 v6, {RS}, v6")
    e(f"v_mul_u32_u24 v7, {RS}, v7")
    e("v_and_b32 v5, 3, v2")
    e("v_lshl_add_u32 v14, v5, 3, v6")
    e("v_lshl_add_u32 v15, v5, 3, v7")
    e("s_and_b32 s49, s48, 1")
    e("s_lshr_b32 s50, s48, 1")
    e("s_mul_i32 s3, s49, 56")
    e("v_add_u32 v12, s3, v14")
    e("v_add_u32 v13, s3, v15")
    e("v_and_b32 v4, 15, v2")
    e("v_lshrrev_b32 v5, 1, v4")
    e("v_xor_b32 v5, v5, v3")
    e("v_lshlrev_b32 v5, 4, v5")
    e("v_lshl_add_u32 v18, v4, 7, v5")
    if isB:
        e("s_lshl_b32 s3, s50, 13")
        e("v_add_u32 v16, s3, v18")
        e("v_xor_b32 v17, 64, v16")
    else:
        e("v_lshl_add_u32 v16, v1, 12, v18")
        e("v_xor_b32 v17, 64, v16")
        e("v_xor_b32 v18, 0x1000, v16")
        e("v_xor_b32 v19, 0x1000, v17")

ILV = os.environ.get("ILV", "1") == "1"
def pr2(n, d):
    v = [int(x) for x in os.environ.get(n, d).split(",")]
    return v if len(v) == 2 else v*2
LAs = pr2("LA", "16,18"); URGs = pr2("URG", "8,8"); BLs = pr2("BL", "6,6"); BLLs = pr2("BLL", "3,3")
SYC = int(os.environ.get("SYC", "1"))
assert not QE or (ILV and BLLs[0] <= 3)
def gemm(vm, isB):
    global L
    lg = LG()
    D = DB if isB else DA
    NB = 12 if isB else 6
    assert D <= (5 if isB else 4)
    def bf(j):
        r = (j % NB)*4 + (0 if isB else 96); k = "a" if isB else "v"
        return (f"{k}[{r}:{r+3}]", f"{k}[{r}:{r+1}]", f"{k}[{r+2}:{r+3}]")
    def xr(ch, kk, rt):
        st = (2*ch + kk) % 3
        if isB: r = 48 + st*20 + rt*4
        elif rt < 2: r = (ch*4 + kk*2 + rt)*4
        else:
            r = 120 + st*8 + (rt-2)*4
            return f"v[{r}:{r+3}]"
        return f"a[{r}:{r+3}]"
    items = []
    for ch in range(7):
        for kk in range(2):
            for grp in ((0, 1, 2) if isB else (1, 2)):
                for t in range(2): items.append((ch, kk, grp, t))
    def sync(ch):
        if ch == 6: vm.wait("pre" if PRE else "non")
        if ch == 0: wmark(4)
        e("s_barrier")
        if ch == 0: wmark(5); wdump(vm)
        stamp(vm, 12 + ch)
        if PST == ch + 2: prestore(vm, isB)
        pf_bar(vm, isB, ch)
        wb = 20 + (ch & 1)*2
        kvb = B_kv(ch) if isB else A_kv(ch)
        xb = B_x(ch) if isB else A_x(ch)
        e(f"v_add_u32 v24, {xb}, v16")
        e(f"v_add_u32 v25, {xb}, v17")
        if not isB:
            e(f"v_add_u32 v26, {xb}, v18")
            e(f"v_add_u32 v27, {xb}, v19")
        e(f"v_add_u32 v{wb}, {kvb}, v12")
        e(f"v_add_u32 v{wb+1}, {kvb}, v13")
    def xrd(ch, kk):
        if XNOR or XNOX: return
        if isB:
            for rt in (1, 2, 3, 4, 0):
                e(f"ds_read_b128 {xr(ch,kk,rt)}, v{24+kk} offset:{rt*2048}")
                lg.issue(f"x{ch}")
        else:
            for rt in range(4):
                e(f"ds_read_b128 {xr(ch,kk,rt)}, v{24+kk+(rt>>1)*2} offset:{(rt&1)*2048}")
                lg.issue(f"x{ch}")
    def wrd(j):
        ch, kk, grp, t = items[j]
        wb = 20 + (ch & 1)*2
        if grp == 0: off = KVS + kk*112 + t*32
        else: off = 32*kk*RS + (grp-1)*112 + t*(24 if (not isB and grp == 1) else 32)
        for hf in range(2):
            if XNOR or (XNOW and hf): continue
            e(f"ds_read_b64_tr_b16 {bf(j)[1+hf]}, v{wb+hf} offset:{off}")
            lg.issue(f"w{j}")
    def rd(j):
        ch, kk, grp, t = items[j]
        if j == 0 or items[j-1][0] != ch: sync(ch)
        if j == 0 or items[j-1][:2] != (ch, kk): xrd(ch, kk)
        wrd(j)
    def mfmas(j):
        ch, kk, grp, t = items[j]
        tr = isB and grp < 2
        first = (ch == 0 and kk == 0)
        o = []
        for r in range(5 if (isB and grp) else 4):
            a = accB(grp, t, r) if isB else accA2(grp, t, r)
            x = xr(ch, kk, r + 1 if (isB and grp == 0) else r)
            cc = "0" if first else f"v[{a}:{a+3}]"
            if tr: o.append(f"v_mfma_f32_16x16x32_bf16 v[{a}:{a+3}], {bf(j)[0]}, {x}, {cc}")
            else: o.append(f"v_mfma_f32_16x16x32_bf16 v[{a}:{a+3}], {x}, {bf(j)[0]}, {cc}")
        return o
    if ILV:
        LA = LAs[isB]; URG = URGs[isB]; BL = BLs[isB]; BLL = BLLs[isB]
        F = []; n = 0
        for j in range(len(items)): F.append(n); n += len(mfmas(j))
        F.append(n)
        ipc = len(items) // 7
        ops = []
        lg0 = lg
        for j in range(len(items)):
            ch, kk, grp, t = items[j]
            bufe = F[j - NB + 1] if j >= NB else -10**9
            if j % ipc == 0:
                bl = BLL if ch == 6 else BL
                ops.append((j, F[j] - bl, "S", ch, None))
            class Rec:
                def __init__(s_): s_.t = []
                def issue(s_, tag): s_.t.append(tag)
            sv = L; L = []; lg = Rec()
            if j % (ipc//2) == 0: xrd(ch, kk)
            nx = len(L)
            wrd(j)
            ins = L; L = sv
            for q, (ln, tg) in enumerate(zip(ins, lg.t)):
                ear = F[j] - LA
                if q >= nx: ear = max(ear, bufe)
                else:
                    jp = j - 2*(ipc//2)
                    if jp >= 0: ear = max(ear, F[jp])
                ops.append((j, ear, "L", ln, tg))
            lg = lg0
        qi = 0
        def emit(op):
            if op[2] == "S": sync(op[3])
            else: L.append(op[3]); lg.issue(op[4])
        g = 0
        for j in range(len(items)):
            for m, ins in enumerate(mfmas(j)):
                if m == 0:
                    while qi < len(ops) and ops[qi][0] <= j: emit(ops[qi]); qi += 1
                cnt = 0
                while qi < len(ops) and ops[qi][1] <= g:
                    lim = 2 if F[ops[qi][0]] - g < URG else 1
                    if ops[qi][2] == "L" and cnt >= lim: break
                    if ops[qi][2] == "L": cnt += 1
                    else: cnt += SYC
                    emit(ops[qi]); qi += 1
                if m == 0: lg.wait(f"w{j}")
                e(ins); g += 1
        return
    for j in range(D): rd(j)
    for j, (ch, kk, grp, t) in enumerate(items):
        if j + D < len(items): rd(j + D)
        if not XNOR: lg.wait(f"w{j}")
        if XNOM and ch > 0: continue
        for ins in mfmas(j): e(ins)

def pass2():
    lg = LG()
    D = int(os.environ.get("D2", "6")); NB = 12
    items = [(ch, kk, t) for ch in range(7) for kk in range(2) for t in range(4)]
    e(f"v_add_u32 v20, {A_q(0)}, v14")
    e(f"v_add_u32 v21, {A_q(0)}, v15")
    def rd(j, hfs=(0, 1)):
        if j >= len(items): return
        ch, kk, t = items[j]
        r = 96 + (j % NB)*4
        off = A_q(ch) - A_q(0) + kk*112 + tcol(False, 0, t)
        for hf in hfs:
            e(f"ds_read_b64_tr_b16 v[{r+2*hf}:{r+2*hf+1}], v{20+hf} offset:{off}")
            lg.issue(f"w{j}")
    for j in range(D): rd(j)
    for j, (ch, kk, t) in enumerate(items):
        rd(j + D, (0,) if ILV else (0, 1))
        lg.wait(f"w{j}")
        r = 96 + (j % NB)*4
        for rt in range(2):
            a = accA(0, rt, t); x = (ch*4 + kk*2 + rt)*4
            cc = "0" if (ch == 0 and kk == 0) else f"v[{a}:{a+3}]"
            e(f"v_mfma_f32_16x16x32_bf16 v[{a}:{a+3}], v[{r}:{r+3}], a[{x}:{x+3}], {cc}")
            if rt == 0 and ILV: rd(j + D, (1,))

def tile_addr(isB, r=14):
    if isB:
        e("s_lshl_b32 s3, s50, 13")
        e("s_lshl_b32 s27, s49, 10")
        e("s_add_u32 s3, s3, s27")
        e(f"v_lshlrev_b32 v{r}, 4, v2")
        e(f"v_add_u32 v{r}, s3, v{r}")
        e(f"v_add_u32 v{r+1}, 0x1000, v{r}")
    else:
        e(f"v_lshlrev_b32 v{r}, 12, v1")
        e(f"v_lshl_add_u32 v{r}, v2, 4, v{r}")
    e("s_lshl_b32 s27, s26, 14")
    e("s_add_u32 s63, s59, s27")
PLD = os.environ.get("PLD", "0") == "1"
def prestore(vm, isB):
    if PLD:
        e("v_lshlrev_b32 v10, 7, v2")
        e("v_lshl_add_u32 v10, v1, 12, v10")
        e("s_lshl_b32 s27, s26, 14")
        e("s_add_u32 s63, s59, s27")
        e("s_mov_b64 exec, 0xffffffff")
        e("buffer_load_dword v30, v10, s[40:43], s63 offen nt")
        e("s_mov_b64 exec, -1")
        vm.issue("pre")
        return
    tile_addr(isB, 10)
    for r in range(4): e(f"v_mov_b32 v{4+r}, 0")
    for (va, off, n) in tile_regs(isB):
        e(f"buffer_store_dwordx4 v[4:7], v{va-4}, s[40:43], s63 offen offset:{off}")
        vm.issue("pre")
def tile_regs(isB):
    if isB: return [(14 + (rt >> 1), (rt & 1)*2048, 16 + rt*4) for rt in range(4)]
    return [(14, rt*2048 + hh*1024, 16 + (hh*2+rt)*4) for hh in range(2) for rt in range(2)]
def tile_store(isB, q, vm=None):
    for (va, off, n) in tile_regs(isB):
        if q: e(f"buffer_store_dwordx4 v[{n}:{n+3}], v{va}, s[40:43], s51 offen offset:{off} sc0 sc1")
        else: e(f"buffer_store_dwordx4 v[{n}:{n+3}], v{va}, s[40:43], s63 offen offset:{off} {TPOL}")
        if vm: vm.issue("Q")

ESG = os.environ.get("ESG", "1") == "1"
LSL = int(os.environ.get("LSL", "0"))
def sigT():
    e(f"v_mov_b32 v3, {FLG}")
    e("v_mov_b32 v4, 1")
    e("s_mov_b64 exec, 1")
    e("ds_add_u32 v3, v4 offset:4")
    e("s_mov_b64 exec, -1")
def epi_A(vm):
    c("---- A epilogue ----")
    e("v_and_b32 v5, 15, v2")
    e("v_lshrrev_b32 v6, 4, v2")
    e("v_cmp_le_u32 s[64:65], 12, v5")
    e("v_mov_b32 v7, 0x3f803f80")
    e(f"s_mul_i32 s3, s49, {2*WB}")
    e("s_lshl_b32 s27, s50, 11")
    e("s_add_u32 s3, s3, s27")
    e(f"s_add_u32 s3, s3, {A_scr(0)}")
    e("v_lshlrev_b32 v3, 4, v2")
    e("v_add_u32 v4, s3, v3")
    e("s_nop 7")
    PK = 96; VV = 112; TT = 128; KP = 32
    for t in range(2):
        for pr in range(2):
            sq = []
            for r2 in range(2):
                a = accA2(1, t, pr*2 + r2)
                d = PK + (t*2+pr)*4 + r2*2
                sq.append(phi_pair(d, a, a+1, TT + r2*4))
                sq.append(phi_pair(d + 1, a+2, a+3, TT + r2*4 + 2))
            ilv(sq)
    for t in range(2):
        for rt in range(4):
            a = accA2(2, t, rt)
            d = VV + t*8 + rt*2
            e(f"v_cvt_pk_bf16_f32 v{d}, v{a}, v{a+1}")
            e(f"v_cvt_pk_bf16_f32 v{d+1}, v{a+2}, v{a+3}")
            if t & 1:
                e(f"v_cndmask_b32 v{d}, v{d}, v7, s[64:65]")
                e(f"v_cndmask_b32 v{d+1}, v{d+1}, v7, s[64:65]")
    e("s_nop 1")
    for pr in range(2):
        for et in range(2):
            for dt in range(2):
                d = KP + (et*2 + dt)*4
                va = VV + (et*2+pr)*4; pk = PK + (dt*2+pr)*4
                cc = "0" if pr == 0 else f"v[{d}:{d+3}]"
                e(f"v_mfma_f32_16x16x32_bf16 v[{d}:{d+3}], v[{va}:{va+3}], v[{pk}:{pk+3}], {cc}")
    e("s_nop 7")
    for i in range(4):
        e("s_nop 3")
        e(f"ds_write_b128 v4, v[{KP+i*4}:{KP+i*4+3}] offset:{(i>>1)*WB + (i&1)*1024}")
    e("s_waitcnt lgkmcnt(0)")
    e("s_barrier")
    stamp(vm, 4)
    pass2()
    stamp(vm, 7)
    nonce_get()
    QF = 64
    e("v_cmp_eq_u32 s[10:11], 3, v6")
    e("v_cmp_eq_u32 s[12:13], 0, v6")
    e("v_lshlrev_b32 v10, 6, v5")
    e("v_lshl_add_u32 v10, v6, 4, v10")
    e(f"v_add_u32 v10, {KVB}, v10")
    tile_addr(False)
    e("v_mov_b32 v11, 0xffff")
    e("s_nop 3")
    for t in range(4):
        sq = []
        for rt in range(2):
            a = accA(0, rt, t)
            d = QF + (rt*2 + (t >> 1))*4 + (t & 1)*2
            s0 = phi_pair(d, a, a+1, TT + rt*4)
            s1 = phi_pair(d+1, a+2, a+3, TT + rt*4 + 2)
            if t & 1: s0.append(f"v_cndmask_b32 v{d}, v{d}, 0, s[12:13]")
            else: s1.append(f"v_cndmask_b32 v{d+1}, v{d+1}, 0, s[10:11]")
            sq += [s0, s1]
        ilv(sq)
    e("s_barrier")
    stamp(vm, 10)
    R = 80
    for hh in range(2):
        for f in range(2):
            r = R + (hh*2+f)*4
            e(f"ds_read_b128 v[{r}:{r+3}], v10 offset:{hh*2048 + f*1024}")
    NR = 96
    for hh in range(2):
        e(f"s_waitcnt lgkmcnt({2 - 2*hh})")
        for rt in range(2):
            n = NR + (hh*2+rt)*8
            q = QF + (rt*2+hh)*4
            for f in (1, 0):
                r = R + (hh*2+f)*4
                e(f"v_mfma_f32_16x16x32_bf16 v[{n+f*4}:{n+f*4+3}], v[{r}:{r+3}], v[{q}:{q+3}], 0")
    if EARLY: rd_res("a")
    if ESG: sigT()
    e("s_nop 7")
    sq = []; regs = []
    for hh in range(2):
        for rt in range(2):
            n = NR + (hh*2+rt)*8
            t = TT + (hh*2+rt)*2
            o = [f"v_add_f32 v{t}, 0x{EPS:x}, v{n+7}",
                 f"v_rcp_f32 v{t}, v{t}",
                 f"v_mov_b32 v{t+1}, v{t}"]
            for q in range(3):
                o.append(f"v_pk_mul_f32 v[{n+2*q}:{n+2*q+1}], v[{n+2*q}:{n+2*q+1}], v[{t}:{t+1}]")
            o.append(f"v_mul_f32 v{n+6}, v{n+6}, v{t}")
            T = 16 + (hh*2+rt)*4
            for q in range(3):
                o.append(f"v_cvt_pk_bf16_f32 v{T+q}, v{n+2*q}, v{n+2*q+1}")
            o.append(f"v_cvt_pk_bf16_f32 v{T+3}, v{n+6}, v{n+6}")
            o.append(f"v_and_or_b32 v{T+3}, v{T+3}, v11, s61")
            sq.append(o)
    ilv(sq)
    tile_store(False, False)
    stamp(vm, 5, 4)

def epi_B(vm):
    c("---- B epilogue ----")
    e("v_and_b32 v5, 15, v2")
    e("v_lshrrev_b32 v6, 4, v2")
    e("v_cmp_gt_u32 s[64:65], 3, v6")
    nonce_get()
    e("v_and_b32 v3, 1, v5")
    e("v_cmp_eq_u32 s[4:5], 1, v3")
    e("v_mov_b32 v10, 0xffff")
    e("v_mov_b32 v11, 0xffff0000")
    e("v_cndmask_b32 v12, v10, v11, s[4:5]")
    e("v_lshl_add_u32 v11, v6, 2, v3")
    e("v_sub_u32 v11, v11, v5")
    def KF(blk): return 64 + blk*8
    def QF(rt): return 32 + rt*8
    def VB(et): return 104 + et*20
    def cvt4(b):
        for q in range(4): e(f"v_cvt_pk_bf16_f32 v{b+q}, v{b+2*q}, v{b+2*q+1}")
    def C0(cb): return 32 + cb*8 + 4
    def C1(cb): return 64 + cb*8 + 4
    for rt in range(4):
        b = QF(rt)
        cvt4(b)
        e(f"v_cndmask_b32 v{b+2}, 0, v{b+2}, s[64:65]")
        e(f"v_cndmask_b32 v{b+3}, 0, v{b+3}, s[64:65]")
    for blk in range(5): cvt4(KF(blk))
    e("s_nop 1")
    for rt in range(4):
        q = QF(rt)
        for ti in range(2):
            k = KF(rt + ti)
            d = C0(rt) if ti == 0 else C1(rt)
            e(f"v_mfma_f32_16x16x32_bf16 v[{d}:{d+3}], v[{k}:{k+3}], v[{q}:{q+3}], 0")
    if not BWM: e("s_barrier")
    for et in range(2):
        b = VB(et)
        for blk in range(5):
            e(f"v_cvt_pk_bf16_f32 v{b+2*blk}, v{b+4*blk}, v{b+4*blk+1}")
            e(f"v_cvt_pk_bf16_f32 v{b+2*blk+1}, v{b+4*blk+2}, v{b+4*blk+3}")
    for k in range(4):
        addk = 2*k if k < 2 else 16 + 2*(k-2)
        e(f"v_add_u32 v13, {addk}, v11")
        e(f"v_cmp_le_i32 s[{6+2*k}:{7+2*k}], 2, v13")
        e(f"v_cmp_ge_i32 vcc, 16, v13")
        e(f"s_and_b64 s[{6+2*k}:{7+2*k}], s[{6+2*k}:{7+2*k}], vcc")
    e("s_or_b32 s3, s25, s50")
    e("s_cmp_eq_u32 s3, 0")
    e("s_cselect_b64 s[14:15], 0, -1")
    e("s_and_b64 s[16:17], s[6:7], s[14:15]")
    e("s_and_b64 s[18:19], s[8:9], s[14:15]")
    e("v_mov_b32 v13, 0xce6e6b28")
    e(f"s_mov_b32 s20, 0x{SC2:x}")
    tile_addr(True)
    e("v_cmp_eq_u32 s[68:69], 3, v6")
    def seq(cb):
        lgr = [C0(cb), C0(cb)+2, C1(cb), C1(cb)+2]
        m = C1(cb)+1; m2 = C1(cb)+3
        o = []
        for k in range(4):
            o.append(f"v_cndmask_b32 v{lgr[k]}, v{lgr[k]}, v{lgr[k]+1}, s[4:5]")
        for k in range(4):
            ms = (16 + 2*k) if (cb == 0 and k < 2) else (6 + 2*k)
            o.append(f"v_cndmask_b32 v{lgr[k]}, v13, v{lgr[k]}, s[{ms}:{ms+1}]")
        o.append(f"v_max3_f32 v{m}, v{lgr[0]}, v{lgr[1]}, v{lgr[2]}")
        o.append(f"v_max_f32 v{m}, v{m}, v{lgr[3]}")
        o.append(f"v_mov_b32 v{m2}, v{m}")
        o.append(f"v_permlane16_swap_b32 v{m}, v{m2}")
        o.append(f"v_max_f32 v{m}, v{m}, v{m2}")
        o.append(f"v_mov_b32 v{m2}, v{m}")
        o.append(f"v_permlane32_swap_b32 v{m}, v{m2}")
        o.append(f"v_max_f32 v{m}, v{m}, v{m2}")
        o.append(f"v_mul_f32 v{m}, 0x{SC2 ^ 0x80000000:x}, v{m}")
        for k in range(4):
            o.append(f"v_fma_f32 v{lgr[k]}, v{lgr[k]}, s20, v{m}")
        for k in range(4):
            o.append(f"v_exp_f32 v{lgr[k]}, v{lgr[k]}")
        o.append(f"v_add_f32 v{m}, v{lgr[0]}, v{lgr[1]}")
        o.append(f"v_add_f32 v{m2}, v{lgr[2]}, v{lgr[3]}")
        o.append(f"v_add_f32 v{m}, v{m}, v{m2}")
        o.append(f"v_mov_b32 v{m2}, v{m}")
        o.append(f"v_permlane16_swap_b32 v{m}, v{m2}")
        o.append(f"v_add_f32 v{m}, v{m}, v{m2}")
        o.append(f"v_mov_b32 v{m2}, v{m}")
        o.append(f"v_permlane32_swap_b32 v{m}, v{m2}")
        o.append(f"v_add_f32 v{m}, v{m}, v{m2}")
        o.append(f"v_rcp_f32 v{m}, v{m}")
        for k in range(4):
            o.append(f"v_mul_f32 v{lgr[k]}, v{lgr[k]}, v{m}")
            o.append(f"v_cvt_pk_bf16_f32 v{C0(cb)+k}, v{lgr[k]}, v{lgr[k]}")
            o.append(f"v_and_b32 v{C0(cb)+k}, v{C0(cb)+k}, v12")
        return o
    ilv([seq(cb) for cb in range(4)])
    if EARLY:
        spin_flag(0, 4, "eq")
        rd_res("a")
    e("s_nop 1")
    for rt in range(4):
        for et in (1, 0):
            o = QF(rt) if et == 0 else C1(rt)
            v = VB(et) + 2*rt
            e(f"v_mfma_f32_16x16x32_bf16 v[{o}:{o+3}], v[{v}:{v+3}], v[{C0(rt)}:{C0(rt)+3}], 0")
    if ESG: sigT()
    e("s_nop 7")
    sq = []; regs = []
    for rt in range(4):
        o0 = QF(rt); o1 = C1(rt); t = C0(rt)
        T = 16 + rt*4
        o = [f"v_mov_b32 v{t}, v{o1+3}",
             f"v_cvt_pk_bf16_f32 v{T}, v{o0}, v{o0+1}",
             f"v_permlane32_swap_b32 v{t+1}, v{t}",
             f"v_permlane16_swap_b32 v{t+2}, v{o1+3}",
             f"v_cvt_pk_bf16_f32 v{T+1}, v{o0+2}, v{o0+3}",
             f"v_permlane16_swap_b32 v{t+3}, v{t+1}",
             f"v_cndmask_b32 v{o1+2}, v{o1+2}, v{t+2}, s[68:69]",
             f"v_cndmask_b32 v{o1+1}, v{o1+1}, v{t+1}, s[68:69]",
             f"v_cndmask_b32 v{o1}, v{o1}, v{t+3}, s[68:69]",
             f"v_cvt_pk_bf16_f32 v{T+3}, v{o1+2}, v{o1+2}",
             f"v_cvt_pk_bf16_f32 v{T+2}, v{o1}, v{o1+1}",
             f"v_and_or_b32 v{T+3}, v{T+3}, v10, s61"]
        sq.append(o)
    ilv(sq)
    tile_store(True, False)
    if BWM: e("s_barrier")
    stamp(vm, 5, 4)

P2P = [int(x) for x in os.environ.get("P2P", "-1,-1,-1").split(",")]
def p2(isB, isC):
    lab(f"P2_{'B' if isB else 'A'}{'C' if isC else 'L'}")
    c("---- P2: wave = (16 rows, K half) x 112 cols ----")
    kh = 0 if isC else 1
    wo = (B_wo if isB else A_wo)(8*kh)
    def ld(j, pol=None):
        for hh in range(2):
            r = oreg(j, hh)
            e(f"buffer_load_dwordx4 v[{r}:{r+3}], v6, s[40:43], s{64+j} offen offset:{hh*1024} {PPOL if pol is None else pol}")
    tr(0)
    if isC and not ESG: sigT()
    e("s_and_b32 s49, s48, 3")
    e("s_and_b32 s50, s26, 1")
    e("s_lshl_b32 s3, s50, 13")
    e("s_lshl_b32 s27, s49, 11")
    e("s_add_u32 s3, s3, s27")
    e("s_add_u32 s64, s59, s3")
    if kh: e("s_add_u32 s64, s64, 0x10000")
    for j in range(1, 4): e(f"s_add_u32 s{64+j}, s64, {j*16384}")
    e("v_lshlrev_b32 v6, 4, v2")
    if isC:
        for j in range(4): ld(j, FPOL)
        if os.environ.get("TR0") == "2": tr(7)
    if not isC:
        wo_bases(wo)
        e("v_lshlrev_b32 v6, 4, v2")
    if isB and not (isC and EARLY): spin_flag(0, 4, "eq")
    T3 = os.environ.get("TR0") == "3"
    if T3: tr(6)
    rd_res("v" if (isC and EARLY) else "av")
    if T3: tr(7)
    e("v_lshrrev_b32 v7, 4, v2")
    e("v_lshrrev_b32 v11, 1, v7")
    e("v_and_b32 v12, 1, v7")
    e("v_and_b32 v5, 15, v2")
    e("s_lshl_b32 s3, s25, 7")
    e("s_lshl_b32 s27, s50, 6")
    e("s_add_u32 s3, s3, s27")
    e("s_lshl_b32 s27, s49, 4")
    e("s_add_u32 s3, s3, s27")
    e("v_add_u32 v5, s3, v5")
    e("v_mul_u32_u24 v10, 1792, v5")
    e("s_mul_i32 s3, s24, 896")
    e("s_add_u32 s3, s3, s55")
    e("v_add_u32 v10, s3, v10")
    if kh: e("v_lshl_add_u32 v14, v7, 3, v10")
    e("v_lshl_add_u32 v10, v12, 5, v10")
    e("v_lshl_add_u32 v10, v11, 4, v10")
    e("s_mul_i32 s3, s49, 7168")
    e(f"s_add_u32 s3, s3, {RED_B if isB else RED_A}")
    e("v_add_u32 v12, s3, v6")
    for r in range(28): e(f"v_mov_b32 v{AC+r}, 0")
    e("s_mov_b32 s78, 0")
    e("s_mov_b32 s79, 15")
    e("s_mov_b32 s68, 0x10000")
    if not isC:
        e("s_waitcnt lgkmcnt(0)")
        if P2P[0] >= 0: e(f"s_setprio {P2P[0]}")
        if isB and BWM: e("s_barrier")
        else: spin_flag(4, 1, "ge")
        if os.environ.get("TR0") == "1": tr(0)
        if LSL: e(f"s_sleep {LSL}")
        for j in range(4): ld(j, FPOL)
        if P2P[1] >= 0: e(f"s_setprio {P2P[1]}")
    elif P2P[2] >= 0: e(f"s_setprio {P2P[2]}")
    e("s_waitcnt lgkmcnt(0)")
    stamp(None, 6 if isC else 39, 4)
    tr(1)
    top = uid("PT"); done = uid("PDN"); fb = uid("PFB")
    lab(top)
    for j in range(4):
        nx = uid("NX"); dm = uid("DM"); bad = uid("BD")
        e("s_waitcnt vmcnt(6)")
        e(f"s_bitcmp1_b32 s79, {j}")
        e(f"s_cbranch_scc0 {dm}")
        r0 = oreg(j, 0) + 3; r1 = oreg(j, 1) + 3
        e(f"v_xor_b32 v{r0}, s61, v{r0}")
        e(f"v_xor_b32 v{r1}, s61, v{r1}")
        e(f"v_or_b32 v13, v{r0}, v{r1}")
        e("v_cmp_gt_u32 vcc, s68, v13")
        e("s_cmp_eq_u64 vcc, -1")
        e(f"s_cbranch_scc0 {bad}")
        tr(2 + j)
        for f in range(NRES, 14): rdf(j, f)
        e(f"buffer_load_dword v15, off, s[40:43], s{64+j}")
        e(f"buffer_load_dword v15, off, s[40:43], s{64+j}")
        e(f"s_bitset0_b32 s79, {j}")
        for f in range(14):
            hh, nt = divmod(f, 7)
            k, wr = wreg(j, f)
            a = AC + nt*4; r = oreg(j, hh)
            if f == NRES: e("s_waitcnt lgkmcnt(0)")
            e(f"v_mfma_f32_16x16x32_bf16 v[{a}:{a+3}], {k}[{wr}:{wr+3}], v[{r}:{r+3}], v[{a}:{a+3}]")
        e("s_cmp_eq_u32 s79, 0")
        e(f"s_cbranch_scc1 {done}")
        e(f"s_branch {nx}")
        lab(bad)
        if SLP: e(f"s_sleep {SLP}")
        ld(j)
        e(f"s_branch {nx}")
        lab(dm)
        e(f"buffer_load_dword v15, off, s[40:43], s{64+j}")
        e(f"buffer_load_dword v15, off, s[40:43], s{64+j}")
        lab(nx)
    e("s_add_u32 s78, s78, 1")
    e(f"s_cmp_lt_u32 s78, {NP}")
    e(f"s_cbranch_scc1 {top}")
    nc = uid("NC"); cp = uid("CP")
    e("s_waitcnt vmcnt(0)")
    e("s_lshl_b32 s57, s24, 4")
    e("s_add_u32 s57, s57, s25")
    e("s_lshl_b32 s57, s57, 7")
    e(f"s_add_u32 s57, s57, 0x{EPO:x}")
    e(f"s_cmp_eq_u32 s78, {NP}")
    e(f"s_cbranch_scc0 {nc}")
    e("s_lshl_b32 s3, s26, 14")
    e("s_add_u32 s62, s59, s3")
    e("s_mov_b32 s69, 0")
    lab(cp)
    for half in range(2):
        rl = uid("RL")
        lab(rl)
        e("v_mov_b32 v13, 0")
        for b in range(8):
            r = OF + b*4
            e(f"s_add_u32 s3, s62, {(half*8+b)*1024}")
            e(f"buffer_load_dwordx4 v[{r}:{r+3}], v6, s[40:43], s3 offen sc0 sc1")
        e("s_waitcnt vmcnt(0)")
        for b in range(8):
            e(f"v_xor_b32 v15, s61, v{OF+b*4+3}")
            e("v_or_b32 v13, v13, v15")
        e("v_cmp_gt_u32 vcc, 0x10000, v13")
        e("s_add_u32 s69, s69, 1")
        e("s_cmp_gt_u32 s69, 0x40000")
        e(f"s_cbranch_scc1 {done}")
        e("s_cmp_eq_u64 vcc, -1")
        e(f"s_cbranch_scc0 {rl}")
        for b in range(8):
            r = OF + b*4
            e(f"s_add_u32 s3, s62, 0x{TLQ + (half*8+b)*1024:x}")
            e(f"buffer_store_dwordx4 v[{r}:{r+3}], v6, s[40:43], s3 offen sc0 sc1")
        e("s_waitcnt vmcnt(0)")
    e("s_lshl_b32 s3, s26, 2")
    e("s_add_u32 s3, s3, s57")
    e("v_mov_b32 v15, s93")
    e("buffer_store_dword v15, off, s[40:43], s3 sc0 sc1")
    e("s_mov_b32 s68, 0x100000")
    lab(nc)
    e("v_and_b32 v15, 3, v2")
    e("v_lshlrev_b32 v15, 2, v15")
    e(f"buffer_load_dword v13, v15, s[40:43], s57 offen offset:{kh*16} sc0 sc1")
    e("s_waitcnt vmcnt(0)")
    e("v_cmp_eq_u32 vcc, s93, v13")
    for j in range(4):
        e(f"s_or_b32 s3, s{64+j}, 0x{TLQ:x}")
        e(f"s_bitcmp1_b32 vcc_lo, {j}")
        e(f"s_cselect_b32 s{64+j}, s3, s{64+j}")
    for j in range(4): ld(j, "sc0 sc1")
    e("s_cmp_lt_u32 s78, 0x40000")
    e(f"s_cbranch_scc1 {top}")
    lab(done)
    if not T3: tr(6)
    if STAMP and (SIDS is None or 11 in SIDS):
        stamp(None, 11 if isC else 40, 4)
        e("v_mov_b32 v4, s78")
        e("s_lshl_b32 s74, s2, 8")
        e(f"s_add_u32 s74, s74, {STB + (20+kh)*4}")
        e("v_mov_b32 v5, 0")
        e("buffer_store_dword v4, v5, s[40:43], s74 offen")
    e("s_nop 7")
    e("s_nop 7")
    snd = range(4, 7) if isC else range(0, 4)
    kp = range(0, 4) if isC else range(4, 7)
    for t in snd:
        e(f"ds_write_b128 v12, v[{AC+t*4}:{AC+t*4+3}] offset:{t*1024}")
    e("s_waitcnt lgkmcnt(0)")
    e("s_barrier")
    if os.environ.get("TR0") not in ("2", "3"): tr(7)
    RR = 76
    for t in kp:
        e(f"ds_read_b128 v[{RR+t*4}:{RR+t*4+3}], v12 offset:{t*1024}")
    if isC:
        sk = uid("NS")
        e("s_or_b32 s3, s26, s48")
        e("s_cmp_eq_u32 s3, 0")
        e(f"s_cbranch_scc0 {sk}")
        e("v_mov_b32 v13, s93")
        e("buffer_store_dword v13, off, s[40:43], s60 sc0 sc1")
        lab(sk)
    D = 108
    for n, t in enumerate(kp):
        e(f"s_waitcnt lgkmcnt({len(kp)-1-n})")
        a = AC + t*4; r = RR + t*4
        e(f"v_pk_add_f32 v[{a}:{a+1}], v[{a}:{a+1}], v[{r}:{r+1}]")
        e(f"v_pk_add_f32 v[{a+2}:{a+3}], v[{a+2}:{a+3}], v[{r+2}:{r+3}]")
        d = D + n*2
        e(f"v_cvt_pk_bf16_f32 v{d}, v{a}, v{a+1}")
        e(f"v_cvt_pk_bf16_f32 v{d+1}, v{a+2}, v{a+3}")
    e("s_nop 1")
    for pr in range(2 if isC else 1):
        d = D + pr*4
        e(f"v_permlane16_swap_b32 v{d}, v{d+2}")
        e(f"v_permlane16_swap_b32 v{d+1}, v{d+3}")
    e("s_nop 1")
    if isC:
        e(f"buffer_store_dwordx4 v[{D}:{D+3}], v10, s[88:91], 0 offen " + OPOL)
        e(f"buffer_store_dwordx4 v[{D+4}:{D+7}], v10, s[88:91], 0 offen offset:64 " + OPOL)
    else:
        e(f"buffer_store_dwordx4 v[{D}:{D+3}], v10, s[88:91], 0 offen offset:128 " + OPOL)
        e(f"buffer_store_dwordx2 v[{D+4}:{D+5}], v14, s[88:91], 0 offen offset:192 " + OPOL)
    stamp(None, 9 if isC else 41, 4)
    if TR:
        tr(8)
        e("s_waitcnt lgkmcnt(0)")
        e("s_lshl_b32 s74, s2, 9")
        e("s_lshl_b32 s3, s48, 6")
        e("s_add_u32 s74, s74, s3")
        e("s_add_u32 s74, s74, 0x910000")
        e("s_mov_b64 exec, 1")
        for k in range(9):
            e(f"v_mov_b32 v4, s{4+2*k}")
            e(f"buffer_store_dword v4, off, s[40:43], s74 offset:{k*4}")
        e("v_mov_b32 v4, s78")
        e(f"buffer_store_dword v4, off, s[40:43], s74 offset:36")
        e("s_mov_b64 exec, -1")
    if not isC: stamp(None, 2, 4)
    e("s_endpgm")

PF = os.environ.get("PF", "1") == "1"
PFT0 = int(os.environ.get("PFT0", "4"))
PFC = os.environ.get("PFC", "0") == "1"
PFD = int(os.environ.get("PFD", "6"))
PF2 = os.environ.get("PF2", "0")
PFW = [int(x) for x in os.environ.get("PFW", "5,2").split(",")]
PFQ = int(os.environ.get("PFQ", "-1"))
PFPOL = os.environ.get("PFPOL", "")
def pf_setup(isB):
    NW = 42 if isB else 28
    e("s_lshl_b32 s3, s23, 2")
    e("s_add_u32 s3, s3, s48")
    e("s_and_b32 s27, s3, 63")
    if PFC: e("s_lshr_b32 s80, s3, 6")
    e("s_lshl_b32 s3, s3, 6")
    e("v_add_u32 v4, s3, v2")
    e("v_min_u32 v4, 6271, v4")
    e("v_lshlrev_b32 v11, 6, v4")
    if not isB:
        e("v_mul_u32_u24 v5, 9363, v4")
        e("v_lshrrev_b32 v5, 17, v5")
        e("v_mul_u32_u24 v5, 1792, v5")
        e("v_add_u32 v4, v5, v11")
    if not PFC: return
    e("s_lshl_b32 s3, s27, 6")
    e("v_add_u32 v5, s3, v2")
    if isB:
        e("v_lshlrev_b32 v10, 6, v5")
    else:
        e("v_mul_u32_u24 v6, 2341, v5")
        e("v_lshrrev_b32 v6, 16, v6")
        e("v_mul_u32_u24 v6, 896, v6")
        e("v_lshl_add_u32 v10, v5, 6, v6")
        e("v_add_u32 v10, 896, v10")
    e(f"v_subrev_u32 v5, {NW*64}, v5")
    e("v_min_u32 v5, 1023, v5")
    e("v_lshrrev_b32 v6, 1, v5")
    e("s_and_b32 s3, s22, 3")
    e("s_lshl_b32 s3, s3, 9")
    e("v_add_u32 v6, s3, v6")
    e("v_mul_u32_u24 v6, 896, v6")
    e("v_and_b32 v5, 1, v5")
    e("v_lshl_add_u32 v6, v5, 6, v6")
    e(f"s_cmp_lt_u32 s27, {NW}")
    e("s_cselect_b64 vcc, -1, 0")
    e("v_cndmask_b32 v10, v6, v10, vcc")
def pf_setup2(isB):
    NW = 42 if isB else 28
    e(f"s_cmp_lt_u32 s27, {NW}")
    e("s_cselect_b32 s4, s32, s28")
    e("s_cselect_b32 s5, s33, s29")
    e("s_cselect_b32 s6, s34, s30")
    e("s_mov_b32 s7, 0x20000")
    e("s_cselect_b32 s12, 1344, 1")
    e("s_lshl_b32 s12, s12, 7")
    e("s_add_u32 s3, s80, 2")
    e("s_mul_i32 s13, s12, s3")
    e("s_mul_i32 s15, s12, 6")
    e("s_lshl_b32 s12, s12, 1")
def pf_step(vm):
    e(f"buffer_load_dword v30, v10, s[4:7], s13 offen {PFPOL}")
    vm.issue("pf")
    e("s_add_u32 s13, s13, s12")
    e("s_min_u32 s13, s13, s15")
def slp(n):
    while n > 0:
        e(f"s_sleep {min(n, 127)}"); n -= 127
def pf_pre(vm):
    slp(PFT0)
    sk = uid("PFS")
    e("s_cmp_eq_u32 s80, 0")
    e(f"s_cbranch_scc1 {sk}")
    slp(PFD)
    lab(sk)
    pf_step(vm)
    slp(2*PFD)
    pf_step(vm)
    if PF2 == "t":
        slp(2*PFD)
        pf_step(vm)
PFA = os.environ.get("PFA", "0") == "1"
PFAM = int(os.environ.get("PFAM", "3"))
PFNQ = os.environ.get("PFNQ", "1") == "1"
PFW4S = [int(x) for x in os.environ.get("PFW4", "4,4").split(",")]
if len(PFW4S) == 1: PFW4S = PFW4S*2
PFR = int(os.environ.get("PFR", "0"))
PFRO = int(os.environ.get("PFRO", "0"))
PFG = int(os.environ.get("PFG", "128"))
PFN = int(os.environ.get("PFN", "7"))
LDL = int(os.environ.get("LDL", "0"))
def pfa_setup(isB):
    e("s_lshl_b32 s3, s23, 6")
    e("v_add_u32 v5, s3, v2")
    e("v_lshlrev_b32 v10, 7, v5")
    if not isB and PFNQ:
        e("v_min_u32 v6, 895, v5")
        e("v_mul_u32_u24 v7, 4682, v6")
        e("v_lshrrev_b32 v7, 16, v7")
        e("v_mul_u32_u24 v7, 896, v7")
        e("v_lshl_add_u32 v10, v6, 7, v7")
        e("v_add_u32 v10, 896, v10")
    e(f"v_subrev_u32 v5, {1344+16}, v5")
    e("v_min_i32 v5, 511, v5")
    e("s_and_b32 s3, s22, 3")
    e("s_lshl_b32 s3, s3, 9")
    e("v_add_u32 v5, s3, v5")
    e("v_max_i32 v5, 0, v5")
    e("v_mul_u32_u24 v5, 896, v5")
    e("s_cmp_lt_u32 s23, 21")
    e("s_cselect_b64 vcc, -1, 0")
    e("v_cndmask_b32 v10, v5, v10, vcc")
    e("s_add_u32 s80, s81, s48")
def pfa_issue(vm, isB):
    PFW4 = PFW4S[isB]
    e("s_cmp_lt_u32 s23, 21")
    e("s_cselect_b32 s4, s32, s28")
    e("s_cselect_b32 s5, s33, s29")
    e("s_cselect_b32 s6, s34, s30")
    e("s_mov_b32 s7, 0x20000")
    e("s_cselect_b32 s12, 1344, 1")
    e("s_lshl_b32 s12, s12, 7")
    sk = uid("PFK")
    if PFW4 < 4:
        e(f"s_cmp_ge_u32 s48, {PFW4}")
        e(f"s_cbranch_scc1 {sk}")
    for k in range(2):
        if k == 1:
            if PFN <= 4: break
            e("s_add_u32 s80, s80, 4")
        e("s_cmp_ge_u32 s80, 7")
        e("s_cselect_b32 s3, 7, 0")
        e("s_sub_u32 s80, s80, s3")
        e("s_mul_i32 s13, s12, s80")
        e(f"buffer_load_dword v30, v10, s[4:7], s13 offen {PFPOL}")
        vm.issue("pf")
        if PFG == 64:
            e(f"buffer_load_dword v30, v10, s[4:7], s13 offen offset:64 {PFPOL}")
            vm.issue("pf")
    lab(sk)
CPF = int(os.environ.get("CPF", "-2"))
def code_pf(vm):
    lb = uid("CPC")
    e("s_getpc_b64 s[8:9]")
    lab(lb)
    e(f"s_sub_u32 s8, s8, {lb}-{NAME}_kernel")
    e("s_subb_u32 s9, s9, 0")
    e("s_and_b32 s9, s9, 0xffff")
    e(f"s_mov_b32 s10, K_END-{NAME}_kernel")
    e("s_mov_b32 s11, 0x20000")
    e("s_lshl_b32 s3, s23, 2")
    e("s_add_u32 s3, s3, s48")
    e("s_lshl_b32 s3, s3, 10")
    e("v_lshlrev_b32 v5, 6, v2")
    e("s_mov_b64 exec, 0xffff")
    e("buffer_load_dword v30, v5, s[8:11], s3 offen")
    e("s_mov_b64 exec, -1")
    vm.issue("pf")
def pf_bar(vm, isB, ch):
    k = PFW4S[isB] + ch - PFRO
    if PFA and (PFAM >> isB) & 1 and (PFR >> isB) & 1 and PFW4S[isB] <= k < 7:
        sk = uid("PFR")
        e(f"s_cmp_eq_u32 s48, {k % 4}")
        e(f"s_cbranch_scc0 {sk}")
        e(f"s_add_u32 s80, s81, {k}")
        e("s_cmp_ge_u32 s80, 7")
        e("s_cselect_b32 s3, 7, 0")
        e("s_sub_u32 s80, s80, s3")
        e("s_mul_i32 s13, s12, s80")
        e(f"buffer_load_dword v30, v10, s[4:7], s13 offen {PFPOL}")
        lab(sk)
    if CPF == ch: code_pf(vm)
    if not PF: return
    if PFC and PF2 == str(ch): pf_step(vm)
    if PFW[isB] == ch:
        e(f"buffer_load_dword v30, v11, s[36:39], 0 offen {PFPOL}")
        vm.issue("pf")
    if not isB and PFQ == ch:
        e(f"buffer_load_dword v30, v4, s[32:35], 0 offen {PFPOL}")
        vm.issue("pf")

def compute(isB):
    lab("C_B" if isB else "C_A")
    if WST and not WST2: e("s_memrealtime s[96:97]")
    vm = VM()
    ka_rest()
    scal1(isB)
    scal2()
    comp_setup(isB)
    if PF: pf_setup(isB)
    pfa = PFA and (PFAM >> isB) & 1
    if pfa: pfa_setup(isB)
    srd_xw_pre()
    srd_rest()
    srd_xw()
    if pfa: pfa_issue(vm, isB)
    elif PF and PFC: pf_setup2(isB)
    if PP:
        sk = uid("PP2")
        e("s_cmp_ge_u32 s48, 2")
        e(f"s_cbranch_scc1 {sk}")
        slp(PPT2)
        pp_issue("s48", 5)
        lab(sk)
    wmark(1); wmark(2); wmark(3)
    stamp(vm, 0)
    stamp(vm, 1)
    nonce_issue(vm)
    if PRE:
        e("s_mul_i32 s3, s25, 229376")
        e("s_mul_i32 s27, s24, 896")
        e("s_add_u32 s3, s3, s27")
        e("buffer_load_dword v30, v3, s[88:91], s3 offen"); vm.issue("pre")
        e("buffer_load_dword v30, v3, s[36:39], s55 offen"); vm.issue("pre")
        if not PST: e("buffer_load_dword v30, v3, s[40:43], s59 offen"); vm.issue("pre")
    if PK and PKT:
        e("s_andn2_b32 s3, s2, 0x18")
        e("s_lshl3_add_u32 s3, s48, s3")
        e(f"s_mul_i32 s3, s3, {IMG}")
        e(f"s_add_u32 s3, s3, 0x{PKB:x}")
        e("buffer_load_dword v30, v3, s[40:43], s3 offen"); vm.issue("pre")
        e("buffer_load_dword v30, v3, s[44:47], 0 offen"); vm.issue("pre")
    if XDW:
        e("v_lshlrev_b32 v30, 4, v0")
        e("s_lshl_b32 s3, s2, 12")
        e("s_add_u32 s3, s3, 0x1000000")
        for k in range(XDW):
            e("buffer_store_dwordx4 v[12:15], v30, s[40:43], s3 offen"); vm.issue("xdw")
            e("s_add_u32 s3, s3, 0x100000")
    if PST == 1: prestore(vm, isB)
    if PF and PFC: pf_pre(vm)
    if CPF == -1: code_pf(vm)
    gemm(vm, isB)
    stamp(vm, 3)
    if isB: epi_B(vm)
    else: epi_A(vm)
    p2(isB, True)
    p2(isB, False)

def kernel():
    lab(f"{NAME}_kernel")
    prologue()
    if os.environ.get("LAF") == "1":
        loader(False); loader(True)
    else:
        loader(True); loader(False)
    compute(True)
    compute(False)
    for lw in range(4): tailA(lw)
    lab("K_END")
    e("s_endpgm")

HDR = open("cdna_kernels/" + NAME + ".s.ref").read().split("; @launch")[0]
kernel()
out = HDR
out += f"; @launch grid=(256,1,1) block=(512,1,1) lds={LDS_TOTAL}\n"
out += '.amdgcn_target "amdgcn-amd-amdhsa--gfx950"\n.text\n'
out += f".globl {NAME}_kernel\n.p2align 8\n.type {NAME}_kernel,@function\n"
out += "\n".join(L) + "\n"
out += f""".section .rodata,"a"
.p2align 6
.amdhsa_kernel {NAME}_kernel
  .amdhsa_next_free_vgpr 256
  .amdhsa_next_free_sgpr {102 if WST else 96}
  .amdhsa_accum_offset 144
  .amdhsa_group_segment_fixed_size 0
  .amdhsa_kernarg_size 72
  .amdhsa_user_sgpr_count 2
  .amdhsa_user_sgpr_kernarg_segment_ptr 1
  .amdhsa_system_sgpr_workgroup_id_x 1
.end_amdhsa_kernel
"""
path = sys.argv[1] if len(sys.argv) > 1 else f"cdna_kernels/{NAME}.s"
open(path, "w").write(out)
```

```python
import sys
NAME = "concat_heads__linear_attn_block__sliding_local_dilated__prompt"
HDR = open("cdna_kernels/" + NAME + ".s.ref").read().split("; @launch")[0]
def gen(path, H=1, D=0, SK=0, ACK=0, PD=0, NPL=1, ST=0, POL1="sc0 sc1", FL=0, FE=-1, FD=0, FP=0, FS=64, FN=1):
    L = []
    e = lambda s: L.append("    " + s)
    def slp(n):
        while n > 0:
            e(f"s_sleep {min(n,127)}"); n -= 127
    AS = 64 if H else 128
    L.append(f"{NAME}_kernel:")
    e("s_load_dwordx2 s[20:21], s[0:1], 64")
    e("s_bitcmp1_b32 s2, 2")
    e("s_cbranch_scc1 END")
    e("v_lshrrev_b32 v1, 6, v0")
    e("v_and_b32 v2, 63, v0")
    e("v_readfirstlane_b32 s48, v1")
    e("s_lshr_b32 s23, s2, 3")
    e("s_and_b32 s27, s2, 3")
    e("s_and_b32 s3, s23, 3")
    e("s_lshl2_add_u32 s25, s27, s3")
    e("s_lshr_b32 s26, s23, 2")
    e("s_waitcnt lgkmcnt(0)")
    e("s_mov_b32 s40, s20"); e("s_and_b32 s41, s21, 0xffff"); e("s_mov_b32 s42, 0x2000000"); e("s_mov_b32 s43, 0x20000")
    e(f"s_mul_i32 s57, s26, {64*AS}")
    e(f"s_mul_i32 s3, s48, {16*AS}")
    e("s_add_u32 s57, s57, s3")
    e("s_add_u32 s57, s57, 0x100000")
    e("v_and_b32 v5, 15, v2"); e("v_lshrrev_b32 v6, 4, v2")
    e(f"v_mul_u32_u24 v8, {4*AS}, v6"); e("v_lshl_add_u32 v8, v5, 2, v8")
    e("v_lshlrev_b32 v9, 4, v2")
    e("v_mov_b32 v3, 0x3c003c00" if H else "v_mov_b32 v3, 1.0")
    e("s_lshl2_add_u32 s58, s26, s48")
    if FL == 2: e("s_lshl_b32 s58, s26, 2")
    e(f"s_mul_i32 s58, s58, {FS}")
    e("s_add_u32 s58, s58, 0x180000")
    e("s_lshl2_add_u32 s59, s25, s58")
    e("v_lshlrev_b32 v14, 2, v5")
    e("v_mov_b32 v15, 1")
    e("v_mov_b32 v4, 0")
    e("buffer_load_dword v30, v4, s[40:43], 0 offen")
    e("s_mov_b32 s3, 0xf0000")
    e("buffer_load_dword v30, v4, s[40:43], s3 offen sc0 sc1")
    e("s_waitcnt vmcnt(0)")
    e("s_memrealtime s[4:5]")
    e("s_waitcnt lgkmcnt(0)")
    e("s_add_u32 s6, s4, 1500")
    e("s_andn2_b32 s6, s6, 1023")
    if SK:
        e("s_mul_i32 s3, s25, 7"); e("s_mul_i32 s7, s26, 5"); e("s_add_u32 s3, s3, s7"); e("s_and_b32 s3, s3, 15")
        e(f"s_mul_i32 s3, s3, {SK}")
        e("s_add_u32 s6, s6, s3")
    L.append("W0:")
    e("s_memrealtime s[4:5]")
    e("s_waitcnt lgkmcnt(0)")
    e("s_sub_u32 s3, s4, s6")
    e("s_cmp_lt_i32 s3, 0")
    e("s_cbranch_scc1 W0")
    def flag():
        if FL == 2:
            e("s_cmp_eq_u32 s48, 0")
            e("s_cselect_b64 exec, 1, 0")
        else: e("s_mov_b64 exec, 1")
        e("buffer_store_dword v15, off, s[40:43], s59 sc0 sc1")
        e("s_mov_b64 exec, -1")
    if FL and FE >= 0:
        flag(); slp(FE)
        e("s_memrealtime s[4:5]")
    for dt in range(1 if H else 2):
        for r in range(4):
            e(f"{'buffer_atomic_pk_add_f16' if H else 'buffer_atomic_add_f32'} v3, v8, s[40:43], s57 offen offset:{r*AS+dt*64} sc1")
    e("s_memrealtime s[8:9]")
    if ACK: e("s_waitcnt vmcnt(0)")
    e("s_memrealtime s[10:11]")
    if FL and FE < 0: flag()
    slp(D)
    if FL:
        e("s_mov_b32 s79, 0")
        e("s_mov_b64 exec, 0xffff")
        for k in range(FN):
            if k: slp(FP)
            e(f"buffer_load_dword v{16+k}, v14, s[40:43], s58 offen sc0 sc1")
        L.append("FLP:")
        for k in range(FN):
            e(f"s_waitcnt vmcnt({FN-1})")
            e(f"v_cmp_eq_u32 vcc, 1, v{16+k}")
            e("s_add_u32 s79, s79, 1")
            e("s_cmp_eq_u32 vcc_lo, 0xffff")
            e("s_cbranch_scc1 FDN")
            if FN == 1: slp(FP)
            e(f"buffer_load_dword v{16+k}, v14, s[40:43], s58 offen sc0 sc1")
        e("s_cmp_gt_u32 s79, 2000")
        e("s_cbranch_scc0 FLP")
        L.append("FDN:")
        e("s_mov_b64 exec, -1")
        e("s_memrealtime s[10:11]")
        slp(FD)
    e("s_mov_b32 s78, 0")
    NL = 1 if H else 2
    def poll(k, pol="sc0 sc1"):
        for j in range(NL):
            r = 32 + (k*2+j)*4
            e(f"buffer_load_dwordx4 v[{r}:{r+3}], v9, s[40:43], s57 offen offset:{j*1024} {pol}")
    for k in range(NPL):
        if k: slp(ST)
        poll(k, POL1 if k == 0 else "sc0 sc1")
    L.append("LP:")
    for k in range(NPL):
        e(f"s_waitcnt vmcnt({NL*(NPL-1)})")
        e("s_add_u32 s78, s78, 1")
        b = 32 + k*8
        e(f"v_mov_b32 v20, v{b}")
        for q in range(1, 4*NL): e(f"v_min_u32 v20, v20, v{b+q}")
        e(f"v_cmp_eq_u32 vcc, 0x{0x4c004c00 if H else 0x41800000:x}, v20")
        e("s_cmp_eq_u64 vcc, -1")
        e("s_cbranch_scc1 DN")
        slp(PD)
        poll(k)
    e("s_cmp_gt_u32 s78, 2000")
    e("s_cbranch_scc0 LP")
    L.append("DN:")
    e("s_memrealtime s[12:13]")
    e("s_waitcnt lgkmcnt(0)")
    e("s_lshl_b32 s3, s2, 7"); e("s_lshl_b32 s14, s48, 5"); e("s_add_u32 s3, s3, s14")
    e("v_mov_b32 v4, s4"); e("v_mov_b32 v5, s8"); e("v_mov_b32 v6, s10"); e("v_mov_b32 v7, s12")
    e("v_mov_b32 v12, s78")
    e("s_mov_b64 exec, 1")
    e("buffer_store_dwordx4 v[4:7], off, s[40:43], s3")
    e("buffer_store_dword v12, off, s[40:43], s3 offset:16")
    L.append("END:")
    e("s_endpgm")
    out = HDR + f"; @launch grid=(256,1,1) block=(256,1,1) lds=0\n"
    out += '.amdgcn_target "amdgcn-amd-amdhsa--gfx950"\n.text\n'
    out += f".globl {NAME}_kernel\n.p2align 8\n.type {NAME}_kernel,@function\n" + "\n".join(L) + "\n"
    out += f""".section .rodata,"a"
.p2align 6
.amdhsa_kernel {NAME}_kernel
  .amdhsa_next_free_vgpr 128
  .amdhsa_next_free_sgpr 96
  .amdhsa_accum_offset 128
  .amdhsa_group_segment_fixed_size 0
  .amdhsa_kernarg_size 72
  .amdhsa_user_sgpr_count 2
  .amdhsa_user_sgpr_kernarg_segment_ptr 1
  .amdhsa_system_sgpr_workgroup_id_x 1
.end_amdhsa_kernel
"""
    open(path, "w").write(out)
if __name__ == "__main__":
    fs = []
    for spec in sys.argv[1:]:
        kw = {}
        for kv in spec.split(","):
            if not kv: continue
            k, v = kv.split("=")
            kw[k] = v.replace("_", " ") if k == "POL1" else int(v)
        f = f"kx/m_{spec.replace(',', '.').replace('=', '')}.s"
        gen("code/" + f, **kw); fs.append(f)
    print(" ".join(fs))
    print(", ".join('"%s"' % f for f in fs))
```

```python
import sys, os, struct, re
NAME = "concat_heads__linear_attn_block__sliding_local_dilated__prompt"
TLP = 0
TLQ = int(os.environ.get("TLQ", "0x400000"), 0)
OPOL = os.environ.get("OPOL", "")
TPOL = os.environ.get("TPOL", "")
ACC = 0xa00000
NON = 0x800000
AS = 64
XDW = int(os.environ.get("XDW", "0"))
WS_END = 0x1c00000
PKB = 0x1000000
IMG = 43008
PK = os.environ.get("PK", "1") == "1"
GAs = [int(x) for x in os.environ.get("GA", "1,1").split(",")]
GBs = [int(x) for x in os.environ.get("GB", "2,2").split(",")]
PKP = [int(x) for x in os.environ.get("PKP", "4,5,6").split(",")]
PKF = os.environ.get("PKF", "0") == "1"
PKN = os.environ.get("PKN", "1") == "1"
if PKN: PKP = []
PKT = os.environ.get("PKT", "0") == "1"
PKNS = int(os.environ.get("PKNS", "9"))
PKNF = os.environ.get("PKNF", "0") == "1"
PKSP = os.environ.get("PKSP", "")
def order(w): return [w, 4 + w % 3, 4 + (w+1) % 3, 4 + (w+2) % 3, (w+1) & 3, (w+2) & 3, (w+3) & 3]
STAMP = os.environ.get("STAMP") in ("1", "2", "3")
RT = os.environ.get("STAMP") in ("2", "3")
S3 = os.environ.get("STAMP") == "3"
STB = 0x900000
LOG2E = 0x3FB8AA3B
EPS = 0x358637BD
for s in range(64*21): assert (s * 4682) >> 16 == s // 14
for s in range(64): assert (s * 37) >> 8 == s // 7
RS = 224
KVS = 14336; QS = 7168; XS = 16384
LDS_TOTAL = 163840
ROT = os.environ.get("ROT", "1") == "1"
PPOL = os.environ.get("PPOL", "nt")
ROTM = os.environ.get("ROTM", "2*p")
XM = int(os.environ.get("XM", "2"))
SWP = os.environ.get("SWP", "0") == "1"
XNOX = os.environ.get("XNOX") == "1"
XNOW = os.environ.get("XNOW") == "1"
BWM = os.environ.get("BWM", "0") == "1"
XNOR = os.environ.get("XNOR") == "1"
XNOM = os.environ.get("XNOM") == "1"
XNOL = os.environ.get("XNOL") == "1"
LAA = int(os.environ.get("LAA", "2"))
LAB = int(os.environ.get("LAB", "0"))
ROTMB = os.environ.get("ROTMB", ROTM)
XMB = int(os.environ.get("XMB", str(XM)))
W0 = os.environ.get("W0") == "1"
PRE = os.environ.get("PRE", "1") == "1"
NOQ = os.environ.get("NOQ") == "1"
L1X = os.environ.get("L1X") == "1"
DA = int(os.environ.get("DA", "4"))
DB = int(os.environ.get("DB", "5"))
def f2u(x): return struct.unpack('<I', struct.pack('<f', x))[0]
SC2 = f2u(28 ** -0.5 * 1.4426950408889634)
CNT_Z = 40 * 4
WB = 6272
def A_kv(i): return (i % 5) * 30720
def A_x(i): return (i % 5) * 30720 + KVS
def A_q(i): return 61440 + i*QS
UP = 111616
POSA = [16384, 22656, 30720, 30720+WB, 30720+2*WB, 30720+3*WB, 0, 8192]
def A_wo(h): return POSA[h] if h < 8 else UP + (h-8)*WB
QE = os.environ.get("QE", "0") == "1"
def A_scr(lw): return lw*4096
KVB = 55808
B_WSL = [140288, 0, 21504, 118784]
def B_kv(i): return B_WSL[i % 4]
def B_q(i): return B_WSL[i % 4] + KVS
def B_x(i): return 43008 + (i % 3) * 18432
def B_wo(h): return 61440 + h*WB
assert B_wo(8) == UP
FLG = 161792
RED_A = 61440; RED_B = 0
EPO = NON + 0x10000

L = []
def e(s): L.append("    " + s)
def lab(s): L.append(s + ":")
def c(s): L.append("    ; " + s)
_uid = [0]
def uid(p):
    _uid[0] += 1
    return f"{p}_{_uid[0]}"

class CNT:
    def __init__(self, kind, mx): self.ops = []; self.kind = kind; self.mx = mx
    def issue(self, tag): self.ops.append(tag)
    def n(self, tag):
        idx = max(i for i, t in enumerate(self.ops) if t == tag)
        return min(len(self.ops) - 1 - idx, self.mx)
    def wait(self, tag): e(f"s_waitcnt {self.kind}({self.n(tag)})")
def VM(): return CNT("vmcnt", 63)
def LG(): return CNT("lgkmcnt", 15)

SIDS = [int(x) for x in os.environ["SIDS"].split(",")] if os.environ.get("SIDS") else None
PEND = [None]; NS = [0]
def st_flush(wait=True):
    if PEND[0] is None: return
    if wait: e("s_waitcnt lgkmcnt(0)")
    e(f"v_writelane_b32 v0, s{PEND[0][0]}, {PEND[0][1]}")
    PEND[0] = None
def stamp(vm, i, r=28):
    if not STAMP: return
    if SIDS is not None and i not in SIDS: return
    if S3:
        if i == 2: return
        if i == 1:
            e("v_writelane_b32 v0, s94, 1"); return
        st_flush(False)
        sr = 96 + 2*(NS[0] % 3); NS[0] += 1
        e(f"s_memrealtime s[{sr}:{sr+1}]")
        PEND[0] = (sr, i)
        if i in (9, 41):
            st_flush()
            sk = uid("SK3")
            e("s_and_b32 s3, s48, 3")
            e(f"s_cbranch_scc1 {sk}")
            e("v_lshlrev_b32 v1, 2, v2")
            e("s_lshl_b32 s74, s2, 8")
            e(f"s_add_u32 s74, s74, {STB}")
            if i == 9: e("s_mov_b64 exec, 0xffffffff")
            else:
                e("s_mov_b32 exec_lo, 0")
                e("s_mov_b32 exec_hi, 0x3ffff")
            e("buffer_store_dword v0, v1, s[40:43], s74 offen")
            e("s_mov_b64 exec, -1")
            lab(sk)
        return
    if i in (1, 2):
        e(f"v_mov_b32 v{r}, s94")
    else:
        e("s_memrealtime s[72:73]" if RT else "s_memtime s[72:73]")
        e("s_waitcnt lgkmcnt(0)")
        e(f"v_mov_b32 v{r}, s72")
    e("s_lshl_b32 s74, s2, 8")
    e(f"s_add_u32 s74, s74, {STB + i*4}")
    e(f"v_and_b32 v{r+1}, 0xff, v0")
    e(f"v_cmp_eq_u32 s[76:77], 0, v{r+1}")
    e("s_mov_b64 exec, s[76:77]")
    e(f"buffer_store_dword v{r}, v{r+1}, s[40:43], s74 offen")
    e("s_mov_b64 exec, -1")
    if vm is not None: vm.issue("stamp")

WST = os.environ.get("WST") in ("1", "2")
WST2 = os.environ.get("WST") == "2"
def wmark(k):
    if not WST: return
    e("s_memrealtime s[72:73]")
    e("s_waitcnt lgkmcnt(0)")
    e(f"s_mov_b32 s{96+k}, s72")
def wdump(vm):
    if not WST: return
    e("s_lshl_b32 s74, s2, 9")
    e("s_lshl_b32 s75, s48, 6")
    e("s_add_u32 s74, s74, s75")
    e("s_add_u32 s74, s74, 0x910000")
    e("s_mov_b64 exec, 1")
    e("v_mov_b32 v28, s94")
    e("buffer_store_dword v28, off, s[40:43], s74")
    for k in range(6):
        e(f"v_mov_b32 v28, s{96+k}")
        e(f"buffer_store_dword v28, off, s[40:43], s74 offset:{4+k*4}")
        if vm is not None: vm.issue("stamp")
    e("s_mov_b64 exec, -1")
    if vm is not None: vm.issue("stamp")

def phi_pair(dst, a, b, t):
    assert b == a + 1 and a % 2 == 0 and t % 2 == 0
    return [f"v_pk_mul_f32 v[{t}:{t+1}], v[{a}:{b}], s[70:71]",
            f"v_exp_f32 v{t}, v{t} clamp",
            f"v_exp_f32 v{t+1}, v{t+1} clamp",
            f"v_max_f32 v{a}, 0, v{a}",
            f"v_max_f32 v{b}, 0, v{b}",
            f"v_pk_add_f32 v[{t}:{t+1}], v[{t}:{t+1}], v[{a}:{b}]",
            f"v_cvt_pk_bf16_f32 v{dst}, v{t}, v{t+1}"]
def ilv(seqs):
    for i in range(max(len(q) for q in seqs)):
        for q in seqs:
            if i < len(q): e(q[i])

def srd(base, lo, hi, nbytes):
    e(f"s_mov_b32 s{base}, s{lo}")
    e(f"s_and_b32 s{base+1}, s{hi}, 0xffff")
    e(f"s_mov_b32 s{base+2}, 0x{nbytes:x}")
    e(f"s_mov_b32 s{base+3}, 0x20000")

def srd23(base, nbytes):
    e(f"s_mov_b32 s{base+2}, 0x{nbytes:x}")
    e(f"s_mov_b32 s{base+3}, 0x20000")
def ka_rest():
    e("s_load_dwordx2 s[40:41], s[0:1], 64")
    e("s_load_dwordx2 s[88:89], s[0:1], 48")
    e("s_load_dwordx2 s[44:45], s[0:1], 56")
def srd_xw_pre():
    srd23(28, 2048*896)
    srd23(32, 448*2688)
def srd_xw():
    e("s_waitcnt lgkmcnt(0)")
    e("s_and_b32 s29, s29, 0xffff")
    e("s_and_b32 s33, s33, 0xffff")
def srd_rest():
    srd23(40, WS_END)
    srd23(36, 448*896)
    srd23(44, 256)
    srd23(88, 2048*1792)
    e("s_waitcnt lgkmcnt(0)")
    for b in (40, 36, 44, 88): e(f"s_and_b32 s{b+1}, s{b+1}, 0xffff")

LPRIO = int(os.environ.get("LPRIO", "3"))
CSLP = int(os.environ.get("CSLP", "0"))
CPE = int(os.environ.get("CPE", "0"))
PP = os.environ.get("PP", "0") == "1"
PPT = int(os.environ.get("PPT", "4"))
PPT0 = int(os.environ.get("PPT0", "2"))
PPT2 = int(os.environ.get("PPT2", "4"))
PPW = os.environ.get("PPW", "1") == "1"
def pp_common():
    e("s_lshr_b32 s23, s2, 3")
    e("s_and_b32 s27, s2, 3")
    e("s_lshl_b32 s3, s23, 6")
    e("v_add_u32 v5, s3, v2")
    e("s_movk_i32 s3, 1343")
    e("s_cmp_eq_u32 s24, 0")
    e("s_cselect_b32 s3, 895, s3")
    e("s_cselect_b32 s12, 896, 0")
    e("v_min_u32 v6, s3, v5")
    e("v_mul_u32_u24 v7, 4682, v6")
    e("v_lshrrev_b32 v7, 16, v7")
    e("v_add_u32 v7, 1, v7")
    e("v_mul_u32_u24 v7, s12, v7")
    e("v_lshl_add_u32 v10, v6, 7, v7")
    e(f"v_subrev_u32 v5, {1344+16}, v5")
    e("v_min_i32 v5, 511, v5")
    e("s_lshl_b32 s3, s27, 9")
    e("v_add_u32 v5, s3, v5")
    e("v_max_i32 v5, 0, v5")
    e("v_mul_u32_u24 v5, 896, v5")
    e(f"s_mul_i32 s80, s27, {XM}")
    e("s_cmp_lt_u32 s23, 21")
    e("s_cselect_b64 vcc, -1, 0")
    e("v_cndmask_b32 v10, v5, v10, vcc")
    e(f"s_cselect_b32 s6, 0x{448*2688:x}, s23")
    e(f"s_cselect_b32 s6, s6, 0x{2048*896:x}")
    e("s_mov_b32 s7, 0x20000")
    e("s_cselect_b32 s12, 1344, 1")
    e("s_lshl_b32 s12, s12, 7")
    e("s_mul_i32 s13, s12, s80")
    e("s_cmp_lt_u32 s23, 21")
    e("s_waitcnt lgkmcnt(0)")
    e("s_cselect_b32 s4, s32, s28")
    e("s_cselect_b32 s5, s33, s29")
    e("s_and_b32 s5, s5, 0xffff")
def pp_issue(sw, k):
    e(f"s_add_u32 s13, s80, {sw}")
    e(f"s_add_u32 s13, s13, {k}")
    e("s_cmp_ge_u32 s13, 7")
    e("s_cselect_b32 s3, 7, 0")
    e("s_sub_u32 s13, s13, s3")
    e("s_mul_i32 s13, s12, s13")
    e("buffer_load_dword v30, v10, s[4:7], s13 offen")
def prologue():
    if STAMP or WST: e("s_memrealtime s[94:95]")
    e("s_cmp_ge_u32 s2, 256")
    e("s_cbranch_scc1 K_END")
    e("s_bfe_u32 s24, s2, 0x10002")
    e("v_lshrrev_b32 v1, 6, v0")
    if SWP: e("s_xor_b32 s24, s24, 1")
    e("s_mul_i32 s3, s24, 24")
    e("v_readfirstlane_b32 s48, v1")
    e("s_load_dwordx2 s[28:29], s[0:1], s3")
    e("s_load_dwordx2 s[32:33], s[0:1], s3 offset:8")
    e("s_load_dwordx2 s[36:37], s[0:1], s3 offset:16")
    e("v_and_b32 v2, 63, v0")
    if WST2:
        e("s_waitcnt lgkmcnt(0)")
        e("s_memrealtime s[96:97]")
    if PP: pp_common()
    e("s_bitcmp1_b32 s48, 2")
    e("s_cbranch_scc0 C_X")
    if LPRIO: e(f"s_setprio {LPRIO}")
    if PP:
        e("s_and_b32 s3, s48, 3")
        e("s_lshl_b32 s3, s3, 4")
        e("s_lshl_b64 exec, 0xffff, s3")
        e("buffer_load_dword v30, v10, s[4:7], s13 offen")
        e("s_mov_b64 exec, -1")
    e("s_cmp_eq_u32 s24, 0")
    e("s_cbranch_scc1 L_A")
    e("s_branch L_B")
    lab("C_X")
    if CPE >= 0:
        sk = uid("CPS"); lb = uid("CPC")
        if CPE:
            e(f"s_and_b32 s3, s2, {CPE << 3}")
            e(f"s_cbranch_scc1 {sk}")
        e("s_getpc_b64 s[8:9]")
        lab(lb)
        e(f"s_sub_u32 s8, s8, {lb}-{NAME}_kernel")
        e("s_subb_u32 s9, s9, 0")
        e("s_and_b32 s9, s9, 0xffff")
        e(f"s_mov_b32 s10, K_END-{NAME}_kernel")
        e("s_mov_b32 s11, 0x20000")
        e("s_cmp_eq_u32 s24, 0")
        e(f"s_cselect_b32 s3, C_A-C_B, 0")
        e("s_lshl_b32 s14, s48, 13")
        e("s_add_u32 s3, s3, s14")
        e(f"s_add_u32 s3, s3, C_B-{NAME}_kernel-8192")
        e("s_cmp_eq_u32 s48, 0")
        e("s_cselect_b32 s3, 0, s3")
        e("v_lshlrev_b32 v5, 7, v2")
        e("buffer_load_dword v30, v5, s[8:11], s3 offen")
        lab(sk)
    if PP:
        for w in range(1, 4):
            e(f"s_cmp_lt_u32 s48, {w}")
            e("s_cbranch_scc1 PP_GO")
            slp(PPT)
        lab("PP_GO")
        slp(PPT0)
        pp_issue("s48", 1)
    slp(CSLP)
    e("s_cmp_eq_u32 s24, 0")
    e("s_cbranch_scc1 C_A")
    e("s_branch C_B")

def scal1(isB):
    e("s_lshr_b32 s23, s2, 3")
    e("s_and_b32 s27, s2, 3")
    e("s_and_b32 s3, s23, 3")
    e("s_lshl2_add_u32 s25, s27, s3")
    e("s_lshr_b32 s26, s23, 2")
    e("s_mul_i32 s56, s26, 112")
    if PK:
        ga = GAs[isB]; gb = GBs[isB]
        e("s_mov_b32 s80, s3")
        e(f"s_mul_i32 s81, s27, {gb}")
        if ga:
            e(f"s_mul_i32 s3, s26, {ga}")
            e("s_add_u32 s81, s81, s3")
        e("s_add_u32 s81, s81, s80")
        assert 3 + 7*ga + 3*gb < 64
        e("s_mul_i32 s3, s81, 37")
        e("s_lshr_b32 s3, s3, 8")
        e("s_mul_i32 s3, s3, 7")
        e("s_sub_u32 s81, s81, s3")
        return
    rm = ROTMB if isB else ROTM; xm = XMB if isB else XM
    m = re.fullmatch(r"(\d+)(\*p)?", rm)
    a = int(m.group(1)) if m.group(2) else 0
    assert m.group(2) or m.group(1) == "0"
    if a == xm:
        e("s_add_u32 s81, s26, s27")
        e(f"s_mul_i32 s81, s81, {a}")
    elif a == 0:
        e(f"s_mul_i32 s81, s27, {xm}")
    else:
        e(f"s_mul_i32 s81, s26, {a}")
        e(f"s_mul_i32 s3, s27, {xm}")
        e("s_add_u32 s81, s81, s3")
    mx = 7*a + 3*xm
    assert mx < 32
    if mx >= 7:
        e("s_mul_i32 s3, s81, 37")
        e("s_lshr_b32 s3, s3, 8")
        e("s_mul_i32 s3, s3, 7")
        e("s_sub_u32 s81, s81, s3")
    e("s_mov_b32 s82, s81")
def scal2():
    e("s_and_b32 s22, s2, 7")
    e("s_lshr_b32 s55, s26, 1")
    e("s_mul_i32 s55, s55, 224")
    e("s_getreg_b32 s92, hwreg(HW_REG_XCC_ID)")
    e("s_and_b32 s92, s92, 15")
    e(f"s_mov_b32 s70, 0x{LOG2E:x}")
    e(f"s_mov_b32 s71, 0x{LOG2E:x}")
    e("s_lshl_b32 s60, s24, 4")
    e("s_add_u32 s60, s60, s25")
    e("s_lshl_b32 s59, s60, 17")
    e("s_lshl_b32 s60, s60, 7")
    e(f"s_add_u32 s60, s60, 0x{NON:x}")

def nonce_issue(vm):
    e("v_mov_b32 v3, 0")
    e("buffer_load_dword v31, v3, s[40:43], s60 offen sc0 sc1")
    vm.issue("non")
def nonce_get():
    e("v_readfirstlane_b32 s93, v31")
    e("s_nop 3")
    e("s_add_u32 s93, s93, 16")
    e("s_and_b32 s61, s93, 0x7ff0")
    e("s_or_b32 s61, s61, s92")
    e("s_or_b32 s61, s61, 0x8000")
    e("s_lshl_b32 s61, s61, 16")

def div14(n):
    e(f"v_add_u32 v3, {64*n}, v2")
    e("v_mul_u32_u24 v4, 4682, v3")
    e("v_lshrrev_b32 v4, 16, v4")
    e("v_mul_u32_u24 v5, 14, v4")
    e("v_sub_u32 v3, v3, v5")
    e("v_cmp_lt_u32 vcc, 6, v3")
    e("v_cndmask_b32 v5, 0, 1, vcc")
    e("v_mul_u32_u24 v6, 7, v5")
    e("v_sub_u32 v3, v3, v6")

def w_voff(dst, n, isq):
    div14(n)
    e("v_lshrrev_b32 v6, 1, v4")
    e("v_and_b32 v6, 4, v6")
    e("v_xor_b32 v4, v4, v6")
    e("v_mul_u32_u24 v4, 2688, v4")
    if isq:
        e("v_mul_u32_u24 v5, s58, v5")
        e("v_lshl_add_u32 v3, v3, 4, v4")
        e(f"v_add_u32 v{dst}, v3, v5")
    else:
        e("v_mul_u32_u24 v5, 896, v5")
        e("v_lshl_add_u32 v3, v3, 4, v4")
        e(f"v_add3_u32 v{dst}, v3, v5, s57")

def step_hdr(sr, w=True, x=True, first=False):
    if PK:
        if first: c_ = f"s{sr}"
        else:
            e(f"s_and_b32 s3, s{sr}, 15")
            e(f"s_lshr_b32 s{sr}, s{sr}, 4")
            c_ = "s3"
        if w:
            e(f"s_mul_i32 s83, {c_}, 172032")
            e("s_add_u32 s83, s83, s56")
        if x:
            e(f"s_lshl_b32 s85, {c_}, 7")
            e("s_add_u32 s86, s85, 14336")
        return
    if w:
        e(f"s_mul_i32 s83, s{sr}, 172032")
        e("s_add_u32 s83, s83, s56")
    if x:
        e(f"s_lshl_b32 s85, s{sr}, 7")
        e("s_add_u32 s86, s85, 14336")
    e(f"s_add_u32 s{sr}, s{sr}, 1")
    e(f"s_cmp_eq_u32 s{sr}, 7")
    e(f"s_cselect_b32 s{sr}, 0, s{sr}")
def mk_table():
    T = [sum(order(w)[i] << (4*i) for i in range(7)) for w in range(4)]
    e(f"s_mov_b32 s82, 0x{T[0]:x}")
    e(f"s_mov_b32 s3, 0x{T[2]:x}")
    e("s_bitcmp1_b32 s80, 0")
    e(f"s_cselect_b32 s82, 0x{T[1]:x}, s82")
    e(f"s_cselect_b32 s3, 0x{T[3]:x}, s3")
    e("s_bitcmp1_b32 s80, 1")
    e("s_cselect_b32 s82, s3, s82")
    e("s_sub_u32 s81, s81, s80")
    e("s_cselect_b32 s3, 7, 0")
    e("s_add_u32 s81, s81, s3")
    e("s_mul_i32 s81, s81, 0x1111111")
    e("s_add_u32 s82, s82, s81")
    e("s_add_u32 s3, s82, 0x1111111")
    e("s_and_b32 s3, s3, 0x8888888")
    e("s_lshr_b32 s3, s3, 3")
    e("s_mul_i32 s3, s3, 7")
    e("s_sub_u32 s82, s82, s3")
    e("s_lshr_b32 s81, s82, 4")

FILL = []
FN = int(os.environ.get("FN", "24"))
def capture(fn, *a):
    global L
    sv = L; L = []
    fn(*a)
    r = L; L = sv
    FILL.extend(r)
def flush(n=10**9):
    while FILL and n > 0:
        L.append(FILL.pop(0)); n -= 1
def dma(vm, tag, voff, srd_, soff, lds):
    e(f"s_mov_b32 m0, {lds}")
    e("s_nop 0")
    e(f"buffer_load_dwordx4 v{voff}, s[{srd_}:{srd_+3}], {soff} offen lds")
    vm.issue(tag)
    flush(FN)

WOV = 44
def wo_voffs(isB):
    for t in range(7):
        div14(t)
        e("v_min_u32 v4, 27, v4")
        e("v_cmp_lt_u32 vcc, 13, v4")
        e("v_cndmask_b32 v6, 0, 1, vcc")
        e("v_mul_u32_u24 v24, 14, v6")
        e("v_sub_u32 v4, v4, v24")
        e("v_lshrrev_b32 v24, 2, v4")
        e("v_and_b32 v25, 3, v4")
        e("v_cmp_lt_u32 vcc, 10, v4")
        e("v_cndmask_b32 v26, 0, 1, vcc")
        e("v_mul_u32_u24 v27, 3, v26")
        e("v_sub_u32 v27, v4, v27")
        e("v_subrev_u32 v27, 4, v27")
        e("v_cmp_lt_u32 vcc, 7, v4")
        e("v_cndmask_b32 v24, v24, v26, vcc")
        e("v_cndmask_b32 v25, v25, v27, vcc")
        e("v_lshl_add_u32 v24, v6, 1, v24")
        if not isB:
            e("v_mul_u32_u24 v24, 7, v24")
            e("v_add_u32 v4, v24, v25")
        else:
            e("v_lshl_add_u32 v4, v24, 2, v25")
            e("v_add_u32 v26, 12, v4")
            e("v_lshlrev_b32 v27, 2, v25")
            e("v_add_u32 v27, 3, v27")
            e("v_cmp_eq_u32 s[4:5], 3, v24")
            e("v_cndmask_b32 v26, v26, v27, s[4:5]")
            e("v_cndmask_b32 v4, v4, v26, vcc")
        e("v_mul_u32_u24 v5, 112, v5")
        e("v_mul_u32_u24 v4, 896, v4")
        e("v_lshl_add_u32 v3, v3, 4, v4")
        e(f"v_add3_u32 v{WOV+t}, s55, v3, v5")

def wo_block(vm, h, isB, ts=range(7), tag="wo"):
    base = B_wo(h) if isB else A_wo(h)
    e(f"s_mov_b32 s86, {h*28*896}")
    for t in ts:
        if t == 6:
            e("s_mov_b64 exec, 0xff")
            e(f"s_mov_b32 m0, {base + t*1024}")
            e("s_nop 0")
            e(f"buffer_load_dwordx4 v{WOV+t}, s[36:39], s86 offen lds")
            vm.issue(tag)
            e("s_mov_b64 exec, -1")
        else: dma(vm, tag, WOV+t, 36, "s86", base + t*1024)

def flg_init(lw):
    if lw == 0:
        e(f"v_mov_b32 v3, {FLG}")
        e("v_mov_b32 v4, 0")
        e("v_mov_b32 v5, 0")
        e("ds_write_b64 v3, v[4:5]")
        e("s_waitcnt lgkmcnt(0)")

SEC = int(os.environ.get("SEC", "1"))
ZFI = int(os.environ.get("ZFI", "2"))
WPOL = os.environ.get("WPOL", ""); XPOL = os.environ.get("XPOL", ""); OWPOL = os.environ.get("OWPOL", "")
LPR2 = int(os.environ.get("LPR2", "0"))
WF = os.environ.get("WF", "0") == "1"
def dmag(vm, tag, voff, srd_, soff, sadd, lreg, lds, fl=True):
    e(f"s_add_u32 m0, s{lreg}, {lds}")
    if sadd:
        e(f"s_add_u32 s84, {soff}, {sadd}")
        soff = "s84"
    else: e("s_nop 0")
    pol = {32: WPOL, 28: XPOL, 36: OWPOL}[srd_]
    e(f"buffer_load_dwordx4 v{voff}, s[{srd_}:{srd_+3}], {soff} offen {pol} lds")
    vm.issue(tag)
    if fl: flush(FN)
def wo_blockg(vm, dh, isB):
    for t in range(7):
        if t == 6: e("s_mov_b64 exec, 0xff")
        dmag(vm, "wo", WOV+t, 36, "s54", dh*28*896, 53, dh*WB + t*1024, False)
    e("s_mov_b64 exec, -1")
def loader(isB):
    lab(f"L_{'B' if isB else 'A'}")
    if WST and not WST2: e("s_memrealtime s[96:97]")
    vm = VM()
    SO = 32
    scal1(isB)
    e("s_and_b32 s49, s48, 3")
    e("v_lshrrev_b32 v3, 3, v2")
    e("v_lshrrev_b32 v4, 4, v2")
    e("v_and_b32 v5, 7, v2")
    e("v_xor_b32 v5, v5, v4")
    e("s_lshl_b32 s3, s25, 2")
    e("s_add_u32 s3, s3, s49")
    e("s_lshl_b32 s3, s3, 5")
    e("v_add_u32 v6, s3, v3")
    e("v_mul_u32_u24 v6, 896, v6")
    e("v_lshl_add_u32 v16, v5, 4, v6")
    e("v_xor_b32 v17, 64, v16")
    e("v_add_u32 v17, 7168, v17")
    e("s_lshl_b32 s51, s49, 12")
    e("s_lshr_b32 s3, s49, 1")
    e("s_xor_b32 s3, s3, s49")
    e("s_mul_i32 s3, s3, 10752")
    e("s_add_u32 s56, s56, s3")
    e("s_mul_i32 s50, s49, 896")
    srd_xw_pre()
    step_hdr(81, first=True)
    def wv():
        e("v_mul_u32_u24 v4, 4682, v2")
        e("v_lshrrev_b32 v4, 16, v4")
        e("v_mul_u32_u24 v6, 14, v4")
        e("v_sub_u32 v6, v2, v6")
        e("v_mul_u32_u24 v4, 2688, v4")
        e("v_cmp_lt_u32 vcc, 6, v6")
        e("v_lshl_add_u32 v4, v6, 4, v4")
        e("v_cndmask_b32 v6, 0, 1, vcc")
        e("s_movk_i32 s57, 784")
        e(f"s_mov_b32 s58, {86016-112}")
        e("v_mad_u32_u24 v8, v6, s57, v4")
        e("v_add_u32 v8, 896, v8")
        e("v_mad_u32_u24 v12, v6, s58, v4")
        if isB:
            e("s_lshl_b32 s3, s25, 7")
            e("s_sub_u32 s3, s3, 16")
            e("s_max_i32 s3, s3, 0")
            e("s_lshl2_add_u32 s3, s49, s3")
            e("v_add_u32 v6, s3, v3")
            e("v_mul_u32_u24 v6, 896, v6")
            e("s_lshl_b32 s3, s49, 1")
            e("v_xor_b32 v5, s3, v5")
            e("v_lshl_add_u32 v18, v5, 4, v6")
            e("s_lshl_b32 s52, s49, 9")
    wv()
    srd_xw()
    if PP and PPW: e("s_waitcnt vmcnt(0)")
    wmark(1)
    slp(LDL)
    NPC = 6 if isB else 4
    def isW(i):
        e("s_mov_b32 exec_hi, 0xffffff")
        if PK and i in PKP:
            e(f"s_add_u32 s3, s80, {i-3}")
            e("s_and_b32 s3, s3, 3")
            e(f"s_mul_i32 s84, s3, {8*IMG}")
            e("s_add_u32 s84, s84, s16")
            e("s_bitcmp1_b32 s14, s3")
            if PKF: e("s_cmp_eq_u32 s14, 0x12345")
            e("s_cselect_b64 s[8:9], s[40:41], s[32:33]")
            e("s_cselect_b32 s10, s42, s34")
            e("s_cselect_b32 s83, s84, s83")
            e("s_cselect_b32 s17, 3584, s18")
            e("s_cselect_b64 s[12:13], -1, 0")
            if STAMP and (SIDS is None or 50 in SIDS): e(f"s_addc_u32 s19, s19, s19")
            e("v_cndmask_b32 v9, v8, v32, s[12:13]")
            if isB: e("v_cndmask_b32 v13, v12, v33, s[12:13]")
            for j in range(NPC):
                jj = j & 3
                e(f"s_add_u32 m0, s50, {(B_kv(i) if isB else A_kv(i)) + j*3584}")
                if jj == 0: e("s_nop 0")
                else: e(f"s_add_u32 s84, {'s83' if jj == 1 else 's84'}, s17")
                e(f"buffer_load_dwordx4 v{9 if j < 4 else 13}, s[8:11], {'s84' if jj else 's83'} offen lds")
                vm.issue(f"c{i}")
        else:
            for j in range(4): dmag(vm, f"c{i}", 8, 32, "s83", j*43008, 50, (B_kv(i) if isB else A_kv(i)) + j*3584, False)
            if isB:
                for j in range(2): dmag(vm, f"c{i}", 12, 32, "s83", j*43008, 50, B_q(i) + j*3584, False)
        e("s_mov_b32 exec_hi, -1")
    def pk_setup():
        e("v_lshlrev_b32 v32, 4, v2")
        e("v_add_u32 v32, s50, v32")
        if isB: e("v_add_u32 v33, 14336, v32")
        e("s_andn2_b32 s16, s2, 0x18")
        e(f"s_mul_i32 s16, s16, {IMG}")
        e(f"s_add_u32 s16, s16, 0x{PKB:x}")
        e(f"s_mul_i32 s20, s2, {IMG}")
        e(f"s_add_u32 s20, s20, 0x{PKB:x}")
        e("s_mov_b32 s18, 43008")
        e("s_mov_b32 s11, 0x20000")
        e("s_mov_b32 s19, 0")
        e("s_and_b32 s3, s92, 7")
        e("s_lshl3_add_u32 s21, s22, s3")
        e("s_or_b32 s21, s21, 0x40")
        e("v_mov_b32 v36, s21")
        e("s_lshl2_add_u32 s3, s23, s49")
        e("v_mov_b32 v37, s3")
        e("s_lshl4_add_u32 s3, s26, s49")
        e("v_and_b32 v34, 3, v2")
        e("v_lshl_add_u32 v34, v34, 2, s3")
    def pk_rd():
        b = B_kv(0) if isB else A_kv(0)
        e(f"v_add_u32 v35, {b}, v32")
        for j in range(NPC): e(f"ds_read_b128 v[{48+4*j}:{51+4*j}], v35 offset:{j*3584}")
    def pk_st():
        e("s_waitcnt lgkmcnt(0)")
        e("s_mov_b32 exec_hi, 0xffffff")
        for j in range(min(NPC, PKNS)):
            if j and not (j & 1): e(f"s_add_u32 s84, {'s20' if j == 2 else 's84'}, 7168")
            e(f"buffer_store_dwordx4 v[{48+4*j}:{51+4*j}], v32, s[40:43], {'s20' if j < 2 else 's84'} offen offset:{(j&1)*3584} {PKSP}")
            vm.issue("pub")
        e("s_mov_b32 exec_hi, -1")
    def pk_flag():
        if PKNS and not PKNF: vm.wait("pub")
        e("s_mov_b64 exec, 1")
        e("buffer_store_byte v36, v37, s[44:47], 0 offen")
        vm.issue("flag")
        e("s_mov_b64 exec, -1")
    def pk_poll(i):
        e("buffer_load_ubyte v35, v34, s[44:47], 0 offen nt")
        vm.issue(f"F{i}")
    def pk_pre(i):
        if PK and (i + 2) in PKP:
            vm.wait(f"F{i}")
            e("v_cmp_eq_u32 s[14:15], s21, v35")
        else: vm.wait(f"c{i}")
        if PK and i == 0 and not PKN: pk_rd()
    def pk_stat():
        if not (PK and STAMP and (SIDS is None or 50 in SIDS)): return
        e("s_lshl_b32 s74, s2, 8")
        e(f"s_add_u32 s74, s74, {STB + 50*4}")
        e("s_lshl_b32 s75, s49, 2")
        e("s_add_u32 s74, s74, s75")
        e("v_mov_b32 v28, s19")
        e("s_mov_b64 exec, 1")
        e("buffer_store_dword v28, off, s[40:43], s74")
        e("s_mov_b64 exec, -1")
        vm.issue("stamp")
    def pk_post(i):
        if not PK or PKN: return
        if i == 0: pk_st()
        if (i + 3) in PKP: pk_poll(i + 1)
    def isX(i):
        xb = B_x(i) if isB else A_x(i)
        for u in range(4):
            dmag(vm, f"c{i}", 16 + (u & 1), 28, "s85" if u < 2 else "s86", 0, 51, xb + (2048 if isB else 0) + u*1024)
            if i == 0 and u == 0 and not WF: ka_rest()
        if isB:
            e("s_mov_b32 exec_hi, 0")
            dmag(vm, f"c{i}", 18, 28, "s85", 0, 52, xb, False)
            if WF: e("s_mov_b32 exec_hi, -1")
    def isC(i):
        if XNOL and i >= 2:
            e("buffer_load_dword v30, off, s[40:43], 0"); vm.issue(f"c{i}")
            if PK and i == 3 and not PKN: pk_flag()
            return
        if WF:
            isW(i)
            if i == 0: ka_rest()
            isX(i)
        else:
            isX(i)
            if PK and i == 3 and not PKN: pk_flag()
            isW(i)
        if PK and i == 0: mk_table()
    def second():
        scal2()
        srd_rest()
        stamp(vm, SO + 0)
        nonce_issue(vm)
        if PK: pk_setup()
    def flg():
        e("v_lshlrev_b32 v3, 2, v2")
        e("v_mov_b32 v4, 0")
        e(f"v_add_u32 v3, {FLG}, v3")
        e("ds_write_b32 v3, v4")
        e("s_waitcnt lgkmcnt(0)")
    if isB:
        isC(0)
        wmark(2)
        if SEC == 0 or SEC == 2: second()
        if SEC != 2: step_hdr(81); isC(1)
        if SEC == 1: second()
        stamp(vm, 36)
        if LPRIO and LPR2 >= 0: e(f"s_setprio {LPR2}")
        flg()
        for i in range(7):
            if i == 0: stamp(vm, 37); wmark(3)
            if i == 0 and XNOL: wo_voffs(True)
            pk_pre(i)
            if i == 0: stamp(vm, 38); wmark(4)
            e("s_barrier")
            if i == 0: wmark(5); wdump(vm)
            pk_post(i)
            if i == 5: pk_stat()
            if i == 0 and not XNOL: capture(wo_voffs, True)
            if i == 2: nonce_get()
            if i == 0 and SEC == 2: step_hdr(81); isC(1)
            if i <= 4: step_hdr(81); isC(i+2)
            if i == 4: flush()
            if i >= 5:
                tb = 0xa860 if i == 5 else 0xec42
                e("s_lshl_b32 s3, s49, 2")
                e(f"s_lshr_b32 s52, 0x{tb:x}, s3")
                e("s_and_b32 s52, s52, 15")
                e(f"s_mul_i32 s53, s52, {WB}")
                e(f"s_add_u32 s53, s53, {B_wo(0)}")
                e(f"s_mul_i32 s54, s49, {2*28*896}")
                if i == 5: e(f"s_add_u32 s54, s54, {8*28*896}")
                for dh in range(2): wo_blockg(vm, dh, True)
        p2_lsetup(True)
        e(f"v_mov_b32 v3, {FLG}")
        e("s_waitcnt vmcnt(14)")
        e("s_mov_b64 exec, 1")
        e("ds_add_u32 v3, v4")
        e("s_mov_b64 exec, -1")
        spin2(0, 8 if GSIG else 4)
        stamp(vm, SO + 3, 44)
        st_flush()
        e("s_branch P2_BL")
        return
    isC(0)
    wmark(2)
    if SEC == 1:
        step_hdr(81); isC(1)
    second()
    stamp(vm, 36)
    for r in range(4): e(f"v_mov_b32 v{4+r}, 0")
    zs = uid("ZS")
    e("s_cmp_eq_u32 s25, 0")
    e(f"s_cbranch_scc0 {zs}")
    e("s_lshl2_add_u32 s3, s26, s49")
    e(f"s_mul_i32 s3, s3, {16*AS}")
    e(f"s_add_u32 s3, s3, 0x{ACC:x}")
    e("v_lshlrev_b32 v3, 4, v2")
    e("buffer_store_dwordx4 v[4:7], v3, s[40:43], s3 offen sc0 sc1")
    lab(zs)
    if SEC == 0:
        step_hdr(81); isC(1)
    flg()
    if LPRIO and LPR2 >= 0: e(f"s_setprio {LPR2}")
    for i in range(5):
        if i == 0: stamp(vm, 37); wmark(3)
        pk_pre(i)
        if i == 0: stamp(vm, 38); wmark(4)
        e("s_barrier")
        if i == 0: wmark(5); wdump(vm)
        if i == 0: capture(wo_voffs, False)
        if i == 3:
            nonce_get()
            zs = uid("ZF")
            e("s_or_b32 s3, s25, s49")
            e(f"s_cbranch_scc1 {zs}")
            e("s_lshl_b32 s3, s26, 2")
            e(f"v_mov_b32 v22, {CNT_Z}")
            e("v_mov_b32 v23, 1")
            e("s_mov_b64 exec, 1")
            e("buffer_store_dword v23, v22, s[44:47], s3 offen sc0 sc1")
            e("s_mov_b64 exec, -1")
            lab(zs)
        step_hdr(81); isC(i+2)
        if i == 4:
            flush()
            assert min(QB[:4]) >= 4 and min(QB[4:]) >= 5
            e(f"v_mov_b32 v{QV}, v12")
            isQb(vm, 4)
    st_flush()
    e("s_bitcmp1_b32 s49, 1")
    e("s_cbranch_scc1 T_AY")
    e("s_bitcmp1_b32 s49, 0")
    e("s_cbranch_scc1 T_A1")
    e("s_branch T_A0")
    lab("T_AY")
    e("s_bitcmp1_b32 s49, 0")
    e("s_cbranch_scc1 T_A3")
    e("s_branch T_A2")
    global VMA
    VMA = vm

TPR = int(os.environ.get("TPR", "3"))
TPR3 = int(os.environ.get("TPR3", "0"))
TPR2 = int(os.environ.get("TPR2", "-1"))
TPR4 = int(os.environ.get("TPR4", "-1"))
NPL = int(os.environ.get("NPL", "2"))
PLN = int(os.environ.get("PLN", "64"))
PLS = int(os.environ.get("PLS", "0"))
TPR0 = int(os.environ.get("TPR0", "3"))
PL0 = int(os.environ.get("PL0", "0"))
QB = [int(x) for x in os.environ.get("QB", "5,5,5,5,6,6,6").split(",")]
NW0 = int(os.environ.get("NW0", "7"))
NW1 = int(os.environ.get("NW1", "7"))
PS0 = int(os.environ.get("PS0", "0"))
PSL = int(os.environ.get("PSL", "4"))
RDE = os.environ.get("RDE", "0") == "1"
QV = 53
def isQ(vm, i):
    step_hdr(82, x=False)
    for j in range(2): dmag(vm, "q", QV, 32, "s83", j*43008, 50, A_q(i) + j*3584, False)
def isQb(vm, b):
    ks = [k for k in range(7) if QB[k] == b]
    if not ks: return
    e("s_mov_b32 exec_hi, 0xffffff")
    for k in ks: isQ(vm, k)
    e("s_mov_b32 exec_hi, -1")
def tailA(lw):
    global L
    lab(f"T_A{lw}")
    vm = VM(); vm.ops = list(VMA.ops)
    SO = 32
    hh = lw >> 1; et = lw & 1
    SCV = 51; ATV = 52; PLV = 56; WRV = 57; CV = 60; ZV = 54; RD = ST; MK = 58; ON = 59; MA = 62; MB = 63; SH = 64
    e("v_and_b32 v5, 15, v2")
    e("v_lshrrev_b32 v6, 4, v2")
    e("v_lshlrev_b32 v3, 4, v2")
    e(f"v_add_u32 v{SCV}, {A_scr(lw)}, v3")
    e(f"s_mul_i32 s3, s26, {64*AS}")
    e(f"s_add_u32 s57, s3, 0x{ACC + lw*16*AS:x}")
    e(f"v_lshlrev_b32 v{ATV}, 8, v6")
    e(f"v_lshl_add_u32 v{ATV}, v5, 2, v{ATV}")
    e("v_cmp_gt_u32 s[66:67], 3, v6")
    e("v_cmp_le_u32 s[18:19], 14, v5")
    e("v_cmp_gt_u32 s[20:21], 2, v5")
    e("v_mov_b32 v10, 0xffff")
    e("v_mov_b32 v11, 0xffff0000")
    e(f"v_cndmask_b32 v{MK}, -1, v11, s[18:19]")
    e(f"v_cndmask_b32 v{MK}, v{MK}, v10, s[20:21]")
    e("v_mov_b32 v12, 0x3c003c00")
    e(f"v_bfi_b32 v{ON}, v{MK}, 0, v12")
    e("v_and_b32 v13, 3, v2")
    e("v_lshrrev_b32 v14, 2, v2")
    e("v_cmp_eq_u32 s[4:5], 3, v13")
    e("v_cmp_eq_u32 s[8:9], 0, v13")
    e("s_or_b64 s[6:7], s[8:9], s[4:5]")
    e(f"v_cndmask_b32 v{MA}, -1, v10, s[8:9]")
    e(f"v_cndmask_b32 v{MB}, -1, v11, s[4:5]")
    e(f"v_cndmask_b32 v{SH}, 16, 0, s[4:5]")
    if et:
        e("v_min_u32 v15, 12, v14")
        e("v_lshlrev_b32 v15, 6, v15")
        e(f"v_lshl_add_u32 v{PLV}, v13, 4, v15")
    else:
        e(f"v_mov_b32 v{PLV}, v3")
    e(f"v_lshlrev_b32 v12, 4, v13")
    e(f"v_add_u32 v12, {KVB + hh*2048}, v12")
    e(f"v_add_u32 v13, {16*et}, v14")
    e("v_mul_u32_u24 v10, 37, v13")
    e("v_lshrrev_b32 v10, 8, v10")
    e("v_mul_u32_u24 v15, 7, v10")
    e("v_sub_u32 v15, v13, v15")
    e("v_lshrrev_b32 v16, 2, v15")
    e("v_and_b32 v15, 3, v15")
    e("v_lshl_add_u32 v15, v10, 2, v15")
    e("v_lshl_add_u32 v15, v16, 4, v15")
    if et:
        e("v_lshlrev_b32 v16, 2, v14")
        e("v_subrev_u32 v16, 29, v16")
        e("v_cmp_lt_u32 vcc, 11, v14")
        e("v_cndmask_b32 v15, v15, v16, vcc")
    e(f"v_lshl_add_u32 v{WRV}, v15, 6, v12")
    p2_lsetup(False, scal=False)
    e(f"v_mov_b32 v3, {FLG}")
    e(f"v_mov_b32 v{ZV+1}, {CNT_Z}")
    e("s_lshl_b32 s65, s26, 2")
    for i in (5, 6):
        vm.wait(f"c{i}")
        e("s_barrier")
        if i == 5:
            e(f"buffer_load_dword v{ZV}, v{ZV+1}, s[44:47], s65 offen sc0 sc1")
            vm.issue("z")
        if i == 6 and TPR0: e(f"s_setprio {TPR0}")
        isQb(vm, i)
    for x in p2_scal(False): e(x)
    half = list(range(4) if et == 0 else range(4, 7))
    WL = [(8 + lw, t) for t in range(7)] + [(12 + lw, t) for t in range(7)] + [(hh, t) for t in half]
    assert NW0 <= len(WL)
    WL += [(2 + lw, t) for t in range(7)] + [(6 + hh, t) for t in half]
    def wo_n(n):
        while n > 0 and WL:
            h = WL[0][0]; ts = []
            while n > 0 and WL and WL[0][0] == h:
                ts.append(WL.pop(0)[1]); n -= 1
            wo_block(vm, h, False, ts, tag="wh" if h >= 8 else "wl")
    wo_n(NW0)
    zl = uid("ZL"); zd = uid("ZD"); z1 = uid("Z1")
    e("s_mov_b32 s69, 0")
    vm.wait("z")
    e(f"s_branch {z1}")
    lab(zl)
    e(f"buffer_load_dword v{ZV}, v{ZV+1}, s[44:47], s65 offen sc0 sc1")
    e("s_waitcnt vmcnt(0)")
    lab(z1)
    e(f"v_readfirstlane_b32 s3, v{ZV}")
    e("s_add_u32 s69, s69, 1")
    e("s_nop 2")
    e("s_cmp_eq_u32 s3, 1")
    e(f"s_cbranch_scc1 {zd}")
    e("s_sleep 1")
    e("s_cmp_gt_u32 s69, 0x40000")
    e(f"s_cbranch_scc0 {zl}")
    lab(zd)
    stamp(vm, 43, CV)
    if TPR: e(f"s_setprio {TPR}")
    vm.wait("q")
    stamp(vm, 42, CV)
    e("s_barrier")
    stamp(vm, SO + 1, CV)
    for w in range(2):
        for dt in range(2):
            r = RD + dt*8 + w*4
            e(f"ds_read_b128 v[{r}:{r+3}], v{SCV} offset:{w*2048 + dt*1024}")
    for dt in range(2):
        e(f"s_waitcnt lgkmcnt({1-dt})")
        b = RD + dt*8
        for r in range(2):
            e(f"v_pk_add_f32 v[{b+2*r}:{b+2*r+1}], v[{b+2*r}:{b+2*r+1}], v[{b+4+2*r}:{b+5+2*r}]")
    for r in range(4):
        e(f"v_cvt_pk_f16_f32 v{RD+r}, v{RD+r}, v{RD+8+r}")
    for r in range(4):
        e(f"v_and_or_b32 v{RD+r}, v{RD+r}, v{MK}, v{ON}")
        if et and r == 1: e("s_mov_b64 exec, s[66:67]")
        e(f"buffer_atomic_pk_add_f16 v{RD+r}, v{ATV}, s[40:43], s57 offen offset:{r*AS} sc1")
        vm.issue("at")
    if et: e("s_mov_b64 exec, -1")
    stamp(vm, SO + 2, CV)
    if TPR2 >= 0: e(f"s_setprio {TPR2}")
    PR = PRT
    def poll():
        e(f"buffer_load_dwordx4 v[{PR}:{PR+3}], v{PLV}, s[40:43], s57 offen sc0 sc1")
    wo_n(NW1)
    slp(PS0)
    poll(); vm.issue("poll")
    stamp(vm, 44, CV)
    wo_n(100)
    if RDE:
        vm.wait("wh")
        e("s_mov_b64 exec, 1")
        e("ds_add_u32 v3, v4")
        e("s_mov_b64 exec, -1")
        spin2(0, 4)
        rd_res2(False, 1)
    stamp(vm, 45, CV)
    if TPR and TPR2 >= 0: e(f"s_setprio {TPR}")
    lp = uid("KVL"); dn = uid("KVD"); l1 = uid("KV1")
    e("s_mov_b32 s69, 0")
    vm.wait("poll")
    e(f"s_branch {l1}")
    lab(lp)
    if PSL: e(f"s_sleep {PSL}")
    poll()
    e("s_add_u32 s69, s69, 1")
    e("s_cmp_gt_u32 s69, 0x40000")
    e(f"s_cbranch_scc1 {dn}")
    e("s_waitcnt vmcnt(0)")
    lab(l1)
    e(f"v_cndmask_b32 v13, v{PR}, v{PR+3}, s[4:5]")
    e(f"v_bfe_u32 v13, v13, v{SH}, 16")
    e("v_cmp_eq_u32 vcc, 0x4c00, v13")
    e(f"v_and_b32 v{PR}, v{PR}, v{MA}")
    e(f"v_and_b32 v{PR+1}, v{PR+1}, v{MA}")
    e("s_and_b64 s[14:15], vcc, s[6:7]")
    e(f"v_and_b32 v{PR+2}, v{PR+2}, v{MB}")
    e(f"v_and_b32 v{PR+3}, v{PR+3}, v{MB}")
    e("s_cmp_eq_u64 s[14:15], s[6:7]")
    e(f"s_cbranch_scc0 {lp}")
    lab(dn)
    e(f"ds_write_b128 v{WRV}, v[{PR}:{PR+3}]")
    stamp(vm, 46, CV)
    if STAMP and (SIDS is None or 47 in SIDS):
        e(f"v_mov_b32 v{CV}, s69")
        e("s_lshl_b32 s74, s2, 8")
        e(f"s_add_u32 s74, s74, {STB + 50*4 + lw*4}")
        e("s_mov_b64 exec, 1")
        e(f"buffer_store_dword v{CV}, off, s[40:43], s74")
        e("s_mov_b64 exec, -1")
    e("s_waitcnt lgkmcnt(0)")
    e("s_barrier")
    if TPR and TPR3 >= 0: e(f"s_setprio {TPR3}")
    e("s_waitcnt vmcnt(0)")
    e("s_mov_b64 exec, 1")
    e("ds_add_u32 v3, v4 offset:4")
    e("s_mov_b64 exec, -1")
    stamp(vm, SO + 3, CV)
    if not RDE:
        spin2(4, 4)
        rd_res2(False, 1)
    st_flush()
    e("s_branch P2_AL")

NP = int(os.environ.get("NP", "64"))
NRES = 8
SLP = int(os.environ.get("SLP", "4"))
EARLY = os.environ.get("EARLY", "0") == "1"
FPOL = os.environ.get("FPOL", "nt")
TR = os.environ.get("TR") == "1"
def tr(k):
    if TR: e(f"s_memrealtime s[{4+2*k}:{5+2*k}]")
PST = int(os.environ.get("PST", "0"))
AC = 16; OF = 44; WV = 76; ST = 92; PRT = 116
def oreg(j, hh): return OF + (j*2+hh)*4
def wreg(j, f):
    if f >= NRES: return "v", ST + (f-NRES)*4
    i = j*NRES + f
    return ("a", i*4) if i < 28 else ("v", WV + (i-28)*4)
def rdf(j, f):
    hh, nt = divmod(f, 7)
    k, r = wreg(j, f)
    o = (2*j+hh)*WB + nt*32
    e(f"ds_read_b64_tr_b16 {k}[{r}:{r+1}], v8 offset:{o}")
    e(f"ds_read_b64_tr_b16 {k}[{r+2}:{r+3}], v9 offset:{o}")
def rd_res(kind):
    for j in range(4):
        for f in range(NRES):
            if wreg(j, f)[0] in kind: rdf(j, f)
def wo_bases(wo):
    e("v_lshrrev_b32 v7, 4, v2")
    e("v_lshrrev_b32 v3, 1, v7")
    e("v_bfe_u32 v8, v2, 2, 2")
    e("v_mul_u32_u24 v9, 14, v3")
    e("v_and_b32 v4, 1, v7")
    e("v_lshl_add_u32 v6, v4, 2, v9")
    e("v_add_u32 v6, v6, v8")
    e("v_mul_u32_u24 v5, 3, v4")
    e("v_min_u32 v8, 2, v8")
    e("v_add3_u32 v9, v9, v5, v8")
    e("v_add_u32 v9, 8, v9")
    e("v_and_b32 v5, 3, v2")
    e("v_lshlrev_b32 v5, 3, v5")
    e(f"v_add_u32 v5, {wo}, v5")
    e(f"v_mul_u32_u24 v8, {RS}, v6")
    e("v_add_u32 v8, v8, v5")
    e(f"v_mul_u32_u24 v9, {RS}, v9")
    e("v_add_u32 v9, v9, v5")
def spin_flag(off, val, cmp_):
    lp = uid("SP")
    e(f"v_mov_b32 v3, {FLG}")
    lab(lp)
    e(f"ds_read_b32 v4, v3 offset:{off}")
    e("s_waitcnt lgkmcnt(0)")
    e("v_readfirstlane_b32 s3, v4")
    e("s_nop 3")
    e(f"s_cmp_{cmp_}_u32 s3, {val}")
    e(f"s_cbranch_scc0 {lp}")
GSIG = os.environ.get("GSIG", "1") == "1"
SPS = int(os.environ.get("SPS", "1"))
def spin2(off, val):
    lp = uid("SP"); dn = uid("SD")
    lab(lp)
    e(f"ds_read_b32 v13, v3 offset:{off}")
    e("s_waitcnt lgkmcnt(0)")
    e("v_readfirstlane_b32 s3, v13")
    e("s_nop 3")
    e(f"s_cmp_eq_u32 s3, {val}")
    if SPS:
        e(f"s_cbranch_scc1 {dn}")
        e(f"s_sleep {SPS}")
        e(f"s_branch {lp}")
        lab(dn)
    else: e(f"s_cbranch_scc0 {lp}")
def tcol(isB, grp, t):
    return (t >> 1)*56 + (t & 1)*(24 if (not isB and grp < 2) else 32)

def accA(grp, rt, t): return 32 + (rt*4+t)*4
def accA2(grp, t, rt): return 32 + (grp-1)*32 + (t*4+rt)*4
def accB(grp, t, r):
    if grp == 0: return 32 + r*8 + t*4
    if grp == 1: return 64 + r*8 + t*4
    return 104 + t*20 + r*4

def comp_setup(isB):
    wo_bases(wbase(isB, 0)[0])
    e("v_lshrrev_b32 v3, 4, v2")
    e("v_bfe_u32 v4, v2, 2, 2")
    e("v_lshl_add_u32 v4, v3, 3, v4")
    e("v_and_b32 v5, 1, v3")
    e("v_lshlrev_b32 v5, 2, v5")
    e("v_add_u32 v6, v4, v5")
    e("v_xor_b32 v7, 4, v6")
    e(f"v_mul_u32_u24 v6, {RS}, v6")
    e(f"v_mul_u32_u24 v7, {RS}, v7")
    e("v_and_b32 v5, 3, v2")
    e("v_lshl_add_u32 v14, v5, 3, v6")
    e("v_lshl_add_u32 v15, v5, 3, v7")
    e("s_and_b32 s49, s48, 1")
    e("s_lshr_b32 s50, s48, 1")
    e("s_mul_i32 s3, s49, 56")
    e("v_add_u32 v12, s3, v14")
    e("v_add_u32 v13, s3, v15")
    e("v_and_b32 v4, 15, v2")
    e("v_lshrrev_b32 v5, 1, v4")
    e("v_xor_b32 v5, v5, v3")
    e("v_lshlrev_b32 v5, 4, v5")
    e("v_lshl_add_u32 v18, v4, 7, v5")
    if isB:
        e("s_lshl_b32 s3, s50, 13")
        e("v_add_u32 v16, s3, v18")
        e("v_xor_b32 v17, 64, v16")
    else:
        e("v_lshl_add_u32 v16, v1, 12, v18")
        e("v_xor_b32 v17, 64, v16")
        e("v_xor_b32 v18, 0x1000, v16")
        e("v_xor_b32 v19, 0x1000, v17")

ILV = os.environ.get("ILV", "1") == "1"
def pr2(n, d):
    v = [int(x) for x in os.environ.get(n, d).split(",")]
    return v if len(v) == 2 else v*2
LAs = pr2("LA", "16,18"); URGs = pr2("URG", "8,8"); BLs = pr2("BL", "6,6"); BLLs = pr2("BLL", "3,3")
SYC = int(os.environ.get("SYC", "1"))
def gemm(vm, isB):
    global L
    lg = LG()
    D = DB if isB else DA
    NB = 12 if isB else 6
    assert D <= (5 if isB else 4)
    def bf(j):
        r = (j % NB)*4 + (0 if isB else 96); k = "a" if isB else "v"
        return (f"{k}[{r}:{r+3}]", f"{k}[{r}:{r+1}]", f"{k}[{r+2}:{r+3}]")
    def xr(ch, kk, rt):
        st = (2*ch + kk) % 3
        if isB: r = 48 + st*20 + rt*4
        elif rt < 2: r = (ch*4 + kk*2 + rt)*4
        else:
            r = 120 + st*8 + (rt-2)*4
            return f"v[{r}:{r+3}]"
        return f"a[{r}:{r+3}]"
    items = []
    for ch in range(7):
        if not isB and ch == 6:
            items += [(ch, kk, grp, t) for grp in (1, 2) for t in range(2) for kk in range(2)]
            continue
        for kk in range(2):
            for grp in ((0, 1, 2) if isB else (1, 2)):
                for t in range(2): items.append((ch, kk, grp, t))
    lastuse = {}
    for j, it in enumerate(items): lastuse[2*it[0] + it[1]] = j
    def sync(ch):
        if ch == 6: vm.wait("pre" if PRE else "non")
        if ch == 0: wmark(4)
        e("s_barrier")
        if ch == 0: wmark(5); wdump(vm)
        stamp(vm, 12 + ch)
        if PST == ch + 2: prestore(vm, isB)
        pf_bar(vm, isB, ch)
        wb = 20 + (ch & 1)*2
        kvb = B_kv(ch) if isB else A_kv(ch)
        xb = B_x(ch) if isB else A_x(ch)
        e(f"v_add_u32 v24, {xb}, v16")
        e(f"v_add_u32 v25, {xb}, v17")
        if not isB:
            e(f"v_add_u32 v26, {xb}, v18")
            e(f"v_add_u32 v27, {xb}, v19")
        e(f"v_add_u32 v{wb}, {kvb}, v12")
        e(f"v_add_u32 v{wb+1}, {kvb}, v13")
    def xrd(ch, kk):
        if XNOR or XNOX: return
        if isB:
            for rt in (1, 2, 3, 4, 0):
                e(f"ds_read_b128 {xr(ch,kk,rt)}, v{24+kk} offset:{rt*2048}")
                lg.issue(f"x{ch}")
        else:
            for rt in range(4):
                e(f"ds_read_b128 {xr(ch,kk,rt)}, v{24+kk+(rt>>1)*2} offset:{(rt&1)*2048}")
                lg.issue(f"x{ch}")
    def wrd(j):
        ch, kk, grp, t = items[j]
        wb = 20 + (ch & 1)*2
        if grp == 0: off = KVS + kk*112 + t*32
        else: off = 32*kk*RS + (grp-1)*112 + t*(24 if (not isB and grp == 1) else 32)
        for hf in range(2):
            if XNOR or (XNOW and hf): continue
            e(f"ds_read_b64_tr_b16 {bf(j)[1+hf]}, v{wb+hf} offset:{off}")
            lg.issue(f"w{j}")
    def rd(j):
        ch, kk, grp, t = items[j]
        if j == 0 or items[j-1][0] != ch: sync(ch)
        if j == 0 or items[j-1][:2] != (ch, kk): xrd(ch, kk)
        wrd(j)
    def mfmas(j):
        ch, kk, grp, t = items[j]
        tr = isB and grp < 2
        first = (ch == 0 and kk == 0)
        o = []
        for r in range(5 if (isB and grp) else 4):
            a = accB(grp, t, r) if isB else accA2(grp, t, r)
            x = xr(ch, kk, r + 1 if (isB and grp == 0) else r)
            cc = ("1.0" if (not isB and grp == 1) else "0") if first else f"v[{a}:{a+3}]"
            if tr: o.append(f"v_mfma_f32_16x16x32_bf16 v[{a}:{a+3}], {bf(j)[0]}, {x}, {cc}")
            else: o.append(f"v_mfma_f32_16x16x32_bf16 v[{a}:{a+3}], {x}, {bf(j)[0]}, {cc}")
        return o
    if ILV:
        LA = LAs[isB]; URG = URGs[isB]; BL = BLs[isB]; BLL = BLLs[isB]
        F = []; n = 0
        for j in range(len(items)): F.append(n); n += len(mfmas(j))
        F.append(n)
        ipc = len(items) // 7
        ops = []
        lg0 = lg; seen = set()
        vq = [] if isB else epiA_vq(F[6*ipc])
        for j in range(len(items)):
            ch, kk, grp, t = items[j]
            bufe = F[j - NB + 1] if j >= NB else -10**9
            if j % ipc == 0:
                bl = BLL if ch == 6 else BL
                ops.append((j, F[j] - bl, "S", ch, None))
            class Rec:
                def __init__(s_): s_.t = []
                def issue(s_, tag): s_.t.append(tag)
            sv = L; L = []; lg = Rec()
            if (ch, kk) not in seen: xrd(ch, kk)
            seen.add((ch, kk))
            nx = len(L)
            wrd(j)
            ins = L; L = sv
            for q, (ln, tg) in enumerate(zip(ins, lg.t)):
                ear = F[j] - LA
                if q >= nx: ear = max(ear, bufe)
                else:
                    if 2*ch + kk >= 3: ear = max(ear, F[lastuse[2*ch + kk - 3] + 1])
                ops.append((j, ear, "L", ln, tg))
            lg = lg0
        qi = 0
        def emit(op):
            if op[2] == "S": sync(op[3])
            else: L.append(op[3]); lg.issue(op[4])
        g = 0; sig = []
        for j in range(len(items)):
            for m, ins in enumerate(mfmas(j)):
                if m == 0:
                    while qi < len(ops) and ops[qi][0] <= j: emit(ops[qi]); qi += 1
                cnt = 0
                while qi < len(ops) and ops[qi][1] <= g:
                    lim = 2 if F[ops[qi][0]] - g < URG else 1
                    if ops[qi][2] == "L" and cnt >= lim: break
                    if ops[qi][2] == "L": cnt += 1
                    else: cnt += SYC
                    emit(ops[qi]); qi += 1
                if isB and GSIG and qi == len(ops) and not sig:
                    sig.append(1)
                    e("s_mov_b64 exec, 1")
                    e("ds_add_u32 v6, v7")
                    e("s_mov_b64 exec, -1")
                    lg.issue("sig")
                if m == 0: lg.wait(f"w{j}")
                e(ins); g += 1
                nv = 0
                while vq and vq[0][0] <= g and nv < NVA:
                    e(vq.pop(0)[1]); nv += 1
        return vq
    for j in range(D): rd(j)
    for j, (ch, kk, grp, t) in enumerate(items):
        if j + D < len(items): rd(j + D)
        if not XNOR: lg.wait(f"w{j}")
        if XNOM and ch > 0: continue
        for ins in mfmas(j): e(ins)

NVA = int(os.environ.get("NVA", "4"))
def phi5(y, t):
    if os.environ.get("PKF32") == "1":
        return [f"v_pk_fma_f32 v[{t}:{t+1}], v[{y}:{y+1}], s[70:71], s[70:71] neg_lo:[0,0,1] neg_hi:[0,0,1]",
                f"v_exp_f32 v{t}, v{t} clamp",
                f"v_exp_f32 v{t+1}, v{t+1} clamp"]
    return [f"v_fma_f32 v{t}, v{y}, s70, -s70",
            f"v_fma_f32 v{t+1}, v{y+1}, s70, -s70",
            f"v_exp_f32 v{t}, v{t} clamp",
            f"v_exp_f32 v{t+1}, v{t+1} clamp"]
def zipl(seqs):
    o = []
    for i in range(max(len(q) for q in seqs)):
        for q in seqs:
            if i < len(q): o.append(q[i])
    return o
def epiA_vq(g0):
    TT = [12, 16, 18, 22]
    vq = []
    pre = ["v_and_b32 v5, 15, v2", "v_mov_b32 v7, 0x3f803f80", "s_lshl_b32 s3, s49, 13", "s_lshl_b32 s27, s50, 11",
           "v_cmp_le_u32 s[64:65], 12, v5", "s_add_u32 s3, s3, s27", "v_lshlrev_b32 v3, 4, v2", f"s_add_u32 s3, s3, {A_scr(0)}",
           "v_lshrrev_b32 v6, 4, v2", "v_add_u32 v4, s3, v3"]
    vq += [(g0 + 1, x) for x in pre]
    for t in range(2):
        for rt in range(4):
            a = accA2(1, t, rt); d = accA2(1, t, rt & 2) + (rt & 1)*2
            sq = []
            for h in range(2):
                y = a + 2*h; tt = TT[(rt & 1)*2 + h]
                sq.append(phi5(y, tt) + [f"v_max_f32 v{tt}, v{tt}, v{y}", f"v_max_f32 v{tt+1}, v{tt+1}, v{y+1}"])
            o = zipl(sq)
            o += [f"v_cvt_pk_bf16_f32 v{d+h}, v{TT[(rt&1)*2+h]}, v{TT[(rt&1)*2+h]+1}" for h in range(2)]
            vq += [(g0 + t*8 + 4 + rt + 4, x) for x in o]
    for t in range(2):
        for rt in range(4):
            a = accA2(2, t, rt); d = accA2(2, t, rt & 2) + (rt & 1)*2
            o = [f"v_cvt_pk_bf16_f32 v{d}, v{a}, v{a+1}", f"v_cvt_pk_bf16_f32 v{d+1}, v{a+2}, v{a+3}"]
            if t: o += [f"v_cndmask_b32 v{d}, v{d}, v7, s[64:65]", f"v_cndmask_b32 v{d+1}, v{d+1}, v7, s[64:65]"]
            vq += [(g0 + 16 + t*8 + 4 + rt + 4, x) for x in o]
    return vq
def pass2(pre):
    lg = LG()
    D = int(os.environ.get("D2", "6")); NB = 12
    items = [(ch, kk, t) for t in range(4) for ch in range(7) for kk in range(2)]
    e(f"v_add_u32 v20, {A_q(0)}, v14")
    e(f"v_add_u32 v21, {A_q(0)}, v15")
    def rd(j, hfs=(0, 1)):
        if j >= len(items): return
        ch, kk, t = items[j]
        r = 96 + (j % NB)*4
        off = A_q(ch) - A_q(0) + kk*112 + tcol(False, 0, t)
        for hf in hfs:
            e(f"ds_read_b64_tr_b16 v[{r+2*hf}:{r+2*hf+1}], v{20+hf} offset:{off}")
            lg.issue(f"w{j}")
    vq = [(1, x) for x in pre]
    for t in range(4):
        sq = []
        for rt in range(2):
            a = accA(0, rt, t)
            for h in range(2):
                y = a + 2*h; tt = 64 + (rt*2+h)*2
                sq.append(phi5(y, tt) + [f"v_max_f32 v{y}, v{tt}, v{y}", f"v_max_f32 v{y+1}, v{tt+1}, v{y+1}"])
        o = zipl(sq)
        if t & 1:
            for rt in range(2):
                a0 = accA(0, rt, t-1); a1 = accA(0, rt, t)
                o += [f"v_cvt_pk_f16_f32 v{a0+r}, v{a0+r}, v{a1+r}" for r in range(4)]
        vq += [(28*(t+1) + 3, x) for x in o]
    for j in range(D): rd(j)
    g = 0
    for j, (ch, kk, t) in enumerate(items):
        rd(j + D, (0,))
        lg.wait(f"w{j}")
        r = 96 + (j % NB)*4
        for rt in range(2):
            a = accA(0, rt, t); x = (ch*4 + kk*2 + rt)*4
            cc = "1.0" if (ch == 0 and kk == 0) else f"v[{a}:{a+3}]"
            e(f"v_mfma_f32_16x16x32_bf16 v[{a}:{a+3}], v[{r}:{r+3}], a[{x}:{x+3}], {cc}")
            g += 1
            if rt == 0: rd(j + D, (1,))
            nv = 0
            while vq and vq[0][0] <= g and nv < (2 if rt else 1):
                e(vq.pop(0)[1]); nv += 1
    e("s_nop 7")
    e("s_nop 1")
    for _, x in vq: e(x)

def tile_addr(isB, r=14):
    if isB:
        e("s_lshl_b32 s3, s50, 13")
        e("s_lshl_b32 s27, s49, 10")
        e("s_add_u32 s3, s3, s27")
        e(f"v_lshlrev_b32 v{r}, 4, v2")
        e(f"v_add_u32 v{r}, s3, v{r}")
        e(f"v_add_u32 v{r+1}, 0x1000, v{r}")
    else:
        e(f"v_lshlrev_b32 v{r}, 12, v1")
        e(f"v_lshl_add_u32 v{r}, v2, 4, v{r}")
    e("s_lshl_b32 s27, s26, 14")
    e("s_add_u32 s63, s59, s27")
PLD = os.environ.get("PLD", "0") == "1"
def prestore(vm, isB):
    if PLD:
        e("v_lshlrev_b32 v10, 7, v2")
        e("v_lshl_add_u32 v10, v1, 12, v10")
        e("s_lshl_b32 s27, s26, 14")
        e("s_add_u32 s63, s59, s27")
        e("s_mov_b64 exec, 0xffffffff")
        e("buffer_load_dword v30, v10, s[40:43], s63 offen nt")
        e("s_mov_b64 exec, -1")
        vm.issue("pre")
        return
    tile_addr(isB, 10)
    for r in range(4): e(f"v_mov_b32 v{4+r}, 0")
    for (va, off, n) in tile_regs(isB):
        e(f"buffer_store_dwordx4 v[4:7], v{va-4}, s[40:43], s63 offen offset:{off}")
        vm.issue("pre")
def tile_regs(isB):
    if isB: return [(14 + (rt >> 1), (rt & 1)*2048, 16 + rt*4) for rt in range(4)]
    return [(14, rt*2048 + hh*1024, 16 + (hh*2+rt)*4) for hh in range(2) for rt in range(2)]
def tile_store(isB, q, vm=None):
    for (va, off, n) in tile_regs(isB):
        if q: e(f"buffer_store_dwordx4 v[{n}:{n+3}], v{va}, s[40:43], s51 offen offset:{off} sc0 sc1")
        else: e(f"buffer_store_dwordx4 v[{n}:{n+3}], v{va}, s[40:43], s63 offen offset:{off} {TPOL}")
        if vm: vm.issue("Q")

ESG = os.environ.get("ESG", "1") == "1"
LSL = pr2("LSL", "0,0")
def sigT():
    e(f"v_mov_b32 v3, {FLG}")
    e("v_mov_b32 v4, 1")
    e("s_mov_b64 exec, 1")
    e("ds_add_u32 v3, v4 offset:4")
    e("s_mov_b64 exec, -1")
def epi_A(vm, vq):
    global L
    c("---- A epilogue ----")
    KP = 120
    gl = max(g for g, _ in vq) - 3
    g = gl - 1
    def drain(lim):
        while vq and vq[0][0] <= lim: e(vq.pop(0)[1])
    drain(g)
    def kv(et, dt, pr):
        d = KP + (et*2 + dt)*4
        va = accA2(2, et, 2*pr); pk = accA2(1, dt, 2*pr)
        cc = "0" if pr == 0 else f"v[{d}:{d+3}]"
        e(f"v_mfma_f32_16x16x32_bf16 v[{d}:{d+3}], v[{va}:{va+3}], v[{pk}:{pk+3}], {cc}")
    e("s_nop 1")
    for pr in range(2):
        for dt in range(2):
            kv(0, dt, pr); g += 1
            drain(g)
    assert not vq
    e("s_nop 1")
    def wr(i): e(f"ds_write_b128 v4, v[{KP+i*4}:{KP+i*4+3}] offset:{(i>>1)*4096 + (i&1)*1024}")
    for pr in range(2):
        for dt in range(2):
            kv(1, dt, pr)
    wr(0); wr(1)
    e("s_nop 4")
    wr(2)
    wr(3)
    e("s_waitcnt lgkmcnt(0)")
    stamp(vm, 8)
    e("s_barrier")
    stamp(vm, 4)
    sv = L; L = []
    nonce_get()
    e("v_lshlrev_b32 v10, 6, v5")
    e("v_lshl_add_u32 v10, v6, 4, v10")
    e(f"v_add_u32 v10, {KVB}, v10")
    tile_addr(False, 12)
    e("v_mov_b32 v11, 0xffff")
    for r in range(3): e(f"v_mov_b32 v{72+r}, 0")
    e(f"v_mov_b32 v75, 0x{EPS:x}")
    pre = [x.strip() for x in L]; L = sv
    pass2(pre)
    e("v_mov_b32 v14, v12")
    stamp(vm, 7)
    e("s_barrier")
    stamp(vm, 10)
    R = 80
    for hh in range(2):
        for f in (1, 0):
            r = R + (hh*2+f)*4
            e(f"ds_read_b128 v[{r}:{r+3}], v10 offset:{hh*2048 + f*1024}")
    NR = 96; TT = 128
    for hh in range(2):
        for f in (1, 0):
            e(f"s_waitcnt lgkmcnt({3 - 2*hh - (1-f)})")
            for rt in range(2):
                n = NR + (hh*2+rt)*8
                q = accA(0, rt, 2*hh)
                r = R + (hh*2+f)*4
                e(f"v_mfma_f32_16x16x32_f16 v[{n+f*4}:{n+f*4+3}], v[{r}:{r+3}], v[{q}:{q+3}], {'v[72:75]' if f else '0'}")
    def fin(hh, rt):
        n = NR + (hh*2+rt)*8
        t = TT + (hh*2+rt)*2
        T = 16 + (hh*2+rt)*4
        o = [f"v_rcp_f32 v{t}, v{n+7}",
             f"v_pk_mul_f32 v[{n+4}:{n+5}], v[{n+4}:{n+5}], v[{t}:{t+1}] op_sel_hi:[1,0]",
             f"v_mul_f32 v{n+6}, v{n+6}, v{t}",
             f"v_cvt_pk_bf16_f32 v{T+2}, v{n+4}, v{n+5}",
             f"v_cvt_pk_bf16_f32 v{T+3}, v{n+6}, v{n+6}",
             f"v_and_or_b32 v{T+3}, v{T+3}, v11, s61"]
        for q in range(2):
            o.append(f"v_pk_mul_f32 v[{n+2*q}:{n+2*q+1}], v[{n+2*q}:{n+2*q+1}], v[{t}:{t+1}] op_sel_hi:[1,0]")
        for q in range(2):
            o.append(f"v_cvt_pk_bf16_f32 v{T+q}, v{n+2*q}, v{n+2*q+1}")
        o.append(f"buffer_store_dwordx4 v[{T}:{T+3}], v14, s[40:43], s63 offen offset:{rt*2048 + hh*1024} {TPOL}")
        return o
    ilv([fin(0, 0), fin(0, 1)])
    ilv([fin(1, 0), fin(1, 1)])
    stamp(vm, 5, 4)

def epi_B(vm):
    c("---- B epilogue ----")
    e("v_and_b32 v5, 15, v2")
    e("v_lshrrev_b32 v6, 4, v2")
    e("v_cmp_gt_u32 s[64:65], 3, v6")
    nonce_get()
    e("v_and_b32 v3, 1, v5")
    e("v_cmp_eq_u32 s[4:5], 1, v3")
    e("v_mov_b32 v10, 0xffff")
    e("v_mov_b32 v11, 0xffff0000")
    e("v_cndmask_b32 v12, v10, v11, s[4:5]")
    e("v_lshl_add_u32 v11, v6, 2, v3")
    e("v_sub_u32 v11, v11, v5")
    def KF(blk): return 64 + blk*8
    def QF(rt): return 32 + rt*8
    def VB(et): return 104 + et*20
    def cvt4(b):
        for q in range(4): e(f"v_cvt_pk_bf16_f32 v{b+q}, v{b+2*q}, v{b+2*q+1}")
    def C0(cb): return 32 + cb*8 + 4
    def C1(cb): return 64 + cb*8 + 4
    for rt in range(4):
        b = QF(rt)
        cvt4(b)
        e(f"v_cndmask_b32 v{b+2}, 0, v{b+2}, s[64:65]")
        e(f"v_cndmask_b32 v{b+3}, 0, v{b+3}, s[64:65]")
    for blk in range(5): cvt4(KF(blk))
    e("s_nop 1")
    for rt in range(4):
        q = QF(rt)
        for ti in range(2):
            k = KF(rt + ti)
            d = C0(rt) if ti == 0 else C1(rt)
            e(f"v_mfma_f32_16x16x32_bf16 v[{d}:{d+3}], v[{k}:{k+3}], v[{q}:{q+3}], 0")
    for et in range(2):
        b = VB(et)
        for blk in range(5):
            e(f"v_cvt_pk_bf16_f32 v{b+2*blk}, v{b+4*blk}, v{b+4*blk+1}")
            e(f"v_cvt_pk_bf16_f32 v{b+2*blk+1}, v{b+4*blk+2}, v{b+4*blk+3}")
    for k in range(4):
        addk = 2*k if k < 2 else 16 + 2*(k-2)
        e(f"v_add_u32 v13, {addk}, v11")
        e(f"v_cmp_le_i32 s[{6+2*k}:{7+2*k}], 2, v13")
        e(f"v_cmp_ge_i32 vcc, 16, v13")
        e(f"s_and_b64 s[{6+2*k}:{7+2*k}], s[{6+2*k}:{7+2*k}], vcc")
    e("s_or_b32 s3, s25, s50")
    e("s_cmp_eq_u32 s3, 0")
    e("s_cselect_b64 s[14:15], 0, -1")
    e("s_and_b64 s[16:17], s[6:7], s[14:15]")
    e("s_and_b64 s[18:19], s[8:9], s[14:15]")
    e("v_mov_b32 v13, 0xce6e6b28")
    e(f"s_mov_b32 s20, 0x{SC2:x}")
    tile_addr(True)
    e("v_cmp_eq_u32 s[68:69], 3, v6")
    def seq(cb):
        lgr = [C0(cb), C0(cb)+2, C1(cb), C1(cb)+2]
        m = C1(cb)+1; m2 = C1(cb)+3
        o = []
        for k in range(4):
            o.append(f"v_cndmask_b32 v{lgr[k]}, v{lgr[k]}, v{lgr[k]+1}, s[4:5]")
        for k in range(4):
            ms = (16 + 2*k) if (cb == 0 and k < 2) else (6 + 2*k)
            o.append(f"v_cndmask_b32 v{lgr[k]}, v13, v{lgr[k]}, s[{ms}:{ms+1}]")
        o.append(f"v_max3_f32 v{m}, v{lgr[0]}, v{lgr[1]}, v{lgr[2]}")
        o.append(f"v_max_f32 v{m}, v{m}, v{lgr[3]}")
        o.append(f"v_mov_b32 v{m2}, v{m}")
        o.append(f"v_permlane16_swap_b32 v{m}, v{m2}")
        o.append(f"v_max_f32 v{m}, v{m}, v{m2}")
        o.append(f"v_mov_b32 v{m2}, v{m}")
        o.append(f"v_permlane32_swap_b32 v{m}, v{m2}")
        o.append(f"v_max_f32 v{m}, v{m}, v{m2}")
        o.append(f"v_mul_f32 v{m}, 0x{SC2 ^ 0x80000000:x}, v{m}")
        for k in range(4):
            o.append(f"v_fma_f32 v{lgr[k]}, v{lgr[k]}, s20, v{m}")
        for k in range(4):
            o.append(f"v_exp_f32 v{lgr[k]}, v{lgr[k]}")
        o.append(f"v_add_f32 v{m}, v{lgr[0]}, v{lgr[1]}")
        o.append(f"v_add_f32 v{m2}, v{lgr[2]}, v{lgr[3]}")
        o.append(f"v_add_f32 v{m}, v{m}, v{m2}")
        o.append(f"v_mov_b32 v{m2}, v{m}")
        o.append(f"v_permlane16_swap_b32 v{m}, v{m2}")
        o.append(f"v_add_f32 v{m}, v{m}, v{m2}")
        o.append(f"v_mov_b32 v{m2}, v{m}")
        o.append(f"v_permlane32_swap_b32 v{m}, v{m2}")
        o.append(f"v_add_f32 v{m}, v{m}, v{m2}")
        o.append(f"v_rcp_f32 v{m}, v{m}")
        for k in range(4):
            o.append(f"v_mul_f32 v{lgr[k]}, v{lgr[k]}, v{m}")
            o.append(f"v_cvt_pk_bf16_f32 v{C0(cb)+k}, v{lgr[k]}, v{lgr[k]}")
            o.append(f"v_and_b32 v{C0(cb)+k}, v{C0(cb)+k}, v12")
        return o
    ilv([seq(cb) for cb in range(4)])
    e("s_nop 1")
    for rt in range(4):
        for et in (1, 0):
            o = QF(rt) if et == 0 else C1(rt)
            v = VB(et) + 2*rt
            e(f"v_mfma_f32_16x16x32_bf16 v[{o}:{o+3}], v[{v}:{v+3}], v[{C0(rt)}:{C0(rt)+3}], 0")
    e("s_nop 7")
    sq = []; regs = []
    for rt in range(4):
        o0 = QF(rt); o1 = C1(rt); t = C0(rt)
        T = 16 + rt*4
        o = [f"v_mov_b32 v{t}, v{o1+3}",
             f"v_cvt_pk_bf16_f32 v{T}, v{o0}, v{o0+1}",
             f"v_permlane32_swap_b32 v{t+1}, v{t}",
             f"v_permlane16_swap_b32 v{t+2}, v{o1+3}",
             f"v_cvt_pk_bf16_f32 v{T+1}, v{o0+2}, v{o0+3}",
             f"v_permlane16_swap_b32 v{t+3}, v{t+1}",
             f"v_cndmask_b32 v{o1+2}, v{o1+2}, v{t+2}, s[68:69]",
             f"v_cndmask_b32 v{o1+1}, v{o1+1}, v{t+1}, s[68:69]",
             f"v_cndmask_b32 v{o1}, v{o1}, v{t+3}, s[68:69]",
             f"v_cvt_pk_bf16_f32 v{T+3}, v{o1+2}, v{o1+2}",
             f"v_cvt_pk_bf16_f32 v{T+2}, v{o1}, v{o1+1}",
             f"v_and_or_b32 v{T+3}, v{T+3}, v10, s61"]
        sq.append(o)
    ilv(sq)
    tile_store(True, False)
    stamp(vm, 5, 4)

P2P = [int(x) for x in os.environ.get("P2P", "-1,-1").split(",")]
LORD = [int(x) for x in os.environ.get("LORD", "3,2,1,0").split(",")]
TS = 80
def p2_scal(isC):
    o = ["s_and_b32 s3, s48, 3",
         "s_and_b32 s27, s26, 1",
         "s_lshl2_add_u32 s3, s27, s3",
         "s_lshl_b32 s27, s3, 11",
         f"s_add_u32 s{TS}, s59, s27"]
    if not isC: o.append(f"s_add_u32 s{TS}, s{TS}, 0x10000")
    for j in range(1, 4): o.append(f"s_add_u32 s{TS+j}, s{TS}, {j*16384}")
    o += ["s_lshl3_add_u32 s3, s25, s3",
          f"s_mul_i32 s87, s3, {16*1792}",
          "s_mul_i32 s3, s24, 896",
          "s_add_u32 s87, s87, s3",
          "s_add_u32 s87, s87, s55"]
    return o
def p2_valu(isB, isC):
    o = ["v_and_b32 v13, 15, v2",
         "v_lshrrev_b32 v15, 4, v2",
         "v_mul_u32_u24 v13, 1792, v13",
         "v_and_b32 v10, 1, v15",
         "v_lshl_add_u32 v14, v15, 3, v13",
         "v_lshl_add_u32 v10, v10, 5, v13",
         "v_lshrrev_b32 v15, 1, v15",
         "s_and_b32 s3, s48, 3",
         "v_lshl_add_u32 v10, v15, 4, v10",
         "s_lshl_b32 s27, s3, 3",
         "s_mul_i32 s3, s3, 7168",
         f"s_add_u32 s27, s27, {FLG+16}",
         f"s_add_u32 s3, s3, {RED_B if isB else RED_A}",
         "v_mov_b32 v11, s27",
         "v_add_u32 v12, s3, v6",
         "v_mov_b32 v4, 1",
         "s_mov_b32 s78, 0",
         "s_mov_b32 s79, 15",
         "s_mov_b32 s68, 0x10000"]
    o += [f"v_mov_b32 v{AC+r}, 0" for r in range(28)]
    return o
def wbase(isB, kh):
    if isB: return (B_wo(2), B_wo(12)) if kh == 0 else (B_wo(0), B_wo(6))
    return (UP if kh else 0, None)
def wloc(isB, kh, j):
    if not isB: return (0, 2*j)
    return ((0, 0), (0, 2), (1, 0), (1, 2))[j] if kh == 0 else ((0, 0), (1, 0), (1, 2), (1, 4))[j]
def rdf2(isB, kh, j, f):
    hh, nt = divmod(f, 7)
    k, r = wreg(j, f)
    b2, bo = wloc(isB, kh, j)
    o = (bo+hh)*WB + nt*32
    if not isB and kh == 0: o = POSA[2*j+hh] + nt*32
    return [f"ds_read_b64_tr_b16 {k}[{r}:{r+1}], v{5 if b2 else 8} offset:{o}",
            f"ds_read_b64_tr_b16 {k}[{r+2}:{r+3}], v{7 if b2 else 9} offset:{o}"]
def base2_ops(isB, kh):
    b1, b2 = wbase(isB, kh)
    return [f"v_add_u32 v5, {b2-b1}, v8", f"v_add_u32 v7, {b2-b1}, v9"] if b2 else []
def p2_lsetup(isB, scal=True):
    wo_bases(wbase(isB, 1)[0])
    for x in base2_ops(isB, 1): e(x)
    e("v_lshlrev_b32 v6, 4, v2")
    for x in (p2_scal(False) if scal else []) + p2_valu(isB, False): e(x)
def rd_res2(isB, kh, fill=()):
    fill = list(fill)
    for j in (LORD if kh else range(4)):
        for f in range(NRES):
            for x in rdf2(isB, kh, j, f):
                e(x)
                if fill: e(fill.pop(0))
    for x in fill: e(x)
def p2(isB, isC):
    lab(f"P2_{'B' if isB else 'A'}{'C' if isC else 'L'}")
    c("---- P2: wave = (16 rows, K half) x 112 cols ----")
    kh = 0 if isC else 1
    ORD = list(range(4)) if isC else LORD
    T3 = os.environ.get("TR0") == "3"
    def ld(j, pol=None):
        for hh in range(2):
            r = oreg(j, hh)
            e(f"buffer_load_dwordx4 v[{r}:{r+3}], v6, s[40:43], s{TS+j} offen offset:{hh*1024} {PPOL if pol is None else pol}")
    tr(0)
    if isC:
        e("v_lshlrev_b32 v6, 4, v2")
        for j in ORD: ld(j, FPOL)
        if isB: e("s_barrier")
        else:
            e(f"v_mov_b32 v3, {FLG}")
            spin2(4, 4)
        if T3: tr(6)
        rd_res2(isB, 0, base2_ops(isB, 0) + p2_valu(isB, True))
        if T3: tr(7)
    else:
        if T3: tr(6)
        if isB: rd_res2(isB, 1)
        if T3: tr(7)
        if isB:
            e("s_waitcnt vmcnt(0)")
            e("s_barrier")
        if LSL[isB]: e(f"s_sleep {LSL[isB]}")
        for j in ORD: ld(j, FPOL)
    if P2P[kh] >= 0: e(f"s_setprio {P2P[kh]}")
    stamp(None, 6 if isC else 39, 92)
    tr(1)
    top = uid("PT"); done = uid("PDN"); fb = uid("PFB")
    lab(top)
    for j in ORD:
        nx = uid("NX"); dm = uid("DM"); bad = uid("BD"); last = uid("LS")
        e("s_waitcnt vmcnt(6)")
        e(f"s_bitcmp1_b32 s79, {j}")
        e(f"s_cbranch_scc0 {dm}")
        r0 = oreg(j, 0) + 3; r1 = oreg(j, 1) + 3
        e(f"v_xor_b32 v{r0}, s61, v{r0}")
        e(f"v_xor_b32 v{r1}, s61, v{r1}")
        e(f"v_or_b32 v13, v{r0}, v{r1}")
        e("v_cmp_gt_u32 vcc, s68, v13")
        e("s_cmp_eq_u64 vcc, -1")
        e(f"s_cbranch_scc0 {bad}")
        tr(2 + j)
        e(f"s_bitset0_b32 s79, {j}")
        if j == ORD[3]: e("s_waitcnt lgkmcnt(0)")
        e("s_cmp_eq_u32 s79, 0")
        def mf(f):
            hh, nt = divmod(f, 7)
            k, wr = wreg(j, f)
            a = AC + nt*4; r = oreg(j, hh)
            e(f"v_mfma_f32_16x16x32_bf16 v[{a}:{a+3}], {k}[{wr}:{wr+3}], v[{r}:{r+3}], v[{a}:{a+3}]")
        for f in range(NRES):
            mf(f)
            if NRES + f < 14:
                for x in rdf2(isB, kh, j, NRES + f): e(x)
        e(f"s_cbranch_scc1 {last}")
        e(f"buffer_load_dword v3, off, s[40:43], s{TS+j}")
        e(f"buffer_load_dword v3, off, s[40:43], s{TS+j}")
        for f in range(NRES, 14):
            e(f"s_waitcnt lgkmcnt({2*(13-f)})") if not TR else e("s_waitcnt lgkmcnt(0)")
            mf(f)
        e(f"s_branch {nx}")
        lab(last)
        e("s_waitcnt lgkmcnt(0)")
        ex = [["s_mov_b64 exec, 1", "ds_add_rtn_u32 v15, v11, v4", "ds_read_b32 v13, v11 offset:4", "s_mov_b64 exec, -1"]]
        rr = [f"ds_read_b128 v[{PRT+t*4}:{PRT+t*4+3}], v12 offset:{t*1024}" for t in range(7)]
        ex += [rr[0:2], rr[2:4], rr[4:6], rr[6:7]]
        for n, f in enumerate(range(NRES, 14)):
            mf(f)
            if n < len(ex):
                for x in ex[n]: e(x)
        e(f"s_branch {done}")
        lab(bad)
        if SLP: e(f"s_sleep {SLP}")
        ld(j)
        e(f"s_branch {nx}")
        lab(dm)
        e(f"buffer_load_dword v3, off, s[40:43], s{TS+j}")
        e(f"buffer_load_dword v3, off, s[40:43], s{TS+j}")
        lab(nx)
    e("s_add_u32 s78, s78, 1")
    e(f"s_cmp_lt_u32 s78, {NP}")
    e(f"s_cbranch_scc1 {top}")
    e(f"s_branch {fb}")
    lab(done)
    if not T3: tr(6)
    if STAMP and (SIDS is None or 11 in SIDS):
        stamp(None, 11 if isC else 40, 1)
    fin = uid("FIN"); sec = uid("SEC"); sp = uid("SPN")
    e("s_waitcnt lgkmcnt(7)") if not (TR or STAMP) else e("s_waitcnt lgkmcnt(0)")
    e("v_readfirstlane_b32 s3, v13")
    e("v_readfirstlane_b32 s27, v15")
    e("s_nop 2")
    e("s_cmp_eq_u32 s3, 1")
    e(f"s_cbranch_scc1 {fin}")
    e("s_cmp_eq_u32 s27, 0")
    e(f"s_cbranch_scc0 {sec}")
    e("s_nop 3")
    for t in range(7):
        e(f"ds_write_b128 v12, v[{AC+t*4}:{AC+t*4+3}] offset:{t*1024}")
    e("s_mov_b64 exec, 1")
    e("s_waitcnt lgkmcnt(0)")
    e("ds_write_b32 v11, v4 offset:4")
    e("s_waitcnt lgkmcnt(0)")
    e("s_mov_b64 exec, -1")
    endc = uid("ENDC")
    if TR and not T3: tr(7)
    e(f"s_branch {endc}") if (TR or STAMP) else e("s_endpgm")
    lab(sec)
    e("s_mov_b32 s69, 0")
    lab(sp)
    e("ds_read_b32 v13, v11 offset:4")
    for x in rr: e(x)
    e("s_add_u32 s69, s69, 1")
    e("s_cmp_gt_u32 s69, 0x400000")
    e("s_cbranch_scc1 K_END")
    e("s_waitcnt lgkmcnt(7)")
    e("v_readfirstlane_b32 s3, v13")
    e("s_nop 3")
    e("s_cmp_eq_u32 s3, 1")
    e(f"s_cbranch_scc0 {sp}")
    lab(fin)
    if TR and not T3: tr(7)
    sk = uid("NS")
    e("s_and_b32 s3, s48, 3")
    e("s_or_b32 s3, s26, s3")
    e(f"s_cbranch_scc1 {sk}")
    e("v_mov_b32 v13, s93")
    e("buffer_store_dword v13, off, s[40:43], s60 sc0 sc1")
    lab(sk)
    D = ST
    def addt(t):
        a = AC + t*4; r = PRT + t*4; d = D + t*2
        e(f"s_waitcnt lgkmcnt({6-t})") if not TR else e("s_waitcnt lgkmcnt(0)")
        e(f"v_pk_add_f32 v[{a}:{a+1}], v[{a}:{a+1}], v[{r}:{r+1}]")
        e(f"v_pk_add_f32 v[{a+2}:{a+3}], v[{a+2}:{a+3}], v[{r+2}:{r+3}]")
        e(f"v_cvt_pk_bf16_f32 v{d}, v{a}, v{a+1}")
        e(f"v_cvt_pk_bf16_f32 v{d+1}, v{a+2}, v{a+3}")
    def sw(pr):
        d = D + pr*4
        e(f"v_permlane16_swap_b32 v{d}, v{d+2}")
        e(f"v_permlane16_swap_b32 v{d+1}, v{d+3}")
    def st(pr):
        d = D + pr*4
        e(f"buffer_store_dwordx4 v[{d}:{d+3}], v10, s[88:91], s87 offen offset:{pr*64} " + OPOL)
    addt(0); addt(1); addt(2); sw(0); addt(3); st(0); addt(4); sw(1); addt(5); st(1); addt(6); sw(2)
    e(f"buffer_store_dwordx2 v[{D+12}:{D+13}], v14, s[88:91], s87 offen offset:192 " + OPOL)
    e("s_nop 0")
    st(2)
    lab(endc)
    stamp(None, 9 if isC else 41, 1)
    if TR:
        tr(8)
        e("s_waitcnt lgkmcnt(0)")
        e("s_lshl_b32 s74, s2, 9")
        e("s_lshl_b32 s3, s48, 6")
        e("s_add_u32 s74, s74, s3")
        e("s_add_u32 s74, s74, 0x910000")
        e("s_mov_b64 exec, 1")
        for k in range(9):
            e(f"v_mov_b32 v4, s{4+2*k}")
            e(f"buffer_store_dword v4, off, s[40:43], s74 offset:{k*4}")
        e("v_mov_b32 v4, s78")
        e(f"buffer_store_dword v4, off, s[40:43], s74 offset:36")
        e("s_mov_b64 exec, -1")
    if not isC: stamp(None, 2, 1)
    e("s_endpgm")
    lab(fb)
    nc = uid("NC"); cp = uid("CP")
    e("s_waitcnt vmcnt(0)")
    e("s_lshl_b32 s57, s24, 4")
    e("s_add_u32 s57, s57, s25")
    e("s_lshl_b32 s57, s57, 7")
    e(f"s_add_u32 s57, s57, 0x{EPO:x}")
    e(f"s_cmp_eq_u32 s78, {NP}")
    e(f"s_cbranch_scc0 {nc}")
    e("s_lshl_b32 s3, s26, 14")
    e("s_add_u32 s62, s59, s3")
    e("s_mov_b32 s69, 0")
    lab(cp)
    for half in range(2):
        rl = uid("RL")
        lab(rl)
        e("v_mov_b32 v13, 0")
        for b in range(8):
            r = OF + b*4
            e(f"s_add_u32 s3, s62, {(half*8+b)*1024}")
            e(f"buffer_load_dwordx4 v[{r}:{r+3}], v6, s[40:43], s3 offen sc0 sc1")
        e("s_waitcnt vmcnt(0)")
        for b in range(8):
            e(f"v_xor_b32 v15, s61, v{OF+b*4+3}")
            e("v_or_b32 v13, v13, v15")
        e("v_cmp_gt_u32 vcc, 0x10000, v13")
        e("s_add_u32 s69, s69, 1")
        e("s_cmp_gt_u32 s69, 0x40000")
        e("s_cbranch_scc1 K_END")
        e("s_cmp_eq_u64 vcc, -1")
        e(f"s_cbranch_scc0 {rl}")
        for b in range(8):
            r = OF + b*4
            e(f"s_add_u32 s3, s62, 0x{TLQ + (half*8+b)*1024:x}")
            e(f"buffer_store_dwordx4 v[{r}:{r+3}], v6, s[40:43], s3 offen sc0 sc1")
        e("s_waitcnt vmcnt(0)")
    e("s_lshl_b32 s3, s26, 2")
    e("s_add_u32 s3, s3, s57")
    e("v_mov_b32 v15, s93")
    e("buffer_store_dword v15, off, s[40:43], s3 sc0 sc1")
    e("s_mov_b32 s68, 0x100000")
    lab(nc)
    e("v_and_b32 v15, 3, v2")
    e("v_lshlrev_b32 v15, 2, v15")
    e(f"buffer_load_dword v13, v15, s[40:43], s57 offen offset:{kh*16} sc0 sc1")
    e("s_waitcnt vmcnt(0)")
    e("v_cmp_eq_u32 vcc, s93, v13")
    for j in range(4):
        e(f"s_or_b32 s3, s{TS+j}, 0x{TLQ:x}")
        e(f"s_bitcmp1_b32 vcc_lo, {j}")
        e(f"s_cselect_b32 s{TS+j}, s3, s{TS+j}")
    for j in ORD: ld(j, "sc0 sc1")
    e("s_cmp_lt_u32 s78, 0x40000")
    e(f"s_cbranch_scc1 {top}")
    e("s_endpgm")

PF = os.environ.get("PF", "1") == "1"
PFT0 = int(os.environ.get("PFT0", "4"))
PFC = os.environ.get("PFC", "0") == "1"
PFD = int(os.environ.get("PFD", "6"))
PF2 = os.environ.get("PF2", "0")
PFW = [int(x) for x in os.environ.get("PFW", "5,2").split(",")]
PFQ = int(os.environ.get("PFQ", "-1"))
PFPOL = os.environ.get("PFPOL", "")
def pf_setup(isB):
    NW = 42 if isB else 28
    e("s_lshl_b32 s3, s23, 2")
    e("s_add_u32 s3, s3, s48")
    e("s_and_b32 s27, s3, 63")
    if PFC: e("s_lshr_b32 s80, s3, 6")
    e("s_lshl_b32 s3, s3, 6")
    e("v_add_u32 v4, s3, v2")
    e("v_min_u32 v4, 6271, v4")
    e("v_lshlrev_b32 v11, 6, v4")
    if not isB:
        e("v_mul_u32_u24 v5, 9363, v4")
        e("v_lshrrev_b32 v5, 17, v5")
        e("v_mul_u32_u24 v5, 1792, v5")
        e("v_add_u32 v4, v5, v11")
    if not PFC: return
    e("s_lshl_b32 s3, s27, 6")
    e("v_add_u32 v5, s3, v2")
    if isB:
        e("v_lshlrev_b32 v10, 6, v5")
    else:
        e("v_mul_u32_u24 v6, 2341, v5")
        e("v_lshrrev_b32 v6, 16, v6")
        e("v_mul_u32_u24 v6, 896, v6")
        e("v_lshl_add_u32 v10, v5, 6, v6")
        e("v_add_u32 v10, 896, v10")
    e(f"v_subrev_u32 v5, {NW*64}, v5")
    e("v_min_u32 v5, 1023, v5")
    e("v_lshrrev_b32 v6, 1, v5")
    e("s_and_b32 s3, s22, 3")
    e("s_lshl_b32 s3, s3, 9")
    e("v_add_u32 v6, s3, v6")
    e("v_mul_u32_u24 v6, 896, v6")
    e("v_and_b32 v5, 1, v5")
    e("v_lshl_add_u32 v6, v5, 6, v6")
    e(f"s_cmp_lt_u32 s27, {NW}")
    e("s_cselect_b64 vcc, -1, 0")
    e("v_cndmask_b32 v10, v6, v10, vcc")
def pf_setup2(isB):
    NW = 42 if isB else 28
    e(f"s_cmp_lt_u32 s27, {NW}")
    e("s_cselect_b32 s4, s32, s28")
    e("s_cselect_b32 s5, s33, s29")
    e("s_cselect_b32 s6, s34, s30")
    e("s_mov_b32 s7, 0x20000")
    e("s_cselect_b32 s12, 1344, 1")
    e("s_lshl_b32 s12, s12, 7")
    e("s_add_u32 s3, s80, 2")
    e("s_mul_i32 s13, s12, s3")
    e("s_mul_i32 s15, s12, 6")
    e("s_lshl_b32 s12, s12, 1")
def pf_step(vm):
    e(f"buffer_load_dword v30, v10, s[4:7], s13 offen {PFPOL}")
    vm.issue("pf")
    e("s_add_u32 s13, s13, s12")
    e("s_min_u32 s13, s13, s15")
def slp(n):
    while n > 0:
        e(f"s_sleep {min(n, 127)}"); n -= 127
def pf_pre(vm):
    slp(PFT0)
    sk = uid("PFS")
    e("s_cmp_eq_u32 s80, 0")
    e(f"s_cbranch_scc1 {sk}")
    slp(PFD)
    lab(sk)
    pf_step(vm)
    slp(2*PFD)
    pf_step(vm)
    if PF2 == "t":
        slp(2*PFD)
        pf_step(vm)
PFA = os.environ.get("PFA", "0") == "1"
PFAM = int(os.environ.get("PFAM", "3"))
PFNQ = os.environ.get("PFNQ", "1") == "1"
PFW4S = [int(x) for x in os.environ.get("PFW4", "4,4").split(",")]
if len(PFW4S) == 1: PFW4S = PFW4S*2
PFR = int(os.environ.get("PFR", "0"))
PFRO = int(os.environ.get("PFRO", "0"))
PFG = int(os.environ.get("PFG", "128"))
PFN = int(os.environ.get("PFN", "7"))
LDL = int(os.environ.get("LDL", "0"))
def pfa_setup(isB):
    e("s_lshl_b32 s3, s23, 6")
    e("v_add_u32 v5, s3, v2")
    e("v_lshlrev_b32 v10, 7, v5")
    if not isB and PFNQ:
        e("v_min_u32 v6, 895, v5")
        e("v_mul_u32_u24 v7, 4682, v6")
        e("v_lshrrev_b32 v7, 16, v7")
        e("v_mul_u32_u24 v7, 896, v7")
        e("v_lshl_add_u32 v10, v6, 7, v7")
        e("v_add_u32 v10, 896, v10")
    e(f"v_subrev_u32 v5, {1344+16}, v5")
    e("v_min_i32 v5, 511, v5")
    e("s_and_b32 s3, s22, 3")
    e("s_lshl_b32 s3, s3, 9")
    e("v_add_u32 v5, s3, v5")
    e("v_max_i32 v5, 0, v5")
    e("v_mul_u32_u24 v5, 896, v5")
    e("s_cmp_lt_u32 s23, 21")
    e("s_cselect_b64 vcc, -1, 0")
    e("v_cndmask_b32 v10, v5, v10, vcc")
    e("s_add_u32 s80, s81, s48")
def pfa_issue(vm, isB):
    PFW4 = PFW4S[isB]
    e("s_cmp_lt_u32 s23, 21")
    e("s_cselect_b32 s4, s32, s28")
    e("s_cselect_b32 s5, s33, s29")
    e("s_cselect_b32 s6, s34, s30")
    e("s_mov_b32 s7, 0x20000")
    e("s_cselect_b32 s12, 1344, 1")
    e("s_lshl_b32 s12, s12, 7")
    sk = uid("PFK")
    if PFW4 < 4:
        e(f"s_cmp_ge_u32 s48, {PFW4}")
        e(f"s_cbranch_scc1 {sk}")
    for k in range(2):
        if k == 1:
            if PFN <= 4: break
            e("s_add_u32 s80, s80, 4")
        e("s_cmp_ge_u32 s80, 7")
        e("s_cselect_b32 s3, 7, 0")
        e("s_sub_u32 s80, s80, s3")
        e("s_mul_i32 s13, s12, s80")
        e(f"buffer_load_dword v30, v10, s[4:7], s13 offen {PFPOL}")
        vm.issue("pf")
        if PFG == 64:
            e(f"buffer_load_dword v30, v10, s[4:7], s13 offen offset:64 {PFPOL}")
            vm.issue("pf")
    lab(sk)
CPF = int(os.environ.get("CPF", "-2"))
def code_pf(vm):
    lb = uid("CPC")
    e("s_getpc_b64 s[8:9]")
    lab(lb)
    e(f"s_sub_u32 s8, s8, {lb}-{NAME}_kernel")
    e("s_subb_u32 s9, s9, 0")
    e("s_and_b32 s9, s9, 0xffff")
    e(f"s_mov_b32 s10, K_END-{NAME}_kernel")
    e("s_mov_b32 s11, 0x20000")
    e("s_lshl_b32 s3, s23, 2")
    e("s_add_u32 s3, s3, s48")
    e("s_lshl_b32 s3, s3, 10")
    e("v_lshlrev_b32 v5, 6, v2")
    e("s_mov_b64 exec, 0xffff")
    e("buffer_load_dword v30, v5, s[8:11], s3 offen")
    e("s_mov_b64 exec, -1")
    vm.issue("pf")
def pf_bar(vm, isB, ch):
    k = PFW4S[isB] + ch - PFRO
    if PFA and (PFAM >> isB) & 1 and (PFR >> isB) & 1 and PFW4S[isB] <= k < 7:
        sk = uid("PFR")
        e(f"s_cmp_eq_u32 s48, {k % 4}")
        e(f"s_cbranch_scc0 {sk}")
        e(f"s_add_u32 s80, s81, {k}")
        e("s_cmp_ge_u32 s80, 7")
        e("s_cselect_b32 s3, 7, 0")
        e("s_sub_u32 s80, s80, s3")
        e("s_mul_i32 s13, s12, s80")
        e(f"buffer_load_dword v30, v10, s[4:7], s13 offen {PFPOL}")
        lab(sk)
    if CPF == ch: code_pf(vm)
    if not PF: return
    if PFC and PF2 == str(ch): pf_step(vm)
    if PFW[isB] == ch:
        e(f"buffer_load_dword v30, v11, s[36:39], 0 offen {PFPOL}")
        vm.issue("pf")
    if not isB and PFQ == ch:
        e(f"buffer_load_dword v30, v4, s[32:35], 0 offen {PFPOL}")
        vm.issue("pf")

def compute(isB):
    lab("C_B" if isB else "C_A")
    if WST and not WST2: e("s_memrealtime s[96:97]")
    vm = VM()
    ka_rest()
    scal1(isB)
    scal2()
    for x in p2_scal(True): e(x)
    comp_setup(isB)
    if PF: pf_setup(isB)
    pfa = PFA and (PFAM >> isB) & 1
    if pfa: pfa_setup(isB)
    e(f"v_mov_b32 v6, {FLG}")
    e("v_mov_b32 v7, 1")
    srd_xw_pre()
    srd_rest()
    srd_xw()
    if pfa: pfa_issue(vm, isB)
    elif PF and PFC: pf_setup2(isB)
    if PP:
        sk = uid("PP2")
        e("s_cmp_ge_u32 s48, 2")
        e(f"s_cbranch_scc1 {sk}")
        slp(PPT2)
        pp_issue("s48", 5)
        lab(sk)
    wmark(1); wmark(2); wmark(3)
    stamp(vm, 0)
    stamp(vm, 1)
    nonce_issue(vm)
    if PRE:
        e("s_mul_i32 s3, s25, 229376")
        e("s_mul_i32 s27, s24, 896")
        e("s_add_u32 s3, s3, s27")
        e("buffer_load_dword v30, v3, s[88:91], s3 offen"); vm.issue("pre")
        e("buffer_load_dword v30, v3, s[36:39], s55 offen"); vm.issue("pre")
        if not PST: e("buffer_load_dword v30, v3, s[40:43], s59 offen"); vm.issue("pre")
    if PK and PKT:
        e("s_andn2_b32 s3, s2, 0x18")
        e("s_lshl3_add_u32 s3, s48, s3")
        e(f"s_mul_i32 s3, s3, {IMG}")
        e(f"s_add_u32 s3, s3, 0x{PKB:x}")
        e("buffer_load_dword v30, v3, s[40:43], s3 offen"); vm.issue("pre")
        e("buffer_load_dword v30, v3, s[44:47], 0 offen"); vm.issue("pre")
    if XDW:
        e("v_lshlrev_b32 v30, 4, v0")
        e("s_lshl_b32 s3, s2, 12")
        e("s_add_u32 s3, s3, 0x1000000")
        for k in range(XDW):
            e("buffer_store_dwordx4 v[12:15], v30, s[40:43], s3 offen"); vm.issue("xdw")
            e("s_add_u32 s3, s3, 0x100000")
    if PST == 1: prestore(vm, isB)
    if PF and PFC: pf_pre(vm)
    if CPF == -1: code_pf(vm)
    vq = gemm(vm, isB)
    stamp(vm, 3)
    if isB: epi_B(vm)
    else: epi_A(vm, vq)
    p2(isB, True)
    p2(isB, False)

def kernel():
    lab(f"{NAME}_kernel")
    prologue()
    if os.environ.get("LAF") == "1":
        loader(False); loader(True)
    else:
        loader(True); loader(False)
    compute(True)
    compute(False)
    for lw in range(4): tailA(lw)
    lab("K_END")
    e("s_endpgm")

HDR = open("cdna_kernels/" + NAME + ".s.ref").read().split("; @launch")[0]
kernel()
out = HDR
out += f"; @launch grid=(256,1,1) block=(512,1,1) lds={LDS_TOTAL}\n"
out += '.amdgcn_target "amdgcn-amd-amdhsa--gfx950"\n.text\n'
out += f".globl {NAME}_kernel\n.p2align 8\n.type {NAME}_kernel,@function\n"
out += "\n".join(L) + "\n"
out += f""".section .rodata,"a"
.p2align 6
.amdhsa_kernel {NAME}_kernel
  .amdhsa_next_free_vgpr 256
  .amdhsa_next_free_sgpr {102 if (WST or S3) else 96}
  .amdhsa_accum_offset 144
  .amdhsa_group_segment_fixed_size 0
  .amdhsa_kernarg_size 72
  .amdhsa_user_sgpr_count 2
  .amdhsa_user_sgpr_kernarg_segment_ptr 1
  .amdhsa_system_sgpr_workgroup_id_x 1
.end_amdhsa_kernel
"""
path = sys.argv[1] if len(sys.argv) > 1 else f"cdna_kernels/{NAME}.s"
open(path, "w").write(out)
```

```python
import sys, os, struct, re
NAME = "concat_heads__linear_attn_block__sliding_local_dilated__prompt"
TLP = 0
TLQ = int(os.environ.get("TLQ", "0x400000"), 0)
OPOL = os.environ.get("OPOL", "")
TPOL = os.environ.get("TPOL", "")
ACC = 0xa00000
NON = 0x800000
AS = 64
XDW = int(os.environ.get("XDW", "0"))
WS_END = 0x1c00000
PKB = 0x1000000
IMG = 43008
PK = os.environ.get("PK", "1") == "1"
GAs = [int(x) for x in os.environ.get("GA", "1,1").split(",")]
GBs = [int(x) for x in os.environ.get("GB", "2,2").split(",")]
PKP = [int(x) for x in os.environ.get("PKP", "4,5,6").split(",")]
PKF = os.environ.get("PKF", "0") == "1"
PKN = os.environ.get("PKN", "1") == "1"
if PKN: PKP = []
PKT = os.environ.get("PKT", "0") == "1"
PKNS = int(os.environ.get("PKNS", "9"))
PKNF = os.environ.get("PKNF", "0") == "1"
PKSP = os.environ.get("PKSP", "")
OW = int(os.environ.get("OW", "0"))
GWs = [int(x) for x in os.environ.get("GW", "0,0").split(",")]
def order(w):
    if OW == 1: return [(w + i) % 7 for i in range(7)]
    return [w, 4 + w % 3, 4 + (w+1) % 3, 4 + (w+2) % 3, (w+1) & 3, (w+2) & 3, (w+3) & 3]
STAMP = os.environ.get("STAMP") in ("1", "2", "3")
RT = os.environ.get("STAMP") in ("2", "3")
S3 = os.environ.get("STAMP") == "3"
STB = 0x900000
LOG2E = 0x3FB8AA3B
EPS = 0x358637BD
for s in range(64*21): assert (s * 4682) >> 16 == s // 14
for s in range(64): assert (s * 37) >> 8 == s // 7
RS = 224
KVS = 14336; QS = 7168; XS = 16384
LDS_TOTAL = 163840
ROT = os.environ.get("ROT", "1") == "1"
PPOL = os.environ.get("PPOL", "nt")
ROTM = os.environ.get("ROTM", "2*p")
XM = int(os.environ.get("XM", "2"))
SWP = os.environ.get("SWP", "0") == "1"
XNOX = os.environ.get("XNOX") == "1"
XNOW = os.environ.get("XNOW") == "1"
BWM = os.environ.get("BWM", "0") == "1"
XNOR = os.environ.get("XNOR") == "1"
XNOM = os.environ.get("XNOM") == "1"
XNOL = os.environ.get("XNOL") == "1"
LAA = int(os.environ.get("LAA", "2"))
LAB = int(os.environ.get("LAB", "0"))
ROTMB = os.environ.get("ROTMB", ROTM)
XMB = int(os.environ.get("XMB", str(XM)))
W0 = os.environ.get("W0") == "1"
PRE = os.environ.get("PRE", "1") == "1"
NOQ = os.environ.get("NOQ") == "1"
L1X = os.environ.get("L1X") == "1"
DA = int(os.environ.get("DA", "4"))
DB = int(os.environ.get("DB", "5"))
def f2u(x): return struct.unpack('<I', struct.pack('<f', x))[0]
SC2 = f2u(28 ** -0.5 * 1.4426950408889634)
CNT_Z = 40 * 4
WB = 6272
def A_kv(i): return (i % 5) * 30720
def A_x(i): return (i % 5) * 30720 + KVS
def A_q(i): return 61440 + i*QS
UP = 111616
POSA = [16384, 22656, 30720, 30720+WB, 30720+2*WB, 30720+3*WB, 0, 8192]
def A_wo(h): return POSA[h] if h < 8 else UP + (h-8)*WB
QE = os.environ.get("QE", "0") == "1"
def A_scr(lw): return lw*4096
KVB = 55808
B_WSL = [140288, 0, 21504, 118784]
def B_kv(i): return B_WSL[i % 4]
def B_q(i): return B_WSL[i % 4] + KVS
def B_x(i): return 43008 + (i % 3) * 18432
def B_wo(h): return 61440 + h*WB
assert B_wo(8) == UP
FLG = 161792
RED_A = 61440; RED_B = 0
EPO = NON + 0x10000

L = []
def e(s): L.append("    " + s)
def lab(s): L.append(s + ":")
def c(s): L.append("    ; " + s)
_uid = [0]
def uid(p):
    _uid[0] += 1
    return f"{p}_{_uid[0]}"

class CNT:
    def __init__(self, kind, mx): self.ops = []; self.kind = kind; self.mx = mx
    def issue(self, tag): self.ops.append(tag)
    def n(self, tag):
        idx = max(i for i, t in enumerate(self.ops) if t == tag)
        return min(len(self.ops) - 1 - idx, self.mx)
    def wait(self, tag): e(f"s_waitcnt {self.kind}({self.n(tag)})")
def VM(): return CNT("vmcnt", 63)
def LG(): return CNT("lgkmcnt", 15)

SIDS = [int(x) for x in os.environ["SIDS"].split(",")] if os.environ.get("SIDS") else None
PEND = [None]; NS = [0]
def st_flush(wait=True):
    if PEND[0] is None: return
    if wait: e("s_waitcnt lgkmcnt(0)")
    e(f"v_writelane_b32 v0, s{PEND[0][0]}, {PEND[0][1]}")
    PEND[0] = None
def stamp(vm, i, r=28):
    if not STAMP: return
    if SIDS is not None and i not in SIDS: return
    if S3:
        if i == 2: return
        if i == 1:
            e("v_writelane_b32 v0, s94, 1"); return
        st_flush(False)
        sr = 96 + 2*(NS[0] % 3); NS[0] += 1
        e(f"s_memrealtime s[{sr}:{sr+1}]")
        PEND[0] = (sr, i)
        if i in (9, 41):
            st_flush()
            sk = uid("SK3")
            e("s_and_b32 s3, s48, 3")
            e(f"s_cbranch_scc1 {sk}")
            e("v_lshlrev_b32 v1, 2, v2")
            e("s_lshl_b32 s74, s2, 8")
            e(f"s_add_u32 s74, s74, {STB}")
            if i == 9: e("s_mov_b64 exec, 0xffffffff")
            else:
                e("s_mov_b32 exec_lo, 0")
                e("s_mov_b32 exec_hi, 0x3ffff")
            e("buffer_store_dword v0, v1, s[40:43], s74 offen")
            e("s_mov_b64 exec, -1")
            lab(sk)
        return
    if i in (1, 2):
        e(f"v_mov_b32 v{r}, s94")
    else:
        e("s_memrealtime s[72:73]" if RT else "s_memtime s[72:73]")
        e("s_waitcnt lgkmcnt(0)")
        e(f"v_mov_b32 v{r}, s72")
    e("s_lshl_b32 s74, s2, 8")
    e(f"s_add_u32 s74, s74, {STB + i*4}")
    e(f"v_and_b32 v{r+1}, 0xff, v0")
    e(f"v_cmp_eq_u32 s[76:77], 0, v{r+1}")
    e("s_mov_b64 exec, s[76:77]")
    e(f"buffer_store_dword v{r}, v{r+1}, s[40:43], s74 offen")
    e("s_mov_b64 exec, -1")
    if vm is not None: vm.issue("stamp")

WST = os.environ.get("WST") in ("1", "2")
WST2 = os.environ.get("WST") == "2"
def wmark(k):
    if not WST: return
    e("s_memrealtime s[72:73]")
    e("s_waitcnt lgkmcnt(0)")
    e(f"s_mov_b32 s{96+k}, s72")
def wdump(vm):
    if not WST: return
    e("s_lshl_b32 s74, s2, 9")
    e("s_lshl_b32 s75, s48, 6")
    e("s_add_u32 s74, s74, s75")
    e("s_add_u32 s74, s74, 0x910000")
    e("s_mov_b64 exec, 1")
    e("v_mov_b32 v28, s94")
    e("buffer_store_dword v28, off, s[40:43], s74")
    for k in range(6):
        e(f"v_mov_b32 v28, s{96+k}")
        e(f"buffer_store_dword v28, off, s[40:43], s74 offset:{4+k*4}")
        if vm is not None: vm.issue("stamp")
    e("s_mov_b64 exec, -1")
    if vm is not None: vm.issue("stamp")

def phi_pair(dst, a, b, t):
    assert b == a + 1 and a % 2 == 0 and t % 2 == 0
    return [f"v_pk_mul_f32 v[{t}:{t+1}], v[{a}:{b}], s[70:71]",
            f"v_exp_f32 v{t}, v{t} clamp",
            f"v_exp_f32 v{t+1}, v{t+1} clamp",
            f"v_max_f32 v{a}, 0, v{a}",
            f"v_max_f32 v{b}, 0, v{b}",
            f"v_pk_add_f32 v[{t}:{t+1}], v[{t}:{t+1}], v[{a}:{b}]",
            f"v_cvt_pk_bf16_f32 v{dst}, v{t}, v{t+1}"]
def ilv(seqs):
    for i in range(max(len(q) for q in seqs)):
        for q in seqs:
            if i < len(q): e(q[i])

def srd(base, lo, hi, nbytes):
    e(f"s_mov_b32 s{base}, s{lo}")
    e(f"s_and_b32 s{base+1}, s{hi}, 0xffff")
    e(f"s_mov_b32 s{base+2}, 0x{nbytes:x}")
    e(f"s_mov_b32 s{base+3}, 0x20000")

def srd23(base, nbytes):
    e(f"s_mov_b32 s{base+2}, 0x{nbytes:x}")
    e(f"s_mov_b32 s{base+3}, 0x20000")
def ka_rest():
    e("s_load_dwordx2 s[40:41], s[0:1], 64")
    e("s_load_dwordx2 s[88:89], s[0:1], 48")
    e("s_load_dwordx2 s[44:45], s[0:1], 56")
def srd_xw_pre():
    srd23(28, 2048*896)
    srd23(32, 448*2688)
def srd_xw():
    e("s_waitcnt lgkmcnt(0)")
    e("s_and_b32 s29, s29, 0xffff")
    e("s_and_b32 s33, s33, 0xffff")
def srd_rest():
    srd23(40, WS_END)
    srd23(36, 448*896)
    srd23(44, 256)
    srd23(88, 2048*1792)
    e("s_waitcnt lgkmcnt(0)")
    for b in (40, 36, 44, 88): e(f"s_and_b32 s{b+1}, s{b+1}, 0xffff")

LPRIO = int(os.environ.get("LPRIO", "3"))
CSLP = int(os.environ.get("CSLP", "0"))
CPE = int(os.environ.get("CPE", "0"))
PP = os.environ.get("PP", "0") == "1"
PPT = int(os.environ.get("PPT", "4"))
PPT0 = int(os.environ.get("PPT0", "2"))
PPT2 = int(os.environ.get("PPT2", "4"))
PPW = os.environ.get("PPW", "1") == "1"
PPQ = os.environ.get("PPQ", "1") == "1"
PPD = [int(x) for x in os.environ.get("PPD", "0,5,10,15").split(",")]
PPB = [int(x) for x in os.environ.get("PPB", "0,1").split(",")]
PPE = os.environ.get("PPE", "1") == "1"
def pp_common():
    assert OW == 1 and GAs == [0, 0] and GWs == [0, 0] and GBs[0] == GBs[1] and 3*GBs[0] < 7
    e("s_lshr_b32 s23, s2, 3")
    e("s_and_b32 s27, s2, 3")
    e("s_lshl_b32 s3, s23, 6")
    e("v_add_u32 v5, s3, v2")
    if PPQ: e("v_lshlrev_b32 v10, 7, v5")
    else:
        e("s_movk_i32 s3, 1343")
        e("s_cmp_eq_u32 s24, 0")
        e("s_cselect_b32 s3, 895, s3")
        e("s_cselect_b32 s12, 896, 0")
        e("v_min_u32 v6, s3, v5")
        e("v_mul_u32_u24 v7, 4682, v6")
        e("v_lshrrev_b32 v7, 16, v7")
        e("v_add_u32 v7, 1, v7")
        e("v_mul_u32_u24 v7, s12, v7")
        e("v_lshl_add_u32 v10, v6, 7, v7")
    e(f"v_subrev_u32 v5, {1344+16}, v5")
    e("v_min_i32 v5, 511, v5")
    e("s_lshl_b32 s3, s27, 9")
    e("v_add_u32 v5, s3, v5")
    e("v_max_i32 v5, 0, v5")
    e("v_mul_u32_u24 v5, 896, v5")
    e(f"s_mul_i32 s15, s27, {GBs[0]}")
    e("s_cmp_lt_u32 s23, 21")
    e("s_cselect_b64 vcc, -1, 0")
    e("v_cndmask_b32 v10, v5, v10, vcc")
    e(f"s_cselect_b32 s6, 0x{448*2688:x}, s23")
    e(f"s_cselect_b32 s6, s6, 0x{2048*896:x}")
    e("s_mov_b32 s7, 0x20000")
    e("s_cselect_b32 s12, 1344, 1")
    e("s_lshl_b32 s12, s12, 7")
    e("s_mul_i32 s13, s12, s15")
def pp_srd():
    e("s_cmp_lt_u32 s23, 21")
    e("s_waitcnt lgkmcnt(0)")
    e("s_cselect_b32 s4, s32, s28")
    e("s_cselect_b32 s5, s33, s29")
    e("s_and_b32 s5, s5, 0xffff")
def pp_addr(sw, k):
    e(f"s_add_u32 s13, s15, {sw}")
    e(f"s_add_u32 s13, s13, {k}")
    e("s_cmp_ge_u32 s13, 7")
    e("s_cselect_b32 s3, 7, 0")
    e("s_sub_u32 s13, s13, s3")
    e("s_mul_i32 s13, s12, s13")
PPPOL = os.environ.get("PPPOL", "")
def pp_ld(): e(f"buffer_load_dword v30, v10, s[4:7], s13 offen {PPPOL}")
def pp_cissue():
    go = uid("PPG")
    for w in range(1, 4):
        e(f"s_cmp_lt_u32 s48, {w}")
        e(f"s_cbranch_scc1 {go}")
        slp(PPD[w] - PPD[w-1])
    lab(go)
    slp(PPD[0])
    pp_ld()
def prologue():
    if STAMP or WST: e("s_memrealtime s[94:95]")
    e("s_cmp_ge_u32 s2, 256")
    e("s_cbranch_scc1 K_END")
    e("s_bfe_u32 s24, s2, 0x10002")
    e("v_lshrrev_b32 v1, 6, v0")
    if SWP: e("s_xor_b32 s24, s24, 1")
    e("s_mul_i32 s3, s24, 24")
    e("v_readfirstlane_b32 s48, v1")
    e("s_load_dwordx2 s[28:29], s[0:1], s3")
    e("s_load_dwordx2 s[32:33], s[0:1], s3 offset:8")
    e("s_load_dwordx2 s[36:37], s[0:1], s3 offset:16")
    e("v_and_b32 v2, 63, v0")
    if WST2:
        e("s_waitcnt lgkmcnt(0)")
        e("s_memrealtime s[96:97]")
    if PP: pp_common()
    e("s_bitcmp1_b32 s48, 2")
    e("s_cbranch_scc0 C_X")
    if LPRIO: e(f"s_setprio {LPRIO}")
    if PP:
        e("s_and_b32 s3, s48, 3")
        e("s_lshl_b32 s3, s3, 4")
        e("s_lshl_b64 exec, 0xffff, s3")
        pp_srd()
        pp_ld()
        e("s_mov_b64 exec, -1")
    e("s_cmp_eq_u32 s24, 0")
    e("s_cbranch_scc1 L_A")
    e("s_branch L_B")
    lab("C_X")
    if CPE >= 0:
        sk = uid("CPS"); lb = uid("CPC")
        if CPE:
            e(f"s_and_b32 s3, s2, {CPE << 3}")
            e(f"s_cbranch_scc1 {sk}")
        e("s_getpc_b64 s[8:9]")
        lab(lb)
        e(f"s_sub_u32 s8, s8, {lb}-{NAME}_kernel")
        e("s_subb_u32 s9, s9, 0")
        e("s_and_b32 s9, s9, 0xffff")
        e(f"s_mov_b32 s10, K_END-{NAME}_kernel")
        e("s_mov_b32 s11, 0x20000")
        e("s_cmp_eq_u32 s24, 0")
        e(f"s_cselect_b32 s3, C_A-C_B, 0")
        e("s_lshl_b32 s14, s48, 13")
        e("s_add_u32 s3, s3, s14")
        e(f"s_add_u32 s3, s3, C_B-{NAME}_kernel-8192")
        e("s_cmp_eq_u32 s48, 0")
        e("s_cselect_b32 s3, 0, s3")
        e("v_lshlrev_b32 v5, 7, v2")
        e("buffer_load_dword v30, v5, s[8:11], s3 offen")
        lab(sk)
    if PP:
        pp_addr("s48", 1)
        pp_srd()
        if PPE: pp_cissue()
    slp(CSLP)
    e("s_cmp_eq_u32 s24, 0")
    e("s_cbranch_scc1 C_A")
    e("s_branch C_B")

def scal1(isB):
    e("s_lshr_b32 s23, s2, 3")
    e("s_and_b32 s27, s2, 3")
    e("s_and_b32 s3, s23, 3")
    e("s_lshl2_add_u32 s25, s27, s3")
    pm = os.environ.get("PERM", "01234567,01234567").split(",")[isB]
    assert sorted(pm) == list("01234567")
    if pm == "01234567": e("s_lshr_b32 s26, s23, 2")
    else:
        e("s_and_b32 s26, s23, 0x1c")
        e(f"s_lshr_b32 s26, 0x{pm[::-1]}, s26")
        e("s_and_b32 s26, s26, 7")
    e("s_mul_i32 s56, s26, 112")
    if PK:
        ga = GAs[isB]; gb = GBs[isB]
        if OW == 1:
            e("s_mov_b32 s80, 0")
            e(f"s_mul_i32 s82, s3, {GWs[isB]}")
        else: e("s_mov_b32 s80, s3")
        e(f"s_mul_i32 s81, s27, {gb}")
        if OW == 1: e("s_add_u32 s81, s81, s82")
        if ga:
            e(f"s_mul_i32 s3, s26, {ga}")
            e("s_add_u32 s81, s81, s3")
        e("s_add_u32 s81, s81, s80")
        assert 3 + 7*ga + 3*gb + 3*GWs[isB] < 64
        e("s_mul_i32 s3, s81, 37")
        e("s_lshr_b32 s3, s3, 8")
        e("s_mul_i32 s3, s3, 7")
        e("s_sub_u32 s81, s81, s3")
        return
    rm = ROTMB if isB else ROTM; xm = XMB if isB else XM
    m = re.fullmatch(r"(\d+)(\*p)?", rm)
    a = int(m.group(1)) if m.group(2) else 0
    assert m.group(2) or m.group(1) == "0"
    if a == xm:
        e("s_add_u32 s81, s26, s27")
        e(f"s_mul_i32 s81, s81, {a}")
    elif a == 0:
        e(f"s_mul_i32 s81, s27, {xm}")
    else:
        e(f"s_mul_i32 s81, s26, {a}")
        e(f"s_mul_i32 s3, s27, {xm}")
        e("s_add_u32 s81, s81, s3")
    mx = 7*a + 3*xm
    assert mx < 32
    if mx >= 7:
        e("s_mul_i32 s3, s81, 37")
        e("s_lshr_b32 s3, s3, 8")
        e("s_mul_i32 s3, s3, 7")
        e("s_sub_u32 s81, s81, s3")
    e("s_mov_b32 s82, s81")
def scal2():
    e("s_and_b32 s22, s2, 7")
    e("s_lshr_b32 s55, s26, 1")
    e("s_mul_i32 s55, s55, 224")
    e("s_getreg_b32 s92, hwreg(HW_REG_XCC_ID)")
    e("s_and_b32 s92, s92, 15")
    e(f"s_mov_b32 s70, 0x{LOG2E:x}")
    e(f"s_mov_b32 s71, 0x{LOG2E:x}")
    e("s_lshl_b32 s60, s24, 4")
    e("s_add_u32 s60, s60, s25")
    e("s_lshl_b32 s59, s60, 17")
    e("s_lshl_b32 s60, s60, 7")
    e(f"s_add_u32 s60, s60, 0x{NON:x}")

def nonce_issue(vm):
    e("v_mov_b32 v3, 0")
    e("buffer_load_dword v31, v3, s[40:43], s60 offen sc0 sc1")
    vm.issue("non")
def nonce_get():
    e("v_readfirstlane_b32 s93, v31")
    e("s_nop 3")
    e("s_add_u32 s93, s93, 16")
    e("s_and_b32 s61, s93, 0x7ff0")
    e("s_or_b32 s61, s61, s92")
    e("s_or_b32 s61, s61, 0x8000")
    e("s_lshl_b32 s61, s61, 16")

def div14(n):
    e(f"v_add_u32 v3, {64*n}, v2")
    e("v_mul_u32_u24 v4, 4682, v3")
    e("v_lshrrev_b32 v4, 16, v4")
    e("v_mul_u32_u24 v5, 14, v4")
    e("v_sub_u32 v3, v3, v5")
    e("v_cmp_lt_u32 vcc, 6, v3")
    e("v_cndmask_b32 v5, 0, 1, vcc")
    e("v_mul_u32_u24 v6, 7, v5")
    e("v_sub_u32 v3, v3, v6")

def w_voff(dst, n, isq):
    div14(n)
    e("v_lshrrev_b32 v6, 1, v4")
    e("v_and_b32 v6, 4, v6")
    e("v_xor_b32 v4, v4, v6")
    e("v_mul_u32_u24 v4, 2688, v4")
    if isq:
        e("v_mul_u32_u24 v5, s58, v5")
        e("v_lshl_add_u32 v3, v3, 4, v4")
        e(f"v_add_u32 v{dst}, v3, v5")
    else:
        e("v_mul_u32_u24 v5, 896, v5")
        e("v_lshl_add_u32 v3, v3, 4, v4")
        e(f"v_add3_u32 v{dst}, v3, v5, s57")

def step_hdr(sr, w=True, x=True, first=False):
    if PK:
        if first: c_ = f"s{sr}"
        else:
            e(f"s_and_b32 s3, s{sr}, 15")
            e(f"s_lshr_b32 s{sr}, s{sr}, 4")
            c_ = "s3"
        if w:
            e(f"s_mul_i32 s83, {c_}, 172032")
            e("s_add_u32 s83, s83, s56")
        if x:
            e(f"s_lshl_b32 s85, {c_}, 7")
            e("s_add_u32 s86, s85, 14336")
        return
    if w:
        e(f"s_mul_i32 s83, s{sr}, 172032")
        e("s_add_u32 s83, s83, s56")
    if x:
        e(f"s_lshl_b32 s85, s{sr}, 7")
        e("s_add_u32 s86, s85, 14336")
    e(f"s_add_u32 s{sr}, s{sr}, 1")
    e(f"s_cmp_eq_u32 s{sr}, 7")
    e(f"s_cselect_b32 s{sr}, 0, s{sr}")
def mk_table():
    T = [sum(order(w)[i] << (4*i) for i in range(7)) for w in range(4)]
    e(f"s_mov_b32 s82, 0x{T[0]:x}")
    e(f"s_mov_b32 s3, 0x{T[2]:x}")
    e("s_bitcmp1_b32 s80, 0")
    e(f"s_cselect_b32 s82, 0x{T[1]:x}, s82")
    e(f"s_cselect_b32 s3, 0x{T[3]:x}, s3")
    e("s_bitcmp1_b32 s80, 1")
    e("s_cselect_b32 s82, s3, s82")
    e("s_sub_u32 s81, s81, s80")
    e("s_cselect_b32 s3, 7, 0")
    e("s_add_u32 s81, s81, s3")
    e("s_mul_i32 s81, s81, 0x1111111")
    e("s_add_u32 s82, s82, s81")
    e("s_add_u32 s3, s82, 0x1111111")
    e("s_and_b32 s3, s3, 0x8888888")
    e("s_lshr_b32 s3, s3, 3")
    e("s_mul_i32 s3, s3, 7")
    e("s_sub_u32 s82, s82, s3")
    e("s_lshr_b32 s81, s82, 4")

FILL = []
FN = int(os.environ.get("FN", "24"))
def capture(fn, *a):
    global L
    sv = L; L = []
    fn(*a)
    r = L; L = sv
    FILL.extend(r)
def flush(n=10**9):
    while FILL and n > 0:
        L.append(FILL.pop(0)); n -= 1
def dma(vm, tag, voff, srd_, soff, lds):
    e(f"s_mov_b32 m0, {lds}")
    e("s_nop 0")
    e(f"buffer_load_dwordx4 v{voff}, s[{srd_}:{srd_+3}], {soff} offen lds")
    vm.issue(tag)
    flush(FN)

WOV = 44
def wo_voffs(isB):
    for t in range(7):
        div14(t)
        e("v_min_u32 v4, 27, v4")
        e("v_cmp_lt_u32 vcc, 13, v4")
        e("v_cndmask_b32 v6, 0, 1, vcc")
        e("v_mul_u32_u24 v24, 14, v6")
        e("v_sub_u32 v4, v4, v24")
        e("v_lshrrev_b32 v24, 2, v4")
        e("v_and_b32 v25, 3, v4")
        e("v_cmp_lt_u32 vcc, 10, v4")
        e("v_cndmask_b32 v26, 0, 1, vcc")
        e("v_mul_u32_u24 v27, 3, v26")
        e("v_sub_u32 v27, v4, v27")
        e("v_subrev_u32 v27, 4, v27")
        e("v_cmp_lt_u32 vcc, 7, v4")
        e("v_cndmask_b32 v24, v24, v26, vcc")
        e("v_cndmask_b32 v25, v25, v27, vcc")
        e("v_lshl_add_u32 v24, v6, 1, v24")
        if not isB:
            e("v_mul_u32_u24 v24, 7, v24")
            e("v_add_u32 v4, v24, v25")
        else:
            e("v_lshl_add_u32 v4, v24, 2, v25")
            e("v_add_u32 v26, 12, v4")
            e("v_lshlrev_b32 v27, 2, v25")
            e("v_add_u32 v27, 3, v27")
            e("v_cmp_eq_u32 s[4:5], 3, v24")
            e("v_cndmask_b32 v26, v26, v27, s[4:5]")
            e("v_cndmask_b32 v4, v4, v26, vcc")
        e("v_mul_u32_u24 v5, 112, v5")
        e("v_mul_u32_u24 v4, 896, v4")
        e("v_lshl_add_u32 v3, v3, 4, v4")
        e(f"v_add3_u32 v{WOV+t}, s55, v3, v5")

def wo_block(vm, h, isB, ts=range(7), tag="wo"):
    base = B_wo(h) if isB else A_wo(h)
    e(f"s_mov_b32 s86, {h*28*896}")
    for t in ts:
        if t == 6:
            e("s_mov_b64 exec, 0xff")
            e(f"s_mov_b32 m0, {base + t*1024}")
            e("s_nop 0")
            e(f"buffer_load_dwordx4 v{WOV+t}, s[36:39], s86 offen lds")
            vm.issue(tag)
            e("s_mov_b64 exec, -1")
        else: dma(vm, tag, WOV+t, 36, "s86", base + t*1024)

def flg_init(lw):
    if lw == 0:
        e(f"v_mov_b32 v3, {FLG}")
        e("v_mov_b32 v4, 0")
        e("v_mov_b32 v5, 0")
        e("ds_write_b64 v3, v[4:5]")
        e("s_waitcnt lgkmcnt(0)")

SEC = int(os.environ.get("SEC", "1"))
LATE = os.environ.get("LATE", "0") == "1"
CN = os.environ.get("CN", "0") == "1"
PREL = int(os.environ.get("PREL", "-1"))
PFL = os.environ.get("PFL", "0") == "1"
SECs = [int(x) for x in os.environ.get("SEC2", "0,0").split(",")]
def l_extra(vm, isB, i):
    if PREL == i:
        e("v_mov_b32 v19, 0")
        e("s_mul_i32 s3, s25, 229376")
        e("s_mul_i32 s27, s24, 896")
        e("s_add_u32 s3, s3, s27")
        e("buffer_load_dword v30, v19, s[88:91], s3 offen"); vm.issue("pre")
        e("buffer_load_dword v30, v19, s[40:43], s59 offen"); vm.issue("pre")
    if PFL and PFW[isB] == i:
        e("s_lshl2_add_u32 s3, s23, s49")
        e("s_lshl_b32 s3, s3, 6")
        e("v_add_u32 v19, s3, v2")
        e("v_min_u32 v19, 6271, v19")
        e("v_lshlrev_b32 v19, 6, v19")
        e(f"buffer_load_dword v30, v19, s[36:39], 0 offen"); vm.issue("pf")
def nonce_pub():
    if not CN: return
    e(f"v_mov_b32 v19, {FLG}")
    e("s_mov_b64 exec, 1")
    e("ds_write_b32 v19, v31 offset:8")
    e("s_mov_b64 exec, -1")
    e("s_waitcnt lgkmcnt(0)")
ZFI = int(os.environ.get("ZFI", "2"))
WPOL = os.environ.get("WPOL", ""); XPOL = os.environ.get("XPOL", ""); OWPOL = os.environ.get("OWPOL", "")
LPR2 = int(os.environ.get("LPR2", "0"))
WF = os.environ.get("WF", "0") == "1"
def dmag(vm, tag, voff, srd_, soff, sadd, lreg, lds, fl=True):
    e(f"s_add_u32 m0, s{lreg}, {lds}")
    if sadd:
        e(f"s_add_u32 s84, {soff}, {sadd}")
        soff = "s84"
    else: e("s_nop 0")
    pol = {32: WPOL, 28: XPOL, 36: OWPOL}[srd_]
    e(f"buffer_load_dwordx4 v{voff}, s[{srd_}:{srd_+3}], {soff} offen {pol} lds")
    vm.issue(tag)
    if fl: flush(FN)
def wo_blockg(vm, dh, isB):
    for t in range(7):
        if t == 6: e("s_mov_b64 exec, 0xff")
        dmag(vm, "wo", WOV+t, 36, "s54", dh*28*896, 53, dh*WB + t*1024, False)
    e("s_mov_b64 exec, -1")
def loader(isB):
    lab(f"L_{'B' if isB else 'A'}")
    if WST and not WST2: e("s_memrealtime s[96:97]")
    vm = VM()
    SO = 32
    scal1(isB)
    e("s_and_b32 s49, s48, 3")
    e("v_lshrrev_b32 v3, 3, v2")
    e("v_lshrrev_b32 v4, 4, v2")
    e("v_and_b32 v5, 7, v2")
    e("v_xor_b32 v5, v5, v4")
    e("s_lshl_b32 s3, s25, 2")
    e("s_add_u32 s3, s3, s49")
    e("s_lshl_b32 s3, s3, 5")
    e("v_add_u32 v6, s3, v3")
    e("v_mul_u32_u24 v6, 896, v6")
    e("v_lshl_add_u32 v16, v5, 4, v6")
    e("v_xor_b32 v17, 64, v16")
    e("v_add_u32 v17, 7168, v17")
    e("s_lshl_b32 s51, s49, 12")
    e("s_lshr_b32 s3, s49, 1")
    e("s_xor_b32 s3, s3, s49")
    e("s_mul_i32 s3, s3, 10752")
    e("s_add_u32 s56, s56, s3")
    e("s_mul_i32 s50, s49, 896")
    srd_xw_pre()
    step_hdr(81, first=True)
    def wv():
        e("v_mul_u32_u24 v4, 4682, v2")
        e("v_lshrrev_b32 v4, 16, v4")
        e("v_mul_u32_u24 v6, 14, v4")
        e("v_sub_u32 v6, v2, v6")
        e("v_mul_u32_u24 v4, 2688, v4")
        e("v_cmp_lt_u32 vcc, 6, v6")
        e("v_lshl_add_u32 v4, v6, 4, v4")
        e("v_cndmask_b32 v6, 0, 1, vcc")
        e("s_movk_i32 s57, 784")
        e(f"s_mov_b32 s58, {86016-112}")
        e("v_mad_u32_u24 v8, v6, s57, v4")
        e("v_add_u32 v8, 896, v8")
        e("v_mad_u32_u24 v12, v6, s58, v4")
        if isB:
            e("s_lshl_b32 s3, s25, 7")
            e("s_sub_u32 s3, s3, 16")
            e("s_max_i32 s3, s3, 0")
            e("s_lshl2_add_u32 s3, s49, s3")
            e("v_add_u32 v6, s3, v3")
            e("v_mul_u32_u24 v6, 896, v6")
            e("s_lshl_b32 s3, s49, 1")
            e("v_xor_b32 v5, s3, v5")
            e("v_lshl_add_u32 v18, v5, 4, v6")
            e("s_lshl_b32 s52, s49, 9")
    wv()
    srd_xw()
    if PP and PPW: e("s_waitcnt vmcnt(0)")
    wmark(1)
    slp(LDL)
    NPC = 6 if isB else 4
    def isW(i):
        e("s_mov_b32 exec_hi, 0xffffff")
        if PK and i in PKP:
            e(f"s_add_u32 s3, s80, {i-3}")
            e("s_and_b32 s3, s3, 3")
            e(f"s_mul_i32 s84, s3, {8*IMG}")
            e("s_add_u32 s84, s84, s16")
            e("s_bitcmp1_b32 s14, s3")
            if PKF: e("s_cmp_eq_u32 s14, 0x12345")
            e("s_cselect_b64 s[8:9], s[40:41], s[32:33]")
            e("s_cselect_b32 s10, s42, s34")
            e("s_cselect_b32 s83, s84, s83")
            e("s_cselect_b32 s17, 3584, s18")
            e("s_cselect_b64 s[12:13], -1, 0")
            if STAMP and (SIDS is None or 50 in SIDS): e(f"s_addc_u32 s19, s19, s19")
            e("v_cndmask_b32 v9, v8, v32, s[12:13]")
            if isB: e("v_cndmask_b32 v13, v12, v33, s[12:13]")
            for j in range(NPC):
                jj = j & 3
                e(f"s_add_u32 m0, s50, {(B_kv(i) if isB else A_kv(i)) + j*3584}")
                if jj == 0: e("s_nop 0")
                else: e(f"s_add_u32 s84, {'s83' if jj == 1 else 's84'}, s17")
                e(f"buffer_load_dwordx4 v{9 if j < 4 else 13}, s[8:11], {'s84' if jj else 's83'} offen lds")
                vm.issue(f"c{i}")
        else:
            for j in range(4): dmag(vm, f"c{i}", 8, 32, "s83", j*43008, 50, (B_kv(i) if isB else A_kv(i)) + j*3584, False)
            if isB:
                for j in range(2): dmag(vm, f"c{i}", 12, 32, "s83", j*43008, 50, B_q(i) + j*3584, False)
        e("s_mov_b32 exec_hi, -1")
    def pk_setup():
        e("v_lshlrev_b32 v32, 4, v2")
        e("v_add_u32 v32, s50, v32")
        if isB: e("v_add_u32 v33, 14336, v32")
        e("s_andn2_b32 s16, s2, 0x18")
        e(f"s_mul_i32 s16, s16, {IMG}")
        e(f"s_add_u32 s16, s16, 0x{PKB:x}")
        e(f"s_mul_i32 s20, s2, {IMG}")
        e(f"s_add_u32 s20, s20, 0x{PKB:x}")
        e("s_mov_b32 s18, 43008")
        e("s_mov_b32 s11, 0x20000")
        e("s_mov_b32 s19, 0")
        e("s_and_b32 s3, s92, 7")
        e("s_lshl3_add_u32 s21, s22, s3")
        e("s_or_b32 s21, s21, 0x40")
        e("v_mov_b32 v36, s21")
        e("s_lshl2_add_u32 s3, s23, s49")
        e("v_mov_b32 v37, s3")
        e("s_lshl4_add_u32 s3, s26, s49")
        e("v_and_b32 v34, 3, v2")
        e("v_lshl_add_u32 v34, v34, 2, s3")
    def pk_rd():
        b = B_kv(0) if isB else A_kv(0)
        e(f"v_add_u32 v35, {b}, v32")
        for j in range(NPC): e(f"ds_read_b128 v[{48+4*j}:{51+4*j}], v35 offset:{j*3584}")
    def pk_st():
        e("s_waitcnt lgkmcnt(0)")
        e("s_mov_b32 exec_hi, 0xffffff")
        for j in range(min(NPC, PKNS)):
            if j and not (j & 1): e(f"s_add_u32 s84, {'s20' if j == 2 else 's84'}, 7168")
            e(f"buffer_store_dwordx4 v[{48+4*j}:{51+4*j}], v32, s[40:43], {'s20' if j < 2 else 's84'} offen offset:{(j&1)*3584} {PKSP}")
            vm.issue("pub")
        e("s_mov_b32 exec_hi, -1")
    def pk_flag():
        if PKNS and not PKNF: vm.wait("pub")
        e("s_mov_b64 exec, 1")
        e("buffer_store_byte v36, v37, s[44:47], 0 offen")
        vm.issue("flag")
        e("s_mov_b64 exec, -1")
    def pk_poll(i):
        e("buffer_load_ubyte v35, v34, s[44:47], 0 offen nt")
        vm.issue(f"F{i}")
    def pk_pre(i):
        if PK and (i + 2) in PKP:
            vm.wait(f"F{i}")
            e("v_cmp_eq_u32 s[14:15], s21, v35")
        else: vm.wait(f"c{i}")
        if PK and i == 0 and not PKN: pk_rd()
    def pk_stat():
        if not (PK and STAMP and (SIDS is None or 50 in SIDS)): return
        e("s_lshl_b32 s74, s2, 8")
        e(f"s_add_u32 s74, s74, {STB + 50*4}")
        e("s_lshl_b32 s75, s49, 2")
        e("s_add_u32 s74, s74, s75")
        e("v_mov_b32 v28, s19")
        e("s_mov_b64 exec, 1")
        e("buffer_store_dword v28, off, s[40:43], s74")
        e("s_mov_b64 exec, -1")
        vm.issue("stamp")
    def pk_post(i):
        if not PK or PKN: return
        if i == 0: pk_st()
        if (i + 3) in PKP: pk_poll(i + 1)
    def isX(i):
        xb = B_x(i) if isB else A_x(i)
        for u in range(4):
            dmag(vm, f"c{i}", 16 + (u & 1), 28, "s85" if u < 2 else "s86", 0, 51, xb + (2048 if isB else 0) + u*1024)
            if i == 0 and u == 0 and not WF: ka_rest()
        if isB:
            e("s_mov_b32 exec_hi, 0")
            dmag(vm, f"c{i}", 18, 28, "s85", 0, 52, xb, False)
            if WF: e("s_mov_b32 exec_hi, -1")
    def isC(i):
        if XNOL and i >= 2:
            e("buffer_load_dword v30, off, s[40:43], 0"); vm.issue(f"c{i}")
            if PK and i == 3 and not PKN: pk_flag()
            return
        if WF:
            isW(i)
            if i == 0: ka_rest()
            isX(i)
        else:
            isX(i)
            if PK and i == 3 and not PKN: pk_flag()
            isW(i)
        if PK and i == 0: mk_table()
    def second():
        scal2()
        srd_rest()
        stamp(vm, SO + 0)
        nonce_issue(vm)
        if PK and not PKN: pk_setup()
    def flg():
        e("v_lshlrev_b32 v3, 2, v2")
        e("v_mov_b32 v4, 0")
        e(f"v_add_u32 v3, {FLG}, v3")
        e("ds_write_b32 v3, v4")
        e("s_waitcnt lgkmcnt(0)")
    if isB:
        isC(0)
        wmark(2)
        if LATE:
            if not SECs[1]: step_hdr(81); isC(1)
            wmark(3)
            if WST: srd_rest()
        else:
            if SEC == 0 or SEC == 2: second()
            if SEC != 2: step_hdr(81); isC(1)
            wmark(3)
            if SEC == 1: second()
            stamp(vm, 36)
            if LPRIO and LPR2 >= 0: e(f"s_setprio {LPR2}")
            flg()
        for i in range(7):
            if i == 0: stamp(vm, 37); wmark(4)
            if i == 0 and XNOL: wo_voffs(True)
            pk_pre(i)
            if i == 0: stamp(vm, 38); wmark(5)
            e("s_barrier")
            if i == 0: wdump(vm)
            pk_post(i)
            if i == 5: pk_stat()
            if i == 0 and not XNOL and not LATE: capture(wo_voffs, True)
            if i == (3 if LATE else 2): nonce_get(); nonce_pub()
            if i == 0 and (SECs[1] if LATE else SEC == 2): step_hdr(81); isC(1)
            if i <= 4: step_hdr(81); isC(i+2)
            if i == 0 and LATE:
                if LPRIO and LPR2 >= 0: e(f"s_setprio {LPR2}")
                second(); flg(); capture(wo_voffs, True)
            l_extra(vm, True, i)
            if i == 4: flush()
            if i >= 5:
                tb = 0xa860 if i == 5 else 0xec42
                e("s_lshl_b32 s3, s49, 2")
                e(f"s_lshr_b32 s52, 0x{tb:x}, s3")
                e("s_and_b32 s52, s52, 15")
                e(f"s_mul_i32 s53, s52, {WB}")
                e(f"s_add_u32 s53, s53, {B_wo(0)}")
                e(f"s_mul_i32 s54, s49, {2*28*896}")
                if i == 5: e(f"s_add_u32 s54, s54, {8*28*896}")
                for dh in range(2): wo_blockg(vm, dh, True)
        p2_lsetup(True)
        e(f"v_mov_b32 v3, {FLG}")
        e("s_waitcnt vmcnt(14)")
        e("s_mov_b64 exec, 1")
        e("ds_add_u32 v3, v4")
        e("s_mov_b64 exec, -1")
        spin2(0, 8 if GSIG else 4)
        if EAR[1]:
            e("s_waitcnt vmcnt(0)")
            e("s_mov_b64 exec, 1")
            e("ds_add_u32 v3, v4 offset:4")
            e("s_mov_b64 exec, -1")
        stamp(vm, SO + 3, 44)
        st_flush()
        e("s_branch P2_BL")
        return
    isC(0)
    wmark(2)
    def secA():
        second()
        stamp(vm, 36)
        for r in range(4): e(f"v_mov_b32 v{4+r}, 0")
        zs = uid("ZS")
        e("s_cmp_eq_u32 s25, 0")
        e(f"s_cbranch_scc0 {zs}")
        e("s_lshl2_add_u32 s3, s26, s49")
        e(f"s_mul_i32 s3, s3, {16*AS}")
        e(f"s_add_u32 s3, s3, 0x{ACC:x}")
        e("v_lshlrev_b32 v3, 4, v2")
        e("buffer_store_dwordx4 v[4:7], v3, s[40:43], s3 offen sc0 sc1")
        lab(zs)
    if LATE:
        if not SECs[0]: step_hdr(81); isC(1)
        wmark(3)
        if WST: srd_rest()
    else:
        if SEC == 1:
            step_hdr(81); isC(1)
        wmark(3)
        secA()
        if SEC == 0:
            step_hdr(81); isC(1)
        flg()
        if LPRIO and LPR2 >= 0: e(f"s_setprio {LPR2}")
    for i in range(5):
        if i == 0: stamp(vm, 37); wmark(4)
        pk_pre(i)
        if i == 0: stamp(vm, 38); wmark(5)
        e("s_barrier")
        if i == 0: wdump(vm)
        if i == 0 and not LATE: capture(wo_voffs, False)
        if i == 0 and LATE and SECs[0]: step_hdr(81); isC(1)
        if i == 3:
            nonce_get(); nonce_pub()
            zs = uid("ZF")
            e("s_or_b32 s3, s25, s49")
            e(f"s_cbranch_scc1 {zs}")
            e("s_lshl_b32 s3, s26, 2")
            e(f"v_mov_b32 v22, {CNT_Z}")
            e("v_mov_b32 v23, 1")
            e("s_mov_b64 exec, 1")
            e("buffer_store_dword v23, v22, s[44:47], s3 offen sc0 sc1")
            e("s_mov_b64 exec, -1")
            lab(zs)
        step_hdr(81); isC(i+2)
        if i == 0 and LATE:
            if LPRIO and LPR2 >= 0: e(f"s_setprio {LPR2}")
            secA(); flg(); capture(wo_voffs, False)
        l_extra(vm, False, i)
        if i == 4:
            flush()
            assert min(QB[:4]) >= 4 and min(QB[4:]) >= 5
            e(f"v_mov_b32 v{QV}, v12")
            isQb(vm, 4)
    st_flush()
    e("s_bitcmp1_b32 s49, 1")
    e("s_cbranch_scc1 T_AY")
    e("s_bitcmp1_b32 s49, 0")
    e("s_cbranch_scc1 T_A1")
    e("s_branch T_A0")
    lab("T_AY")
    e("s_bitcmp1_b32 s49, 0")
    e("s_cbranch_scc1 T_A3")
    e("s_branch T_A2")
    global VMA
    VMA = vm

TPR = int(os.environ.get("TPR", "3"))
TPR3 = int(os.environ.get("TPR3", "0"))
TPR2 = int(os.environ.get("TPR2", "-1"))
TPR4 = int(os.environ.get("TPR4", "-1"))
NPL = int(os.environ.get("NPL", "2"))
PLN = int(os.environ.get("PLN", "64"))
PLS = int(os.environ.get("PLS", "0"))
TPR0 = int(os.environ.get("TPR0", "3"))
PL0 = int(os.environ.get("PL0", "0"))
QB = [int(x) for x in os.environ.get("QB", "5,5,5,5,6,6,6").split(",")]
NW0 = int(os.environ.get("NW0", "7"))
NW1 = int(os.environ.get("NW1", "7"))
PS0 = int(os.environ.get("PS0", "0"))
PSL = int(os.environ.get("PSL", "4"))
RDE = os.environ.get("RDE", "0") == "1"
RDN = int(os.environ.get("RDN", "0"))
KVF = int(os.environ.get("KVF", "0"))
KSL = int(os.environ.get("KSL", "1"))
QV = 53
def isQ(vm, i):
    step_hdr(82, x=False)
    for j in range(2): dmag(vm, "q", QV, 32, "s83", j*43008, 50, A_q(i) + j*3584, False)
def isQb(vm, b):
    ks = [k for k in range(7) if QB[k] == b]
    if not ks: return
    e("s_mov_b32 exec_hi, 0xffffff")
    for k in ks: isQ(vm, k)
    e("s_mov_b32 exec_hi, -1")
def tailA(lw):
    global L
    lab(f"T_A{lw}")
    vm = VM(); vm.ops = list(VMA.ops)
    SO = 32
    hh = lw >> 1; et = lw & 1
    SCV = 51; ATV = 52; PLV = 56; WRV = 57; CV = 60; ZV = 54; RD = ST; MK = 58; ON = 59; MA = 62; MB = 63; SH = 64
    e("v_and_b32 v5, 15, v2")
    e("v_lshrrev_b32 v6, 4, v2")
    e("v_lshlrev_b32 v3, 4, v2")
    e(f"v_add_u32 v{SCV}, {A_scr(lw)}, v3")
    e(f"s_mul_i32 s3, s26, {64*AS}")
    e(f"s_add_u32 s57, s3, 0x{ACC + lw*16*AS:x}")
    e(f"v_lshlrev_b32 v{ATV}, 8, v6")
    e(f"v_lshl_add_u32 v{ATV}, v5, 2, v{ATV}")
    e("v_cmp_gt_u32 s[66:67], 3, v6")
    e("v_cmp_le_u32 s[18:19], 14, v5")
    e("v_cmp_gt_u32 s[20:21], 2, v5")
    e("v_mov_b32 v10, 0xffff")
    e("v_mov_b32 v11, 0xffff0000")
    e(f"v_cndmask_b32 v{MK}, -1, v11, s[18:19]")
    e(f"v_cndmask_b32 v{MK}, v{MK}, v10, s[20:21]")
    e("v_mov_b32 v12, 0x3c003c00")
    e(f"v_bfi_b32 v{ON}, v{MK}, 0, v12")
    e("v_and_b32 v13, 3, v2")
    e("v_lshrrev_b32 v14, 2, v2")
    e("v_cmp_eq_u32 s[4:5], 3, v13")
    e("v_cmp_eq_u32 s[8:9], 0, v13")
    e("s_or_b64 s[6:7], s[8:9], s[4:5]")
    e(f"v_cndmask_b32 v{MA}, -1, v10, s[8:9]")
    e(f"v_cndmask_b32 v{MB}, -1, v11, s[4:5]")
    e(f"v_cndmask_b32 v{SH}, 16, 0, s[4:5]")
    if et:
        e("v_min_u32 v15, 12, v14")
        e("v_lshlrev_b32 v15, 6, v15")
        e(f"v_lshl_add_u32 v{PLV}, v13, 4, v15")
    else:
        e(f"v_mov_b32 v{PLV}, v3")
    e(f"v_lshlrev_b32 v12, 4, v13")
    e(f"v_add_u32 v12, {KVB + hh*2048}, v12")
    e(f"v_add_u32 v13, {16*et}, v14")
    e("v_mul_u32_u24 v10, 37, v13")
    e("v_lshrrev_b32 v10, 8, v10")
    e("v_mul_u32_u24 v15, 7, v10")
    e("v_sub_u32 v15, v13, v15")
    e("v_lshrrev_b32 v16, 2, v15")
    e("v_and_b32 v15, 3, v15")
    e("v_lshl_add_u32 v15, v10, 2, v15")
    e("v_lshl_add_u32 v15, v16, 4, v15")
    if et:
        e("v_lshlrev_b32 v16, 2, v14")
        e("v_subrev_u32 v16, 29, v16")
        e("v_cmp_lt_u32 vcc, 11, v14")
        e("v_cndmask_b32 v15, v15, v16, vcc")
    e(f"v_lshl_add_u32 v{WRV}, v15, 6, v12")
    p2_lsetup(False, scal=False)
    e(f"v_mov_b32 v3, {FLG}")
    e(f"v_mov_b32 v{ZV+1}, {CNT_Z}")
    e("s_lshl_b32 s65, s26, 2")
    for i in (5, 6):
        vm.wait(f"c{i}")
        e("s_barrier")
        if i == 5:
            e(f"buffer_load_dword v{ZV}, v{ZV+1}, s[44:47], s65 offen sc0 sc1")
            vm.issue("z")
        if i == 6 and TPR0: e(f"s_setprio {TPR0}")
        isQb(vm, i)
        l_extra(vm, False, i)
    for x in p2_scal(False): e(x)
    half = list(range(4) if et == 0 else range(4, 7))
    WL = [(8 + lw, t) for t in range(7)] + [(12 + lw, t) for t in range(7)] + [(hh, t) for t in half]
    assert NW0 <= len(WL)
    WL += [(2 + lw, t) for t in range(7)] + [(6 + hh, t) for t in half]
    def wo_n(n):
        while n > 0 and WL:
            h = WL[0][0]; ts = []
            while n > 0 and WL and WL[0][0] == h:
                ts.append(WL.pop(0)[1]); n -= 1
            wo_block(vm, h, False, ts, tag="wh" if h >= 8 else "wl")
    wo_n(NW0)
    zl = uid("ZL"); zd = uid("ZD"); z1 = uid("Z1")
    e("s_mov_b32 s69, 0")
    vm.wait("z")
    e(f"s_branch {z1}")
    lab(zl)
    e(f"buffer_load_dword v{ZV}, v{ZV+1}, s[44:47], s65 offen sc0 sc1")
    e("s_waitcnt vmcnt(0)")
    lab(z1)
    e(f"v_readfirstlane_b32 s3, v{ZV}")
    e("s_add_u32 s69, s69, 1")
    e("s_nop 2")
    e("s_cmp_eq_u32 s3, 1")
    e(f"s_cbranch_scc1 {zd}")
    e("s_sleep 1")
    e("s_cmp_gt_u32 s69, 0x40000")
    e(f"s_cbranch_scc0 {zl}")
    lab(zd)
    stamp(vm, 43, CV)
    if TPR: e(f"s_setprio {TPR}")
    vm.wait("q")
    stamp(vm, 42, CV)
    e("s_barrier")
    stamp(vm, SO + 1, CV)
    for w in range(2):
        for dt in range(2):
            r = RD + dt*8 + w*4
            e(f"ds_read_b128 v[{r}:{r+3}], v{SCV} offset:{w*2048 + dt*1024}")
    for dt in range(2):
        e(f"s_waitcnt lgkmcnt({1-dt})")
        b = RD + dt*8
        for r in range(2):
            e(f"v_pk_add_f32 v[{b+2*r}:{b+2*r+1}], v[{b+2*r}:{b+2*r+1}], v[{b+4+2*r}:{b+5+2*r}]")
    for r in range(4):
        e(f"v_cvt_pk_f16_f32 v{RD+r}, v{RD+r}, v{RD+8+r}")
    for r in range(4):
        e(f"v_and_or_b32 v{RD+r}, v{RD+r}, v{MK}, v{ON}")
        if et and r == 1: e("s_mov_b64 exec, s[66:67]")
        e(f"buffer_atomic_pk_add_f16 v{RD+r}, v{ATV}, s[40:43], s57 offen offset:{r*AS} sc1")
        vm.issue("at")
    if et: e("s_mov_b64 exec, -1")
    stamp(vm, SO + 2, CV)
    if TPR2 >= 0: e(f"s_setprio {TPR2}")
    PR = 140
    def poll():
        e(f"buffer_load_dwordx4 v[{PR}:{PR+3}], v{PLV}, s[40:43], s57 offen sc0 sc1")
    wo_n(NW1)
    slp(PS0)
    poll(); vm.issue("poll")
    stamp(vm, 44, CV)
    if RDN or KVF:
        vm.wait("wh")
        e("s_mov_b64 exec, 1")
        e("ds_add_u32 v3, v4")
        e("s_mov_b64 exec, -1")
    wo_n(100)
    if RDN:
        spin2(0, 4)
        r0, rl, _ = p2_reads(False, False)
        for x in (r0 + rl)[:RDN]: e(x)
    if RDE:
        vm.wait("wh")
        e("s_mov_b64 exec, 1")
        e("ds_add_u32 v3, v4")
        e("s_mov_b64 exec, -1")
        spin2(0, 4)
        rd_res2(False, 1)
    stamp(vm, 45, CV)
    if TPR and TPR2 >= 0: e(f"s_setprio {TPR}")
    lp = uid("KVL"); dn = uid("KVD"); l1 = uid("KV1")
    e("s_mov_b32 s69, 0")
    vm.wait("poll")
    e(f"s_branch {l1}")
    lab(lp)
    if PSL: e(f"s_sleep {PSL}")
    poll()
    e("s_add_u32 s69, s69, 1")
    e("s_cmp_gt_u32 s69, 0x40000")
    e(f"s_cbranch_scc1 {dn}")
    e("s_waitcnt vmcnt(0)")
    lab(l1)
    e(f"v_cndmask_b32 v13, v{PR}, v{PR+3}, s[4:5]")
    e(f"v_bfe_u32 v13, v13, v{SH}, 16")
    e("v_cmp_eq_u32 vcc, 0x4c00, v13")
    e(f"v_and_b32 v{PR}, v{PR}, v{MA}")
    e(f"v_and_b32 v{PR+1}, v{PR+1}, v{MA}")
    e("s_and_b64 s[14:15], vcc, s[6:7]")
    e(f"v_and_b32 v{PR+2}, v{PR+2}, v{MB}")
    e(f"v_and_b32 v{PR+3}, v{PR+3}, v{MB}")
    e("s_cmp_eq_u64 s[14:15], s[6:7]")
    e(f"s_cbranch_scc0 {lp}")
    lab(dn)
    e(f"ds_write_b128 v{WRV}, v[{PR}:{PR+3}]")
    stamp(vm, 46, CV)
    if STAMP and (SIDS is None or 47 in SIDS):
        e(f"v_mov_b32 v{CV}, s69")
        e("s_lshl_b32 s74, s2, 8")
        e(f"s_add_u32 s74, s74, {STB + 50*4 + lw*4}")
        e("s_mov_b64 exec, 1")
        e(f"buffer_store_dword v{CV}, off, s[40:43], s74")
        e("s_mov_b64 exec, -1")
    if KVF:
        e("s_mov_b64 exec, 1")
        e("ds_add_u32 v3, v4 offset:8")
        e("s_mov_b64 exec, -1")
        if not RDN: spin2(0, 4)
    else:
        e("s_waitcnt lgkmcnt(0)")
        e("s_barrier")
    if TPR and TPR3 >= 0: e(f"s_setprio {TPR3}")
    assert not RDE and NW0 + NW1 >= 14
    stamp(vm, SO + 3, CV)
    st_flush()
    e("s_branch P2_AL")

NP = int(os.environ.get("NP", "64"))
NRES = 10; NA = 7
SLP = int(os.environ.get("SLP", "4"))
EARLY = os.environ.get("EARLY", "0") == "1"
FPOL = os.environ.get("FPOL", "nt")
TR = os.environ.get("TR") == "1"
def tr(k):
    if TR: e(f"s_memrealtime s[{4+2*k}:{5+2*k}]")
PST = int(os.environ.get("PST", "0"))
AC = 16; OF = 44; WV = 76; ST = 124; PRT = 76
def oreg(j, hh): return OF + (j*2+hh)*4
def wreg(j, f):
    if f >= NRES: return "v", ST + (f-NRES)*4
    if f < NA: return "a", (j*NA + f)*4
    return "v", WV + (j*(NRES-NA) + f-NA)*4
def rdf(j, f):
    hh, nt = divmod(f, 7)
    k, r = wreg(j, f)
    o = (2*j+hh)*WB + nt*32
    e(f"ds_read_b64_tr_b16 {k}[{r}:{r+1}], v8 offset:{o}")
    e(f"ds_read_b64_tr_b16 {k}[{r+2}:{r+3}], v9 offset:{o}")
def rd_res(kind):
    for j in range(4):
        for f in range(NRES):
            if wreg(j, f)[0] in kind: rdf(j, f)
def wo_bases(wo):
    e("v_lshrrev_b32 v7, 4, v2")
    e("v_lshrrev_b32 v3, 1, v7")
    e("v_bfe_u32 v8, v2, 2, 2")
    e("v_mul_u32_u24 v9, 14, v3")
    e("v_and_b32 v4, 1, v7")
    e("v_lshl_add_u32 v6, v4, 2, v9")
    e("v_add_u32 v6, v6, v8")
    e("v_mul_u32_u24 v5, 3, v4")
    e("v_min_u32 v8, 2, v8")
    e("v_add3_u32 v9, v9, v5, v8")
    e("v_add_u32 v9, 8, v9")
    e("v_and_b32 v5, 3, v2")
    e("v_lshlrev_b32 v5, 3, v5")
    e(f"v_add_u32 v5, {wo}, v5")
    e(f"v_mul_u32_u24 v8, {RS}, v6")
    e("v_add_u32 v8, v8, v5")
    e(f"v_mul_u32_u24 v9, {RS}, v9")
    e("v_add_u32 v9, v9, v5")
def spin_flag(off, val, cmp_):
    lp = uid("SP")
    e(f"v_mov_b32 v3, {FLG}")
    lab(lp)
    e(f"ds_read_b32 v4, v3 offset:{off}")
    e("s_waitcnt lgkmcnt(0)")
    e("v_readfirstlane_b32 s3, v4")
    e("s_nop 3")
    e(f"s_cmp_{cmp_}_u32 s3, {val}")
    e(f"s_cbranch_scc0 {lp}")
GSIG = os.environ.get("GSIG", "1") == "1"
SPS = int(os.environ.get("SPS", "1"))
def spin2(off, val):
    lp = uid("SP"); dn = uid("SD")
    lab(lp)
    e(f"ds_read_b32 v13, v3 offset:{off}")
    e("s_waitcnt lgkmcnt(0)")
    e("v_readfirstlane_b32 s3, v13")
    e("s_nop 3")
    e(f"s_cmp_eq_u32 s3, {val}")
    if SPS:
        e(f"s_cbranch_scc1 {dn}")
        e(f"s_sleep {SPS}")
        e(f"s_branch {lp}")
        lab(dn)
    else: e(f"s_cbranch_scc0 {lp}")
def tcol(isB, grp, t):
    return (t >> 1)*56 + (t & 1)*(24 if (not isB and grp < 2) else 32)

def accA(grp, rt, t): return 32 + (rt*4+t)*4
def accA2(grp, t, rt): return 32 + (grp-1)*32 + (t*4+rt)*4
def accB(grp, t, r):
    if grp == 0: return 32 + r*8 + t*4
    if grp == 1: return 64 + r*8 + t*4
    return 104 + t*20 + r*4

def comp_setup(isB):
    wo_bases(wbase(isB, 0)[0])
    e("v_lshrrev_b32 v3, 4, v2")
    e("v_bfe_u32 v4, v2, 2, 2")
    e("v_lshl_add_u32 v4, v3, 3, v4")
    e("v_and_b32 v5, 1, v3")
    e("v_lshlrev_b32 v5, 2, v5")
    e("v_add_u32 v6, v4, v5")
    e("v_xor_b32 v7, 4, v6")
    e(f"v_mul_u32_u24 v6, {RS}, v6")
    e(f"v_mul_u32_u24 v7, {RS}, v7")
    e("v_and_b32 v5, 3, v2")
    e("v_lshl_add_u32 v14, v5, 3, v6")
    e("v_lshl_add_u32 v15, v5, 3, v7")
    e("s_and_b32 s49, s48, 1")
    e("s_lshr_b32 s50, s48, 1")
    e("s_mul_i32 s3, s49, 56")
    e("v_add_u32 v12, s3, v14")
    e("v_add_u32 v13, s3, v15")
    e("v_and_b32 v4, 15, v2")
    e("v_lshrrev_b32 v5, 1, v4")
    e("v_xor_b32 v5, v5, v3")
    e("v_lshlrev_b32 v5, 4, v5")
    e("v_lshl_add_u32 v18, v4, 7, v5")
    if isB:
        e("s_lshl_b32 s3, s50, 13")
        e("v_add_u32 v16, s3, v18")
        e("v_xor_b32 v17, 64, v16")
    else:
        e("v_lshl_add_u32 v16, v1, 12, v18")
        e("v_xor_b32 v17, 64, v16")
        e("v_xor_b32 v18, 0x1000, v16")
        e("v_xor_b32 v19, 0x1000, v17")

ILV = os.environ.get("ILV", "1") == "1"
def pr2(n, d):
    v = [int(x) for x in os.environ.get(n, d).split(",")]
    return v if len(v) == 2 else v*2
LAs = pr2("LA", "16,18"); URGs = pr2("URG", "8,8"); BLs = pr2("BL", "6,6"); BLLs = pr2("BLL", "3,3")
SYC = int(os.environ.get("SYC", "1"))
def gemm(vm, isB):
    global L
    lg = LG()
    D = DB if isB else DA
    NB = 12 if isB else 6
    assert D <= (5 if isB else 4)
    def bf(j):
        r = (j % NB)*4 + (0 if isB else 96); k = "a" if isB else "v"
        return (f"{k}[{r}:{r+3}]", f"{k}[{r}:{r+1}]", f"{k}[{r+2}:{r+3}]")
    def xr(ch, kk, rt):
        st = (2*ch + kk) % 3
        if isB: r = 48 + st*20 + rt*4
        elif rt < 2: r = (ch*4 + kk*2 + rt)*4
        else:
            r = 120 + st*8 + (rt-2)*4
            return f"v[{r}:{r+3}]"
        return f"a[{r}:{r+3}]"
    items = []
    for ch in range(7):
        if not isB and ch == 6:
            items += [(ch, kk, grp, t) for grp in (1, 2) for t in range(2) for kk in range(2)]
            continue
        for kk in range(2):
            for grp in ((0, 1, 2) if isB else (1, 2)):
                for t in range(2): items.append((ch, kk, grp, t))
    lastuse = {}
    for j, it in enumerate(items): lastuse[2*it[0] + it[1]] = j
    def sync(ch):
        if ch == 6 and not CN: vm.wait("pre" if PRE else "non")
        if ch == 0: wmark(4)
        e("s_barrier")
        if ch == 0: wmark(5); wdump(vm)
        stamp(vm, 12 + ch)
        if ch == 6 and CN:
            e("ds_read_b32 v31, v6 offset:8"); lg.issue("non")
        if PST == ch + 2: prestore(vm, isB)
        pf_bar(vm, isB, ch)
        wb = 20 + (ch & 1)*2
        kvb = B_kv(ch) if isB else A_kv(ch)
        xb = B_x(ch) if isB else A_x(ch)
        e(f"v_add_u32 v24, {xb}, v16")
        e(f"v_add_u32 v25, {xb}, v17")
        if not isB:
            e(f"v_add_u32 v26, {xb}, v18")
            e(f"v_add_u32 v27, {xb}, v19")
        e(f"v_add_u32 v{wb}, {kvb}, v12")
        e(f"v_add_u32 v{wb+1}, {kvb}, v13")
    def xrd(ch, kk):
        if XNOR or XNOX: return
        if isB:
            for rt in (1, 2, 3, 4, 0):
                e(f"ds_read_b128 {xr(ch,kk,rt)}, v{24+kk} offset:{rt*2048}")
                lg.issue(f"x{ch}")
        else:
            for rt in range(4):
                e(f"ds_read_b128 {xr(ch,kk,rt)}, v{24+kk+(rt>>1)*2} offset:{(rt&1)*2048}")
                lg.issue(f"x{ch}")
    def wrd(j):
        ch, kk, grp, t = items[j]
        wb = 20 + (ch & 1)*2
        if grp == 0: off = KVS + kk*112 + t*32
        else: off = 32*kk*RS + (grp-1)*112 + t*(24 if (not isB and grp == 1) else 32)
        for hf in range(2):
            if XNOR or (XNOW and hf): continue
            e(f"ds_read_b64_tr_b16 {bf(j)[1+hf]}, v{wb+hf} offset:{off}")
            lg.issue(f"w{j}")
    def rd(j):
        ch, kk, grp, t = items[j]
        if j == 0 or items[j-1][0] != ch: sync(ch)
        if j == 0 or items[j-1][:2] != (ch, kk): xrd(ch, kk)
        wrd(j)
    def mfmas(j):
        ch, kk, grp, t = items[j]
        tr = isB and grp < 2
        first = (ch == 0 and kk == 0)
        o = []
        for r in range(5 if (isB and grp) else 4):
            a = accB(grp, t, r) if isB else accA2(grp, t, r)
            x = xr(ch, kk, r + 1 if (isB and grp == 0) else r)
            cc = ("1.0" if (not isB and grp == 1) else "0") if first else f"v[{a}:{a+3}]"
            if tr: o.append(f"v_mfma_f32_16x16x32_bf16 v[{a}:{a+3}], {bf(j)[0]}, {x}, {cc}")
            else: o.append(f"v_mfma_f32_16x16x32_bf16 v[{a}:{a+3}], {x}, {bf(j)[0]}, {cc}")
        return o
    if ILV:
        LA = LAs[isB]; URG = URGs[isB]; BL = BLs[isB]; BLL = BLLs[isB]
        F = []; n = 0
        for j in range(len(items)): F.append(n); n += len(mfmas(j))
        F.append(n)
        ipc = len(items) // 7
        ops = []
        lg0 = lg; seen = set()
        vq = [] if isB else epiA_vq(F[6*ipc])
        for j in range(len(items)):
            ch, kk, grp, t = items[j]
            bufe = F[j - NB + 1] if j >= NB else -10**9
            if j % ipc == 0:
                bl = BLL if ch == 6 else BL
                ops.append((j, F[j] - bl, "S", ch, None))
            class Rec:
                def __init__(s_): s_.t = []
                def issue(s_, tag): s_.t.append(tag)
            sv = L; L = []; lg = Rec()
            if (ch, kk) not in seen: xrd(ch, kk)
            seen.add((ch, kk))
            nx = len(L)
            wrd(j)
            ins = L; L = sv
            for q, (ln, tg) in enumerate(zip(ins, lg.t)):
                ear = F[j] - LA
                if q >= nx: ear = max(ear, bufe)
                else:
                    if 2*ch + kk >= 3: ear = max(ear, F[lastuse[2*ch + kk - 3] + 1])
                ops.append((j, ear, "L", ln, tg))
            lg = lg0
        qi = 0
        def emit(op):
            if op[2] == "S": sync(op[3])
            else: L.append(op[3]); lg.issue(op[4])
        g = 0; sig = []
        for j in range(len(items)):
            for m, ins in enumerate(mfmas(j)):
                if m == 0:
                    while qi < len(ops) and ops[qi][0] <= j: emit(ops[qi]); qi += 1
                cnt = 0
                while qi < len(ops) and ops[qi][1] <= g:
                    lim = 2 if F[ops[qi][0]] - g < URG else 1
                    if ops[qi][2] == "L" and cnt >= lim: break
                    if ops[qi][2] == "L": cnt += 1
                    else: cnt += SYC
                    emit(ops[qi]); qi += 1
                if isB and GSIG and qi == len(ops) and not sig:
                    sig.append(1)
                    e("s_mov_b64 exec, 1")
                    e("ds_add_u32 v6, v7")
                    e("s_mov_b64 exec, -1")
                    lg.issue("sig")
                if m == 0: lg.wait(f"w{j}")
                e(ins); g += 1
                nv = 0
                while vq and vq[0][0] <= g and nv < NVA:
                    e(vq.pop(0)[1]); nv += 1
        return vq
    for j in range(D): rd(j)
    for j, (ch, kk, grp, t) in enumerate(items):
        if j + D < len(items): rd(j + D)
        if not XNOR: lg.wait(f"w{j}")
        if XNOM and ch > 0: continue
        for ins in mfmas(j): e(ins)

NVA = int(os.environ.get("NVA", "4"))
def phi5(y, t):
    if os.environ.get("PKF32") == "1":
        return [f"v_pk_fma_f32 v[{t}:{t+1}], v[{y}:{y+1}], s[70:71], s[70:71] neg_lo:[0,0,1] neg_hi:[0,0,1]",
                f"v_exp_f32 v{t}, v{t} clamp",
                f"v_exp_f32 v{t+1}, v{t+1} clamp"]
    return [f"v_fma_f32 v{t}, v{y}, s70, -s70",
            f"v_fma_f32 v{t+1}, v{y+1}, s70, -s70",
            f"v_exp_f32 v{t}, v{t} clamp",
            f"v_exp_f32 v{t+1}, v{t+1} clamp"]
def zipl(seqs):
    o = []
    for i in range(max(len(q) for q in seqs)):
        for q in seqs:
            if i < len(q): o.append(q[i])
    return o
def epiA_vq(g0):
    TT = [12, 16, 18, 22]
    vq = []
    pre = ["v_and_b32 v5, 15, v2", "v_mov_b32 v7, 0x3f803f80", "s_lshl_b32 s3, s49, 13", "s_lshl_b32 s27, s50, 11",
           "v_cmp_le_u32 s[64:65], 12, v5", "s_add_u32 s3, s3, s27", "v_lshlrev_b32 v3, 4, v2", f"s_add_u32 s3, s3, {A_scr(0)}",
           "v_lshrrev_b32 v6, 4, v2", "v_add_u32 v4, s3, v3"]
    vq += [(g0 + 1, x) for x in pre]
    for t in range(2):
        for rt in range(4):
            a = accA2(1, t, rt); d = accA2(1, t, rt & 2) + (rt & 1)*2
            sq = []
            for h in range(2):
                y = a + 2*h; tt = TT[(rt & 1)*2 + h]
                sq.append(phi5(y, tt) + [f"v_max_f32 v{tt}, v{tt}, v{y}", f"v_max_f32 v{tt+1}, v{tt+1}, v{y+1}"])
            o = zipl(sq)
            o += [f"v_cvt_pk_bf16_f32 v{d+h}, v{TT[(rt&1)*2+h]}, v{TT[(rt&1)*2+h]+1}" for h in range(2)]
            vq += [(g0 + t*8 + 4 + rt + 4, x) for x in o]
    for t in range(2):
        for rt in range(4):
            a = accA2(2, t, rt); d = accA2(2, t, rt & 2) + (rt & 1)*2
            o = [f"v_cvt_pk_bf16_f32 v{d}, v{a}, v{a+1}", f"v_cvt_pk_bf16_f32 v{d+1}, v{a+2}, v{a+3}"]
            if t: o += [f"v_cndmask_b32 v{d}, v{d}, v7, s[64:65]", f"v_cndmask_b32 v{d+1}, v{d+1}, v7, s[64:65]"]
            vq += [(g0 + 16 + t*8 + 4 + rt + 4, x) for x in o]
    return vq
def pass2(pre):
    lg = LG()
    D = int(os.environ.get("D2", "6")); NB = 12
    items = [(ch, kk, t) for t in range(4) for ch in range(7) for kk in range(2)]
    e(f"v_add_u32 v20, {A_q(0)}, v14")
    e(f"v_add_u32 v21, {A_q(0)}, v15")
    def rd(j, hfs=(0, 1)):
        if j >= len(items): return
        ch, kk, t = items[j]
        r = 96 + (j % NB)*4
        off = A_q(ch) - A_q(0) + kk*112 + tcol(False, 0, t)
        for hf in hfs:
            e(f"ds_read_b64_tr_b16 v[{r+2*hf}:{r+2*hf+1}], v{20+hf} offset:{off}")
            lg.issue(f"w{j}")
    vq = [(1, x) for x in pre]
    for t in range(4):
        sq = []
        for rt in range(2):
            a = accA(0, rt, t)
            for h in range(2):
                y = a + 2*h; tt = 64 + (rt*2+h)*2
                sq.append(phi5(y, tt) + [f"v_max_f32 v{y}, v{tt}, v{y}", f"v_max_f32 v{y+1}, v{tt+1}, v{y+1}"])
        o = zipl(sq)
        if t & 1:
            for rt in range(2):
                a0 = accA(0, rt, t-1); a1 = accA(0, rt, t)
                o += [f"v_cvt_pk_f16_f32 v{a0+r}, v{a0+r}, v{a1+r}" for r in range(4)]
        vq += [(28*(t+1) + 3, x) for x in o]
    for j in range(D): rd(j)
    g = 0
    for j, (ch, kk, t) in enumerate(items):
        rd(j + D, (0,))
        lg.wait(f"w{j}")
        r = 96 + (j % NB)*4
        for rt in range(2):
            a = accA(0, rt, t); x = (ch*4 + kk*2 + rt)*4
            cc = "1.0" if (ch == 0 and kk == 0) else f"v[{a}:{a+3}]"
            e(f"v_mfma_f32_16x16x32_bf16 v[{a}:{a+3}], v[{r}:{r+3}], a[{x}:{x+3}], {cc}")
            g += 1
            if rt == 0: rd(j + D, (1,))
            nv = 0
            while vq and vq[0][0] <= g and nv < (2 if rt else 1):
                e(vq.pop(0)[1]); nv += 1
    e("s_nop 7")
    e("s_nop 1")
    for _, x in vq: e(x)

def tile_addr(isB, r=14):
    if isB:
        e("s_lshl_b32 s3, s50, 13")
        e("s_lshl_b32 s27, s49, 10")
        e("s_add_u32 s3, s3, s27")
        e(f"v_lshlrev_b32 v{r}, 4, v2")
        e(f"v_add_u32 v{r}, s3, v{r}")
        e(f"v_add_u32 v{r+1}, 0x1000, v{r}")
    else:
        e(f"v_lshlrev_b32 v{r}, 12, v1")
        e(f"v_lshl_add_u32 v{r}, v2, 4, v{r}")
    e("s_lshl_b32 s27, s26, 14")
    e("s_add_u32 s63, s59, s27")
PLD = os.environ.get("PLD", "0") == "1"
def prestore(vm, isB):
    if PLD:
        e("v_lshlrev_b32 v10, 7, v2")
        e("v_lshl_add_u32 v10, v1, 12, v10")
        e("s_lshl_b32 s27, s26, 14")
        e("s_add_u32 s63, s59, s27")
        e("s_mov_b64 exec, 0xffffffff")
        e("buffer_load_dword v30, v10, s[40:43], s63 offen nt")
        e("s_mov_b64 exec, -1")
        vm.issue("pre")
        return
    tile_addr(isB, 10)
    for r in range(4): e(f"v_mov_b32 v{4+r}, 0")
    for (va, off, n) in tile_regs(isB):
        e(f"buffer_store_dwordx4 v[4:7], v{va-4}, s[40:43], s63 offen offset:{off}")
        vm.issue("pre")
def tile_regs(isB):
    if isB: return [(14 + (rt >> 1), (rt & 1)*2048, 16 + rt*4) for rt in range(4)]
    return [(14, rt*2048 + hh*1024, 16 + (hh*2+rt)*4) for hh in range(2) for rt in range(2)]
def tile_store(isB, q, vm=None):
    for (va, off, n) in tile_regs(isB):
        if q: e(f"buffer_store_dwordx4 v[{n}:{n+3}], v{va}, s[40:43], s51 offen offset:{off} sc0 sc1")
        else: e(f"buffer_store_dwordx4 v[{n}:{n+3}], v{va}, s[40:43], s63 offen offset:{off} {TPOL}")
        if vm: vm.issue("Q")

ESG = os.environ.get("ESG", "1") == "1"
LSL = pr2("LSL", "0,0")
def sigT():
    e(f"v_mov_b32 v3, {FLG}")
    e("v_mov_b32 v4, 1")
    e("s_mov_b64 exec, 1")
    e("ds_add_u32 v3, v4 offset:4")
    e("s_mov_b64 exec, -1")
def epi_A(vm, vq):
    global L
    c("---- A epilogue ----")
    KP = 120
    gl = max(g for g, _ in vq) - 3
    g = gl - 1
    def drain(lim):
        while vq and vq[0][0] <= lim: e(vq.pop(0)[1])
    drain(g)
    def kv(et, dt, pr):
        d = KP + (et*2 + dt)*4
        va = accA2(2, et, 2*pr); pk = accA2(1, dt, 2*pr)
        cc = "0" if pr == 0 else f"v[{d}:{d+3}]"
        e(f"v_mfma_f32_16x16x32_bf16 v[{d}:{d+3}], v[{va}:{va+3}], v[{pk}:{pk+3}], {cc}")
    e("s_nop 1")
    for pr in range(2):
        for dt in range(2):
            kv(0, dt, pr); g += 1
            drain(g)
    assert not vq
    e("s_nop 1")
    def wr(i): e(f"ds_write_b128 v4, v[{KP+i*4}:{KP+i*4+3}] offset:{(i>>1)*4096 + (i&1)*1024}")
    for pr in range(2):
        for dt in range(2):
            kv(1, dt, pr)
    wr(0); wr(1)
    e("s_nop 4")
    wr(2)
    wr(3)
    e("s_waitcnt lgkmcnt(0)")
    stamp(vm, 8)
    e("s_barrier")
    stamp(vm, 4)
    sv = L; L = []
    nonce_get()
    e("v_lshlrev_b32 v10, 6, v5")
    e("v_lshl_add_u32 v10, v6, 4, v10")
    e(f"v_add_u32 v10, {KVB}, v10")
    tile_addr(False, 12)
    e("v_mov_b32 v11, 0xffff")
    if KVF:
        e("v_lshlrev_b32 v13, 3, v2")
        e(f"v_mov_b32 v3, {FLG}")
        e("v_mov_b32 v4, 1")
        e(f"v_add_u32 v13, {FLG+48}, v13")
    for r in range(3): e(f"v_mov_b32 v{72+r}, 0")
    e(f"v_mov_b32 v75, 0x{EPS:x}")
    pre = [x.strip() for x in L]; L = sv
    pass2(pre)
    e("v_mov_b32 v14, v12")
    stamp(vm, 7)
    if E0[0] == 2:
        e("v_lshlrev_b32 v6, 4, v2")
        ld0(False, 6)
    R = 80
    def kvrd():
        for hh in range(2):
            for f in (1, 0):
                r = R + (hh*2+f)*4
                e(f"ds_read_b128 v[{r}:{r+3}], v10 offset:{hh*2048 + f*1024}")
    if KVF:
        st_flush()
        e("s_mov_b64 exec, 15")
        e("ds_add_u32 v13, v4")
        e("s_mov_b64 exec, -1")
        lp = uid("KS"); go = uid("KG")
        lab(lp)
        e("ds_read_b32 v13, v3 offset:8")
        if KVF == 2: kvrd()
        e(f"s_waitcnt lgkmcnt({4 if KVF == 2 else 0})")
        e("v_readfirstlane_b32 s3, v13")
        e("s_nop 3")
        e("s_cmp_eq_u32 s3, 4")
        e(f"s_cbranch_scc1 {go}")
        if KSL: e(f"s_sleep {KSL}")
        e(f"s_branch {lp}")
        lab(go)
        if KVF != 2: kvrd()
    else:
        e("s_barrier")
        stamp(vm, 10)
        kvrd()
    NR = 96; TT = 128
    for hh in range(2):
        for f in (1, 0):
            e(f"s_waitcnt lgkmcnt({3 - 2*hh - (1-f)})")
            for rt in range(2):
                n = NR + (hh*2+rt)*8
                q = accA(0, rt, 2*hh)
                r = R + (hh*2+f)*4
                e(f"v_mfma_f32_16x16x32_f16 v[{n+f*4}:{n+f*4+3}], v[{r}:{r+3}], v[{q}:{q+3}], {'v[72:75]' if f else '0'}")
    if E0[0] == 1:
        e("v_lshlrev_b32 v6, 4, v2")
        ld0(False, 6)
    def fin(hh, rt):
        n = NR + (hh*2+rt)*8
        t = TT + (hh*2+rt)*2
        T = 16 + (hh*2+rt)*4
        o = [f"v_rcp_f32 v{t}, v{n+7}",
             f"v_pk_mul_f32 v[{n+4}:{n+5}], v[{n+4}:{n+5}], v[{t}:{t+1}] op_sel_hi:[1,0]",
             f"v_mul_f32 v{n+6}, v{n+6}, v{t}",
             f"v_cvt_pk_bf16_f32 v{T+2}, v{n+4}, v{n+5}",
             f"v_cvt_pk_bf16_f32 v{T+3}, v{n+6}, v{n+6}",
             f"v_and_or_b32 v{T+3}, v{T+3}, v11, s61"]
        for q in range(2):
            o.append(f"v_pk_mul_f32 v[{n+2*q}:{n+2*q+1}], v[{n+2*q}:{n+2*q+1}], v[{t}:{t+1}] op_sel_hi:[1,0]")
        for q in range(2):
            o.append(f"v_cvt_pk_bf16_f32 v{T+q}, v{n+2*q}, v{n+2*q+1}")
        o.append(f"buffer_store_dwordx4 v[{T}:{T+3}], v14, s[40:43], s63 offen offset:{rt*2048 + hh*1024} {TPOL}")
        return o
    ilv([fin(0, 0), fin(0, 1)])
    ilv([fin(1, 0), fin(1, 1)])
    stamp(vm, 5, 4)

def epi_B(vm):
    c("---- B epilogue ----")
    e("v_and_b32 v5, 15, v2")
    e("v_lshrrev_b32 v6, 4, v2")
    e("v_cmp_gt_u32 s[64:65], 3, v6")
    nonce_get()
    e("v_and_b32 v3, 1, v5")
    e("v_cmp_eq_u32 s[4:5], 1, v3")
    e("v_mov_b32 v10, 0xffff")
    e("v_mov_b32 v11, 0xffff0000")
    e("v_cndmask_b32 v12, v10, v11, s[4:5]")
    e("v_lshl_add_u32 v11, v6, 2, v3")
    e("v_sub_u32 v11, v11, v5")
    def KF(blk): return 64 + blk*8
    def QF(rt): return 32 + rt*8
    def VB(et): return 104 + et*20
    def cvt4(b):
        for q in range(4): e(f"v_cvt_pk_bf16_f32 v{b+q}, v{b+2*q}, v{b+2*q+1}")
    def C0(cb): return 32 + cb*8 + 4
    def C1(cb): return 64 + cb*8 + 4
    for rt in range(4):
        b = QF(rt)
        cvt4(b)
        e(f"v_cndmask_b32 v{b+2}, 0, v{b+2}, s[64:65]")
        e(f"v_cndmask_b32 v{b+3}, 0, v{b+3}, s[64:65]")
    for blk in range(5): cvt4(KF(blk))
    e("s_nop 1")
    for rt in range(4):
        q = QF(rt)
        for ti in range(2):
            k = KF(rt + ti)
            d = C0(rt) if ti == 0 else C1(rt)
            e(f"v_mfma_f32_16x16x32_bf16 v[{d}:{d+3}], v[{k}:{k+3}], v[{q}:{q+3}], 0")
    for et in range(2):
        b = VB(et)
        for blk in range(5):
            e(f"v_cvt_pk_bf16_f32 v{b+2*blk}, v{b+4*blk}, v{b+4*blk+1}")
            e(f"v_cvt_pk_bf16_f32 v{b+2*blk+1}, v{b+4*blk+2}, v{b+4*blk+3}")
    for k in range(4):
        addk = 2*k if k < 2 else 16 + 2*(k-2)
        e(f"v_add_u32 v13, {addk}, v11")
        e(f"v_cmp_le_i32 s[{6+2*k}:{7+2*k}], 2, v13")
        e(f"v_cmp_ge_i32 vcc, 16, v13")
        e(f"s_and_b64 s[{6+2*k}:{7+2*k}], s[{6+2*k}:{7+2*k}], vcc")
    e("s_or_b32 s3, s25, s50")
    e("s_cmp_eq_u32 s3, 0")
    e("s_cselect_b64 s[14:15], 0, -1")
    e("s_and_b64 s[16:17], s[6:7], s[14:15]")
    e("s_and_b64 s[18:19], s[8:9], s[14:15]")
    e("v_mov_b32 v13, 0xce6e6b28")
    e(f"s_mov_b32 s20, 0x{SC2:x}")
    tile_addr(True)
    e("v_cmp_eq_u32 s[68:69], 3, v6")
    def seq(cb):
        lgr = [C0(cb), C0(cb)+2, C1(cb), C1(cb)+2]
        m = C1(cb)+1; m2 = C1(cb)+3
        o = []
        for k in range(4):
            o.append(f"v_cndmask_b32 v{lgr[k]}, v{lgr[k]}, v{lgr[k]+1}, s[4:5]")
        for k in range(4):
            ms = (16 + 2*k) if (cb == 0 and k < 2) else (6 + 2*k)
            o.append(f"v_cndmask_b32 v{lgr[k]}, v13, v{lgr[k]}, s[{ms}:{ms+1}]")
        o.append(f"v_max3_f32 v{m}, v{lgr[0]}, v{lgr[1]}, v{lgr[2]}")
        o.append(f"v_max_f32 v{m}, v{m}, v{lgr[3]}")
        o.append(f"v_mov_b32 v{m2}, v{m}")
        o.append(f"v_permlane16_swap_b32 v{m}, v{m2}")
        o.append(f"v_max_f32 v{m}, v{m}, v{m2}")
        o.append(f"v_mov_b32 v{m2}, v{m}")
        o.append(f"v_permlane32_swap_b32 v{m}, v{m2}")
        o.append(f"v_max_f32 v{m}, v{m}, v{m2}")
        o.append(f"v_mul_f32 v{m}, 0x{SC2 ^ 0x80000000:x}, v{m}")
        for k in range(4):
            o.append(f"v_fma_f32 v{lgr[k]}, v{lgr[k]}, s20, v{m}")
        for k in range(4):
            o.append(f"v_exp_f32 v{lgr[k]}, v{lgr[k]}")
        o.append(f"v_add_f32 v{m}, v{lgr[0]}, v{lgr[1]}")
        o.append(f"v_add_f32 v{m2}, v{lgr[2]}, v{lgr[3]}")
        o.append(f"v_add_f32 v{m}, v{m}, v{m2}")
        o.append(f"v_mov_b32 v{m2}, v{m}")
        o.append(f"v_permlane16_swap_b32 v{m}, v{m2}")
        o.append(f"v_add_f32 v{m}, v{m}, v{m2}")
        o.append(f"v_mov_b32 v{m2}, v{m}")
        o.append(f"v_permlane32_swap_b32 v{m}, v{m2}")
        o.append(f"v_add_f32 v{m}, v{m}, v{m2}")
        o.append(f"v_rcp_f32 v{m}, v{m}")
        for k in range(4):
            o.append(f"v_mul_f32 v{lgr[k]}, v{lgr[k]}, v{m}")
            o.append(f"v_cvt_pk_bf16_f32 v{C0(cb)+k}, v{lgr[k]}, v{lgr[k]}")
            o.append(f"v_and_b32 v{C0(cb)+k}, v{C0(cb)+k}, v12")
        return o
    sm = zipl([seq(cb) for cb in range(4)])
    if EAR[1]:
        EA0 = int(os.environ.get("EA0", "0")); EAS = int(os.environ.get("EAS", "3"))
        for x in sm[:EA0]: e(x)
        sm = sm[EA0:]
        lp = uid("SPE")
        e(f"v_mov_b32 v26, {FLG}")
        for x in base2_ops(True, 0, (28, 29)): e(x)
        lab(lp)
        e("ds_read_b32 v27, v26 offset:4")
        e("s_waitcnt lgkmcnt(0)")
        e("v_readfirstlane_b32 s3, v27")
        e("s_nop 3")
        e("s_cmp_eq_u32 s3, 4")
        e(f"s_cbranch_scc0 {lp}")
        rl = res_list(True, 0, "a", (28, 29))
        for i, x in enumerate(sm):
            e(x)
            if i % EAS == EAS - 1 and rl: e(rl.pop(0))
        for x in rl: e(x)
    else:
        E0P = len(sm) - int(os.environ.get("E0P", "0"))
        for i, x in enumerate(sm + [None]):
            if E0[1] and i == E0P:
                e("v_lshlrev_b32 v26, 4, v2")
                ld0(True, 26)
            if x: e(x)
    e("s_nop 1")
    for rt in range(4):
        for et in (1, 0):
            o = QF(rt) if et == 0 else C1(rt)
            v = VB(et) + 2*rt
            e(f"v_mfma_f32_16x16x32_bf16 v[{o}:{o+3}], v[{v}:{v+3}], v[{C0(rt)}:{C0(rt)+3}], 0")
    e("s_nop 7")
    sq = []; regs = []
    for rt in range(4):
        o0 = QF(rt); o1 = C1(rt); t = C0(rt)
        T = 16 + rt*4
        o = [f"v_mov_b32 v{t}, v{o1+3}",
             f"v_cvt_pk_bf16_f32 v{T}, v{o0}, v{o0+1}",
             f"v_permlane32_swap_b32 v{t+1}, v{t}",
             f"v_permlane16_swap_b32 v{t+2}, v{o1+3}",
             f"v_cvt_pk_bf16_f32 v{T+1}, v{o0+2}, v{o0+3}",
             f"v_permlane16_swap_b32 v{t+3}, v{t+1}",
             f"v_cndmask_b32 v{o1+2}, v{o1+2}, v{t+2}, s[68:69]",
             f"v_cndmask_b32 v{o1+1}, v{o1+1}, v{t+1}, s[68:69]",
             f"v_cndmask_b32 v{o1}, v{o1}, v{t+3}, s[68:69]",
             f"v_cvt_pk_bf16_f32 v{T+3}, v{o1+2}, v{o1+2}",
             f"v_cvt_pk_bf16_f32 v{T+2}, v{o1}, v{o1+1}",
             f"v_and_or_b32 v{T+3}, v{T+3}, v10, s61"]
        sq.append(o)
    ilv(sq)
    tile_store(True, False)
    stamp(vm, 5, 4)

P2P = [int(x) for x in os.environ.get("P2P", "-1,-1").split(",")]
LORD = [int(x) for x in os.environ.get("LORD", "3,2,1,0").split(",")]
TS = 80
def p2_scal(isC):
    o = ["s_and_b32 s3, s48, 3",
         "s_and_b32 s27, s26, 1",
         "s_lshl2_add_u32 s3, s27, s3",
         "s_lshl_b32 s27, s3, 11",
         f"s_add_u32 s{TS}, s59, s27"]
    if not isC: o.append(f"s_add_u32 s{TS}, s{TS}, 0x10000")
    for j in range(1, 4): o.append(f"s_add_u32 s{TS+j}, s{TS}, {j*16384}")
    o += ["s_lshl3_add_u32 s3, s25, s3",
          f"s_mul_i32 s87, s3, {16*1792}",
          "s_mul_i32 s3, s24, 896",
          "s_add_u32 s87, s87, s3",
          "s_add_u32 s87, s87, s55"]
    return o
def p2_valu(isB, isC):
    o = ["v_and_b32 v13, 15, v2",
         "v_lshrrev_b32 v15, 4, v2",
         "v_mul_u32_u24 v13, 1792, v13",
         "v_and_b32 v10, 1, v15",
         "v_lshl_add_u32 v14, v15, 3, v13",
         "v_lshl_add_u32 v10, v10, 5, v13",
         "v_lshrrev_b32 v15, 1, v15",
         "s_and_b32 s3, s48, 3",
         "v_lshl_add_u32 v10, v15, 4, v10",
         "s_lshl_b32 s27, s3, 3",
         "s_mul_i32 s3, s3, 7168",
         f"s_add_u32 s27, s27, {FLG+16}",
         f"s_add_u32 s3, s3, {RED_B if isB else RED_A}",
         "v_mov_b32 v11, s27",
         "v_add_u32 v12, s3, v6",
         "v_mov_b32 v4, 1",
         "s_mov_b32 s78, 0",
         "s_mov_b32 s79, 15",
         "s_mov_b32 s68, 0x10000"]
    return o
def wbase(isB, kh):
    if isB: return (B_wo(2), B_wo(12)) if kh == 0 else (B_wo(0), B_wo(6))
    return (UP if kh else 0, None)
def wloc(isB, kh, j):
    if not isB: return (0, 2*j)
    return ((0, 0), (0, 2), (1, 0), (1, 2))[j] if kh == 0 else ((0, 0), (1, 0), (1, 2), (1, 4))[j]
def rdf2(isB, kh, j, f, B2=(5, 7)):
    hh, nt = divmod(f, 7)
    k, r = wreg(j, f)
    b2, bo = wloc(isB, kh, j)
    o = (bo+hh)*WB + nt*32
    if not isB and kh == 0: o = POSA[2*j+hh] + nt*32
    return [f"ds_read_b64_tr_b16 {k}[{r}:{r+1}], v{B2[0] if b2 else 8} offset:{o}",
            f"ds_read_b64_tr_b16 {k}[{r+2}:{r+3}], v{B2[1] if b2 else 9} offset:{o}"]
def base2_ops(isB, kh, B2=(5, 7)):
    b1, b2 = wbase(isB, kh)
    return [f"v_add_u32 v{B2[0]}, {b2-b1}, v8", f"v_add_u32 v{B2[1]}, {b2-b1}, v9"] if b2 else []
def res_list(isB, kh, part, B2=(5, 7)):
    o = []
    for fs in ([range(NA)] if "a" in part else []) + ([range(NA, NRES)] if "v" in part else []):
        for j in (LORD if kh else range(4)):
            for f in fs: o += rdf2(isB, kh, j, f, B2)
    return o
def p2_lsetup(isB, scal=True):
    wo_bases(wbase(isB, 1)[0])
    for x in base2_ops(isB, 1): e(x)
    e("v_lshlrev_b32 v6, 4, v2")
    for x in (p2_scal(False) if scal else []) + p2_valu(isB, False): e(x)
CLD = pr2("CLD", "50,50")
LLD = pr2("LLD", "100,100")
EAR = [0, 0]
PRE0 = int(os.environ.get("PRE0", "12"))
CKP = int(os.environ.get("CKP", "4"))
LS0 = pr2("LS0", "0,0")
LS1 = pr2("LS1", "0,0")
E0 = pr2("E0", "1,1")
F0L = pr2("F0L", "1,1")
def s0reg(isB): return [116, 120] if isB else [64, 68]
def ld0(isB, va):
    for k in range(2):
        r = s0reg(isB)[k]
        e(f"buffer_load_dwordx4 v[{r}:{r+3}], v{va}, s[40:43], s{TS} offen offset:{k*1024} {FPOL}")
def p2_reads(isB, isC):
    kh = 0 if isC else 1
    ORD = list(range(4)) if isC else LORD
    FB = E0[isB] if isC else F0L[isB]
    def late(j, f):
        k, r = wreg(j, f)
        return FB and isC and k == "v" and r in s0reg(isB)
    r0 = [x for f in range(14 if FB else NRES) for x in rdf2(isB, kh, ORD[0], f)]
    rl = [x for fs in (range(NA), range(NA, NRES)) for j in ORD[1:] for f in fs if not late(j, f) for x in rdf2(isB, kh, j, f)]
    rlate = [x for j in ORD[1:] for f in range(NRES) if late(j, f) for x in rdf2(isB, kh, j, f)]
    return r0, rl, rlate
def p2(isB, isC):
    lab(f"P2_{'B' if isB else 'A'}{'C' if isC else 'L'}")
    c("---- P2: wave = (16 rows, K half) x 112 cols ----")
    kh = 0 if isC else 1
    ORD = list(range(4)) if isC else LORD
    T3 = False
    FB = E0[isB] if isC else F0L[isB]
    def ld(j, pol=None):
        for hh in range(2):
            r = oreg(j, hh)
            e(f"buffer_load_dwordx4 v[{r}:{r+3}], v6, s[40:43], s{TS+j} offen offset:{hh*1024} {PPOL if pol is None else pol}")
    def nxt(j): return ORD[(ORD.index(j) + 1) % 4]
    def dummy(j): return f"buffer_load_dword v3, off, s[40:43], s{TS+j}"
    def mf(j, f, z=False):
        hh, nt = divmod(f, 7)
        k, wr = wreg(j, f)
        a = AC + nt*4; r = s0reg(isB)[hh] if (z and isC) else oreg(j, hh)
        return f"v_mfma_f32_16x16x32_bf16 v[{a}:{a+3}], {k}[{wr}:{wr+3}], v[{r}:{r+3}], " + ("0" if (z and hh == 0) else f"v[{a}:{a+3}]")
    def chk(j, pend=True):
        t = [oreg(j, hh) + 3 for hh in range(2)]
        if isC and not pend: t = [r + 3 for r in s0reg(isB)]
        o = [f"v_xor_b32 v{r}, s61, v{r}" for r in t]
        o += [f"v_or_b32 v13, v{t[0]}, v{t[1]}",
              "v_cmp_gt_u32 vcc, s68, v13",
              "s_cmp_eq_u64 vcc, -1"]
        if pend: o += ["s_cselect_b32 s3, s79, 0", f"s_bitcmp1_b32 s3, {j}"]
        return o
    U = {j: {n: uid(n) for n in ("CK", "RN", "SL", "DM", "LS")} for j in range(4)}
    done = uid("PDN"); fb = uid("PFB"); f0 = uid("F0")
    s0 = ORD[0]
    st_flush()
    tr(0)
    if isC:
        e("v_lshlrev_b32 v6, 4, v2")
        e(f"v_mov_b32 v3, {FLG}")
        for x in base2_ops(isB, 0): e(x)
        spin2(4, 4)
    else:
        e("s_waitcnt vmcnt(0)")
        e("s_mov_b64 exec, 1")
        e("ds_add_u32 v3, v4 offset:4")
        e("s_mov_b64 exec, -1")
        if LS0[isB]: e(f"s_sleep {LS0[isB]}")
    r0, rl, rlate = p2_reads(isB, isC)
    fill = p2_valu(isB, True) if isC else []
    sk0 = RDN if (not isB and not isC) else 0
    cut = min(max(len(r0), sk0) + PRE0, len(r0 + rl))
    pre = (r0 + rl)[sk0:cut]
    if not isC and FB and LS1[isB] >= len(pre): ld(s0, FPOL)
    for i, x in enumerate(pre):
        if not isC and FB and i == LS1[isB]: ld(s0, FPOL)
        e(x)
        if fill: e(fill.pop(0))
    for x in fill: e(x)
    rem = (r0 + rl)[cut:]
    hk = (CLD if isC else LLD)[isB] * len(rem) // 100
    if FB and isC and not isB: hkr = len(rem)
    else: hkr = hk
    def hook(lst):
        if not isC and LSL[isB]: e(f"s_sleep {LSL[isB]}")
        for j in lst: ld(j, FPOL)
    def endph():
        if P2P[kh] >= 0: e(f"s_setprio {P2P[kh]}")
        stamp(None, 6 if isC else 39, 1)
        tr(1)
        if STAMP or TR: e("s_waitcnt lgkmcnt(0)")
        st_flush(False)
    if FB:
        e(f"s_waitcnt vmcnt({4 if isC else 0})")
        for x in chk(s0, False): e(x)
        e(f"s_cbranch_scc0 {f0}")
        tr(2 + s0)
        e(f"s_bitset0_b32 s79, {s0}")
        e(f"s_waitcnt lgkmcnt({PRE0 if not TR else 0})")
        n = 0
        per = -(-len(rem) // 14)
        for f in range(14):
            e(mf(s0, f, True))
            for q in range(per):
                if n < len(rem):
                    if n == hkr: hook(ORD[1:])
                    e(rem[n]); n += 1
        for x in rlate: e(x)
        if hkr >= len(rem): hook(ORD[1:])
        for q in range(2): e(dummy(s0))
        endph()
        e(f"s_branch {U[ORD[1]]['CK']}")
        lab(f0)
    z = [f"v_mov_b32 v{AC+r}, 0" for r in range(28)]
    for n, x in enumerate(rem):
        if n == hk: hook(ORD)
        e(x)
        if z: e(z.pop(0))
    for x in z: e(x)
    for x in rlate: e(x)
    if hk >= len(rem): hook(ORD)
    endph()
    rr = [f"ds_read_b128 v[{PRT+t*4}:{PRT+t*4+3}], v12 offset:{t*1024}" for t in range(7)]
    NV = 2*3*(NRES-NA)
    for j in ORD:
        u = U[j]; nj = nxt(j)
        lab(u["CK"])
        e("s_waitcnt vmcnt(6)")
        for x in chk(j): e(x)
        e(f"s_cbranch_scc0 {u['SL']}")
        e("s_waitcnt lgkmcnt(15)")
        lab(u["RN"])
        tr(2 + j)
        e(f"s_bitset0_b32 s79, {j}")
        e("s_cmp_eq_u32 s79, 0")
        for f in range(NRES):
            if f == NA: e("s_waitcnt lgkmcnt(8)") if not TR else e("s_waitcnt lgkmcnt(0)")
            e(mf(j, f))
            if NRES + f < 14:
                for x in rdf2(isB, kh, j, NRES + f): e(x)
            if f in (4, 5): e(dummy(j))
        e(f"s_cbranch_scc1 {u['LS']}")
        ck = ["s_waitcnt vmcnt(6)"] + chk(nj)
        per = -(-len(ck) // CKP)
        assert CKP <= 4
        for f in range(NRES, 14):
            if f >= 14 - CKP:
                for q in range(per):
                    if ck: e(ck.pop(0))
            e(f"s_waitcnt lgkmcnt({2*(13-f)})") if not TR else e("s_waitcnt lgkmcnt(0)")
            e(mf(j, f))
        assert not ck
        e(f"s_cbranch_scc1 {U[nj]['RN']}")
        e(f"s_branch {U[nj]['SL']}")
        lab(u["LS"])
        e("s_waitcnt lgkmcnt(0)")
        ex = [["s_mov_b64 exec, 1", "ds_add_rtn_u32 v15, v11, v4", "ds_read_b32 v13, v11 offset:4", "s_mov_b64 exec, -1"]]
        if KVF and not isB and not isC: ex[0].insert(3, "ds_read_b32 v5, v11 offset:32")
        ex += [rr[0:2], rr[2:4], rr[4:6], rr[6:7]]
        for x in ex[0]: e(x)
        for n, f in enumerate(range(NRES, 14)):
            e(mf(j, f))
            for x in ex[n+1]: e(x)
        e(f"s_branch {done}")
        lab(u["SL"])
        e(f"s_bitcmp1_b32 s79, {j}")
        e(f"s_cbranch_scc0 {u['DM']}")
        if SLP: e(f"s_sleep {SLP}")
        ld(j)
        nx = uid("NX")
        e(f"s_branch {nx}")
        lab(u["DM"])
        for q in range(2): e(dummy(j))
        lab(nx)
    top = U[ORD[0]]["CK"]
    e("s_add_u32 s78, s78, 1")
    e(f"s_cmp_lt_u32 s78, {NP}")
    e(f"s_cbranch_scc1 {top}")
    e(f"s_branch {fb}")
    lab(done)
    if not T3: tr(6)
    if STAMP and (SIDS is None or 11 in SIDS):
        stamp(None, 11 if isC else 40, 1)
    fin = uid("FIN"); sec = uid("SEC"); sp = uid("SPN")
    e("s_waitcnt lgkmcnt(7)") if not (TR or STAMP) else e("s_waitcnt lgkmcnt(0)")
    st_flush(False)
    e("v_readfirstlane_b32 s3, v13")
    e("v_readfirstlane_b32 s27, v15")
    e("s_nop 2")
    e("s_cmp_eq_u32 s3, 1")
    e(f"s_cbranch_scc1 {fin}")
    e("s_cmp_eq_u32 s27, 0")
    e(f"s_cbranch_scc0 {sec}")
    if KVF and not isB and not isC:
        g1 = uid("G1"); g2 = uid("G2")
        lab(g1)
        e("v_readfirstlane_b32 s3, v5")
        e("s_nop 3")
        e("s_cmp_eq_u32 s3, 4")
        e(f"s_cbranch_scc1 {g2}")
        e("ds_read_b32 v5, v11 offset:32")
        e("s_waitcnt lgkmcnt(0)")
        e(f"s_branch {g1}")
        lab(g2)
    else: e("s_nop 3")
    for t in range(7):
        e(f"ds_write_b128 v12, v[{AC+t*4}:{AC+t*4+3}] offset:{t*1024}")
    e("s_mov_b64 exec, 1")
    e("s_waitcnt lgkmcnt(0)")
    e("ds_write_b32 v11, v4 offset:4")
    e("s_waitcnt lgkmcnt(0)")
    e("s_mov_b64 exec, -1")
    endc = uid("ENDC")
    if TR and not T3: tr(7)
    e(f"s_branch {endc}") if (TR or STAMP) else e("s_endpgm")
    lab(sec)
    e("s_mov_b32 s69, 0")
    lab(sp)
    e("ds_read_b32 v13, v11 offset:4")
    for x in rr: e(x)
    e("s_add_u32 s69, s69, 1")
    e("s_cmp_gt_u32 s69, 0x400000")
    e("s_cbranch_scc1 K_END")
    e("s_waitcnt lgkmcnt(7)")
    e("v_readfirstlane_b32 s3, v13")
    e("s_nop 3")
    e("s_cmp_eq_u32 s3, 1")
    e(f"s_cbranch_scc0 {sp}")
    lab(fin)
    if TR and not T3: tr(7)
    sk = uid("NS")
    e("s_and_b32 s3, s48, 3")
    e("s_or_b32 s3, s26, s3")
    e(f"s_cbranch_scc1 {sk}")
    e("v_mov_b32 v13, s93")
    e("buffer_store_dword v13, off, s[40:43], s60 sc0 sc1")
    lab(sk)
    D = 104
    def addt(t):
        a = AC + t*4; r = PRT + t*4; d = D + t*2
        e(f"s_waitcnt lgkmcnt({6-t})") if not TR else e("s_waitcnt lgkmcnt(0)")
        e(f"v_pk_add_f32 v[{a}:{a+1}], v[{a}:{a+1}], v[{r}:{r+1}]")
        e(f"v_pk_add_f32 v[{a+2}:{a+3}], v[{a+2}:{a+3}], v[{r+2}:{r+3}]")
        e(f"v_cvt_pk_bf16_f32 v{d}, v{a}, v{a+1}")
        e(f"v_cvt_pk_bf16_f32 v{d+1}, v{a+2}, v{a+3}")
    def sw(pr):
        d = D + pr*4
        e(f"v_permlane16_swap_b32 v{d}, v{d+2}")
        e(f"v_permlane16_swap_b32 v{d+1}, v{d+3}")
    def st(pr):
        d = D + pr*4
        e(f"buffer_store_dwordx4 v[{d}:{d+3}], v10, s[88:91], s87 offen offset:{pr*64} " + OPOL)
    addt(0); addt(1); addt(2); sw(0); addt(3); st(0); addt(4); sw(1); addt(5); st(1); addt(6); sw(2)
    e(f"buffer_store_dwordx2 v[{D+12}:{D+13}], v14, s[88:91], s87 offen offset:192 " + OPOL)
    e("s_nop 0")
    st(2)
    lab(endc)
    stamp(None, 9 if isC else 41, 1)
    if TR:
        tr(8)
        e("s_waitcnt lgkmcnt(0)")
        e("s_lshl_b32 s74, s2, 9")
        e("s_lshl_b32 s3, s48, 6")
        e("s_add_u32 s74, s74, s3")
        e("s_add_u32 s74, s74, 0x910000")
        e("s_mov_b64 exec, 1")
        for k in range(9):
            e(f"v_mov_b32 v4, s{4+2*k}")
            e(f"buffer_store_dword v4, off, s[40:43], s74 offset:{k*4}")
        e("v_mov_b32 v4, s78")
        e(f"buffer_store_dword v4, off, s[40:43], s74 offset:36")
        e("s_mov_b64 exec, -1")
    if not isC: stamp(None, 2, 1)
    e("s_endpgm")
    lab(fb)
    nc = uid("NC"); cp = uid("CP")
    e("s_waitcnt vmcnt(0)")
    e("s_lshl_b32 s57, s24, 4")
    e("s_add_u32 s57, s57, s25")
    e("s_lshl_b32 s57, s57, 7")
    e(f"s_add_u32 s57, s57, 0x{EPO:x}")
    e(f"s_cmp_eq_u32 s78, {NP}")
    e(f"s_cbranch_scc0 {nc}")
    e("s_lshl_b32 s3, s26, 14")
    e("s_add_u32 s62, s59, s3")
    e("s_mov_b32 s69, 0")
    lab(cp)
    for half in range(2):
        rl = uid("RL")
        lab(rl)
        e("v_mov_b32 v13, 0")
        for b in range(8):
            r = OF + b*4
            e(f"s_add_u32 s3, s62, {(half*8+b)*1024}")
            e(f"buffer_load_dwordx4 v[{r}:{r+3}], v6, s[40:43], s3 offen sc0 sc1")
        e("s_waitcnt vmcnt(0)")
        for b in range(8):
            e(f"v_xor_b32 v15, s61, v{OF+b*4+3}")
            e("v_or_b32 v13, v13, v15")
        e("v_cmp_gt_u32 vcc, 0x10000, v13")
        e("s_add_u32 s69, s69, 1")
        e("s_cmp_gt_u32 s69, 0x40000")
        e("s_cbranch_scc1 K_END")
        e("s_cmp_eq_u64 vcc, -1")
        e(f"s_cbranch_scc0 {rl}")
        for b in range(8):
            r = OF + b*4
            e(f"s_add_u32 s3, s62, 0x{TLQ + (half*8+b)*1024:x}")
            e(f"buffer_store_dwordx4 v[{r}:{r+3}], v6, s[40:43], s3 offen sc0 sc1")
        e("s_waitcnt vmcnt(0)")
    e("s_lshl_b32 s3, s26, 2")
    e("s_add_u32 s3, s3, s57")
    e("v_mov_b32 v15, s93")
    e("buffer_store_dword v15, off, s[40:43], s3 sc0 sc1")
    e("s_mov_b32 s68, 0x100000")
    lab(nc)
    e("v_and_b32 v15, 3, v2")
    e("v_lshlrev_b32 v15, 2, v15")
    e(f"buffer_load_dword v13, v15, s[40:43], s57 offen offset:{kh*16} sc0 sc1")
    e("s_waitcnt vmcnt(0)")
    e("v_cmp_eq_u32 vcc, s93, v13")
    for j in range(4):
        e(f"s_or_b32 s3, s{TS+j}, 0x{TLQ:x}")
        e(f"s_bitcmp1_b32 vcc_lo, {j}")
        e(f"s_cselect_b32 s{TS+j}, s3, s{TS+j}")
    for j in ORD: ld(j, "sc0 sc1")
    e("s_cmp_lt_u32 s78, 0x40000")
    e(f"s_cbranch_scc1 {top}")
    e("s_endpgm")

PF = os.environ.get("PF", "1") == "1"
PFT0 = int(os.environ.get("PFT0", "4"))
PFC = os.environ.get("PFC", "0") == "1"
PFD = int(os.environ.get("PFD", "6"))
PF2 = os.environ.get("PF2", "0")
PFW = [int(x) for x in os.environ.get("PFW", "5,2").split(",")]
PFQ = int(os.environ.get("PFQ", "-1"))
PFPOL = os.environ.get("PFPOL", "")
def pf_setup(isB):
    NW = 42 if isB else 28
    e("s_lshl_b32 s3, s23, 2")
    e("s_add_u32 s3, s3, s48")
    e("s_and_b32 s27, s3, 63")
    if PFC: e("s_lshr_b32 s80, s3, 6")
    e("s_lshl_b32 s3, s3, 6")
    e("v_add_u32 v4, s3, v2")
    e("v_min_u32 v4, 6271, v4")
    e("v_lshlrev_b32 v11, 6, v4")
    if not isB:
        e("v_mul_u32_u24 v5, 9363, v4")
        e("v_lshrrev_b32 v5, 17, v5")
        e("v_mul_u32_u24 v5, 1792, v5")
        e("v_add_u32 v4, v5, v11")
    if not PFC: return
    e("s_lshl_b32 s3, s27, 6")
    e("v_add_u32 v5, s3, v2")
    if isB:
        e("v_lshlrev_b32 v10, 6, v5")
    else:
        e("v_mul_u32_u24 v6, 2341, v5")
        e("v_lshrrev_b32 v6, 16, v6")
        e("v_mul_u32_u24 v6, 896, v6")
        e("v_lshl_add_u32 v10, v5, 6, v6")
        e("v_add_u32 v10, 896, v10")
    e(f"v_subrev_u32 v5, {NW*64}, v5")
    e("v_min_u32 v5, 1023, v5")
    e("v_lshrrev_b32 v6, 1, v5")
    e("s_and_b32 s3, s22, 3")
    e("s_lshl_b32 s3, s3, 9")
    e("v_add_u32 v6, s3, v6")
    e("v_mul_u32_u24 v6, 896, v6")
    e("v_and_b32 v5, 1, v5")
    e("v_lshl_add_u32 v6, v5, 6, v6")
    e(f"s_cmp_lt_u32 s27, {NW}")
    e("s_cselect_b64 vcc, -1, 0")
    e("v_cndmask_b32 v10, v6, v10, vcc")
def pf_setup2(isB):
    NW = 42 if isB else 28
    e(f"s_cmp_lt_u32 s27, {NW}")
    e("s_cselect_b32 s4, s32, s28")
    e("s_cselect_b32 s5, s33, s29")
    e("s_cselect_b32 s6, s34, s30")
    e("s_mov_b32 s7, 0x20000")
    e("s_cselect_b32 s12, 1344, 1")
    e("s_lshl_b32 s12, s12, 7")
    e("s_add_u32 s3, s80, 2")
    e("s_mul_i32 s13, s12, s3")
    e("s_mul_i32 s15, s12, 6")
    e("s_lshl_b32 s12, s12, 1")
def pf_step(vm):
    e(f"buffer_load_dword v30, v10, s[4:7], s13 offen {PFPOL}")
    vm.issue("pf")
    e("s_add_u32 s13, s13, s12")
    e("s_min_u32 s13, s13, s15")
def slp(n):
    while n > 0:
        e(f"s_sleep {min(n, 127)}"); n -= 127
def pf_pre(vm):
    slp(PFT0)
    sk = uid("PFS")
    e("s_cmp_eq_u32 s80, 0")
    e(f"s_cbranch_scc1 {sk}")
    slp(PFD)
    lab(sk)
    pf_step(vm)
    slp(2*PFD)
    pf_step(vm)
    if PF2 == "t":
        slp(2*PFD)
        pf_step(vm)
PFA = os.environ.get("PFA", "0") == "1"
PFAM = int(os.environ.get("PFAM", "3"))
PFNQ = os.environ.get("PFNQ", "1") == "1"
PFW4S = [int(x) for x in os.environ.get("PFW4", "4,4").split(",")]
if len(PFW4S) == 1: PFW4S = PFW4S*2
PFR = int(os.environ.get("PFR", "0"))
PFRO = int(os.environ.get("PFRO", "0"))
PFG = int(os.environ.get("PFG", "128"))
PFN = int(os.environ.get("PFN", "7"))
LDL = int(os.environ.get("LDL", "0"))
def pfa_setup(isB):
    e("s_lshl_b32 s3, s23, 6")
    e("v_add_u32 v5, s3, v2")
    e("v_lshlrev_b32 v10, 7, v5")
    if not isB and PFNQ:
        e("v_min_u32 v6, 895, v5")
        e("v_mul_u32_u24 v7, 4682, v6")
        e("v_lshrrev_b32 v7, 16, v7")
        e("v_mul_u32_u24 v7, 896, v7")
        e("v_lshl_add_u32 v10, v6, 7, v7")
        e("v_add_u32 v10, 896, v10")
    e(f"v_subrev_u32 v5, {1344+16}, v5")
    e("v_min_i32 v5, 511, v5")
    e("s_and_b32 s3, s22, 3")
    e("s_lshl_b32 s3, s3, 9")
    e("v_add_u32 v5, s3, v5")
    e("v_max_i32 v5, 0, v5")
    e("v_mul_u32_u24 v5, 896, v5")
    e("s_cmp_lt_u32 s23, 21")
    e("s_cselect_b64 vcc, -1, 0")
    e("v_cndmask_b32 v10, v5, v10, vcc")
    e("s_add_u32 s80, s81, s48")
def pfa_issue(vm, isB):
    PFW4 = PFW4S[isB]
    e("s_cmp_lt_u32 s23, 21")
    e("s_cselect_b32 s4, s32, s28")
    e("s_cselect_b32 s5, s33, s29")
    e("s_cselect_b32 s6, s34, s30")
    e("s_mov_b32 s7, 0x20000")
    e("s_cselect_b32 s12, 1344, 1")
    e("s_lshl_b32 s12, s12, 7")
    sk = uid("PFK")
    if PFW4 < 4:
        e(f"s_cmp_ge_u32 s48, {PFW4}")
        e(f"s_cbranch_scc1 {sk}")
    for k in range(2):
        if k == 1:
            if PFN <= 4: break
            e("s_add_u32 s80, s80, 4")
        e("s_cmp_ge_u32 s80, 7")
        e("s_cselect_b32 s3, 7, 0")
        e("s_sub_u32 s80, s80, s3")
        e("s_mul_i32 s13, s12, s80")
        e(f"buffer_load_dword v30, v10, s[4:7], s13 offen {PFPOL}")
        vm.issue("pf")
        if PFG == 64:
            e(f"buffer_load_dword v30, v10, s[4:7], s13 offen offset:64 {PFPOL}")
            vm.issue("pf")
    lab(sk)
CPF = int(os.environ.get("CPF", "-2"))
def code_pf(vm):
    lb = uid("CPC")
    e("s_getpc_b64 s[8:9]")
    lab(lb)
    e(f"s_sub_u32 s8, s8, {lb}-{NAME}_kernel")
    e("s_subb_u32 s9, s9, 0")
    e("s_and_b32 s9, s9, 0xffff")
    e(f"s_mov_b32 s10, K_END-{NAME}_kernel")
    e("s_mov_b32 s11, 0x20000")
    e("s_lshl_b32 s3, s23, 2")
    e("s_add_u32 s3, s3, s48")
    e("s_lshl_b32 s3, s3, 10")
    e("v_lshlrev_b32 v5, 6, v2")
    e("s_mov_b64 exec, 0xffff")
    e("buffer_load_dword v30, v5, s[8:11], s3 offen")
    e("s_mov_b64 exec, -1")
    vm.issue("pf")
def pf_bar(vm, isB, ch):
    k = PFW4S[isB] + ch - PFRO
    if PFA and (PFAM >> isB) & 1 and (PFR >> isB) & 1 and PFW4S[isB] <= k < 7:
        sk = uid("PFR")
        e(f"s_cmp_eq_u32 s48, {k % 4}")
        e(f"s_cbranch_scc0 {sk}")
        e(f"s_add_u32 s80, s81, {k}")
        e("s_cmp_ge_u32 s80, 7")
        e("s_cselect_b32 s3, 7, 0")
        e("s_sub_u32 s80, s80, s3")
        e("s_mul_i32 s13, s12, s80")
        e(f"buffer_load_dword v30, v10, s[4:7], s13 offen {PFPOL}")
        lab(sk)
    if CPF == ch: code_pf(vm)
    if PP:
        for q in range(2):
            if PPB[q] == ch:
                sk = uid("PP2")
                e(f"s_cmp_eq_u32 s48, {q}")
                e(f"s_cbranch_scc0 {sk}")
                pp_addr(0, 5 + q)
                pp_ld()
                lab(sk)
    if not PF: return
    if PFC and PF2 == str(ch): pf_step(vm)
    if PFW[isB] == ch and not PFL:
        e(f"buffer_load_dword v30, v11, s[36:39], 0 offen {PFPOL}")
        vm.issue("pf")
    if not isB and PFQ == ch:
        e(f"buffer_load_dword v30, v4, s[32:35], 0 offen {PFPOL}")
        vm.issue("pf")

def compute(isB):
    lab("C_B" if isB else "C_A")
    if WST and not WST2: e("s_memrealtime s[96:97]")
    vm = VM()
    ka_rest()
    scal1(isB)
    scal2()
    for x in p2_scal(True): e(x)
    comp_setup(isB)
    if PF: pf_setup(isB)
    pfa = PFA and (PFAM >> isB) & 1
    if pfa: pfa_setup(isB)
    e(f"v_mov_b32 v6, {FLG}")
    e("v_mov_b32 v7, 1")
    srd_xw_pre()
    srd_rest()
    srd_xw()
    if pfa: pfa_issue(vm, isB)
    elif PF and PFC: pf_setup2(isB)
    if PP and not PPE: pp_cissue()
    wmark(1)
    stamp(vm, 0)
    stamp(vm, 1)
    if CN: e("v_mov_b32 v3, 0")
    else: nonce_issue(vm)
    wmark(2)
    if PRE:
        e("s_mul_i32 s3, s25, 229376")
        e("s_mul_i32 s27, s24, 896")
        e("s_add_u32 s3, s3, s27")
        e("buffer_load_dword v30, v3, s[88:91], s3 offen"); vm.issue("pre")
        e("buffer_load_dword v30, v3, s[36:39], s55 offen"); vm.issue("pre")
        if not PST: e("buffer_load_dword v30, v3, s[40:43], s59 offen"); vm.issue("pre")
    wmark(3)
    if PK and PKT:
        e("s_andn2_b32 s3, s2, 0x18")
        e("s_lshl3_add_u32 s3, s48, s3")
        e(f"s_mul_i32 s3, s3, {IMG}")
        e(f"s_add_u32 s3, s3, 0x{PKB:x}")
        e("buffer_load_dword v30, v3, s[40:43], s3 offen"); vm.issue("pre")
        e("buffer_load_dword v30, v3, s[44:47], 0 offen"); vm.issue("pre")
    if XDW:
        e("v_lshlrev_b32 v30, 4, v0")
        e("s_lshl_b32 s3, s2, 12")
        e("s_add_u32 s3, s3, 0x1000000")
        for k in range(XDW):
            e("buffer_store_dwordx4 v[12:15], v30, s[40:43], s3 offen"); vm.issue("xdw")
            e("s_add_u32 s3, s3, 0x100000")
    if PST == 1: prestore(vm, isB)
    if PF and PFC: pf_pre(vm)
    if CPF == -1: code_pf(vm)
    vq = gemm(vm, isB)
    stamp(vm, 3)
    if isB: epi_B(vm)
    else: epi_A(vm, vq)
    p2(isB, True)
    p2(isB, False)

def kernel():
    lab(f"{NAME}_kernel")
    prologue()
    if os.environ.get("LAF") == "1":
        loader(False); loader(True)
    else:
        loader(True); loader(False)
    compute(True)
    compute(False)
    for lw in range(4): tailA(lw)
    lab("K_END")
    e("s_endpgm")

HDR = open("cdna_kernels/" + NAME + ".s.ref").read().split("; @launch")[0]
kernel()
out = HDR
out += f"; @launch grid=(256,1,1) block=(512,1,1) lds={LDS_TOTAL}\n"
out += '.amdgcn_target "amdgcn-amd-amdhsa--gfx950"\n.text\n'
out += f".globl {NAME}_kernel\n.p2align 8\n.type {NAME}_kernel,@function\n"
out += "\n".join(L) + "\n"
out += f""".section .rodata,"a"
.p2align 6
.amdhsa_kernel {NAME}_kernel
  .amdhsa_next_free_vgpr 256
  .amdhsa_next_free_sgpr {102 if (WST or S3) else 96}
  .amdhsa_accum_offset 144
  .amdhsa_group_segment_fixed_size 0
  .amdhsa_kernarg_size 72
  .amdhsa_user_sgpr_count 2
  .amdhsa_user_sgpr_kernarg_segment_ptr 1
  .amdhsa_system_sgpr_workgroup_id_x 1
.end_amdhsa_kernel
"""
path = sys.argv[1] if len(sys.argv) > 1 else f"cdna_kernels/{NAME}.s"
open(path, "w").write(out)
```
